```python
import torch

def _softmax(x, axis=-1):
    return torch.softmax(x, dim=axis)

def _gelu(x):
    return torch.nn.functional.gelu(x, approximate='tanh')

def _silu(x):
    return torch.nn.functional.silu(x)

def _sigmoid(x):
    return torch.sigmoid(x)

def _layernorm(x, axis=-1, eps=1e-05):
    m = x.mean(dim=axis, keepdim=True)
    v = x.var(dim=axis, keepdim=True, unbiased=False)
    return (x - m) / torch.sqrt(v + eps)

def _scatter_add(tgt, idx, src, axis=0):
    return tgt.clone().index_add_(axis, idx, src)

def _segment_sum(src, seg, n):
    out = torch.zeros((n,) + src.shape[1:], dtype=src.dtype)
    return out.index_add_(0, seg, src)

def _pad(x, pw):
    flat = tuple((v for pair in reversed(pw) for v in pair))
    return torch.nn.functional.pad(x, flat)
kernel_name = 'adaLN_cond__sliding_block_cached__mixer_channel_mlp__prompt'

def setup_inputs():

    _w = lambda a: (lambda t: t.to(torch.bfloat16) if t.is_floating_point() else t)(torch.as_tensor(a))

    def _A_setup():
        B, Sq, D = (1, 2048, 512)
        Hq, Hkv, Sk, Dh = (32, 8, 2048, 128)
        assert Hq % Hkv == 0, (Hq, Hkv)
        return {'x': _w((lambda *s: torch.randn(*s, dtype=torch.bfloat16) * 0.1)(B, Sq, D)), 'k_cache': _w((lambda *s: torch.randn(*s, dtype=torch.bfloat16) * 0.8)(B, Hkv, Sk, Dh)), 'v_cache': _w((lambda *s: torch.randn(*s, dtype=torch.bfloat16) * 1.6)(B, Hkv, Sk, Dh)), 'wq': _w((lambda *s: torch.randn(*s, dtype=torch.bfloat16) * 0.8)(D, Hq * Dh) * D ** (-0.5)), 'wo': _w((lambda *s: torch.randn(*s, dtype=torch.bfloat16) * 1.6)(Hq * Dh, D) * (Hq * Dh) ** (-0.5))}
    _A_in = _A_setup()

    def _B_setup():
        B, S, D, F = (1, 2048, 512, 1792)
        return {'x': _w((lambda *s: torch.randn(*s, dtype=torch.bfloat16) * 0.1)(B, S, D)), 'w1': _w((lambda *s: torch.randn(*s, dtype=torch.bfloat16) * 3.2)(D, F) * D ** (-0.5)), 'b1': _w((lambda *s: torch.randn(*s, dtype=torch.bfloat16) * 3.2)(F)), 'w2': _w((lambda *s: torch.randn(*s, dtype=torch.bfloat16) * 3.2)(F, D) * F ** (-0.5)), 'b2': _w((lambda *s: torch.randn(*s, dtype=torch.bfloat16) * 3.2)(D))}
    _B_in = _B_setup()
    return {'A_x': _A_in['x'], 'A_k_cache': _A_in['k_cache'], 'A_v_cache': _A_in['v_cache'], 'A_wq': _A_in['wq'], 'A_wo': _A_in['wo'], 'B_x': _B_in['x'], 'B_w1': _B_in['w1'], 'B_b1': _B_in['b1'], 'B_w2': _B_in['w2'], 'B_b2': _B_in['b2'], 'c': _w((lambda *s: torch.randn(*s, dtype=torch.bfloat16) * 0.2)(1, 512) * 8.0), 'w_mod': _w((lambda *s: torch.randn(*s, dtype=torch.bfloat16) * 0.2)(512, 6 * 512) * 512 ** (-0.5) * 8.0)}

def reference(A_x, A_k_cache, A_v_cache, A_wq, A_wo, B_x, B_w1, B_b1, B_w2, B_b2, c, w_mod):

    def _A_ref(x, k_cache, v_cache, wq, wo):
        B, Sq, D = x.shape
        Hq, Dh = (32, 128)
        Hkv, Sk = (k_cache.shape[1], k_cache.shape[2])
        W = min(4096, max(256, Sk // 4))
        rep = Hq // Hkv
        q = (lambda x, *d: x.permute(*d))((x @ wq).reshape(B, Sq, Hq, Dh), 0, 2, 1, 3)
        k = (lambda x, n, axis: torch.repeat_interleave(x, n, dim=axis))(k_cache[:, :, Sk - W:, :], rep, axis=1)
        v = (lambda x, n, axis: torch.repeat_interleave(x, n, dim=axis))(v_cache[:, :, Sk - W:, :], rep, axis=1)
        scores = torch.einsum('bhqd,bhkd->bhqk', q, k) * Dh ** (-0.5)
        p = _softmax(scores, axis=-1)
        o = torch.einsum('bhqk,bhkd->bhqd', p, v)
        return (lambda x, *d: x.permute(*d))(o, 0, 2, 1, 3).reshape(B, Sq, Hq * Dh) @ wo

    def _B_ref(x, w1, b1, w2, b2):
        y = _layernorm(x, axis=-1)
        h = _gelu(torch.einsum('bsd,df->bsf', y, w1) + b1)
        return torch.einsum('bsf,fd->bsd', h, w2) + b2
    x = A_x
    mod = (_silu(c) @ w_mod).reshape(c.shape[0], 6, 1, -1)
    sa, ca, ga, sb, cb, gb = (mod[:, 0].clone(), mod[:, 1].clone(), mod[:, 2].clone(), mod[:, 3].clone(), mod[:, 4].clone(), mod[:, 5].clone())
    h = _layernorm(x, axis=-1) * (1 + ca) + sa
    x = x + ga * _A_ref(h, A_k_cache, A_v_cache, A_wq, A_wo)
    h = _layernorm(x, axis=-1) * (1 + cb) + sb
    x = x + gb * _B_ref(h, B_w1, B_b1, B_w2, B_b2)
    return x
```

```python
import re
REG = re.compile(r'(?<![\w.])([vas])(?:\[(\d+):(\d+)\]|(\d+))(?![\w\[])')
def regs_of(txt):
    out = []
    for m in REG.finditer(txt):
        k = m.group(1)
        if m.group(2) is not None:
            out += [(k, i) for i in range(int(m.group(2)), int(m.group(3)) + 1)]
        else:
            out.append((k, int(m.group(4))))
    for nm in ("vcc", "exec", "m0"):
        if re.search(r'(?<![\w.])' + nm + r'(?![\w])', txt): out.append((nm, 0))
    return out
TRANS = ("v_exp_f32", "v_log_f32", "v_rcp_f32", "v_rsq_f32", "v_sqrt_f32")
class I:
    __slots__ = ("txt", "op", "rd", "wr", "kind", "tag", "need", "cost", "mc", "ma")
    def __init__(s, txt, tag=None, need=None):
        s.txt = txt.strip(); s.tag = tag; s.need = need or []
        body = s.txt.split(";")[0].strip()
        parts = body.split(None, 1); s.op = op = parts[0]
        ops = [x.strip() for x in parts[1].split(",")] if len(parts) > 1 else []
        rest = parts[1] if len(parts) > 1 else ""
        rest = re.sub(r'\b(quad_perm|op_sel|op_sel_hi|neg_lo|neg_hi):\[[^\]]*\]', '', rest)
        ops = [x.strip() for x in rest.split(",")] if rest else []
        s.rd = []; s.wr = []; s.mc = []; s.ma = []
        allr = lambda l: [r for o in l for r in regs_of(o)]
        s.cost = 1
        if op.startswith("v_mfma"):
            s.kind = "mfma"; s.wr = allr(ops[:1]); s.ma = allr(ops[1:3]); s.mc = allr(ops[3:4]); s.rd = s.ma + s.mc
        elif op.startswith("buffer_load") or op.startswith("global_load"):
            if re.search(r'\blds\b', rest) or "_lds_" in op:
                s.kind = "dma"; s.rd = allr(ops) + [("m0", 0)]
            else:
                s.kind = "vload"; s.wr = allr(ops[:1]); s.rd = allr(ops[1:])
        elif op.startswith("buffer_store") or op.startswith("global_store"):
            s.kind = "vstore"; s.rd = allr(ops)
        elif op.startswith("buffer_atomic"):
            s.kind = "vload" if "sc0" in rest else "vstore"; s.rd = allr(ops)
            if "sc0" in rest: s.wr = allr(ops[:1])
        elif op.startswith("ds_read") or op.startswith("ds_bpermute") or op.startswith("ds_swizzle"):
            s.kind = "dsr"; s.wr = allr(ops[:1]); s.rd = allr(ops[1:])
        elif op.startswith("ds_write"):
            s.kind = "dsw"; s.rd = allr(ops)
        elif op.startswith("s_load") or op in ("s_memtime", "s_memrealtime"):
            s.kind = "smem"; s.wr = allr(ops[:1]); s.rd = allr(ops[1:])
        elif op in ("s_waitcnt", "s_nop", "s_barrier", "s_sleep", "s_setprio", "s_endpgm", "s_branch") or op.startswith("s_cbranch") or op.endswith(":"):
            s.kind = "ctl"
        elif op.startswith("s_cmp") or op.startswith("s_bitcmp"):
            s.kind = "salu"; s.rd = allr(ops)
        elif op.startswith("s_"):
            s.kind = "salu"; s.wr = allr(ops[:1]); s.rd = allr(ops[1:])
            if "saveexec" in op: s.wr.append(("exec", 0)); s.rd.append(("exec", 0))
        elif op.startswith("v_"):
            s.kind = "valu"
            base = op.replace("_e32", "").replace("_e64", "")
            if base in TRANS: s.kind = "trans"; s.cost = 2
            if "permlane" in op and "swap" in op:
                s.wr = allr(ops[:2]); s.rd = allr(ops[:2])
            elif op.startswith("v_add_co") or op.startswith("v_sub_co") or op.startswith("v_addc_co"):
                s.wr = allr(ops[:2]); s.rd = allr(ops[2:])
            else:
                s.wr = allr(ops[:1]); s.rd = allr(ops[1:])
                if base.startswith("v_fmac") or base.startswith("v_dot2c") or "_dpp" in op or base.startswith("v_writelane"): s.rd += s.wr
        else:
            raise ValueError("unknown op " + txt)
    def is_valu(s): return s.kind in ("valu", "trans")
    def is_mem(s): return s.kind in ("dma", "vload", "vstore", "dsr", "dsw")

class Stream:
    def __init__(s, merge_dist=20):
        s.out = []; s.merge = merge_dist
        s.reset()
        s.nwait = 0; s.nnop = 0; s.slots = 0
    def reset(s):
        s.vm = []
        s.lg = []
        s.smem = False; s.smem_wr = set()
        s.hist = []
        s.n = 0
    def raw(s, txt):
        s.out.append(txt)
    def _emit(s, ins, states=1):
        s.out.append("    " + ins.txt); s.hist.append((ins, states)); s.n += states
        if len(s.hist) > 40: s.hist.pop(0)
    def _wait(s, vm=None, lg=None):
        t = "s_waitcnt"
        if vm is not None:
            vm = min(vm, 63); t += f" vmcnt({vm})"; del s.vm[:max(0, len(s.vm) - vm)]
        if lg is not None:
            lg = min(lg, 15); t += f" lgkmcnt({lg})"; del s.lg[:max(0, len(s.lg) - lg)]
            if lg == 0: s.smem = False; s.smem_wr = set()
        s._emit(I(t)); s.nwait += 1
    def _need_idx(s, q, regs, tags):
        last = -1
        for i, e in enumerate(q):
            if (e["wr"] & regs) or (e["tag"] is not None and e["tag"] in tags): last = i
        return last
    def add(s, ins, tag=None, need=None):
        if isinstance(ins, str): ins = I(ins, tag, need)
        if ins.op == "s_waitcnt":
            m = re.search(r'vmcnt\((\d+)\)', ins.txt); l = re.search(r'lgkmcnt\((\d+)\)', ins.txt)
            s._wait(int(m.group(1)) if m else None, int(l.group(1)) if l else None); return
        touched = set(ins.rd) | set(ins.wr); tags = set(ins.need)
        vi = s._need_idx(s.vm, touched, tags); li = s._need_idx(s.lg, touched, tags)
        vmN = lgN = None
        if vi >= 0: vmN = len(s.vm) - 1 - vi
        if li >= 0:
            j = li
            while j + 1 < len(s.lg) and s.n - s.lg[j + 1]["idx"] >= s.merge: j += 1
            lgN = len(s.lg) - 1 - j
            if s.smem: lgN = 0
        if s.smem and (touched & s.smem_wr): lgN = 0
        if vmN is not None or lgN is not None: s._wait(vmN, lgN)
        need = 0; dist = 0
        rd = set(ins.rd); wr = set(ins.wr)
        for p, st in reversed(s.hist):
            req = 0
            pw = set(p.wr)
            if p.kind == "mfma":
                n = 8 if "16x16" in p.op else 12
                if ins.kind == "mfma":
                    if pw & set(ins.ma): req = n
                    elif pw & set(ins.mc) and (set(ins.mc) != pw or p.op != ins.op): req = n - 2
                    elif pw & wr and not (pw & set(ins.mc)) : req = max(req, 0)
                elif ins.is_valu() or ins.is_mem():
                    if pw & (rd | wr): req = n
                if ins.is_valu() and set(p.mc) & wr: req = max(req, 3 if "16x16" in p.op else 7)
            elif p.is_valu():
                vw = {r for r in pw if r[0] in "va"}; sw = {r for r in pw if r[0] in ("s", "vcc")}
                if ins.kind == "mfma" and vw & rd: req = 2
                if p.op.startswith("v_dot2") and vw & (rd | wr) and not (ins.op == p.op and not (vw & set(regs_of(",".join(ins.txt.split(",")[1:]))))): req = max(req, 3)
                if ins.is_valu():
                    if p.kind == "trans" and vw & rd and ins.kind != "trans": req = max(req, 1)
                    if ("_dpp" in ins.op or "permlane" in ins.op) and vw & rd: req = max(req, 2)
                    if ("readfirstlane" in ins.op or "readlane" in ins.op) and vw & rd: req = max(req, 1)
                    if sw & rd: req = max(req, 2)
                    if "sdwa" in p.op and vw & (rd | wr): req = max(req, 1)
                if ins.is_mem() and sw & rd: req = max(req, 5)
                if ins.kind == "salu" and sw & rd: req = max(req, 1)
                if ("exec", 0) in pw: req = max(req, 5)
            elif p.kind == "salu":
                if ("m0", 0) in pw and ins.kind == "dma": req = 1
            elif p.kind == "vstore":
                if ("x4" in p.op or "x3" in p.op) and ins.is_valu() and set(p.rd) & wr: req = 2
                elif ("x4" in p.op or "x3" in p.op) and set(p.rd) & wr: req = 1
            need = max(need, req - dist)
            dist += st
            if dist >= 14: break
        while need > 0:
            k = min(need, 16); s._emit(I(f"s_nop {k-1}"), k); s.nnop += k; need -= k
        s._emit(ins)
        if ins.kind in ("dma", "vload", "vstore"):
            s.vm.append(dict(tag=ins.tag, wr=set(ins.wr), idx=s.n))
            if len(s.vm) > 63: raise RuntimeError("vmcnt overflow at " + ins.txt)
        elif ins.kind in ("dsr", "dsw"):
            s.lg.append(dict(tag=ins.tag, wr=set(ins.wr), idx=s.n))
        elif ins.kind == "smem":
            s.smem = True; s.smem_wr |= set(ins.wr)
    def A(s, text):
        for l in text.split("\n"):
            l = l.strip()
            if not l or l.startswith(";"): continue
            if l.endswith(":"): s.raw(l); continue
            s.add(l)
    def need(s, *tags):
        tags = set(tags)
        vi = s._need_idx(s.vm, set(), tags); li = s._need_idx(s.lg, set(), tags)
        vmN = len(s.vm) - 1 - vi if vi >= 0 else None
        lgN = len(s.lg) - 1 - li if li >= 0 else None
        if lgN is not None and s.smem: lgN = 0
        if vmN is not None or lgN is not None: s._wait(vmN, lgN)
    def sync(s, vm=True):
        if vm: s._wait(0, 0)
        else: s._wait(None, 0)
        s._emit(I("s_nop 7"), 8)
        s._emit(I("s_nop 3"), 4)
    def text(s): return "\n".join(s.out) + "\n"

class F:
    __slots__ = ("ins", "e", "l", "chain", "order")
    cnt = 0
    def __init__(s, txt, e, l, chain=None, tag=None, need=None):
        if isinstance(txt, tuple): s.ins = txt
        else: s.ins = I(txt, tag, need)
        s.e = e; s.l = l; s.chain = chain; F.cnt += 1; s.order = F.cnt
    def cost(s): return 1 if isinstance(s.ins, tuple) else s.ins.cost
    def mem(s): return not isinstance(s.ins, tuple) and s.ins.is_mem()

def schedule(st, mfmas, fillers, cap=2, reserve=None, verbose=None):
    pend = sorted(fillers, key=lambda f: f.order)
    over = 0
    def emit(f):
        if isinstance(f.ins, tuple):
            if f.ins[0] == "need": st.need(*f.ins[1])
            elif f.ins[0] == "barrier": st.need(*f.ins[1]); st.add("s_barrier")
            elif f.ins[0] == "call": f.ins[1]()
        else: st.add(f.ins)
    for g in range(-1, len(mfmas)):
        if g >= 0:
            w0 = st.nwait + st.nnop
            st.add(mfmas[g])
        budget = cap if g >= 0 else 0
        if reserve and g in reserve: budget -= reserve[g]
        chosen = []
        blocked = set()
        while True:
            cand = []; seen = set()
            for f in pend:
                if f in chosen: continue
                if f.chain is not None:
                    if f.chain in seen: continue
                    seen.add(f.chain)
                if f.e <= g: cand.append(f)
            due = {}
            for f in pend:
                if f in chosen: continue
                if f.chain is not None: due[f.chain] = min(due.get(f.chain, 1 << 30), f.l)
            def dl(f): return due[f.chain] if f.chain is not None else f.l
            cand.sort(key=lambda f: (dl(f), f.order))
            pick = None
            have_valu = any((not c.mem()) for c in chosen)
            for f in cand:
                if dl(f) <= g: pick = f; break
            if pick is None:
                for f in cand:
                    if f.cost() <= budget:
                        pick = f; break
            if pick is None: break
            chosen.append(pick); budget -= pick.cost()
        if budget < 0: over += -budget
        res = []
        rem = list(chosen)
        while rem:
            k = None
            for i, f in enumerate(rem):
                if f.mem() and not any(o.chain == f.chain and f.chain is not None for o in rem[:i]): k = i; break
            if k is None: k = 0
            res.append(rem.pop(k))
        for f in res:
            emit(f); pend.remove(f)
    assert not pend, [(f.ins.txt if not isinstance(f.ins, tuple) else f.ins, f.e, f.l) for f in pend[:5]]
    if verbose: print(f"[sched {verbose}] mfma {len(mfmas)} fillers {len(fillers)} over-budget slots {over}")
```

```python
import sys, os
sys.path.insert(0, os.path.join(os.path.dirname(os.path.abspath(__file__)), "tools"))
from asmgen import *
NAME = "adaLN_cond__sliding_block_cached__mixer_channel_mlp__prompt"
OPT = dict(stamps=0, stop=99)
for a in sys.argv[2:]:
    k, v = a.split("="); OPT[k] = int(v)

KA, KB, VA, VB, XR = 0, 16384, 32768, 49280, 65792
HIMG = KB
RING0, RINGSZ, UNIT = 82176, 16512, 4128
MISC = 148224
MODV = MISC
SILU = MISC + 8192
RED = MISC + 9216
LFLAG = MISC + 9728
LDS_BYTES = 163840
WS_MOD, WS_F1, WS_F2, WS_F3 = 0x1000, 0x10000, 0x20000, 0x40000
WS_Y, WS_X1, WS_H1, WS_PART = 0x200000, 0x400000, 0x600000, 0x1000000
WS_STAMP = 0xF000000
SCALE = 1.4426950408889634 / (128 ** 0.5)
import struct
def f2u(x): return struct.unpack("<I", struct.pack("<f", x))[0]
SPIN = 1 << 18

st = Stream()
A = st.A
stamp_n = [0]
stamp_names = []
def stamp(name=""):
    if not OPT["stamps"]: return
    n = stamp_n[0]; stamp_n[0] += 1; stamp_names.append(name)
    assert n < 26
    if n: st.add(f"s_mov_b32 s{64+n-1}, s90")
    st.add("s_memtime s[90:91]")
def dummyI(t):
    i = I(t); i.wr = []; return i
def dummy(t): st.add(dummyI(t))
def srd(base, ptr, size):
    A(f"s_mov_b32 s{base}, s{ptr}\ns_mov_b32 s{base+1}, s{ptr+1}\ns_mov_b32 s{base+2}, {size}\ns_mov_b32 s{base+3}, 0x20000")
def mf(d, a, b, c=None, dt="v", at="a", bt="a"):
    cs = f"{dt}[{d}:{d+3}]" if c is None else (c if isinstance(c, str) else f"{dt}[{c}:{c+3}]")
    return f"v_mfma_f32_16x16x32_bf16 {dt}[{d}:{d+3}], {at}[{a}:{a+3}], {bt}[{b}:{b+3}], {cs}"
STG = 192
def stg(u, tile, s): return STG + (u & 1) * 16 + tile * 8 + s * 4
def ring_reads(dst_fn, slot_off, tagp, addr="v10"):
    r = []
    for tile in range(2):
        for s in range(2):
            f, d = dst_fn(tile, s)
            for hf in range(2):
                r.append(f"ds_read_b64_tr_b16 {f}[{d+2*hf}:{d+2*hf+1}], {addr} offset:{slot_off + s*2064 + hf*256 + tile*8}")
    return r
def unit_voffs(stride):
    A(f"""
    v_lshrrev_b32 v2, 5, v1
    v_lshlrev_b32 v2, 4, v2
    v_and_b32 v3, 31, v1
    v_lshrrev_b32 v3, 2, v3
    v_add_u32 v2, v2, v3
    s_mov_b32 s60, {stride}
    v_mul_lo_u32 v2, v2, s60
    v_and_b32 v3, 3, v1
    v_lshl_add_u32 v11, v3, 4, v2
    v_add_u32 v12, {8*stride-1032}, v11
    v_add_u32 v13, {32*stride-2064}, v11
    v_add_u32 v14, {40*stride-3096}, v11
    """)
def unit_dma(tag, soff, srd="s[36:39]"):
    return [f"buffer_load_dwordx4 v{11+i}, {srd}, {soff} offen offset:{i*1032} lds" for i in range(4)]

st.raw(f"""; adaLN + GQA window attention + channel MLP, one persistent launch, 256 workgroups (one per CU)
; @launch grid=(256,1,1) block=(256,1,1) lds={LDS_BYTES}
.amdgcn_target "amdgcn-amd-amdhsa--gfx950"
.text
.globl {NAME}_kernel
.p2align 8
.type {NAME}_kernel,@function
{NAME}_kernel:
L_start:""")
A("""
s_cmp_ge_u32 s2, 256
s_cbranch_scc1 L_end
s_load_dwordx16 s[4:19], s[0:1], 0
s_load_dwordx8 s[20:27], s[0:1], 64
s_load_dwordx4 s[28:31], s[0:1], 96
s_load_dwordx2 s[32:33], s[0:1], 112
""")
if OPT["stamps"]: A("s_memrealtime s[98:99]")
stamp("start")
A(f"""
v_and_b32 v1, 63, v0
v_lshrrev_b32 v2, 6, v0
s_and_b32 s56, s2, 7
s_lshr_b32 s57, s2, 3
v_readfirstlane_b32 s35, v2
s_lshl_b32 s58, s56, 2
s_lshr_b32 s59, s57, 3
s_add_u32 s58, s58, s59
s_and_b32 s59, s57, 7
s_getpc_b64 s[60:61]
L_pc:
s_sub_u32 s60, s60, L_pc-L_start
s_subb_u32 s61, s61, 0
s_lshl_b32 s62, s57, 12
v_lshl_add_u32 v2, v0, 4, s62
v_cmp_gt_u32 vcc, L_codeend-L_start-16, v2
s_and_saveexec_b64 s[62:63], vcc
s_cbranch_execz L_nocode
global_load_dwordx4 a[248:251], v2, s[60:61]
L_nocode:
s_mov_b64 exec, -1
s_waitcnt lgkmcnt(0)
s_load_dword s34, s[32:33], 0
""")
st.vm = []
srd(48, 32, 0x10000000)
A(f"""
s_cmp_ge_u32 s56, 3
s_cbranch_scc1 L_noprod1
""")
srd(52, 24, 1024)
srd(36, 26, 512 * 6144)
A("v_lshlrev_b32 v2, 2, v0\nbuffer_load_dword v8, v2, s[52:55], 0 offen")
unit_voffs(6144)
A(f"""
s_lshl_b32 s60, s56, 5
s_add_u32 s60, s60, s57
s_lshl_b32 s60, s60, 6
s_mul_i32 s61, s35, {128*6144}
s_add_u32 s60, s60, s61
s_mul_i32 s61, s35, {2*UNIT}
s_add_u32 s61, s61, {HIMG}
s_mov_b32 m0, s61
""")
for t in unit_dma(None, "s60"): A(t)
A(f"s_add_u32 s60, s60, {64*6144}\ns_add_u32 m0, s61, {UNIT}")
for t in unit_dma(None, "s60"): A(t)
A("L_noprod1:")
st.vm = []; st.hist = []
A("s_nop 4")
srd(52, 4, 2048 * 1024)
A(f"""
v_lshrrev_b32 v2, 2, v1
v_lshlrev_b32 v2, 10, v2
v_and_b32 v3, 3, v1
v_lshl_add_u32 v2, v3, 4, v2
s_lshl_b32 s60, s57, 16
s_lshl_b32 s61, s35, 14
s_add_u32 s60, s60, s61
""")
for j in range(16):
    st.add(f"buffer_load_dwordx4 v[{32+4*j}:{35+4*j}], v2, s[52:55], s60 offen offset:{j*64}")
srd(36, 10, 512 * 8192)
A(f"""
v_lshlrev_b32 v16, 4, v1
s_lshl_b32 s60, s57, 2
s_add_u32 s60, s60, s35
s_lshl_b32 s60, s60, 15
s_lshl_b32 s61, s56, 10
s_add_u32 s60, s60, s61
""")
for i in range(4):
    dummy(f"buffer_load_dwordx4 a[244:247], v16, s[36:39], s60 offen"); A("s_add_u32 s60, s60, 8192")
unit_voffs(8192)
A(f"""
s_mul_i32 s63, s35, {RINGSZ}
s_add_u32 s63, s63, {RING0}
s_lshl_b32 s62, s56, 10
s_lshl_b32 s61, s35, 8
s_add_u32 s62, s62, s61
""")
for u in range(4):
    A(f"s_add_u32 m0, s63, {u*UNIT}\ns_add_u32 s60, s62, {u*64}")
    for t in unit_dma(None, "s60"): st.add(t, tag=("W", u))
F_ = [0, 2, 3, 1]
A(f"""
v_lshrrev_b32 v2, 4, v1
v_and_b32 v3, 1, v2
v_mul_u32_u24 v3, 1032, v3
v_lshrrev_b32 v4, 1, v2
v_and_b32 v5, 15, v1
v_lshl_add_u32 v3, v5, 4, v3
v_lshl_add_u32 v10, v4, 9, v3
v_add_u32 v10, s63, v10
v_mul_u32_u24 v4, 2064, v4
v_add_u32 v21, v3, v4
v_add_u32 v21, {VA}, v21
; f(quad) = (0x78 >> 2*quad) & 3 for quad = (l>>2)&3
v_bfe_u32 v6, v1, 2, 2
v_lshlrev_b32 v6, 1, v6
v_lshrrev_b32 v6, v6, 0x78
v_and_b32 v6, 3, v6
v_xor_b32 v7, v6, v2
v_lshlrev_b32 v7, 4, v7
v_lshl_add_u32 v15, v5, 6, v7
v_add_u32 v15, {HIMG}, v15
v_bfe_u32 v4, v1, 2, 2
v_lshl_add_u32 v7, v4, 12, v7
v_and_b32 v4, 3, v1
v_lshl_add_u32 v7, v4, 8, v7
""".replace("v_lshrrev_b32 v6, v6, 0x78", "s_movk_i32 s60, 0x78\nv_lshrrev_b32 v6, v6, s60"))
for s in range(4):
    A(f"v_xor_b32 v5, {s}, v4\nv_lshl_add_u32 v{17+s}, v5, 6, v7")
A(f"""
s_lshl_b32 s60, s35, 1
s_lshr_b32 s60, 0x78, s60
s_and_b32 s60, s60, 3
v_lshlrev_b32 v3, 2, v2
v_xor_b32 v3, s60, v3
v_and_b32 v4, 15, v1
v_xor_b32 v3, v3, v4
v_lshlrev_b32 v3, 4, v3
v_lshl_add_u32 v3, v2, 8, v3
s_lshl_b32 s60, s35, 10
v_add_u32 v22, s60, v3
v_add_u32 v23, 3072, v22
v_add_u32 v24, 6144, v22
v_add_u32 v25, 9216, v22
v_bfe_u32 v3, v1, 2, 2
v_lshlrev_b32 v3, 8, v3
v_lshl_add_u32 v3, v2, 6, v3
v_and_b32 v4, 3, v1
v_lshl_add_u32 v3, v4, 4, v3
s_lshl_b32 s60, s35, 12
s_add_u32 s60, s60, 64
v_add_u32 v26, s60, v3
v_subrev_u32 v27, 8, v26
v_subrev_u32 v28, 16, v26
v_subrev_u32 v29, 24, v26
""")
srd(40, 6, 8 * 2048 * 256)
srd(44, 8, 8 * 2048 * 256)
A(f"""
s_lshl_b32 s3, s56, 19
s_add_u32 s3, s3, {1536*256}
s_lshl_b32 s97, s35, 12
s_mul_i32 s96, s35, 4128
s_add_u32 s96, s96, {VA}
s_mov_b32 m0, s97
""")
def k_dma(c): return [f"buffer_load_dwordx4 v{22+i}, s[40:43], s60 offen offset:{i*1024} lds" for i in range(4)]
def v_dma(c): return [f"buffer_load_dwordx4 v{26+i}, s[44:47], s61 offen offset:{i*1032} lds" for i in range(4)]
A("s_mov_b32 s60, s3")
for t in k_dma(0): st.add(t, tag=("K", 0))
A(f"""
s_mul_i32 s34, s34, 0x9E3779B1
s_add_u32 s34, s34, 0x7F4A7C15
""")
srd(52, 30, 256)
A(f"""
s_cmp_lg_u32 s35, 0
s_cbranch_scc1 L_noat
s_mov_b64 exec, 1
v_mov_b32 v2, 0
v_accvgpr_write_b32 a252, 1
""")
keep = list(st.vm)
A("buffer_atomic_add a252, v2, s[52:55], 0 offen sc0 sc1\ns_mov_b64 exec, -1\nL_noat:")
st.vm = keep
A(f"""
s_cmp_ge_u32 s56, 3
s_cbranch_scc1 L_noprod2
""")
save = (list(st.vm), list(st.lg))
nvm = len(st.vm)
A(f"s_waitcnt vmcnt({nvm + 8})")
st.vm = list(save[0])
A(f"""
v_lshlrev_b32 v2, 16, v8
v_and_b32 v3, 0xffff0000, v8
v_mul_f32 v4, {f2u(-1.4426950408889634)}, v2
v_mul_f32 v5, {f2u(-1.4426950408889634)}, v3
v_exp_f32 v4, v4
v_exp_f32 v5, v5
v_add_f32 v4, 1.0, v4
v_add_f32 v5, 1.0, v5
v_rcp_f32 v4, v4
v_rcp_f32 v5, v5
v_mul_f32 v2, v2, v4
v_mul_f32 v3, v3, v5
v_cvt_pk_bf16_f32 v2, v2, v3
v_lshlrev_b32 v3, 2, v0
ds_write_b32 v3, v2 offset:{SILU}
v_lshrrev_b32 v2, 4, v1
v_lshlrev_b32 v2, 4, v2
s_lshl_b32 s60, s35, 8
v_add_u32 v2, s60, v2
s_mul_i32 s60, s35, {2*UNIT}
s_sub_u32 s60, s60, s63
s_add_u32 s60, s60, {HIMG}
v_add_u32 v3, s60, v10
s_waitcnt lgkmcnt(0)
s_barrier
""".replace(f"offset:{SILU}", "offset:0").replace("v_lshlrev_b32 v3, 2, v0", f"v_lshlrev_b32 v3, 2, v0\nv_add_u32 v3, {SILU}, v3").replace("v_add_u32 v2, s60, v2", f"s_add_u32 s60, s60, {SILU}\nv_add_u32 v2, s60, v2"))
for s in range(4):
    A(f"ds_read_b128 a[{4*s}:{4*s+3}], v2 offset:{s*64}")
A(f"s_waitcnt vmcnt({nvm})")
st.vm = list(save[0])
for u in range(2):
    for t in ring_reads(lambda tile, s: ("a", 16 + u * 16 + tile * 8 + s * 4), u * UNIT, None, addr="v3"): A(t)
for s in range(4):
    for tile in range(2):
        A(mf(96 + 4 * tile, 16 + (s >> 1) * 16 + tile * 8 + (s & 1) * 4, 4 * s, "0" if s == 0 else None))
A(f"""
v_lshrrev_b32 v2, 4, v1
v_lshlrev_b32 v2, 5, v2
s_lshl_b32 s60, s35, 7
s_add_u32 s60, s60, {RED}
v_add_u32 v2, s60, v2
s_mov_b32 s60, 0x00010001
s_mov_b32 s61, 0x00010001
s_mov_b64 exec, s[60:61]
ds_write_b128 v2, v[96:99]
ds_write_b128 v2, v[100:103] offset:16
s_mov_b64 exec, -1
s_waitcnt lgkmcnt(0)
s_barrier
s_cmp_lg_u32 s35, 0
s_cbranch_scc1 L_noprod2
v_lshlrev_b32 v2, 3, v1
v_add_u32 v3, {RED}, v2
s_mov_b64 exec, 0xffff
ds_read_b64 v[96:97], v3
ds_read_b64 v[98:99], v3 offset:128
ds_read_b64 v[100:101], v3 offset:256
ds_read_b64 v[102:103], v3 offset:384
s_lshl_b32 s60, s56, 5
s_add_u32 s60, s60, s57
s_lshl_b32 s60, s60, 7
s_add_u32 s60, s60, {WS_MOD}
v_pk_add_f32 v[96:97], v[96:97], v[98:99]
v_pk_add_f32 v[100:101], v[100:101], v[102:103]
v_pk_add_f32 v[96:97], v[96:97], v[100:101]
v_cvt_pk_bf16_f32 v96, v96, v97
v_mov_b32 v97, s34
buffer_store_dwordx2 v[96:97], v2, s[48:51], s60 offen sc1
s_mov_b64 exec, -1
L_noprod2:
""")
st.vm = list(save[0]); st.lg = []; st.hist = []
A("s_waitcnt lgkmcnt(0)\ns_nop 4")
A(f"""
s_lshl_b32 s60, s57, 2
s_add_u32 s60, s60, s35
s_lshl_b32 s61, s60, 10
s_add_u32 s61, s61, s3
""")
dummy("buffer_load_dwordx4 a[244:247], v16, s[40:43], s61 offen")
dummy("buffer_load_dwordx4 a[244:247], v16, s[44:47], s61 offen")
A("v_mov_b32 v4, 0\nv_mov_b32 v6, 0\nv_mov_b32 v9, 0x3f803f80")
for r in range(32, 96):
    A(f"v_dot2c_f32_bf16 v4, v{r}, v9\nv_dot2c_f32_bf16 v6, v{r}, v{r}")
A(f"""
v_add_f32_dpp v4, v4, v4 quad_perm:[1,0,3,2] row_mask:0xf bank_mask:0xf
v_add_f32_dpp v6, v6, v6 quad_perm:[1,0,3,2] row_mask:0xf bank_mask:0xf
v_add_f32_dpp v4, v4, v4 quad_perm:[2,3,0,1] row_mask:0xf bank_mask:0xf
v_add_f32_dpp v6, v6, v6 quad_perm:[2,3,0,1] row_mask:0xf bank_mask:0xf
v_mul_f32 v5, {f2u(1/512)}, v4
v_mul_f32 v6, {f2u(1/512)}, v6
v_fma_f32 v6, -v5, v5, v6
v_max_f32 v6, 0, v6
v_add_f32 v6, {f2u(1e-5)}, v6
v_rsq_f32 v4, v6
v_mul_f32 v6, -v5, v4
""".replace("v_mul_f32 v6, -v5, v4", "v_mul_f32_e64 v6, -v5, v4"))
for r in range(64):
    A(f"v_lshlrev_b32 v{128+2*r}, 16, v{32+r}\nv_and_b32 v{129+2*r}, 0xffff0000, v{32+r}")
    if r: A(f"v_pk_fma_f32 v[{126+2*r}:{127+2*r}], v[{126+2*r}:{127+2*r}], v[4:5], v[6:7] op_sel_hi:[1,0,0]")
A("v_pk_fma_f32 v[254:255], v[254:255], v[4:5], v[6:7] op_sel_hi:[1,0,0]")
stamp("xstat")
A(f"""
v_lshlrev_b32 v2, 4, v0
s_mov_b32 s60, {SPIN}
s_mov_b32 s61, {WS_MOD}
""")
keep = list(st.vm)
A(f"""
L_pollmod:
buffer_load_dwordx4 v[96:99], v2, s[48:51], s61 offen sc1
s_sub_u32 s60, s60, 1
s_waitcnt vmcnt(0)
v_cmp_ne_u32 vcc, s34, v97
v_cmp_ne_u32 s[100:101], s34, v99
s_or_b64 vcc, vcc, s[100:101]
s_cmp_eq_u32 s60, 0
s_cbranch_scc1 L_modok
s_cbranch_vccnz L_pollmod
L_modok:
s_cmp_ge_u32 s35, 2
s_cselect_b32 s60, 1.0, 0
s_mov_b32 s61, {f2u(SCALE)}
v_lshlrev_b32 v100, 16, v96
v_and_b32 v101, 0xffff0000, v96
v_lshlrev_b32 v102, 16, v98
v_and_b32 v103, 0xffff0000, v98
v_add_f32 v100, s60, v100
v_add_f32 v101, s60, v101
v_add_f32 v102, s60, v102
v_add_f32 v103, s60, v103
v_mul_f32 v100, s61, v100
v_mul_f32 v101, s61, v101
v_mul_f32 v102, s61, v102
v_mul_f32 v103, s61, v103
v_add_u32 v2, {MODV}, v2
ds_write_b128 v2, v[100:103]
v_and_b32 v2, 3, v1
v_lshlrev_b32 v2, 5, v2
v_add_u32 v2, {MODV}, v2
v_lshrrev_b32 v3, 4, v1
v_lshlrev_b32 v3, 1, v3
s_movk_i32 s60, 0x78
v_lshrrev_b32 v3, v3, s60
v_xor_b32 v3, v3, v1
v_and_b32 v3, 3, v3
v_and_b32 v4, 60, v1
v_add_u32 v3, v3, v4
v_lshlrev_b32 v3, 4, v3
s_lshl_b32 s60, s35, 10
s_add_u32 s60, s60, {HIMG}
v_add_u32 v3, s60, v3
s_waitcnt lgkmcnt(0)
s_barrier
""")
stamp("modok")
def modreads(j):
    b = 96 + (j & 1) * 16
    A(f"""ds_read_b128 v[{b}:{b+3}], v2 offset:{j*128}
    ds_read_b128 v[{b+4}:{b+7}], v2 offset:{j*128+16}
    ds_read_b128 v[{b+8}:{b+11}], v2 offset:{2048+j*128}
    ds_read_b128 v[{b+12}:{b+15}], v2 offset:{2048+j*128+16}""")
modreads(0)
for j in range(16):
    if j < 15: modreads(j + 1)
    b = 96 + (j & 1) * 16; t = 128 + 8 * j
    for e in range(4):
        A(f"v_pk_fma_f32 v[{t+2*e}:{t+2*e+1}], v[{t+2*e}:{t+2*e+1}], v[{b+8+2*e}:{b+9+2*e}], v[{b+2*e}:{b+2*e+1}]")
    for e in range(4):
        A(f"v_cvt_pk_bf16_f32 v{32+4*j+e}, v{t+2*e}, v{t+2*e+1}")
    A(f"ds_write_b128 v3, v[{32+4*j}:{35+4*j}] offset:{j*4096}")
srd(52, 12, 4096 * 1024)
A(f"""
s_lshl_b32 s60, s57, 2
s_add_u32 s60, s60, s35
s_lshl_b32 s60, s60, 12
s_lshl_b32 s61, s56, 19
s_add_u32 s60, s60, s61
""")
for i in range(4): dummy(f"buffer_load_dwordx4 a[244:247], v16, s[52:55], s60 offen offset:{i*1024}")
for t in ring_reads(lambda tile, s: ("a", stg(0, tile, s)), 0, None): st.add(t, tag=("R", 0))
A("s_waitcnt lgkmcnt(0)\ns_barrier")
def hb(kk, s, cb): return (kk & 1) * 32 + (s * 4 + cb) * 4
for s in range(2):
    for cb in range(4): A(f"ds_read_b128 a[{hb(0,s,cb)}:{hb(0,s,cb)+3}], v15 offset:{(s*4+cb)*1024}")
stamp("hdone")

def qacc(tp, tile, cb): return 128 + (tp * 8 + tile * 4 + cb) * 4
def qop(s, cb): return 32 + (s * 4 + cb) * 4
M = []; Fl = []; RES = {}
def chain_dma(Fl, g0, pre, dmas, tag, need, chain):
    for t in pre: Fl.append(F(t, g0 - 4, g0 + 3, chain))
    for i, t in enumerate(dmas): Fl.append(F(t, g0 + i, g0 + 3 + i, chain, tag=tag, need=need if i == 0 else None))
for u in range(32):
    kk, tp = u >> 2, u & 3
    g0 = len(M)
    for tile in range(2):
        for cb in range(4):
            for s in range(2):
                M.append(mf(qacc(tp, tile, cb), stg(u, tile, s), hb(kk, s, cb), "0" if (kk == 0 and s == 0) else None))
    if u + 1 < 32:
        for i, t in enumerate(ring_reads(lambda tile, s: ("a", stg(u + 1, tile, s)), ((u + 1) & 3) * UNIT, None)):
            Fl.append(F(t, g0 + i // 2, g0 + 5, "rd", tag=("R", u + 1), need=[("W", u + 1)] if i == 0 else None))
    if kk < 7:
        for i in range(2):
            n = tp * 2 + i; s, cb = n >> 2, n & 3
            Fl.append(F(f"ds_read_b128 a[{hb(kk+1,s,cb)}:{hb(kk+1,s,cb)+3}], v15 offset:{((kk+1)*8+n)*1024}", g0 + 5, g0 + 8, "rd", tag=("HB", kk + 1)))
    un = u + 5 if u else None
    for un in ([4, 5] if u == 0 else [u + 5]):
        if un < 32:
            gg = g0 + (6 if (u == 0 and un == 4) else 11)
            chain_dma(Fl, gg, [f"s_add_u32 m0, s63, {(un&3)*UNIT}", f"s_add_u32 s60, s62, {(un>>2)*64*8192 + (un&3)*64}"], unit_dma(None, "s60"), ("W", un), [("R", un - 4)], "dma")
    RES[g0 + 15] = 1
    if kk == 7:
        if tp:
            for cb in range(4):
                for e in range(4):
                    src = qacc(tp - 1, e >> 1, cb) + 2 * (e & 1)
                    Fl.append(F(f"v_cvt_pk_bf16_f32 v{qop(tp-1,cb)+e}, v{src}, v{src+1}", g0 + 2, g0 + 15, "cv"))
        if tp == 1:
            Fl.append(F(("barrier", [("HB", 7), ("K", 0)]), g0 + 6, g0 + 6, "kv"))
            chain_dma(Fl, g0 + 11, [f"s_add_u32 m0, s97, {KB}", f"s_add_u32 s60, s3, {16384}"], k_dma(1), ("K", 1), None, "kv")
        if tp == 2:
            chain_dma(Fl, g0 + 11, [f"s_mov_b32 m0, s96", f"s_sub_u32 s61, s3, 64"], v_dma(0), ("V", 0), None, "kv")
        if tp == 3:
            for s in range(4):
                Fl.append(F(f"ds_read_b128 a[{STG+s*4}:{STG+s*4+3}], v{17+s} offset:{KA}", g0 + 1 + s, g0 + 8, "rd", tag=("R", "k00")))
schedule(st, M, Fl, reserve=RES, verbose="Q")
for cb in range(4):
    for e in range(4):
        src = qacc(3, e >> 1, cb) + 2 * (e & 1)
        A(f"v_cvt_pk_bf16_f32 v{qop(3,cb)+e}, v{src}, v{src+1}")
stamp("Qend")
srd(36, 12, 4096 * 1024)
unit_voffs(1024)
A(f"""
v_mov_b32 v2, 0x3f803f80
v_accvgpr_write_b32 a240, v2
v_accvgpr_write_b32 a241, v2
v_accvgpr_write_b32 a242, v2
v_accvgpr_write_b32 a243, v2
s_lshl_b32 s62, s56, 19
s_lshl_b32 s60, s35, 6
s_add_u32 s62, s62, s60
s_lshl_b32 s94, s35, 17
""")
def wo_pre(u, slot):
    i, kk = u >> 3, u & 7
    return [f"s_add_u32 m0, s63, {slot*UNIT}", f"s_add_u32 s95, s94, {kk*65536}", f"s_and_b32 s95, s95, 0x7ffff", f"s_add_u32 s95, s95, s62", f"s_add_u32 s95, s95, {i*256}"]

def S(kt, cb): return 96 + (kt * 4 + cb) * 4
def P(c, s, cb): return 160 + (c & 1) * 32 + (s * 4 + cb) * 4
def CI(cb): return 224 + 4 * cb
def oacc(tp, tile, cb): return (tp * 8 + tile * 4 + cb) * 4
LS = 224
units = [("QK", 0, k) for k in range(4)]
for c in range(7): units += [("QK", c + 1, k) for k in range(4)] + [("L", c, 0)] + [("PV", c, k) for k in range(4)]
units += [("L", 7, 0)] + [("PV", 7, k) for k in range(4)]
M = []; Fl = []; RES = {}
G = {}; buf = {}
n = 0
for un in units:
    G[un] = None
    if un[0] != "L": buf[un] = n; n += 1
pos = 0
for un in units:
    G[un] = pos; pos += 8 if un[0] == "L" else 16
NATT = pos
staged = [u for u in units if u[0] != "L"]
def oop(dp, cb): return 32 + (dp * 4 + cb) * 4
for un in units:
    ty, c, k = un; g0 = len(M); assert g0 == G[un]
    if ty == "QK":
        b = STG + (buf[un] & 1) * 16
        for cb in range(4):
            for s in range(4):
                cin = None if s else ("0" if (c == 0 and k < 2) else CI(cb))
                M.append(mf(S(k, cb), b + 4 * s, qop(s, cb), cin, "v", "a", "v"))
    elif ty == "L":
        for cb in range(4):
            for s in range(2):
                M.append(mf(LS + 4 * cb, 240, P(c, s, cb), "0" if (c == 0 and s == 0) else None, "a", "a", "v"))
    else:
        for tile in range(2):
            for cb in range(4):
                for s in range(2):
                    M.append(mf(oacc(k, tile, cb), stg(buf[un], tile, s), P(c, s, cb), "0" if (c == 0 and s == 0) else None, "a", "a", "v"))
    if ty == "L": continue
    RES[g0 + 15] = 1
    bar = None
    if (ty, c, k) == ("QK", 0, 3): bar = 1
    if ty == "PV" and k == 3 and c < 7: bar = c + 2
    rg = g0
    if bar is not None:
        need = [("R", un), ("V", bar - 1)] + ([("K", bar)] if bar <= 7 else [])
        Fl.append(F(("barrier", need), g0 + 1, g0 + 1, "rd")); rg = g0 + 2
        gk = g0 + 20
        if bar + 1 <= 7:
            chain_dma(Fl, gk, [f"s_add_u32 m0, s97, {KA if (bar+1)%2==0 else KB}", f"s_add_u32 s60, s3, {(bar+1)*16384}"], k_dma(bar + 1), ("K", bar + 1), None, "kv")
        if bar <= 7:
            chain_dma(Fl, gk + 16, [f"s_add_u32 m0, s96, {(bar&1)*16512}", f"s_add_u32 s61, s3, {bar*16384-64}"], v_dma(bar), ("V", bar), None, "kv")
        if 2 <= bar <= 5:
            u = bar - 2
            chain_dma(Fl, gk + 36, wo_pre(u, u), unit_dma(None, "s95"), ("W", u), None, "kv")
    i = staged.index(un)
    if i + 1 < len(staged):
        nx = staged[i + 1]; nb = STG + (buf[nx] & 1) * 16
        if nx[0] == "QK":
            for s in range(4):
                Fl.append(F(f"ds_read_b128 a[{nb+4*s}:{nb+4*s+3}], v{17+s} offset:{(KA if nx[1]%2==0 else KB) + nx[2]*1024}", rg + s // 2, rg + 6, "rd", tag=("R", nx)))
        else:
            i2 = 0
            for tile in range(2):
                for s in range(2):
                    for hf in range(2):
                        d = stg(buf[nx], tile, s) + 2 * hf
                        Fl.append(F(f"ds_read_b64_tr_b16 a[{d}:{d+1}], v21 offset:{(nx[1]&1)*16512 + (4*s+2*hf)*2064 + nx[2]*256 + tile*8}", rg + i2 // 2, rg + 7, "rd", tag=("R", nx))); i2 += 1
    else:
        for i2, t in enumerate(ring_reads(lambda tile, s: ("a", stg(buf[un] + 1, tile, s)), 0, None)):
            Fl.append(F(t, rg + i2 // 2, rg + 7, "rd", tag=("R", 0), need=[("W", 0)] if i2 == 0 else None))
OBUF0 = (buf[staged[-1]] + 1) & 1
g1 = G[("QK", 0, 1)]
for cb in range(4):
    s0 = S(0, cb); t = 240 + 2 * cb; ch = ("mx", cb); e = g1 + max(0, 4 * cb - 8) ; l = g1 + 14 + 4 * cb
    for txt in [f"v_max3_f32 v{t}, v{s0}, v{s0+1}, v{s0+2}", f"v_max_f32 v{t}, v{t}, v{s0+3}", f"v_mov_b32 v{t+1}, v{t}",
                f"v_permlane16_swap_b32 v{t}, v{t+1}", f"v_max_f32 v{t}, v{t}, v{t+1}", f"v_mov_b32 v{t+1}, v{t}",
                f"v_permlane32_swap_b32 v{t}, v{t+1}", f"v_max_f32 v{t}, v{t}, v{t+1}"] + [f"v_sub_f32 v{CI(cb)+i}, 0, v{t}" for i in range(4)]:
        Fl.append(F(txt, e, l, ch))
for c in range(8):
    for kt in range(4):
        gq = G[("QK", c, kt)]
        for cb in range(4):
            e = gq + 4 * cb + 3 + 5
            l = (G[("QK", c + 1, kt)] + 4 * cb - 1) if c < 7 else G[("L", 7, 0)] - 2
            l = min(l, G[("L", c, 0)] - 2)
            ch = ("sm", kt, cb); s0 = S(kt, cb)
            if c == 0 and kt < 2:
                ch = ("mx", cb)
                for i in range(4): Fl.append(F(f"v_add_f32 v{s0+i}, v{CI(cb)}, v{s0+i}", e, l, ch))
            for i in range(4): Fl.append(F(f"v_exp_f32 v{s0+i}, v{s0+i}", e, l, ch))
            for i in range(2): Fl.append(F(f"v_cvt_pk_bf16_f32 v{P(c,kt>>1,cb)+2*(kt&1)+i}, v{s0+2*i}, v{s0+2*i+1}", e, l, ch))
gL = G[("L", 7, 0)]
for cb in range(4):
    Fl.append(F(f"v_accvgpr_read_b32 v{240+cb}, a{LS+4*cb}", gL + 12, gL + 20, "nrm"))
for cb in range(4):
    Fl.append(F(f"v_rcp_f32 v{244+cb}, v{240+cb}", gL + 12, gL + 24, "nrm"))
blk = [KA, KB, VA, XR]
A_blk = lambda: None
def norm_ops(dp, cb):
    t = 160 + (cb) * 8; o = []
    for tile in range(2):
        for r in range(4): o.append(f"v_accvgpr_read_b32 v{t+4*tile+r}, a{oacc(dp,tile,cb)+r}")
    for r in range(8): o.append(f"v_mul_f32 v{t+r}, v{244+cb}, v{t+r}")
    for e in range(4): o.append(f"v_cvt_pk_bf16_f32 v{oop(dp,cb)+e}, v{t+2*e}, v{t+2*e+1}")
    o.append(f"ds_write_b128 v30, v[{oop(dp,cb)}:{oop(dp,cb)+3}] offset:{(dp*4+cb)*1024}")
    return o
def blk_addr(dst, add):
    A(f"""s_add_u32 s60, s35, {add}
    s_and_b32 s60, s60, 3
    s_lshl_b32 s61, s60, 14
    s_cmp_eq_u32 s60, 3
    s_cselect_b32 s61, {XR}, s61
    v_add_u32 v{dst}, s61, v16""")
blk_addr(30, 0); blk_addr(2, 1); blk_addr(3, 2); blk_addr(4, 3)
pending_norm = []
for dp in range(4):
    for cb in range(4):
        for t in norm_ops(dp, cb): pending_norm.append((dp, t))
gend = NATT - 1
hidden = [x for x in pending_norm if x[0] < 3]
for dp, t in hidden[:72]:
    Fl.append(F(t, G[("PV", 7, dp)] + 16 + 3, gend, "nrm"))
rest = hidden[72:] + [x for x in pending_norm if x[0] == 3]
schedule(st, M, Fl, reserve=RES, verbose="attn")
stamp("attn")
for dp, t in rest: st.add(t, tag="ow" if t.startswith("ds_write") else None)
stamp("norm")

def oB(i, cb): return ("v", oop(i, cb)) if i < 4 else ("a", ((i - 4) * 4 + cb) * 4)
def pacc(i, tile, cb): return 96 + (i & 1) * 32 + (tile * 4 + cb) * 4
A(f"""
v_and_b32 v5, 15, v1
v_lshrrev_b32 v6, 1, v5
v_lshlrev_b32 v6, 11, v6
v_and_b32 v5, 1, v5
v_lshl_add_u32 v6, v5, 4, v6
v_lshrrev_b32 v5, 4, v1
v_lshl_add_u32 v31, v5, 5, v6
s_lshl_b32 s93, s57, 19
s_lshl_b32 s60, s56, 16
s_add_u32 s93, s93, s60
s_lshl_b32 s60, s35, 7
s_add_u32 s93, s93, s60
s_add_u32 s93, s93, {WS_PART}
""")
M = []; Fl = []; RES = {}
def part_out(i, e, l, Fl):
    for cb in range(4):
        for k in range(4):
            src = pacc(i, k >> 1, cb) + 2 * (k & 1)
            Fl.append(F(f"v_cvt_pk_bf16_f32 v{224+4*cb+k}, v{src}, v{src+1}", e, l, "po"))
        Fl.append(F(f"s_add_u32 s92, s93, {cb*16384 + i*512}", e, l, "po"))
        Fl.append(F(f"buffer_store_dwordx4 v[{224+4*cb}:{227+4*cb}], v31, s[48:51], s92 offen sc1", e, l, "po", tag="part"))
for u in range(32):
    i, kk = u >> 3, u & 7; g0 = len(M); ub = u + OBUF0
    for tile in range(2):
        for cb in range(4):
            for s in range(2):
                f, r = oB(2 * kk + s, cb)
                M.append(mf(pacc(i, tile, cb), stg(ub, tile, s), r, "0" if (kk == 0 and s == 0) else None, "v", "a", f))
    if u + 1 < 32:
        for n2, t in enumerate(ring_reads(lambda tile, s: ("a", stg(ub + 1, tile, s)), ((u + 1) & 3) * UNIT, None)):
            Fl.append(F(t, g0 + n2 // 2, g0 + 5, "rd", tag=("R", u + 1), need=[("W", u + 1)] if n2 == 0 else None))
    if u == 0: Fl.append(F(("barrier", ["ow"]), g0 + 5, g0 + 5, "rd"))
    if u < 6:
        for s in range(2):
            for cb in range(4):
                ks = 2 * u + 4 + s; f, r = oB(ks, cb)
                Fl.append(F(f"ds_read_b128 a[{r}:{r+3}], v{1 + (ks>>2)} offset:{((ks&3)*4+cb)*1024}", g0 + 6, g0 + 13, "rd"))
    for un in ([4, 5] if u == 0 else [u + 5]):
        if un < 32:
            gg = g0 + (6 if (u == 0 and un == 4) else 12)
            chain_dma(Fl, gg, wo_pre(un, un & 3), unit_dma(None, "s95"), ("W", un), [("R", un - 4)], "dma")
    RES[g0 + 15] = 1
    if kk == 0 and i: part_out(i - 1, g0 + 4, g0 + 31, Fl)
schedule(st, M, Fl, reserve=RES, verbose="O")
Fl = []; part_out(3, 0, 0, Fl)
for f in Fl: st.add(f.ins)
stamp("Oend")

def spin(label, load, cond, nlanes=None):
    A(f"s_mov_b32 s60, {SPIN}")
    st.raw(f"{label}:")
    for t in load: st.add(t)
    A("s_sub_u32 s60, s60, 1\ns_waitcnt vmcnt(0)")
    A(cond)
    A(f"s_cmp_eq_u32 s60, 0\ns_cbranch_scc1 {label}_x\ns_cbranch_vccnz {label}")
    st.raw(f"{label}_x:")
def flag_store(soff):
    A(f"s_mov_b64 exec, 0xff\nbuffer_store_dwordx4 v[240:243], v16, s[48:51], {soff} offen sc1\ns_mov_b64 exec, -1")
srd(36, 16, 512 * 3584)
unit_voffs(3584)
A(f"""
s_min_u32 s62, s59, 6
s_lshl_b32 s62, s62, 9
s_lshl_b32 s60, s35, 7
s_add_u32 s62, s62, s60
s_mul_i32 s94, s35, {RINGSZ}
v_mov_b32 v240, s34
v_mov_b32 v241, s34
v_mov_b32 v242, s34
v_mov_b32 v243, s34
v_subrev_u32 v9, {RING0}, v10
v_lshlrev_b32 v8, 7, v1
""")
def w1_dma(u):
    slot = u & 7
    A(f"s_add_u32 m0, {'s63' if slot < 4 else 's94'}, {(slot&3)*UNIT}\ns_add_u32 s60, s62, {(u&7)*64*3584 + (u>>3)*64}")
    for i, t in enumerate(unit_dma(None, "s60")): st.add(t, tag=("W1", u), need=[("R1", u - 8)] if i == 0 else None)
def w1reg(half, s, tile): return ((half * 16 + s) * 2 + tile) * 4
def w1_read(u):
    slot = u & 7
    for i, t in enumerate(ring_reads(lambda tile, s: ("a", w1reg(u >> 3, (u & 7) * 2 + s, tile)), (slot & 3) * UNIT, None, addr="v10" if slot < 4 else "v9")):
        st.add(t, tag=("R1", u), need=[("W1", u)] if i == 0 else None)
for u in range(4): w1_dma(u)
st.need("part")
A(f"""
s_barrier
s_lshl_b32 s61, s2, 7
s_add_u32 s61, s61, {WS_F1}
s_cmp_lg_u32 s35, 0
s_cbranch_scc1 L_nf1
""")
keep = list(st.vm); flag_store("s61")
A(f"""
v_accvgpr_read_b32 v5, a252
v_mov_b32 v6, 0
v_readfirstlane_b32 s60, v5
s_cmp_lg_u32 s60, 255
s_cbranch_scc1 L_nf1
s_mov_b64 exec, 1
buffer_store_dword v240, v6, s[48:51], 0 offen sc1
s_mov_b64 exec, -1
""")
st.vm = keep
A("L_nf1:")
stamp("f1st")
for u in range(4, 8): w1_dma(u)
A(f"v_lshlrev_b32 v5, 4, v0\ns_mov_b32 s61, {WS_MOD+4096}")
spin("L_pm2", ["buffer_load_dwordx4 v[96:99], v5, s[48:51], s61 offen sc1", "v_add_u32 v6, 4096, v5", "buffer_load_dwordx4 v[100:103], v6, s[48:51], s61 offen sc1"],
     """v_cmp_ne_u32 vcc, s34, v97
        v_cmp_ne_u32 s[100:101], s34, v99
        s_or_b64 vcc, vcc, s[100:101]
        v_cmp_ne_u32 s[100:101], s34, v101
        s_or_b64 vcc, vcc, s[100:101]
        v_cmp_ne_u32 s[100:101], s34, v103
        s_or_b64 vcc, vcc, s[100:101]""")
A(f"""
s_cmp_lt_u32 s35, 2
s_cselect_b32 s60, 1.0, 0
v_lshlrev_b32 v104, 16, v96
v_and_b32 v105, 0xffff0000, v96
v_lshlrev_b32 v106, 16, v98
v_and_b32 v107, 0xffff0000, v98
v_lshlrev_b32 v108, 16, v100
v_and_b32 v109, 0xffff0000, v100
v_lshlrev_b32 v110, 16, v102
v_and_b32 v111, 0xffff0000, v102
v_add_f32 v108, s60, v108
v_add_f32 v109, s60, v109
v_add_f32 v110, s60, v110
v_add_f32 v111, s60, v111
v_add_u32 v5, {MODV}, v5
ds_write_b128 v5, v[104:107]
ds_write_b128 v5, v[108:111] offset:4096
v_and_b32 v6, 1, v1
v_lshlrev_b32 v6, 10, v6
v_lshrrev_b32 v7, 1, v1
v_lshl_add_u32 v6, v7, 4, v6
v_lshlrev_b32 v7, 5, v7
v_add_u32 v7, {MODV}, v7
s_lshl_b32 s93, s58, 16
s_lshl_b32 s60, s59, 13
s_add_u32 s93, s93, s60
s_lshl_b32 s60, s35, 11
s_add_u32 s93, s93, s60
""")
srd(52, 4, 2048 * 1024)
A("buffer_load_dwordx4 v[112:115], v6, s[52:55], s93 offen\nbuffer_load_dwordx4 v[116:119], v6, s[52:55], s93 offen offset:512")
for u in range(4):
    w1_read(u); w1_dma(u + 8)
A(f"""
s_cmp_lg_u32 s35, 0
s_cbranch_scc1 L_np1
s_lshl_b32 s61, s58, 10
s_add_u32 s61, s61, {WS_F1}
s_mov_b64 exec, 0xff
""")
keep = (list(st.vm), list(st.lg))
spin("L_pf1", ["buffer_load_dword v96, v8, s[48:51], s61 offen sc1"], "v_cmp_ne_u32 vcc, s34, v96")
A("s_mov_b64 exec, -1\nL_np1:")
st.vm, st.lg = keep
A("s_waitcnt lgkmcnt(0)\ns_barrier")
stamp("f1ok")
A(f"""
s_lshl_b32 s61, s58, 19
s_lshl_b32 s60, s59, 13
s_add_u32 s61, s61, s60
s_lshl_b32 s60, s35, 11
s_add_u32 s61, s61, s60
s_add_u32 s61, s61, {WS_PART}
""")
for g in range(8):
    A(f"buffer_load_dwordx4 v[{32+8*g}:{35+8*g}], v16, s[48:51], s61 offen sc1\nbuffer_load_dwordx4 v[{36+8*g}:{39+8*g}], v16, s[48:51], s61 offen offset:1024 sc1")
    if g < 7: A("s_add_u32 s61, s61, 0x10000")
for u in range(4, 8):
    w1_read(u); w1_dma(u + 8)
def modrd(dst, vec):
    for h in range(2):
        for q in range(2): A(f"ds_read_b128 v[{dst+8*h+4*q}:{dst+8*h+4*q+3}], v7 offset:{vec*2048 + h*1024 + q*16}")
modrd(120, 0); modrd(136, 2)
A("s_mov_b32 s60, 0x3f80\ns_mov_b32 s61, 0x3f800000\nv_mov_b32 v2, s60\nv_mov_b32 v3, s61")
for r in range(16): A(f"v_mov_b32 v{96+r}, 0")
for g in range(8):
    for r in range(8):
        A(f"v_dot2c_f32_bf16 v{96+2*r}, v{32+8*g+r}, v2\nv_dot2c_f32_bf16 v{97+2*r}, v{32+8*g+r}, v3")
for r in range(8):
    A(f"v_lshlrev_b32 v{32+2*r}, 16, v{112+r}\nv_and_b32 v{33+2*r}, 0xffff0000, v{112+r}")
for r in range(8):
    A(f"v_pk_fma_f32 v[{96+2*r}:{97+2*r}], v[{96+2*r}:{97+2*r}], v[{120+2*r}:{121+2*r}], v[{32+2*r}:{33+2*r}]")
modrd(120, 1)
for r in range(8): A(f"v_cvt_pk_bf16_f32 v{112+r}, v{96+2*r}, v{97+2*r}")
A(f"""s_add_u32 s61, s93, {WS_X1}
buffer_store_dwordx4 v[112:115], v6, s[48:51], s61 offen sc1
buffer_store_dwordx4 v[116:119], v6, s[48:51], s61 offen offset:512 sc1""")
def row_stats(x):
    A(f"v_pk_add_f32 v[32:33], v[{x}:{x+1}], v[{x+2}:{x+3}]\nv_pk_mul_f32 v[34:35], v[{x}:{x+1}], v[{x}:{x+1}]")
    A(f"v_pk_fma_f32 v[34:35], v[{x+2}:{x+3}], v[{x+2}:{x+3}], v[34:35]")
    for r in range(2, 8):
        A(f"v_pk_add_f32 v[32:33], v[32:33], v[{x+2*r}:{x+2*r+1}]\nv_pk_fma_f32 v[34:35], v[{x+2*r}:{x+2*r+1}], v[{x+2*r}:{x+2*r+1}], v[34:35]")
    A("v_add_f32 v32, v32, v33\nv_add_f32 v34, v34, v35")
    for d in ("quad_perm:[2,3,0,1]", "row_ror:4", "row_ror:8"):
        A(f"v_add_f32_dpp v32, v32, v32 {d} row_mask:0xf bank_mask:0xf\nv_add_f32_dpp v34, v34, v34 {d} row_mask:0xf bank_mask:0xf")
    for sw in ("16", "32"):
        A(f"v_mov_b32 v33, v32\nv_mov_b32 v35, v34\nv_permlane{sw}_swap_b32 v32, v33\nv_permlane{sw}_swap_b32 v34, v35\nv_add_f32 v32, v32, v33\nv_add_f32 v34, v34, v35")
    A(f"""v_mul_f32 v33, {f2u(1/512)}, v32
    v_mul_f32 v34, {f2u(1/512)}, v34
    v_fma_f32 v34, -v33, v33, v34
    v_max_f32 v34, 0, v34
    v_add_f32 v34, {f2u(1e-5)}, v34
    v_rsq_f32 v32, v34
    v_mul_f32_e64 v34, -v33, v32""")
row_stats(96)
for r in range(8): A(f"v_pk_fma_f32 v[{96+2*r}:{97+2*r}], v[{96+2*r}:{97+2*r}], v[32:33], v[34:35] op_sel_hi:[1,0,0]")
for r in range(8): A(f"v_pk_fma_f32 v[{96+2*r}:{97+2*r}], v[{96+2*r}:{97+2*r}], v[{136+2*r}:{137+2*r}], v[{120+2*r}:{121+2*r}]")
row_stats(96)
for r in range(8): A(f"v_pk_fma_f32 v[{96+2*r}:{97+2*r}], v[{96+2*r}:{97+2*r}], v[32:33], v[34:35] op_sel_hi:[1,0,0]")
for r in range(8): A(f"v_cvt_pk_bf16_f32 v{40+r}, v{96+2*r}, v{97+2*r}")
A(f"s_add_u32 s61, s93, {WS_Y}")
st.add("buffer_store_dwordx4 v[40:43], v6, s[48:51], s61 offen sc1", tag="y")
st.add("buffer_store_dwordx4 v[44:47], v6, s[48:51], s61 offen offset:512 sc1", tag="y")
stamp("ysent")
for u in range(8, 16): w1_read(u)
srd(52, 18, 3584)
A("v_lshrrev_b32 v2, 4, v1\nv_lshlrev_b32 v2, 4, v2\nbuffer_load_dwordx4 v[48:51], v2, s[52:55], s62 offen\nbuffer_load_dwordx4 v[52:55], v2, s[52:55], s62 offen offset:64")
srd(36, 20, 1792 * 1024)
unit_voffs(1024)
KS2 = [(p, 0) for p in range(7)] + [(p, 1) for p in range(7)]
A(f"""
s_lshl_b32 s62, s35, 16
s_lshl_b32 s60, s59, 7
s_add_u32 s62, s62, s60
s_mul_i32 s94, s35, {UNIT}
s_add_u32 s94, s94, 65536
s_sub_u32 s60, s94, s63
v_add_u32 v9, s60, v10
""")
def w2_ops(u, slot):
    kp, tp = u >> 1, u & 1
    ra = [(256 * p + 32 * h) * 1024 + tp * 64 for p, h in KS2[2 * kp:2 * kp + 2]]
    pre = [f"s_add_u32 m0, s63, {slot*UNIT}" if slot < 4 else "s_mov_b32 m0, s94", f"s_add_u32 s60, s62, {ra[0]}", f"s_add_u32 s61, s62, {ra[1]-2064}"]
    d = [f"buffer_load_dwordx4 v{11+(i&1)}, s[36:39], {'s60' if i < 2 else 's61'} offen offset:{i*1032} lds" for i in range(4)]
    return pre, d
def w2_dma(u, slot, need=None):
    pre, d = w2_ops(u, slot)
    for t in pre: A(t)
    for i, t in enumerate(d): st.add(t, tag=("W2", u), need=need if i == 0 else None)
def w2reg(u, tile, s):
    if u < 4: return ("v", 160 + u * 16 + tile * 8 + s * 4)
    if u < 9: return ("a", (u - 4) * 16 + tile * 8 + s * 4)
    return ("a", stg(u, tile, s))
def w2_reads(u, slot):
    return ring_reads(lambda tile, s: w2reg(u, tile, s), slot * UNIT if slot < 4 else 0, None, addr="v10" if slot < 4 else "v9")
for u in range(4): w2_dma(u, u, need=[("R1", 8 + u)])
st.need("y")
A(f"""
s_waitcnt lgkmcnt(0)
s_barrier
s_cmp_lg_u32 s35, 0
s_cbranch_scc1 L_np2
s_lshl_b32 s61, s58, 3
s_add_u32 s61, s61, s59
s_lshl_b32 s61, s61, 7
s_add_u32 s61, s61, {WS_F2}
""")
keep = (list(st.vm), list(st.lg))
flag_store("s61")
A(f"s_lshl_b32 s61, s58, 10\ns_add_u32 s61, s61, {WS_F2}\ns_mov_b64 exec, 0xff")
spin("L_pf2", ["buffer_load_dword v96, v8, s[48:51], s61 offen sc1"], "v_cmp_ne_u32 vcc, s34, v96")
A("s_mov_b64 exec, -1\nL_np2:")
st.vm, st.lg = keep
for u in range(4):
    for i, t in enumerate(w2_reads(u, u)): st.add(t, tag=("R2", u), need=[("W2", u)] if i == 0 else None)
for r in range(8): A(f"v_lshlrev_b32 v{224+2*r}, 16, v{48+r}\nv_and_b32 v{225+2*r}, 0xffff0000, v{48+r}")
A(f"""
v_lshrrev_b32 v3, 4, v1
v_lshlrev_b32 v3, 1, v3
s_movk_i32 s60, 0x78
v_lshrrev_b32 v3, v3, s60
v_xor_b32 v3, v3, v1
v_and_b32 v3, 3, v3
v_lshlrev_b32 v3, 4, v3
v_lshrrev_b32 v4, 2, v1
v_lshl_add_u32 v3, v4, 10, v3
v_subrev_u32 v15, {HIMG}, v15
s_lshl_b32 s61, s58, 16
s_lshl_b32 s60, s35, 14
s_add_u32 s61, s61, s60
s_add_u32 s61, s61, {WS_Y}
s_mov_b32 s92, s60
s_barrier
""")
stamp("f2ok")
for s in range(16):
    A(f"s_add_u32 m0, s92, {s*1024}")
    st.add("buffer_load_dwordx4 v3, s[48:51], s61 offen sc1 lds", tag="Y")
    A("s_add_u32 s61, s61, 64")
for u in range(4, 9): w2_dma(u, u - 4, need=[("R2", u - 4)])
st.need("Y")
A("s_barrier")
stamp("Yin")

def yb(n, s, cb): return 96 + (n & 1) * 32 + (s * 4 + cb) * 4
def hacc(half, tile, cb): return 32 + half * 32 + (tile * 4 + cb) * 4
def yreads(n):
    sp = n & 7
    return [f"ds_read_b128 v[{yb(n,s,cb)}:{yb(n,s,cb)+3}], v15 offset:{cb*16384 + (2*sp+s)*1024}" for cb in range(4) for s in range(2)]
C1 = -2 * 0.7978845608028654 * 1.4426950408889634; C2 = C1 * 0.044715
def gelu_ops(half, cb):
    o = []; regs = [hacc(half, t, cb) + r for t in range(2) for r in range(4)]
    for k in range(0, 8, 4):
        x = regs[k:k + 4]; t = [248 + i for i in range(4)]
        o += [f"v_mul_f32 v{t[i]}, v{x[i]}, v{x[i]}" for i in range(4)]
        o += [f"v_fma_f32 v{t[i]}, v{t[i]}, s92, v244" for i in range(4)]
        o += [f"v_mul_f32 v{t[i]}, v{x[i]}, v{t[i]}" for i in range(4)]
        o += [f"v_exp_f32 v{t[i]}, v{t[i]}" for i in range(4)]
        o += [f"v_add_f32 v{t[i]}, 1.0, v{t[i]}" for i in range(4)]
        o += [f"v_rcp_f32 v{t[i]}, v{t[i]}" for i in range(4)]
        o += [f"v_mul_f32 v{x[i]}, v{x[i]}, v{t[i]}" for i in range(4)]
    d = hacc(half, 0, cb)
    o += [f"v_cvt_pk_bf16_f32 v{d+e}, v{regs[2*e]}, v{regs[2*e+1]}" for e in range(4)]
    o.append(f"buffer_store_dwordx4 v[{d}:{d+3}], v16, s[48:51], s93 offen offset:{cb*1024} sc1")
    return o
for t in yreads(0): A(t)
A(f"""
s_mov_b32 s92, {f2u(C2)}
v_mov_b32 v244, {f2u(C1)}
s_lshl_b32 s93, s58, 3
s_add_u32 s93, s93, s59
s_lshl_b32 s95, s93, 3
s_add_u32 s95, s95, s35
s_lshl_b32 s93, s95, 12
s_add_u32 s93, s93, {WS_H1}
s_lshl_b32 s95, s95, 7
s_add_u32 s95, s95, {WS_F3}
""")
M = []; Fl = []; RES = {}
for n in range(16):
    half, sp = n >> 3, n & 7; g0 = len(M)
    for tile in range(2):
        for cb in range(4):
            for s in range(2):
                M.append(mf(hacc(half, tile, cb), w1reg(half, 2 * sp + s, tile), yb(n, s, cb), (224 + half * 8 + tile * 4) if (sp == 0 and s == 0) else None, "v", "a", "v"))
    if n < 15:
        for i, t in enumerate(yreads(n + 1)): Fl.append(F(t, g0 + i // 2, g0 + 7, "rd"))
    RES[g0 + 15] = 1
    if half == 1 and sp < 5:
        u = 4 + sp
        for i, t in enumerate(w2_reads(u, sp)): Fl.append(F(t, g0 + 4 + i // 2, g0 + 12, "rd", tag=("R2", u), need=[("W2", u)] if i == 0 else None))
        pre, d = w2_ops(u + 5, sp)
        chain_dma(Fl, g0 + 16 + 8, pre, d, ("W2", u + 5), [("R2", u)], "dma")
ga = [t for cb in range(4) for t in gelu_ops(0, cb)]
NH = 150
for t in ga[:NH]: Fl.append(F(t, 128 + 4, 255, "gelu", tag="h1a" if t.startswith("buffer") else None))
schedule(st, M, Fl, reserve=RES, verbose="G1")
stamp("G1")
for t in ga[NH:]: st.add(t, tag="h1a" if t.startswith("buffer") else None)
gb = [t for cb in range(4) for t in gelu_ops(1, cb)]
A("s_add_u32 s93, s93, 16384")
for t in gb:
    st.add(t, tag="h1b" if t.startswith("buffer") else None)
    if t.startswith("buffer") and "offset:1024" in t:
        st.need("h1a"); flag_store("s95")
stamp("gelu")
A(f"""
s_lshl_b32 s61, s58, 6
s_add_u32 s61, s61, s35
s_lshl_b32 s61, s61, 7
s_add_u32 s61, s61, {WS_F3}
v_lshlrev_b32 v8, 10, v1
""")
st.need("h1b")
A("s_add_u32 s95, s95, 512"); flag_store("s95")
A("s_mov_b64 exec, 0x7f")
spin("L_pf3a", ["buffer_load_dword v245, v8, s[48:51], s61 offen sc1"], "v_cmp_ne_u32 vcc, s34, v245")
A(f"""s_mov_b64 exec, -1
s_lshl_b32 s93, s58, 18
s_lshl_b32 s60, s35, 12
s_add_u32 s93, s93, s60
s_add_u32 s93, s93, {WS_H1}
""")
def hB(ks, cb):
    if ks < 7: return ("a", 80 + (ks * 4 + cb) * 4)
    r = ((ks - 7) * 4 + cb) * 4
    return ("v", 32 + r) if r < 64 else ("v", 160 + r - 64)
def h_loads(ks):
    p, h = KS2[ks]
    o = [f"s_add_u32 s60, s93, {p*32768 + h*16384}"]
    for cb in range(4):
        f, r = hB(ks, cb); o.append(f"buffer_load_dwordx4 {f}[{r}:{r+3}], v16, s[48:51], s60 offen offset:{cb*1024} sc1")
    return o
for ks in range(7):
    for t in h_loads(ks): A(t)
stamp("hA")

def facc(tp, tile, cb): return 96 + (tp * 8 + tile * 4 + cb) * 4
def g2_unit(u):
    kp, tp = u >> 1, u & 1; r = []
    for tile in range(2):
        for cb in range(4):
            for s in range(2):
                fa, ra = w2reg(u, tile, s); fb, rb = hB(2 * kp + s, cb)
                r.append(mf(facc(tp, tile, cb), ra, rb, "0" if (kp == 0 and s == 0) else None, "v", fa, fb))
    return r
M = []
for u in range(6): M += g2_unit(u)
schedule(st, M[:64], [])
keep = (list(st.vm), list(st.lg))
A("s_add_u32 s61, s61, 512\ns_mov_b64 exec, 0x7f")
spin("L_pf3b", ["buffer_load_dword v245, v8, s[48:51], s61 offen sc1"], "v_cmp_ne_u32 vcc, s34, v245")
A("s_mov_b64 exec, -1\ns_nop 4")
for ks in range(7, 14):
    for t in h_loads(ks): A(t)
A(f"""
v_and_b32 v2, 15, v1
v_lshlrev_b32 v2, 10, v2
v_lshrrev_b32 v3, 4, v1
v_lshl_add_u32 v2, v3, 4, v2
v_lshlrev_b32 v4, 4, v3
s_lshl_b32 s92, s58, 16
s_lshl_b32 s60, s35, 14
s_add_u32 s92, s92, s60
s_lshl_b32 s95, s59, 7
s_add_u32 s92, s92, s95
s_add_u32 s60, s92, {WS_X1}
buffer_load_dwordx4 v[224:227], v2, s[48:51], s60 offen sc1
buffer_load_dwordx4 v[228:231], v2, s[48:51], s60 offen offset:64 sc1
""")
srd(52, 22, 1024)
A("buffer_load_dwordx4 v[232:235], v4, s[52:55], s95 offen\nbuffer_load_dwordx4 v[236:239], v4, s[52:55], s95 offen offset:64")
M = M[64:]; Fl = []; RES = {}
for u in range(6, 14): M += g2_unit(u)
for u in range(9, 14):
    g0 = (u - 1 - 4) * 16
    for i, t in enumerate(w2_reads(u, u - 9)): Fl.append(F(t, g0 + i // 2, g0 + 7, "rd", need=[("W2", u)] if i == 0 else None))
schedule(st, M, Fl, verbose="G2")
stamp("G2")
A(f"""
s_barrier
s_lshl_b32 s60, s35, 12
v_add_u32 v5, s60, v16
s_lshl_b32 s60, s35, 14
v_add_u32 v6, s60, v16
v_lshlrev_b32 v7, 5, v3
s_lshl_b32 s60, s59, 8
s_add_u32 s60, s60, {MODV + 3*2048}
v_add_u32 v7, s60, v7
""")
for cb in range(4):
    for tp in range(2):
        for tile in range(2):
            A(f"ds_write_b128 v5, v[{facc(tp,tile,cb)}:{facc(tp,tile,cb)+3}] offset:{cb*16384 + (tp*2+tile)*1024}")
for tp in range(2):
    for q in range(2): A(f"ds_read_b128 v[{208+tp*8+4*q}:{211+tp*8+4*q}], v7 offset:{tp*128+q*16}")
for r in range(8):
    A(f"v_lshlrev_b32 v{32+2*r}, 16, v{224+r}\nv_and_b32 v{33+2*r}, 0xffff0000, v{224+r}\nv_lshlrev_b32 v{48+2*r}, 16, v{232+r}\nv_and_b32 v{49+2*r}, 0xffff0000, v{232+r}")
A("s_waitcnt lgkmcnt(0)\ns_barrier")
for src in range(4):
    for n in range(4): A(f"ds_read_b128 v[{96+src*16+n*4}:{99+src*16+n*4}], v6 offset:{src*4096+n*1024}")
for src in range(4):
    for r in range(8): A(f"v_pk_add_f32 v[{48+2*r}:{49+2*r}], v[{48+2*r}:{49+2*r}], v[{96+src*16+2*r}:{97+src*16+2*r}]")
for r in range(8): A(f"v_pk_fma_f32 v[{32+2*r}:{33+2*r}], v[{48+2*r}:{49+2*r}], v[{208+2*r}:{209+2*r}], v[{32+2*r}:{33+2*r}]")
for r in range(8): A(f"v_cvt_pk_bf16_f32 v{64+r}, v{32+2*r}, v{33+2*r}")
srd(52, 28, 2048 * 1024)
A("buffer_store_dwordx4 v[64:67], v2, s[52:55], s92 offen\nbuffer_store_dwordx4 v[68:71], v2, s[52:55], s92 offen offset:64")
if OPT["stamps"]:
    stamp("end")
    A("s_memrealtime s[96:97]\ns_waitcnt lgkmcnt(0)\ns_cmp_lg_u32 s35, 0\ns_cbranch_scc1 L_end\ns_mov_b64 exec, 1")
    A(f"s_lshl_b32 s60, s2, 9\ns_add_u32 s60, s60, {WS_STAMP}\nv_mov_b32 v6, 0")
    A(f"s_mov_b32 s{64+stamp_n[0]-1}, s90")
    lst = [64 + n for n in range(stamp_n[0])] + [98, 96]
    A("v_mov_b32 v3, 0")
    for n, s in enumerate(lst):
        A(f"v_mov_b32 v2, s{s}\nbuffer_store_dwordx2 v[2:3], v6, s[48:51], s60 offen offset:{n*8}\ns_nop 1")
    open(os.path.splitext(sys.argv[1])[0] + ".names", "w").write(" ".join(stamp_names))
    print("stamps:", len(lst))
st.raw(f"""L_end:
    s_endpgm
L_codeend:
.section .rodata,"a"
.p2align 6
.amdhsa_kernel {NAME}_kernel
  .amdhsa_next_free_vgpr 512
  .amdhsa_next_free_sgpr 102
  .amdhsa_accum_offset 256
  .amdhsa_group_segment_fixed_size 0
  .amdhsa_kernarg_size 120
  .amdhsa_user_sgpr_count 2
  .amdhsa_user_sgpr_kernarg_segment_ptr 1
  .amdhsa_system_sgpr_workgroup_id_x 1
.end_amdhsa_kernel""")
open(sys.argv[1], "w").write(st.text())
print("waits", st.nwait, "nop states", st.nnop)
```

```python
import sys, os
sys.path.insert(0, os.path.join(os.path.dirname(os.path.abspath(__file__)), "tools"))
from asmgen import *
NAME = "adaLN_cond__sliding_block_cached__mixer_channel_mlp__prompt"
OPT = dict(stamps=0, stop=99)
for a in sys.argv[2:]:
    k, v = a.split("="); OPT[k] = int(v)

KA, KB, VA, VB, XR = 0, 16384, 32768, 49280, 65792
HIMG = KB
RING0, RINGSZ, UNIT = 82176, 16512, 4128
MISC = 148224
MODV = MISC
SILU = MISC + 8192
RED = MISC + 9216
LFLAG = MISC + 9728
LDS_BYTES = 163840
WS_MOD, WS_F1, WS_F2, WS_F3 = 0x1000, 0x10000, 0x20000, 0x40000
WS_Y, WS_X1, WS_H1, WS_PART = 0x200000, 0x400000, 0x600000, 0x1000000
WS_STAMP = 0xF000000
SCALE = 1.4426950408889634 / (128 ** 0.5)
import struct
def f2u(x): return struct.unpack("<I", struct.pack("<f", x))[0]
SPIN = 1 << 18

st = Stream()
A = st.A
stamp_n = [0]
stamp_names = []
def stamp(name=""):
    if not OPT["stamps"]: return
    n = stamp_n[0]; stamp_n[0] += 1; stamp_names.append(name)
    assert n < 26
    if n: st.add(f"s_mov_b32 s{64+n-1}, s90")
    st.add("s_memtime s[90:91]")
def dummyI(t):
    i = I(t); i.wr = []; return i
def dummy(t): st.add(dummyI(t))
def srd(base, ptr, size):
    A(f"s_mov_b32 s{base}, s{ptr}\ns_mov_b32 s{base+1}, s{ptr+1}\ns_mov_b32 s{base+2}, {size}\ns_mov_b32 s{base+3}, 0x20000")
def mf(d, a, b, c=None, dt="v", at="a", bt="a"):
    cs = f"{dt}[{d}:{d+3}]" if c is None else (c if isinstance(c, str) else f"{dt}[{c}:{c+3}]")
    return f"v_mfma_f32_16x16x32_bf16 {dt}[{d}:{d+3}], {at}[{a}:{a+3}], {bt}[{b}:{b+3}], {cs}"
STG = 192
def stg(u, tile, s): return STG + (u & 1) * 16 + tile * 8 + s * 4
def ring_reads(dst_fn, slot_off, tagp, addr="v10"):
    r = []
    for tile in range(2):
        for s in range(2):
            f, d = dst_fn(tile, s)
            for hf in range(2):
                r.append(f"ds_read_b64_tr_b16 {f}[{d+2*hf}:{d+2*hf+1}], {addr} offset:{slot_off + s*2064 + hf*256 + tile*8}")
    return r
def unit_voffs(stride):
    A(f"""
    v_lshrrev_b32 v2, 5, v1
    v_lshlrev_b32 v2, 4, v2
    v_and_b32 v3, 31, v1
    v_lshrrev_b32 v3, 2, v3
    v_add_u32 v2, v2, v3
    s_mov_b32 s60, {stride}
    v_mul_lo_u32 v2, v2, s60
    v_and_b32 v3, 3, v1
    v_lshl_add_u32 v11, v3, 4, v2
    v_add_u32 v12, {8*stride-1032}, v11
    v_add_u32 v13, {32*stride-2064}, v11
    v_add_u32 v14, {40*stride-3096}, v11
    """)
def unit_dma(tag, soff, srd="s[36:39]"):
    return [f"buffer_load_dwordx4 v{11+i}, {srd}, {soff} offen offset:{i*1032} lds" for i in range(4)]

st.raw(f"""; adaLN + GQA window attention + channel MLP, one persistent launch, 256 workgroups (one per CU)
; @launch grid=(256,1,1) block=(256,1,1) lds={LDS_BYTES}
.amdgcn_target "amdgcn-amd-amdhsa--gfx950"
.text
.globl {NAME}_kernel
.p2align 8
.type {NAME}_kernel,@function
{NAME}_kernel:
L_start:""")
A("""
s_cmp_ge_u32 s2, 256
s_cbranch_scc1 L_end
s_load_dwordx16 s[4:19], s[0:1], 0
s_load_dwordx8 s[20:27], s[0:1], 64
s_load_dwordx4 s[28:31], s[0:1], 96
s_load_dwordx2 s[32:33], s[0:1], 112
""")
if OPT["stamps"]: A("s_memrealtime s[98:99]")
stamp("start")
A(f"""
v_and_b32 v1, 63, v0
v_lshrrev_b32 v2, 6, v0
s_and_b32 s56, s2, 7
s_lshr_b32 s57, s2, 3
v_readfirstlane_b32 s35, v2
s_lshl_b32 s58, s56, 2
s_lshr_b32 s59, s57, 3
s_add_u32 s58, s58, s59
s_and_b32 s59, s57, 7
s_getpc_b64 s[60:61]
L_pc:
s_sub_u32 s60, s60, L_pc-L_start
s_subb_u32 s61, s61, 0
s_lshl_b32 s62, s57, 12
v_lshl_add_u32 v2, v0, 4, s62
v_cmp_gt_u32 vcc, L_codeend-L_start-16, v2
s_and_saveexec_b64 s[62:63], vcc
s_cbranch_execz L_nocode
global_load_dwordx4 a[248:251], v2, s[60:61]
L_nocode:
s_mov_b64 exec, -1
s_waitcnt lgkmcnt(0)
s_load_dword s34, s[32:33], 0
""")
st.vm = []
srd(48, 32, 0x10000000)
A(f"""
s_cmp_ge_u32 s56, 3
s_cbranch_scc1 L_noprod1
""")
srd(52, 24, 1024)
srd(36, 26, 512 * 6144)
A("v_lshlrev_b32 v2, 2, v0\nbuffer_load_dword v8, v2, s[52:55], 0 offen")
unit_voffs(6144)
A(f"""
s_lshl_b32 s60, s56, 5
s_add_u32 s60, s60, s57
s_lshl_b32 s60, s60, 6
s_mul_i32 s61, s35, {128*6144}
s_add_u32 s60, s60, s61
s_mul_i32 s61, s35, {2*UNIT}
s_add_u32 s61, s61, {HIMG}
s_mov_b32 m0, s61
""")
for t in unit_dma(None, "s60"): A(t)
A(f"s_add_u32 s60, s60, {64*6144}\ns_add_u32 m0, s61, {UNIT}")
for t in unit_dma(None, "s60"): A(t)
A("L_noprod1:")
st.vm = []; st.hist = []
A("s_nop 4")
srd(52, 4, 2048 * 1024)
A(f"""
v_lshrrev_b32 v2, 2, v1
v_lshlrev_b32 v2, 10, v2
v_and_b32 v3, 3, v1
v_lshl_add_u32 v2, v3, 4, v2
s_lshl_b32 s60, s57, 16
s_lshl_b32 s61, s35, 14
s_add_u32 s60, s60, s61
""")
for j in range(16):
    st.add(f"buffer_load_dwordx4 v[{32+4*j}:{35+4*j}], v2, s[52:55], s60 offen offset:{j*64}")
srd(36, 10, 512 * 8192)
A(f"""
v_lshlrev_b32 v16, 4, v1
s_lshl_b32 s60, s57, 2
s_add_u32 s60, s60, s35
s_lshl_b32 s60, s60, 15
s_lshl_b32 s61, s56, 10
s_add_u32 s60, s60, s61
""")
for i in range(4):
    dummy(f"buffer_load_dwordx4 a[244:247], v16, s[36:39], s60 offen"); A("s_add_u32 s60, s60, 8192")
unit_voffs(8192)
A(f"""
s_mul_i32 s63, s35, {RINGSZ}
s_add_u32 s63, s63, {RING0}
s_lshl_b32 s62, s56, 10
s_lshl_b32 s61, s35, 8
s_add_u32 s62, s62, s61
""")
for u in range(4):
    A(f"s_add_u32 m0, s63, {u*UNIT}\ns_add_u32 s60, s62, {u*64}")
    for t in unit_dma(None, "s60"): st.add(t, tag=("W", u))
F_ = [0, 2, 3, 1]
A(f"""
v_lshrrev_b32 v2, 4, v1
v_and_b32 v3, 1, v2
v_mul_u32_u24 v3, 1032, v3
v_lshrrev_b32 v4, 1, v2
v_and_b32 v5, 15, v1
v_lshl_add_u32 v3, v5, 4, v3
v_lshl_add_u32 v10, v4, 9, v3
v_add_u32 v10, s63, v10
v_mul_u32_u24 v4, 2064, v4
v_add_u32 v21, v3, v4
v_add_u32 v21, {VA}, v21
; f(quad) = (0x78 >> 2*quad) & 3 for quad = (l>>2)&3
v_bfe_u32 v6, v1, 2, 2
v_lshlrev_b32 v6, 1, v6
v_lshrrev_b32 v6, v6, 0x78
v_and_b32 v6, 3, v6
v_xor_b32 v7, v6, v2
v_lshlrev_b32 v7, 4, v7
v_lshl_add_u32 v15, v5, 6, v7
v_add_u32 v15, {HIMG}, v15
v_bfe_u32 v4, v1, 2, 2
v_lshl_add_u32 v7, v4, 12, v7
v_and_b32 v4, 3, v1
v_lshl_add_u32 v7, v4, 8, v7
""".replace("v_lshrrev_b32 v6, v6, 0x78", "s_movk_i32 s60, 0x78\nv_lshrrev_b32 v6, v6, s60"))
for s in range(4):
    A(f"v_xor_b32 v5, {s}, v4\nv_lshl_add_u32 v{17+s}, v5, 6, v7")
A(f"""
s_lshl_b32 s60, s35, 1
s_lshr_b32 s60, 0x78, s60
s_and_b32 s60, s60, 3
v_lshlrev_b32 v3, 2, v2
v_xor_b32 v3, s60, v3
v_and_b32 v4, 15, v1
v_xor_b32 v3, v3, v4
v_lshlrev_b32 v3, 4, v3
v_lshl_add_u32 v3, v2, 8, v3
s_lshl_b32 s60, s35, 10
v_add_u32 v22, s60, v3
v_add_u32 v23, 3072, v22
v_add_u32 v24, 6144, v22
v_add_u32 v25, 9216, v22
v_bfe_u32 v3, v1, 2, 2
v_lshlrev_b32 v3, 8, v3
v_lshl_add_u32 v3, v2, 6, v3
v_and_b32 v4, 3, v1
v_lshl_add_u32 v3, v4, 4, v3
s_lshl_b32 s60, s35, 12
s_add_u32 s60, s60, 64
v_add_u32 v26, s60, v3
v_subrev_u32 v27, 8, v26
v_subrev_u32 v28, 16, v26
v_subrev_u32 v29, 24, v26
""")
srd(40, 6, 8 * 2048 * 256)
srd(44, 8, 8 * 2048 * 256)
A(f"""
s_lshl_b32 s3, s56, 19
s_add_u32 s3, s3, {1536*256}
s_lshl_b32 s97, s35, 12
s_mul_i32 s96, s35, 4128
s_add_u32 s96, s96, {VA}
s_mov_b32 m0, s97
""")
def k_dma(c): return [f"buffer_load_dwordx4 v{22+i}, s[40:43], s60 offen offset:{i*1024} lds" for i in range(4)]
def v_dma(c): return [f"buffer_load_dwordx4 v{26+i}, s[44:47], s61 offen offset:{i*1032} lds" for i in range(4)]
A("s_mov_b32 s60, s3")
for t in k_dma(0): st.add(t, tag=("K", 0))
A(f"""
s_mul_i32 s34, s34, 0x9E3779B1
s_add_u32 s34, s34, 0x7F4A7C15
""")
srd(52, 30, 256)
A(f"""
s_cmp_lg_u32 s35, 0
s_cbranch_scc1 L_noat
s_mov_b64 exec, 1
v_mov_b32 v2, 0
v_accvgpr_write_b32 a252, 1
""")
keep = list(st.vm)
A("buffer_atomic_add a252, v2, s[52:55], 0 offen sc0 sc1\ns_mov_b64 exec, -1\nL_noat:")
st.vm = keep
A(f"""
s_cmp_ge_u32 s56, 3
s_cbranch_scc1 L_noprod2
""")
save = (list(st.vm), list(st.lg))
nvm = len(st.vm)
A(f"s_waitcnt vmcnt({nvm + 8})")
st.vm = list(save[0])
A(f"""
v_lshlrev_b32 v2, 16, v8
v_and_b32 v3, 0xffff0000, v8
v_mul_f32 v4, {f2u(-1.4426950408889634)}, v2
v_mul_f32 v5, {f2u(-1.4426950408889634)}, v3
v_exp_f32 v4, v4
v_exp_f32 v5, v5
v_add_f32 v4, 1.0, v4
v_add_f32 v5, 1.0, v5
v_rcp_f32 v4, v4
v_rcp_f32 v5, v5
v_mul_f32 v2, v2, v4
v_mul_f32 v3, v3, v5
v_cvt_pk_bf16_f32 v2, v2, v3
v_lshlrev_b32 v3, 2, v0
ds_write_b32 v3, v2 offset:{SILU}
v_lshrrev_b32 v2, 4, v1
v_lshlrev_b32 v2, 4, v2
s_lshl_b32 s60, s35, 8
v_add_u32 v2, s60, v2
s_mul_i32 s60, s35, {2*UNIT}
s_sub_u32 s60, s60, s63
s_add_u32 s60, s60, {HIMG}
v_add_u32 v3, s60, v10
s_waitcnt lgkmcnt(0)
s_barrier
""".replace(f"offset:{SILU}", "offset:0").replace("v_lshlrev_b32 v3, 2, v0", f"v_lshlrev_b32 v3, 2, v0\nv_add_u32 v3, {SILU}, v3").replace("v_add_u32 v2, s60, v2", f"s_add_u32 s60, s60, {SILU}\nv_add_u32 v2, s60, v2"))
for s in range(4):
    A(f"ds_read_b128 a[{4*s}:{4*s+3}], v2 offset:{s*64}")
A(f"s_waitcnt vmcnt({nvm})")
st.vm = list(save[0])
for u in range(2):
    for t in ring_reads(lambda tile, s: ("a", 16 + u * 16 + tile * 8 + s * 4), u * UNIT, None, addr="v3"): A(t)
for s in range(4):
    for tile in range(2):
        A(mf(96 + 4 * tile, 16 + (s >> 1) * 16 + tile * 8 + (s & 1) * 4, 4 * s, "0" if s == 0 else None))
A(f"""
v_lshrrev_b32 v2, 4, v1
v_lshlrev_b32 v2, 5, v2
s_lshl_b32 s60, s35, 7
s_add_u32 s60, s60, {RED}
v_add_u32 v2, s60, v2
s_mov_b32 s60, 0x00010001
s_mov_b32 s61, 0x00010001
s_mov_b64 exec, s[60:61]
ds_write_b128 v2, v[96:99]
ds_write_b128 v2, v[100:103] offset:16
s_mov_b64 exec, -1
s_waitcnt lgkmcnt(0)
s_barrier
s_cmp_lg_u32 s35, 0
s_cbranch_scc1 L_noprod2
v_lshlrev_b32 v2, 3, v1
v_add_u32 v3, {RED}, v2
s_mov_b64 exec, 0xffff
ds_read_b64 v[96:97], v3
ds_read_b64 v[98:99], v3 offset:128
ds_read_b64 v[100:101], v3 offset:256
ds_read_b64 v[102:103], v3 offset:384
s_lshl_b32 s60, s56, 5
s_add_u32 s60, s60, s57
s_lshl_b32 s60, s60, 7
s_add_u32 s60, s60, {WS_MOD}
v_pk_add_f32 v[96:97], v[96:97], v[98:99]
v_pk_add_f32 v[100:101], v[100:101], v[102:103]
v_pk_add_f32 v[96:97], v[96:97], v[100:101]
v_cvt_pk_bf16_f32 v96, v96, v97
v_mov_b32 v97, s34
buffer_store_dwordx2 v[96:97], v2, s[48:51], s60 offen sc1
s_mov_b64 exec, -1
L_noprod2:
""")
st.vm = list(save[0]); st.lg = []; st.hist = []
A("s_waitcnt lgkmcnt(0)\ns_nop 4")
A(f"""
s_lshl_b32 s60, s57, 2
s_add_u32 s60, s60, s35
s_lshl_b32 s61, s60, 10
s_add_u32 s61, s61, s3
""")
dummy("buffer_load_dwordx4 a[244:247], v16, s[40:43], s61 offen")
dummy("buffer_load_dwordx4 a[244:247], v16, s[44:47], s61 offen")
A("v_mov_b32 v4, 0\nv_mov_b32 v6, 0\nv_mov_b32 v9, 0x3f803f80")
for r in range(32, 96):
    A(f"v_dot2c_f32_bf16 v4, v{r}, v9\nv_dot2c_f32_bf16 v6, v{r}, v{r}")
A(f"""
v_add_f32_dpp v4, v4, v4 quad_perm:[1,0,3,2] row_mask:0xf bank_mask:0xf
v_add_f32_dpp v6, v6, v6 quad_perm:[1,0,3,2] row_mask:0xf bank_mask:0xf
v_add_f32_dpp v4, v4, v4 quad_perm:[2,3,0,1] row_mask:0xf bank_mask:0xf
v_add_f32_dpp v6, v6, v6 quad_perm:[2,3,0,1] row_mask:0xf bank_mask:0xf
v_mul_f32 v5, {f2u(1/512)}, v4
v_mul_f32 v6, {f2u(1/512)}, v6
v_fma_f32 v6, -v5, v5, v6
v_max_f32 v6, 0, v6
v_add_f32 v6, {f2u(1e-5)}, v6
v_rsq_f32 v4, v6
v_mul_f32 v6, -v5, v4
""".replace("v_mul_f32 v6, -v5, v4", "v_mul_f32_e64 v6, -v5, v4"))
for r in range(64):
    A(f"v_lshlrev_b32 v{128+2*r}, 16, v{32+r}\nv_and_b32 v{129+2*r}, 0xffff0000, v{32+r}")
    if r: A(f"v_pk_fma_f32 v[{126+2*r}:{127+2*r}], v[{126+2*r}:{127+2*r}], v[4:5], v[6:7] op_sel_hi:[1,0,0]")
A("v_pk_fma_f32 v[254:255], v[254:255], v[4:5], v[6:7] op_sel_hi:[1,0,0]")
stamp("xstat")
A(f"""
v_lshlrev_b32 v2, 4, v0
s_mov_b32 s60, {SPIN}
s_mov_b32 s61, {WS_MOD}
""")
keep = list(st.vm)
A(f"""
L_pollmod:
buffer_load_dwordx4 v[96:99], v2, s[48:51], s61 offen sc1
s_sub_u32 s60, s60, 1
s_waitcnt vmcnt(0)
v_cmp_ne_u32 vcc, s34, v97
v_cmp_ne_u32 s[100:101], s34, v99
s_or_b64 vcc, vcc, s[100:101]
s_cmp_eq_u32 s60, 0
s_cbranch_scc1 L_modok
s_cbranch_vccnz L_pollmod
L_modok:
s_cmp_ge_u32 s35, 2
s_cselect_b32 s60, 1.0, 0
s_mov_b32 s61, {f2u(SCALE)}
v_lshlrev_b32 v100, 16, v96
v_and_b32 v101, 0xffff0000, v96
v_lshlrev_b32 v102, 16, v98
v_and_b32 v103, 0xffff0000, v98
v_add_f32 v100, s60, v100
v_add_f32 v101, s60, v101
v_add_f32 v102, s60, v102
v_add_f32 v103, s60, v103
v_mul_f32 v100, s61, v100
v_mul_f32 v101, s61, v101
v_mul_f32 v102, s61, v102
v_mul_f32 v103, s61, v103
v_add_u32 v2, {MODV}, v2
ds_write_b128 v2, v[100:103]
v_and_b32 v2, 3, v1
v_lshlrev_b32 v2, 5, v2
v_add_u32 v2, {MODV}, v2
v_lshrrev_b32 v3, 4, v1
v_lshlrev_b32 v3, 1, v3
s_movk_i32 s60, 0x78
v_lshrrev_b32 v3, v3, s60
v_xor_b32 v3, v3, v1
v_and_b32 v3, 3, v3
v_and_b32 v4, 60, v1
v_add_u32 v3, v3, v4
v_lshlrev_b32 v3, 4, v3
s_lshl_b32 s60, s35, 10
s_add_u32 s60, s60, {HIMG}
v_add_u32 v3, s60, v3
s_waitcnt lgkmcnt(0)
s_barrier
""")
stamp("modok")
def modreads(j):
    b = 96 + (j & 1) * 16
    A(f"""ds_read_b128 v[{b}:{b+3}], v2 offset:{j*128}
    ds_read_b128 v[{b+4}:{b+7}], v2 offset:{j*128+16}
    ds_read_b128 v[{b+8}:{b+11}], v2 offset:{2048+j*128}
    ds_read_b128 v[{b+12}:{b+15}], v2 offset:{2048+j*128+16}""")
modreads(0)
for j in range(16):
    if j < 15: modreads(j + 1)
    b = 96 + (j & 1) * 16; t = 128 + 8 * j
    for e in range(4):
        A(f"v_pk_fma_f32 v[{t+2*e}:{t+2*e+1}], v[{t+2*e}:{t+2*e+1}], v[{b+8+2*e}:{b+9+2*e}], v[{b+2*e}:{b+2*e+1}]")
    for e in range(4):
        A(f"v_cvt_pk_bf16_f32 v{32+4*j+e}, v{t+2*e}, v{t+2*e+1}")
    A(f"ds_write_b128 v3, v[{32+4*j}:{35+4*j}] offset:{j*4096}")
srd(52, 12, 4096 * 1024)
A(f"""
s_lshl_b32 s60, s57, 2
s_add_u32 s60, s60, s35
s_lshl_b32 s60, s60, 12
s_lshl_b32 s61, s56, 19
s_add_u32 s60, s60, s61
""")
for i in range(4): dummy(f"buffer_load_dwordx4 a[244:247], v16, s[52:55], s60 offen offset:{i*1024}")
for t in ring_reads(lambda tile, s: ("a", stg(0, tile, s)), 0, None): st.add(t, tag=("R", 0))
A("s_waitcnt lgkmcnt(0)\ns_barrier")
def hb(kk, s, cb): return (kk & 1) * 32 + (s * 4 + cb) * 4
for s in range(2):
    for cb in range(4): A(f"ds_read_b128 a[{hb(0,s,cb)}:{hb(0,s,cb)+3}], v15 offset:{(s*4+cb)*1024}")
stamp("hdone")

def qacc(tp, tile, cb): return 128 + (tp * 8 + tile * 4 + cb) * 4
def qop(s, cb): return 32 + (s * 4 + cb) * 4
M = []; Fl = []; RES = {}
def chain_dma(Fl, g0, pre, dmas, tag, need, chain):
    for t in pre: Fl.append(F(t, g0 - 4, g0 + 3, chain))
    for i, t in enumerate(dmas): Fl.append(F(t, g0 + i, g0 + 3 + i, chain, tag=tag, need=need if i == 0 else None))
for u in range(32):
    kk, tp = u >> 2, u & 3
    g0 = len(M)
    for tile in range(2):
        for cb in range(4):
            for s in range(2):
                M.append(mf(qacc(tp, tile, cb), stg(u, tile, s), hb(kk, s, cb), "0" if (kk == 0 and s == 0) else None))
    if u + 1 < 32:
        for i, t in enumerate(ring_reads(lambda tile, s: ("a", stg(u + 1, tile, s)), ((u + 1) & 3) * UNIT, None)):
            Fl.append(F(t, g0 + i // 2, g0 + 5, "rd", tag=("R", u + 1), need=[("W", u + 1)] if i == 0 else None))
    if kk < 7:
        for i in range(2):
            n = tp * 2 + i; s, cb = n >> 2, n & 3
            Fl.append(F(f"ds_read_b128 a[{hb(kk+1,s,cb)}:{hb(kk+1,s,cb)+3}], v15 offset:{((kk+1)*8+n)*1024}", g0 + 5, g0 + 8, "rd", tag=("HB", kk + 1)))
    un = u + 5 if u else None
    for un in ([4, 5] if u == 0 else [u + 5]):
        if un < 32:
            gg = g0 + (6 if (u == 0 and un == 4) else 11)
            chain_dma(Fl, gg, [f"s_add_u32 m0, s63, {(un&3)*UNIT}", f"s_add_u32 s60, s62, {(un>>2)*64*8192 + (un&3)*64}"], unit_dma(None, "s60"), ("W", un), [("R", un - 4)], "dma")
    RES[g0 + 15] = 1
    if kk == 7:
        if tp:
            for cb in range(4):
                for e in range(4):
                    src = qacc(tp - 1, e >> 1, cb) + 2 * (e & 1)
                    Fl.append(F(f"v_cvt_pk_bf16_f32 v{qop(tp-1,cb)+e}, v{src}, v{src+1}", g0 + 2, g0 + 15, "cv"))
        if tp == 1:
            Fl.append(F(("barrier", [("HB", 7), ("K", 0)]), g0 + 6, g0 + 6, "kv"))
            chain_dma(Fl, g0 + 11, [f"s_add_u32 m0, s97, {KB}", f"s_add_u32 s60, s3, {16384}"], k_dma(1), ("K", 1), None, "kv")
        if tp == 2:
            chain_dma(Fl, g0 + 11, [f"s_mov_b32 m0, s96", f"s_sub_u32 s61, s3, 64"], v_dma(0), ("V", 0), None, "kv")
        if tp == 3:
            for s in range(4):
                Fl.append(F(f"ds_read_b128 a[{STG+s*4}:{STG+s*4+3}], v{17+s} offset:{KA}", g0 + 1 + s, g0 + 8, "rd", tag=("R", "k00")))
schedule(st, M, Fl, reserve=RES, verbose="Q")
for cb in range(4):
    for e in range(4):
        src = qacc(3, e >> 1, cb) + 2 * (e & 1)
        A(f"v_cvt_pk_bf16_f32 v{qop(3,cb)+e}, v{src}, v{src+1}")
stamp("Qend")
srd(36, 12, 4096 * 1024)
unit_voffs(1024)
A(f"""
v_mov_b32 v2, 0x3f803f80
v_accvgpr_write_b32 a240, v2
v_accvgpr_write_b32 a241, v2
v_accvgpr_write_b32 a242, v2
v_accvgpr_write_b32 a243, v2
s_lshl_b32 s62, s56, 19
s_lshl_b32 s60, s35, 6
s_add_u32 s62, s62, s60
s_lshl_b32 s94, s35, 17
""")
def wo_pre(u, slot):
    i, kk = u >> 3, u & 7
    return [f"s_add_u32 m0, s63, {slot*UNIT}", f"s_add_u32 s95, s94, {kk*65536}", f"s_and_b32 s95, s95, 0x7ffff", f"s_add_u32 s95, s95, s62", f"s_add_u32 s95, s95, {i*256}"]

def S(kt, cb): return 96 + (kt * 4 + cb) * 4
def P(c, s, cb): return 160 + (c & 1) * 32 + (s * 4 + cb) * 4
def CI(cb): return 224 + 4 * cb
def oacc(tp, tile, cb): return (tp * 8 + tile * 4 + cb) * 4
LS = 224
units = [("QK", 0, k) for k in range(4)]
for c in range(7): units += [("QK", c + 1, k) for k in range(4)] + [("L", c, 0)] + [("PV", c, k) for k in range(4)]
units += [("L", 7, 0)] + [("PV", 7, k) for k in range(4)]
M = []; Fl = []; RES = {}
G = {}; buf = {}
n = 0
for un in units:
    G[un] = None
    if un[0] != "L": buf[un] = n; n += 1
pos = 0
for un in units:
    G[un] = pos; pos += 8 if un[0] == "L" else 16
NATT = pos
staged = [u for u in units if u[0] != "L"]
def oop(dp, cb): return 32 + (dp * 4 + cb) * 4
for un in units:
    ty, c, k = un; g0 = len(M); assert g0 == G[un]
    if ty == "QK":
        b = STG + (buf[un] & 1) * 16
        for cb in range(4):
            for s in range(4):
                cin = None if s else ("0" if (c == 0 and k < 2) else CI(cb))
                M.append(mf(S(k, cb), b + 4 * s, qop(s, cb), cin, "v", "a", "v"))
    elif ty == "L":
        for cb in range(4):
            for s in range(2):
                M.append(mf(LS + 4 * cb, 240, P(c, s, cb), "0" if (c == 0 and s == 0) else None, "a", "a", "v"))
    else:
        for tile in range(2):
            for cb in range(4):
                for s in range(2):
                    M.append(mf(oacc(k, tile, cb), stg(buf[un], tile, s), P(c, s, cb), "0" if (c == 0 and s == 0) else None, "a", "a", "v"))
    if ty == "L": continue
    RES[g0 + 15] = 1
    bar = None
    if (ty, c, k) == ("QK", 0, 3): bar = 1
    if ty == "PV" and k == 3 and c < 7: bar = c + 2
    rg = g0
    if bar is not None:
        need = [("R", un), ("V", bar - 1)] + ([("K", bar)] if bar <= 7 else [])
        Fl.append(F(("barrier", need), g0 + 1, g0 + 1, "rd")); rg = g0 + 2
        gk = g0 + 20
        if bar + 1 <= 7:
            chain_dma(Fl, gk, [f"s_add_u32 m0, s97, {KA if (bar+1)%2==0 else KB}", f"s_add_u32 s60, s3, {(bar+1)*16384}"], k_dma(bar + 1), ("K", bar + 1), None, "kv")
        if bar <= 7:
            chain_dma(Fl, gk + 16, [f"s_add_u32 m0, s96, {(bar&1)*16512}", f"s_add_u32 s61, s3, {bar*16384-64}"], v_dma(bar), ("V", bar), None, "kv")
        if 2 <= bar <= 5:
            u = bar - 2
            chain_dma(Fl, gk + 36, wo_pre(u, u), unit_dma(None, "s95"), ("W", u), None, "kv")
    i = staged.index(un)
    if i + 1 < len(staged):
        nx = staged[i + 1]; nb = STG + (buf[nx] & 1) * 16
        if nx[0] == "QK":
            for s in range(4):
                Fl.append(F(f"ds_read_b128 a[{nb+4*s}:{nb+4*s+3}], v{17+s} offset:{(KA if nx[1]%2==0 else KB) + nx[2]*1024}", rg + s // 2, rg + 6, "rd", tag=("R", nx)))
        else:
            i2 = 0
            for tile in range(2):
                for s in range(2):
                    for hf in range(2):
                        d = stg(buf[nx], tile, s) + 2 * hf
                        Fl.append(F(f"ds_read_b64_tr_b16 a[{d}:{d+1}], v21 offset:{(nx[1]&1)*16512 + (4*s+2*hf)*2064 + nx[2]*256 + tile*8}", rg + i2 // 2, rg + 7, "rd", tag=("R", nx))); i2 += 1
    else:
        for i2, t in enumerate(ring_reads(lambda tile, s: ("a", stg(buf[un] + 1, tile, s)), 0, None)):
            Fl.append(F(t, rg + i2 // 2, rg + 7, "rd", tag=("R", 0), need=[("W", 0)] if i2 == 0 else None))
OBUF0 = (buf[staged[-1]] + 1) & 1
g1 = G[("QK", 0, 1)]
for cb in range(4):
    s0 = S(0, cb); t = 240 + 2 * cb; ch = ("mx", cb); e = g1 + max(0, 4 * cb - 8) ; l = g1 + 14 + 4 * cb
    for txt in [f"v_max3_f32 v{t}, v{s0}, v{s0+1}, v{s0+2}", f"v_max_f32 v{t}, v{t}, v{s0+3}", f"v_mov_b32 v{t+1}, v{t}",
                f"v_permlane16_swap_b32 v{t}, v{t+1}", f"v_max_f32 v{t}, v{t}, v{t+1}", f"v_mov_b32 v{t+1}, v{t}",
                f"v_permlane32_swap_b32 v{t}, v{t+1}", f"v_max_f32 v{t}, v{t}, v{t+1}"] + [f"v_sub_f32 v{CI(cb)+i}, 0, v{t}" for i in range(4)]:
        Fl.append(F(txt, e, l, ch))
for c in range(8):
    for kt in range(4):
        gq = G[("QK", c, kt)]
        for cb in range(4):
            e = gq + 4 * cb + 3 + 5
            l = (G[("QK", c + 1, kt)] + 4 * cb - 1) if c < 7 else G[("L", 7, 0)] - 2
            l = min(l, G[("L", c, 0)] - 2)
            ch = ("sm", kt, cb); s0 = S(kt, cb)
            if c == 0 and kt < 2:
                ch = ("mx", cb)
                for i in range(4): Fl.append(F(f"v_add_f32 v{s0+i}, v{CI(cb)}, v{s0+i}", e, l, ch))
            for i in range(4): Fl.append(F(f"v_exp_f32 v{s0+i}, v{s0+i}", e, l, ch))
            for i in range(2): Fl.append(F(f"v_cvt_pk_bf16_f32 v{P(c,kt>>1,cb)+2*(kt&1)+i}, v{s0+2*i}, v{s0+2*i+1}", e, l, ch))
gL = G[("L", 7, 0)]
for cb in range(4):
    Fl.append(F(f"v_accvgpr_read_b32 v{240+cb}, a{LS+4*cb}", gL + 12, gL + 20, "nrm"))
for cb in range(4):
    Fl.append(F(f"v_rcp_f32 v{244+cb}, v{240+cb}", gL + 12, gL + 24, "nrm"))
blk = [KA, KB, VA, XR]
A_blk = lambda: None
def norm_ops(dp, cb):
    t = 160 + (cb) * 8; o = []
    for tile in range(2):
        for r in range(4): o.append(f"v_accvgpr_read_b32 v{t+4*tile+r}, a{oacc(dp,tile,cb)+r}")
    for r in range(8): o.append(f"v_mul_f32 v{t+r}, v{244+cb}, v{t+r}")
    for e in range(4): o.append(f"v_cvt_pk_bf16_f32 v{oop(dp,cb)+e}, v{t+2*e}, v{t+2*e+1}")
    o.append(f"ds_write_b128 v30, v[{oop(dp,cb)}:{oop(dp,cb)+3}] offset:{(dp*4+cb)*1024}")
    return o
def blk_addr(dst, add):
    A(f"""s_add_u32 s60, s35, {add}
    s_and_b32 s60, s60, 3
    s_lshl_b32 s61, s60, 14
    s_cmp_eq_u32 s60, 3
    s_cselect_b32 s61, {XR}, s61
    v_add_u32 v{dst}, s61, v16""")
blk_addr(30, 0); blk_addr(2, 1); blk_addr(3, 2); blk_addr(4, 3)
pending_norm = []
for dp in range(4):
    for cb in range(4):
        for t in norm_ops(dp, cb): pending_norm.append((dp, t))
gend = NATT - 1
hidden = [x for x in pending_norm if x[0] < 3]
for dp, t in hidden[:72]:
    Fl.append(F(t, G[("PV", 7, dp)] + 16 + 3, gend, "nrm"))
rest = hidden[72:] + [x for x in pending_norm if x[0] == 3]
schedule(st, M, Fl, reserve=RES, verbose="attn")
stamp("attn")
for dp, t in rest: st.add(t, tag="ow" if t.startswith("ds_write") else None)
stamp("norm")

def oB(i, cb): return ("v", oop(i, cb)) if i < 4 else ("a", ((i - 4) * 4 + cb) * 4)
def pacc(i, tile, cb): return 96 + (i & 1) * 32 + (tile * 4 + cb) * 4
A(f"""
v_and_b32 v5, 15, v1
v_lshrrev_b32 v6, 1, v5
v_lshlrev_b32 v6, 11, v6
v_and_b32 v5, 1, v5
v_lshl_add_u32 v6, v5, 4, v6
v_lshrrev_b32 v5, 4, v1
v_lshl_add_u32 v31, v5, 5, v6
s_lshl_b32 s93, s57, 19
s_lshl_b32 s60, s56, 16
s_add_u32 s93, s93, s60
s_lshl_b32 s60, s35, 7
s_add_u32 s93, s93, s60
s_add_u32 s93, s93, {WS_PART}
""")
M = []; Fl = []; RES = {}
def part_out(i, e, l, Fl):
    for cb in range(4):
        for k in range(4):
            src = pacc(i, k >> 1, cb) + 2 * (k & 1)
            Fl.append(F(f"v_cvt_pk_bf16_f32 v{224+4*cb+k}, v{src}, v{src+1}", e, l, "po"))
        Fl.append(F(f"s_add_u32 s92, s93, {cb*16384 + i*512}", e, l, "po"))
        Fl.append(F(f"buffer_store_dwordx4 v[{224+4*cb}:{227+4*cb}], v31, s[48:51], s92 offen sc1", e, l, "po", tag="part"))
for u in range(32):
    i, kk = u >> 3, u & 7; g0 = len(M); ub = u + OBUF0
    for tile in range(2):
        for cb in range(4):
            for s in range(2):
                f, r = oB(2 * kk + s, cb)
                M.append(mf(pacc(i, tile, cb), stg(ub, tile, s), r, "0" if (kk == 0 and s == 0) else None, "v", "a", f))
    if u + 1 < 32:
        for n2, t in enumerate(ring_reads(lambda tile, s: ("a", stg(ub + 1, tile, s)), ((u + 1) & 3) * UNIT, None)):
            Fl.append(F(t, g0 + n2 // 2, g0 + 5, "rd", tag=("R", u + 1), need=[("W", u + 1)] if n2 == 0 else None))
    if u == 0: Fl.append(F(("barrier", ["ow"]), g0 + 5, g0 + 5, "rd"))
    if u < 6:
        for s in range(2):
            for cb in range(4):
                ks = 2 * u + 4 + s; f, r = oB(ks, cb)
                Fl.append(F(f"ds_read_b128 a[{r}:{r+3}], v{1 + (ks>>2)} offset:{((ks&3)*4+cb)*1024}", g0 + 6, g0 + 13, "rd"))
    for un in ([4, 5] if u == 0 else [u + 5]):
        if un < 32:
            gg = g0 + (6 if (u == 0 and un == 4) else 12)
            chain_dma(Fl, gg, wo_pre(un, un & 3), unit_dma(None, "s95"), ("W", un), [("R", un - 4)], "dma")
    RES[g0 + 15] = 1
    if kk == 0 and i: part_out(i - 1, g0 + 4, g0 + 31, Fl)
schedule(st, M, Fl, reserve=RES, verbose="O")
Fl = []; part_out(3, 0, 0, Fl)
for f in Fl: st.add(f.ins)
stamp("Oend")

def spin(label, load, cond, nlanes=None):
    A(f"s_mov_b32 s60, {SPIN}")
    st.raw(f"{label}:")
    for t in load: st.add(t)
    A("s_sub_u32 s60, s60, 1\ns_waitcnt vmcnt(0)")
    A(cond)
    A(f"s_cmp_eq_u32 s60, 0\ns_cbranch_scc1 {label}_x\ns_cbranch_vccnz {label}")
    st.raw(f"{label}_x:")
def flag_store(soff):
    A(f"s_mov_b64 exec, 0xff\nbuffer_store_dwordx4 v[240:243], v16, s[48:51], {soff} offen sc1\ns_mov_b64 exec, -1")
srd(36, 16, 512 * 3584)
unit_voffs(3584)
A(f"""
s_min_u32 s62, s59, 6
s_lshl_b32 s62, s62, 9
s_lshl_b32 s60, s35, 7
s_add_u32 s62, s62, s60
s_mul_i32 s94, s35, {RINGSZ}
v_mov_b32 v240, s34
v_mov_b32 v241, s34
v_mov_b32 v242, s34
v_mov_b32 v243, s34
v_subrev_u32 v9, {RING0}, v10
v_lshlrev_b32 v8, 7, v1
""")
def w1_dma(u):
    slot = u & 7
    A(f"s_add_u32 m0, {'s63' if slot < 4 else 's94'}, {(slot&3)*UNIT}\ns_add_u32 s60, s62, {(u&7)*64*3584 + (u>>3)*64}")
    for i, t in enumerate(unit_dma(None, "s60")): st.add(t, tag=("W1", u), need=[("R1", u - 8)] if i == 0 else None)
def w1reg(half, s, tile): return ((half * 16 + s) * 2 + tile) * 4
def w1_read(u):
    slot = u & 7
    for i, t in enumerate(ring_reads(lambda tile, s: ("a", w1reg(u >> 3, (u & 7) * 2 + s, tile)), (slot & 3) * UNIT, None, addr="v10" if slot < 4 else "v9")):
        st.add(t, tag=("R1", u), need=[("W1", u)] if i == 0 else None)
for u in range(4): w1_dma(u)
st.need("part")
A(f"""
s_barrier
s_lshl_b32 s61, s2, 7
s_add_u32 s61, s61, {WS_F1}
s_cmp_lg_u32 s35, 0
s_cbranch_scc1 L_nf1
""")
keep = list(st.vm); flag_store("s61")
A(f"""
v_accvgpr_read_b32 v5, a252
v_mov_b32 v6, 0
v_readfirstlane_b32 s60, v5
s_cmp_lg_u32 s60, 255
s_cbranch_scc1 L_nf1
s_mov_b64 exec, 1
buffer_store_dword v240, v6, s[48:51], 0 offen sc1
s_mov_b64 exec, -1
""")
st.vm = keep
A("L_nf1:")
stamp("f1st")
for u in range(4, 8): w1_dma(u)
A(f"v_lshlrev_b32 v5, 4, v0\ns_mov_b32 s61, {WS_MOD+4096}")
spin("L_pm2", ["buffer_load_dwordx4 v[96:99], v5, s[48:51], s61 offen sc1", "v_add_u32 v6, 4096, v5", "buffer_load_dwordx4 v[100:103], v6, s[48:51], s61 offen sc1"],
     """v_cmp_ne_u32 vcc, s34, v97
        v_cmp_ne_u32 s[100:101], s34, v99
        s_or_b64 vcc, vcc, s[100:101]
        v_cmp_ne_u32 s[100:101], s34, v101
        s_or_b64 vcc, vcc, s[100:101]
        v_cmp_ne_u32 s[100:101], s34, v103
        s_or_b64 vcc, vcc, s[100:101]""")
A(f"""
s_cmp_lt_u32 s35, 2
s_cselect_b32 s60, 1.0, 0
v_lshlrev_b32 v104, 16, v96
v_and_b32 v105, 0xffff0000, v96
v_lshlrev_b32 v106, 16, v98
v_and_b32 v107, 0xffff0000, v98
v_lshlrev_b32 v108, 16, v100
v_and_b32 v109, 0xffff0000, v100
v_lshlrev_b32 v110, 16, v102
v_and_b32 v111, 0xffff0000, v102
v_add_f32 v108, s60, v108
v_add_f32 v109, s60, v109
v_add_f32 v110, s60, v110
v_add_f32 v111, s60, v111
v_add_u32 v5, {MODV}, v5
ds_write_b128 v5, v[104:107]
ds_write_b128 v5, v[108:111] offset:4096
v_and_b32 v6, 1, v1
v_lshlrev_b32 v6, 10, v6
v_lshrrev_b32 v7, 1, v1
v_lshl_add_u32 v6, v7, 4, v6
v_lshlrev_b32 v7, 5, v7
v_add_u32 v7, {MODV}, v7
s_lshl_b32 s93, s58, 16
s_lshl_b32 s60, s59, 13
s_add_u32 s93, s93, s60
s_lshl_b32 s60, s35, 11
s_add_u32 s93, s93, s60
""")
srd(52, 4, 2048 * 1024)
A("buffer_load_dwordx4 v[112:115], v6, s[52:55], s93 offen\nbuffer_load_dwordx4 v[116:119], v6, s[52:55], s93 offen offset:512")
for u in range(4):
    w1_read(u); w1_dma(u + 8)
A(f"""
s_cmp_lg_u32 s35, 0
s_cbranch_scc1 L_np1
s_lshl_b32 s61, s58, 10
s_add_u32 s61, s61, {WS_F1}
s_mov_b64 exec, 0xff
""")
keep = (list(st.vm), list(st.lg))
spin("L_pf1", ["buffer_load_dword v96, v8, s[48:51], s61 offen sc1"], "v_cmp_ne_u32 vcc, s34, v96")
A("s_mov_b64 exec, -1\nL_np1:")
st.vm, st.lg = keep
A("s_waitcnt lgkmcnt(0)\ns_barrier")
stamp("f1ok")
A(f"""
s_lshl_b32 s61, s58, 19
s_lshl_b32 s60, s59, 13
s_add_u32 s61, s61, s60
s_lshl_b32 s60, s35, 11
s_add_u32 s61, s61, s60
s_add_u32 s61, s61, {WS_PART}
""")
for g in range(8):
    A(f"buffer_load_dwordx4 v[{32+8*g}:{35+8*g}], v16, s[48:51], s61 offen sc1\nbuffer_load_dwordx4 v[{36+8*g}:{39+8*g}], v16, s[48:51], s61 offen offset:1024 sc1")
    if g < 7: A("s_add_u32 s61, s61, 0x10000")
for u in range(4, 8):
    w1_read(u); w1_dma(u + 8)
def modrd(dst, vec):
    for h in range(2):
        for q in range(2): A(f"ds_read_b128 v[{dst+8*h+4*q}:{dst+8*h+4*q+3}], v7 offset:{vec*2048 + h*1024 + q*16}")
modrd(120, 0); modrd(136, 2)
A("s_mov_b32 s60, 0x3f80\ns_mov_b32 s61, 0x3f800000\nv_mov_b32 v2, s60\nv_mov_b32 v3, s61")
for r in range(16): A(f"v_mov_b32 v{96+r}, 0")
for g in range(8):
    for r in range(8):
        A(f"v_dot2c_f32_bf16 v{96+2*r}, v{32+8*g+r}, v2\nv_dot2c_f32_bf16 v{97+2*r}, v{32+8*g+r}, v3")
for r in range(8):
    A(f"v_lshlrev_b32 v{32+2*r}, 16, v{112+r}\nv_and_b32 v{33+2*r}, 0xffff0000, v{112+r}")
for r in range(8):
    A(f"v_pk_fma_f32 v[{96+2*r}:{97+2*r}], v[{96+2*r}:{97+2*r}], v[{120+2*r}:{121+2*r}], v[{32+2*r}:{33+2*r}]")
modrd(120, 1)
for r in range(8): A(f"v_cvt_pk_bf16_f32 v{112+r}, v{96+2*r}, v{97+2*r}")
A(f"""s_add_u32 s61, s93, {WS_X1}
buffer_store_dwordx4 v[112:115], v6, s[48:51], s61 offen sc1
buffer_store_dwordx4 v[116:119], v6, s[48:51], s61 offen offset:512 sc1""")
def row_stats(x):
    A(f"v_pk_add_f32 v[32:33], v[{x}:{x+1}], v[{x+2}:{x+3}]\nv_pk_mul_f32 v[34:35], v[{x}:{x+1}], v[{x}:{x+1}]")
    A(f"v_pk_fma_f32 v[34:35], v[{x+2}:{x+3}], v[{x+2}:{x+3}], v[34:35]")
    for r in range(2, 8):
        A(f"v_pk_add_f32 v[32:33], v[32:33], v[{x+2*r}:{x+2*r+1}]\nv_pk_fma_f32 v[34:35], v[{x+2*r}:{x+2*r+1}], v[{x+2*r}:{x+2*r+1}], v[34:35]")
    A("v_add_f32 v32, v32, v33\nv_add_f32 v34, v34, v35")
    for d in ("quad_perm:[2,3,0,1]", "row_ror:4", "row_ror:8"):
        A(f"v_add_f32_dpp v32, v32, v32 {d} row_mask:0xf bank_mask:0xf\nv_add_f32_dpp v34, v34, v34 {d} row_mask:0xf bank_mask:0xf")
    for sw in ("16", "32"):
        A(f"v_mov_b32 v33, v32\nv_mov_b32 v35, v34\nv_permlane{sw}_swap_b32 v32, v33\nv_permlane{sw}_swap_b32 v34, v35\nv_add_f32 v32, v32, v33\nv_add_f32 v34, v34, v35")
    A(f"""v_mul_f32 v33, {f2u(1/512)}, v32
    v_mul_f32 v34, {f2u(1/512)}, v34
    v_fma_f32 v34, -v33, v33, v34
    v_max_f32 v34, 0, v34
    v_add_f32 v34, {f2u(1e-5)}, v34
    v_rsq_f32 v32, v34
    v_mul_f32_e64 v34, -v33, v32""")
row_stats(96)
for r in range(8): A(f"v_pk_fma_f32 v[{96+2*r}:{97+2*r}], v[{96+2*r}:{97+2*r}], v[32:33], v[34:35] op_sel_hi:[1,0,0]")
for r in range(8): A(f"v_pk_fma_f32 v[{96+2*r}:{97+2*r}], v[{96+2*r}:{97+2*r}], v[{136+2*r}:{137+2*r}], v[{120+2*r}:{121+2*r}]")
row_stats(96)
for r in range(8): A(f"v_pk_fma_f32 v[{96+2*r}:{97+2*r}], v[{96+2*r}:{97+2*r}], v[32:33], v[34:35] op_sel_hi:[1,0,0]")
for r in range(8): A(f"v_cvt_pk_bf16_f32 v{40+r}, v{96+2*r}, v{97+2*r}")
A(f"s_add_u32 s61, s93, {WS_Y}")
st.add("buffer_store_dwordx4 v[40:43], v6, s[48:51], s61 offen sc1", tag="y")
st.add("buffer_store_dwordx4 v[44:47], v6, s[48:51], s61 offen offset:512 sc1", tag="y")
stamp("ysent")
for u in range(8, 16): w1_read(u)
srd(52, 18, 3584)
A("v_lshrrev_b32 v2, 4, v1\nv_lshlrev_b32 v2, 4, v2\nbuffer_load_dwordx4 v[48:51], v2, s[52:55], s62 offen\nbuffer_load_dwordx4 v[52:55], v2, s[52:55], s62 offen offset:64")
srd(36, 20, 1792 * 1024)
unit_voffs(1024)
KS2 = [(p, 0) for p in range(7)] + [(p, 1) for p in range(7)]
A(f"""
s_lshl_b32 s62, s35, 16
s_lshl_b32 s60, s59, 7
s_add_u32 s62, s62, s60
s_mul_i32 s94, s35, {UNIT}
s_add_u32 s94, s94, 65536
s_sub_u32 s60, s94, s63
v_add_u32 v9, s60, v10
""")
def w2_ops(u, slot):
    kp, tp = u >> 1, u & 1
    ra = [(256 * p + 32 * h) * 1024 + tp * 64 for p, h in KS2[2 * kp:2 * kp + 2]]
    pre = [f"s_add_u32 m0, s63, {slot*UNIT}" if slot < 4 else "s_mov_b32 m0, s94", f"s_add_u32 s60, s62, {ra[0]}", f"s_add_u32 s61, s62, {ra[1]-2064}"]
    d = [f"buffer_load_dwordx4 v{11+(i&1)}, s[36:39], {'s60' if i < 2 else 's61'} offen offset:{i*1032} lds" for i in range(4)]
    return pre, d
def w2_dma(u, slot, need=None):
    pre, d = w2_ops(u, slot)
    for t in pre: A(t)
    for i, t in enumerate(d): st.add(t, tag=("W2", u), need=need if i == 0 else None)
def w2reg(u, tile, s):
    if u < 4: return ("v", 160 + u * 16 + tile * 8 + s * 4)
    if u < 9: return ("a", (u - 4) * 16 + tile * 8 + s * 4)
    return ("a", stg(u, tile, s))
def w2_reads(u, slot):
    return ring_reads(lambda tile, s: w2reg(u, tile, s), slot * UNIT if slot < 4 else 0, None, addr="v10" if slot < 4 else "v9")
for u in range(4): w2_dma(u, u, need=[("R1", 8 + u)])
st.need("y")
A(f"""
s_waitcnt lgkmcnt(0)
s_barrier
s_cmp_lg_u32 s35, 0
s_cbranch_scc1 L_np2
s_lshl_b32 s61, s58, 3
s_add_u32 s61, s61, s59
s_lshl_b32 s61, s61, 7
s_add_u32 s61, s61, {WS_F2}
""")
keep = (list(st.vm), list(st.lg))
flag_store("s61")
A(f"s_lshl_b32 s61, s58, 10\ns_add_u32 s61, s61, {WS_F2}\ns_mov_b64 exec, 0xff")
spin("L_pf2", ["buffer_load_dword v96, v8, s[48:51], s61 offen sc1"], "v_cmp_ne_u32 vcc, s34, v96")
A("s_mov_b64 exec, -1\nL_np2:")
st.vm, st.lg = keep
for u in range(4):
    for i, t in enumerate(w2_reads(u, u)): st.add(t, tag=("R2", u), need=[("W2", u)] if i == 0 else None)
for r in range(8): A(f"v_lshlrev_b32 v{224+2*r}, 16, v{48+r}\nv_and_b32 v{225+2*r}, 0xffff0000, v{48+r}")
A(f"""
v_lshrrev_b32 v3, 4, v1
v_lshlrev_b32 v3, 1, v3
s_movk_i32 s60, 0x78
v_lshrrev_b32 v3, v3, s60
v_xor_b32 v3, v3, v1
v_and_b32 v3, 3, v3
v_lshlrev_b32 v3, 4, v3
v_lshrrev_b32 v4, 2, v1
v_lshl_add_u32 v3, v4, 10, v3
v_subrev_u32 v15, {HIMG}, v15
s_lshl_b32 s61, s58, 16
s_lshl_b32 s60, s35, 14
s_add_u32 s61, s61, s60
s_add_u32 s61, s61, {WS_Y}
s_mov_b32 s92, s60
s_barrier
""")
stamp("f2ok")
for s in range(16):
    A(f"s_add_u32 m0, s92, {s*1024}")
    st.add("buffer_load_dwordx4 v3, s[48:51], s61 offen sc1 lds", tag="Y")
    A("s_add_u32 s61, s61, 64")
for u in range(4, 9): w2_dma(u, u - 4, need=[("R2", u - 4)])
st.need("Y")
A("s_barrier")
stamp("Yin")

def yb(n, s, cb): return 96 + (n & 1) * 32 + (s * 4 + cb) * 4
def hacc(half, tile, cb): return 32 + half * 32 + (tile * 4 + cb) * 4
def yreads(n):
    sp = n & 7
    return [f"ds_read_b128 v[{yb(n,s,cb)}:{yb(n,s,cb)+3}], v15 offset:{cb*16384 + (2*sp+s)*1024}" for cb in range(4) for s in range(2)]
C1 = -2 * 0.7978845608028654 * 1.4426950408889634; C2 = C1 * 0.044715
def gelu_ops(half, cb):
    o = []; regs = [hacc(half, t, cb) + r for t in range(2) for r in range(4)]
    for k in range(0, 8, 4):
        x = regs[k:k + 4]; t = [248 + i for i in range(4)]
        o += [f"v_mul_f32 v{t[i]}, v{x[i]}, v{x[i]}" for i in range(4)]
        o += [f"v_fma_f32 v{t[i]}, v{t[i]}, s92, v244" for i in range(4)]
        o += [f"v_mul_f32 v{t[i]}, v{x[i]}, v{t[i]}" for i in range(4)]
        o += [f"v_exp_f32 v{t[i]}, v{t[i]}" for i in range(4)]
        o += [f"v_add_f32 v{t[i]}, 1.0, v{t[i]}" for i in range(4)]
        o += [f"v_rcp_f32 v{t[i]}, v{t[i]}" for i in range(4)]
        o += [f"v_mul_f32 v{x[i]}, v{x[i]}, v{t[i]}" for i in range(4)]
    d = hacc(half, 0, cb)
    o += [f"v_cvt_pk_bf16_f32 v{d+e}, v{regs[2*e]}, v{regs[2*e+1]}" for e in range(4)]
    o.append(f"buffer_store_dwordx4 v[{d}:{d+3}], v16, s[48:51], s93 offen offset:{cb*1024} sc1")
    return o
for t in yreads(0): A(t)
A(f"""
s_mov_b32 s92, {f2u(C2)}
v_mov_b32 v244, {f2u(C1)}
s_lshl_b32 s93, s58, 3
s_add_u32 s93, s93, s59
s_lshl_b32 s95, s93, 3
s_add_u32 s95, s95, s35
s_lshl_b32 s93, s95, 12
s_add_u32 s93, s93, {WS_H1}
s_lshl_b32 s95, s95, 7
s_add_u32 s95, s95, {WS_F3}
""")
M = []; Fl = []; RES = {}
for n in range(16):
    half, sp = n >> 3, n & 7; g0 = len(M)
    for tile in range(2):
        for cb in range(4):
            for s in range(2):
                M.append(mf(hacc(half, tile, cb), w1reg(half, 2 * sp + s, tile), yb(n, s, cb), (224 + half * 8 + tile * 4) if (sp == 0 and s == 0) else None, "v", "a", "v"))
    if n < 15:
        for i, t in enumerate(yreads(n + 1)): Fl.append(F(t, g0 + i // 2, g0 + 7, "rd"))
    RES[g0 + 15] = 1
    if half == 1 and sp < 5:
        u = 4 + sp
        for i, t in enumerate(w2_reads(u, sp)): Fl.append(F(t, g0 + 4 + i // 2, g0 + 12, "rd", tag=("R2", u), need=[("W2", u)] if i == 0 else None))
        pre, d = w2_ops(u + 5, sp)
        chain_dma(Fl, g0 + 16 + 8, pre, d, ("W2", u + 5), [("R2", u)], "dma")
ga = [t for cb in range(4) for t in gelu_ops(0, cb)]
NH = 150
for t in ga[:NH]: Fl.append(F(t, 128 + 4, 255, "gelu", tag="h1a" if t.startswith("buffer") else None))
schedule(st, M, Fl, reserve=RES, verbose="G1")
stamp("G1")
for t in ga[NH:]: st.add(t, tag="h1a" if t.startswith("buffer") else None)
gb = [t for cb in range(4) for t in gelu_ops(1, cb)]
A("s_add_u32 s93, s93, 16384")
for t in gb:
    st.add(t, tag="h1b" if t.startswith("buffer") else None)
    if t.startswith("buffer") and "offset:1024" in t:
        st.need("h1a"); flag_store("s95")
stamp("gelu")
A(f"""
s_lshl_b32 s61, s58, 6
s_add_u32 s61, s61, s35
s_lshl_b32 s61, s61, 7
s_add_u32 s61, s61, {WS_F3}
v_lshlrev_b32 v8, 10, v1
""")
st.need("h1b")
A("s_add_u32 s95, s95, 512"); flag_store("s95")
A("s_mov_b64 exec, 0x7f")
spin("L_pf3a", ["buffer_load_dword v245, v8, s[48:51], s61 offen sc1"], "v_cmp_ne_u32 vcc, s34, v245")
A(f"""s_mov_b64 exec, -1
s_lshl_b32 s93, s58, 18
s_lshl_b32 s60, s35, 12
s_add_u32 s93, s93, s60
s_add_u32 s93, s93, {WS_H1}
""")
def hB(ks, cb):
    if ks < 7: return ("a", 80 + (ks * 4 + cb) * 4)
    r = ((ks - 7) * 4 + cb) * 4
    return ("v", 32 + r) if r < 64 else ("v", 160 + r - 64)
def h_loads(ks):
    p, h = KS2[ks]
    o = [f"s_add_u32 s60, s93, {p*32768 + h*16384}"]
    for cb in range(4):
        f, r = hB(ks, cb); o.append(f"buffer_load_dwordx4 {f}[{r}:{r+3}], v16, s[48:51], s60 offen offset:{cb*1024} sc1")
    return o
for ks in range(7):
    for t in h_loads(ks): A(t)
stamp("hA")

def facc(tp, tile, cb): return 96 + (tp * 8 + tile * 4 + cb) * 4
def g2_unit(u):
    kp, tp = u >> 1, u & 1; r = []
    for tile in range(2):
        for cb in range(4):
            for s in range(2):
                fa, ra = w2reg(u, tile, s); fb, rb = hB(2 * kp + s, cb)
                r.append(mf(facc(tp, tile, cb), ra, rb, "0" if (kp == 0 and s == 0) else None, "v", fa, fb))
    return r
M = []
for u in range(6): M += g2_unit(u)
schedule(st, M[:64], [])
keep = (list(st.vm), list(st.lg))
A("s_add_u32 s61, s61, 512\ns_mov_b64 exec, 0x7f")
spin("L_pf3b", ["buffer_load_dword v245, v8, s[48:51], s61 offen sc1"], "v_cmp_ne_u32 vcc, s34, v245")
A("s_mov_b64 exec, -1\ns_nop 4")
for ks in range(7, 14):
    for t in h_loads(ks): A(t)
A(f"""
v_and_b32 v2, 15, v1
v_lshlrev_b32 v2, 10, v2
v_lshrrev_b32 v3, 4, v1
v_lshl_add_u32 v2, v3, 4, v2
v_lshlrev_b32 v4, 4, v3
s_lshl_b32 s92, s58, 16
s_lshl_b32 s60, s35, 14
s_add_u32 s92, s92, s60
s_lshl_b32 s95, s59, 7
s_add_u32 s92, s92, s95
s_add_u32 s60, s92, {WS_X1}
buffer_load_dwordx4 v[224:227], v2, s[48:51], s60 offen sc1
buffer_load_dwordx4 v[228:231], v2, s[48:51], s60 offen offset:64 sc1
""")
srd(52, 22, 1024)
A("buffer_load_dwordx4 v[232:235], v4, s[52:55], s95 offen\nbuffer_load_dwordx4 v[236:239], v4, s[52:55], s95 offen offset:64")
M = M[64:]; Fl = []; RES = {}
for u in range(6, 14): M += g2_unit(u)
for u in range(9, 14):
    g0 = (u - 1 - 4) * 16
    for i, t in enumerate(w2_reads(u, u - 9)): Fl.append(F(t, g0 + i // 2, g0 + 7, "rd", need=[("W2", u)] if i == 0 else None))
schedule(st, M, Fl, verbose="G2")
stamp("G2")
A(f"""
s_barrier
s_lshl_b32 s60, s35, 12
v_add_u32 v5, s60, v16
s_lshl_b32 s60, s35, 14
v_add_u32 v6, s60, v16
v_lshlrev_b32 v7, 5, v3
s_lshl_b32 s60, s59, 8
s_add_u32 s60, s60, {MODV + 3*2048}
v_add_u32 v7, s60, v7
""")
for cb in range(4):
    for tp in range(2):
        for tile in range(2):
            A(f"ds_write_b128 v5, v[{facc(tp,tile,cb)}:{facc(tp,tile,cb)+3}] offset:{cb*16384 + (tp*2+tile)*1024}")
for tp in range(2):
    for q in range(2): A(f"ds_read_b128 v[{208+tp*8+4*q}:{211+tp*8+4*q}], v7 offset:{tp*128+q*16}")
for r in range(8):
    A(f"v_lshlrev_b32 v{32+2*r}, 16, v{224+r}\nv_and_b32 v{33+2*r}, 0xffff0000, v{224+r}\nv_lshlrev_b32 v{48+2*r}, 16, v{232+r}\nv_and_b32 v{49+2*r}, 0xffff0000, v{232+r}")
A("s_waitcnt lgkmcnt(0)\ns_barrier")
for src in range(4):
    for n in range(4): A(f"ds_read_b128 v[{96+src*16+n*4}:{99+src*16+n*4}], v6 offset:{src*4096+n*1024}")
for src in range(4):
    for r in range(8): A(f"v_pk_add_f32 v[{48+2*r}:{49+2*r}], v[{48+2*r}:{49+2*r}], v[{96+src*16+2*r}:{97+src*16+2*r}]")
for r in range(8): A(f"v_pk_fma_f32 v[{32+2*r}:{33+2*r}], v[{48+2*r}:{49+2*r}], v[{208+2*r}:{209+2*r}], v[{32+2*r}:{33+2*r}]")
for r in range(8): A(f"v_cvt_pk_bf16_f32 v{64+r}, v{32+2*r}, v{33+2*r}")
srd(52, 28, 2048 * 1024)
A("buffer_store_dwordx4 v[64:67], v2, s[52:55], s92 offen\nbuffer_store_dwordx4 v[68:71], v2, s[52:55], s92 offen offset:64")
if OPT["stamps"]:
    stamp("end")
    A("s_memrealtime s[96:97]\ns_waitcnt lgkmcnt(0)\ns_cmp_lg_u32 s35, 0\ns_cbranch_scc1 L_end\ns_mov_b64 exec, 1")
    A(f"s_lshl_b32 s60, s2, 9\ns_add_u32 s60, s60, {WS_STAMP}\nv_mov_b32 v6, 0")
    A(f"s_mov_b32 s{64+stamp_n[0]-1}, s90")
    lst = [64 + n for n in range(stamp_n[0])] + [98, 96]
    A("v_mov_b32 v3, 0")
    for n, s in enumerate(lst):
        A(f"v_mov_b32 v2, s{s}\nbuffer_store_dwordx2 v[2:3], v6, s[48:51], s60 offen offset:{n*8}\ns_nop 1")
    if OPT.get("dbg", -1) >= 0:
        srd(52, 30, 256)
        A(f"s_cmp_lg_u32 s2, {OPT['dbg']}\ns_cbranch_scc1 L_end")
        sel = [1, 2, 3, 4, 5, 7, 8, 9, 10, 11, 12, 13, 15, 17]
        for n, k in enumerate(sel):
            A(f"s_sub_u32 s60, s{64+k}, s64\nv_mov_b32 v2, s60\nbuffer_store_dword v2, v6, s[52:55], 0 offen offset:{4+n*4}\ns_nop 1")
        A(f"s_sub_u32 s60, s96, s98\nv_mov_b32 v2, s60\nbuffer_store_dword v2, v6, s[52:55], 0 offen offset:60")
        print("dbg order:", [stamp_names[k] for k in sel], "realtime")
    open(os.path.splitext(sys.argv[1])[0] + ".names", "w").write(" ".join(stamp_names))
    print("stamps:", len(lst))
st.raw(f"""L_end:
    s_endpgm
L_codeend:
.section .rodata,"a"
.p2align 6
.amdhsa_kernel {NAME}_kernel
  .amdhsa_next_free_vgpr 512
  .amdhsa_next_free_sgpr 102
  .amdhsa_accum_offset 256
  .amdhsa_group_segment_fixed_size 0
  .amdhsa_kernarg_size 120
  .amdhsa_user_sgpr_count 2
  .amdhsa_user_sgpr_kernarg_segment_ptr 1
  .amdhsa_system_sgpr_workgroup_id_x 1
.end_amdhsa_kernel""")
open(sys.argv[1], "w").write(st.text())
print("waits", st.nwait, "nop states", st.nnop)
```

```python
import re
REG = re.compile(r'(?<![\w.])([vas])(?:\[(\d+):(\d+)\]|(\d+))(?![\w\[])')
def regs_of(txt):
    out = []
    for m in REG.finditer(txt):
        k = m.group(1)
        if m.group(2) is not None:
            out += [(k, i) for i in range(int(m.group(2)), int(m.group(3)) + 1)]
        else:
            out.append((k, int(m.group(4))))
    for nm in ("vcc", "exec", "m0"):
        if re.search(r'(?<![\w.])' + nm + r'(_lo|_hi)?(?![\w])', txt): out.append((nm, 0))
    return out
TRANS = ("v_exp_f32", "v_log_f32", "v_rcp_f32", "v_rsq_f32", "v_sqrt_f32")
class I:
    __slots__ = ("txt", "op", "rd", "wr", "kind", "tag", "need", "cost", "mc", "ma")
    def __init__(s, txt, tag=None, need=None):
        s.txt = txt.strip(); s.tag = tag; s.need = need or []
        body = s.txt.split(";")[0].strip()
        parts = body.split(None, 1); s.op = op = parts[0]
        ops = [x.strip() for x in parts[1].split(",")] if len(parts) > 1 else []
        rest = parts[1] if len(parts) > 1 else ""
        rest = re.sub(r'\b(quad_perm|op_sel|op_sel_hi|neg_lo|neg_hi):\[[^\]]*\]', '', rest)
        ops = [x.strip() for x in rest.split(",")] if rest else []
        s.rd = []; s.wr = []; s.mc = []; s.ma = []
        allr = lambda l: [r for o in l for r in regs_of(o)]
        s.cost = 1
        if op.startswith("v_mfma"):
            s.kind = "mfma"; s.wr = allr(ops[:1]); s.ma = allr(ops[1:3]); s.mc = allr(ops[3:4]); s.rd = s.ma + s.mc
        elif op.startswith("buffer_load") or op.startswith("global_load"):
            if re.search(r'\blds\b', rest) or "_lds_" in op:
                s.kind = "dma"; s.rd = allr(ops) + [("m0", 0)]
            else:
                s.kind = "vload"; s.wr = allr(ops[:1]); s.rd = allr(ops[1:])
        elif op.startswith("buffer_store") or op.startswith("global_store"):
            s.kind = "vstore"; s.rd = allr(ops)
        elif op.startswith("buffer_atomic"):
            s.kind = "vload" if "sc0" in rest else "vstore"; s.rd = allr(ops)
            if "sc0" in rest: s.wr = allr(ops[:1])
        elif op.startswith("ds_read") or op.startswith("ds_bpermute") or op.startswith("ds_swizzle"):
            s.kind = "dsr"; s.wr = allr(ops[:1]); s.rd = allr(ops[1:])
        elif op.startswith("ds_write"):
            s.kind = "dsw"; s.rd = allr(ops)
        elif op.startswith("s_load") or op in ("s_memtime", "s_memrealtime"):
            s.kind = "smem"; s.wr = allr(ops[:1]); s.rd = allr(ops[1:])
        elif op in ("s_waitcnt", "s_nop", "s_barrier", "s_sleep", "s_setprio", "s_endpgm", "s_branch") or op.startswith("s_cbranch") or op.endswith(":"):
            s.kind = "ctl"
        elif op.startswith("s_cmp") or op.startswith("s_bitcmp"):
            s.kind = "salu"; s.rd = allr(ops)
        elif op.startswith("s_"):
            s.kind = "salu"; s.wr = allr(ops[:1]); s.rd = allr(ops[1:])
            if "saveexec" in op: s.wr.append(("exec", 0)); s.rd.append(("exec", 0))
        elif op.startswith("v_"):
            s.kind = "valu"
            base = op.replace("_e32", "").replace("_e64", "")
            if base in TRANS: s.kind = "trans"; s.cost = 2
            if "permlane" in op and "swap" in op:
                s.wr = allr(ops[:2]); s.rd = allr(ops[:2])
            elif op.startswith("v_add_co") or op.startswith("v_sub_co") or op.startswith("v_addc_co"):
                s.wr = allr(ops[:2]); s.rd = allr(ops[2:])
            else:
                s.wr = allr(ops[:1]); s.rd = allr(ops[1:])
                if base.startswith("v_fmac") or base.startswith("v_dot2c") or "_dpp" in op or base.startswith("v_writelane"): s.rd += s.wr
        else:
            raise ValueError("unknown op " + txt)
    def is_valu(s): return s.kind in ("valu", "trans")
    def is_mem(s): return s.kind in ("dma", "vload", "vstore", "dsr", "dsw")

class Stream:
    def __init__(s, merge_dist=110):
        s.out = []; s.merge = merge_dist
        s.reset()
        s.nwait = 0; s.nnop = 0; s.slots = 0
    def reset(s):
        s.vm = []
        s.lg = []
        s.smem = False; s.smem_wr = set()
        s.hist = []
        s.n = 0; s.t = 0; s.tm = -100
    def raw(s, txt):
        s.out.append(txt)
    def _emit(s, ins, states=1):
        s.out.append("    " + ins.txt); s.hist.append((ins, states)); s.n += states
        if ins.kind == "mfma":
            s.t = max(s.t, s.tm + (16 if "16x16" in ins.op else 32)); s.tm = s.t; s.t += 8
        else: s.t += 4 * states * ins.cost
        if len(s.hist) > 40: s.hist.pop(0)
    def _wait(s, vm=None, lg=None):
        t = "s_waitcnt"
        if vm is not None:
            vm = min(vm, 63); t += f" vmcnt({vm})"; del s.vm[:max(0, len(s.vm) - vm)]
        if lg is not None:
            lg = min(lg, 15); t += f" lgkmcnt({lg})"; del s.lg[:max(0, len(s.lg) - lg)]
            if lg == 0: s.smem = False; s.smem_wr = set()
        s._emit(I(t)); s.nwait += 1
    def _need_idx(s, q, regs, tags):
        last = -1
        for i, e in enumerate(q):
            if (e["wr"] & regs) or (e["tag"] is not None and e["tag"] in tags): last = i
        return last
    def add(s, ins, tag=None, need=None):
        if isinstance(ins, str): ins = I(ins, tag, need)
        if ins.op == "s_waitcnt":
            m = re.search(r'vmcnt\((\d+)\)', ins.txt); l = re.search(r'lgkmcnt\((\d+)\)', ins.txt)
            s._wait(int(m.group(1)) if m else None, int(l.group(1)) if l else None); return
        touched = set(ins.rd) | set(ins.wr); tags = set(ins.need)
        vi = s._need_idx(s.vm, touched, tags); li = s._need_idx(s.lg, touched, tags)
        vmN = lgN = None
        if vi >= 0: vmN = len(s.vm) - 1 - vi
        if li >= 0:
            j = li
            while j + 1 < len(s.lg) and s.t - s.lg[j + 1]["t"] >= s.merge: j += 1
            lgN = len(s.lg) - 1 - j
            if s.smem: lgN = 0
        if s.smem and (touched & s.smem_wr): lgN = 0
        if vmN is not None or lgN is not None: s._wait(vmN, lgN)
        need = 0; dist = 0
        rd = set(ins.rd); wr = set(ins.wr)
        for p, st in reversed(s.hist):
            req = 0
            pw = set(p.wr)
            if p.kind == "mfma":
                n = 8 if "16x16" in p.op else 12
                if ins.kind == "mfma":
                    if pw & set(ins.ma): req = n
                    elif pw & set(ins.mc) and (set(ins.mc) != pw or p.op != ins.op): req = n - 2
                    elif pw & wr and not (pw & set(ins.mc)) : req = max(req, 0)
                elif ins.is_valu() or ins.is_mem():
                    if pw & (rd | wr): req = n
                if ins.is_valu() and set(p.mc) & wr: req = max(req, 3 if "16x16" in p.op else 7)
            elif p.is_valu():
                vw = {r for r in pw if r[0] in "va"}; sw = {r for r in pw if r[0] in ("s", "vcc")}
                if ins.kind == "mfma" and vw & rd: req = 2
                if p.op.startswith("v_dot2") and vw & (rd | wr) and not (ins.op == p.op and not (vw & set(regs_of(",".join(ins.txt.split(",")[1:]))))): req = max(req, 3)
                if ins.is_valu():
                    if p.kind == "trans" and vw & rd and ins.kind != "trans": req = max(req, 1)
                    if ("_dpp" in ins.op or "permlane" in ins.op) and vw & rd: req = max(req, 2)
                    if ("readfirstlane" in ins.op or "readlane" in ins.op) and vw & rd: req = max(req, 1)
                    if sw & rd: req = max(req, 2)
                    if "sdwa" in p.op and vw & (rd | wr): req = max(req, 1)
                if ins.is_mem() and sw & rd: req = max(req, 5)
                if ins.kind == "salu" and sw & rd: req = max(req, 1)
                if ("exec", 0) in pw: req = max(req, 5)
            elif p.kind == "salu":
                if ("m0", 0) in pw and ins.kind == "dma": req = 1
            elif p.kind == "vstore":
                data = set(p.rd[:4]) if ("x4" in p.op or "x3" in p.op) else set()
                if ins.is_valu() and data & wr: req = 2
                elif data & wr: req = 1
            need = max(need, req - dist)
            dist += st
            if dist >= 14: break
        while need > 0:
            k = min(need, 16); s._emit(I(f"s_nop {k-1}"), k); s.nnop += k; need -= k
        s._emit(ins)
        if ins.kind in ("dma", "vload", "vstore"):
            s.vm.append(dict(tag=ins.tag, wr=set(ins.wr), idx=s.n))
            if len(s.vm) > 63: raise RuntimeError("vmcnt overflow at " + ins.txt)
        elif ins.kind in ("dsr", "dsw"):
            s.lg.append(dict(tag=ins.tag, wr=set(ins.wr), idx=s.n, t=s.t))
        elif ins.kind == "smem":
            s.smem = True; s.smem_wr |= set(ins.wr)
    def A(s, text):
        for l in text.split("\n"):
            l = l.strip()
            if not l or l.startswith(";"): continue
            if l.endswith(":"): s.raw(l); continue
            s.add(l)
    def need(s, *tags):
        tags = set(tags)
        vi = s._need_idx(s.vm, set(), tags); li = s._need_idx(s.lg, set(), tags)
        vmN = len(s.vm) - 1 - vi if vi >= 0 else None
        lgN = len(s.lg) - 1 - li if li >= 0 else None
        if lgN is not None and s.smem: lgN = 0
        if vmN is not None or lgN is not None: s._wait(vmN, lgN)
    def sync(s, vm=True):
        if vm: s._wait(0, 0)
        else: s._wait(None, 0)
        s._emit(I("s_nop 7"), 8)
        s._emit(I("s_nop 3"), 4)
    def text(s): return "\n".join(s.out) + "\n"

class F:
    __slots__ = ("ins", "e", "l", "chain", "order")
    cnt = 0
    def __init__(s, txt, e, l, chain=None, tag=None, need=None):
        if isinstance(txt, tuple): s.ins = txt
        else: s.ins = I(txt, tag, need)
        s.e = e; s.l = l; s.chain = chain; F.cnt += 1; s.order = F.cnt
    def cost(s): return 1 if isinstance(s.ins, tuple) else s.ins.cost
    def mem(s): return not isinstance(s.ins, tuple) and s.ins.is_mem()

def schedule(st, mfmas, fillers, cap=2, reserve=None, verbose=None, slack=6, mem2=False, minback=0):
    pend = sorted(fillers, key=lambda f: f.order)
    over = 0
    def emit(f):
        if isinstance(f.ins, tuple):
            if f.ins[0] == "need": st.need(*f.ins[1])
            elif f.ins[0] == "barrier": st.need(*f.ins[1]); st.add("s_barrier")
            elif f.ins[0] == "call": f.ins[1]()
        else: st.add(f.ins)
    for g in range(-1, len(mfmas)):
        if g >= 0:
            w0 = st.nwait + st.nnop
            st.add(mfmas[g])
        budget = cap if g >= 0 else 0
        if reserve and g in reserve: budget -= reserve[g]
        chosen = []
        blocked = set()
        while True:
            cand = []; seen = set()
            for f in pend:
                if f in chosen: continue
                if f.chain is not None:
                    if f.chain in seen: continue
                    seen.add(f.chain)
                if f.e <= g: cand.append(f)
            due = {}
            for f in pend:
                if f in chosen: continue
                if f.chain is not None: due[f.chain] = min(due.get(f.chain, 1 << 30), f.l)
            def dl(f): return due[f.chain] if f.chain is not None else f.l
            cand.sort(key=lambda f: (dl(f), f.order))
            pick = None
            have_mem = any(c.mem() for c in chosen)
            for f in cand:
                if dl(f) <= g: pick = f; break
            if pick is None and budget > 0:
                fit = [f for f in cand if f.cost() <= budget and not (f.mem() and have_mem)]
                mem = [f for f in fit if f.mem()]
                if mem and not chosen: pick = mem[0]
                elif fit:
                    nm = [f for f in fit if not f.mem()]
                    big = [f for f in nm if f.cost() == 2]
                    if big and not (nm[0].cost() == 1 and dl(nm[0]) <= g + slack): pick = big[0]
                    elif nm: pick = nm[0]
                if pick is None and mem2:
                    m2 = [f for f in cand if f.mem() and f.chain in mem2]
                    backlog = sum(1 for f in pend if f.e <= g and f.cost() == 2 and f not in chosen)
                    if m2 and backlog >= minback: pick = m2[0]
            if pick is None: break
            chosen.append(pick); budget -= pick.cost()
        if budget < 0: over += -budget
        res = []
        rem = list(chosen)
        while rem:
            k = None
            for i, f in enumerate(rem):
                if f.mem() and not any(o.chain == f.chain and f.chain is not None for o in rem[:i]): k = i; break
            if k is None: k = 0
            res.append(rem.pop(k))
        for f in res:
            emit(f); pend.remove(f)
    assert not pend, [(f.ins.txt if not isinstance(f.ins, tuple) else f.ins, f.e, f.l) for f in pend[:5]]
    if verbose: print(f"[sched {verbose}] mfma {len(mfmas)} fillers {len(fillers)} over-budget slots {over}")
```

```python
import sys, os, struct
sys.path.insert(0, os.path.join(os.path.dirname(os.path.abspath(__file__)), "tools"))
from asmgen import *
NAME = "adaLN_cond__sliding_block_cached__mixer_channel_mlp__prompt"
OPT = dict(stamps=0, gx=2, nt_wq=0, nt_wo=0, nt_kv=0, nt_mod=1, nt_x=0, pf_w1=1, pf_w2=1, early=1, dbg=-1)
for a in sys.argv[2:]:
    k, v = a.split("="); OPT[k] = int(v)
def nt(k): return " nt" if OPT["nt_" + k] else ""

KA, KB, VA, VB, XR = 0, 16512, 32896, 49408, 65920
HIMG = KB
RING0, RINGSZ, UNIT = 82304, 16512, 4128
MISC = 148352
MODV = MISC
SILU = MISC + 8192
RED = MISC + 9216
LDS_BYTES = 163840
WS_MOD, WS_F2, WS_F3, WS_F1 = 0x1000, 0x20000, 0x40000, 0x100000
WS_Y, WS_X1, WS_H1, WS_PART = 0x200000, 0x400000, 0x600000, 0x1000000
WS_STAMP = 0xF000000
OOB = 0x10000000
SCALE = 1.4426950408889634 / (128 ** 0.5)
def f2u(x): return struct.unpack("<I", struct.pack("<f", x))[0]
SPIN = 1 << 18

st = Stream()
A = st.A
stamp_n = [0]; stamp_names = []
def stamp(name=""):
    if not OPT["stamps"]: return
    if OPT["stamps"] == 2 and name in ("x", "mod", "f1st", "f1ok", "ysent", "f2ok", "Yin", "gelu", "G2a", "G2"): return
    n = stamp_n[0]; stamp_n[0] += 1; stamp_names.append(name)
    assert n < 26
    if n: st.add(f"s_mov_b32 s{64+n-1}, s90")
    st.add("s_memtime s[90:91]")
def stampF(name, g):
    return [F(("call", lambda: stamp(name)), g, g)] if OPT["stamps"] > 1 else []
def dummyI(t):
    i = I(t); i.wr = []; return i
def dummy(t): st.add(dummyI(t))
def dummyF(t, e, l, chain):
    f = F(t, e, l, chain); f.ins.wr = []; return f
def srd(base, ptr, size):
    A(f"s_mov_b32 s{base}, s{ptr}\ns_mov_b32 s{base+1}, s{ptr+1}\ns_mov_b32 s{base+2}, {size}\ns_mov_b32 s{base+3}, 0x20000")
def mf(d, a, b, c=None, dt="v", at="a", bt="a"):
    cs = f"{dt}[{d}:{d+3}]" if c is None else (c if isinstance(c, str) else f"{dt}[{c}:{c+3}]")
    return f"v_mfma_f32_16x16x32_bf16 {dt}[{d}:{d+3}], {at}[{a}:{a+3}], {bt}[{b}:{b+3}], {cs}"
STG = 192
def stg(u, tile, s): return STG + (u & 1) * 16 + tile * 8 + s * 4
def p16_reads(dst, off, addr="v10"):
    r = []
    for tile in range(2):
        for s in range(2):
            f, d = dst(tile, s)
            for hf in range(2): r.append(f"ds_read_b64_tr_b16 {f}[{d+2*hf}:{d+2*hf+1}], {addr} offset:{off + s*2064 + hf*256 + tile*8}")
    return r
def p8_reads(dst, off, addr="v9"):
    r = []
    for tp in range(2):
        for tile in range(2):
            f, d = dst(tp, tile)
            for hf in range(2): r.append(f"ds_read_b64_tr_b16 {f}[{d+2*hf}:{d+2*hf+1}], {addr} offset:{off + tp*512 + hf*256 + tile*8}")
    return r
def voffs16(stride):
    A(f"""
    v_lshrrev_b32 v2, 5, v1
    v_lshlrev_b32 v2, 4, v2
    v_bfe_u32 v3, v1, 2, 3
    v_add_u32 v2, v2, v3
    v_mul_u32_u24 v2, {stride}, v2
    v_and_b32 v3, 3, v1
    v_lshl_add_u32 v11, v3, 4, v2
    v_add_u32 v12, {8*stride-1032}, v11
    v_add_u32 v13, {32*stride-2064}, v11
    v_add_u32 v14, {40*stride-3096}, v11
    """)
def voffs8(stride):
    A(f"""
    v_bfe_u32 v2, v1, 2, 3
    v_mul_u32_u24 v2, {stride}, v2
    v_lshrrev_b32 v3, 5, v1
    v_lshl_add_u32 v2, v3, 6, v2
    v_and_b32 v3, 3, v1
    v_lshl_add_u32 v11, v3, 4, v2
    v_add_u32 v12, {8*stride-1032}, v11
    v_add_u32 v13, {16*stride-2064}, v11
    v_add_u32 v14, {24*stride-3096}, v11
    """)
def dma4(soff, fl=""): return [f"buffer_load_dwordx4 v{11+i}, s[36:39], {soff} offen offset:{i*1032}{fl} lds" for i in range(4)]
def chain_dma(Fl, g0, pre, dmas, tag, need, chain, late=3):
    if OPT.get("nodma") and tag[0] == "W": dmas = []
    for t in pre: Fl.append(F(t, g0 - 5, g0 + late, chain))
    for i, t in enumerate(dmas): Fl.append(F(t, g0 + i // 2, g0 + late + i, chain, tag=tag, need=need if i == 0 else None))
def spin(label, load, cond):
    A(f"s_mov_b32 s3, {SPIN}")
    st.raw(f"{label}:")
    for t in load: st.add(t)
    A("s_sub_u32 s3, s3, 1\ns_waitcnt vmcnt(0)")
    A(cond)
    A(f"s_cmp_eq_u32 s3, 0\ns_cbranch_scc1 {label}_x\ns_cbranch_vccnz {label}")
    st.raw(f"{label}_x:")

st.raw(f"""; adaLN + GQA window attention + channel MLP, one persistent launch, 256 workgroups (one per CU)
; @launch grid=(256,1,1) block=(256,1,1) lds={LDS_BYTES}
.amdgcn_target "amdgcn-amd-amdhsa--gfx950"
.text
.globl {NAME}_kernel
.p2align 8
.type {NAME}_kernel,@function
{NAME}_kernel:
L_start:""")
A("""
s_cmp_ge_u32 s2, 256
s_cbranch_scc1 L_end
s_load_dwordx16 s[4:19], s[0:1], 0
s_load_dwordx8 s[20:27], s[0:1], 64
s_load_dwordx4 s[28:31], s[0:1], 96
s_load_dwordx2 s[32:33], s[0:1], 112
""")
if OPT["stamps"]: A("s_memrealtime s[98:99]")
stamp("start")
GX = OPT["gx"]; lg = {1: 0, 2: 1, 4: 2}[GX]
A(f"""
v_and_b32 v1, 63, v0
v_lshrrev_b32 v2, 6, v0
s_and_b32 s96, s2, 7
s_lshr_b32 s97, s2, 3
v_readfirstlane_b32 s35, v2
s_and_b32 s56, s96, {8//GX - 1}
s_lshl_b32 s56, s56, {lg}
s_and_b32 s60, s97, {GX - 1}
s_add_u32 s56, s56, s60
s_lshr_b32 s57, s96, {3 - lg}
s_lshl_b32 s57, s57, {5 - lg}
s_lshr_b32 s61, s97, {lg}
s_add_u32 s57, s57, s61
s_lshl_b32 s60, s60, {3 - lg}
s_add_u32 s95, s57, s60
s_and_b32 s95, s95, {OPT.get("rotmask", 7)}
s_lshl_b32 s58, s96, 2
s_lshr_b32 s59, s97, 3
s_add_u32 s58, s58, s59
s_and_b32 s59, s97, 7
s_mul_i32 s63, s35, {RINGSZ}
s_add_u32 s63, s63, {RING0}
v_lshlrev_b32 v16, 4, v1
v_lshrrev_b32 v2, 4, v1
v_and_b32 v5, 15, v1
v_mul_u32_u24 v3, 1032, v2
v_lshl_add_u32 v9, v5, 4, v3
v_add_u32 v9, s63, v9
v_and_b32 v3, 1, v2
v_mul_u32_u24 v3, 1032, v3
v_lshl_add_u32 v3, v5, 4, v3
v_lshrrev_b32 v4, 1, v2
v_lshl_add_u32 v10, v4, 9, v3
v_add_u32 v10, s63, v10
v_mul_u32_u24 v4, 2064, v4
v_add_u32 v21, v3, v4
v_add_u32 v21, {VA}, v21
v_lshrrev_b32 v2, 2, v1
v_lshlrev_b32 v2, 10, v2
v_and_b32 v3, 3, v1
v_lshl_add_u32 v8, v3, 4, v2
s_waitcnt lgkmcnt(0)
s_load_dword s34, s[32:33], 0
""")
srd(48, 32, 0x10000000)
def prod_loads():
    srd(52, 24, 1024); srd(36, 26, 512 * 6144)
    A("v_lshlrev_b32 v2, 2, v0\nbuffer_load_dword v31, v2, s[52:55], 0 offen")
    voffs16(6144)
    A(f"""
    s_lshl_b32 s60, s96, 5
    s_add_u32 s60, s60, s97
    s_lshl_b32 s60, s60, 6
    s_mul_i32 s61, s35, {128*6144}
    s_add_u32 s60, s60, s61
    s_add_u32 m0, s63, {2*UNIT}
    """)
    for t in dma4("s60", nt("mod")): A(t)
    A(f"s_add_u32 s60, s60, {64*6144}\ns_add_u32 m0, s63, {3*UNIT}")
    for t in dma4("s60", nt("mod")): A(t)
def prod_compute(lab, younger):
    keep = list(st.vm)
    A(f"s_waitcnt vmcnt({younger + 8})"); st.vm = list(keep)
    A(f"""
    v_lshlrev_b32 v2, 16, v31
    v_and_b32 v3, 0xffff0000, v31
    v_mul_f32 v6, {f2u(-1.4426950408889634)}, v2
    v_mul_f32 v7, {f2u(-1.4426950408889634)}, v3
    v_exp_f32 v6, v6
    v_exp_f32 v7, v7
    v_add_f32 v6, 1.0, v6
    v_add_f32 v7, 1.0, v7
    v_rcp_f32 v6, v6
    v_rcp_f32 v7, v7
    v_mul_f32 v2, v2, v6
    v_mul_f32 v3, v3, v7
    v_cvt_pk_bf16_f32 v2, v2, v3
    v_lshlrev_b32 v3, 2, v0
    v_add_u32 v3, {SILU}, v3
    ds_write_b32 v3, v2
    v_lshrrev_b32 v2, 4, v1
    v_lshlrev_b32 v2, 4, v2
    s_lshl_b32 s60, s35, 8
    s_add_u32 s60, s60, {SILU}
    v_add_u32 v2, s60, v2
    s_waitcnt lgkmcnt(0)
    s_barrier
    """)
    for s in range(4): A(f"ds_read_b128 a[{4*s}:{4*s+3}], v2 offset:{s*64}")
    A(f"s_waitcnt vmcnt({younger})"); st.vm = list(keep)
    for u in range(2):
        for t in p16_reads(lambda tile, s: ("a", 16 + u * 16 + tile * 8 + s * 4), (2 + u) * UNIT): A(t)
    for s in range(4):
        for tile in range(2): A(mf(96 + 4 * tile, 16 + (s >> 1) * 16 + tile * 8 + (s & 1) * 4, 4 * s, "0" if s == 0 else None))
    A(f"""
    v_lshrrev_b32 v2, 4, v1
    v_lshlrev_b32 v2, 5, v2
    s_lshl_b32 s60, s35, 7
    s_add_u32 s60, s60, {RED}
    v_add_u32 v2, s60, v2
    s_mov_b32 s60, 0x00010001
    s_mov_b32 s61, 0x00010001
    s_mov_b64 exec, s[60:61]
    ds_write_b128 v2, v[96:99]
    ds_write_b128 v2, v[100:103] offset:16
    s_mov_b64 exec, -1
    s_waitcnt lgkmcnt(0)
    s_barrier
    s_cmp_lg_u32 s35, 0
    s_cbranch_scc1 {lab}
    v_lshlrev_b32 v2, 3, v1
    v_add_u32 v3, {RED}, v2
    s_mov_b64 exec, 0xffff
    ds_read_b64 v[96:97], v3
    ds_read_b64 v[98:99], v3 offset:128
    ds_read_b64 v[100:101], v3 offset:256
    ds_read_b64 v[102:103], v3 offset:384
    s_lshl_b32 s60, s96, 5
    s_add_u32 s60, s60, s97
    s_lshl_b32 s60, s60, 7
    s_add_u32 s60, s60, {WS_MOD}
    v_pk_add_f32 v[96:97], v[96:97], v[98:99]
    v_pk_add_f32 v[100:101], v[100:101], v[102:103]
    v_pk_add_f32 v[96:97], v[96:97], v[100:101]
    v_cvt_pk_bf16_f32 v96, v96, v97
    v_mov_b32 v97, s34
    buffer_store_dwordx2 v[96:97], v2, s[48:51], s60 offen sc1
    s_mov_b64 exec, -1
    """)
    st.vm = list(keep)
A("s_cmp_lg_u32 s96, 0\ns_cbranch_scc1 L_np1")
prod_loads()
A("L_np1:"); st.vm = []; st.hist = []
srd(52, 4, 2048 * 1024)
A(f"""
s_lshl_b32 s62, s57, 16
s_lshl_b32 s61, s35, 14
s_add_u32 s62, s62, s61
s_lshl_b32 s61, s95, 7
""")
for j in range(0, 16, 2):
    A("s_add_u32 s60, s62, s61")
    for e in range(2): st.add(f"buffer_load_dwordx4 v[{32+4*(j+e)}:{35+4*(j+e)}], v8, s[52:55], s60 offen offset:{e*64}{nt('x')}")
    if j < 14: A("s_add_u32 s61, s61, 128\ns_and_b32 s61, s61, 1023")
A(f"""
v_lshlrev_b32 v108, 4, v0
v_add_u32 v108, {WS_MOD}, v108
buffer_load_dwordx4 v[104:107], v108, s[48:51], 0 offen sc1
s_mul_i32 s34, s34, 0x9E3779B1
s_add_u32 s34, s34, 0x7F4A7C15
s_cmp_lg_u32 s96, 0
s_cbranch_scc1 L_np2
""")
prod_compute("L_np2", 17)
A("L_np2:"); st.lg = []; st.hist = []
A("s_waitcnt lgkmcnt(0)")
QST = OPT.get('qst', 8192)
def wq_setup():
    A(f"""
    s_lshl_b32 s60, s56, {19 if QST == 1024 else 10}
    s_lshl_b32 s61, s35, 8
    s_add_u32 s60, s60, s61
    s_add_u32 s36, s10, s60
    s_addc_u32 s37, s11, 0
    s_sub_u32 s38, {512*8192}, s60
    s_mov_b32 s39, 0x20000
    s_mul_i32 s92, s95, {64*QST}
    """)
    voffs8(QST)
wq_setup()
def wq_pre(U, s):
    r = (2 * U + s) % 5
    return [f"s_add_u32 m0, s63, {r*UNIT}" if r < 4 else "s_mov_b32 m0, s93", f"s_add_u32 s60, s92, {s*32*QST + (U&1)*128}"]
for s in range(2):
    for t in wq_pre(0, s): A(t)
    for t in dma4("s60", nt("wq")): st.add(t, tag=("W", s))
A(f"""
s_getpc_b64 s[60:61]
L_pc:
s_sub_u32 s60, s60, L_pc-L_start
s_subb_u32 s61, s61, 0
s_lshl_b32 s3, s97, 12
v_lshl_add_u32 v2, v0, 4, s3
v_min_u32 v2, L_codeend-L_start-16, v2
""")
dummy("global_load_dwordx4 a[248:251], v2, s[60:61]")
A(f"""
v_lshrrev_b32 v2, 4, v1
v_and_b32 v5, 15, v1
v_bfe_u32 v6, v1, 2, 2
v_lshlrev_b32 v6, 1, v6
s_movk_i32 s60, 0x78
v_lshrrev_b32 v6, v6, s60
v_and_b32 v6, 3, v6
v_xor_b32 v7, v6, v2
v_lshlrev_b32 v7, 4, v7
v_lshl_add_u32 v15, v5, 6, v7
v_add_u32 v15, {HIMG}, v15
v_bfe_u32 v4, v1, 2, 2
v_lshl_add_u32 v7, v4, 12, v7
v_and_b32 v4, 3, v1
v_lshl_add_u32 v7, v4, 8, v7
""")
for s in range(4): A(f"v_xor_b32 v5, {s}, v4\nv_lshl_add_u32 v{17+s}, v5, 6, v7")
A(f"""
s_lshl_b32 s60, s35, 1
s_lshr_b32 s60, 0x78, s60
s_and_b32 s60, s60, 3
v_lshlrev_b32 v3, 2, v2
v_xor_b32 v3, s60, v3
v_and_b32 v4, 15, v1
v_xor_b32 v3, v3, v4
v_lshlrev_b32 v3, 4, v3
v_lshl_add_u32 v3, v2, 8, v3
s_lshl_b32 s60, s35, 10
v_add_u32 v22, s60, v3
v_add_u32 v23, 3072, v22
v_add_u32 v24, 6144, v22
v_add_u32 v25, 9216, v22
v_bfe_u32 v3, v1, 2, 2
v_lshlrev_b32 v3, 8, v3
v_lshl_add_u32 v3, v2, 6, v3
v_and_b32 v4, 3, v1
v_lshl_add_u32 v3, v4, 4, v3
s_lshl_b32 s60, s35, 12
s_add_u32 s60, s60, 64
v_add_u32 v26, s60, v3
v_subrev_u32 v27, 8, v26
v_subrev_u32 v28, 16, v26
v_subrev_u32 v29, 24, v26
v_lshlrev_b32 v3, 1, v2
s_movk_i32 s60, 0x78
v_lshrrev_b32 v3, v3, s60
v_xor_b32 v3, v3, v1
v_and_b32 v3, 3, v3
v_and_b32 v4, 60, v1
v_add_u32 v3, v3, v4
v_lshlrev_b32 v3, 4, v3
s_lshl_b32 s60, s35, 10
s_add_u32 s60, s60, {HIMG}
v_add_u32 v8, s60, v3
v_and_b32 v30, 3, v1
v_lshlrev_b32 v30, 5, v30
v_add_u32 v30, {MODV}, v30
""")
A(f"""
s_lshl_b32 s60, s56, 19
s_add_u32 s60, s60, {1536*256}
s_add_u32 s40, s6, s60
s_addc_u32 s41, s7, 0
s_mov_b32 s42, {512*256}
s_mov_b32 s43, 0x20000
s_sub_u32 s60, s60, 64
s_add_u32 s44, s8, s60
s_addc_u32 s45, s9, 0
s_mov_b32 s46, {512*256+64}
s_mov_b32 s47, 0x20000
s_lshl_b32 s6, s35, 12
s_mul_i32 s7, s35, 4128
s_add_u32 s7, s7, {VA}
s_lshl_b32 s8, s95, 14
s_mov_b32 s9, s8
""")
def k_ops(c): return ([f"s_add_u32 m0, s6, {KA if c%2==0 else KB}"], [f"buffer_load_dwordx4 v{22+i}, s[40:43], s8 offen offset:{i*1024}{nt('kv')} lds" for i in range(4)], ["s_add_u32 s8, s8, 16384", "s_and_b32 s8, s8, 0x1ffff"])
def v_ops(c): return ([f"s_add_u32 m0, s7, {(c&1)*16512}"], [f"buffer_load_dwordx4 v{26+i}, s[44:47], s9 offen offset:{i*1032}{nt('kv')} lds" for i in range(4)], ["s_add_u32 s9, s9, 16384", "s_and_b32 s9, s9, 0x1ffff"])
def kv_chain(Fl, g0, ops, tag):
    chain_dma(Fl, g0, ops[0], ops[1], tag, None, "dma")
    for t in ops[2]: Fl.append(F(t, g0 + 4, g0 + 10, "dma"))
A("v_mov_b32 v4, 0\nv_mov_b32 v6, 0\nv_mov_b32 v7, 0x3f803f80")
for r in range(32, 96):
    A(f"v_dot2c_f32_bf16 v4, v{r}, v7\nv_dot2c_f32_bf16 v6, v{r}, v{r}")
    if r == 63:
        A("s_sub_u32 s3, s96, 1\ns_cmp_lt_u32 s3, 2\ns_cbranch_scc1 L_p3")
        for s in range(2):
            for t in wq_pre(1, s): A(t)
            for t in dma4("s60", nt("wq")): st.add(t, tag=("W", 2 + s))
        keep = list(st.vm)
        A("s_branch L_p4\nL_p3:")
        prod_loads()
        A("L_p4:"); st.vm = keep; st.hist = []
stamp("x")
A(f"""
v_add_f32_dpp v4, v4, v4 quad_perm:[1,0,3,2] row_mask:0xf bank_mask:0xf
v_add_f32_dpp v6, v6, v6 quad_perm:[1,0,3,2] row_mask:0xf bank_mask:0xf
v_add_f32_dpp v4, v4, v4 quad_perm:[2,3,0,1] row_mask:0xf bank_mask:0xf
v_add_f32_dpp v6, v6, v6 quad_perm:[2,3,0,1] row_mask:0xf bank_mask:0xf
v_mul_f32 v5, {f2u(1/512)}, v4
v_mul_f32 v6, {f2u(1/512)}, v6
v_fma_f32 v6, -v5, v5, v6
v_max_f32 v6, 0, v6
v_add_f32 v6, {f2u(1e-5)}, v6
v_rsq_f32 v4, v6
v_mul_f32_e64 v5, -v5, v4
s_sub_u32 s3, s96, 1
s_cmp_ge_u32 s3, 2
s_cbranch_scc1 L_p6
""")
prod_compute("L_p5", 0)
A("L_p5:"); st.lg = []; st.hist = []
A("s_waitcnt lgkmcnt(0)")
keep = list(st.vm)
wq_setup()
for s in range(2):
    for t in wq_pre(1, s): A(t)
    for t in dma4("s60", nt("wq")): st.add(t)
A("L_p6:"); st.vm = keep; st.hist = []
srd(52, 30, 256)
A(f"""
s_cmp_lg_u32 s35, 0
s_cselect_b32 s60, 256, 0
v_mov_b32 v2, 0
v_accvgpr_write_b32 a252, 1
s_mov_b64 exec, 1
""")
dummy("buffer_atomic_add a252, v2, s[52:55], s60 offen sc0 sc1")
condm = "v_cmp_ne_u32 vcc, s34, v105\nv_cmp_ne_u32 s[100:101], s34, v107\ns_or_b64 vcc, vcc, s[100:101]"
A("s_mov_b64 exec, -1"); A(condm); A("s_cbranch_vccz L_pollmod_x")
keep = list(st.vm)
spin("L_pollmod", ["buffer_load_dwordx4 v[104:107], v108, s[48:51], 0 offen sc1"], condm)
st.vm = keep
stamp("mod")
A(f"""
s_cmp_ge_u32 s35, 2
s_cselect_b32 s60, 1.0, 0
s_cselect_b32 s3, 2048, 0
s_add_u32 s3, s3, {MODV}
s_mov_b32 s61, {f2u(SCALE)}
v_lshlrev_b32 v100, 16, v104
v_and_b32 v101, 0xffff0000, v104
v_lshlrev_b32 v102, 16, v106
v_and_b32 v103, 0xffff0000, v106
v_add_f32 v100, s60, v100
v_add_f32 v101, s60, v101
v_add_f32 v102, s60, v102
v_add_f32 v103, s60, v103
v_mul_f32 v100, s61, v100
v_mul_f32 v101, s61, v101
v_mul_f32 v102, s61, v102
v_mul_f32 v103, s61, v103
s_lshl_b32 s60, s95, 8
v_lshlrev_b32 v2, 4, v0
v_subrev_u32 v2, s60, v2
v_and_b32 v2, 2047, v2
v_add_u32 v2, s3, v2
ds_write_b128 v2, v[100:103]
""")
QS = 64
def qstg(U, tp, tile, s): return QS + (U & 1) * 32 + s * 16 + tp * 8 + tile * 4
def q_reads(U, s):
    r = (2 * U + s) % 5
    return p8_reads(lambda tp, tile: ("a", qstg(U, tp, tile, s)), r * UNIT if r < 4 else 0, "v9" if r < 4 else "v31")
A(f"s_mul_i32 s93, s35, {UNIT}\ns_sub_u32 s60, s93, s63\nv_add_u32 v31, s60, v9\ns_add_u32 s92, s92, {64*QST}\ns_and_b32 s92, s92, {512*QST-1}")
for t in wq_pre(2, 0): A(t)
for t in dma4("s60", nt("wq")): st.add(t, tag=("W", 4))
A("s_waitcnt lgkmcnt(0)\ns_barrier")
def modreads(j):
    b = 96 + (j & 1) * 16
    return [f"ds_read_b128 v[{b+4*i}:{b+4*i+3}], v30 offset:{(i>>1)*2048 + j*128 + (i&1)*16}" for i in range(4)]
def h_valu(j, pk):
    b = 96 + (j & 1) * 16; o = []
    T = [2, 3, 6, 7]
    for e in range(4):
        x = 32 + 4 * j + e; t0, t1 = T[2 * (e & 1)], T[2 * (e & 1) + 1]
        o += [f"v_lshlrev_b32 v{t0}, 16, v{x}", f"v_and_b32 v{t1}, 0xffff0000, v{x}"]
        o += [f"v_fma_f32 v{t0}, v{t0}, v4, v5", f"v_fma_f32 v{t1}, v{t1}, v4, v5"]
        if pk: o += [f"v_pk_fma_f32 v[{b+2*e}:{b+2*e+1}], v[{t0}:{t1}], v[{b+8+2*e}:{b+9+2*e}], v[{b+2*e}:{b+2*e+1}]"]
        else: o += [f"v_fma_f32 v{b+2*e}, v{t0}, v{b+8+2*e}, v{b+2*e}", f"v_fma_f32 v{b+2*e+1}, v{t1}, v{b+9+2*e}, v{b+2*e+1}"]
    o += [f"v_cvt_pk_bf16_f32 v{32+4*j+e}, v{b+2*e}, v{b+2*e+1}" for e in range(4)]
    o.append(f"ds_write_b128 v8, v[{32+4*j}:{35+4*j}] offset:{j*4096}")
    return o
NPRE = 3
for t in modreads(0) + modreads(1): A(t)
for j in range(NPRE):
    for t in h_valu(j, True): st.add(t, tag=("H", j) if t.startswith("ds_write") else None)
    for t in modreads(j + 2): A(t)
    if j == 1:
        st.need(("H", 1)); A("s_barrier")
        for s in range(2):
            for i, t in enumerate(q_reads(0, s)): st.add(t, tag=("R", s), need=[("W", s)] if i == 0 else None)
def hb(kk, s, cb): return (kk & 1) * 32 + (s * 4 + cb) * 4
for s in range(2):
    for cb in range(4): A(f"ds_read_b128 a[{hb(0,s,cb)}:{hb(0,s,cb)+3}], v15 offset:{(s*4+cb)*1024}")
stamp("h")

def qacc(tp, tile, cb): return 128 + (tp * 8 + tile * 4 + cb) * 4
def qop(s, cb): return 32 + (s * 4 + cb) * 4
M = []; Fl = []; RES = {}; HBAR = 46
for U in range(16):
    kk, h2 = U >> 1, U & 1
    g0 = len(M)
    for tp in range(2):
        for tile in range(2):
            for cb in range(4):
                for s in range(2):
                    M.append(mf(qacc(2 * h2 + tp, tile, cb), qstg(U, tp, tile, s), hb(kk, s, cb), "0" if (kk == 0 and s == 0) else None))
    for s in range(2):
        n = 2 * U + 2 + s; g = g0 + 16 * s
        def refill(n, g):
            m = n + 5
            if m >= 32: return
            pre = wq_pre(m >> 1, m & 1)
            if m % 4 == 0: pre = [f"s_add_u32 s92, s92, {64*QST}", f"s_and_b32 s92, s92, {512*QST-1}"] + pre
            chain_dma(Fl, g, pre, dma4("s60", nt("wq")), ("W", m), [("R", n)], "dma", late=2)
        if U == 0 and s == 0: refill(0, 1); refill(1, 5)
        if n < 32:
            for i, t in enumerate(q_reads(n >> 1, s)): Fl.append(F(t, g + i, g + i + 1, "rd", tag=("R", n), need=[("W", n)] if i == 0 else None))
            refill(n, g + 11)
    RES[g0 + 31] = 1
    if h2 == 0 and kk < 7:
        Fl.append(F(("barrier", [("H", 2 * kk + 3)]), g0 + HBAR, g0 + HBAR, "h"))
        for n in range(8):
            s, cb = n >> 2, n & 3
            Fl.append(F(f"ds_read_b128 a[{hb(kk+1,s,cb)}:{hb(kk+1,s,cb)+3}], v15 offset:{((kk+1)*8+n)*1024}", g0 + HBAR + 1 + n, g0 + HBAR + 6 + n, "hb", tag=("HB", kk + 1)))
    if U == 4:
        Fl.append(F("s_add_u32 s61, s8, s6", g0 + 20, g0 + 26, "kpf"))
        for i in range(4): Fl.append(dummyF(f"buffer_load_dwordx4 a[244:247], v16, s[40:43], s61 offen offset:{i*1024}", g0 + 26 + 8 * i, g0 + 30 + 8 * i, "kpf"))
    if kk == 7:
        for tp in range(2):
            T = 2 * h2 + tp - 1
            if T >= 0:
                for cb in range(4):
                    for e in range(4):
                        src = qacc(T, e >> 1, cb) + 2 * (e & 1)
                        Fl.append(F(f"v_cvt_pk_bf16_f32 v{qop(T,cb)+e}, v{src}, v{src+1}", g0 + 16 * tp + 2, g0 + 16 * tp + 15, "cv"))
        if h2 == 0:
            Fl.append(F(("barrier", [("HB", 7), ("R", 29)]), g0 + 1, g0 + 1, "dma"))
            kv_chain(Fl, g0 + 8, k_ops(0), ("K", 0))
            kv_chain(Fl, g0 + 24, k_ops(1), ("K", 1))
        else:
            kv_chain(Fl, g0 + 1, v_ops(0), ("V", 0))
            Fl.append(F(("barrier", [("K", 0)]), g0 + 15, g0 + 15, "rd"))
            for s in range(4): Fl.append(F(f"ds_read_b128 a[{STG+s*4}:{STG+s*4+3}], v{17+s} offset:{KA}", g0 + 16 + s, g0 + 22, "rd", tag=("R", "k00")))
bars = [f for f in Fl if f.chain == "h"]; Fl = [f for f in Fl if f.chain != "h"]
seq = []
for kk in range(7):
    dl = kk * 64 + HBAR - 1
    for j in range(max(NPRE, 2 * kk + 2), 2 * kk + 4):
        for t in h_valu(j, False): seq.append(F(t, 0, dl, "h", tag=("H", j) if t.startswith("ds_write") else None))
        if j + 2 < 16:
            for t in modreads(j + 2): seq.append(F(t, 0, dl + 64, "h"))
    seq.append(bars[kk])
for f in seq: F.cnt += 1; f.order = F.cnt
schedule(st, M, Fl + seq, reserve=RES, verbose="Q", mem2=("h",))
for cb in range(4):
    for e in range(4):
        src = qacc(3, e >> 1, cb) + 2 * (e & 1)
        A(f"v_cvt_pk_bf16_f32 v{qop(3,cb)+e}, v{src}, v{src+1}")
stamp("Q")
voffs16(1024)
A(f"""
s_lshl_b32 s60, s56, 19
s_lshl_b32 s61, s35, {OPT.get("wocol", 6)}
s_and_b32 s61, s61, {OPT.get("womask", 1023)}
s_add_u32 s60, s60, s61
s_add_u32 s36, s12, s60
s_addc_u32 s37, s13, 0
s_sub_u32 s38, {4096*1024}, s60
v_mov_b32 v2, 0x3f803f80
v_accvgpr_write_b32 a240, v2
v_accvgpr_write_b32 a241, v2
v_accvgpr_write_b32 a242, v2
v_accvgpr_write_b32 a243, v2
s_and_b32 s14, s57, {OPT.get("rotmask", 7) & 3}
s_lshl_b32 s92, s14, 8
s_bfe_u32 s15, s57, 0x20002
s_and_b32 s15, s15, {OPT.get("rotmask", 7) & 3}
s_lshl_b32 s94, s15, 17
s_mul_i32 s93, s97, 57344
s_mul_i32 s60, s35, 14336
s_add_u32 s93, s93, s60
""")
srd(52, 16, 512 * 3584)
def wo_pre(u, m0):
    p = [m0, "s_add_u32 s60, s92, s94", "s_add_u32 s94, s94, 0x10000", "s_and_b32 s94, s94, 0x7ffff"]
    return p
def wo_chain(Fl, g, u, m0, need, late=3):
    p = wo_pre(u, m0)
    chain_dma(Fl, g, p[:2], dma4("s60", nt("wo")), ("W", u), need, "dma", late)
    post = p[2:] + (["s_add_u32 s92, s92, 256", "s_and_b32 s92, s92, 1023"] if (u & 7) == 7 else [])
    for t in post: Fl.append(F(t, g, g + late + 8, "dma"))

def S(kt, cb): return 96 + (kt * 4 + cb) * 4
def P(c, s, cb): return 160 + (c & 1) * 32 + (s * 4 + cb) * 4
def CI(cb): return 224 + 4 * cb
def oacc(tp, tile, cb): return (tp * 8 + tile * 4 + cb) * 4
def woreg(u, tile, s):
    o = tile * 8 + s * 4
    return ("a", 128 + u * 16 + o) if u < 4 else (("v", 128 + (u - 4) * 16 + o) if u < 6 else ("v", 192 + (u - 6) * 16 + o))
LS = 224
units = [("QK", 0, k) for k in range(4)]
for c in range(7): units += [("QK", c + 1, k) for k in range(4)] + [("L", c, 0)] + [("PV", c, k) for k in range(4)]
units += [("L", 7, 0)] + [("PV", 7, k) for k in range(4)]
M = []; Fl = []; RES = {}; G = {}; buf = {}
staged = [u for u in units if u[0] != "L"]
for n, u in enumerate(staged): buf[u] = n
pos = 0
for un in units: G[un] = pos; pos += 8 if un[0] == "L" else 16
NATT = pos
def oop(dp, cb): return 32 + (dp * 4 + cb) * 4
pf = []
if OPT["pf_w1"]: pf += [("w1", i) for i in range(14)]
if OPT["pf_w2"]: pf += [("w2", i) for i in range(14)]
for un in units:
    ty, c, k = un; g0 = len(M); assert g0 == G[un]
    if ty == "QK":
        b = STG + (buf[un] & 1) * 16
        for cb in range(4):
            for s in range(4):
                M.append(mf(S(k, cb), b + 4 * s, qop(s, cb), None if s else ("0" if (c == 0 and k < 2) else CI(cb)), "v", "a", "v"))
    elif ty == "L":
        for cb in range(4):
            for s in range(2): M.append(mf(LS + 4 * cb, 240, P(c, s, cb), "0" if (c == 0 and s == 0) else None, "a", "a", "v"))
    else:
        for tile in range(2):
            for cb in range(4):
                for s in range(2): M.append(mf(oacc(k, tile, cb), stg(buf[un], tile, s), P(c, s, cb), "0" if (c == 0 and s == 0) else None, "a", "a", "v"))
    if ty == "L": continue
    RES[g0 + 15] = 1
    bar = None
    if (ty, c, k) == ("QK", 0, 3): bar = 1
    if ty == "PV" and k == 3 and c < 7: bar = c + 2
    rg = g0
    if bar is not None:
        Fl.append(F(("barrier", [("R", un), ("V", bar - 1)] + ([("K", bar)] if bar <= 7 else [])), g0 + 1, g0 + 1, "rd")); rg = g0 + 2
        Fl += stampF(f"B{bar}", g0 + 2)
        gk = g0 + 20
        if bar + 1 <= 7: kv_chain(Fl, gk, k_ops(bar + 1), ("K", bar + 1))
        if bar <= 7: kv_chain(Fl, gk + 16, v_ops(bar), ("V", bar))
        plan = {1: [("d", 0)], 2: [("d", 1), ("d", 2)], 3: [("d", 3), ("r", 0)], 4: [("r", 1), ("d", 4)], 5: [("r", 2), ("d", 5)], 6: [("r", 3), ("d", 6)], 7: [("d", 7)]}.get(bar, [])
        gw = gk + 32
        for kind, u in plan:
            if kind == "d": wo_chain(Fl, gw, u, f"s_add_u32 m0, s63, {(u&3)*UNIT}", [("RW", u - 4)] if u >= 4 else None, late=8); gw += 12
            else:
                for i, t in enumerate(p16_reads(lambda tile, s: woreg(u, tile, s), u * UNIT)):
                    Fl.append(F(t, gw + i // 2, gw + 10 + i, "dma", tag=("RW", u), need=[("W", u)] if i == 0 else None))
                gw += 12
        if bar <= 7:
            for n in range(4):
                if not pf: break
                nm, i = pf.pop(0)
                if nm == "w2" and i == 0:
                    for t in ["s_mov_b32 s52, s20", "s_mov_b32 s53, s21"] + (["s_sub_u32 s93, s93, 12288"] if OPT["pf_w1"] else []): Fl.append(F(t, gw, gw + 30, "dma"))
                if i and i % 4 == 0: Fl.append(F("s_add_u32 s93, s93, 4096", gw, gw + 30, "dma"))
                Fl.append(dummyF(f"buffer_load_dwordx4 a[244:247], v16, s[52:55], s93 offen offset:{(i%4)*1024}", gw, gw + 30, "dma"))
    i = staged.index(un)
    if i + 1 < len(staged):
        nx = staged[i + 1]; nb = STG + (buf[nx] & 1) * 16
        if nx[0] == "QK":
            for s in range(4):
                Fl.append(F(f"ds_read_b128 a[{nb+4*s}:{nb+4*s+3}], v{17+s} offset:{(KA if nx[1]%2==0 else KB) + nx[2]*1024}", rg + s // 2, rg + 4 + s, "rd", tag=("R", nx)))
        else:
            i2 = 0
            for tile in range(2):
                for s in range(2):
                    for hf in range(2):
                        d = stg(buf[nx], tile, s) + 2 * hf
                        Fl.append(F(f"ds_read_b64_tr_b16 a[{d}:{d+1}], v21 offset:{(nx[1]&1)*16512 + (4*s+2*hf)*2064 + nx[2]*256 + tile*8}", rg + i2 // 2, rg + 1 + i2, "rd", tag=("R", nx))); i2 += 1
g1 = G[("QK", 0, 1)]
for cb in range(4):
    s0 = S(0, cb); t = 240 + 2 * cb; ch = ("mx", cb); e = g1 + max(0, 4 * cb - 8); l = g1 + 14 + 4 * cb
    for txt in [f"v_max3_f32 v{t}, v{s0}, v{s0+1}, v{s0+2}", f"v_max_f32 v{t}, v{t}, v{s0+3}", f"v_mov_b32 v{t+1}, v{t}",
                f"v_permlane16_swap_b32 v{t}, v{t+1}", f"v_max_f32 v{t}, v{t}, v{t+1}", f"v_mov_b32 v{t+1}, v{t}",
                f"v_permlane32_swap_b32 v{t}, v{t+1}", f"v_max_f32 v{t}, v{t}, v{t+1}"] + [f"v_sub_f32 v{CI(cb)+i}, 0, v{t}" for i in range(4)]:
        Fl.append(F(txt, e, l, ch))
for c in range(8):
    for kt in range(4):
        gq = G[("QK", c, kt)]
        for cb in range(4):
            e = gq + 4 * cb + 3 + 5
            l = (G[("QK", c + 1, kt)] + 4 * cb - 1) if c < 7 else G[("L", 7, 0)] - 2
            l = min(l, G[("L", c, 0)] - 2)
            ch = ("sm", kt, cb); s0 = S(kt, cb)
            if c == 0 and kt < 2:
                ch = ("mx", cb)
                for i in range(4): Fl.append(F(f"v_add_f32 v{s0+i}, v{CI(cb)}, v{s0+i}", e, l, ch))
            for i in range(4): Fl.append(F(f"v_exp_f32 v{s0+i}, v{s0+i}", e, l, ch))
            for i in range(2): Fl.append(F(f"v_cvt_pk_bf16_f32 v{P(c,kt>>1,cb)+2*(kt&1)+i}, v{s0+2*i}, v{s0+2*i+1}", e, l, ch))
gL = G[("L", 7, 0)]
for cb in range(4): Fl.append(F(f"v_accvgpr_read_b32 v{240+cb}, a{LS+4*cb}", gL + 12, gL + 20, "nrm"))
for cb in range(4): Fl.append(F(f"v_rcp_f32 v{244+2*cb}, v{240+cb}", gL + 12, gL + 24, "nrm"))
def norm_ops(dp, cb, pk):
    t = 160 + cb * 8; o = []
    for tile in range(2):
        for r in range(4): o.append(f"v_accvgpr_read_b32 v{t+4*tile+r}, a{oacc(dp,tile,cb)+r}")
    if pk: o += [f"v_pk_mul_f32 v[{t+2*r}:{t+2*r+1}], v[{t+2*r}:{t+2*r+1}], v[{244+2*cb}:{245+2*cb}] op_sel_hi:[1,0]" for r in range(4)]
    else: o += [f"v_mul_f32 v{t+r}, v{244+2*cb}, v{t+r}" for r in range(8)]
    d = 96 + ((dp * 4 + cb) & 3) * 4
    o += [f"v_cvt_pk_bf16_f32 v{d+e}, v{t+2*e}, v{t+2*e+1}" for e in range(4)]
    o.append(f"ds_write_b128 v30, v[{d}:{d+3}] offset:{(dp*4+cb)*1024}")
    return o
def blk_addr(dst, src, add):
    A(f"""s_add_u32 s60, {src}, {add}
    s_and_b32 s60, s60, 3
    s_mul_i32 s61, s60, {KB}
    s_cmp_eq_u32 s60, 2
    s_cselect_b32 s61, {VA}, s61
    s_cmp_eq_u32 s60, 3
    s_cselect_b32 s61, {XR}, s61
    v_add_u32 v{dst}, s61, v16""")
blk_addr(30, "s35", 0)
for i in range(4): blk_addr(2 + i, "s15", i)
NHID = 4
grp = [(dp, cb) for dp in range(4) for cb in range(4)]
for dp, cb in grp[:NHID]:
    for t in norm_ops(dp, cb, False): Fl.append(F(t, G[("PV", 7, dp)] + 16 + 3, NATT - 1, "nrm"))
for u in (4, 5):
    g = gL + 1 + (u - 4) * 30
    for i, t in enumerate(p16_reads(lambda tile, s: woreg(u, tile, s), (u & 3) * UNIT)): Fl.append(F(t, g + i, g + 12 + i, "dma", tag=("RW", u), need=[("W", u)] if i == 0 else None))
    wo_chain(Fl, g + 18, u + 4, f"s_add_u32 m0, s63, {(u&3)*UNIT}", [("RW", u)], late=6)
schedule(st, M, Fl, reserve=RES, verbose="attn", mem2=("rd", "dma"), minback=OPT.get("minback", 10))
stamp("attn")
for u in (6, 7):
    for i, t in enumerate(p16_reads(lambda tile, s: woreg(u, tile, s), (u & 3) * UNIT)): st.add(t, tag=("RW", u), need=[("W", u)] if i == 0 else None)
for n, (dp, cb) in enumerate(grp[NHID:]):
    for t in norm_ops(dp, cb, True): st.add(t, tag="ow" if t.startswith("ds_write") else None)
    if n in (0, 2):
        u = 10 + n // 2; p = wo_pre(u, f"s_add_u32 m0, s63, {(u&3)*UNIT}")
        for t in p[:2]: A(t)
        for i, t in enumerate(dma4("s60", nt("wo"))): st.add(t, tag=("W", u), need=[("RW", u - 4)] if i == 0 else None)
        for t in p[2:]: A(t)

def oB(i, cb): return ("v", 32 + (i * 4 + cb) * 4) if i < 4 else ("a", ((i - 4) * 4 + cb) * 4)
def pacc(i, tile, cb): return 96 + (i & 1) * 32 + (tile * 4 + cb) * 4
def oB_read(ks, cb):
    f, r = oB(ks, cb); return f"ds_read_b128 {f}[{r}:{r+3}], v{2 + (ks>>2)} offset:{((ks&3)*4+cb)*1024}"
A(f"""
v_and_b32 v6, 15, v1
v_lshrrev_b32 v7, 1, v6
v_and_b32 v6, 1, v1
v_lshrrev_b32 v8, 4, v1
v_lshlrev_b32 v31, 11, v7
v_lshl_add_u32 v31, v6, 4, v31
v_lshl_add_u32 v31, v8, 5, v31
v_and_b32 v17, 3, v7
v_lshlrev_b32 v17, 1, v17
s_movk_i32 s60, 0xd8
v_lshrrev_b32 v17, v17, s60
v_xor_b32 v17, v17, v8
v_and_b32 v17, 3, v17
v_lshlrev_b32 v17, 5, v17
v_lshl_add_u32 v17, v7, 7, v17
v_lshl_add_u32 v17, v6, 4, v17
s_lshl_b32 s61, s35, 12
s_add_u32 s61, s61, {XR}
v_add_u32 v17, s61, v17
v_lshrrev_b32 v7, 3, v1
v_and_b32 v18, 3, v7
v_lshlrev_b32 v18, 1, v18
v_lshrrev_b32 v18, v18, s60
v_lshrrev_b32 v8, 1, v1
v_xor_b32 v18, v18, v8
v_and_b32 v18, 3, v18
v_lshlrev_b32 v18, 5, v18
v_lshl_add_u32 v18, v7, 7, v18
v_lshl_add_u32 v18, v6, 4, v18
v_add_u32 v18, s61, v18
v_and_b32 v8, 7, v1
v_lshlrev_b32 v19, 11, v7
v_lshl_add_u32 v19, v8, 4, v19
v_lshlrev_b32 v23, 9, v8
v_and_b32 v7, 3, v7
v_lshl_add_u32 v23, v7, 7, v23
v_and_b32 v22, 31, v1
v_lshlrev_b32 v24, 4, v22
v_lshlrev_b32 v22, 2, v22
v_lshrrev_b32 v8, 5, v1
v_lshl_add_u32 v24, v8, 16, v24
v_mov_b32 v25, s34
s_mul_i32 s6, s35, {UNIT}
s_add_u32 s6, s6, {VB}
s_sub_u32 s60, s6, s63
v_add_u32 v20, s60, v10
s_mul_i32 s7, s35, {2*UNIT}
s_sub_u32 s60, s7, s63
v_add_u32 v21, s60, v10
s_mul_i32 s62, s35, {UNIT}
s_add_u32 s62, s62, {8*UNIT}
s_cmp_eq_u32 s35, 3
s_cselect_b32 s62, {MISC+8192}, s62
s_sub_u32 s60, s62, s63
v_add_u32 v15, s60, v10
s_lshl_b32 s61, s57, 3
s_add_u32 s61, s61, s56
s_lshl_b32 s93, s61, 16
s_lshl_b32 s60, s35, 7
s_add_u32 s93, s93, s60
s_add_u32 s93, s93, {WS_PART}
s_lshl_b32 s8, s14, 9
s_lshl_b32 s9, s61, 9
s_add_u32 s9, s9, {WS_F1}
s_cmp_lg_u32 s35, 0
s_cselect_b32 s9, {OOB}, s9
s_lshl_b32 s24, s58, 12
s_add_u32 s24, s24, {WS_F1}
s_lshl_b32 s25, s58, 19
s_lshl_b32 s60, s59, 13
s_add_u32 s25, s25, s60
s_lshl_b32 s60, s35, 11
s_add_u32 s25, s25, s60
s_add_u32 s25, s25, {WS_PART}
s_and_b32 s26, s58, {OPT.get("rotmask", 7) & 3}
s_lshl_b32 s26, s26, 9
s_mov_b32 s15, 0
""")
A(f"""
v_lshrrev_b32 v6, 5, v1
s_and_b32 s60, s58, {OPT.get("rotmask", 7) & 3}
v_add_u32 v6, s60, v6
v_add_u32 v7, 2, v6
v_and_b32 v6, 3, v6
v_and_b32 v7, 3, v7
v_and_b32 v8, 30, v1
v_lshlrev_b32 v8, 3, v8
v_lshl_add_u32 v6, v6, 8, v8
v_lshl_add_u32 v7, v7, 8, v8
v_lshlrev_b32 v240, 1, v6
v_lshlrev_b32 v241, 1, v7
v_add_u32 v242, {MODV}, v240
v_add_u32 v243, {MODV}, v241
v_and_b32 v8, 1, v1
v_lshl_add_u32 v6, v8, 10, v6
v_lshl_add_u32 v7, v8, 10, v7
v_lshlrev_b32 v8, 4, v0
v_add_u32 v8, {WS_MOD+4096}, v8
s_lshl_b32 s10, s58, 16
s_lshl_b32 s60, s59, 13
s_add_u32 s10, s10, s60
s_lshl_b32 s60, s35, 11
s_add_u32 s10, s10, s60
s_movk_i32 s11, 4096
""")
srd(52, 4, 2048 * 1024)
st.need("ow"); A("s_barrier")
for ks in range(2):
    for cb in range(4): A(oB_read(ks, cb))
stamp("norm")
def slot_m0(r): return f"s_add_u32 m0, s63, {r*UNIT}" if r < 4 else {4: "s_mov_b32 m0, s6", 5: "s_mov_b32 m0, s7", 6: f"s_add_u32 m0, s7, {UNIT}", 7: "s_mov_b32 m0, s62"}[r]
def slot_rd(r): return (r * UNIT, "v10") if r < 4 else {4: (0, "v20"), 5: (0, "v21"), 6: (UNIT, "v21"), 7: (0, "v15")}[r]
def part_cvt(n): return [f"v_cvt_pk_bf16_f32 v{224+4*cb+k}, v{pacc(n,k>>1,cb)+2*(k&1)}, v{pacc(n,k>>1,cb)+2*(k&1)+1}" for cb in range(4) for k in range(4)]
def flag1(n): return f"buffer_store_dword v25, v22, s[48:51], s9 offen offset:{n*128} sc1"
def pread(n, soff): return [f"buffer_load_dwordx4 v[{160+16*n+4*gp}:{163+16*n+4*gp}], v24, s[48:51], {soff[gp]} offen sc1" for gp in range(4)]
M = []; Fl = []; RES = {}
slot = {u: u & 7 for u in range(8, 32)}
ld = [(12, 4, 1, None), (13, 5, 5 * 16, None), (14, 6, 5 * 16 + 6, None), (15, 7, 5 * 16 + 12, None)] + [(u, u & 7, (u - 9) * 16 + 11, u - 8) for u in range(16, 32)]
for u in range(32):
    n, kk = u >> 3, u & 7; g0 = len(M)
    for tile in range(2):
        for cb in range(4):
            for s in range(2):
                f, r = oB(2 * kk + s, cb)
                fa, ra = woreg(u, tile, s) if u < 8 else ("a", stg(u, tile, s))
                M.append(mf(pacc(n, tile, cb), ra, r, "0" if (kk == 0 and s == 0) else None, "v", fa, f))
    if 8 <= u + 1 < 32:
        off, ad = slot_rd(slot[u + 1])
        for i, t in enumerate(p16_reads(lambda tile, s: ("a", stg(u + 1, tile, s)), off, ad)):
            Fl.append(F(t, g0 + i, g0 + i + 1, "rd", tag=("R", u + 1), need=[("W", u + 1)] if i == 0 else None))
    RES[g0 + 15] = 1
bsched = {0: [2, 3, 4, 5], 1: [6, 7, 8, 9], 2: [10, 11, 12, 13], 3: [14], 4: [15]}
for u, kss in bsched.items():
    i = 0
    for ks in kss:
        for cb in range(4):
            e = u * 16 + i; Fl.append(F(oB_read(ks, cb), e, e + 1, "ob", tag="OB")); i += 1
for u, r, g, nd in ld:
    if u == 13: Fl.append(F(("barrier", ["OB"]), 4 * 16 + 9, 4 * 16 + 9, "dma"))
    wo_chain(Fl, g, u, slot_m0(r), [("R", nd)] if nd is not None else None, late=2)
for n in range(3):
    g = (8 * n + 8) * 16
    for cb in range(4):
        for t in part_cvt(n)[4 * cb:4 * cb + 4]: Fl.append(F(t, g + 2, g + 8 + 4 * cb, "po"))
        Fl.append(F(f"ds_write_b128 v17, v[{224+4*cb}:{227+4*cb}] offset:{cb*1024}", g + 8 + 2 * cb, g + 10 + 4 * cb, "po"))
    for cb in range(4): Fl.append(F(f"ds_read_b128 v[{224+4*cb}:{227+4*cb}], v18 offset:{cb*1024}", g + 24 + cb, g + 26 + cb, "po"))
    Fl.append(F("s_add_u32 s61, s93, s8", g + 24, g + 30, "po"))
    for cb in range(4):
        if not OPT.get("nopart"): Fl.append(F(f"buffer_store_dwordx4 v[{224+4*cb}:{227+4*cb}], v19, s[48:51], s61 offen sc1", g + 40 + cb, g + 40 + cb, "po", tag=("part", n)))
        Fl.append(F("s_add_u32 s61, s61, 16384" if cb < 3 else "s_add_u32 s8, s8, 512", g + 40 + cb, g + 40 + cb, "po"))
    Fl.append(F("s_and_b32 s8, s8, 2047", g + 38, g + 54, "po"))
    gf = g + OPT.get("gf", 7 * 16 + 8)
    Fl.append(F(("barrier", [("part", n)]), gf, gf, "po"))
    Fl.append(F(flag1(n), gf + 1, gf + 1, "po"))
Fl.append(F("buffer_load_dword v240, v23, s[48:51], s24 offen sc1", 511, 511, "po"))
for i, t in enumerate(["buffer_load_dwordx4 v[244:247], v6, s[52:55], s10 offen", "buffer_load_dwordx4 v[248:251], v7, s[52:55], s10 offen",
          "buffer_load_dwordx4 v[252:255], v8, s[48:51], 0 offen sc1", "buffer_load_dwordx4 v[26:29], v8, s[48:51], s11 offen sc1"]):
    Fl.append(F(t, 28 * 16 + 9 + i, 28 * 16 + 14 + i, "sm"))
for u in (8, 16, 24): Fl += stampF(f"O{u}", u * 16)
schedule(st, M, Fl, reserve=RES, verbose="O")
for t in part_cvt(3): A(t)
A("s_add_u32 s61, s93, s8")
for cb in range(4):
    st.add(f"buffer_store_dwordx4 v[{224+4*cb}:{227+4*cb}], v31, s[48:51], s61 offen sc1", tag=("part", 3))
    if cb < 3: A("s_add_u32 s61, s61, 16384")
stamp("O")

voffs16(3584)
A(f"""
s_min_u32 s62, s59, 6
s_lshl_b32 s62, s62, 9
s_lshl_b32 s60, s35, 6
s_add_u32 s62, s62, s60
s_add_u32 s36, s16, s62
s_addc_u32 s37, s17, 0
s_sub_u32 s38, {512*3584}, s62
""")
def w1reg(half, s, tile): return ((half * 16 + s) * 2 + tile) * 4
def w2reg(ks, tp, tile):
    o = tp * 8 + tile * 4
    if ks < 4: return ("v", 160 + ks * 16 + o)
    if ks < 9: return ("a", (ks - 4) * 16 + o)
    if ks < 13: return ("a", 192 + (ks - 9) * 16 + o)
    return ("v", 208 + o)
KS2 = [(p, 0) for p in range(7)] + [(p, 1) for p in range(7)]
class WS:
    nd = 0; nr = 0; slot_of = {}; last = {}
def w_dma(n, slots):
    for _ in range(n):
        u = WS.nd; WS.nd += 1
        r = [x for x in slots if WS.last.get(x, -1) < WS.nr][0]
        if u == 16: w2_setup()
        A(slot_m0(r))
        A(f"s_mov_b32 s60, {(u&7)*64*3584 + (u>>3)*256}" if u < 16 else f"s_mov_b32 s60, {(256*KS2[u-16][0] + 128*KS2[u-16][1])*1024}")
        for i, t in enumerate(dma4("s60")): st.add(t, tag=("W1", u), need=[("R1", WS.last[r])] if (i == 0 and r in WS.last) else None)
        WS.slot_of[u] = r; WS.last[r] = u
def w_read(n):
    for _ in range(n):
        u = WS.nr; WS.nr += 1; r = WS.slot_of[u]
        if u < 16:
            off, ad = slot_rd(r); L = p16_reads(lambda tile, s: ("a", w1reg(u >> 3, (u & 7) * 2 + s, tile)), off, ad)
        else:
            assert r < 4; L = p8_reads(lambda tp, tile: w2reg(u - 16, tp, tile), r * UNIT)
        for i, t in enumerate(L): st.add(t, tag=("R1", u), need=[("W1", u)] if i == 0 else None)
def w2_setup():
    voffs8(1024)
    A(f"""
    s_lshl_b32 s60, s35, 15
    s_lshl_b32 s61, s59, 7
    s_add_u32 s60, s60, s61
    s_add_u32 s36, s20, s60
    s_addc_u32 s37, s21, 0
    s_sub_u32 s38, {1792*1024}, s60
    """)
ALL7 = [0, 1, 2, 3, 4, 5, 6]
A("v_cmp_ne_u32 vcc, s34, v240\ns_mov_b32 s15, vcc_lo")
def preads(n, sel):
    A(f"s_add_u32 s27, s26, {n*512}\ns_and_b32 s27, s27, 2047\ns_add_u32 s27, s27, s25")
    if sel: A(f"s_and_b32 s3, s15, {0xff << (8*n)}\ns_cselect_b32 s27, {OOB}, s27")
    for gp, t in enumerate(pread(n, ["s27"] * 4)):
        A(t)
        if gp < 3: A("s_add_u32 s27, s27, 0x20000")
for n in range(3): preads(n, True)
w_dma(OPT.get("nA", 4), ALL7)
cond2 = """v_cmp_ne_u32 vcc, s34, v253
    v_cmp_ne_u32 s[100:101], s34, v255
    s_or_b64 vcc, vcc, s[100:101]
    v_cmp_ne_u32 s[100:101], s34, v27
    s_or_b64 vcc, vcc, s[100:101]
    v_cmp_ne_u32 s[100:101], s34, v29
    s_or_b64 vcc, vcc, s[100:101]"""
A(cond2); A("s_cbranch_vccz L_pm2_x")
keep = list(st.vm)
spin("L_pm2", ["buffer_load_dwordx4 v[252:255], v8, s[48:51], 0 offen sc1", "buffer_load_dwordx4 v[26:29], v8, s[48:51], s11 offen sc1"], cond2)
st.vm = keep
A(f"""
s_cmp_lt_u32 s35, 2
s_cselect_b32 s60, 1.0, 0
v_lshlrev_b32 v128, 16, v252
v_and_b32 v129, 0xffff0000, v252
v_lshlrev_b32 v130, 16, v254
v_and_b32 v131, 0xffff0000, v254
v_lshlrev_b32 v132, 16, v26
v_and_b32 v133, 0xffff0000, v26
v_lshlrev_b32 v134, 16, v28
v_and_b32 v135, 0xffff0000, v28
v_add_f32 v132, s60, v132
v_add_f32 v133, s60, v133
v_add_f32 v134, s60, v134
v_add_f32 v135, s60, v135
v_lshlrev_b32 v8, 4, v0
v_add_u32 v8, {MODV}, v8
ds_write_b128 v8, v[128:131]
ds_write_b128 v8, v[132:135] offset:4096
v_mov_b32 v2, 0x3f80
v_mov_b32 v3, 0x3f800000
""")
for r in range(32): A(f"v_mov_b32 v{96+r}, 0")
def accq(n):
    for gp in range(4):
        for r in range(4): A(f"v_dot2c_f32_bf16 v{96+8*n+2*r}, v{160+16*n+4*gp+r}, v2\nv_dot2c_f32_bf16 v{97+8*n+2*r}, v{160+16*n+4*gp+r}, v3")
for r in range(8): A(f"v_lshlrev_b32 v{144+2*r}, 16, v{244+r}\nv_and_b32 v{145+2*r}, 0xffff0000, v{244+r}")
st.need(("part", 3))
A("s_waitcnt lgkmcnt(0)\ns_barrier"); A(flag1(3))
stamp("f1st")
A(f"""
v_accvgpr_read_b32 v4, a252
v_mov_b32 v5, 0
v_readfirstlane_b32 s60, v4
s_cmp_eq_u32 s60, 255
s_cselect_b32 s60, 0, {OOB}
s_cmp_lg_u32 s35, 0
s_cselect_b32 s60, {OOB}, s60
buffer_store_dword v25, v5, s[48:51], s60 offen sc1
""")
w_read(OPT.get("nA", 4)); w_dma(OPT.get("nB", 2), ALL7)
def modrd(dst, vec):
    for h in range(2):
        for q in range(2): A(f"ds_read_b128 v[{dst+8*h+4*q}:{dst+8*h+4*q+3}], v{242+h} offset:{vec*2048 + q*16}")
modrd(32, 0); modrd(48, 2); modrd(64, 1)
keep = (list(st.vm), list(st.lg))
for n in range(3):
    A(f"s_and_b32 s3, s15, {0xff << (8*n)}\ns_cbranch_scc0 L_have{n}")
    spin(f"L_pq{n}", ["s_sleep 2", "buffer_load_dword v240, v23, s[48:51], s24 offen sc1"], f"v_cmp_ne_u32 vcc, s34, v240\ns_and_b64 vcc, vcc, {0xff << (8*n)}")
    preads(n, False)
    A(f"L_have{n}:"); st.vm, st.lg = list(keep[0]), list(keep[1])
A("s_cmp_lg_u32 s35, 0\ns_cbranch_scc1 L_np3\ns_mov_b32 exec_lo, 0xff000000\ns_mov_b32 exec_hi, 0")
spin("L_pf1", ["buffer_load_dword v240, v23, s[48:51], s24 offen sc1"], "v_cmp_ne_u32 vcc, s34, v240")
A("s_mov_b64 exec, -1\nL_np3:"); st.vm, st.lg = list(keep[0]), list(keep[1])
A("s_barrier")
stamp("f1ok")
preads(3, False)
A("s_waitcnt vmcnt(4)")
w_read(OPT.get("nB", 2)); w_dma(OPT.get("nC", 4), ALL7)
for n in range(4): accq(n)
for h in range(2):
    for r in range(8): A(f"v_permlane32_swap_b32 v{96+16*h+r}, v{104+16*h+r}")
for h in range(2):
    for r in range(0, 8, 2): A(f"v_pk_add_f32 v[{128+8*h+r}:{129+8*h+r}], v[{96+16*h+r}:{97+16*h+r}], v[{104+16*h+r}:{105+16*h+r}]")
for r in range(8): A(f"v_pk_fma_f32 v[{128+2*r}:{129+2*r}], v[{128+2*r}:{129+2*r}], v[{32+2*r}:{33+2*r}], v[{144+2*r}:{145+2*r}]")
for r in range(8): A(f"v_cvt_pk_bf16_f32 v{144+r}, v{128+2*r}, v{129+2*r}")
A(f"""s_add_u32 s61, s10, {WS_X1}
buffer_store_dwordx4 v[144:147], v6, s[48:51], s61 offen sc1
buffer_store_dwordx4 v[148:151], v7, s[48:51], s61 offen sc1""")
def row_stats(x):
    A(f"v_pk_add_f32 v[96:97], v[{x}:{x+1}], v[{x+2}:{x+3}]\nv_pk_mul_f32 v[98:99], v[{x}:{x+1}], v[{x}:{x+1}]")
    A(f"v_pk_fma_f32 v[98:99], v[{x+2}:{x+3}], v[{x+2}:{x+3}], v[98:99]")
    for r in range(2, 8):
        A(f"v_pk_add_f32 v[96:97], v[96:97], v[{x+2*r}:{x+2*r+1}]\nv_pk_fma_f32 v[98:99], v[{x+2*r}:{x+2*r+1}], v[{x+2*r}:{x+2*r+1}], v[98:99]")
    A("v_add_f32 v96, v96, v97\nv_add_f32 v98, v98, v99")
    for d in ("quad_perm:[2,3,0,1]", "row_ror:4", "row_ror:8"):
        A(f"v_add_f32_dpp v96, v96, v96 {d} row_mask:0xf bank_mask:0xf\nv_add_f32_dpp v98, v98, v98 {d} row_mask:0xf bank_mask:0xf")
    for sw in ("16", "32"):
        A(f"v_mov_b32 v97, v96\nv_mov_b32 v99, v98\nv_permlane{sw}_swap_b32 v96, v97\nv_permlane{sw}_swap_b32 v98, v99\nv_add_f32 v96, v96, v97\nv_add_f32 v98, v98, v99")
    A(f"""v_mul_f32 v97, {f2u(1/512)}, v96
    v_mul_f32 v98, {f2u(1/512)}, v98
    v_fma_f32 v98, -v97, v97, v98
    v_max_f32 v98, 0, v98
    v_add_f32 v98, {f2u(1e-5)}, v98
    v_rsq_f32 v96, v98
    v_mul_f32_e64 v98, -v97, v96""")
row_stats(128)
for r in range(8): A(f"v_pk_fma_f32 v[{128+2*r}:{129+2*r}], v[{128+2*r}:{129+2*r}], v[96:97], v[98:99] op_sel_hi:[1,0,0]")
for r in range(8): A(f"v_pk_fma_f32 v[{128+2*r}:{129+2*r}], v[{128+2*r}:{129+2*r}], v[{48+2*r}:{49+2*r}], v[{64+2*r}:{65+2*r}]")
row_stats(128)
for r in range(8): A(f"v_pk_fma_f32 v[{128+2*r}:{129+2*r}], v[{128+2*r}:{129+2*r}], v[96:97], v[98:99] op_sel_hi:[1,0,0]")
for r in range(8): A(f"v_cvt_pk_bf16_f32 v{152+r}, v{128+2*r}, v{129+2*r}")
A(f"s_add_u32 s61, s10, {WS_Y}")
st.add("buffer_store_dwordx4 v[152:155], v6, s[48:51], s61 offen sc1", tag="y")
st.add("buffer_store_dwordx4 v[156:159], v7, s[48:51], s61 offen sc1", tag="y")
stamp("ysent")
w_read(OPT.get("nC", 4)); nD = 16 - WS.nd; w_dma(nD, ALL7)
srd(52, 18, 3584)
A(f"""
v_lshrrev_b32 v2, 4, v1
v_lshlrev_b32 v3, 4, v2
buffer_load_dwordx4 v[32:35], v3, s[52:55], s62 offen
buffer_load_dwordx4 v[36:39], v3, s[52:55], s62 offen offset:256
s_lshl_b32 s61, s58, 3
s_add_u32 s61, s61, s59
s_lshl_b32 s9, s61, 7
s_add_u32 s9, s9, {WS_F2}
s_cmp_lg_u32 s35, 0
s_cselect_b32 s9, {OOB}, s9
s_lshl_b32 s24, s58, 10
s_add_u32 s24, s24, {WS_F2}
v_and_b32 v23, 7, v1
v_lshlrev_b32 v23, 7, v23
v_lshrrev_b32 v4, 3, v1
v_lshrrev_b32 v5, 1, v4
v_xor_b32 v5, v5, v1
v_and_b32 v5, 7, v5
v_lshlrev_b32 v5, 4, v5
v_lshl_add_u32 v4, v4, 10, v5
v_xor_b32 v5, 64, v4
v_add_u32 v5, 8192, v5
v_bfe_u32 v15, v1, 1, 3
v_xor_b32 v15, v15, v2
v_lshlrev_b32 v15, 4, v15
v_and_b32 v17, 7, v1
v_lshl_add_u32 v15, v17, 7, v15
v_bfe_u32 v17, v1, 3, 1
v_lshl_add_u32 v15, v17, 13, v15
v_xor_b32 v17, 64, v15
""")
st.need("y")
A("s_barrier"); A("buffer_store_dword v25, v22, s[48:51], s9 offen sc1")
w_read(nD); w_dma(OPT.get("nE", 2), [0, 1, 2, 3])
for r in range(8): A(f"v_lshlrev_b32 v{224+2*r}, 16, v{32+r}\nv_and_b32 v{225+2*r}, 0xffff0000, v{32+r}")
A(f"""
s_lshl_b32 s61, s58, 16
s_lshl_b32 s92, s35, 14
s_add_u32 s61, s61, s92
s_add_u32 s61, s61, {WS_Y}
s_cmp_lg_u32 s35, 0
s_cbranch_scc1 L_np4
""")
keep = (list(st.vm), list(st.lg))
spin("L_pf2", ["buffer_load_dword v240, v23, s[48:51], s24 offen sc1"], "v_cmp_ne_u32 vcc, s34, v240")
A("L_np4:"); st.vm, st.lg = keep
A("s_waitcnt lgkmcnt(0)\ns_barrier")
stamp("f2ok")
for sp in range(8):
    for qh in range(2):
        A(f"s_add_u32 m0, s92, {qh*8192 + sp*1024}")
        st.add(f"buffer_load_dwordx4 v{4+qh}, s[48:51], s61 offen sc1 lds", tag="Y")
    A("s_add_u32 s61, s61, 128")
w_read(OPT.get("nE", 2)); w_dma(20 - WS.nd, [0, 1, 2, 3])
A(f"""
s_mul_i32 s6, s35, {UNIT}
s_add_u32 s6, s6, 65536
s_sub_u32 s60, s6, s63
v_add_u32 v20, s60, v9
""")
st.need("Y")
A("s_barrier")
stamp("Yin")

def yb(n, s, c2): return 96 + (n & 1) * 32 + (s * 2 + c2) * 4
def hacc(half, tile, cb): return 32 + half * 32 + (tile * 4 + cb) * 4
def yreads(n):
    cp, k4 = (n >> 2) & 1, n & 3
    return [f"ds_read_b128 v[{yb(n,s,c2)}:{yb(n,s,c2)+3}], v{15 if s % 2 == 0 else 17} offset:{(cp*2+c2)*16384 + (k4*2+(s>>1))*1024}" for c2 in range(2) for s in range(4)]
C1 = -2 * 0.7978845608028654 * 1.4426950408889634; C2 = C1 * 0.044715
def gelu_ops(half, cb):
    o = []; regs = [hacc(half, t, cb) + r for t in range(2) for r in range(4)]
    for k in range(0, 8, 4):
        x = regs[k:k + 4]; t = [248 + (cb & 1) * 4 + i for i in range(4)]
        o += [f"v_mul_f32 v{t[i]}, v{x[i]}, v{x[i]}" for i in range(4)]
        o += [f"v_fma_f32 v{t[i]}, v{t[i]}, s92, v244" for i in range(4)]
        o += [f"v_mul_f32 v{t[i]}, v{x[i]}, v{t[i]}" for i in range(4)]
        o += [f"v_exp_f32 v{t[i]}, v{t[i]}" for i in range(4)]
        o += [f"v_add_f32 v{t[i]}, 1.0, v{t[i]}" for i in range(4)]
        o += [f"v_rcp_f32 v{t[i]}, v{t[i]}" for i in range(4)]
        o += [f"v_mul_f32 v{x[i]}, v{x[i]}, v{t[i]}" for i in range(4)]
    d = hacc(half, 0, cb)
    o += [f"v_cvt_pk_bf16_f32 v{d+e}, v{regs[2*e]}, v{regs[2*e+1]}" for e in range(4)]
    o.append(f"buffer_store_dwordx4 v[{d}:{d+3}], v16, s[48:51], s{93+half} offen offset:{cb*1024} sc1")
    return o
def flag3(q): return f"buffer_store_dword v25, v22, s[48:51], s95 offen offset:{q*512} sc1"
for t in yreads(0): A(t)
w_read(20 - WS.nr)
A(f"""
s_mov_b32 s92, {f2u(C2)}
v_mov_b32 v244, {f2u(C1)}
s_lshl_b32 s60, s58, 3
s_add_u32 s60, s60, s59
s_lshl_b32 s93, s60, 15
s_lshl_b32 s61, s35, 12
s_add_u32 s93, s93, s61
s_add_u32 s93, s93, {WS_H1}
s_add_u32 s94, s93, 16384
s_lshl_b32 s95, s60, 11
s_lshl_b32 s3, s35, 7
s_add_u32 s95, s95, s3
s_add_u32 s95, s95, {WS_F3}
s_lshl_b32 s24, s58, 14
s_add_u32 s24, s24, s3
s_add_u32 s24, s24, {WS_F3}
s_lshl_b32 s25, s58, 18
s_add_u32 s25, s25, s61
s_add_u32 s25, s25, {WS_H1}
v_and_b32 v23, 7, v1
v_min_u32 v23, 6, v23
v_lshlrev_b32 v23, 11, v23
""")
def w2_ops(ks, r): return [f"s_add_u32 m0, s63, {r*UNIT}" if r < 4 else "s_mov_b32 m0, s6", f"s_mov_b32 s60, {(256*KS2[ks][0] + 128*KS2[ks][1])*1024}"], dma4("s60")
def w2_reads(ks, r): return p8_reads(lambda tp, tile: w2reg(ks, tp, tile), r * UNIT if r < 4 else 0, "v9" if r < 4 else "v20")
M = []; Fl = []; RES = {}
for n in range(16):
    q = n >> 2; half, cp, k4 = q >> 1, q & 1, n & 3; g0 = len(M)
    for tile in range(2):
        for c2 in range(2):
            for s in range(4):
                M.append(mf(hacc(half, tile, cp * 2 + c2), w1reg(half, 4 * k4 + s, tile), yb(n, s, c2), (224 + half * 8 + tile * 4) if (k4 == 0 and s == 0) else None, "v", "a", "v"))
    if n < 15:
        for i, t in enumerate(yreads(n + 1)): Fl.append(F(t, g0 + i, g0 + i + 1, "rd"))
    RES[g0 + 15] = 1
for i in range(5):
    pre, d = w2_ops(4 + i, i); chain_dma(Fl, 9 + 12 * i, pre, d, ("W2", 4 + i), [("R1", 16 + i)] if i < 4 else None, "dma")
for i in range(5):
    g = 128 + 8 + 24 * i
    for k, t in enumerate(w2_reads(4 + i, i)): Fl.append(F(t, g + k // 2, g + 8 + k, "dma", tag=("R2", 4 + i), need=[("W2", 4 + i)] if k == 0 else None))
    pre, d = w2_ops(9 + i, i); chain_dma(Fl, g + 16, pre, d, ("W2", 9 + i), [("R2", 4 + i)], "dma")
for q in range(3):
    for c2 in range(2):
        for t in gelu_ops(q >> 1, (q & 1) * 2 + c2): Fl.append(F(t, 64 * (q + 1) + 3 + 6 * c2, 64 * (q + 2) - 1, ("gelu", c2), tag=("h1", q) if t.startswith("buffer") else None))
    if q: Fl.append(F(flag3(q - 1), 64 * (q + 1) + 40, 64 * (q + 2) - 1, "fl", need=[("h1", q - 1)]))
def chk3(q): return f"buffer_load_dword v{245 + (q&1)}, v23, s[48:51], s24 offen offset:{q*512} sc1"
Fl.append(F(chk3(0), 226, 228, "ck"))
schedule(st, M, Fl, reserve=RES, verbose="G1", slack=400, mem2=("rd", "dma"), minback=0)
stamp("G1")
def hB(Q, k, c2):
    r = (k * 2 + c2) * 4
    return [("a", 80 + r), ("a", 136 + r), ("v", 32 + r), ("a", 80 + r)][Q]
def h_loads(Q):
    o = []
    for k in range(7):
        o.append(f"s_add_u32 s60, s25, {k*32768 + (Q>>1)*16384}")
        for c2 in range(2):
            f, r = hB(Q, k, c2); o.append(f"buffer_load_dwordx4 {f}[{r}:{r+3}], v16, s[48:51], s60 offen offset:{((Q&1)*2+c2)*1024} sc1")
    return o
def have3(q):
    c = f"v_cmp_ne_u32 vcc, s34, v{245 + (q&1)}"
    A(c); A(f"s_cbranch_vccz L_pf3{q}_x")
    keep = list(st.vm); spin(f"L_pf3{q}", [chk3(q)], c); st.vm = keep
    for t in h_loads(q): A(t)
have3(0)
A(chk3(1))
for c2 in range(2):
    for t in gelu_ops(1, 2 + c2): st.add(t, tag=("h1", 3) if t.startswith("buffer") else None)
st.add(flag3(2), need=[("h1", 2)])
have3(1)
stamp("gelu")

def facc(tp, tile, cb): return 96 + (tp * 8 + tile * 4 + cb) * 4
def g2(Q):
    r = []
    for ch in ([0, 1], [2, 3], [4, 5, 6]):
        for tp in range(2):
            for tile in range(2):
                for c2 in range(2):
                    for k in ch:
                        fa, ra = w2reg((Q >> 1) * 7 + k, tp, tile); fb, rb = hB(Q, k, c2)
                        r.append(mf(facc(tp, tile, (Q & 1) * 2 + c2), ra, rb, "0" if (Q < 2 and k == 0) else None, "v", fa, fb))
    return r
Fl = []
for i in range(4):
    for k, t in enumerate(w2_reads(9 + i, i)): Fl.append(F(t, 8 * i + k, 8 * i + k + 1, "rd", need=[("W2", 9 + i)] if k == 0 else None))
Fl.append(F(chk3(2), 36, 37, "fl"))
Fl.append(F(flag3(3), OPT.get("gf3", 50), 55, "fl", need=[("h1", 3)]))
schedule(st, g2(0), Fl)
have3(2)
A(f"""
v_and_b32 v2, 15, v1
v_lshlrev_b32 v2, 10, v2
v_lshrrev_b32 v3, 4, v1
v_lshl_add_u32 v2, v3, 4, v2
v_lshlrev_b32 v4, 4, v3
s_lshl_b32 s92, s58, 16
s_lshl_b32 s60, s35, 14
s_add_u32 s92, s92, s60
s_lshl_b32 s95, s59, 7
s_add_u32 s92, s92, s95
s_add_u32 s60, s92, {WS_X1}
buffer_load_dwordx4 v[224:227], v2, s[48:51], s60 offen sc1
buffer_load_dwordx4 v[228:231], v2, s[48:51], s60 offen offset:64 sc1
""")
srd(52, 22, 1024)
A("buffer_load_dwordx4 v[232:235], v4, s[52:55], s95 offen\nbuffer_load_dwordx4 v[236:239], v4, s[52:55], s95 offen offset:64")
Fl = [F(t, 32 + k, 33 + k, "rd", need=[("W2", 13)] if k == 0 else None) for k, t in enumerate(w2_reads(13, 4))]
Fl.append(F(chk3(3), 46, 47, "fl"))
schedule(st, g2(1), Fl)
stamp("G2a")
schedule(st, g2(2)[:24], [])
have3(3)
schedule(st, g2(2)[24:] + g2(3), [])
stamp("G2")
A(f"""
s_barrier
s_lshl_b32 s60, s35, 12
v_add_u32 v5, s60, v16
s_lshl_b32 s60, s35, 14
v_add_u32 v6, s60, v16
v_lshlrev_b32 v7, 5, v3
s_lshl_b32 s60, s59, 8
s_add_u32 s60, s60, {MODV + 3*2048}
v_add_u32 v7, s60, v7
""")
for cb in range(4):
    for tp in range(2):
        for tile in range(2): A(f"ds_write_b128 v5, v[{facc(tp,tile,cb)}:{facc(tp,tile,cb)+3}] offset:{cb*16384 + (tp*2+tile)*1024}")
for tp in range(2):
    for q in range(2): A(f"ds_read_b128 v[{208+tp*8+4*q}:{211+tp*8+4*q}], v7 offset:{tp*128+q*16}")
for r in range(8):
    A(f"v_lshlrev_b32 v{32+2*r}, 16, v{224+r}\nv_and_b32 v{33+2*r}, 0xffff0000, v{224+r}\nv_lshlrev_b32 v{48+2*r}, 16, v{232+r}\nv_and_b32 v{49+2*r}, 0xffff0000, v{232+r}")
A("s_waitcnt lgkmcnt(0)\ns_barrier")
for src in range(4):
    for n in range(4): A(f"ds_read_b128 v[{96+src*16+n*4}:{99+src*16+n*4}], v6 offset:{src*4096+n*1024}")
for src in range(4):
    for r in range(8): A(f"v_pk_add_f32 v[{48+2*r}:{49+2*r}], v[{48+2*r}:{49+2*r}], v[{96+src*16+2*r}:{97+src*16+2*r}]")
for r in range(8): A(f"v_pk_fma_f32 v[{32+2*r}:{33+2*r}], v[{48+2*r}:{49+2*r}], v[{208+2*r}:{209+2*r}], v[{32+2*r}:{33+2*r}]")
for r in range(8): A(f"v_cvt_pk_bf16_f32 v{64+r}, v{32+2*r}, v{33+2*r}")
srd(52, 28, 2048 * 1024)
A("buffer_store_dwordx4 v[64:67], v2, s[52:55], s92 offen\nbuffer_store_dwordx4 v[68:71], v2, s[52:55], s92 offen offset:64")
if OPT["stamps"]:
    stamp("end")
    A("s_memrealtime s[96:97]\ns_waitcnt lgkmcnt(0)\ns_cmp_lg_u32 s35, 0\ns_cbranch_scc1 L_end\ns_mov_b64 exec, 1")
    A(f"s_lshl_b32 s60, s2, 9\ns_add_u32 s60, s60, {WS_STAMP}\nv_mov_b32 v6, 0")
    A(f"s_mov_b32 s{64+stamp_n[0]-1}, s90")
    lst = [64 + n for n in range(stamp_n[0])] + [98, 96, 15]
    A("v_mov_b32 v3, 0")
    for n, s in enumerate(lst): A(f"v_mov_b32 v2, s{s}\nbuffer_store_dwordx2 v[2:3], v6, s[48:51], s60 offen offset:{n*8}\ns_nop 1")
    if OPT["dbg"] >= 0:
        srd(52, 30, 256)
        A(f"s_cmp_lg_u32 s2, {OPT['dbg']}\ns_cbranch_scc1 L_end")
        sel = [i for i in range(1, stamp_n[0]) if stamp_names[i] not in ("norm", "gelu", "G2a")][:14]
        for n, k in enumerate(sel): A(f"s_sub_u32 s60, s{64+k}, s64\nv_mov_b32 v2, s60\nbuffer_store_dword v2, v6, s[52:55], 0 offen offset:{4+n*4}\ns_nop 1")
        A("s_sub_u32 s60, s96, s98\nv_mov_b32 v2, s60\nbuffer_store_dword v2, v6, s[52:55], 0 offen offset:60")
        print("dbg order:", [stamp_names[k] for k in sel], "realtime")
    open(os.path.splitext(sys.argv[1])[0] + ".names", "w").write(" ".join(stamp_names))
    print("stamps:", len(lst))
st.raw(f"""L_end:
    s_endpgm
L_codeend:
.section .rodata,"a"
.p2align 6
.amdhsa_kernel {NAME}_kernel
  .amdhsa_next_free_vgpr 512
  .amdhsa_next_free_sgpr 102
  .amdhsa_accum_offset 256
  .amdhsa_group_segment_fixed_size 0
  .amdhsa_kernarg_size 120
  .amdhsa_user_sgpr_count 2
  .amdhsa_user_sgpr_kernarg_segment_ptr 1
  .amdhsa_system_sgpr_workgroup_id_x 1
.end_amdhsa_kernel""")
open(sys.argv[1], "w").write(st.text())
print("waits", st.nwait, "nop states", st.nnop)
```

```python
import re
REG = re.compile(r'(?<![\w.])([vas])(?:\[(\d+):(\d+)\]|(\d+))(?![\w\[])')
def regs_of(txt):
    out = []
    for m in REG.finditer(txt):
        k = m.group(1)
        if m.group(2) is not None:
            out += [(k, i) for i in range(int(m.group(2)), int(m.group(3)) + 1)]
        else:
            out.append((k, int(m.group(4))))
    for nm in ("vcc", "exec", "m0"):
        if re.search(r'(?<![\w.])' + nm + r'(_lo|_hi)?(?![\w])', txt): out.append((nm, 0))
    return out
TRANS = ("v_exp_f32", "v_log_f32", "v_rcp_f32", "v_rsq_f32", "v_sqrt_f32")
class I:
    __slots__ = ("txt", "op", "rd", "wr", "kind", "tag", "need", "cost", "mc", "ma")
    def __init__(s, txt, tag=None, need=None):
        s.txt = txt.strip(); s.tag = tag; s.need = need or []
        body = s.txt.split(";")[0].strip()
        parts = body.split(None, 1); s.op = op = parts[0]
        ops = [x.strip() for x in parts[1].split(",")] if len(parts) > 1 else []
        rest = parts[1] if len(parts) > 1 else ""
        rest = re.sub(r'\b(quad_perm|op_sel|op_sel_hi|neg_lo|neg_hi):\[[^\]]*\]', '', rest)
        ops = [x.strip() for x in rest.split(",")] if rest else []
        s.rd = []; s.wr = []; s.mc = []; s.ma = []
        allr = lambda l: [r for o in l for r in regs_of(o)]
        s.cost = 1
        if op.startswith("v_mfma"):
            s.kind = "mfma"; s.wr = allr(ops[:1]); s.ma = allr(ops[1:3]); s.mc = allr(ops[3:4]); s.rd = s.ma + s.mc
        elif op.startswith("buffer_load") or op.startswith("global_load"):
            if re.search(r'\blds\b', rest) or "_lds_" in op:
                s.kind = "dma"; s.rd = allr(ops) + [("m0", 0)]
            else:
                s.kind = "vload"; s.wr = allr(ops[:1]); s.rd = allr(ops[1:])
        elif op.startswith("buffer_store") or op.startswith("global_store"):
            s.kind = "vstore"; s.rd = allr(ops)
        elif op.startswith("buffer_atomic"):
            s.kind = "vload" if "sc0" in rest else "vstore"; s.rd = allr(ops)
            if "sc0" in rest: s.wr = allr(ops[:1])
        elif op.startswith("ds_read") or op.startswith("ds_bpermute") or op.startswith("ds_swizzle"):
            s.kind = "dsr"; s.wr = allr(ops[:1]); s.rd = allr(ops[1:])
        elif op.startswith("ds_write"):
            s.kind = "dsw"; s.rd = allr(ops)
        elif op.startswith("s_load") or op in ("s_memtime", "s_memrealtime"):
            s.kind = "smem"; s.wr = allr(ops[:1]); s.rd = allr(ops[1:])
        elif op in ("s_waitcnt", "s_nop", "s_barrier", "s_sleep", "s_setprio", "s_endpgm", "s_branch") or op.startswith("s_cbranch") or op.endswith(":"):
            s.kind = "ctl"
        elif op.startswith("s_cmp") or op.startswith("s_bitcmp"):
            s.kind = "salu"; s.rd = allr(ops)
        elif op.startswith("s_"):
            s.kind = "salu"; s.wr = allr(ops[:1]); s.rd = allr(ops[1:])
            if "saveexec" in op: s.wr.append(("exec", 0)); s.rd.append(("exec", 0))
        elif op.startswith("v_"):
            s.kind = "valu"
            base = op.replace("_e32", "").replace("_e64", "")
            if base in TRANS: s.kind = "trans"; s.cost = 2
            if "permlane" in op and "swap" in op:
                s.wr = allr(ops[:2]); s.rd = allr(ops[:2])
            elif op.startswith("v_add_co") or op.startswith("v_sub_co") or op.startswith("v_addc_co"):
                s.wr = allr(ops[:2]); s.rd = allr(ops[2:])
            else:
                s.wr = allr(ops[:1]); s.rd = allr(ops[1:])
                if base.startswith("v_fmac") or base.startswith("v_dot2c") or "_dpp" in op or base.startswith("v_writelane"): s.rd += s.wr
        else:
            raise ValueError("unknown op " + txt)
    def is_valu(s): return s.kind in ("valu", "trans")
    def is_mem(s): return s.kind in ("dma", "vload", "vstore", "dsr", "dsw")

class Stream:
    def __init__(s, merge_dist=110):
        s.out = []; s.merge = merge_dist
        s.reset()
        s.nwait = 0; s.nnop = 0; s.slots = 0
    def reset(s):
        s.vm = []
        s.lg = []
        s.smem = False; s.smem_wr = set()
        s.hist = []
        s.n = 0; s.t = 0; s.tm = -100
    def raw(s, txt):
        s.out.append(txt)
    def _emit(s, ins, states=1):
        s.out.append("    " + ins.txt); s.hist.append((ins, states)); s.n += states
        if ins.kind == "mfma":
            s.t = max(s.t, s.tm + (16 if "16x16" in ins.op else 32)); s.tm = s.t; s.t += 8
        else: s.t += 4 * states * ins.cost
        if len(s.hist) > 40: s.hist.pop(0)
    def _wait(s, vm=None, lg=None):
        t = "s_waitcnt"
        if vm is not None:
            vm = min(vm, 63); t += f" vmcnt({vm})"; del s.vm[:max(0, len(s.vm) - vm)]
        if lg is not None:
            lg = min(lg, 15); t += f" lgkmcnt({lg})"; del s.lg[:max(0, len(s.lg) - lg)]
            if lg == 0: s.smem = False; s.smem_wr = set()
        s._emit(I(t)); s.nwait += 1
    def _need_idx(s, q, regs, tags):
        last = -1
        for i, e in enumerate(q):
            if (e["wr"] & regs) or (e["tag"] is not None and e["tag"] in tags): last = i
        return last
    def add(s, ins, tag=None, need=None):
        if isinstance(ins, str): ins = I(ins, tag, need)
        if ins.op == "s_waitcnt":
            m = re.search(r'vmcnt\((\d+)\)', ins.txt); l = re.search(r'lgkmcnt\((\d+)\)', ins.txt)
            s._wait(int(m.group(1)) if m else None, int(l.group(1)) if l else None); return
        touched = set(ins.rd) | set(ins.wr); tags = set(ins.need)
        vi = s._need_idx(s.vm, touched, tags); li = s._need_idx(s.lg, touched, tags)
        vmN = lgN = None
        if vi >= 0: vmN = len(s.vm) - 1 - vi
        if li >= 0:
            j = li
            while j + 1 < len(s.lg) and s.t - s.lg[j + 1]["t"] >= s.merge: j += 1
            lgN = len(s.lg) - 1 - j
            if s.smem: lgN = 0
        if s.smem and (touched & s.smem_wr): lgN = 0
        if vmN is not None or lgN is not None: s._wait(vmN, lgN)
        need = 0; dist = 0
        rd = set(ins.rd); wr = set(ins.wr)
        for p, st in reversed(s.hist):
            req = 0
            pw = set(p.wr)
            if p.kind == "mfma":
                n = 8 if "16x16" in p.op else 12
                if ins.kind == "mfma":
                    if pw & set(ins.ma): req = n
                    elif pw & set(ins.mc) and (set(ins.mc) != pw or p.op != ins.op): req = n - 2
                    elif pw & wr and not (pw & set(ins.mc)) : req = max(req, 0)
                elif ins.is_valu() or ins.is_mem():
                    if pw & (rd | wr): req = n
                if ins.is_valu() and set(p.mc) & wr: req = max(req, 3 if "16x16" in p.op else 7)
            elif p.is_valu():
                vw = {r for r in pw if r[0] in "va"}; sw = {r for r in pw if r[0] in ("s", "vcc")}
                if ins.kind == "mfma" and vw & rd: req = 2
                if p.op.startswith("v_dot2") and vw & (rd | wr) and not (ins.op == p.op and not (vw & set(regs_of(",".join(ins.txt.split(",")[1:]))))): req = max(req, 3)
                if ins.is_valu():
                    if p.kind == "trans" and vw & rd and ins.kind != "trans": req = max(req, 1)
                    if ("_dpp" in ins.op or "permlane" in ins.op) and vw & rd: req = max(req, 2)
                    if ("readfirstlane" in ins.op or "readlane" in ins.op) and vw & rd: req = max(req, 1)
                    if sw & rd: req = max(req, 2)
                    if "sdwa" in p.op and vw & (rd | wr): req = max(req, 1)
                if ins.is_mem() and sw & rd: req = max(req, 5)
                if ins.kind == "salu" and sw & rd: req = max(req, 1)
                if ("exec", 0) in pw: req = max(req, 5)
            elif p.kind == "salu":
                if ("m0", 0) in pw and ins.kind == "dma": req = 1
            elif p.kind == "vstore":
                data = set(p.rd[:4]) if ("x4" in p.op or "x3" in p.op) else set()
                if ins.is_valu() and data & wr: req = 2
                elif data & wr: req = 1
            need = max(need, req - dist)
            dist += st
            if dist >= 14: break
        while need > 0:
            k = min(need, 16); s._emit(I(f"s_nop {k-1}"), k); s.nnop += k; need -= k
        s._emit(ins)
        if ins.kind in ("dma", "vload", "vstore"):
            s.vm.append(dict(tag=ins.tag, wr=set(ins.wr), idx=s.n))
            if len(s.vm) > 63: raise RuntimeError("vmcnt overflow at " + ins.txt)
        elif ins.kind in ("dsr", "dsw"):
            s.lg.append(dict(tag=ins.tag, wr=set(ins.wr), idx=s.n, t=s.t))
        elif ins.kind == "smem":
            s.smem = True; s.smem_wr |= set(ins.wr)
    def A(s, text):
        for l in text.split("\n"):
            l = l.strip()
            if not l or l.startswith(";"): continue
            if l.endswith(":"): s.raw(l); continue
            s.add(l)
    def need(s, *tags):
        tags = set(tags)
        vi = s._need_idx(s.vm, set(), tags); li = s._need_idx(s.lg, set(), tags)
        vmN = len(s.vm) - 1 - vi if vi >= 0 else None
        lgN = len(s.lg) - 1 - li if li >= 0 else None
        if lgN is not None and s.smem: lgN = 0
        if vmN is not None or lgN is not None: s._wait(vmN, lgN)
    def sync(s, vm=True):
        if vm: s._wait(0, 0)
        else: s._wait(None, 0)
        s._emit(I("s_nop 7"), 8)
        s._emit(I("s_nop 3"), 4)
    def text(s): return "\n".join(s.out) + "\n"

class F:
    __slots__ = ("ins", "e", "l", "chain", "order")
    cnt = 0
    def __init__(s, txt, e, l, chain=None, tag=None, need=None):
        if isinstance(txt, str) and "\n" in txt: s.ins = ("group", txt.split("\n"))
        elif isinstance(txt, tuple): s.ins = txt
        else: s.ins = I(txt, tag, need)
        s.e = e; s.l = l; s.chain = chain; F.cnt += 1; s.order = F.cnt
    def cost(s): return 1 if isinstance(s.ins, tuple) else s.ins.cost
    def mem(s): return not isinstance(s.ins, tuple) and s.ins.is_mem()

def schedule(st, mfmas, fillers, cap=2, reserve=None, verbose=None, slack=6, mem2=False, minback=0):
    pend = sorted(fillers, key=lambda f: f.order)
    over = 0
    def emit(f):
        if isinstance(f.ins, tuple):
            if f.ins[0] == "need": st.need(*f.ins[1])
            elif f.ins[0] == "barrier": st.need(*f.ins[1]); st.add("s_barrier")
            elif f.ins[0] == "call": f.ins[1]()
            elif f.ins[0] == "group":
                for t in f.ins[1]: st.add(t)
        else: st.add(f.ins)
    for g in range(-1, len(mfmas)):
        if g >= 0:
            w0 = st.nwait + st.nnop
            st.add(mfmas[g])
        budget = cap if g >= 0 else 0
        if reserve and g in reserve: budget -= reserve[g]
        chosen = []
        blocked = set()
        while True:
            cand = []; seen = set()
            for f in pend:
                if f in chosen: continue
                if f.chain is not None:
                    if f.chain in seen: continue
                    seen.add(f.chain)
                if f.e <= g: cand.append(f)
            due = {}
            for f in pend:
                if f in chosen: continue
                if f.chain is not None: due[f.chain] = min(due.get(f.chain, 1 << 30), f.l)
            def dl(f): return due[f.chain] if f.chain is not None else f.l
            cand.sort(key=lambda f: (dl(f), f.order))
            pick = None
            have_mem = any(c.mem() for c in chosen)
            for f in cand:
                if dl(f) <= g: pick = f; break
            if pick is None and budget > 0:
                fit = [f for f in cand if f.cost() <= budget and not (f.mem() and have_mem)]
                mem = [f for f in fit if f.mem()]
                if mem and not chosen: pick = mem[0]
                elif fit:
                    nm = [f for f in fit if not f.mem()]
                    big = [f for f in nm if f.cost() == 2]
                    if big and not (nm[0].cost() == 1 and dl(nm[0]) <= g + slack): pick = big[0]
                    elif nm: pick = nm[0]
                if pick is None and mem2:
                    m2 = [f for f in cand if f.mem() and f.chain in mem2]
                    backlog = sum(1 for f in pend if f.e <= g and f.cost() == 2 and f not in chosen)
                    if m2 and backlog >= minback: pick = m2[0]
            if pick is None: break
            chosen.append(pick); budget -= pick.cost()
        if budget < 0: over += -budget
        res = []
        rem = list(chosen)
        while rem:
            k = None
            for i, f in enumerate(rem):
                if f.mem() and not any(o.chain == f.chain and f.chain is not None for o in rem[:i]): k = i; break
            if k is None: k = 0
            res.append(rem.pop(k))
        for f in res:
            emit(f); pend.remove(f)
    assert not pend, [(f.ins.txt if not isinstance(f.ins, tuple) else f.ins, f.e, f.l) for f in pend[:5]]
    if verbose: print(f"[sched {verbose}] mfma {len(mfmas)} fillers {len(fillers)} over-budget slots {over}")
```

```python
import sys, os, struct
sys.path.insert(0, os.path.join(os.path.dirname(os.path.abspath(__file__)), "tools"))
from asmgen import *
NAME = "adaLN_cond__sliding_block_cached__mixer_channel_mlp__prompt"
OPT = dict(stamps=0, gx=2, nt_wq=0, nt_wo=0, nt_kv=0, nt_mod=1, nt_x=0, pf_w1=1, pf_w2=1, early=1, dbg=-1)
for a in sys.argv[2:]:
    k, v = a.split("="); OPT[k] = int(v)
def nt(k): return " nt" if OPT["nt_" + k] else ""

KA, KB, VA, VB, XR = 0, 16512, 32896, 49408, 65920
HIMG = KB
RING0, RINGSZ, UNIT = 82304, 16512, 4128
MISC = 148352
MODV = MISC
SILU = MISC + 8192
RED = MISC + 9216
LDS_BYTES = 163840
WS_MOD, WS_F2, WS_F3, WS_F1 = 0x1000, 0x20000, 0x40000, 0x100000
WS_Y, WS_X1, WS_H1, WS_PART = 0x200000, 0x400000, 0x600000, 0x1000000
WS_STAMP = 0xF000000
OOB = 0x10000000
SCALE = 1.4426950408889634 / (128 ** 0.5)
def f2u(x): return struct.unpack("<I", struct.pack("<f", x))[0]
SPIN = 1 << 18

st = Stream()
A = st.A
stamp_n = [0]; stamp_names = []
def stamp(name=""):
    if not OPT["stamps"]: return
    if OPT["stamps"] != 4 and name.startswith("_"): return
    if OPT["stamps"] == 4 and not (name in ("start", "x", "mod", "h", "Q", "end") or name.startswith("_")): return
    if OPT["stamps"] == 3 and not (name in ("start", "h", "Q", "end") or name.startswith("q")): return
    if OPT["stamps"] == 2 and name.startswith("q"): return
    if OPT["stamps"] == 2 and name in ("x", "mod", "f1st", "f1ok", "ysent", "f2ok", "Yin", "gelu", "G2a", "G2"): return
    n = stamp_n[0]; stamp_n[0] += 1; stamp_names.append(name)
    assert n < 26
    if n: st.add(f"s_mov_b32 s{64+n-1}, s90")
    st.add("s_memtime s[90:91]")
def stampF(name, g):
    return [F(("call", lambda: stamp(name)), g, g)] if OPT["stamps"] > 1 else []
def dummyI(t):
    i = I(t); i.wr = []; return i
def dummy(t): st.add(dummyI(t))
def dummyF(t, e, l, chain):
    f = F(t, e, l, chain); f.ins.wr = []; return f
def srd(base, ptr, size):
    A(f"s_mov_b32 s{base}, s{ptr}\ns_mov_b32 s{base+1}, s{ptr+1}\ns_mov_b32 s{base+2}, {size}\ns_mov_b32 s{base+3}, 0x20000")
def mf(d, a, b, c=None, dt="v", at="a", bt="a"):
    cs = f"{dt}[{d}:{d+3}]" if c is None else (c if isinstance(c, str) else f"{dt}[{c}:{c+3}]")
    return f"v_mfma_f32_16x16x32_bf16 {dt}[{d}:{d+3}], {at}[{a}:{a+3}], {bt}[{b}:{b+3}], {cs}"
STG = 192
def stg(u, tile, s): return STG + (u & 1) * 16 + tile * 8 + s * 4
def p16_reads(dst, off, addr="v10"):
    r = []
    for tile in range(2):
        for s in range(2):
            f, d = dst(tile, s)
            for hf in range(2): r.append(f"ds_read_b64_tr_b16 {f}[{d+2*hf}:{d+2*hf+1}], {addr} offset:{off + s*2064 + hf*256 + tile*8}")
    return r
def p8_reads(dst, off, addr="v9"):
    r = []
    for tp in range(2):
        for tile in range(2):
            f, d = dst(tp, tile)
            for hf in range(2): r.append(f"ds_read_b64_tr_b16 {f}[{d+2*hf}:{d+2*hf+1}], {addr} offset:{off + tp*512 + hf*256 + tile*8}")
    return r
def voffs16(stride):
    A(f"""
    v_lshrrev_b32 v2, 5, v1
    v_lshlrev_b32 v2, 4, v2
    v_bfe_u32 v3, v1, 2, 3
    v_add_u32 v2, v2, v3
    v_mul_u32_u24 v2, {stride}, v2
    v_and_b32 v3, 3, v1
    v_lshl_add_u32 v11, v3, 4, v2
    v_add_u32 v12, {8*stride-1032}, v11
    v_add_u32 v13, {32*stride-2064}, v11
    v_add_u32 v14, {40*stride-3096}, v11
    """)
def voffs8(stride):
    A(f"""
    v_bfe_u32 v2, v1, 2, 3
    v_mul_u32_u24 v2, {stride}, v2
    v_lshrrev_b32 v3, 5, v1
    v_lshl_add_u32 v2, v3, 6, v2
    v_and_b32 v3, 3, v1
    v_lshl_add_u32 v11, v3, 4, v2
    v_add_u32 v12, {8*stride-1032}, v11
    v_add_u32 v13, {16*stride-2064}, v11
    v_add_u32 v14, {24*stride-3096}, v11
    """)
def dma4(soff, fl=""): return [f"buffer_load_dwordx4 v{11+i}, s[36:39], {soff} offen offset:{i*1032}{fl} lds" for i in range(4)]
def chain_dma(Fl, g0, pre, dmas, tag, need, chain, late=3):
    if OPT.get("nodma") and tag[0] == "W": dmas = []
    for t in pre: Fl.append(F(t, g0 - 5, g0 + late, chain))
    for i, t in enumerate(dmas): Fl.append(F(t, g0 + i // 2, g0 + late + i, chain, tag=tag, need=need if i == 0 else None))
def spread_dma(Fl, g0, pre, dmas, post, tag, need, step):
    if OPT.get("nodma"): dmas = []
    for t in pre: Fl.append(F(t, g0 - 3, g0, "dma"))
    for i, t in enumerate(dmas): Fl.append(F(t, g0 + i * step, g0 + i * step + 1, "dma", tag=tag, need=need if i == 0 else None))
    for t in post: Fl.append(F(t, g0, g0 + 3 * step + 2, "dma"))
def spin(label, load, cond):
    A(f"s_mov_b32 s3, {SPIN}")
    st.raw(f"{label}:")
    for t in load: st.add(t)
    A("s_sub_u32 s3, s3, 1\ns_waitcnt vmcnt(0)")
    A(cond)
    A(f"s_cmp_eq_u32 s3, 0\ns_cbranch_scc1 {label}_x\ns_cbranch_vccnz {label}")
    st.raw(f"{label}_x:")

st.raw(f"""; adaLN + GQA window attention + channel MLP, one persistent launch, 256 workgroups (one per CU)
; @launch grid=(256,1,1) block=(256,1,1) lds={LDS_BYTES}
.amdgcn_target "amdgcn-amd-amdhsa--gfx950"
.text
.globl {NAME}_kernel
.p2align 8
.type {NAME}_kernel,@function
{NAME}_kernel:
L_start:""")
A("""
s_cmp_ge_u32 s2, 256
s_cbranch_scc1 L_end
s_load_dwordx16 s[4:19], s[0:1], 0
s_load_dwordx8 s[20:27], s[0:1], 64
s_load_dwordx4 s[28:31], s[0:1], 96
s_load_dwordx2 s[32:33], s[0:1], 112
""")
if OPT["stamps"]: A("s_memrealtime s[98:99]")
stamp("start")
GX = OPT["gx"]; lg = {1: 0, 2: 1, 4: 2}[GX]
A(f"""
v_and_b32 v1, 63, v0
v_lshrrev_b32 v2, 6, v0
s_and_b32 s96, s2, 7
s_lshr_b32 s97, s2, 3
v_readfirstlane_b32 s35, v2
s_and_b32 s56, s96, {8//GX - 1}
s_lshl_b32 s56, s56, {lg}
s_and_b32 s60, s97, {GX - 1}
s_add_u32 s56, s56, s60
s_lshr_b32 s57, s96, {3 - lg}
s_lshl_b32 s57, s57, {5 - lg}
s_lshr_b32 s61, s97, {lg}
s_add_u32 s57, s57, s61
s_lshl_b32 s60, s60, {3 - lg}
s_add_u32 s95, s57, s60
s_and_b32 s95, s95, {OPT.get("rotmask", 7)}
s_lshl_b32 s58, s96, 2
s_lshr_b32 s59, s97, 3
s_add_u32 s58, s58, s59
s_and_b32 s59, s97, 7
s_mul_i32 s63, s35, {RINGSZ}
s_add_u32 s63, s63, {RING0}
s_movk_i32 s101, 1023
v_lshlrev_b32 v16, 4, v1
v_lshrrev_b32 v2, 4, v1
v_and_b32 v5, 15, v1
v_mul_u32_u24 v3, 1032, v2
v_lshl_add_u32 v9, v5, 4, v3
v_add_u32 v9, s63, v9
v_and_b32 v3, 1, v2
v_mul_u32_u24 v3, 1032, v3
v_lshl_add_u32 v3, v5, 4, v3
v_lshrrev_b32 v4, 1, v2
v_lshl_add_u32 v10, v4, 9, v3
v_add_u32 v10, s63, v10
v_mul_u32_u24 v4, 2064, v4
v_add_u32 v21, v3, v4
v_add_u32 v21, {VA}, v21
s_lshl_b32 s60, s95, 7
v_lshl_add_u32 v3, v5, 4, s60
v_lshlrev_b32 v2, 10, v2
v_and_or_b32 v124, v3, s101, v2
v_add_u32 v3, 256, v3
v_and_or_b32 v125, v3, s101, v2
v_add_u32 v3, 256, v3
v_and_or_b32 v126, v3, s101, v2
v_add_u32 v3, 256, v3
v_and_or_b32 v127, v3, s101, v2
s_waitcnt lgkmcnt(0)
s_load_dword s34, s[32:33], 0
""")
stamp("_karg")
srd(48, 32, 0x10000000)
KS = OPT.get("ks", 4)
WS_MOD2 = WS_MOD + 4096 * KS
def silu_to_lds(creg):
    A(f"""
    v_lshlrev_b32 v2, 16, v{creg}
    v_and_b32 v3, 0xffff0000, v{creg}
    v_mul_f32 v4, {f2u(-1.4426950408889634)}, v2
    v_mul_f32 v5, {f2u(-1.4426950408889634)}, v3
    v_exp_f32 v4, v4
    v_exp_f32 v5, v5
    v_add_f32 v4, 1.0, v4
    v_add_f32 v5, 1.0, v5
    v_rcp_f32 v4, v4
    v_rcp_f32 v5, v5
    v_mul_f32 v2, v2, v4
    v_mul_f32 v3, v3, v5
    v_cvt_pk_bf16_f32 v2, v2, v3
    v_lshlrev_b32 v3, 2, v0
    v_add_u32 v3, {SILU}, v3
    ds_write_b32 v3, v2
    """)
def publish(ntile, src, lab, dst, tag="s34"):
    W = 64 * ntile
    A(f"""
    v_lshrrev_b32 v2, 4, v1
    v_lshlrev_b32 v2, 5, v2
    s_mul_i32 s60, s35, {W}
    s_add_u32 s60, s60, {RED}
    v_add_u32 v2, s60, v2
    s_mov_b32 exec_lo, 0x00010001
    s_mov_b32 exec_hi, 0x00010001
    """)
    for t in range(ntile): A(f"ds_write_b128 v2, v[{src+4*t}:{src+4*t+3}] offset:{(t>>1)*128 + (t&1)*16}")
    A(f"""
    s_mov_b64 exec, -1
    s_waitcnt lgkmcnt(0)
    s_barrier
    s_cmp_lg_u32 s35, 0
    s_cbranch_scc1 {lab}
    v_lshlrev_b32 v2, 3, v1
    v_add_u32 v3, {RED}, v2
    s_mov_b32 exec_lo, {(1 << (8*ntile)) - 1}
    s_mov_b32 exec_hi, 0
    """)
    for i in range(4): A(f"ds_read_b64 v[{src+2*i}:{src+2*i+1}], v3 offset:{i*W}")
    A(f"""
    v_pk_add_f32 v[{src}:{src+1}], v[{src}:{src+1}], v[{src+2}:{src+3}]
    v_pk_add_f32 v[{src+4}:{src+5}], v[{src+4}:{src+5}], v[{src+6}:{src+7}]
    v_pk_add_f32 v[{src}:{src+1}], v[{src}:{src+1}], v[{src+4}:{src+5}]
    v_cvt_pk_bf16_f32 v{src}, v{src}, v{src+1}
    v_mov_b32 v{src+1}, {tag}
    buffer_store_dwordx2 v[{src}:{src+1}], v2, s[48:51], {dst} offen sc1
    s_mov_b64 exec, -1
    """)
def xr(i, jj): return 32 + (jj * 4 + i) * 4
def x_loads(n0, n1):
    for n in range(n0, n1):
        jj, i = n >> 2, n & 3
        st.add(f"buffer_load_dwordx4 v[{xr(i,jj)}:{xr(i,jj)+3}], v{124+jj}, s[52:55], s{[62, 0, 1, 100][i]} offen{nt('x')}")
def x_setup():
    srd(52, 4, 2048 * 1024)
    A("s_lshl_b32 s62, s57, 16\ns_lshl_b32 s61, s35, 14\ns_add_u32 s62, s62, s61\ns_add_u32 s0, s62, 4096\ns_add_u32 s1, s62, 8192\ns_add_u32 s100, s62, 12288")
NSL = 4 // KS
PX = OPT.get("px", 2)
A(f"s_cmp_lt_u32 s96, {PX}\ns_cselect_b32 s14, s97, 99\ns_cmp_lt_u32 s14, {16*KS//PX}\ns_cbranch_scc1 L_prod")
x_setup(); x_loads(0, 8)
A("s_branch L_join")
join_vm = list(st.vm)
A("L_prod:"); st.vm = []; st.hist = []; st.smem = True; st.smem_wr = {("s", 34)}
srd(52, 24, 1024); srd(36, 26, 512 * 6144)
A("v_lshlrev_b32 v2, 2, v0\nbuffer_load_dword v31, v2, s[52:55], 0 offen")
voffs8(6144)
A(f"""
s_mul_i32 s14, s97, {PX}
s_add_u32 s14, s14, s96
s_lshr_b32 s15, s14, 4
s_and_b32 s14, s14, 15
s_lshl_b32 s3, s15, 2
s_add_u32 s3, s3, s35
s_mul_i32 s60, s3, {32*NSL*6144}
s_lshl_b32 s61, s14, 7
s_add_u32 s60, s60, s61
""")
for k in range(NSL):
    A(f"s_add_u32 m0, s63, {(2+k)*UNIT}")
    for t in dma4("s60", nt("mod")): st.add(t, tag="wm")
    if k + 1 < NSL: A(f"s_add_u32 s60, s60, {32*6144}")
silu_to_lds(31)
A(f"""
v_lshrrev_b32 v2, 4, v1
v_lshlrev_b32 v2, 4, v2
s_mul_i32 s60, s3, {64*NSL}
s_add_u32 s60, s60, {SILU}
v_add_u32 v2, s60, v2
s_waitcnt lgkmcnt(0)
s_barrier
""")
for k in range(NSL): A(f"ds_read_b128 a[{4*k}:{4*k+3}], v2 offset:{k*64}")
x_setup()
st.need("wm")
for k in range(NSL):
    for t in p8_reads(lambda tp, tile: ("a", 16 + k * 16 + tp * 8 + tile * 4), (2 + k) * UNIT): A(t)
x_loads(0, 2)
for k in range(NSL):
    for t in range(4): A(mf(96 + 4 * t, 16 + k * 16 + 4 * t, 4 * k, "0" if k == 0 else None))
x_loads(2, 4)
A(f"s_lshl_b32 s3, s15, 12\ns_lshl_b32 s14, s14, 8\ns_add_u32 s3, s3, s14\ns_add_u32 s3, s3, {WS_MOD}\ns_mul_i32 s15, s34, 0x9E3779B1\ns_add_u32 s15, s15, 0x7F4A7C15")
publish(4, 96, "L_prod_x", "s3", "s15")
A("L_prod_x:"); st.lg = []; st.hist = []
x_loads(4, 8)
A("L_join:"); st.vm = join_vm; st.lg = []; st.hist = []; st.smem = True; st.smem_wr = {("s", 34)}
stamp("_prod")

QST = 8192
A(f"""
s_lshl_b32 s60, s56, 10
s_lshl_b32 s61, s35, 8
s_add_u32 s60, s60, s61
s_add_u32 s36, s10, s60
s_addc_u32 s37, s11, 0
s_sub_u32 s38, {512*8192}, s60
s_mov_b32 s39, 0x20000
s_bfe_u32 s15, s57, 0x10003
s_lshl_b32 s14, s15, 7
s_lshl_b32 s92, s95, 19
s_add_u32 s94, s92, s14
s_xor_b32 s14, s14, 128
s_add_u32 s92, s92, s14
s_lshl_b32 s15, s15, 1
s_mul_i32 s93, s35, {UNIT}
s_sub_u32 s60, s93, s63
v_add_u32 v31, s60, v9
""")
voffs8(QST)
def wq_pre(n):
    r = n % 5; b = "s92" if n & 2 else "s94"
    p = [f"s_add_u32 m0, s63, {r*UNIT}" if r < 4 else "s_mov_b32 m0, s93", f"s_add_u32 s60, {b}, {(n&1)*32*QST}"]
    return p, ([f"s_add_u32 {b}, {b}, {64*QST}", f"s_and_b32 {b}, {b}, {512*QST-1}"] if n & 1 else [])
def wq_ops(n):
    p, q = wq_pre(n); return [(t, None) for t in p] + [(t, ("W", n)) for t in dma4("s60", nt("wq"))] + [(t, None) for t in q]
A(f"""
v_lshrrev_b32 v2, 4, v1
v_and_b32 v5, 15, v1
v_bfe_u32 v6, v1, 2, 2
v_lshlrev_b32 v6, 1, v6
s_movk_i32 s60, 0x78
v_lshrrev_b32 v6, v6, s60
v_and_b32 v6, 3, v6
v_xor_b32 v7, v6, v2
v_lshlrev_b32 v7, 4, v7
v_lshl_add_u32 v15, v5, 6, v7
v_add_u32 v15, {HIMG}, v15
v_bfe_u32 v4, v1, 2, 2
v_lshl_add_u32 v7, v4, 12, v7
v_and_b32 v4, 3, v1
v_lshl_add_u32 v7, v4, 8, v7
""")
A("v_xor_b32 v4, s15, v4")
for s in range(4): A(f"v_xor_b32 v5, {s}, v4\nv_lshl_add_u32 v{17+s}, v5, 6, v7")
A(f"""
s_lshl_b32 s60, s35, 1
s_lshr_b32 s60, 0x78, s60
s_and_b32 s60, s60, 3
v_lshlrev_b32 v3, 2, v2
v_xor_b32 v3, s60, v3
v_and_b32 v4, 15, v1
v_xor_b32 v3, v3, v4
v_lshlrev_b32 v3, 4, v3
v_lshl_add_u32 v3, v2, 8, v3
s_lshl_b32 s60, s35, 10
v_add_u32 v22, s60, v3
v_add_u32 v23, 3072, v22
v_add_u32 v24, 6144, v22
v_add_u32 v25, 9216, v22
v_bfe_u32 v3, v1, 2, 2
v_lshlrev_b32 v3, 8, v3
v_lshl_add_u32 v3, v2, 6, v3
v_and_b32 v4, 3, v1
v_lshl_add_u32 v3, v4, 4, v3
s_lshl_b32 s60, s35, 12
s_add_u32 s60, s60, 64
v_add_u32 v26, s60, v3
v_subrev_u32 v27, 8, v26
v_subrev_u32 v28, 16, v26
v_subrev_u32 v29, 24, v26
v_bfe_u32 v3, v1, 2, 1
v_xor_b32 v3, v3, v2
v_lshlrev_b32 v3, 6, v3
v_bfe_u32 v4, v1, 2, 2
v_lshl_add_u32 v3, v4, 12, v3
s_lshl_b32 s60, s35, 10
s_add_u32 s60, s60, {HIMG}
v_add_u32 v3, s60, v3
v_and_b32 v4, 3, v1
v_lshl_add_u32 v120, v4, 4, v3
v_xor_b32 v121, 32, v120
v_xor_b32 v122, 48, v120
v_xor_b32 v123, 16, v120
v_subrev_u32 v8, {HIMG}, v15
v_xor_b32 v8, 64, v8
v_add_u32 v8, {HIMG}, v8
""")
A(f"""
s_lshl_b32 s60, s56, 19
s_add_u32 s60, s60, {1536*256}
s_add_u32 s40, s6, s60
s_addc_u32 s41, s7, 0
s_mov_b32 s42, {512*256}
s_mov_b32 s43, 0x20000
s_sub_u32 s60, s60, 64
s_add_u32 s44, s8, s60
s_addc_u32 s45, s9, 0
s_mov_b32 s46, {512*256+64}
s_mov_b32 s47, 0x20000
s_lshl_b32 s6, s35, 12
s_mul_i32 s7, s35, 4128
s_add_u32 s7, s7, {VA}
s_lshl_b32 s8, s95, 14
s_mov_b32 s9, s8
""")
def k_ops(c): return ([f"s_add_u32 m0, s6, {KA if c%2==0 else KB}"], [f"buffer_load_dwordx4 v{22+i}, s[40:43], s8 offen offset:{i*1024}{nt('kv')} lds" for i in range(4)], ["s_add_u32 s8, s8, 16384", "s_and_b32 s8, s8, 0x1ffff"])
def v_ops(c): return ([f"s_add_u32 m0, s7, {(c&1)*16512}"], [f"buffer_load_dwordx4 v{26+i}, s[44:47], s9 offen offset:{i*1032}{nt('kv')} lds" for i in range(4)], ["s_add_u32 s9, s9, 16384", "s_and_b32 s9, s9, 0x1ffff"])
def kv_chain(Fl, g0, ops, tag):
    chain_dma(Fl, g0, ops[0], ops[1], tag, None, "dma")
    for t in ops[2]: Fl.append(F(t, g0 + 4, g0 + 10, "dma"))
x_loads(8, 16)

for i in range(4): A(f"v_mov_b32 v{112+2*i}, 0\nv_mov_b32 v{104+2*i}, 0")
A("v_mov_b32 v7, 0x3f803f80")
stamp("_issued")
def trickle(n=1):
    while pend and n:
        t, tag = pend.pop(0); st.add(t, tag=tag)
        if t.startswith("buffer") or t.startswith("global"): n -= 1
A(f"v_lshlrev_b32 v30, 4, v0\nv_add_u32 v30, {WS_MOD}, v30")
MC = [96, 100, 2 * 128 - 8, 2 * 128 - 4]
mchk = [f"buffer_load_dwordx4 a[{4*k}:{4*k+3}], v30, s[48:51], {['0', 's10', 's11', 's14'][k]} offen sc1" for k in range(KS)]
for k in range(1, KS): A(f"s_mov_b32 {['0', 's10', 's11', 's14'][k]}, {4096*k}")
for n in range(16):
    jj, i = n >> 2, n & 3
    for e in range(4): A(f"v_dot2c_f32_bf16 v{112+2*i}, v{xr(i,jj)+e}, v7\nv_dot2c_f32_bf16 v{104+2*i}, v{xr(i,jj)+e}, v{xr(i,jj)+e}")
    if n == 0: stamp("_x0")
stamp("x")
for t in mchk: A(t)
pend = wq_ops(0) + wq_ops(1); trickle(4)
for d in ("quad_perm:[1,0,3,2]", "quad_perm:[2,3,0,1]", "row_ror:4", "row_ror:8"):
    for i in range(4): A(f"v_add_f32_dpp v{112+2*i}, v{112+2*i}, v{112+2*i} {d} row_mask:0xf bank_mask:0xf\nv_add_f32_dpp v{104+2*i}, v{104+2*i}, v{104+2*i} {d} row_mask:0xf bank_mask:0xf")
for op in ["v_mul_f32 v{m}, {c512}, v{r}", "v_mul_f32 v{q}, {c512}, v{q}", "v_fma_f32 v{q}, -v{m}, v{m}, v{q}", "v_max_f32 v{q}, 0, v{q}", "v_add_f32 v{q}, {eps}, v{q}",
           "v_rsq_f32 v{r}, v{q}", "v_mul_f32_e64 v{q}, -v{m}, v{r}"]:
    for i in range(4): A(op.format(m=113 + 2 * i, r=112 + 2 * i, q=104 + 2 * i, c512=f2u(1 / 512), eps=f2u(1e-5)))
A(f"""
s_getpc_b64 s[100:101]
L_pc:
s_sub_u32 s100, s100, L_pc-L_start
s_subb_u32 s101, s101, 0
s_lshl_b32 s3, s97, 12
v_lshl_add_u32 v2, v0, 4, s3
v_min_u32 v2, L_codeend-L_start-16, v2
""")
for r in range(64):
    i = (r >> 2) & 3
    A(f"v_lshlrev_b32 v{128+2*r}, 16, v{32+r}\nv_and_b32 v{129+2*r}, 0xffff0000, v{32+r}")
    A(f"v_pk_fma_f32 v[{128+2*r}:{129+2*r}], v[{128+2*r}:{129+2*r}], v[{112+2*i}:{113+2*i}], v[{104+2*i}:{105+2*i}] op_sel_hi:[1,0,0]")
    if r >= OPT.get("rw1", 36) and r % 6 == 0: trickle()
trickle(99)
dummy("global_load_dwordx4 a[248:251], v2, s[100:101]")
stamp("_p6")
A("s_mul_i32 s34, s34, 0x9E3779B1\ns_add_u32 s34, s34, 0x7F4A7C15")
def mod_fetch():
    return "\n".join(f"v_accvgpr_read_b32 v{96+r}, a{r}" for r in range(4 * KS)) + "\nv_cmp_ne_u32 vcc, s34, v97\n" + "".join(f"v_cmp_ne_u32 s[100:101], s34, v{99+2*i}\ns_or_b64 vcc, vcc, s[100:101]\n" for i in range(2 * KS - 1))
A(mod_fetch()); A("s_cbranch_vccz L_pollmod_x")
keep = list(st.vm)
spin("L_pollmod", ["s_sleep 4"] + mchk, mod_fetch())
st.vm = keep
stamp("mod")
A(f"""
s_cmp_ge_u32 s35, 2
s_cselect_b32 s60, 1.0, 0
s_cselect_b32 s3, 2048, 0
s_add_u32 s3, s3, {MODV}
s_mov_b32 s61, {f2u(SCALE)}
""")
for k in range(KS):
    A(f"""v_lshlrev_b32 v2, 16, v{96+4*k}
    v_and_b32 v3, 0xffff0000, v{96+4*k}
    v_lshlrev_b32 v4, 16, v{98+4*k}
    v_and_b32 v5, 0xffff0000, v{98+4*k}""")
    for e in range(4): A(f"v_add_f32 v{112+e}, {'s60' if k == 0 else 'v' + str(112+e)}, v{2+e}")
for e in range(4): A(f"v_mul_f32 v{112+e}, s61, v{112+e}")
A(f"""
s_lshl_b32 s60, s95, 8
v_lshlrev_b32 v2, 4, v0
v_subrev_u32 v2, s60, v2
v_and_b32 v2, 2047, v2
v_add_u32 v2, s3, v2
ds_write_b128 v2, v[112:115]
v_and_b32 v30, 15, v1
v_lshlrev_b32 v30, 5, v30
v_add_u32 v30, {MODV}, v30
s_waitcnt lgkmcnt(0)
s_barrier
""")
stamp("_bar1")
QS = 64
def qstg(U, tp, tile, s): return QS + (U & 1) * 32 + s * 16 + tp * 8 + tile * 4
def q_reads(n):
    r = n % 5
    return p8_reads(lambda tp, tile: ("a", qstg(n >> 1, tp, tile, n & 1)), r * UNIT if r < 4 else 0, "v9" if r < 4 else "v31")
def modreads(jj, b):
    for i in range(4): A(f"ds_read_b128 v[{b+4*i}:{b+4*i+3}], v30 offset:{(i>>1)*2048 + jj*512 + (i&1)*16}")
for jj in range(4): modreads(jj, 32 + 16 * jj)
pend = wq_ops(2) + wq_ops(3) + wq_ops(4)
for n in range(16):
    jj, i = n >> 2, n & 3; b = 32 + 16 * jj; t = 128 + 8 * n; d = 96 + 4 * (n & 3)
    for e in range(4): A(f"v_pk_fma_f32 v[{t+2*e}:{t+2*e+1}], v[{t+2*e}:{t+2*e+1}], v[{b+8+2*e}:{b+9+2*e}], v[{b+2*e}:{b+2*e+1}]")
    for e in range(4): A(f"v_cvt_pk_bf16_f32 v{d+e}, v{t+2*e}, v{t+2*e+1}")
    A(f"ds_write_b128 v{120+i}, v[{d}:{d+3}] offset:{jj*16384 + i*256}")
    if n >= OPT.get("jw", 4): trickle()
stamp("_jloop")
for n in range(2):
    for i, t in enumerate(q_reads(n)): st.add(t, tag=("R", n), need=[("W", n)] if i == 0 else None)
stamp("_w01")
trickle(99)
stamp("_w34")
A("s_waitcnt lgkmcnt(0)\ns_barrier")
def hb(kk, s, cb): return (kk & 1) * 32 + (s * 4 + cb) * 4
for s in range(2):
    for cb in range(4): A(f"ds_read_b128 a[{hb(0,s,cb)}:{hb(0,s,cb)+3}], {'v8' if s else 'v15'} offset:{(s*4+cb)*1024}")
stamp("h")

def qacc(tp, tile, cb): return 128 + (tp * 8 + tile * 4 + cb) * 4
def qop(s, cb): return 32 + (s * 4 + cb) * 4
M = []; Fl = []; RES = {}; HBAR = 46
for U in range(16):
    kk, h2 = U >> 1, U & 1
    g0 = len(M)
    for tp in range(2):
        for tile in range(2):
            for cb in range(4):
                for s in range(2):
                    M.append(mf(qacc(2 * h2 + tp, tile, cb), qstg(U, tp, tile, s), hb(kk, s, cb), "0" if (kk == 0 and s == 0) else None))
    for s in range(2):
        n = 2 * U + 2 + s; g = g0 + 16 * s + (10 if n == 2 else 4 if n == 3 else 0)
        def refill(n, g, step):
            m = n + 5
            if m >= 32: return
            p, q = wq_pre(m)
            spread_dma(Fl, g, p, dma4("s60", nt("wq")), q, ("W", m), [("R", n)], step)
        if U == 0 and s == 0: refill(0, 3, 2); refill(1, 11, 2)
        if n < 32:
            for i, t in enumerate(q_reads(n)): Fl.append(F(t, g + i, g + i + 1, "rd", tag=("R", n), need=[("W", n)] if i == 0 else None))
            refill(n, g + 11, 4 if n > 4 else 2 if n == 2 else 3)
    RES[g0 + 31] = 1
    if U: Fl += stampF(f"q{U}", g0)
    if kk < 7:
        for i in range(4):
            n = 4 * h2 + i; s, cb = n >> 2, n & 3
            Fl.append(F(f"ds_read_b128 a[{hb(kk+1,s,cb)}:{hb(kk+1,s,cb)+3}], {'v8' if s else 'v15'} offset:{((kk+1)*8+n)*1024}", g0 + 8 + (i & 1) + 16 * (i >> 1), g0 + 12 + (i & 1) + 16 * (i >> 1), "hb", tag=("HB", kk + 1)))
    if U == 4:
        Fl.append(F("s_add_u32 s61, s8, s6", g0 + 20, g0 + 26, "kpf"))
        for i in range(4): Fl.append(dummyF(f"buffer_load_dwordx4 a[244:247], v16, s[40:43], s61 offen offset:{i*1024}", g0 + 26 + 8 * i, g0 + 30 + 8 * i, "kpf"))
    if kk == 7:
        for tp in range(2):
            T = 2 * h2 + tp - 1
            if T >= 0:
                for cb in range(4):
                    for e in range(4):
                        src = qacc(T, e >> 1, cb) + 2 * (e & 1)
                        Fl.append(F(f"v_cvt_pk_bf16_f32 v{qop(T,cb)+e}, v{src}, v{src+1}", g0 + 16 * tp + 2, g0 + 16 * tp + 15, "cv"))
        if h2 == 0:
            Fl.append(F(("barrier", [("HB", 7), ("R", 29)]), g0 + 1, g0 + 1, "dma"))
            kv_chain(Fl, g0 + 8, k_ops(0), ("K", 0))
            kv_chain(Fl, g0 + 24, k_ops(1), ("K", 1))
        else:
            kv_chain(Fl, g0 + 1, v_ops(0), ("V", 0))
            Fl.append(F(("barrier", [("K", 0)]), g0 + 15, g0 + 15, "rd"))
            for s in range(4): Fl.append(F(f"ds_read_b128 a[{STG+s*4}:{STG+s*4+3}], v{17+s} offset:{KA}", g0 + 16 + s, g0 + 22, "rd", tag=("R", "k00")))
schedule(st, M, Fl, reserve=RES, verbose="Q")
for cb in range(4):
    for e in range(4):
        src = qacc(3, e >> 1, cb) + 2 * (e & 1)
        A(f"v_cvt_pk_bf16_f32 v{qop(3,cb)+e}, v{src}, v{src+1}")
stamp("Q")
voffs16(1024)
A(f"""
s_lshl_b32 s60, s56, 19
s_lshl_b32 s61, s35, {OPT.get("wocol", 6)}
s_and_b32 s61, s61, {OPT.get("womask", 1023)}
s_add_u32 s60, s60, s61
s_add_u32 s36, s12, s60
s_addc_u32 s37, s13, 0
s_sub_u32 s38, {4096*1024}, s60
v_mov_b32 v2, 0x3f803f80
v_accvgpr_write_b32 a240, v2
v_accvgpr_write_b32 a241, v2
v_accvgpr_write_b32 a242, v2
v_accvgpr_write_b32 a243, v2
s_and_b32 s14, s57, {OPT.get("rotmask", 7) & 3}
s_lshl_b32 s92, s14, 8
s_bfe_u32 s15, s57, 0x20002
s_and_b32 s15, s15, {OPT.get("rotmask", 7) & 3}
s_lshl_b32 s94, s15, 17
s_mul_i32 s93, s97, 57344
s_mul_i32 s60, s35, 14336
s_add_u32 s93, s93, s60
""")
srd(52, 16, 512 * 3584)
def wo_pre(u, m0):
    p = [m0, "s_add_u32 s60, s92, s94", "s_add_u32 s94, s94, 0x10000", "s_and_b32 s94, s94, 0x7ffff"]
    return p
def wo_chain(Fl, g, u, m0, need, late=3):
    p = wo_pre(u, m0)
    chain_dma(Fl, g, p[:2], dma4("s60", nt("wo")), ("W", u), need, "dma", late)
    post = p[2:] + (["s_add_u32 s92, s92, 256", "s_and_b32 s92, s92, 1023"] if (u & 7) == 7 else [])
    for t in post: Fl.append(F(t, g, g + late + 8, "dma"))

def S(kt, cb): return 96 + (kt * 4 + cb) * 4
def P(c, s, cb): return 160 + (c & 1) * 32 + (s * 4 + cb) * 4
def CI(cb): return 224 + 4 * cb
def oacc(tp, tile, cb): return (tp * 8 + tile * 4 + cb) * 4
def woreg(u, tile, s):
    o = tile * 8 + s * 4
    return ("a", 128 + u * 16 + o) if u < 4 else (("v", 128 + (u - 4) * 16 + o) if u < 6 else ("v", 192 + (u - 6) * 16 + o))
LS = 224
units = [("QK", 0, k) for k in range(4)]
for c in range(7): units += [("QK", c + 1, k) for k in range(4)] + [("L", c, 0)] + [("PV", c, k) for k in range(4)]
units += [("L", 7, 0)] + [("PV", 7, k) for k in range(4)]
M = []; Fl = []; RES = {}; G = {}; buf = {}
staged = [u for u in units if u[0] != "L"]
for n, u in enumerate(staged): buf[u] = n
pos = 0
for un in units: G[un] = pos; pos += 8 if un[0] == "L" else 16
NATT = pos
def oop(dp, cb): return 32 + (dp * 4 + cb) * 4
pf = []
LP0 = 2
if OPT["pf_w1"]: pf += [("w1", i) for i in range(14)]
if OPT["pf_w2"]: pf += [("w2", i) for i in range(14)]
for un in units:
    ty, c, k = un; g0 = len(M); assert g0 == G[un]
    if ty == "QK":
        b = STG + (buf[un] & 1) * 16
        for cb in range(4):
            for s in range(4):
                M.append(mf(S(k, cb), b + 4 * s, qop(s, cb), None if s else ("0" if (c == 0 and k < 2) else CI(cb)), "v", "a", "v"))
    elif ty == "L":
        for cb in range(4):
            for s in range(2): M.append(mf(LS + 4 * cb, 240, P(c, s, cb), "0" if (c == 0 and s == 0) else None, "a", "a", "v"))
    else:
        for tile in range(2):
            for cb in range(4):
                for s in range(2): M.append(mf(oacc(k, tile, cb), stg(buf[un], tile, s), P(c, s, cb), "0" if (c == 0 and s == 0) else None, "a", "a", "v"))
    if ty == "L": continue
    RES[g0 + 15] = 1
    bar = None
    if (ty, c, k) == ("QK", 0, 3): bar = 1
    if ty == "PV" and k == 3 and c < 7: bar = c + 2
    rg = g0
    if bar is not None:
        Fl.append(F(("barrier", [("R", un), ("V", bar - 1)] + ([("K", bar)] if bar <= 7 else [])), g0 + 1, g0 + 1, "rd")); rg = g0 + 2
        Fl += stampF(f"B{bar}", g0 + 2)
        gk = g0 + 20
        if bar + 1 <= 7: kv_chain(Fl, gk, k_ops(bar + 1), ("K", bar + 1))
        if bar <= 7: kv_chain(Fl, gk + 16, v_ops(bar), ("V", bar))
        plan = {1: [("d", 0)], 2: [("d", 1), ("d", 2)], 3: [("d", 3), ("r", 0)], 4: [("r", 1), ("d", 4)], 5: [("r", 2), ("d", 5)], 6: [("r", 3), ("d", 6)], 7: [("d", 7)]}.get(bar, [])
        gw = gk + 32
        for kind, u in plan:
            if kind == "d": wo_chain(Fl, gw, u, f"s_add_u32 m0, s63, {(u&3)*UNIT}", [("RW", u - 4)] if u >= 4 else None, late=8); gw += 12
            else:
                for i, t in enumerate(p16_reads(lambda tile, s: woreg(u, tile, s), u * UNIT)):
                    Fl.append(F(t, gw + i // 2, gw + 10 + i, "dma", tag=("RW", u), need=[("W", u)] if i == 0 else None))
                gw += 12
        if bar <= 7:
            for n in range(4):
                if not pf: break
                nm, i = pf.pop(0)
                if nm == "w2" and i == 0:
                    for t in ["s_mov_b32 s52, s20", "s_mov_b32 s53, s21"] + (["s_sub_u32 s93, s93, 12288"] if OPT["pf_w1"] else []): Fl.append(F(t, gw, gw + 30, "dma"))
                if i and i % 4 == 0: Fl.append(F("s_add_u32 s93, s93, 4096", gw, gw + 30, "dma"))
                Fl.append(dummyF(f"buffer_load_dwordx4 a[244:247], v16, s[52:55], s93 offen offset:{(i%4)*1024}", gw, gw + 30, "dma"))
    i = staged.index(un)
    if i + 1 < len(staged):
        nx = staged[i + 1]; nb = STG + (buf[nx] & 1) * 16
        if nx[0] == "QK":
            for s in range(4):
                Fl.append(F(f"ds_read_b128 a[{nb+4*s}:{nb+4*s+3}], v{17+s} offset:{(KA if nx[1]%2==0 else KB) + nx[2]*1024}", rg + s // 2, rg + 4 + s, "rd", tag=("R", nx)))
        else:
            i2 = 0
            for tile in range(2):
                for s in range(2):
                    for hf in range(2):
                        d = stg(buf[nx], tile, s) + 2 * hf
                        Fl.append(F(f"ds_read_b64_tr_b16 a[{d}:{d+1}], v21 offset:{(nx[1]&1)*16512 + (4*s+2*hf)*2064 + nx[2]*256 + tile*8}", rg + i2 // 2, rg + 1 + i2, "rd", tag=("R", nx))); i2 += 1
g1 = G[("QK", 0, 1)]
for cb in range(4):
    s0 = S(0, cb); t = 240 + 2 * cb; ch = ("mx", cb); e = g1 + max(0, 4 * cb - 8); l = g1 + 14 + 4 * cb
    for txt in [f"v_max3_f32 v{t}, v{s0}, v{s0+1}, v{s0+2}", f"v_max_f32 v{t}, v{t}, v{s0+3}", f"v_mov_b32 v{t+1}, v{t}",
                f"v_permlane16_swap_b32 v{t}, v{t+1}", f"v_max_f32 v{t}, v{t}, v{t+1}", f"v_mov_b32 v{t+1}, v{t}",
                f"v_permlane32_swap_b32 v{t}, v{t+1}", f"v_max_f32 v{t}, v{t}, v{t+1}"] + [f"v_sub_f32 v{CI(cb)+i}, 0, v{t}" for i in range(4)]:
        Fl.append(F(txt, e, l, ch))
for c in range(8):
    for kt in range(4):
        gq = G[("QK", c, kt)]
        for cb in range(4):
            e = gq + 4 * cb + 3 + 5
            l = (G[("QK", c + 1, kt)] + 4 * cb - 1) if c < 7 else G[("L", 7, 0)] - 2
            l = min(l, G[("L", c, 0)] - 2)
            ch = ("sm", kt, cb); s0 = S(kt, cb)
            if c == 0 and kt < 2:
                ch = ("mx", cb)
                for i in range(4): Fl.append(F(f"v_add_f32 v{s0+i}, v{CI(cb)}, v{s0+i}", e, l, ch))
            for i in range(4): Fl.append(F(f"v_exp_f32 v{s0+i}, v{s0+i}", e, l, ch))
            for i in range(2): Fl.append(F(f"v_cvt_pk_bf16_f32 v{P(c,kt>>1,cb)+2*(kt&1)+i}, v{s0+2*i}, v{s0+2*i+1}", e, l, ch))
gL = G[("L", 7, 0)]
for cb in range(4): Fl.append(F(f"v_accvgpr_read_b32 v{240+cb}, a{LS+4*cb}", gL + 12, gL + 20, "nrm"))
for cb in range(4): Fl.append(F(f"v_rcp_f32 v{244+2*cb}, v{240+cb}", gL + 12, gL + 24, "nrm"))
def norm_ops(dp, cb, pk):
    t = 160 + cb * 8; o = []
    for tile in range(2):
        for r in range(4): o.append(f"v_accvgpr_read_b32 v{t+4*tile+r}, a{oacc(dp,tile,cb)+r}")
    if pk: o += [f"v_pk_mul_f32 v[{t+2*r}:{t+2*r+1}], v[{t+2*r}:{t+2*r+1}], v[{244+2*cb}:{245+2*cb}] op_sel_hi:[1,0]" for r in range(4)]
    else: o += [f"v_mul_f32 v{t+r}, v{244+2*cb}, v{t+r}" for r in range(8)]
    d = 96 + ((dp * 4 + cb) & 3) * 4
    o += [f"v_cvt_pk_bf16_f32 v{d+e}, v{t+2*e}, v{t+2*e+1}" for e in range(4)]
    o.append(f"ds_write_b128 v30, v[{d}:{d+3}] offset:{(dp*4+cb)*1024}")
    return o
def blk_addr(dst, src, add):
    A(f"""s_add_u32 s60, {src}, {add}
    s_and_b32 s60, s60, 3
    s_mul_i32 s61, s60, {KB}
    s_cmp_eq_u32 s60, 2
    s_cselect_b32 s61, {VA}, s61
    s_cmp_eq_u32 s60, 3
    s_cselect_b32 s61, {XR}, s61
    v_add_u32 v{dst}, s61, v16""")
blk_addr(30, "s35", 0)
for i in range(4): blk_addr(2 + i, "s15", i)
A(f"""
s_sub_u32 s3, s96, {LP0}
s_lshl_b32 s60, s3, 5
s_add_u32 s60, s60, s97
s_lshl_b32 s60, s60, 6
s_mul_i32 s61, s35, {128*6144}
s_add_u32 s60, s60, s61
s_add_u32 s60, s60, 2048
s_cmp_lt_u32 s3, 2
s_cselect_b32 s60, s60, {OOB}
v_mul_u32_u24 v252, 6144, v1
v_add_u32 v252, s60, v252
v_add_u32 v253, {64*6144}, v252
s_mov_b32 s13, s2
s_mov_b32 s3, 0x20000
""")
for i in range(2): Fl.append(dummyF(f"buffer_load_dword a244, v{252+i}, s[0:3], 0 offen", G[("PV", 5 + i, 1)] + 9, G[("PV", 5 + i, 1)] + 14, "dma"))
A("s_cmp_lg_u32 s35, 0\ns_cselect_b32 s60, 256, 0\nv_cmp_eq_u32 vcc, 0, v1\nv_mov_b32 v254, 256\nv_mov_b32 v255, s60\nv_cndmask_b32 v254, v254, v255, vcc\nv_accvgpr_write_b32 a252, 1")
ga = G[("PV", 0, 0)] + 9
for t in ["s_mov_b32 s0, s30", "s_mov_b32 s1, s31", "s_movk_i32 s2, 256"]: Fl.append(F(t, ga - 9, ga, "at"))
Fl.append(dummyF("buffer_atomic_add a252, v254, s[0:3], 0 offen sc0 sc1", ga, ga + 3, "at"))
for t in ["s_mov_b32 s0, s26", "s_mov_b32 s1, s27", f"s_mov_b32 s2, {512*6144}"]: Fl.append(F(t, ga + 4, ga + 40, "at"))
NHID = 4
grp = [(dp, cb) for dp in range(4) for cb in range(4)]
for dp, cb in grp[:NHID]:
    for t in norm_ops(dp, cb, False): Fl.append(F(t, G[("PV", 7, dp)] + 16 + 3, NATT - 1, "nrm"))
for u in (4, 5):
    g = gL + 1 + (u - 4) * 30
    for i, t in enumerate(p16_reads(lambda tile, s: woreg(u, tile, s), (u & 3) * UNIT)): Fl.append(F(t, g + i, g + 12 + i, "dma", tag=("RW", u), need=[("W", u)] if i == 0 else None))
    wo_chain(Fl, g + 18, u + 4, f"s_add_u32 m0, s63, {(u&3)*UNIT}", [("RW", u)], late=6)
schedule(st, M, Fl, reserve=RES, verbose="attn", mem2=("rd", "dma"), minback=OPT.get("minback", 10))
stamp("attn")
for u in (6, 7):
    for i, t in enumerate(p16_reads(lambda tile, s: woreg(u, tile, s), (u & 3) * UNIT)): st.add(t, tag=("RW", u), need=[("W", u)] if i == 0 else None)
for n, (dp, cb) in enumerate(grp[NHID:]):
    for t in norm_ops(dp, cb, True): st.add(t, tag="ow" if t.startswith("ds_write") else None)

A("s_mov_b32 s2, s13")
def oB(i, cb): return ("v", 32 + (i * 4 + cb) * 4) if i < 4 else ("a", ((i - 4) * 4 + cb) * 4)
def pacc(i, tile, cb): return 96 + (i & 1) * 32 + (tile * 4 + cb) * 4
def oB_read(ks, cb):
    f, r = oB(ks, cb); return f"ds_read_b128 {f}[{r}:{r+3}], v{2 + (ks>>2)} offset:{((ks&3)*4+cb)*1024}"
A(f"""
v_and_b32 v6, 15, v1
v_lshrrev_b32 v7, 1, v6
v_and_b32 v6, 1, v1
v_lshrrev_b32 v8, 4, v1
v_lshlrev_b32 v31, 11, v7
v_lshl_add_u32 v31, v6, 4, v31
v_lshl_add_u32 v31, v8, 5, v31
v_lshrrev_b32 v7, 3, v1
v_and_b32 v8, 7, v1
v_lshlrev_b32 v23, 9, v8
v_and_b32 v7, 3, v7
v_lshl_add_u32 v23, v7, 7, v23
v_and_b32 v22, 31, v1
v_lshlrev_b32 v24, 4, v22
v_lshlrev_b32 v22, 2, v22
v_lshrrev_b32 v8, 5, v1
v_lshl_add_u32 v24, v8, 16, v24
v_mov_b32 v25, s34
s_mul_i32 s6, s35, {UNIT}
s_add_u32 s6, s6, {VB}
s_sub_u32 s60, s6, s63
v_add_u32 v20, s60, v10
s_mul_i32 s7, s35, {2*UNIT}
s_sub_u32 s60, s7, s63
v_add_u32 v21, s60, v10
s_mul_i32 s62, s35, {UNIT}
s_add_u32 s62, s62, {8*UNIT}
s_cmp_eq_u32 s35, 3
s_cselect_b32 s62, {MISC+8192}, s62
s_sub_u32 s60, s62, s63
v_add_u32 v15, s60, v10
s_lshl_b32 s61, s57, 3
s_add_u32 s61, s61, s56
s_lshl_b32 s93, s61, 16
s_lshl_b32 s60, s35, 7
s_add_u32 s93, s93, s60
s_add_u32 s93, s93, {WS_PART}
s_lshl_b32 s8, s14, 9
s_lshl_b32 s9, s61, 9
s_add_u32 s9, s9, {WS_F1}
s_cmp_lg_u32 s35, 0
s_cselect_b32 s9, {OOB}, s9
s_lshl_b32 s0, s58, 12
s_add_u32 s0, s0, {WS_F1}
s_lshl_b32 s1, s58, 19
s_lshl_b32 s60, s59, 13
s_add_u32 s1, s1, s60
s_lshl_b32 s60, s35, 11
s_add_u32 s1, s1, s60
s_add_u32 s1, s1, {WS_PART}
s_and_b32 s12, s58, {OPT.get("rotmask", 7) & 3}
s_lshl_b32 s12, s12, 9
s_mov_b32 s15, 0
""")
A(f"""
v_lshrrev_b32 v6, 5, v1
s_and_b32 s60, s58, {OPT.get("rotmask", 7) & 3}
v_add_u32 v6, s60, v6
v_add_u32 v7, 2, v6
v_and_b32 v6, 3, v6
v_and_b32 v7, 3, v7
v_and_b32 v8, 30, v1
v_lshlrev_b32 v8, 3, v8
v_lshl_add_u32 v6, v6, 8, v8
v_lshl_add_u32 v7, v7, 8, v8
v_lshlrev_b32 v240, 1, v6
v_lshlrev_b32 v241, 1, v7
v_add_u32 v242, {MODV}, v240
v_add_u32 v243, {MODV}, v241
v_and_b32 v8, 1, v1
v_lshl_add_u32 v6, v8, 10, v6
v_lshl_add_u32 v7, v8, 10, v7
v_lshlrev_b32 v8, 4, v0
v_add_u32 v8, {WS_MOD2}, v8
s_lshl_b32 s10, s58, 16
s_lshl_b32 s60, s59, 13
s_add_u32 s10, s10, s60
s_lshl_b32 s60, s35, 11
s_add_u32 s10, s10, s60
""")
srd(52, 4, 2048 * 1024)
st.need("ow"); A("s_barrier")
for ks in range(2):
    for cb in range(4): A(oB_read(ks, cb))
stamp("norm")
def slot_m0(r): return f"s_add_u32 m0, s63, {r*UNIT}" if r < 4 else {4: "s_mov_b32 m0, s6", 5: "s_mov_b32 m0, s7", 6: f"s_add_u32 m0, s7, {UNIT}", 7: "s_mov_b32 m0, s62"}[r]
def slot_rd(r): return (r * UNIT, "v10") if r < 4 else {4: (0, "v20"), 5: (0, "v21"), 6: (UNIT, "v21"), 7: (0, "v15")}[r]
def part_cvt(n): return [f"v_cvt_pk_bf16_f32 v{224+4*cb+k}, v{pacc(n,k>>1,cb)+2*(k&1)}, v{pacc(n,k>>1,cb)+2*(k&1)+1}" for cb in range(4) for k in range(4)]
def flag1(n): return f"buffer_store_dword v25, v22, s[48:51], s9 offen offset:{n*128} sc1"
def pread(n, soff): return [f"buffer_load_dwordx4 v[{160+16*n+4*gp}:{163+16*n+4*gp}], v24, s[48:51], {soff[gp]} offen sc1" for gp in range(4)]
M = []; Fl = []; RES = {}
slot = {u: u & 7 for u in range(8, 32)}
ld = [(10, 2, 1, None), (11, 3, 17, None), (12, 4, 33, None), (13, 5, 4 * 16 + 11, None), (14, 6, 5 * 16 + 11, None), (15, 7, 6 * 16 + 11, None)] + [(u, u & 7, (u - 9) * 16 + 11, u - 8) for u in range(16, 32)]
for u in range(32):
    n, kk = u >> 3, u & 7; g0 = len(M)
    for tile in range(2):
        for cb in range(4):
            for s in range(2):
                f, r = oB(2 * kk + s, cb)
                fa, ra = woreg(u, tile, s) if u < 8 else ("a", stg(u, tile, s))
                M.append(mf(pacc(n, tile, cb), ra, r, "0" if (kk == 0 and s == 0) else None, "v", fa, f))
    if 8 <= u + 1 < 32:
        off, ad = slot_rd(slot[u + 1])
        for i, t in enumerate(p16_reads(lambda tile, s: ("a", stg(u + 1, tile, s)), off, ad)):
            Fl.append(F(t, g0 + i, g0 + i + 1, "rd", tag=("R", u + 1), need=[("W", u + 1)] if i == 0 else None))
    RES[g0 + 15] = 1
bsched = {0: [2, 3, 4, 5], 1: [6, 7, 8, 9], 2: [10, 11, 12, 13], 3: [14], 4: [15]}
for u, kss in bsched.items():
    i = 0
    for ks in kss:
        for cb in range(4):
            e = u * 16 + i; Fl.append(F(oB_read(ks, cb), e, e + 1, "ob", tag="OB")); i += 1
for u, r, g, nd in ld:
    if u == 13: Fl.append(F(("barrier", ["OB"]), 4 * 16 + 9, 4 * 16 + 9, "dma"))
    p = wo_pre(u, slot_m0(r))
    spread_dma(Fl, g, p[:2], dma4("s60", nt("wo")), p[2:] + (["s_add_u32 s92, s92, 256", "s_and_b32 s92, s92, 1023"] if (u & 7) == 7 else []), ("W", u), [("R", nd)] if nd is not None else None, 4)
for n in range(3):
    g = (8 * n + 8) * 16
    Fl.append(F("s_add_u32 s61, s93, s8", g + 2, g + 8, "po"))
    for cb in range(4):
        for t in part_cvt(n)[4 * cb:4 * cb + 4]: Fl.append(F(t, g + 2, g + 9 + 4 * cb, "po"))
        if not OPT.get("nopart"): Fl.append(F(f"buffer_store_dwordx4 v[{224+4*cb}:{227+4*cb}], v31, s[48:51], s61 offen sc1", g + 9 + 4 * cb, g + 10 + 4 * cb, "po", tag=("part", n)))
        Fl.append(F("s_add_u32 s61, s61, 16384" if cb < 3 else "s_add_u32 s8, s8, 512", g + 9, g + 12 + 4 * cb, "po"))
    Fl.append(F("s_and_b32 s8, s8, 2047", g + 20, g + 30, "po"))
    gf = g + OPT.get("gf", 6 * 16 + 9)
    Fl.append(F(("barrier", [("part", n), ("R", 31)]), gf, gf, "po"))
    Fl.append(F(flag1(n), gf + 1, gf + 1, "po"))
Fl.append(F("buffer_load_dword v240, v23, s[48:51], s0 offen sc1", 511, 511, "po"))
for i, t in enumerate(["buffer_load_dwordx4 v[244:247], v6, s[52:55], s10 offen", "buffer_load_dwordx4 v[248:251], v7, s[52:55], s10 offen"]):
    Fl.append(F(t, 28 * 16 + 9 + i, 28 * 16 + 14 + i, "sm"))
lp = ["s_mov_b32 s40, s26", "s_mov_b32 s41, s27", f"s_mov_b32 s42, {512*6144}", "s_mov_b32 s44, s24", "s_mov_b32 s45, s25", "s_mov_b32 s46, 1024",
      f"s_sub_u32 s3, s96, {LP0}", "s_lshl_b32 s14, s3, 5", "s_add_u32 s14, s14, s97", "s_lshl_b32 s101, s14, 6", f"s_mul_i32 s100, s35, {128*6144}", "s_add_u32 s101, s101, s100",
      "s_add_u32 s101, s101, 2048", f"s_cmp_lt_u32 s3, 2\ns_cselect_b32 s11, s101, {OOB}\ns_cselect_b32 s3, 0, {OOB}",
      "v_lshrrev_b32 v2, 5, v1", "v_lshlrev_b32 v2, 4, v2", "v_bfe_u32 v3, v1, 2, 3", "v_add_u32 v2, v2, v3", "v_mul_u32_u24 v2, 6144, v2", "v_and_b32 v3, 3, v1",
      "v_lshl_add_u32 v2, v3, 4, v2", f"v_add_u32 v3, {8*6144-1032}, v2", f"v_add_u32 v4, {32*6144-2064}, v2", f"v_add_u32 v5, {40*6144-3096}, v2", "v_lshlrev_b32 v17, 2, v0",
      "buffer_load_dword v17, v17, s[44:47], s3 offen"]
g = 25 * 16
for t in lp: Fl.append(F(t, g, g + 30, "dma"))
for k in range(2):
    spread_dma(Fl, g + 32 + 12 * k, [f"s_add_u32 m0, s63, {k*UNIT}"], [f"buffer_load_dwordx4 v{2+i}, s[40:43], s11 offen offset:{i*1032} lds" for i in range(4)], [f"s_add_u32 s11, s11, {64*6144}"], "wm", [("R", 24 + k)], 2)
for u in (8, 16, 24): Fl += stampF(f"O{u}", u * 16)
schedule(st, M, Fl, reserve=RES, verbose="O")
for t in part_cvt(3): A(t)
A("s_add_u32 s61, s93, s8")
for cb in range(4):
    st.add(f"buffer_store_dwordx4 v[{224+4*cb}:{227+4*cb}], v31, s[48:51], s61 offen sc1", tag=("part", 3))
    if cb < 3: A("s_add_u32 s61, s61, 16384")
stamp("O")

voffs16(3584)
A(f"""
s_min_u32 s62, s59, 6
s_lshl_b32 s62, s62, 9
s_lshl_b32 s60, s35, 6
s_add_u32 s62, s62, s60
s_add_u32 s36, s16, s62
s_addc_u32 s37, s17, 0
s_sub_u32 s38, {512*3584}, s62
""")
def w1reg(half, s, tile): return ((half * 16 + s) * 2 + tile) * 4
def w2reg(ks, tp, tile):
    o = tp * 8 + tile * 4
    if ks < 4: return ("v", 160 + ks * 16 + o)
    if ks < 9: return ("a", (ks - 4) * 16 + o)
    if ks < 13: return ("a", 192 + (ks - 9) * 16 + o)
    return ("v", 208 + o)
KS2 = [(p, 0) for p in range(7)] + [(p, 1) for p in range(7)]
class WS:
    nd = 0; nr = 0; slot_of = {}; last = {}
def w_dma(n, slots):
    for _ in range(n):
        u = WS.nd; WS.nd += 1
        r = [x for x in slots if WS.last.get(x, -1) < WS.nr][0]
        if u == 16: w2_setup()
        A(slot_m0(r))
        A(f"s_mov_b32 s60, {(u&7)*64*3584 + (u>>3)*256}" if u < 16 else f"s_mov_b32 s60, {(256*KS2[u-16][0] + 128*KS2[u-16][1])*1024}")
        for i, t in enumerate(dma4("s60")): st.add(t, tag=("W1", u), need=[("R1", WS.last[r])] if (i == 0 and r in WS.last) else None)
        WS.slot_of[u] = r; WS.last[r] = u
def w_read(n):
    for _ in range(n):
        u = WS.nr; WS.nr += 1; r = WS.slot_of[u]
        if u < 16:
            off, ad = slot_rd(r); L = p16_reads(lambda tile, s: ("a", w1reg(u >> 3, (u & 7) * 2 + s, tile)), off, ad)
        else:
            assert r < 4; L = p8_reads(lambda tp, tile: w2reg(u - 16, tp, tile), r * UNIT)
        for i, t in enumerate(L): st.add(t, tag=("R1", u), need=[("W1", u)] if i == 0 else None)
def w2_setup():
    voffs8(1024)
    A(f"""
    s_lshl_b32 s60, s35, 15
    s_lshl_b32 s61, s59, 7
    s_add_u32 s60, s60, s61
    s_add_u32 s36, s20, s60
    s_addc_u32 s37, s21, 0
    s_sub_u32 s38, {1792*1024}, s60
    """)
ALL7 = [0, 1, 2, 3, 4, 5, 6]
A("v_cmp_ne_u32 vcc, s34, v240\ns_mov_b32 s15, vcc_lo")
def preads(n, sel):
    A(f"s_add_u32 s13, s12, {n*512}\ns_and_b32 s13, s13, 2047\ns_add_u32 s13, s13, s1")
    if sel: A(f"s_and_b32 s3, s15, {0xff << (8*n)}\ns_cselect_b32 s13, {OOB}, s13")
    for gp, t in enumerate(pread(n, ["s13"] * 4)):
        A(t)
        if gp < 3: A("s_add_u32 s13, s13, 0x20000")
for n in range(3): preads(n, True)
A(f"s_sub_u32 s3, s96, {LP0}\ns_cmp_ge_u32 s3, 2\ns_cbranch_scc1 L_nolp")
keep = list(st.vm)
silu_to_lds(17)
A(f"v_lshrrev_b32 v2, 4, v1\nv_lshlrev_b32 v2, 4, v2\ns_lshl_b32 s60, s35, 8\ns_add_u32 s60, s60, {SILU}\nv_add_u32 v2, s60, v2\ns_waitcnt lgkmcnt(0)\ns_barrier")
for k in range(4): A(f"ds_read_b128 a[{4*k}:{4*k+3}], v2 offset:{k*64}")
st.need("wm")
for u in range(2):
    for t in p16_reads(lambda tile, s: ("a", 16 + u * 16 + tile * 8 + s * 4), u * UNIT): A(t)
for k in range(4):
    for tile in range(2): A(mf(96 + 4 * tile, 16 + (k >> 1) * 16 + tile * 8 + (k & 1) * 4, 4 * k, "0" if k == 0 else None))
A(f"s_lshl_b32 s3, s14, 7\ns_add_u32 s3, s3, {WS_MOD2}")
publish(2, 96, "L_nolp", "s3")
A("L_nolp:"); st.vm = [e for e in keep if e["tag"] != "wm" or True]; st.lg = []; st.hist = []
A("s_waitcnt lgkmcnt(0)\ns_movk_i32 s11, 4096")
w_dma(OPT.get("nA", 4), [2, 3, 4, 5, 6, 0, 1])
A("v_mov_b32 v2, 0x3f80\nv_mov_b32 v3, 0x3f800000")
for r in range(32): A(f"v_mov_b32 v{96+r}, 0")
def accq(n):
    for gp in range(4):
        for r in range(4): A(f"v_dot2c_f32_bf16 v{96+8*n+2*r}, v{160+16*n+4*gp+r}, v2\nv_dot2c_f32_bf16 v{97+8*n+2*r}, v{160+16*n+4*gp+r}, v3")
for r in range(8): A(f"v_lshlrev_b32 v{144+2*r}, 16, v{244+r}\nv_and_b32 v{145+2*r}, 0xffff0000, v{244+r}")
st.need(("part", 3))
A("s_barrier"); A(flag1(3))
stamp("f1st")
A(f"""
v_accvgpr_read_b32 v4, a252
v_mov_b32 v5, 0
v_readfirstlane_b32 s60, v4
s_cmp_eq_u32 s60, 255
s_cselect_b32 s60, 0, {OOB}
s_cmp_lg_u32 s35, 0
s_cselect_b32 s60, {OOB}, s60
buffer_store_dword v25, v5, s[48:51], s60 offen sc1
""")
m2 = ["buffer_load_dwordx4 v[252:255], v8, s[48:51], 0 offen sc1", "buffer_load_dwordx4 v[26:29], v8, s[48:51], s11 offen sc1"]
for t in m2: A(t)
w_read(OPT.get("nA", 4))
cond2 = """v_cmp_ne_u32 vcc, s34, v253
    v_cmp_ne_u32 s[100:101], s34, v255
    s_or_b64 vcc, vcc, s[100:101]
    v_cmp_ne_u32 s[100:101], s34, v27
    s_or_b64 vcc, vcc, s[100:101]
    v_cmp_ne_u32 s[100:101], s34, v29
    s_or_b64 vcc, vcc, s[100:101]"""
A(cond2); A("s_cbranch_vccz L_pm2_x")
keep = list(st.vm)
spin("L_pm2", m2, cond2)
st.vm = keep
A(f"""
s_cmp_lt_u32 s35, 2
s_cselect_b32 s60, 1.0, 0
v_lshlrev_b32 v128, 16, v252
v_and_b32 v129, 0xffff0000, v252
v_lshlrev_b32 v130, 16, v254
v_and_b32 v131, 0xffff0000, v254
v_lshlrev_b32 v132, 16, v26
v_and_b32 v133, 0xffff0000, v26
v_lshlrev_b32 v134, 16, v28
v_and_b32 v135, 0xffff0000, v28
v_add_f32 v132, s60, v132
v_add_f32 v133, s60, v133
v_add_f32 v134, s60, v134
v_add_f32 v135, s60, v135
v_lshlrev_b32 v8, 4, v0
v_add_u32 v8, {MODV}, v8
ds_write_b128 v8, v[128:131]
ds_write_b128 v8, v[132:135] offset:4096
""")
w_dma(OPT.get("nB", 2), ALL7)
def modrd(dst, vec):
    for h in range(2):
        for q in range(2): A(f"ds_read_b128 v[{dst+8*h+4*q}:{dst+8*h+4*q+3}], v{242+h} offset:{vec*2048 + q*16}")
keep = (list(st.vm), list(st.lg))
for n in range(3):
    A(f"s_and_b32 s3, s15, {0xff << (8*n)}\ns_cbranch_scc0 L_have{n}")
    spin(f"L_pq{n}", ["s_sleep 2", "buffer_load_dword v240, v23, s[48:51], s0 offen sc1"], f"v_cmp_ne_u32 vcc, s34, v240\ns_and_b64 vcc, vcc, {0xff << (8*n)}")
    preads(n, False)
    A(f"L_have{n}:"); st.vm, st.lg = list(keep[0]), list(keep[1])
A("s_cmp_lg_u32 s35, 0\ns_cbranch_scc1 L_np3\ns_mov_b32 exec_lo, 0xff000000\ns_mov_b32 exec_hi, 0")
spin("L_pf1", ["buffer_load_dword v240, v23, s[48:51], s0 offen sc1"], "v_cmp_ne_u32 vcc, s34, v240")
A("s_mov_b64 exec, -1\nL_np3:"); st.vm, st.lg = list(keep[0]), list(keep[1])
A("s_waitcnt lgkmcnt(0)\ns_barrier")
stamp("f1ok")
preads(3, False)
modrd(32, 0); modrd(48, 2); modrd(64, 1)
A("s_waitcnt vmcnt(4)")
w_read(OPT.get("nB", 2)); w_dma(OPT.get("nC", 4), ALL7)
for n in range(4): accq(n)
for h in range(2):
    for r in range(8): A(f"v_permlane32_swap_b32 v{96+16*h+r}, v{104+16*h+r}")
for h in range(2):
    for r in range(0, 8, 2): A(f"v_pk_add_f32 v[{128+8*h+r}:{129+8*h+r}], v[{96+16*h+r}:{97+16*h+r}], v[{104+16*h+r}:{105+16*h+r}]")
for r in range(8): A(f"v_pk_fma_f32 v[{128+2*r}:{129+2*r}], v[{128+2*r}:{129+2*r}], v[{32+2*r}:{33+2*r}], v[{144+2*r}:{145+2*r}]")
for r in range(8): A(f"v_cvt_pk_bf16_f32 v{144+r}, v{128+2*r}, v{129+2*r}")
A(f"""s_add_u32 s61, s10, {WS_X1}
buffer_store_dwordx4 v[144:147], v6, s[48:51], s61 offen sc1
buffer_store_dwordx4 v[148:151], v7, s[48:51], s61 offen sc1""")
def row_stats(x):
    A(f"v_pk_add_f32 v[96:97], v[{x}:{x+1}], v[{x+2}:{x+3}]\nv_pk_mul_f32 v[98:99], v[{x}:{x+1}], v[{x}:{x+1}]")
    A(f"v_pk_fma_f32 v[98:99], v[{x+2}:{x+3}], v[{x+2}:{x+3}], v[98:99]")
    for r in range(2, 8):
        A(f"v_pk_add_f32 v[96:97], v[96:97], v[{x+2*r}:{x+2*r+1}]\nv_pk_fma_f32 v[98:99], v[{x+2*r}:{x+2*r+1}], v[{x+2*r}:{x+2*r+1}], v[98:99]")
    A("v_add_f32 v96, v96, v97\nv_add_f32 v98, v98, v99")
    for d in ("quad_perm:[2,3,0,1]", "row_ror:4", "row_ror:8"):
        A(f"v_add_f32_dpp v96, v96, v96 {d} row_mask:0xf bank_mask:0xf\nv_add_f32_dpp v98, v98, v98 {d} row_mask:0xf bank_mask:0xf")
    for sw in ("16", "32"):
        A(f"v_mov_b32 v97, v96\nv_mov_b32 v99, v98\nv_permlane{sw}_swap_b32 v96, v97\nv_permlane{sw}_swap_b32 v98, v99\nv_add_f32 v96, v96, v97\nv_add_f32 v98, v98, v99")
    A(f"""v_mul_f32 v97, {f2u(1/512)}, v96
    v_mul_f32 v98, {f2u(1/512)}, v98
    v_fma_f32 v98, -v97, v97, v98
    v_max_f32 v98, 0, v98
    v_add_f32 v98, {f2u(1e-5)}, v98
    v_rsq_f32 v96, v98
    v_mul_f32_e64 v98, -v97, v96""")
row_stats(128)
for r in range(8): A(f"v_pk_fma_f32 v[{128+2*r}:{129+2*r}], v[{128+2*r}:{129+2*r}], v[96:97], v[98:99] op_sel_hi:[1,0,0]")
for r in range(8): A(f"v_pk_fma_f32 v[{128+2*r}:{129+2*r}], v[{128+2*r}:{129+2*r}], v[{48+2*r}:{49+2*r}], v[{64+2*r}:{65+2*r}]")
row_stats(128)
for r in range(8): A(f"v_pk_fma_f32 v[{128+2*r}:{129+2*r}], v[{128+2*r}:{129+2*r}], v[96:97], v[98:99] op_sel_hi:[1,0,0]")
for r in range(8): A(f"v_cvt_pk_bf16_f32 v{152+r}, v{128+2*r}, v{129+2*r}")
A(f"s_add_u32 s61, s10, {WS_Y}")
st.add("buffer_store_dwordx4 v[152:155], v6, s[48:51], s61 offen sc1", tag="y")
st.add("buffer_store_dwordx4 v[156:159], v7, s[48:51], s61 offen sc1", tag="y")
stamp("ysent")
w_read(OPT.get("nC", 4)); nD = 16 - WS.nd; w_dma(nD, ALL7)
srd(52, 18, 3584)
A(f"""
v_lshrrev_b32 v2, 4, v1
v_lshlrev_b32 v3, 4, v2
buffer_load_dwordx4 v[32:35], v3, s[52:55], s62 offen
buffer_load_dwordx4 v[36:39], v3, s[52:55], s62 offen offset:256
s_lshl_b32 s61, s58, 3
s_add_u32 s61, s61, s59
s_lshl_b32 s9, s61, 7
s_add_u32 s9, s9, {WS_F2}
s_cmp_lg_u32 s35, 0
s_cselect_b32 s9, {OOB}, s9
s_lshl_b32 s0, s58, 10
s_add_u32 s0, s0, {WS_F2}
v_and_b32 v23, 7, v1
v_lshlrev_b32 v23, 7, v23
v_lshrrev_b32 v4, 3, v1
v_lshrrev_b32 v5, 1, v4
v_xor_b32 v5, v5, v1
v_and_b32 v5, 7, v5
v_lshlrev_b32 v5, 4, v5
v_lshl_add_u32 v4, v4, 10, v5
v_xor_b32 v5, 64, v4
v_add_u32 v5, 8192, v5
v_bfe_u32 v15, v1, 1, 3
v_xor_b32 v15, v15, v2
v_lshlrev_b32 v15, 4, v15
v_and_b32 v17, 7, v1
v_lshl_add_u32 v15, v17, 7, v15
v_bfe_u32 v17, v1, 3, 1
v_lshl_add_u32 v15, v17, 13, v15
v_xor_b32 v17, 64, v15
""")
st.need("y")
A("s_barrier"); A("buffer_store_dword v25, v22, s[48:51], s9 offen sc1")
w_read(nD); w_dma(OPT.get("nE", 2), [0, 1, 2, 3])
for r in range(8): A(f"v_lshlrev_b32 v{224+2*r}, 16, v{32+r}\nv_and_b32 v{225+2*r}, 0xffff0000, v{32+r}")
A(f"""
s_lshl_b32 s61, s58, 16
s_lshl_b32 s92, s35, 14
s_add_u32 s61, s61, s92
s_add_u32 s61, s61, {WS_Y}
s_cmp_lg_u32 s35, 0
s_cbranch_scc1 L_np4
""")
keep = (list(st.vm), list(st.lg))
spin("L_pf2", ["buffer_load_dword v240, v23, s[48:51], s0 offen sc1"], "v_cmp_ne_u32 vcc, s34, v240")
A("L_np4:"); st.vm, st.lg = keep
A("s_waitcnt lgkmcnt(0)\ns_barrier")
stamp("f2ok")
for sp in range(8):
    for qh in range(2):
        A(f"s_add_u32 m0, s92, {qh*8192 + sp*1024}")
        st.add(f"buffer_load_dwordx4 v{4+qh}, s[48:51], s61 offen sc1 lds", tag="Y")
    A("s_add_u32 s61, s61, 128")
w_read(OPT.get("nE", 2)); w_dma(20 - WS.nd, [0, 1, 2, 3])
A(f"""
s_mul_i32 s6, s35, {UNIT}
s_add_u32 s6, s6, 65536
s_sub_u32 s60, s6, s63
v_add_u32 v20, s60, v9
""")
st.need("Y")
A("s_barrier")
stamp("Yin")

def yb(n, s, c2): return 96 + (n & 1) * 32 + (s * 2 + c2) * 4
def hacc(half, tile, cb): return 32 + half * 32 + (tile * 4 + cb) * 4
def yreads(n):
    cp, k4 = (n >> 2) & 1, n & 3
    return [f"ds_read_b128 v[{yb(n,s,c2)}:{yb(n,s,c2)+3}], v{15 if s % 2 == 0 else 17} offset:{(cp*2+c2)*16384 + (k4*2+(s>>1))*1024}" for c2 in range(2) for s in range(4)]
C1 = -2 * 0.7978845608028654 * 1.4426950408889634; C2 = C1 * 0.044715
def gelu_ops(half, cb):
    o = []; regs = [hacc(half, t, cb) + r for t in range(2) for r in range(4)]
    for k in range(0, 8, 4):
        x = regs[k:k + 4]; t = [248 + (cb & 1) * 4 + i for i in range(4)]
        o += [f"v_mul_f32 v{t[i]}, v{x[i]}, v{x[i]}" for i in range(4)]
        o += [f"v_fma_f32 v{t[i]}, v{t[i]}, s92, v244" for i in range(4)]
        o += [f"v_mul_f32 v{t[i]}, v{x[i]}, v{t[i]}" for i in range(4)]
        o += [f"v_exp_f32 v{t[i]}, v{t[i]}" for i in range(4)]
        o += [f"v_add_f32 v{t[i]}, 1.0, v{t[i]}" for i in range(4)]
        o += [f"v_rcp_f32 v{t[i]}, v{t[i]}" for i in range(4)]
        o += [f"v_mul_f32 v{x[i]}, v{x[i]}, v{t[i]}" for i in range(4)]
    d = hacc(half, 0, cb)
    o += [f"v_cvt_pk_bf16_f32 v{d+e}, v{regs[2*e]}, v{regs[2*e+1]}" for e in range(4)]
    o.append(f"buffer_store_dwordx4 v[{d}:{d+3}], v16, s[48:51], s{93+half} offen offset:{cb*1024} sc1")
    return o
def flag3(q): return f"buffer_store_dword v25, v22, s[48:51], s95 offen offset:{q*512} sc1"
for t in yreads(0): A(t)
w_read(20 - WS.nr)
A(f"""
s_mov_b32 s92, {f2u(C2)}
v_mov_b32 v244, {f2u(C1)}
s_lshl_b32 s60, s58, 3
s_add_u32 s60, s60, s59
s_lshl_b32 s93, s60, 15
s_lshl_b32 s61, s35, 12
s_add_u32 s93, s93, s61
s_add_u32 s93, s93, {WS_H1}
s_add_u32 s94, s93, 16384
s_lshl_b32 s95, s60, 11
s_lshl_b32 s3, s35, 7
s_add_u32 s95, s95, s3
s_add_u32 s95, s95, {WS_F3}
s_lshl_b32 s0, s58, 14
s_add_u32 s0, s0, s3
s_add_u32 s0, s0, {WS_F3}
s_lshl_b32 s1, s58, 18
s_add_u32 s1, s1, s61
s_add_u32 s1, s1, {WS_H1}
v_and_b32 v23, 7, v1
v_min_u32 v23, 6, v23
v_lshlrev_b32 v23, 11, v23
""")
def w2_ops(ks, r): return [f"s_add_u32 m0, s63, {r*UNIT}" if r < 4 else "s_mov_b32 m0, s6", f"s_mov_b32 s60, {(256*KS2[ks][0] + 128*KS2[ks][1])*1024}"], dma4("s60")
def w2_reads(ks, r): return p8_reads(lambda tp, tile: w2reg(ks, tp, tile), r * UNIT if r < 4 else 0, "v9" if r < 4 else "v20")
M = []; Fl = []; RES = {}
for n in range(16):
    q = n >> 2; half, cp, k4 = q >> 1, q & 1, n & 3; g0 = len(M)
    for tile in range(2):
        for c2 in range(2):
            for s in range(4):
                M.append(mf(hacc(half, tile, cp * 2 + c2), w1reg(half, 4 * k4 + s, tile), yb(n, s, c2), (224 + half * 8 + tile * 4) if (k4 == 0 and s == 0) else None, "v", "a", "v"))
    if n < 15:
        for i, t in enumerate(yreads(n + 1)): Fl.append(F(t, g0 + i, g0 + i + 1, "rd"))
    RES[g0 + 15] = 1
for i in range(5):
    pre, d = w2_ops(4 + i, i); chain_dma(Fl, 9 + 12 * i, pre, d, ("W2", 4 + i), [("R1", 16 + i)] if i < 4 else None, "dma")
for i in range(5):
    g = 128 + 8 + 24 * i
    for k, t in enumerate(w2_reads(4 + i, i)): Fl.append(F(t, g + k // 2, g + 8 + k, "dma", tag=("R2", 4 + i), need=[("W2", 4 + i)] if k == 0 else None))
    pre, d = w2_ops(9 + i, i); chain_dma(Fl, g + 16, pre, d, ("W2", 9 + i), [("R2", 4 + i)], "dma")
for q in range(3):
    for c2 in range(2):
        for t in gelu_ops(q >> 1, (q & 1) * 2 + c2): Fl.append(F(t, 64 * (q + 1) + 3 + 6 * c2, 64 * (q + 2) - 1, ("gelu", c2), tag=("h1", q) if t.startswith("buffer") else None))
    if q: Fl.append(F(flag3(q - 1), 64 * (q + 1) + 40, 64 * (q + 2) - 1, "fl", need=[("h1", q - 1)]))
def chk3(q): return f"buffer_load_dword v{245 + (q&1)}, v23, s[48:51], s0 offen offset:{q*512} sc1"
Fl.append(F(chk3(0), 226, 228, "ck"))
schedule(st, M, Fl, reserve=RES, verbose="G1", slack=400, mem2=("rd", "dma"), minback=0)
stamp("G1")
def hB(Q, k, c2):
    r = (k * 2 + c2) * 4
    return [("a", 80 + r), ("a", 136 + r), ("v", 32 + r), ("a", 80 + r)][Q]
def h_loads(Q):
    o = []
    for k in range(7):
        o.append(f"s_add_u32 s60, s1, {k*32768 + (Q>>1)*16384}")
        for c2 in range(2):
            f, r = hB(Q, k, c2); o.append(f"buffer_load_dwordx4 {f}[{r}:{r+3}], v16, s[48:51], s60 offen offset:{((Q&1)*2+c2)*1024} sc1")
    return o
def have3(q):
    c = f"v_cmp_ne_u32 vcc, s34, v{245 + (q&1)}"
    A(c); A(f"s_cbranch_vccz L_pf3{q}_x")
    keep = list(st.vm); spin(f"L_pf3{q}", [chk3(q)], c); st.vm = keep
    for t in h_loads(q): A(t)
have3(0)
A(chk3(1))
for c2 in range(2):
    for t in gelu_ops(1, 2 + c2): st.add(t, tag=("h1", 3) if t.startswith("buffer") else None)
st.add(flag3(2), need=[("h1", 2)])
have3(1)
stamp("gelu")

def facc(tp, tile, cb): return 96 + (tp * 8 + tile * 4 + cb) * 4
def g2(Q):
    r = []
    for ch in ([0, 1], [2, 3], [4, 5, 6]):
        for tp in range(2):
            for tile in range(2):
                for c2 in range(2):
                    for k in ch:
                        fa, ra = w2reg((Q >> 1) * 7 + k, tp, tile); fb, rb = hB(Q, k, c2)
                        r.append(mf(facc(tp, tile, (Q & 1) * 2 + c2), ra, rb, "0" if (Q < 2 and k == 0) else None, "v", fa, fb))
    return r
Fl = []
for i in range(4):
    for k, t in enumerate(w2_reads(9 + i, i)): Fl.append(F(t, 8 * i + k, 8 * i + k + 1, "rd", need=[("W2", 9 + i)] if k == 0 else None))
Fl.append(F(chk3(2), 36, 37, "fl"))
Fl.append(F(flag3(3), OPT.get("gf3", 50), 55, "fl", need=[("h1", 3)]))
schedule(st, g2(0), Fl)
have3(2)
A(f"""
v_and_b32 v2, 15, v1
v_lshlrev_b32 v2, 10, v2
v_lshrrev_b32 v3, 4, v1
v_lshl_add_u32 v2, v3, 4, v2
v_lshlrev_b32 v4, 4, v3
s_lshl_b32 s92, s58, 16
s_lshl_b32 s60, s35, 14
s_add_u32 s92, s92, s60
s_lshl_b32 s95, s59, 7
s_add_u32 s92, s92, s95
s_add_u32 s60, s92, {WS_X1}
buffer_load_dwordx4 v[224:227], v2, s[48:51], s60 offen sc1
buffer_load_dwordx4 v[228:231], v2, s[48:51], s60 offen offset:64 sc1
""")
srd(52, 22, 1024)
A("buffer_load_dwordx4 v[232:235], v4, s[52:55], s95 offen\nbuffer_load_dwordx4 v[236:239], v4, s[52:55], s95 offen offset:64")
Fl = [F(t, 32 + k, 33 + k, "rd", need=[("W2", 13)] if k == 0 else None) for k, t in enumerate(w2_reads(13, 4))]
Fl.append(F(chk3(3), 46, 47, "fl"))
schedule(st, g2(1), Fl)
stamp("G2a")
schedule(st, g2(2)[:24], [])
have3(3)
schedule(st, g2(2)[24:] + g2(3), [])
stamp("G2")
A(f"""
s_barrier
s_lshl_b32 s60, s35, 12
v_add_u32 v5, s60, v16
s_lshl_b32 s60, s35, 14
v_add_u32 v6, s60, v16
v_lshlrev_b32 v7, 5, v3
s_lshl_b32 s60, s59, 8
s_add_u32 s60, s60, {MODV + 3*2048}
v_add_u32 v7, s60, v7
""")
for cb in range(4):
    for tp in range(2):
        for tile in range(2): A(f"ds_write_b128 v5, v[{facc(tp,tile,cb)}:{facc(tp,tile,cb)+3}] offset:{cb*16384 + (tp*2+tile)*1024}")
for tp in range(2):
    for q in range(2): A(f"ds_read_b128 v[{208+tp*8+4*q}:{211+tp*8+4*q}], v7 offset:{tp*128+q*16}")
for r in range(8):
    A(f"v_lshlrev_b32 v{32+2*r}, 16, v{224+r}\nv_and_b32 v{33+2*r}, 0xffff0000, v{224+r}\nv_lshlrev_b32 v{48+2*r}, 16, v{232+r}\nv_and_b32 v{49+2*r}, 0xffff0000, v{232+r}")
A("s_waitcnt lgkmcnt(0)\ns_barrier")
for src in range(4):
    for n in range(4): A(f"ds_read_b128 v[{96+src*16+n*4}:{99+src*16+n*4}], v6 offset:{src*4096+n*1024}")
for src in range(4):
    for r in range(8): A(f"v_pk_add_f32 v[{48+2*r}:{49+2*r}], v[{48+2*r}:{49+2*r}], v[{96+src*16+2*r}:{97+src*16+2*r}]")
for r in range(8): A(f"v_pk_fma_f32 v[{32+2*r}:{33+2*r}], v[{48+2*r}:{49+2*r}], v[{208+2*r}:{209+2*r}], v[{32+2*r}:{33+2*r}]")
for r in range(8): A(f"v_cvt_pk_bf16_f32 v{64+r}, v{32+2*r}, v{33+2*r}")
srd(52, 28, 2048 * 1024)
A("buffer_store_dwordx4 v[64:67], v2, s[52:55], s92 offen\nbuffer_store_dwordx4 v[68:71], v2, s[52:55], s92 offen offset:64")
if OPT["stamps"]:
    stamp("end")
    A("s_memrealtime s[96:97]\ns_waitcnt lgkmcnt(0)\ns_cmp_lg_u32 s35, 0\ns_cbranch_scc1 L_end\ns_mov_b64 exec, 1")
    A(f"s_lshl_b32 s60, s2, 9\ns_add_u32 s60, s60, {WS_STAMP}\nv_mov_b32 v6, 0")
    A(f"s_mov_b32 s{64+stamp_n[0]-1}, s90")
    lst = [64 + n for n in range(stamp_n[0])] + [98, 96, 15]
    A("v_mov_b32 v3, 0")
    for n, s in enumerate(lst): A(f"v_mov_b32 v2, s{s}\nbuffer_store_dwordx2 v[2:3], v6, s[48:51], s60 offen offset:{n*8}\ns_nop 1")
    if OPT["dbg"] >= 0:
        srd(52, 30, 256)
        A(f"s_cmp_lg_u32 s2, {OPT['dbg']}\ns_cbranch_scc1 L_end")
        sel = [i for i in range(1, stamp_n[0]) if stamp_names[i] not in ("norm", "gelu", "G2a")][:14]
        for n, k in enumerate(sel): A(f"s_sub_u32 s60, s{64+k}, s64\nv_mov_b32 v2, s60\nbuffer_store_dword v2, v6, s[52:55], 0 offen offset:{4+n*4}\ns_nop 1")
        A("s_sub_u32 s60, s96, s98\nv_mov_b32 v2, s60\nbuffer_store_dword v2, v6, s[52:55], 0 offen offset:60")
        print("dbg order:", [stamp_names[k] for k in sel], "realtime")
    open(os.path.splitext(sys.argv[1])[0] + ".names", "w").write(" ".join(stamp_names))
    print("stamps:", len(lst))
st.raw(f"""L_end:
    s_endpgm
L_codeend:
.section .rodata,"a"
.p2align 6
.amdhsa_kernel {NAME}_kernel
  .amdhsa_next_free_vgpr 512
  .amdhsa_next_free_sgpr 102
  .amdhsa_accum_offset 256
  .amdhsa_group_segment_fixed_size 0
  .amdhsa_kernarg_size 120
  .amdhsa_user_sgpr_count 2
  .amdhsa_user_sgpr_kernarg_segment_ptr 1
  .amdhsa_system_sgpr_workgroup_id_x 1
.end_amdhsa_kernel""")
open(sys.argv[1], "w").write(st.text())
print("waits", st.nwait, "nop states", st.nnop)
```

```python
import re
REG = re.compile(r'(?<![\w.])([vas])(?:\[(\d+):(\d+)\]|(\d+))(?![\w\[])')
def regs_of(txt):
    out = []
    for m in REG.finditer(txt):
        k = m.group(1)
        if m.group(2) is not None:
            out += [(k, i) for i in range(int(m.group(2)), int(m.group(3)) + 1)]
        else:
            out.append((k, int(m.group(4))))
    for nm in ("vcc", "exec", "m0"):
        if re.search(r'(?<![\w.])' + nm + r'(_lo|_hi)?(?![\w])', txt): out.append((nm, 0))
    return out
TRANS = ("v_exp_f32", "v_log_f32", "v_rcp_f32", "v_rsq_f32", "v_sqrt_f32")
class I:
    __slots__ = ("txt", "op", "rd", "wr", "kind", "tag", "need", "cost", "mc", "ma")
    def __init__(s, txt, tag=None, need=None):
        s.txt = txt.strip(); s.tag = tag; s.need = need or []
        body = s.txt.split(";")[0].strip()
        parts = body.split(None, 1); s.op = op = parts[0]
        ops = [x.strip() for x in parts[1].split(",")] if len(parts) > 1 else []
        rest = parts[1] if len(parts) > 1 else ""
        rest = re.sub(r'\b(quad_perm|op_sel|op_sel_hi|neg_lo|neg_hi):\[[^\]]*\]', '', rest)
        ops = [x.strip() for x in rest.split(",")] if rest else []
        s.rd = []; s.wr = []; s.mc = []; s.ma = []
        allr = lambda l: [r for o in l for r in regs_of(o)]
        s.cost = 1
        if op.startswith("v_mfma"):
            s.kind = "mfma"; s.wr = allr(ops[:1]); s.ma = allr(ops[1:3]); s.mc = allr(ops[3:4]); s.rd = s.ma + s.mc
        elif op.startswith("buffer_load") or op.startswith("global_load"):
            if re.search(r'\blds\b', rest) or "_lds_" in op:
                s.kind = "dma"; s.rd = allr(ops) + [("m0", 0)]
            else:
                s.kind = "vload"; s.wr = allr(ops[:1]); s.rd = allr(ops[1:])
        elif op.startswith("buffer_store") or op.startswith("global_store"):
            s.kind = "vstore"; s.rd = allr(ops)
        elif op.startswith("buffer_atomic"):
            s.kind = "vload" if "sc0" in rest else "vstore"; s.rd = allr(ops)
            if "sc0" in rest: s.wr = allr(ops[:1])
        elif op.startswith("ds_read") or op.startswith("ds_bpermute") or op.startswith("ds_swizzle"):
            s.kind = "dsr"; s.wr = allr(ops[:1]); s.rd = allr(ops[1:])
        elif op.startswith("ds_write"):
            s.kind = "dsw"; s.rd = allr(ops)
        elif op.startswith("s_load") or op in ("s_memtime", "s_memrealtime"):
            s.kind = "smem"; s.wr = allr(ops[:1]); s.rd = allr(ops[1:])
        elif op in ("s_waitcnt", "s_nop", "s_barrier", "s_sleep", "s_setprio", "s_endpgm", "s_branch") or op.startswith("s_cbranch") or op.endswith(":"):
            s.kind = "ctl"
        elif op.startswith("s_cmp") or op.startswith("s_bitcmp"):
            s.kind = "salu"; s.rd = allr(ops)
        elif op.startswith("s_"):
            s.kind = "salu"; s.wr = allr(ops[:1]); s.rd = allr(ops[1:])
            if "saveexec" in op: s.wr.append(("exec", 0)); s.rd.append(("exec", 0))
        elif op.startswith("v_"):
            s.kind = "valu"
            base = op.replace("_e32", "").replace("_e64", "")
            if base in TRANS: s.kind = "trans"; s.cost = 2
            if "permlane" in op and "swap" in op:
                s.wr = allr(ops[:2]); s.rd = allr(ops[:2])
            elif op.startswith("v_add_co") or op.startswith("v_sub_co") or op.startswith("v_addc_co"):
                s.wr = allr(ops[:2]); s.rd = allr(ops[2:])
            else:
                s.wr = allr(ops[:1]); s.rd = allr(ops[1:])
                if base.startswith("v_fmac") or base.startswith("v_dot2c") or "_dpp" in op or base.startswith("v_writelane"): s.rd += s.wr
        else:
            raise ValueError("unknown op " + txt)
    def is_valu(s): return s.kind in ("valu", "trans")
    def is_mem(s): return s.kind in ("dma", "vload", "vstore", "dsr", "dsw")

class Stream:
    def __init__(s, merge_dist=110):
        s.out = []; s.merge = merge_dist
        s.reset()
        s.nwait = 0; s.nnop = 0; s.slots = 0
        s.missing = {}; s.seen = set()
    def reset(s):
        s.vm = []
        s.lg = []
        s.smem = False; s.smem_wr = set()
        s.hist = []
        s.n = 0; s.t = 0; s.tm = -100
    def raw(s, txt):
        s.out.append(txt)
    def _emit(s, ins, states=1):
        s.out.append("    " + ins.txt); s.hist.append((ins, states)); s.n += states
        if ins.kind == "mfma":
            s.t = max(s.t, s.tm + (16 if "16x16" in ins.op else 32)); s.tm = s.t; s.t += 8
        else: s.t += 4 * states * ins.cost
        if len(s.hist) > 40: s.hist.pop(0)
    def _wait(s, vm=None, lg=None):
        t = "s_waitcnt"
        if vm is not None:
            vm = min(vm, 63); t += f" vmcnt({vm})"; del s.vm[:max(0, len(s.vm) - vm)]
        if lg is not None:
            lg = min(lg, 15); t += f" lgkmcnt({lg})"; del s.lg[:max(0, len(s.lg) - lg)]
            if lg == 0: s.smem = False; s.smem_wr = set()
        s._emit(I(t)); s.nwait += 1
    def newphase(s): s.missing = {}; s.seen = set()
    def _order(s, needs, tag, txt):
        for t in needs: s.missing.setdefault(t, txt)
        if tag is not None and tag in s.missing and tag not in s.okl: raise RuntimeError(f"{tag} emitted after its consumer: {s.missing[tag]}")
    okl = set()
    def _need_idx(s, q, regs, tags):
        last = -1
        for i, e in enumerate(q):
            if (e["wr"] & regs) or (e["tag"] is not None and e["tag"] in tags): last = i
        return last
    def add(s, ins, tag=None, need=None):
        if isinstance(ins, str): ins = I(ins, tag, need)
        if ins.op == "s_waitcnt":
            m = re.search(r'vmcnt\((\d+)\)', ins.txt); l = re.search(r'lgkmcnt\((\d+)\)', ins.txt)
            s._wait(int(m.group(1)) if m else None, int(l.group(1)) if l else None); return
        touched = set(ins.rd) | set(ins.wr); tags = set(ins.need)
        s._order(tags, ins.tag, ins.txt)
        vi = s._need_idx(s.vm, touched, tags); li = s._need_idx(s.lg, touched, tags)
        vmN = lgN = None
        if vi >= 0: vmN = len(s.vm) - 1 - vi
        if li >= 0:
            j = li
            while j + 1 < len(s.lg) and s.t - s.lg[j + 1]["t"] >= s.merge: j += 1
            lgN = len(s.lg) - 1 - j
            if s.smem: lgN = 0
        if s.smem and (touched & s.smem_wr): lgN = 0
        if vmN is not None or lgN is not None: s._wait(vmN, lgN)
        need = 0; dist = 0
        rd = set(ins.rd); wr = set(ins.wr)
        for p, st in reversed(s.hist):
            req = 0
            pw = set(p.wr)
            if p.kind == "mfma":
                n = 8 if "16x16" in p.op else 12
                if ins.kind == "mfma":
                    if pw & set(ins.ma): req = n
                    elif pw & set(ins.mc) and (set(ins.mc) != pw or p.op != ins.op): req = n - 2
                    elif pw & wr and not (pw & set(ins.mc)) : req = max(req, 0)
                elif ins.is_valu() or ins.is_mem():
                    if pw & (rd | wr): req = n
                if ins.is_valu() and set(p.mc) & wr: req = max(req, 3 if "16x16" in p.op else 7)
            elif p.is_valu():
                vw = {r for r in pw if r[0] in "va"}; sw = {r for r in pw if r[0] in ("s", "vcc")}
                if ins.kind == "mfma" and vw & rd: req = 2
                if p.op.startswith("v_dot2") and vw & (rd | wr) and not (ins.op == p.op and not (vw & set(regs_of(",".join(ins.txt.split(",")[1:]))))): req = max(req, 3)
                if ins.is_valu():
                    if p.kind == "trans" and vw & rd and ins.kind != "trans": req = max(req, 1)
                    if ("_dpp" in ins.op or "permlane" in ins.op) and vw & rd: req = max(req, 2)
                    if ("readfirstlane" in ins.op or "readlane" in ins.op) and vw & rd: req = max(req, 1)
                    if sw & rd: req = max(req, 2)
                    if "sdwa" in p.op and vw & (rd | wr): req = max(req, 1)
                if ins.is_mem() and sw & rd: req = max(req, 5)
                if ins.kind == "salu" and sw & rd: req = max(req, 1)
                if ("exec", 0) in pw: req = max(req, 5)
            elif p.kind == "salu":
                if ("m0", 0) in pw and ins.kind == "dma": req = 1
            elif p.kind == "vstore":
                data = set(p.rd[:4]) if ("x4" in p.op or "x3" in p.op) else set()
                if ins.is_valu() and data & wr: req = 2
                elif data & wr: req = 1
            need = max(need, req - dist)
            dist += st
            if dist >= 14: break
        while need > 0:
            k = min(need, 16); s._emit(I(f"s_nop {k-1}"), k); s.nnop += k; need -= k
        s._emit(ins)
        if ins.kind in ("dma", "vload", "vstore"):
            s.vm.append(dict(tag=ins.tag, wr=set(ins.wr), idx=s.n))
            if len(s.vm) > 63: raise RuntimeError("vmcnt overflow at " + ins.txt)
        elif ins.kind in ("dsr", "dsw"):
            s.lg.append(dict(tag=ins.tag, wr=set(ins.wr), idx=s.n, t=s.t))
        elif ins.kind == "smem":
            s.smem = True; s.smem_wr |= set(ins.wr)
    def A(s, text):
        for l in text.split("\n"):
            l = l.strip()
            if not l or l.startswith(";"): continue
            if l.endswith(":"): s.raw(l); continue
            s.add(l)
    def need(s, *tags):
        tags = set(tags); s._order(tags, None, "need")
        vi = s._need_idx(s.vm, set(), tags); li = s._need_idx(s.lg, set(), tags)
        vmN = len(s.vm) - 1 - vi if vi >= 0 else None
        lgN = len(s.lg) - 1 - li if li >= 0 else None
        if lgN is not None and s.smem: lgN = 0
        if vmN is not None or lgN is not None: s._wait(vmN, lgN)
    def sync(s, vm=True):
        if vm: s._wait(0, 0)
        else: s._wait(None, 0)
        s._emit(I("s_nop 7"), 8)
        s._emit(I("s_nop 3"), 4)
    def text(s): return "\n".join(s.out) + "\n"

class F:
    __slots__ = ("ins", "e", "l", "chain", "order")
    cnt = 0
    def __init__(s, txt, e, l, chain=None, tag=None, need=None):
        if isinstance(txt, str) and "\n" in txt: s.ins = ("group", txt.split("\n"))
        elif isinstance(txt, tuple): s.ins = txt
        else: s.ins = I(txt, tag, need)
        s.e = e; s.l = l; s.chain = chain; F.cnt += 1; s.order = F.cnt
    def cost(s): return 1 if isinstance(s.ins, tuple) else s.ins.cost
    def mem(s): return not isinstance(s.ins, tuple) and s.ins.is_mem()

def schedule(st, mfmas, fillers, cap=2, reserve=None, verbose=None, slack=6, mem2=False, minback=0):
    pend = sorted(fillers, key=lambda f: f.order)
    over = 0
    def emit(f):
        if isinstance(f.ins, tuple):
            if f.ins[0] == "need": st.need(*f.ins[1])
            elif f.ins[0] == "barrier": st.need(*f.ins[1]); st.add("s_barrier")
            elif f.ins[0] == "call": f.ins[1]()
            elif f.ins[0] == "group":
                for t in f.ins[1]: st.add(t)
        else: st.add(f.ins)
    for g in range(-1, len(mfmas)):
        if g >= 0:
            w0 = st.nwait + st.nnop
            st.add(mfmas[g])
        budget = cap if g >= 0 else 0
        if reserve and g in reserve: budget -= reserve[g]
        chosen = []
        blocked = set()
        while True:
            cand = []; seen = set()
            for f in pend:
                if f in chosen: continue
                if f.chain is not None:
                    if f.chain in seen: continue
                    seen.add(f.chain)
                if f.e <= g: cand.append(f)
            due = {}
            for f in pend:
                if f in chosen: continue
                if f.chain is not None: due[f.chain] = min(due.get(f.chain, 1 << 30), f.l)
            def dl(f): return due[f.chain] if f.chain is not None else f.l
            cand.sort(key=lambda f: (dl(f), f.order))
            pick = None
            have_mem = any(c.mem() for c in chosen)
            for f in cand:
                if dl(f) <= g: pick = f; break
            if pick is None and budget > 0:
                fit = [f for f in cand if f.cost() <= budget and not (f.mem() and have_mem)]
                mem = [f for f in fit if f.mem()]
                if mem and not chosen: pick = mem[0]
                elif fit:
                    nm = [f for f in fit if not f.mem()]
                    big = [f for f in nm if f.cost() == 2]
                    if big and not (nm[0].cost() == 1 and dl(nm[0]) <= g + slack): pick = big[0]
                    elif nm: pick = nm[0]
                if pick is None and mem2:
                    m2 = [f for f in cand if f.mem() and f.chain in mem2]
                    backlog = sum(1 for f in pend if f.e <= g and f.cost() == 2 and f not in chosen)
                    if m2 and backlog >= minback: pick = m2[0]
            if pick is None: break
            chosen.append(pick); budget -= pick.cost()
        if budget < 0: over += -budget
        res = []
        rem = list(chosen)
        while rem:
            k = None
            for i, f in enumerate(rem):
                if f.mem() and not any(o.chain == f.chain and f.chain is not None for o in rem[:i]): k = i; break
            if k is None: k = 0
            res.append(rem.pop(k))
        for f in res:
            emit(f); pend.remove(f)
    assert not pend, [(f.ins.txt if not isinstance(f.ins, tuple) else f.ins, f.e, f.l) for f in pend[:5]]
    if verbose: print(f"[sched {verbose}] mfma {len(mfmas)} fillers {len(fillers)} over-budget slots {over}")
```

```python
import sys, os, re, struct
sys.path.insert(0, os.path.join(os.path.dirname(os.path.abspath(__file__)), "tools"))
from asmgen import *
NAME = "adaLN_cond__sliding_block_cached__mixer_channel_mlp__prompt"
OPT = dict(stamps=0, gx=2, nt_wq=0, nt_wo=0, nt_kv=0, nt_mod=1, nt_x=0, pf_w1=1, pf_w2=1, early=1, dbg=-1)
for a in sys.argv[2:]:
    k, v = a.split("="); OPT[k] = int(v)
def nt(k): return " nt" if OPT["nt_" + k] else ""

KA, KB, VA, VB, XR = 0, 16512, 32896, 49408, 65920
HIMG = KB
RING0, RINGSZ, UNIT = 82304, 16512, 4128
MISC = 148352
MODV = MISC
SILU = MISC + 8192
RED = MISC + 9216
LDS_BYTES = 163840
WS_MOD, WS_F2, WS_F3, WS_F1 = 0x1000, 0x20000, 0x40000, 0x100000
WS_Y, WS_X1, WS_H1, WS_PART = 0x200000, 0x400000, 0x600000, 0x1000000
WS_STAMP = 0xF000000
OOB = 0x10000000
SCALE = 1.4426950408889634 / (128 ** 0.5)
def f2u(x): return struct.unpack("<I", struct.pack("<f", x))[0]
SPIN = 1 << 18

st = Stream()
A = st.A
stamp_n = [0]; stamp_names = []
def stamp(name=""):
    if not OPT["stamps"]: return
    if OPT["stamps"] == 5:
        if not (name in ("start", "Yin", "G1", "gelu", "G2a", "G2", "end") or name.startswith("m")) or name == "mod": return
    elif OPT["stamps"] == 6:
        if not (name in ("start", "O", "f1st", "_f2q", "f1ok", "ysent", "f2ok", "Yin", "end") or name.startswith("e")): return
    elif name[0] in "me" and name not in ("mod", "end"): return
    if OPT["stamps"] not in (4, 6) and name.startswith("_"): return
    if OPT["stamps"] == 4 and not (name in ("start", "x", "mod", "h", "Q", "end") or name.startswith("_")): return
    if OPT["stamps"] == 3 and not (name in ("start", "h", "Q", "end") or name.startswith("q")): return
    if OPT["stamps"] == 2 and name.startswith("q"): return
    if OPT["stamps"] == 2 and name in ("x", "mod", "f1st", "f1ok", "ysent", "f2ok", "Yin", "gelu", "G2a", "G2"): return
    n = stamp_n[0]; stamp_n[0] += 1; stamp_names.append(name)
    assert n < 26
    if n: st.add(f"s_mov_b32 s{64+n-1}, s90")
    st.add("s_memrealtime s[90:91]" if OPT.get("rt") else "s_memtime s[90:91]")
def stampF(name, g):
    return [F(("call", lambda: stamp(name)), g, g)] if OPT["stamps"] > 1 else []
def dummyI(t):
    i = I(t); i.wr = []; return i
def dummy(t): st.add(dummyI(t))
def dummyF(t, e, l, chain):
    f = F(t, e, l, chain); f.ins.wr = []; return f
def srd(base, ptr, size):
    A(f"s_mov_b32 s{base}, s{ptr}\ns_mov_b32 s{base+1}, s{ptr+1}\ns_mov_b32 s{base+2}, {size}\ns_mov_b32 s{base+3}, 0x20000")
def mf(d, a, b, c=None, dt="v", at="a", bt="a"):
    cs = f"{dt}[{d}:{d+3}]" if c is None else (c if isinstance(c, str) else f"{dt}[{c}:{c+3}]")
    return f"v_mfma_f32_16x16x32_bf16 {dt}[{d}:{d+3}], {at}[{a}:{a+3}], {bt}[{b}:{b+3}], {cs}"
STG = 192
def stg(u, tile, s): return STG + (u & 1) * 16 + tile * 8 + s * 4
def p16_reads(dst, off, addr="v10"):
    r = []
    for tile in range(2):
        for s in range(2):
            f, d = dst(tile, s)
            for hf in range(2): r.append(f"ds_read_b64_tr_b16 {f}[{d+2*hf}:{d+2*hf+1}], {addr} offset:{off + s*2064 + hf*256 + tile*8}")
    return r
def p8_reads(dst, off, addr="v9"):
    r = []
    for tp in range(2):
        for tile in range(2):
            f, d = dst(tp, tile)
            for hf in range(2): r.append(f"ds_read_b64_tr_b16 {f}[{d+2*hf}:{d+2*hf+1}], {addr} offset:{off + tp*512 + hf*256 + tile*8}")
    return r
def voffs16(stride):
    A(f"""
    v_lshrrev_b32 v2, 5, v1
    v_lshlrev_b32 v2, 4, v2
    v_bfe_u32 v3, v1, 2, 3
    v_add_u32 v2, v2, v3
    v_mul_u32_u24 v2, {stride}, v2
    v_and_b32 v3, 3, v1
    v_lshl_add_u32 v11, v3, 4, v2
    v_add_u32 v12, {8*stride-1032}, v11
    v_add_u32 v13, {32*stride-2064}, v11
    v_add_u32 v14, {40*stride-3096}, v11
    """)
def voffs8(stride):
    A(f"""
    v_bfe_u32 v2, v1, 2, 3
    v_mul_u32_u24 v2, {stride}, v2
    v_lshrrev_b32 v3, 5, v1
    v_lshl_add_u32 v2, v3, 6, v2
    v_and_b32 v3, 3, v1
    v_lshl_add_u32 v11, v3, 4, v2
    v_add_u32 v12, {8*stride-1032}, v11
    v_add_u32 v13, {16*stride-2064}, v11
    v_add_u32 v14, {24*stride-3096}, v11
    """)
def dma4(soff, fl=""): return [f"buffer_load_dwordx4 v{11+i}, s[36:39], {soff} offen offset:{i*1032}{fl} lds" for i in range(4)]
def chain_dma(Fl, g0, pre, dmas, tag, need, chain, late=3):
    if OPT.get("nodma") and tag[0] == "W": dmas = []
    for t in pre: Fl.append(F(t, g0 - 5, g0 + late, chain))
    for i, t in enumerate(dmas): Fl.append(F(t, g0 + i // 2, g0 + late + i, chain, tag=tag, need=need if i == 0 else None))
def spread_dma(Fl, g0, pre, dmas, post, tag, need, step):
    if OPT.get("nodma"): dmas = []
    for t in pre: Fl.append(F(t, g0 - 3, g0, "dma"))
    for i, t in enumerate(dmas): Fl.append(F(t, g0 + i * step, g0 + i * step + 1, "dma", tag=tag, need=need if i == 0 else None))
    for t in post: Fl.append(F(t, g0, g0 + 3 * step + 2, "dma"))
def spin(label, load, cond):
    A(f"s_mov_b32 s3, {SPIN}")
    st.raw(f"{label}:")
    for t in load: st.add(t)
    A("s_sub_u32 s3, s3, 1\ns_waitcnt vmcnt(0)")
    A(cond)
    A(f"s_cmp_eq_u32 s3, 0\ns_cbranch_scc1 {label}_x\ns_cbranch_vccnz {label}")
    st.raw(f"{label}_x:")

st.raw(f"""; adaLN + GQA window attention + channel MLP, one persistent launch, 256 workgroups (one per CU)
; @launch grid=(256,1,1) block=(256,1,1) lds={LDS_BYTES}
.amdgcn_target "amdgcn-amd-amdhsa--gfx950"
.text
.globl {NAME}_kernel
.p2align 8
.type {NAME}_kernel,@function
{NAME}_kernel:
L_start:""")
A("""
s_cmp_ge_u32 s2, 256
s_cbranch_scc1 L_end
s_load_dwordx16 s[4:19], s[0:1], 0
s_load_dwordx8 s[20:27], s[0:1], 64
s_load_dwordx4 s[28:31], s[0:1], 96
s_load_dwordx2 s[32:33], s[0:1], 112
""")
if OPT["stamps"]: A("s_memrealtime s[98:99]")
stamp("start")
GX = OPT["gx"]; lg = {1: 0, 2: 1, 4: 2}[GX]
A(f"""
v_and_b32 v1, 63, v0
v_lshrrev_b32 v2, 6, v0
s_and_b32 s96, s2, 7
s_lshr_b32 s97, s2, 3
v_readfirstlane_b32 s35, v2
s_and_b32 s56, s96, {8//GX - 1}
s_lshl_b32 s56, s56, {lg}
s_and_b32 s60, s97, {GX - 1}
s_add_u32 s56, s56, s60
s_lshr_b32 s57, s96, {3 - lg}
s_lshl_b32 s57, s57, {5 - lg}
s_lshr_b32 s61, s97, {lg}
s_add_u32 s57, s57, s61
s_lshl_b32 s60, s60, {3 - lg}
s_add_u32 s95, s57, s60
s_and_b32 s95, s95, {OPT.get("rotmask", 7)}
s_lshl_b32 s58, s96, 2
s_lshr_b32 s59, s97, 3
s_add_u32 s58, s58, s59
s_and_b32 s59, s97, 7
s_mul_i32 s63, s35, {RINGSZ}
s_add_u32 s63, s63, {RING0}
s_movk_i32 s101, 1023
v_lshlrev_b32 v16, 4, v1
v_lshrrev_b32 v2, 4, v1
v_and_b32 v5, 15, v1
v_mul_u32_u24 v3, 1032, v2
v_lshl_add_u32 v9, v5, 4, v3
v_add_u32 v9, s63, v9
v_and_b32 v3, 1, v2
v_mul_u32_u24 v3, 1032, v3
v_lshl_add_u32 v3, v5, 4, v3
v_lshrrev_b32 v4, 1, v2
v_lshl_add_u32 v10, v4, 9, v3
v_add_u32 v10, s63, v10
v_mul_u32_u24 v4, 2064, v4
v_add_u32 v21, v3, v4
v_add_u32 v21, {VA}, v21
s_lshl_b32 s60, s95, 7
v_lshl_add_u32 v3, v5, 4, s60
v_lshlrev_b32 v2, 10, v2
v_and_or_b32 v124, v3, s101, v2
v_add_u32 v3, 256, v3
v_and_or_b32 v125, v3, s101, v2
v_add_u32 v3, 256, v3
v_and_or_b32 v126, v3, s101, v2
v_add_u32 v3, 256, v3
v_and_or_b32 v127, v3, s101, v2
s_getpc_b64 s[92:93]
L_pc:
s_sub_u32 s92, s92, L_pc-L_start
s_subb_u32 s93, s93, 0
s_lshl_b32 s3, s97, 12
v_lshl_add_u32 v4, v0, 4, s3
v_min_u32 v4, L_codeend-L_start-16, v4
global_load_dwordx4 a[248:251], v4, s[92:93]
s_waitcnt lgkmcnt(0)
s_load_dword s34, s[32:33], 0
""")
st.vm = []
stamp("_karg")
srd(48, 32, 0x10000000)
KS = OPT.get("ks", 4)
WS_MOD2 = WS_MOD + 4096 * KS
def silu_to_lds(creg, t=2):
    A(re.sub(r"\bv([2-5])\b", lambda m: f"v{int(m.group(1)) - 2 + t}", f"""
    v_lshlrev_b32 v2, 16, v{creg}
    v_and_b32 v3, 0xffff0000, v{creg}
    v_mul_f32 v4, {f2u(-1.4426950408889634)}, v2
    v_mul_f32 v5, {f2u(-1.4426950408889634)}, v3
    v_exp_f32 v4, v4
    v_exp_f32 v5, v5
    v_add_f32 v4, 1.0, v4
    v_add_f32 v5, 1.0, v5
    v_rcp_f32 v4, v4
    v_rcp_f32 v5, v5
    v_mul_f32 v2, v2, v4
    v_mul_f32 v3, v3, v5
    v_cvt_pk_bf16_f32 v2, v2, v3
    v_lshlrev_b32 v3, 2, v0
    v_add_u32 v3, {SILU}, v3
    ds_write_b32 v3, v2
    """))
def publish(ntile, src, lab, dst, tag="s34", tmp=2, stmp="s60"):
    W = 64 * ntile
    A(f"""
    v_lshrrev_b32 v{tmp}, 4, v1
    v_lshlrev_b32 v{tmp}, 5, v{tmp}
    s_mul_i32 {stmp}, s35, {W}
    s_add_u32 {stmp}, {stmp}, {RED}
    v_add_u32 v{tmp}, {stmp}, v{tmp}
    s_mov_b32 exec_lo, 0x00010001
    s_mov_b32 exec_hi, 0x00010001
    """)
    for t in range(ntile): A(f"ds_write_b128 v{tmp}, v[{src+4*t}:{src+4*t+3}] offset:{(t>>1)*128 + (t&1)*16}")
    A(f"""
    s_mov_b64 exec, -1
    s_waitcnt lgkmcnt(0)
    s_barrier
    s_cmp_lg_u32 s35, 0
    s_cbranch_scc1 {lab}
    v_lshlrev_b32 v{tmp}, 3, v1
    v_add_u32 v{tmp+1}, {RED}, v{tmp}
    s_mov_b32 exec_lo, {(1 << (8*ntile)) - 1}
    s_mov_b32 exec_hi, 0
    """)
    for i in range(4): A(f"ds_read_b64 v[{src+2*i}:{src+2*i+1}], v{tmp+1} offset:{i*W}")
    A(f"""
    v_pk_add_f32 v[{src}:{src+1}], v[{src}:{src+1}], v[{src+2}:{src+3}]
    v_pk_add_f32 v[{src+4}:{src+5}], v[{src+4}:{src+5}], v[{src+6}:{src+7}]
    v_pk_add_f32 v[{src}:{src+1}], v[{src}:{src+1}], v[{src+4}:{src+5}]
    v_cvt_pk_bf16_f32 v{src}, v{src}, v{src+1}
    v_mov_b32 v{src+1}, {tag}
    buffer_store_dwordx2 v[{src}:{src+1}], v{tmp}, s[48:51], {dst} offen sc1
    s_mov_b64 exec, -1
    """)
def xr(i, jj): return 32 + (jj * 4 + i) * 4
def x_loads(n0, n1):
    for n in range(n0, n1):
        jj, i = n >> 2, n & 3
        st.add(f"buffer_load_dwordx4 v[{xr(i,jj)}:{xr(i,jj)+3}], v{124+jj}, s[52:55], s{[62, 0, 1, 100][i]} offen{nt('x')}")
def x_setup():
    srd(52, 4, 2048 * 1024)
    A("s_lshl_b32 s62, s57, 16\ns_lshl_b32 s61, s35, 14\ns_add_u32 s62, s62, s61\ns_add_u32 s0, s62, 4096\ns_add_u32 s1, s62, 8192\ns_add_u32 s100, s62, 12288")
NSL = 4 // KS
PX = OPT.get("px", 2)
A(f"s_cmp_lt_u32 s96, {PX}\ns_cselect_b32 s14, s97, 99\ns_cmp_lt_u32 s14, {16*KS//PX}\ns_cbranch_scc1 L_prod")
x_setup(); x_loads(0, 8)
A("s_branch L_join")
join_vm = list(st.vm)
A("L_prod:"); st.vm = []; st.hist = []; st.smem = True; st.smem_wr = {("s", 34)}
srd(52, 24, 1024); srd(36, 26, 512 * 6144)
A("v_lshlrev_b32 v2, 2, v0\nbuffer_load_dword v31, v2, s[52:55], 0 offen")
voffs8(6144)
A(f"""
s_mul_i32 s14, s97, {PX}
s_add_u32 s14, s14, s96
s_lshr_b32 s15, s14, 4
s_and_b32 s14, s14, 15
s_lshl_b32 s3, s15, 2
s_add_u32 s3, s3, s35
s_mul_i32 s60, s3, {32*NSL*6144}
s_lshl_b32 s61, s14, 7
s_add_u32 s60, s60, s61
""")
for k in range(NSL):
    A(f"s_add_u32 m0, s63, {(2+k)*UNIT}")
    for t in dma4("s60", nt("mod")): st.add(t, tag="wm")
    if k + 1 < NSL: A(f"s_add_u32 s60, s60, {32*6144}")
silu_to_lds(31)
A(f"""
v_lshrrev_b32 v2, 4, v1
v_lshlrev_b32 v2, 4, v2
s_mul_i32 s60, s3, {64*NSL}
s_add_u32 s60, s60, {SILU}
v_add_u32 v2, s60, v2
s_waitcnt lgkmcnt(0)
s_barrier
""")
for k in range(NSL): A(f"ds_read_b128 a[{4*k}:{4*k+3}], v2 offset:{k*64}")
x_setup()
st.need("wm")
for k in range(NSL):
    for t in p8_reads(lambda tp, tile: ("a", 16 + k * 16 + tp * 8 + tile * 4), (2 + k) * UNIT): A(t)
x_loads(0, 2)
for k in range(NSL):
    for t in range(4): A(mf(96 + 4 * t, 16 + k * 16 + 4 * t, 4 * k, "0" if k == 0 else None))
x_loads(2, 4)
A(f"s_lshl_b32 s3, s15, 12\ns_lshl_b32 s14, s14, 8\ns_add_u32 s3, s3, s14\ns_add_u32 s3, s3, {WS_MOD}\ns_mul_i32 s15, s34, 0x9E3779B1\ns_add_u32 s15, s15, 0x7F4A7C15")
publish(4, 96, "L_prod_x", "s3", "s15")
A("L_prod_x:"); st.lg = []; st.hist = []
x_loads(4, 8)
A("s_branch L_join"); st.raw(".p2align 12")
A("L_join:"); st.vm = join_vm; st.lg = []; st.hist = []; st.smem = True; st.smem_wr = {("s", 34)}
st.newphase(); stamp("_prod")

QST = 8192
A(f"""
s_lshl_b32 s60, s56, 10
s_lshl_b32 s61, s35, 8
s_add_u32 s60, s60, s61
s_add_u32 s36, s10, s60
s_addc_u32 s37, s11, 0
s_sub_u32 s38, {512*8192}, s60
s_mov_b32 s39, 0x20000
s_bfe_u32 s15, s57, 0x10003
s_lshl_b32 s14, s15, 7
s_lshl_b32 s92, s95, 19
s_add_u32 s94, s92, s14
s_xor_b32 s14, s14, 128
s_add_u32 s92, s92, s14
s_lshl_b32 s15, s15, 1
s_mul_i32 s93, s35, {UNIT}
s_sub_u32 s60, s93, s63
v_add_u32 v31, s60, v9
""")
voffs8(QST)
def wq_pre(n):
    r = n % 5; b = "s92" if n & 2 else "s94"
    p = [f"s_add_u32 m0, s63, {r*UNIT}" if r < 4 else "s_mov_b32 m0, s93", f"s_add_u32 s60, {b}, {(n&1)*32*QST}"]
    return p, ([f"s_add_u32 {b}, {b}, {64*QST}", f"s_and_b32 {b}, {b}, {512*QST-1}"] if n & 1 else [])
def wq_ops(n):
    p, q = wq_pre(n); return [(t, None) for t in p] + [(t, ("W", n)) for t in dma4("s60", nt("wq"))] + [(t, None) for t in q]
A(f"""
v_lshrrev_b32 v2, 4, v1
v_and_b32 v5, 15, v1
v_bfe_u32 v6, v1, 2, 2
v_lshlrev_b32 v6, 1, v6
s_movk_i32 s60, 0x78
v_lshrrev_b32 v6, v6, s60
v_and_b32 v6, 3, v6
v_xor_b32 v7, v6, v2
v_lshlrev_b32 v7, 4, v7
v_lshl_add_u32 v15, v5, 6, v7
v_add_u32 v15, {HIMG}, v15
v_bfe_u32 v4, v1, 2, 2
v_lshl_add_u32 v7, v4, 12, v7
v_and_b32 v4, 3, v1
v_lshl_add_u32 v7, v4, 8, v7
""")
A("v_xor_b32 v4, s15, v4")
for s in range(4): A(f"v_xor_b32 v5, {s}, v4\nv_lshl_add_u32 v{17+s}, v5, 6, v7")
A(f"""
s_lshl_b32 s60, s35, 1
s_lshr_b32 s60, 0x78, s60
s_and_b32 s60, s60, 3
v_lshlrev_b32 v3, 2, v2
v_xor_b32 v3, s60, v3
v_and_b32 v4, 15, v1
v_xor_b32 v3, v3, v4
v_lshlrev_b32 v3, 4, v3
v_lshl_add_u32 v3, v2, 8, v3
s_lshl_b32 s60, s35, 10
v_add_u32 v22, s60, v3
v_add_u32 v23, 3072, v22
v_add_u32 v24, 6144, v22
v_add_u32 v25, 9216, v22
v_bfe_u32 v3, v1, 2, 2
v_lshlrev_b32 v3, 8, v3
v_lshl_add_u32 v3, v2, 6, v3
v_and_b32 v4, 3, v1
v_lshl_add_u32 v3, v4, 4, v3
s_lshl_b32 s60, s35, 12
s_add_u32 s60, s60, 64
v_add_u32 v26, s60, v3
v_subrev_u32 v27, 8, v26
v_subrev_u32 v28, 16, v26
v_subrev_u32 v29, 24, v26
v_bfe_u32 v3, v1, 2, 1
v_xor_b32 v3, v3, v2
v_lshlrev_b32 v3, 6, v3
v_bfe_u32 v4, v1, 2, 2
v_lshl_add_u32 v3, v4, 12, v3
s_lshl_b32 s60, s35, 10
s_add_u32 s60, s60, {HIMG}
v_add_u32 v3, s60, v3
v_and_b32 v4, 3, v1
v_lshl_add_u32 v120, v4, 4, v3
v_xor_b32 v121, 32, v120
v_xor_b32 v122, 48, v120
v_xor_b32 v123, 16, v120
v_subrev_u32 v8, {HIMG}, v15
v_xor_b32 v8, 64, v8
v_add_u32 v8, {HIMG}, v8
""")
A(f"""
s_lshl_b32 s60, s56, 19
s_add_u32 s60, s60, {1536*256}
s_add_u32 s40, s6, s60
s_addc_u32 s41, s7, 0
s_mov_b32 s42, {512*256}
s_mov_b32 s43, 0x20000
s_sub_u32 s60, s60, 64
s_add_u32 s44, s8, s60
s_addc_u32 s45, s9, 0
s_mov_b32 s46, {512*256+64}
s_mov_b32 s47, 0x20000
s_lshl_b32 s6, s35, 12
s_mul_i32 s7, s35, 4128
s_add_u32 s7, s7, {VA}
s_lshl_b32 s8, s95, 14
s_mov_b32 s9, s8
""")
def k_ops(c): return ([f"s_add_u32 m0, s6, {KA if c%2==0 else KB}"], [f"buffer_load_dwordx4 v{22+i}, s[40:43], s8 offen offset:{i*1024}{nt('kv')} lds" for i in range(4)], ["s_add_u32 s8, s8, 16384", "s_and_b32 s8, s8, 0x1ffff"])
def v_ops(c): return ([f"s_add_u32 m0, s7, {(c&1)*16512}"], [f"buffer_load_dwordx4 v{26+i}, s[44:47], s9 offen offset:{i*1032}{nt('kv')} lds" for i in range(4)], ["s_add_u32 s9, s9, 16384", "s_and_b32 s9, s9, 0x1ffff"])
def kv_chain(Fl, g0, ops, tag, step=0):
    if step: spread_dma(Fl, g0, ops[0], ops[1], ops[2], tag, None, step); return
    chain_dma(Fl, g0, ops[0], ops[1], tag, None, "dma")
    for t in ops[2]: Fl.append(F(t, g0 + 4, g0 + 10, "dma"))
x_loads(8, 16)
def warm(lab):
    if not OPT.get("warm", 1): return
    t = "    s_mov_b64 exec, 0\n"
    for w in range(4):
        if w < 3: t += f"    s_cmp_eq_u32 s35, {w}\n    s_cbranch_scc0 {lab}_{w}\n"
        t += f"    s_call_b64 s[100:101], L_stub@{w}\n"
        if w < 3: t += f"    s_branch {lab}_ret\n{lab}_{w}:\n"
    st.raw(t + f"{lab}_ret:\n    s_mov_b64 exec, -1")
A("s_waitcnt vmcnt(12)")
warm("L_w1")

for i in range(4): A(f"v_mov_b32 v{112+2*i}, 0\nv_mov_b32 v{104+2*i}, 0")
A("v_mov_b32 v7, 0x3f803f80")
stamp("_issued")
def trickle(n=1):
    while pend and n:
        t, tag = pend.pop(0); st.add(t, tag=tag)
        if t.startswith("buffer") or t.startswith("global"): n -= 1
A(f"v_lshlrev_b32 v30, 4, v0\nv_add_u32 v30, {WS_MOD}, v30")
MC = [96, 100, 2 * 128 - 8, 2 * 128 - 4]
mchk = [f"buffer_load_dwordx4 a[{4*k}:{4*k+3}], v30, s[48:51], {['0', 's10', 's11', 's14'][k]} offen sc1" for k in range(KS)]
for k in range(1, KS): A(f"s_mov_b32 {['0', 's10', 's11', 's14'][k]}, {4096*k}")
for n in range(16):
    jj, i = n >> 2, n & 3
    for e in range(4): A(f"v_dot2c_f32_bf16 v{112+2*i}, v{xr(i,jj)+e}, v7\nv_dot2c_f32_bf16 v{104+2*i}, v{xr(i,jj)+e}, v{xr(i,jj)+e}")
    if n == 0: stamp("_x0")
stamp("x")
for t in mchk: A(t)
pend = wq_ops(0) + wq_ops(1); trickle(4)
for d in ("quad_perm:[1,0,3,2]", "quad_perm:[2,3,0,1]", "row_ror:4", "row_ror:8"):
    for i in range(4): A(f"v_add_f32_dpp v{112+2*i}, v{112+2*i}, v{112+2*i} {d} row_mask:0xf bank_mask:0xf\nv_add_f32_dpp v{104+2*i}, v{104+2*i}, v{104+2*i} {d} row_mask:0xf bank_mask:0xf")
for op in ["v_mul_f32 v{m}, {c512}, v{r}", "v_mul_f32 v{q}, {c512}, v{q}", "v_fma_f32 v{q}, -v{m}, v{m}, v{q}", "v_max_f32 v{q}, 0, v{q}", "v_add_f32 v{q}, {eps}, v{q}",
           "v_rsq_f32 v{r}, v{q}", "v_mul_f32_e64 v{q}, -v{m}, v{r}"]:
    for i in range(4): A(op.format(m=113 + 2 * i, r=112 + 2 * i, q=104 + 2 * i, c512=f2u(1 / 512), eps=f2u(1e-5)))
for r in range(64):
    i = (r >> 2) & 3
    A(f"v_lshlrev_b32 v{128+2*r}, 16, v{32+r}\nv_and_b32 v{129+2*r}, 0xffff0000, v{32+r}")
    A(f"v_pk_fma_f32 v[{128+2*r}:{129+2*r}], v[{128+2*r}:{129+2*r}], v[{112+2*i}:{113+2*i}], v[{104+2*i}:{105+2*i}] op_sel_hi:[1,0,0]")
    if r >= OPT.get("rw1", 36) and r % 6 == 0: trickle()
trickle(99)
stamp("_p6")
A("s_mul_i32 s34, s34, 0x9E3779B1\ns_add_u32 s34, s34, 0x7F4A7C15")
def mod_fetch():
    return "\n".join(f"v_accvgpr_read_b32 v{96+r}, a{r}" for r in range(4 * KS)) + "\nv_cmp_ne_u32 vcc, s34, v97\n" + "".join(f"v_cmp_ne_u32 s[100:101], s34, v{99+2*i}\ns_or_b64 vcc, vcc, s[100:101]\n" for i in range(2 * KS - 1))
A(mod_fetch()); A("s_cbranch_vccz L_pollmod_x")
keep = list(st.vm)
spin("L_pollmod", ["s_sleep 4"] + mchk, mod_fetch())
st.vm = keep
stamp("mod")
A(f"""
s_cmp_ge_u32 s35, 2
s_cselect_b32 s60, 1.0, 0
s_cselect_b32 s3, 2048, 0
s_add_u32 s3, s3, {MODV}
s_mov_b32 s61, {f2u(SCALE)}
""")
for k in range(KS):
    A(f"""v_lshlrev_b32 v2, 16, v{96+4*k}
    v_and_b32 v3, 0xffff0000, v{96+4*k}
    v_lshlrev_b32 v4, 16, v{98+4*k}
    v_and_b32 v5, 0xffff0000, v{98+4*k}""")
    for e in range(4): A(f"v_add_f32 v{112+e}, {'s60' if k == 0 else 'v' + str(112+e)}, v{2+e}")
for e in range(4): A(f"v_mul_f32 v{112+e}, s61, v{112+e}")
A(f"""
s_lshl_b32 s60, s95, 8
v_lshlrev_b32 v2, 4, v0
v_subrev_u32 v2, s60, v2
v_and_b32 v2, 2047, v2
v_add_u32 v2, s3, v2
ds_write_b128 v2, v[112:115]
v_and_b32 v30, 15, v1
v_lshlrev_b32 v30, 5, v30
v_add_u32 v30, {MODV}, v30
s_waitcnt lgkmcnt(0)
s_barrier
""")
stamp("_bar1")
QS = 64
def qstg(U, tp, tile, s): return QS + (U & 1) * 32 + s * 16 + tp * 8 + tile * 4
def q_reads(n):
    r = n % 5
    return p8_reads(lambda tp, tile: ("a", qstg(n >> 1, tp, tile, n & 1)), r * UNIT if r < 4 else 0, "v9" if r < 4 else "v31")
def modreads(jj, b):
    for i in range(4): A(f"ds_read_b128 v[{b+4*i}:{b+4*i+3}], v30 offset:{(i>>1)*2048 + jj*512 + (i&1)*16}")
for jj in range(4): modreads(jj, 32 + 16 * jj)
pend = wq_ops(2) + wq_ops(3) + wq_ops(4)
for n in range(16):
    jj, i = n >> 2, n & 3; b = 32 + 16 * jj; t = 128 + 8 * n; d = 96 + 4 * (n & 3)
    for e in range(4): A(f"v_pk_fma_f32 v[{t+2*e}:{t+2*e+1}], v[{t+2*e}:{t+2*e+1}], v[{b+8+2*e}:{b+9+2*e}], v[{b+2*e}:{b+2*e+1}]")
    for e in range(4): A(f"v_cvt_pk_bf16_f32 v{d+e}, v{t+2*e}, v{t+2*e+1}")
    A(f"ds_write_b128 v{120+i}, v[{d}:{d+3}] offset:{jj*16384 + i*256}")
    if n >= OPT.get("jw", 4): trickle()
stamp("_jloop")
for n in range(2):
    for i, t in enumerate(q_reads(n)): st.add(t, tag=("R", n), need=[("W", n)] if i == 0 else None)
stamp("_w01")
trickle(99)
stamp("_w34")
A("s_waitcnt lgkmcnt(0)\ns_barrier")
def hb(kk, s, cb): return (kk & 1) * 32 + (s * 4 + cb) * 4
for s in range(2):
    for cb in range(4): A(f"ds_read_b128 a[{hb(0,s,cb)}:{hb(0,s,cb)+3}], {'v8' if s else 'v15'} offset:{(s*4+cb)*1024}")
stamp("h")

def qacc(tp, tile, cb): return 128 + (tp * 8 + tile * 4 + cb) * 4
def qop(s, cb): return 32 + (s * 4 + cb) * 4
M = []; Fl = []; RES = {}; HBAR = 46
for U in range(16):
    kk, h2 = U >> 1, U & 1
    g0 = len(M)
    for tp in range(2):
        for tile in range(2):
            for cb in range(4):
                for s in range(2):
                    M.append(mf(qacc(2 * h2 + tp, tile, cb), qstg(U, tp, tile, s), hb(kk, s, cb), "0" if (kk == 0 and s == 0) else None))
    for s in range(2):
        n = 2 * U + 2 + s; g = g0 + 16 * s + (10 if n == 2 else 4 if n == 3 else 0)
        def refill(n, g, step):
            m = n + 5
            if m >= 32: return
            p, q = wq_pre(m)
            spread_dma(Fl, g, p, dma4("s60", nt("wq")), q, ("W", m), [("R", n)], step)
        if U == 0 and s == 0: refill(0, 3, 2); refill(1, 11, 2)
        if n < 32:
            for i, t in enumerate(q_reads(n)): Fl.append(F(t, g + i, g + i + 1, "rd", tag=("R", n), need=[("W", n)] if i == 0 else None))
            refill(n, g + 11, 4 if n > 4 else 2 if n == 2 else 3)
    RES[g0 + 31] = 1
    if U: Fl += stampF(f"q{U}", g0)
    if kk < 7:
        for i in range(4):
            n = 4 * h2 + i; s, cb = n >> 2, n & 3
            Fl.append(F(f"ds_read_b128 a[{hb(kk+1,s,cb)}:{hb(kk+1,s,cb)+3}], {'v8' if s else 'v15'} offset:{((kk+1)*8+n)*1024}", g0 + 8 + (i & 1) + 16 * (i >> 1), g0 + 12 + (i & 1) + 16 * (i >> 1), "hb", tag=("HB", kk + 1)))
    if U == 4:
        Fl.append(F("s_add_u32 s61, s8, s6", g0 + 20, g0 + 26, "kpf"))
        for i in range(4): Fl.append(dummyF(f"buffer_load_dwordx4 a[244:247], v16, s[40:43], s61 offen offset:{i*1024}", g0 + 26 + 8 * i, g0 + 30 + 8 * i, "kpf"))
    if kk == 7:
        for tp in range(2):
            T = 2 * h2 + tp - 1
            if T >= 0:
                for cb in range(4):
                    for e in range(4):
                        src = qacc(T, e >> 1, cb) + 2 * (e & 1)
                        Fl.append(F(f"v_cvt_pk_bf16_f32 v{qop(T,cb)+e}, v{src}, v{src+1}", g0 + 16 * tp + 2, g0 + 16 * tp + 15, "cv"))
        if h2 == 0:
            Fl.append(F(("barrier", [("HB", 7), ("R", 29)]), g0 + 1, g0 + 1, "dma"))
            kv_chain(Fl, g0 + 8, k_ops(0), ("K", 0))
            kv_chain(Fl, g0 + 24, k_ops(1), ("K", 1))
        else:
            kv_chain(Fl, g0 + 1, v_ops(0), ("V", 0))
            Fl.append(F(("barrier", [("K", 0)]), g0 + 15, g0 + 15, "rd"))
            for s in range(4): Fl.append(F(f"ds_read_b128 a[{STG+s*4}:{STG+s*4+3}], v{17+s} offset:{KA}", g0 + 16 + s, g0 + 22, "rd", tag=("R", "k00")))
schedule(st, M, Fl, reserve=RES, verbose="Q")
for cb in range(4):
    for e in range(4):
        src = qacc(3, e >> 1, cb) + 2 * (e & 1)
        A(f"v_cvt_pk_bf16_f32 v{qop(3,cb)+e}, v{src}, v{src+1}")
st.newphase(); stamp("Q")
voffs16(1024)
A(f"""
s_lshl_b32 s60, s56, 19
s_lshl_b32 s61, s35, {OPT.get("wocol", 6)}
s_and_b32 s61, s61, {OPT.get("womask", 1023)}
s_add_u32 s60, s60, s61
s_add_u32 s36, s12, s60
s_addc_u32 s37, s13, 0
s_sub_u32 s38, {4096*1024}, s60
v_mov_b32 v2, 0x3f803f80
v_accvgpr_write_b32 a240, v2
v_accvgpr_write_b32 a241, v2
v_accvgpr_write_b32 a242, v2
v_accvgpr_write_b32 a243, v2
s_and_b32 s14, s57, {OPT.get("rotmask", 7) & 3}
s_lshl_b32 s92, s14, 8
s_bfe_u32 s15, s57, 0x20002
s_and_b32 s15, s15, {OPT.get("rotmask", 7) & 3}
s_lshl_b32 s94, s15, 17
s_mul_i32 s93, s97, 57344
s_mul_i32 s60, s35, 14336
s_add_u32 s93, s93, s60
""")
srd(52, 16, 512 * 3584)
def wo_pre(u, m0):
    p = [m0, "s_add_u32 s60, s92, s94", "s_add_u32 s94, s94, 0x10000", "s_and_b32 s94, s94, 0x7ffff"]
    return p
def wo_chain(Fl, g, u, m0, need, late=3):
    p = wo_pre(u, m0)
    chain_dma(Fl, g, p[:2], dma4("s60", nt("wo")), ("W", u), need, "dma", late)
    post = p[2:] + (["s_add_u32 s92, s92, 256", "s_and_b32 s92, s92, 1023"] if (u & 7) == 7 else [])
    for t in post: Fl.append(F(t, g, g + late + 8, "dma"))

def S(kt, cb): return 96 + (kt * 4 + cb) * 4
def P(c, s, cb): return 160 + (c & 1) * 32 + (s * 4 + cb) * 4
def CI(cb): return 224 + 4 * cb
def oacc(tp, tile, cb): return (tp * 8 + tile * 4 + cb) * 4
def woreg(u, tile, s):
    o = tile * 8 + s * 4
    return ("a", 128 + u * 16 + o) if u < 4 else (("v", 128 + (u - 4) * 16 + o) if u < 6 else ("v", 192 + (u - 6) * 16 + o))
LS = 224
def RS(u): return (u + 2) & 3
units = [("QK", 0, k) for k in range(4)]
for c in range(7): units += [("QK", c + 1, k) for k in range(4)] + [("L", c, 0)] + [("PV", c, k) for k in range(4)]
units += [("L", 7, 0)] + [("PV", 7, k) for k in range(4)]
M = []; Fl = []; RES = {}; G = {}; buf = {}
staged = [u for u in units if u[0] != "L"]
for n, u in enumerate(staged): buf[u] = n
pos = 0
for un in units: G[un] = pos; pos += 8 if un[0] == "L" else 16
NATT = pos
def oop(dp, cb): return 32 + (dp * 4 + cb) * 4
pf = []
LP0 = 2
if OPT["pf_w1"]: pf += [("w1", i) for i in range(14)]
if OPT["pf_w2"]: pf += [("w2", i) for i in range(14)]
for un in units:
    ty, c, k = un; g0 = len(M); assert g0 == G[un]
    if ty == "QK":
        b = STG + (buf[un] & 1) * 16
        for cb in range(4):
            for s in range(4):
                M.append(mf(S(k, cb), b + 4 * s, qop(s, cb), None if s else ("0" if (c == 0 and k < 2) else CI(cb)), "v", "a", "v"))
    elif ty == "L":
        for cb in range(4):
            for s in range(2): M.append(mf(LS + 4 * cb, 240, P(c, s, cb), "0" if (c == 0 and s == 0) else None, "a", "a", "v"))
    else:
        for tile in range(2):
            for cb in range(4):
                for s in range(2): M.append(mf(oacc(k, tile, cb), stg(buf[un], tile, s), P(c, s, cb), "0" if (c == 0 and s == 0) else None, "a", "a", "v"))
    if ty == "L": continue
    RES[g0 + 15] = 1
    bar = None
    if (ty, c, k) == ("QK", 0, 3): bar = 1
    if ty == "PV" and k == 3 and c < 7: bar = c + 2
    rg = g0
    if bar is not None:
        Fl.append(F(("barrier", [("R", un), ("V", bar - 1)] + ([("K", bar)] if bar <= 7 else [])), g0 + 1, g0 + 1, "rd")); rg = g0 + 2
        Fl += stampF(f"B{bar}", g0 + 2)
        VS = OPT.get("vs", 5); gk = g0 + 8
        if bar + 1 <= 7: kv_chain(Fl, gk, k_ops(bar + 1), ("K", bar + 1), VS); gk += 4 * VS
        if bar <= 7: kv_chain(Fl, gk, v_ops(bar), ("V", bar), VS); gk += 4 * VS
        plan = {1: [("d", 0)], 2: [("d", 1)], 3: [("d", 2), ("r", 0)], 4: [("d", 3), ("r", 1), ("d", 4)], 5: [("r", 2), ("d", 5)], 6: [("r", 3), ("d", 6)], 7: [("d", 7)]}.get(bar, [])
        gr = g0 + 20
        for kind, u in plan:
            if kind == "d":
                p = wo_pre(u, f"s_add_u32 m0, s63, {RS(u)*UNIT}")
                spread_dma(Fl, gk, p[:2], dma4("s60", nt("wo")), p[2:] + (["s_add_u32 s92, s92, 256", "s_and_b32 s92, s92, 1023"] if (u & 7) == 7 else []), ("W", u), [("RW", u - 4)] if u >= 4 else None, VS); gk += 4 * VS
            else:
                for i, t in enumerate(p16_reads(lambda tile, s: woreg(u, tile, s), RS(u) * UNIT)):
                    Fl.append(F(t, gr + 2 * i, gr + 6 + 2 * i, "wor", tag=("RW", u), need=[("W", u)] if i == 0 else None))
        if bar <= 7:
            for n in range(4):
                if not pf: break
                nm, i = pf.pop(0)
                if nm == "w2" and i == 0:
                    for t in ["s_mov_b32 s52, s20", "s_mov_b32 s53, s21"] + (["s_sub_u32 s93, s93, 12288"] if OPT["pf_w1"] else []): Fl.append(F(t, gk - 3, gk, "dma"))
                if i and i % 4 == 0: Fl.append(F("s_add_u32 s93, s93, 4096", gk - 3, gk, "dma"))
                Fl.append(dummyF(f"buffer_load_dwordx4 a[244:247], v16, s[52:55], s93 offen offset:{(i%4)*1024}", gk, gk + 2, "dma")); gk += VS
    i = staged.index(un)
    if i + 1 < len(staged):
        nx = staged[i + 1]; nb = STG + (buf[nx] & 1) * 16
        if nx[0] == "QK":
            for s in range(4):
                Fl.append(F(f"ds_read_b128 a[{nb+4*s}:{nb+4*s+3}], v{17+s} offset:{(KA if nx[1]%2==0 else KB) + nx[2]*1024}", rg + s // 2, rg + 4 + s, "rd", tag=("R", nx)))
        else:
            i2 = 0
            for tile in range(2):
                for s in range(2):
                    for hf in range(2):
                        d = stg(buf[nx], tile, s) + 2 * hf
                        Fl.append(F(f"ds_read_b64_tr_b16 a[{d}:{d+1}], v21 offset:{(nx[1]&1)*16512 + (4*s+2*hf)*2064 + nx[2]*256 + tile*8}", rg + i2 // 2, rg + 1 + i2, "rd", tag=("R", nx))); i2 += 1
g1 = G[("QK", 0, 1)]
for cb in range(4):
    s0 = S(0, cb); t = 240 + 2 * cb; ch = ("mx", cb); e = g1 + max(0, 4 * cb - 8); l = g1 + 14 + 4 * cb
    for txt in [f"v_max3_f32 v{t}, v{s0}, v{s0+1}, v{s0+2}", f"v_max_f32 v{t}, v{t}, v{s0+3}", f"v_mov_b32 v{t+1}, v{t}",
                f"v_permlane16_swap_b32 v{t}, v{t+1}", f"v_max_f32 v{t}, v{t}, v{t+1}", f"v_mov_b32 v{t+1}, v{t}",
                f"v_permlane32_swap_b32 v{t}, v{t+1}", f"v_max_f32 v{t}, v{t}, v{t+1}"] + [f"v_sub_f32 v{CI(cb)+i}, 0, v{t}" for i in range(4)]:
        Fl.append(F(txt, e, l, ch))
for c in range(8):
    for kt in range(4):
        gq = G[("QK", c, kt)]
        for cb in range(4):
            e = gq + 4 * cb + 3 + 5
            l = (G[("QK", c + 1, kt)] + 4 * cb - 1) if c < 7 else G[("L", 7, 0)] - 2
            l = min(l, G[("L", c, 0)] - 2)
            ch = ("sm", kt, cb); s0 = S(kt, cb)
            if c == 0 and kt < 2:
                ch = ("mx", cb)
                for i in range(4): Fl.append(F(f"v_add_f32 v{s0+i}, v{CI(cb)}, v{s0+i}", e, l, ch))
            for i in range(4): Fl.append(F(f"v_exp_f32 v{s0+i}, v{s0+i}", e, l, ch))
            for i in range(2): Fl.append(F(f"v_cvt_pk_bf16_f32 v{P(c,kt>>1,cb)+2*(kt&1)+i}, v{s0+2*i}, v{s0+2*i+1}", e, l, ch))
gL = G[("L", 7, 0)]
for cb in range(4): Fl.append(F(f"v_accvgpr_read_b32 v{240+cb}, a{LS+4*cb}", gL + 12, gL + 20, "nrm"))
for cb in range(4): Fl.append(F(f"v_rcp_f32 v{244+2*cb}, v{240+cb}", gL + 12, gL + 24, "nrm"))
def norm_ops(dp, cb, pk):
    t = 160 + cb * 8; o = []
    for tile in range(2):
        for r in range(4): o.append(f"v_accvgpr_read_b32 v{t+4*tile+r}, a{oacc(dp,tile,cb)+r}")
    if pk: o += [f"v_pk_mul_f32 v[{t+2*r}:{t+2*r+1}], v[{t+2*r}:{t+2*r+1}], v[{244+2*cb}:{245+2*cb}] op_sel_hi:[1,0]" for r in range(4)]
    else: o += [f"v_mul_f32 v{t+r}, v{244+2*cb}, v{t+r}" for r in range(8)]
    d = 96 + ((dp * 4 + cb) & 3) * 4
    o += [f"v_cvt_pk_bf16_f32 v{d+e}, v{t+2*e}, v{t+2*e+1}" for e in range(4)]
    o.append(f"ds_write_b128 v30, v[{d}:{d+3}] offset:{(dp*4+cb)*1024}")
    return o
def blk_addr(dst, src, add):
    A(f"""s_add_u32 s60, {src}, {add}
    s_and_b32 s60, s60, 3
    s_mul_i32 s61, s60, {KB}
    s_cmp_eq_u32 s60, 2
    s_cselect_b32 s61, {VA}, s61
    s_cmp_eq_u32 s60, 3
    s_cselect_b32 s61, {XR}, s61
    v_add_u32 v{dst}, s61, v16""")
blk_addr(30, "s35", 0)
for i in range(4): blk_addr(2 + i, "s15", i)
A(f"""
s_sub_u32 s3, s96, {LP0}
s_lshl_b32 s13, s3, 5
s_add_u32 s13, s13, s97
s_lshl_b32 s60, s13, 6
s_mul_i32 s61, s35, {128*6144}
s_add_u32 s60, s60, s61
s_add_u32 s60, s60, 2048
s_cmp_lt_u32 s3, 2
s_cselect_b32 s60, s60, {OOB}
s_cselect_b32 s61, 0, {OOB}
s_mov_b32 s12, s2
v_lshrrev_b32 v248, 5, v1
v_lshlrev_b32 v248, 4, v248
v_bfe_u32 v249, v1, 2, 3
v_add_u32 v248, v248, v249
v_mul_u32_u24 v248, 6144, v248
v_and_b32 v249, 3, v1
v_lshl_add_u32 v248, v249, 4, v248
v_add_u32 v249, {8*6144-1032}, v248
v_add_u32 v250, {32*6144-2064}, v248
v_add_u32 v251, {40*6144-3096}, v248
v_lshlrev_b32 v252, 2, v0
""")
srd(0, 24, 1024)
A("buffer_load_dword v252, v252, s[0:3], s61 offen")
srd(0, 26, 512 * 6144)
A("s_mov_b32 s10, s60\ns_mov_b32 m0, s63")
for i in range(4): st.add(f"buffer_load_dwordx4 v{248+i}, s[0:3], s10 offen offset:{i*1032}{nt('mod')} lds", tag="wm")
lpF = []; spread_dma(lpF, G[("PV", 0, 1)] + 4, [f"s_add_u32 m0, s63, {UNIT}", f"s_add_u32 s10, s10, {64*6144}"], [f"buffer_load_dwordx4 v{248+i}, s[0:3], s10 offen offset:{i*1032}{nt('mod')} lds" for i in range(4)], ["s_mov_b32 s2, s12"], "wm", None, 5)
cut = min(f.order for f in Fl if f.chain == "dma" and f.e >= G[("PV", 0, 3)])
for i, f in enumerate(lpF): f.order = cut - 1 + (i + 1) / 100.0
Fl += lpF
def late_producer():
    A(f"s_sub_u32 s3, s96, {LP0}\ns_cmp_ge_u32 s3, 2\ns_cbranch_scc1 L_nolp")
    keep = (list(st.vm), list(st.lg), list(st.hist))
    silu_to_lds(252, 240)
    A(f"v_lshrrev_b32 v240, 4, v1\nv_lshlrev_b32 v240, 4, v240\ns_lshl_b32 s3, s35, 8\ns_add_u32 s3, s3, {SILU}\nv_add_u32 v240, s3, v240\ns_waitcnt lgkmcnt(0)\ns_barrier")
    for k in range(4): A(f"ds_read_b128 a[{128+4*k}:{131+4*k}], v240 offset:{k*64}")
    st.need("wm")
    for u in range(2):
        for t in p16_reads(lambda tile, s: ("a", 144 + u * 16 + tile * 8 + s * 4), u * UNIT): A(t)
    for k in range(4):
        for tile in range(2): A(mf(244 + 4 * tile, 144 + (k >> 1) * 16 + tile * 8 + (k & 1) * 4, 128 + 4 * k, "0" if k == 0 else None))
    A(f"s_lshl_b32 s13, s13, 7\ns_add_u32 s13, s13, {WS_MOD2}")
    publish(2, 244, "L_lp_x", "s13", tmp=240, stmp="s3")
    A("L_lp_x:\ns_waitcnt lgkmcnt(0)\ns_nop 7\nL_nolp:")
    st.vm, st.lg, st.hist = keep
Fl.append(F(("call", late_producer), G[("PV", 1, 3)] + 1, G[("PV", 1, 3)] + 1, "lp"))
NHID = 4
grp = [(dp, cb) for dp in range(4) for cb in range(4)]
for dp, cb in grp[:NHID]:
    for t in norm_ops(dp, cb, False): Fl.append(F(t, G[("PV", 7, dp)] + 16 + 3, NATT - 1, "nrm"))
for u in (4, 5):
    g = gL + 1 + (u - 4) * 30
    for i, t in enumerate(p16_reads(lambda tile, s: woreg(u, tile, s), RS(u) * UNIT)): Fl.append(F(t, g + i, g + 12 + i, "dma", tag=("RW", u), need=[("W", u)] if i == 0 else None))
    wo_chain(Fl, g + 18, u + 4, f"s_add_u32 m0, s63, {RS(u)*UNIT}", [("RW", u)], late=6)
schedule(st, M, Fl, reserve=RES, verbose="attn", mem2=("rd", "wor"), minback=OPT.get("minback", 10))
stamp("attn")
for u in (6, 7):
    for i, t in enumerate(p16_reads(lambda tile, s: woreg(u, tile, s), RS(u) * UNIT)): st.add(t, tag=("RW", u), need=[("W", u)] if i == 0 else None)
for n, (dp, cb) in enumerate(grp[NHID:]):
    for t in norm_ops(dp, cb, True): st.add(t, tag="ow" if t.startswith("ds_write") else None)

def oB(i, cb): return ("v", 32 + (i * 4 + cb) * 4) if i < 4 else ("a", ((i - 4) * 4 + cb) * 4)
def pacc(i, tile, cb): return 96 + (i & 1) * 32 + (tile * 4 + cb) * 4
def oB_read(ks, cb):
    f, r = oB(ks, cb); return f"ds_read_b128 {f}[{r}:{r+3}], v{2 + (ks>>2)} offset:{((ks&3)*4+cb)*1024}"
A(f"""
v_and_b32 v6, 15, v1
v_lshrrev_b32 v7, 1, v6
v_and_b32 v6, 1, v1
v_lshrrev_b32 v8, 4, v1
v_lshlrev_b32 v31, 11, v7
v_lshl_add_u32 v31, v6, 4, v31
v_lshl_add_u32 v31, v8, 5, v31
v_lshrrev_b32 v7, 3, v1
v_and_b32 v8, 7, v1
v_lshlrev_b32 v23, 9, v8
v_and_b32 v22, 31, v1
v_lshlrev_b32 v24, 4, v22
v_lshlrev_b32 v22, 2, v22
v_lshrrev_b32 v8, 5, v1
v_lshl_add_u32 v24, v8, 16, v24
v_mov_b32 v25, s34
s_mul_i32 s6, s35, {UNIT}
s_add_u32 s6, s6, {VB}
s_sub_u32 s60, s6, s63
v_add_u32 v20, s60, v10
s_mul_i32 s7, s35, {2*UNIT}
s_sub_u32 s60, s7, s63
v_add_u32 v21, s60, v10
s_mul_i32 s62, s35, {UNIT}
s_add_u32 s62, s62, {8*UNIT}
s_cmp_eq_u32 s35, 3
s_cselect_b32 s62, {MISC+8192}, s62
s_sub_u32 s60, s62, s63
v_add_u32 v15, s60, v10
s_lshl_b32 s61, s57, 3
s_add_u32 s61, s61, s56
s_lshl_b32 s93, s61, 16
s_lshl_b32 s60, s35, 7
s_add_u32 s93, s93, s60
s_add_u32 s93, s93, {WS_PART}
s_lshl_b32 s8, s14, 9
s_lshl_b32 s9, s61, 9
s_add_u32 s9, s9, {WS_F1}
s_cmp_lg_u32 s35, 0
s_cselect_b32 s9, {OOB}, s9
s_lshl_b32 s0, s58, 12
s_add_u32 s0, s0, {WS_F1}
s_lshl_b32 s1, s58, 19
s_lshl_b32 s60, s59, 13
s_add_u32 s1, s1, s60
s_lshl_b32 s60, s35, 11
s_add_u32 s1, s1, s60
s_add_u32 s1, s1, {WS_PART}
s_and_b32 s12, s58, {OPT.get("rotmask", 7) & 3}
s_lshl_b32 s12, s12, 9
s_mov_b32 s15, 0
""")
A(f"""
v_lshrrev_b32 v6, 5, v1
s_and_b32 s60, s58, {OPT.get("rotmask", 7) & 3}
v_add_u32 v6, s60, v6
v_add_u32 v7, 2, v6
v_and_b32 v6, 3, v6
v_and_b32 v7, 3, v7
v_and_b32 v8, 30, v1
v_lshlrev_b32 v8, 3, v8
v_lshl_add_u32 v6, v6, 8, v8
v_lshl_add_u32 v7, v7, 8, v8
v_lshlrev_b32 v240, 1, v6
v_lshlrev_b32 v241, 1, v7
v_add_u32 v242, {MODV}, v240
v_add_u32 v243, {MODV}, v241
v_and_b32 v8, 1, v1
v_lshl_add_u32 v6, v8, 10, v6
v_lshl_add_u32 v7, v8, 10, v7
v_lshlrev_b32 v8, 4, v0
v_add_u32 v8, {WS_MOD2}, v8
s_lshl_b32 s10, s58, 16
s_lshl_b32 s60, s59, 13
s_add_u32 s10, s10, s60
s_lshl_b32 s60, s35, 11
s_add_u32 s10, s10, s60
""")
srd(52, 4, 2048 * 1024)
if OPT.get("stpat") == 1: A("v_and_b32 v31, 3, v1\nv_lshlrev_b32 v31, 4, v31\nv_lshrrev_b32 v18, 5, v1\nv_lshl_add_u32 v31, v18, 6, v31\nv_bfe_u32 v18, v1, 2, 3\nv_lshl_add_u32 v31, v18, 11, v31")
if OPT.get("stpat") == 2: A("v_and_b32 v31, 7, v1\nv_lshlrev_b32 v31, 4, v31\nv_lshrrev_b32 v18, 3, v1\nv_lshl_add_u32 v31, v18, 11, v31")
A("s_movk_i32 s11, 4096")
st.need("ow"); A("s_barrier")
for ks in range(2):
    for cb in range(4): A(oB_read(ks, cb))
st.newphase(); stamp("norm")
def slot_m0(r): return f"s_add_u32 m0, s63, {r*UNIT}" if r < 4 else {4: "s_mov_b32 m0, s6", 5: "s_mov_b32 m0, s7", 6: f"s_add_u32 m0, s7, {UNIT}", 7: "s_mov_b32 m0, s62"}[r]
def slot_rd(r): return (r * UNIT, "v10") if r < 4 else {4: (0, "v20"), 5: (0, "v21"), 6: (UNIT, "v21"), 7: (0, "v15")}[r]
def part_cvt(n): return [f"v_cvt_pk_bf16_f32 v{224+4*cb+k}, v{pacc(n,k>>1,cb)+2*(k&1)}, v{pacc(n,k>>1,cb)+2*(k&1)+1}" for cb in range(4) for k in range(4)]
def flag1(n): return f"buffer_store_dword v25, v22, s[48:51], s9 offen offset:{n*128} sc1"
def pread(n, soff): return [f"buffer_load_dwordx4 v[{160+16*n+4*gp}:{163+16*n+4*gp}], v24, s[48:51], {soff[gp]} offen sc1" for gp in range(4)]
M = []; Fl = []; RES = {}
slot = {u: (RS(u) if (u & 7) < 4 else u & 7) for u in range(8, 32)}
ld = [(10, slot[10], 1, None), (11, slot[11], 17, None), (12, 4, 33, None), (13, 5, 4 * 16 + 11, None), (14, 6, 5 * 16 + 11, None), (15, 7, 6 * 16 + 11, None)] + [(u, slot[u], (u - 9) * 16 + 11, u - 8) for u in range(16, 32)]
for u in range(32):
    n, kk = u >> 3, u & 7; g0 = len(M)
    for tile in range(2):
        for cb in range(4):
            for s in range(2):
                f, r = oB(2 * kk + s, cb)
                fa, ra = woreg(u, tile, s) if u < 8 else ("a", stg(u, tile, s))
                M.append(mf(pacc(n, tile, cb), ra, r, "0" if (kk == 0 and s == 0) else None, "v", fa, f))
    if 8 <= u + 1 < 32:
        off, ad = slot_rd(slot[u + 1])
        for i, t in enumerate(p16_reads(lambda tile, s: ("a", stg(u + 1, tile, s)), off, ad)):
            Fl.append(F(t, g0 + i, g0 + i + 1, "rd", tag=("R", u + 1), need=[("W", u + 1)] if i == 0 else None))
    RES[g0 + 15] = 1
bsched = {0: [2, 3, 4, 5], 1: [6, 7, 8, 9], 2: [10, 11, 12, 13], 3: [14], 4: [15]}
for u, kss in bsched.items():
    i = 0
    for ks in kss:
        for cb in range(4):
            e = u * 16 + i; Fl.append(F(oB_read(ks, cb), e, e + 1, "ob", tag="OB")); i += 1
for u, r, g, nd in ld:
    if u == 13: Fl.append(F(("barrier", ["OB"]), 4 * 16 + 9, 4 * 16 + 9, "dma"))
    p = wo_pre(u, slot_m0(r))
    spread_dma(Fl, g, p[:2], dma4("s60", nt("wo")), p[2:] + (["s_add_u32 s92, s92, 256", "s_and_b32 s92, s92, 1023"] if (u & 7) == 7 else []), ("W", u), [("R", nd)] if nd is not None else None, 4)
for n in range(3):
    g = (8 * n + 8) * 16
    Fl.append(F("s_add_u32 s61, s93, s8", g + 2, g + 8, "po"))
    SS = OPT.get("ss", 4)
    for cb in range(4):
        for t in part_cvt(n)[4 * cb:4 * cb + 4]: Fl.append(F(t, g + 2, g + 9 + SS * cb, "po"))
        if not OPT.get("nopart"): Fl.append(F(f"buffer_store_dwordx4 v[{224+4*cb}:{227+4*cb}], v31, s[48:51], s61 offen{'' if OPT.get('plainst') else ' sc1'}", g + 9 + SS * cb, g + 10 + SS * cb, "po", tag=("part", n)))
        Fl.append(F("s_add_u32 s61, s61, 16384" if cb < 3 else "s_add_u32 s8, s8, 512", g + 9, g + 12 + SS * cb, "po"))
    Fl.append(F("s_and_b32 s8, s8, 2047", g + 20, g + 14 + 3 * SS, "po"))
    gf = g + OPT.get("gf", 6 * 16 + 9)
    if n == 2 and OPT.get("nof2"): continue
    Fl.append(F(("barrier", [("part", n)]), gf, gf, "po"))
    Fl.append(F(flag1(n), gf + 1, gf + 1, "po"))
Fl.append(F("buffer_load_dword v240, v23, s[48:51], s0 offen offset:128 sc1", 31 * 16, 31 * 16 + 4, "po"))
for i, t in enumerate(["buffer_load_dwordx4 v[244:247], v6, s[52:55], s10 offen", "buffer_load_dwordx4 v[248:251], v7, s[52:55], s10 offen",
                       "buffer_load_dwordx4 v[252:255], v8, s[48:51], 0 offen sc1", "buffer_load_dwordx4 v[26:29], v8, s[48:51], s11 offen sc1"]):
    Fl.append(F(t, OPT.get("gsm", 24 * 16 + 30) + 16 * i, OPT.get("gsm", 24 * 16 + 30) + 4 + 16 * i, "sm"))
g = 23 * 16 + 12
w1s = ["s_min_u32 s62, s59, 6", "s_lshl_b32 s62, s62, 9", "s_lshl_b32 s60, s35, 7", "s_add_u32 s62, s62, s60", "s_add_u32 s36, s16, s62\ns_addc_u32 s37, s17, 0", f"s_sub_u32 s38, {512*3584}, s62", f"s_mul_i32 s92, s59, {64*3584}",
       "v_bfe_u32 v18, v1, 2, 3", "v_mul_u32_u24 v18, 3584, v18", "v_lshrrev_b32 v19, 5, v1", "v_lshl_add_u32 v18, v19, 6, v18", "v_and_b32 v19, 3, v1", "v_lshl_add_u32 v11, v19, 4, v18",
       f"v_add_u32 v12, {8*3584-1032}, v11", f"v_add_u32 v13, {16*3584-2064}, v11", f"v_add_u32 v14, {24*3584-3096}, v11"]
for t in w1s: Fl.append(F(t, g, g + 14, "dma"))
NW0 = OPT.get('nw0', 7)
def w1_pre(): return ["s_mov_b32 s60, s92", f"s_add_u32 s92, s92, {32*3584}", f"s_cmp_eq_u32 s92, {512*3584}\ns_cselect_b32 s92, 0, s92"]
for k in range(NW0):
    p = w1_pre(); spread_dma(Fl, 24 * 16 + 12 + 16 * k - (k // 2) * 3, [slot_m0(slot[24 + k])] + p[:1], dma4("s60"), p[1:], ("W1", k), [("R", 24 + k)], 3)
for u in (8, 16, 24): Fl += stampF(f"O{u}", u * 16)
schedule(st, M, Fl, reserve=RES, verbose="O")
for t in part_cvt(3): A(t)
A("s_add_u32 s61, s93, s8")
for cb in range(4):
    st.add(f"buffer_store_dwordx4 v[{224+4*cb}:{227+4*cb}], v31, s[48:51], s61 offen sc1", tag=("part", 3))
    if cb < 3: A("s_add_u32 s61, s61, 16384")
stamp("O")

def w1reg(half, s, tile): return ((half * 16 + s) * 2 + tile) * 4
def w2reg(ks, tp, tile):
    o = tp * 8 + tile * 4
    if ks < 4: return ("v", 160 + ks * 16 + o)
    if ks < 9: return ("a", (ks - 4) * 16 + o)
    if ks < 13: return ("a", 192 + (ks - 9) * 16 + o)
    return ("v", 208 + o)
KS2 = [(p, 0) for p in range(7)] + [(p, 1) for p in range(7)]
class WS:
    nd = NW0; nr = 0; slot_of = {k: slot[24 + k] for k in range(NW0)}; last = {slot[24 + k]: k for k in range(NW0)}
def w_dma(n, slots):
    for _ in range(n):
        u = WS.nd; WS.nd += 1
        r = [x for x in slots if WS.last.get(x, -1) < WS.nr][0]
        A(slot_m0(r))
        if u == 16: w2_setup()
        A("\n".join(w1_pre()) if u < 16 else "\n".join(w2_pre(u - 16)))
        for i, t in enumerate(dma4("s60")): st.add(t, tag=("W1", u), need=[("R1", WS.last[r])] if (i == 0 and r in WS.last) else None)
        WS.slot_of[u] = r; WS.last[r] = u
def w_read(n):
    for _ in range(n):
        u = WS.nr; WS.nr += 1; r = WS.slot_of[u]
        if u < 16:
            off, ad = slot_rd(r); L = p8_reads(lambda tp, tile: ("a", w1reg(tp, u, tile)), off, "v9" if r < 4 else ad)
        else:
            L = p8_reads(lambda tp, tile: w2reg(u - 16, tp, tile), r * UNIT)
        for i, t in enumerate(L): st.add(t, tag=("R1", u), need=[("W1", u)] if i == 0 else None)
def w2_setup():
    voffs8(1024)
    A(f"""
    s_lshl_b32 s60, s35, 16
    s_lshl_b32 s61, s59, 7
    s_add_u32 s60, s60, s61
    s_add_u32 s36, s20, s60
    s_addc_u32 s37, s21, 0
    s_sub_u32 s38, {1792*1024}, s60
    s_cmp_eq_u32 s59, 7
    s_cselect_b32 s7, 0, s59
    s_lshl_b32 s8, s7, 15
    s_lshl_b32 s7, s7, 18
    """)
def w2_pre(ks): return [f"s_add_u32 s60, s7, {(ks // 7) * 32768}", "s_add_u32 s7, s7, 0x40000", f"s_cmp_eq_u32 s7, {7 << 18}\ns_cselect_b32 s7, 0, s7"]
ALL7 = [0, 1, 2, 3, 4, 5, 6]
srd(52, 18, 3584)
A("v_lshrrev_b32 v2, 4, v1\nv_lshlrev_b32 v2, 4, v2\nbuffer_load_dwordx4 v[80:83], v2, s[52:55], s62 offen\nbuffer_load_dwordx4 v[84:87], v2, s[52:55], s62 offen offset:64")
A("v_subrev_u32 v2, v10, v9\nv_add_u32 v20, v2, v20\nv_add_u32 v21, v2, v21")
stamp("elp")
A("v_cmp_ne_u32 vcc, s34, v240\ns_cmp_lg_u32 vcc_lo, 0\ns_cselect_b32 s15, 1, 0")
def preads(n, sel=False):
    A(f"s_add_u32 s13, s12, {n*512}\ns_and_b32 s13, s13, 2047\ns_add_u32 s13, s13, s1")
    if sel: A(f"s_and_b32 s3, s15, {int(sel)}\ns_cselect_b32 s13, {OOB}, s13")
    for gp, t in enumerate(pread(n, ["s13"] * 4)):
        A(t)
        if gp < 3: A("s_add_u32 s13, s13, 0x20000")
m2 = ["buffer_load_dwordx4 v[252:255], v8, s[48:51], 0 offen sc1", "buffer_load_dwordx4 v[26:29], v8, s[48:51], s11 offen sc1"]
for n in range(2): preads(n, True)
stamp("epr")
st.need(("part", 3))
stamp("eack")
A("s_barrier"); A(flag1(3))
stamp("f1st")
w_read(NW0)
A("v_mov_b32 v2, 0x3f80\nv_mov_b32 v3, 0x3f800000")
for r in range(32): A(f"v_mov_b32 v{96+r}, 0")
def accq(n):
    for gp in range(4):
        for r in range(4): A(f"v_dot2c_f32_bf16 v{96+8*n+2*r}, v{160+16*n+4*gp+r}, v2\nv_dot2c_f32_bf16 v{97+8*n+2*r}, v{160+16*n+4*gp+r}, v3")
for r in range(8): A(f"v_lshlrev_b32 v{144+2*r}, 16, v{244+r}\nv_and_b32 v{145+2*r}, 0xffff0000, v{244+r}")
cond2 = """v_cmp_ne_u32 vcc, s34, v253
    v_cmp_ne_u32 s[100:101], s34, v255
    s_or_b64 vcc, vcc, s[100:101]
    v_cmp_ne_u32 s[100:101], s34, v27
    s_or_b64 vcc, vcc, s[100:101]
    v_cmp_ne_u32 s[100:101], s34, v29
    s_or_b64 vcc, vcc, s[100:101]"""
A(cond2); A("s_cbranch_vccz L_pm2_x")
keep = (list(st.vm), list(st.lg))
spin("L_pm2", ["s_sleep 8"] + m2, cond2)
st.vm, st.lg = keep
A(f"""
s_cmp_lt_u32 s35, 2
s_cselect_b32 s60, 1.0, 0
v_lshlrev_b32 v128, 16, v252
v_and_b32 v129, 0xffff0000, v252
v_lshlrev_b32 v130, 16, v254
v_and_b32 v131, 0xffff0000, v254
v_lshlrev_b32 v132, 16, v26
v_and_b32 v133, 0xffff0000, v26
v_lshlrev_b32 v134, 16, v28
v_and_b32 v135, 0xffff0000, v28
v_add_f32 v132, s60, v132
v_add_f32 v133, s60, v133
v_add_f32 v134, s60, v134
v_add_f32 v135, s60, v135
v_lshlrev_b32 v8, 4, v0
v_add_u32 v8, {MODV}, v8
ds_write_b128 v8, v[128:131]
ds_write_b128 v8, v[132:135] offset:4096
""")
w_dma(OPT.get("nA", 0), ALL7)
def poll0(lab, off):
    A(f"s_cmp_lg_u32 s35, 0\ns_cbranch_scc1 {lab}_s\ns_mov_b64 exec, 0xff")
    keep = (list(st.vm), list(st.lg))
    spin(lab, [f"buffer_load_dword v240, v23, s[48:51], s0 offen offset:{off} sc1"], "v_cmp_ne_u32 vcc, s34, v240")
    A(f"s_mov_b64 exec, -1\n{lab}_s:"); st.vm, st.lg = keep
def modrd(dst, vec):
    for h in range(2):
        for q in range(2): A(f"ds_read_b128 v[{dst+8*h+4*q}:{dst+8*h+4*q+3}], v{242+h} offset:{vec*2048 + q*16}")
def poll_phase(lab, wave, off, n, slots, before, after):
    base = (list(st.vm), list(st.lg)); sv = (WS.nd, dict(WS.last))
    A(f"s_cmp_eq_u32 s35, {wave}\ns_cbranch_scc1 {lab}_b")
    before(False); w_dma(n, slots)
    A("s_waitcnt lgkmcnt(0)\ns_barrier"); after(False)
    n0 = len(st.vm) - len(base[0])
    WS.nd, WS.last = sv[0], dict(sv[1]); st.vm, st.lg = list(base[0]), list(base[1]); st.newphase()
    A(f"s_branch {lab}_c\n{lab}_b:\ns_mov_b64 exec, 0xff")
    spin(lab, [f"buffer_load_dword v240, v23, s[48:51], s0 offen offset:{off} sc1"], "v_cmp_ne_u32 vcc, s34, v240")
    A("s_mov_b64 exec, -1\ns_waitcnt lgkmcnt(0)\ns_barrier")
    after(True); before(True); w_dma(n, slots)
    A(f"{lab}_c:"); st.hist = []
def q2_try(poller):
    if poller: return
    if OPT.get("nof2"): A("s_or_b32 s15, s15, 2"); return
    A("buffer_load_dword v240, v23, s[48:51], s0 offen offset:256 sc1")
    w_dma(2, ALL7)
    A(f"v_cmp_ne_u32 vcc, s34, v240\ns_cmp_lg_u32 vcc_lo, 0\ns_cselect_b32 s3, 2, 0\ns_or_b32 s15, s15, s3")
    preads(2, 2)
def q3_reads(poller):
    preads(3)
    if poller:
        preads(2)
        if not OPT.get("nof2"): w_dma(2, ALL7)
    else:
        A("s_bitcmp0_b32 s15, 1\ns_cbranch_scc1 L_had2")
        keep = list(st.vm); preads(2); A("L_had2:"); st.vm = keep
    lab = "L_had01p" if poller else "L_had01"
    A(f"s_bitcmp0_b32 s15, 0\ns_cbranch_scc1 {lab}")
    keep = list(st.vm); preads(0); preads(1); accq(0); accq(1); A(f"s_nop 2\n{lab}:"); st.vm = keep
if OPT.get("warm2", 1): warm("L_w2")
accq(0); accq(1)
stamp("em2")
poll_phase("L_pf1", 0, 384, OPT.get("nB", 2), ALL7, q2_try, q3_reads)
stamp("f1ok")
modrd(32, 0); modrd(48, 2); modrd(64, 1)
A("s_waitcnt vmcnt(0)")
stamp("ew")
accq(2); accq(3)
stamp("eacc3")
for h in range(2):
    for r in range(8): A(f"v_permlane32_swap_b32 v{96+16*h+r}, v{104+16*h+r}")
for h in range(2):
    for r in range(0, 8, 2): A(f"v_pk_add_f32 v[{128+8*h+r}:{129+8*h+r}], v[{96+16*h+r}:{97+16*h+r}], v[{104+16*h+r}:{105+16*h+r}]")
for r in range(8): A(f"v_pk_fma_f32 v[{128+2*r}:{129+2*r}], v[{128+2*r}:{129+2*r}], v[{32+2*r}:{33+2*r}], v[{144+2*r}:{145+2*r}]")
for r in range(8): A(f"v_cvt_pk_bf16_f32 v{144+r}, v{128+2*r}, v{129+2*r}")
def row_stats(x):
    A(f"v_pk_add_f32 v[96:97], v[{x}:{x+1}], v[{x+2}:{x+3}]\nv_pk_mul_f32 v[98:99], v[{x}:{x+1}], v[{x}:{x+1}]")
    A(f"v_pk_fma_f32 v[98:99], v[{x+2}:{x+3}], v[{x+2}:{x+3}], v[98:99]")
    for r in range(2, 8):
        A(f"v_pk_add_f32 v[96:97], v[96:97], v[{x+2*r}:{x+2*r+1}]\nv_pk_fma_f32 v[98:99], v[{x+2*r}:{x+2*r+1}], v[{x+2*r}:{x+2*r+1}], v[98:99]")
    A("v_add_f32 v96, v96, v97\nv_add_f32 v98, v98, v99")
    for d in ("quad_perm:[2,3,0,1]", "row_ror:4", "row_ror:8"):
        A(f"v_add_f32_dpp v96, v96, v96 {d} row_mask:0xf bank_mask:0xf\nv_add_f32_dpp v98, v98, v98 {d} row_mask:0xf bank_mask:0xf")
    for sw in ("16", "32"):
        A(f"v_mov_b32 v97, v96\nv_mov_b32 v99, v98\nv_permlane{sw}_swap_b32 v96, v97\nv_permlane{sw}_swap_b32 v98, v99\nv_add_f32 v96, v96, v97\nv_add_f32 v98, v98, v99")
    A(f"""v_mul_f32 v97, {f2u(1/512)}, v96
    v_mul_f32 v98, {f2u(1/512)}, v98
    v_fma_f32 v98, -v97, v97, v98
    v_max_f32 v98, 0, v98
    v_add_f32 v98, {f2u(1e-5)}, v98
    v_rsq_f32 v96, v98
    v_mul_f32_e64 v98, -v97, v96""")
row_stats(128)
for r in range(8): A(f"v_pk_fma_f32 v[{128+2*r}:{129+2*r}], v[{128+2*r}:{129+2*r}], v[96:97], v[98:99] op_sel_hi:[1,0,0]")
for r in range(8): A(f"v_pk_fma_f32 v[{128+2*r}:{129+2*r}], v[{128+2*r}:{129+2*r}], v[{48+2*r}:{49+2*r}], v[{64+2*r}:{65+2*r}]")
row_stats(128)
for r in range(8): A(f"v_pk_fma_f32 v[{128+2*r}:{129+2*r}], v[{128+2*r}:{129+2*r}], v[96:97], v[98:99] op_sel_hi:[1,0,0]")
for r in range(8): A(f"v_cvt_pk_bf16_f32 v{152+r}, v{128+2*r}, v{129+2*r}")
A(f"s_add_u32 s61, s10, {WS_Y}")
st.add("buffer_store_dwordx4 v[152:155], v6, s[48:51], s61 offen sc1", tag="y")
st.add("buffer_store_dwordx4 v[156:159], v7, s[48:51], s61 offen sc1", tag="y")
A(f"s_add_u32 s61, s10, {WS_X1}")
st.add("buffer_store_dwordx4 v[144:147], v6, s[48:51], s61 offen sc1", tag="y")
st.add("buffer_store_dwordx4 v[148:151], v7, s[48:51], s61 offen sc1", tag="y")
stamp("ysent")
w_read(WS.nd - WS.nr); w_dma(OPT.get("nD", 2), ALL7)
A(f"""
v_lshrrev_b32 v2, 4, v1
s_lshl_b32 s61, s58, 3
s_add_u32 s61, s61, s59
s_lshl_b32 s9, s61, 7
s_add_u32 s9, s9, {WS_F2}
s_cmp_lg_u32 s35, 0
s_cselect_b32 s9, {OOB}, s9
s_lshl_b32 s0, s58, 10
s_add_u32 s0, s0, {WS_F2}
v_and_b32 v23, 7, v1
v_lshlrev_b32 v23, 7, v23
v_lshrrev_b32 v4, 3, v1
v_lshrrev_b32 v5, 1, v4
v_xor_b32 v5, v5, v1
v_and_b32 v5, 7, v5
v_lshlrev_b32 v5, 4, v5
v_lshl_add_u32 v4, v4, 10, v5
v_xor_b32 v5, 64, v4
v_add_u32 v5, 8192, v5
v_bfe_u32 v15, v1, 1, 3
v_xor_b32 v15, v15, v2
v_lshlrev_b32 v15, 4, v15
v_and_b32 v17, 7, v1
v_lshl_add_u32 v15, v17, 7, v15
v_bfe_u32 v17, v1, 3, 1
v_lshl_add_u32 v15, v17, 13, v15
v_xor_b32 v17, 64, v15
""")
stamp("ewr")
st.need("y")
stamp("eyack")
A("s_barrier"); A("buffer_store_dword v25, v22, s[48:51], s9 offen sc1")
w_read(WS.nd - WS.nr)
for r in range(8): A(f"v_lshlrev_b32 v{224+2*r}, 16, v{80+r}\nv_and_b32 v{225+2*r}, 0xffff0000, v{80+r}")
A(f"""
s_lshl_b32 s12, s58, 16
s_lshl_b32 s11, s35, 14
s_add_u32 s12, s12, s11
s_add_u32 s12, s12, {WS_Y}
s_mul_i32 s6, s35, {UNIT}
s_add_u32 s6, s6, 65536
s_sub_u32 s60, s6, s63
v_add_u32 v20, s60, v9
""")
def y_dma(poller):
    A("s_lshl_b32 s13, s59, 7")
    for sp in range(8):
        A("s_add_u32 s61, s12, s13")
        for qh in range(2):
            A(f"s_add_u32 m0, s11, {qh*8192 + sp*1024}")
            st.add(f"buffer_load_dwordx4 v{4+qh}, s[48:51], s61 offen sc1 lds", tag=("Y", sp >> 2) if not poller else None)
        if sp < 7: A("s_add_u32 s13, s13, 128\ns_and_b32 s13, s13, 1023")
    if not poller: global ystate; ystate = list(st.vm)
nE = 16 - WS.nd + OPT.get("nE", 1)
assert nE <= 5
poll_phase("L_pf2", 3, 0, nE, [0, 1, 2, 3, 4], lambda p: None, y_dma)
stamp("f2ok")
ymix = st.vm[-(16 + 4 * nE):]
A(f"s_lshl_b32 s60, s2, 2\ns_add_u32 s60, s60, s35\ns_cmp_lg_u32 s60, 1\ns_cbranch_scc1 L_noep\nv_lshlrev_b32 v2, 9, v1\nv_add_u32 v2, {WS_F1 + 384}, v2\ns_mov_b32 s60, 0x8000\ns_mov_b32 s61, 0x10000\ns_mov_b32 s13, 0x18000")
keep = (list(st.vm), list(st.lg))
spin("L_ep", [f"buffer_load_dword v{40+i}, v2, s[48:51], {['0', 's60', 's61', 's13'][i]} offen sc1" for i in range(4)],
     "v_cmp_ne_u32 vcc, s34, v40\n" + "".join(f"v_cmp_ne_u32 s[100:101], s34, v{40+i}\ns_or_b64 vcc, vcc, s[100:101]\n" for i in range(1, 4)))
A("v_mov_b32 v2, 0\nbuffer_store_dword v25, v2, s[48:51], 0 offen sc1\nL_noep:"); st.vm, st.lg = keep
A("s_cmp_eq_u32 s35, 3\ns_cbranch_scc1 L_y3\ns_waitcnt vmcnt(8)\ns_branch L_y4\nL_y3:"); st.vm = list(ymix)
A(f"s_waitcnt vmcnt({8 + 4 * nE})\nL_y4:\ns_barrier"); st.vm = list(ymix)
for e in st.vm: e["tag"] = ("Y", 1)
stamp("Yin")

def yb(n, s, c2): return 96 + (n & 1) * 32 + (s * 2 + c2) * 4
def hacc(half, tile, cb): return 32 + half * 32 + (tile * 4 + cb) * 4
def yreads(n):
    cp, k4 = (n >> 2) & 1, n & 3
    return [f"ds_read_b128 v[{yb(n,s,c2)}:{yb(n,s,c2)+3}], v{15 if s % 2 == 0 else 17} offset:{(cp*2+c2)*16384 + (k4*2+(s>>1))*1024}" for c2 in range(2) for s in range(4)]
C1 = -2 * 0.7978845608028654 * 1.4426950408889634; C2 = C1 * 0.044715
def gelu_ops(half, cb):
    o = []; regs = [hacc(half, t, cb) + r for t in range(2) for r in range(4)]
    for k in range(0, 8, 4):
        x = regs[k:k + 4]; t = [248 + (cb & 1) * 4 + i for i in range(4)]
        o += [f"v_mul_f32 v{t[i]}, v{x[i]}, v{x[i]}" for i in range(4)]
        o += [f"v_fma_f32 v{t[i]}, v{t[i]}, s92, v244" for i in range(4)]
        o += [f"v_mul_f32 v{t[i]}, v{x[i]}, v{t[i]}" for i in range(4)]
        o += [f"v_exp_f32 v{t[i]}, v{t[i]}" for i in range(4)]
        o += [f"v_add_f32 v{t[i]}, 1.0, v{t[i]}" for i in range(4)]
        o += [f"v_rcp_f32 v{t[i]}, v{t[i]}" for i in range(4)]
        o += [f"v_mul_f32 v{x[i]}, v{x[i]}, v{t[i]}" for i in range(4)]
    d = hacc(half, 0, cb)
    o += [f"v_cvt_pk_bf16_f32 v{d+e}, v{regs[2*e]}, v{regs[2*e+1]}" for e in range(4)]
    o.append(f"buffer_store_dwordx4 v[{d}:{d+3}], v16, s[48:51], s{93+half} offen offset:{cb*1024} sc1")
    return o
def flag3(q): return f"buffer_store_dword v25, v22, s[48:51], s95 offen offset:{q*512} sc1"
for t in yreads(0): A(t)
late_w = []
assert WS.nr >= 12
while WS.nr < WS.nd:
    u = WS.nr; WS.nr += 1; r = WS.slot_of[u]
    late_w += p8_reads((lambda tp, tile: ("a", w1reg(tp, u, tile))) if u < 16 else (lambda tp, tile: w2reg(u - 16, tp, tile)), r * UNIT if r < 4 else 0, "v9" if r < 4 else "v20")
A(f"""
s_mov_b32 s92, {f2u(C2)}
v_mov_b32 v244, {f2u(C1)}
s_lshl_b32 s60, s58, 3
s_add_u32 s60, s60, s59
s_lshl_b32 s93, s60, 15
s_lshl_b32 s61, s35, 12
s_add_u32 s93, s93, s61
s_add_u32 s93, s93, {WS_H1}
s_add_u32 s94, s93, 16384
s_lshl_b32 s95, s60, 11
s_lshl_b32 s3, s35, 7
s_add_u32 s95, s95, s3
s_add_u32 s95, s95, {WS_F3}
s_lshl_b32 s0, s58, 14
s_add_u32 s0, s0, s3
s_add_u32 s0, s0, {WS_F3}
s_lshl_b32 s1, s58, 18
s_add_u32 s1, s1, s61
s_add_u32 s1, s1, {WS_H1}
v_and_b32 v23, 7, v1
v_min_u32 v23, 6, v23
v_lshlrev_b32 v23, 11, v23
""")
NE = WS.nd - 16
W2S = {ks: ([0, 1, 2, 3, 4] * 3)[ks - NE] for ks in range(NE, 14)}
def w2_m0(r): return f"s_add_u32 m0, s63, {r*UNIT}" if r < 4 else "s_mov_b32 m0, s6"
def w2_reads(ks): r = W2S[ks]; return p8_reads(lambda tp, tile: w2reg(ks, tp, tile), r * UNIT if r < 4 else 0, "v9" if r < 4 else "v20")
def hB(Q, k, c2):
    r = (k * 2 + c2) * 4
    if Q == 0: return ("a", 80 + r) if r < 48 else ("v", 224 + r - 48)
    return [None, ("a", 136 + r), ("v", 32 + r), ("a", 80 + r)][Q]
def h_loads(Q, base="s1"):
    o = []
    for k in range(7):
        o.append(f"s_add_u32 s10, {base}, s8")
        for c2 in range(2):
            f, r = hB(Q, k, c2); o.append(f"buffer_load_dwordx4 {f}[{r}:{r+3}], v{16 + 2*(Q>>1)}, s[48:51], s10 offen offset:{((Q&1)*2+c2)*1024} sc1")
        o += ["s_add_u32 s8, s8, 0x8000", f"s_cmp_eq_u32 s8, {7 << 15}\ns_cselect_b32 s8, 0, s8"]
    return o
def chk3(q): return f"buffer_load_dword v{245 + (q&1)}, v23, s[48:51], s0 offen offset:{q*512} sc1"
A("v_add_u32 v18, 16384, v16")
M = []; Fl = []; RES = {}
for n in range(16):
    q = n >> 2; half, cp, k4 = q >> 1, q & 1, n & 3; g0 = len(M)
    for tile in range(2):
        for c2 in range(2):
            for s in range(4):
                M.append(mf(hacc(half, tile, cp * 2 + c2), w1reg(half, 4 * k4 + s, tile), yb(n, s, c2), (224 + half * 8 + tile * 4) if (k4 == 0 and s == 0) else None, "v", "a", "v"))
    if n == 1:
        Fl.append(F(("barrier", [("Y", 1)]), g0, g0, "rd"))
        for i, t in enumerate(late_w): Fl.append(F(t, g0 + 1 + i // 2, g0 + 8 + i * 20 // len(late_w), "lw", tag="LW"))
    if n < 15:
        for i, t in enumerate(yreads(n + 1)): Fl.append(F(t, g0 + i, g0 + i + 1, "rd"))
    RES[g0 + 15] = 1
ev = []; gd = 18
for ks in range(NE, 14):
    prev = ks - 5
    if prev >= NE: gd = max(gd, rdg[prev] + 12) if False else gd
rdg = {}; gd = 48
for ks in range(NE, 14):
    if ks - 5 >= NE: gd = max(gd, rdg[ks - 5] + 12)
    ev.append((gd, "d", ks))
    if ks < 9:
        rdg[ks] = max(gd + 50, 130 + 9 * (ks - 4) if ks >= 4 else 0); ev.append((rdg[ks], "r", ks))
    gd += 16 if gd < 128 else 12
for g, kind, ks in sorted(ev):
    if kind == "d":
        p = w2_pre(ks); spread_dma(Fl, g, [w2_m0(W2S[ks])] + p[:1], dma4("s60"), p[1:], ("W2", ks), [("R2", ks - 5), "LW"], 4 if g < 128 else 3)
    else:
        for k, t in enumerate(w2_reads(ks)): Fl.append(F(t, g + k, g + 4 + k, "w2r", tag=("R2", ks), need=[("W2", ks)] if k == 0 else None))
for q in range(3):
    for c2 in range(2):
        for t in gelu_ops(q >> 1, (q & 1) * 2 + c2): Fl.append(F(t, 64 * (q + 1) + 3 + 6 * c2, 64 * (q + 2) - 1, ("gelu", c2), tag=("h1", q) if t.startswith("buffer") else None))
    if q: Fl.append(F(flag3(q - 1), 64 * (q + 1) + OPT.get("gfl", 44), 64 * (q + 2) - 1, "fl", need=[("h1", q - 1)]))
Fl.append(F(chk3(0), 192 + 2, 192 + 4, "ck"))
for t in ["v_cmp_ne_u32 vcc, s34, v245", f"s_cmp_lg_u64 vcc, 0\ns_cselect_b32 s9, {OOB}, s1"]: Fl.append(F(t, 192 + 30, 192 + 31, "ck"))
for i, t in enumerate(h_loads(0, "s9")): Fl.append(F(t, 192 + 32 + i * 30 // 35, 192 + 34 + i * 30 // 35, "ck"))
for q in range(1, 4): Fl += stampF(f"mq{q}", 64 * q)
schedule(st, M, Fl, reserve=RES, verbose="G1", slack=400, mem2=("rd", "dma", "w2r", "ck", "lw"), minback=0)
stamp("G1")
def have3(q, stream=None):
    c = f"v_cmp_ne_u32 vcc, s34, v{245 + (q&1)}"
    A(c); A(f"s_cbranch_vccz L_pf3{q}_x")
    keep = list(st.vm); spin(f"L_pf3{q}", [chk3(q)], c); st.vm = keep
    stamp(f"mchk{q}")
A("s_cmp_eq_u32 s9, s1\ns_cbranch_scc1 L_had0")
keep = list(st.vm); spin("L_pf30", [chk3(0)], "v_cmp_ne_u32 vcc, s34, v245")
for t in h_loads(0): A(t)
A("s_waitcnt vmcnt(0)\nL_had0:"); st.vm = keep
A(chk3(1))
g3 = [t for c2 in range(2) for t in gelu_ops(1, 2 + c2)]
for t in g3[:OPT.get("ng3", 40)]: A(t)
have3(1)
hl = h_loads(1)
for i, t in enumerate(g3[OPT.get("ng3", 40):]):
    st.add(t, tag=("h1", 3) if t.startswith("buffer") else None)
    if i == 0: st.add(flag3(2), need=[("h1", 2)])
    if i % 5 == 4:
        while hl:
            x = hl.pop(0); A(x)
            if x.startswith("buffer"): break
for t in hl: A(t)
stamp("gelu")

def facc(tp, tile, cb): return 96 + (tp * 8 + tile * 4 + cb) * 4
def g2(Q):
    r = []
    for ch in ([0, 1], [2, 3], [4, 5, 6]):
        for tp in range(2):
            for tile in range(2):
                for c2 in range(2):
                    for k in ch:
                        fa, ra = w2reg((Q >> 1) * 7 + k, tp, tile); fb, rb = hB(Q, k, c2)
                        r.append(mf(facc(tp, tile, (Q & 1) * 2 + c2), ra, rb, "0" if (Q < 2 and k == 0) else None, "v", fa, fb))
    return r
def spread_loads(Fl, ops, g0, step):
    g = g0
    for t in ops:
        Fl.append(F(t, g - 2, g + 1, "hl"))
        if t.startswith("buffer"): g += step
Fl = []
for i in range(4):
    for k, t in enumerate(w2_reads(9 + i)): Fl.append(F(t, 8 * i + k, 8 * i + k + 1, "rd", need=[("W2", 9 + i)] if k == 0 else None))
Fl.append(F(chk3(2), OPT.get("gc2", 20), OPT.get("gc2", 20) + 1, "fl"))
Fl.append(F(flag3(3), OPT.get("gf3", 50), 55, "fl", need=[("h1", 3)]))
schedule(st, g2(0), Fl)
stamp("mg20")
have3(2)
A(f"""
v_and_b32 v2, 15, v1
v_lshlrev_b32 v2, 10, v2
v_lshrrev_b32 v3, 4, v1
v_lshl_add_u32 v2, v3, 4, v2
v_lshlrev_b32 v4, 4, v3
s_lshl_b32 s92, s58, 16
s_lshl_b32 s60, s35, 14
s_add_u32 s92, s92, s60
s_lshl_b32 s95, s59, 7
s_add_u32 s92, s92, s95
s_add_u32 s60, s92, {WS_X1}
""")
srd(52, 22, 1024)
Fl = [F(t, 32 + k, 33 + k, "rd", need=[("W2", 13)] if k == 0 else None) for k, t in enumerate(w2_reads(13))]
spread_loads(Fl, h_loads(2) + [chk3(3)], 0, 3)
schedule(st, g2(1), Fl)
stamp("G2a")
schedule(st, g2(2)[:OPT.get("ng22", 16)], [])
stamp("mg22")
have3(3)
Fl = []
spread_loads(Fl, h_loads(3) + ["buffer_load_dwordx4 v[224:227], v2, s[48:51], s60 offen sc1", "buffer_load_dwordx4 v[228:231], v2, s[48:51], s60 offen offset:64 sc1",
             "buffer_load_dwordx4 v[232:235], v4, s[52:55], s95 offen", "buffer_load_dwordx4 v[236:239], v4, s[52:55], s95 offen offset:64"], 0, 2)
n2 = 56 - OPT.get("ng22", 16)
for t in [f"s_lshl_b32 s3, s35, 12", "v_add_u32 v5, s3, v16"]: Fl.append(F(t, n2 - 8, n2, "fw"))
Fl.append(F(("barrier", []), n2 + 1, n2 + 1, "fw"))
def fwrite(cb, tp, tile): return f"ds_write_b128 v5, v[{facc(tp,tile,cb)}:{facc(tp,tile,cb)+3}] offset:{cb*16384 + (tp*2+tile)*1024}"
i = 0
for cb in range(2):
    for tp in range(2):
        for tile in range(2): Fl.append(F(fwrite(cb, tp, tile), n2 + 8 + 5 * i, n2 + 9 + 5 * i, "fw")); i += 1
schedule(st, g2(2)[OPT.get("ng22", 16):] + g2(3), Fl)
stamp("G2")
A(f"""
s_lshl_b32 s60, s35, 14
v_add_u32 v6, s60, v16
v_lshlrev_b32 v7, 5, v3
s_lshl_b32 s60, s59, 8
s_add_u32 s60, s60, {MODV + 3*2048}
v_add_u32 v7, s60, v7
""")
for cb in range(2, 4):
    for tp in range(2):
        for tile in range(2): A(fwrite(cb, tp, tile))
for tp in range(2):
    for q in range(2): A(f"ds_read_b128 v[{208+tp*8+4*q}:{211+tp*8+4*q}], v7 offset:{tp*128+q*16}")
for r in range(8):
    A(f"v_lshlrev_b32 v{32+2*r}, 16, v{224+r}\nv_and_b32 v{33+2*r}, 0xffff0000, v{224+r}\nv_lshlrev_b32 v{48+2*r}, 16, v{232+r}\nv_and_b32 v{49+2*r}, 0xffff0000, v{232+r}")
stamp("mwr")
A("s_waitcnt lgkmcnt(0)\ns_barrier")
stamp("mbar")
for src in range(4):
    for n in range(4): A(f"ds_read_b128 v[{96+src*16+n*4}:{99+src*16+n*4}], v6 offset:{src*4096+n*1024}")
for src in range(4):
    for r in range(8): A(f"v_pk_add_f32 v[{48+2*r}:{49+2*r}], v[{48+2*r}:{49+2*r}], v[{96+src*16+2*r}:{97+src*16+2*r}]")
for r in range(8): A(f"v_pk_fma_f32 v[{32+2*r}:{33+2*r}], v[{48+2*r}:{49+2*r}], v[{208+2*r}:{209+2*r}], v[{32+2*r}:{33+2*r}]")
for r in range(8): A(f"v_cvt_pk_bf16_f32 v{64+r}, v{32+2*r}, v{33+2*r}")
srd(52, 28, 2048 * 1024)
A("buffer_store_dwordx4 v[64:67], v2, s[52:55], s92 offen\nbuffer_store_dwordx4 v[68:71], v2, s[52:55], s92 offen offset:64")
if OPT["stamps"]:
    stamp("end")
    A("s_memrealtime s[96:97]\ns_waitcnt lgkmcnt(0)\ns_cmp_lg_u32 s35, 0\ns_cbranch_scc1 L_end\ns_mov_b64 exec, 1")
    A(f"s_lshl_b32 s60, s2, 9\ns_add_u32 s60, s60, {WS_STAMP}\nv_mov_b32 v6, 0")
    A(f"s_mov_b32 s{64+stamp_n[0]-1}, s90")
    lst = [64 + n for n in range(stamp_n[0])] + [98, 96, 15]
    A("v_mov_b32 v3, 0")
    for n, s in enumerate(lst): A(f"v_mov_b32 v2, s{s}\nbuffer_store_dwordx2 v[2:3], v6, s[48:51], s60 offen offset:{n*8}\ns_nop 1")
    if OPT["dbg"] >= 0:
        srd(52, 30, 256)
        A(f"s_cmp_lg_u32 s2, {OPT['dbg']}\ns_cbranch_scc1 L_end")
        sel = [i for i in range(1, stamp_n[0]) if stamp_names[i] not in ("norm", "gelu", "G2a")][:14]
        for n, k in enumerate(sel): A(f"s_sub_u32 s60, s{64+k}, s64\nv_mov_b32 v2, s60\nbuffer_store_dword v2, v6, s[52:55], 0 offen offset:{4+n*4}\ns_nop 1")
        A("s_sub_u32 s60, s96, s98\nv_mov_b32 v2, s60\nbuffer_store_dword v2, v6, s[52:55], 0 offen offset:60")
        print("dbg order:", [stamp_names[k] for k in sel], "realtime")
    open(os.path.splitext(sys.argv[1])[0] + ".names", "w").write(" ".join(stamp_names))
    print("stamps:", len(lst))
st.raw(f"""L_end:
    s_endpgm
L_codeend:
.section .rodata,"a"
.p2align 6
.amdhsa_kernel {NAME}_kernel
  .amdhsa_next_free_vgpr 512
  .amdhsa_next_free_sgpr 102
  .amdhsa_accum_offset 256
  .amdhsa_group_segment_fixed_size 0
  .amdhsa_kernarg_size 120
  .amdhsa_user_sgpr_count 2
  .amdhsa_user_sgpr_kernarg_segment_ptr 1
  .amdhsa_system_sgpr_workgroup_id_x 1
.end_amdhsa_kernel""")
def with_stubs(txt):
    import subprocess, tempfile
    lines = txt.split("\n")
    isins = lambda l: l.startswith("    ") and l.strip() and not l.strip().startswith((".", ";"))
    NS = 24
    tail = "".join(f"L_stub{k}:\n" for k in range(NS))
    with tempfile.TemporaryDirectory() as d:
        open(d + "/a.s", "w").write(txt.replace("L_codeend:", tail + "L_codeend:").replace("@", ""))
        subprocess.run(["clang", "-x", "assembler", "-target", "amdgcn-amd-amdhsa", "-mcpu=gfx950", "-c", d + "/a.s", "-o", d + "/a.o"], check=True)
        dis = subprocess.run(["llvm-objdump", "-d", "--mcpu=gfx950", d + "/a.o"], capture_output=True, text=True).stdout
    enc = [len(m.group(1).split()) * 4 for m in re.finditer(r"// [0-9A-F]+: ((?:[0-9A-F]{8} ?)+)", dis)]
    j = lines.index("L_join:"); n_after = sum(map(isins, lines[j:]))
    sizes = enc[len(enc) - n_after:]
    out = lines[:j + 1]; pos = 0; k = 1; i = 0
    for l in lines[j + 1:]:
        if isins(l):
            if pos >= k * 4096 and l.strip() != "s_endpgm":
                out += [f"L_stub{k}:", f"    s_cbranch_execz L_stub{k+4}"]; pos += 4; k += 1
            pos += sizes[i]; i += 1
        if l == "L_codeend:": out += [f"L_stub{q}:" for q in range(k, NS)] + ["    s_setpc_b64 s[100:101]"]
        out.append(re.sub(r"@(\d)", lambda m: str(k + int(m.group(1))), l))
    print("code after join:", pos, "stubs", k - 1)
    return "\n".join(out)
open(sys.argv[1], "w").write(with_stubs(st.text()) if OPT.get("warm", 1) else st.text())
print("waits", st.nwait, "nop states", st.nnop)
```

```python
import re
REG = re.compile(r'(?<![\w.])([vas])(?:\[(\d+):(\d+)\]|(\d+))(?![\w\[])')
def regs_of(txt):
    out = []
    for m in REG.finditer(txt):
        k = m.group(1)
        if m.group(2) is not None:
            out += [(k, i) for i in range(int(m.group(2)), int(m.group(3)) + 1)]
        else:
            out.append((k, int(m.group(4))))
    for nm in ("vcc", "exec", "m0"):
        if re.search(r'(?<![\w.])' + nm + r'(_lo|_hi)?(?![\w])', txt): out.append((nm, 0))
    return out
TRANS = ("v_exp_f32", "v_log_f32", "v_rcp_f32", "v_rsq_f32", "v_sqrt_f32")
class I:
    __slots__ = ("txt", "op", "rd", "wr", "kind", "tag", "need", "cost", "mc", "ma")
    def __init__(s, txt, tag=None, need=None):
        s.txt = txt.strip(); s.tag = tag; s.need = need or []
        body = s.txt.split(";")[0].strip()
        parts = body.split(None, 1); s.op = op = parts[0]
        ops = [x.strip() for x in parts[1].split(",")] if len(parts) > 1 else []
        rest = parts[1] if len(parts) > 1 else ""
        rest = re.sub(r'\b(quad_perm|op_sel|op_sel_hi|neg_lo|neg_hi):\[[^\]]*\]', '', rest)
        ops = [x.strip() for x in rest.split(",")] if rest else []
        s.rd = []; s.wr = []; s.mc = []; s.ma = []
        allr = lambda l: [r for o in l for r in regs_of(o)]
        s.cost = 1
        if op.startswith("v_mfma"):
            s.kind = "mfma"; s.wr = allr(ops[:1]); s.ma = allr(ops[1:3]); s.mc = allr(ops[3:4]); s.rd = s.ma + s.mc
        elif op.startswith("buffer_load") or op.startswith("global_load"):
            if re.search(r'\blds\b', rest) or "_lds_" in op:
                s.kind = "dma"; s.rd = allr(ops) + [("m0", 0)]
            else:
                s.kind = "vload"; s.wr = allr(ops[:1]); s.rd = allr(ops[1:])
        elif op.startswith("buffer_store") or op.startswith("global_store"):
            s.kind = "vstore"; s.rd = allr(ops)
        elif op.startswith("buffer_atomic"):
            s.kind = "vload" if "sc0" in rest else "vstore"; s.rd = allr(ops)
            if "sc0" in rest: s.wr = allr(ops[:1])
        elif op.startswith("ds_read") or op.startswith("ds_bpermute") or op.startswith("ds_swizzle"):
            s.kind = "dsr"; s.wr = allr(ops[:1]); s.rd = allr(ops[1:])
        elif op.startswith("ds_write"):
            s.kind = "dsw"; s.rd = allr(ops)
        elif op.startswith("s_load") or op in ("s_memtime", "s_memrealtime"):
            s.kind = "smem"; s.wr = allr(ops[:1]); s.rd = allr(ops[1:])
        elif op in ("s_waitcnt", "s_nop", "s_barrier", "s_sleep", "s_setprio", "s_endpgm", "s_branch") or op.startswith("s_cbranch") or op.endswith(":"):
            s.kind = "ctl"
        elif op.startswith("s_cmp") or op.startswith("s_bitcmp"):
            s.kind = "salu"; s.rd = allr(ops)
        elif op.startswith("s_"):
            s.kind = "salu"; s.wr = allr(ops[:1]); s.rd = allr(ops[1:])
            if "saveexec" in op: s.wr.append(("exec", 0)); s.rd.append(("exec", 0))
        elif op.startswith("v_"):
            s.kind = "valu"
            base = op.replace("_e32", "").replace("_e64", "")
            if base in TRANS: s.kind = "trans"; s.cost = 2
            if "permlane" in op and "swap" in op:
                s.wr = allr(ops[:2]); s.rd = allr(ops[:2])
            elif op.startswith("v_add_co") or op.startswith("v_sub_co") or op.startswith("v_addc_co"):
                s.wr = allr(ops[:2]); s.rd = allr(ops[2:])
            else:
                s.wr = allr(ops[:1]); s.rd = allr(ops[1:])
                if base.startswith("v_fmac") or base.startswith("v_dot2c") or "_dpp" in op or base.startswith("v_writelane"): s.rd += s.wr
        else:
            raise ValueError("unknown op " + txt)
    def is_valu(s): return s.kind in ("valu", "trans")
    def is_mem(s): return s.kind in ("dma", "vload", "vstore", "dsr", "dsw")

class Stream:
    def __init__(s, merge_dist=110):
        s.out = []; s.merge = merge_dist
        s.reset()
        s.nwait = 0; s.nnop = 0; s.slots = 0
        s.missing = {}; s.seen = set()
    def reset(s):
        s.vm = []
        s.lg = []
        s.smem = False; s.smem_wr = set()
        s.hist = []
        s.n = 0; s.t = 0; s.tm = -100
    def raw(s, txt):
        s.out.append(txt)
    def _emit(s, ins, states=1):
        s.out.append("    " + ins.txt); s.hist.append((ins, states)); s.n += states
        if ins.kind == "mfma":
            s.t = max(s.t, s.tm + (16 if "16x16" in ins.op else 32)); s.tm = s.t; s.t += 8
        else: s.t += 4 * states * ins.cost
        if len(s.hist) > 40: s.hist.pop(0)
    def _wait(s, vm=None, lg=None):
        t = "s_waitcnt"
        if vm is not None:
            vm = min(vm, 63); t += f" vmcnt({vm})"; del s.vm[:max(0, len(s.vm) - vm)]
        if lg is not None:
            lg = min(lg, 15); t += f" lgkmcnt({lg})"; del s.lg[:max(0, len(s.lg) - lg)]
            if lg == 0: s.smem = False; s.smem_wr = set()
        s._emit(I(t)); s.nwait += 1
    def newphase(s): s.missing = {}; s.seen = set()
    def _order(s, needs, tag, txt):
        for t in needs: s.missing.setdefault(t, txt)
        if tag is not None and tag in s.missing and tag not in s.okl: raise RuntimeError(f"{tag} emitted after its consumer: {s.missing[tag]}")
    okl = set()
    def _need_idx(s, q, regs, tags):
        last = -1
        for i, e in enumerate(q):
            if (e["wr"] & regs) or (e["tag"] is not None and e["tag"] in tags): last = i
        return last
    def add(s, ins, tag=None, need=None):
        if isinstance(ins, str): ins = I(ins, tag, need)
        if ins.op == "s_waitcnt":
            m = re.search(r'vmcnt\((\d+)\)', ins.txt); l = re.search(r'lgkmcnt\((\d+)\)', ins.txt)
            s._wait(int(m.group(1)) if m else None, int(l.group(1)) if l else None); return
        touched = set(ins.rd) | set(ins.wr); tags = set(ins.need)
        s._order(tags, ins.tag, ins.txt)
        vi = s._need_idx(s.vm, touched, tags); li = s._need_idx(s.lg, touched, tags)
        vmN = lgN = None
        if vi >= 0: vmN = len(s.vm) - 1 - vi
        if li >= 0:
            j = li
            while j + 1 < len(s.lg) and s.t - s.lg[j + 1]["t"] >= s.merge: j += 1
            lgN = len(s.lg) - 1 - j
            if s.smem: lgN = 0
        if s.smem and (touched & s.smem_wr): lgN = 0
        if vmN is not None or lgN is not None: s._wait(vmN, lgN)
        need = 0; dist = 0
        rd = set(ins.rd); wr = set(ins.wr)
        for p, st in reversed(s.hist):
            req = 0
            pw = set(p.wr)
            if p.kind == "mfma":
                n = 8 if "16x16" in p.op else 12
                if ins.kind == "mfma":
                    if pw & set(ins.ma): req = n
                    elif pw & set(ins.mc) and (set(ins.mc) != pw or p.op != ins.op): req = n - 2
                    elif pw & wr and not (pw & set(ins.mc)) : req = max(req, 0)
                elif ins.is_valu() or ins.is_mem():
                    if pw & (rd | wr): req = n
                if ins.is_valu() and set(p.mc) & wr: req = max(req, 3 if "16x16" in p.op else 7)
            elif p.is_valu():
                vw = {r for r in pw if r[0] in "va"}; sw = {r for r in pw if r[0] in ("s", "vcc")}
                if ins.kind == "mfma" and vw & rd: req = 2
                if p.op.startswith("v_dot2") and vw & (rd | wr) and not (ins.op == p.op and not (vw & set(regs_of(",".join(ins.txt.split(",")[1:]))))): req = max(req, 3)
                if ins.is_valu():
                    if p.kind == "trans" and vw & rd and ins.kind != "trans": req = max(req, 1)
                    if ("_dpp" in ins.op or "permlane" in ins.op) and vw & rd: req = max(req, 2)
                    if ("readfirstlane" in ins.op or "readlane" in ins.op) and vw & rd: req = max(req, 1)
                    if sw & rd: req = max(req, 2)
                    if "sdwa" in p.op and vw & (rd | wr): req = max(req, 1)
                if ins.is_mem() and sw & rd: req = max(req, 5)
                if ins.kind == "salu" and sw & rd: req = max(req, 1)
                if ("exec", 0) in pw: req = max(req, 5)
            elif p.kind == "salu":
                if ("m0", 0) in pw and ins.kind == "dma": req = 1
            elif p.kind == "vstore":
                data = set(p.rd[:4]) if ("x4" in p.op or "x3" in p.op) else set()
                if ins.is_valu() and data & wr: req = 2
                elif data & wr: req = 1
            need = max(need, req - dist)
            dist += st
            if dist >= 14: break
        while need > 0:
            k = min(need, 16); s._emit(I(f"s_nop {k-1}"), k); s.nnop += k; need -= k
        s._emit(ins)
        if ins.kind in ("dma", "vload", "vstore"):
            s.vm.append(dict(tag=ins.tag, wr=set(ins.wr), idx=s.n))
            if len(s.vm) > 63: raise RuntimeError("vmcnt overflow at " + ins.txt)
        elif ins.kind in ("dsr", "dsw"):
            s.lg.append(dict(tag=ins.tag, wr=set(ins.wr), idx=s.n, t=s.t))
        elif ins.kind == "smem":
            s.smem = True; s.smem_wr |= set(ins.wr)
    def A(s, text):
        for l in text.split("\n"):
            l = l.strip()
            if not l or l.startswith(";"): continue
            if l.endswith(":"): s.raw(l); continue
            s.add(l)
    def need(s, *tags):
        tags = set(tags); s._order(tags, None, "need")
        vi = s._need_idx(s.vm, set(), tags); li = s._need_idx(s.lg, set(), tags)
        vmN = len(s.vm) - 1 - vi if vi >= 0 else None
        lgN = len(s.lg) - 1 - li if li >= 0 else None
        if lgN is not None and s.smem: lgN = 0
        if vmN is not None or lgN is not None: s._wait(vmN, lgN)
    def sync(s, vm=True):
        if vm: s._wait(0, 0)
        else: s._wait(None, 0)
        s._emit(I("s_nop 7"), 8)
        s._emit(I("s_nop 3"), 4)
    def text(s): return "\n".join(s.out) + "\n"

class F:
    __slots__ = ("ins", "e", "l", "chain", "order")
    cnt = 0
    def __init__(s, txt, e, l, chain=None, tag=None, need=None):
        if isinstance(txt, str) and "\n" in txt: s.ins = ("group", txt.split("\n"))
        elif isinstance(txt, tuple): s.ins = txt
        else: s.ins = I(txt, tag, need)
        s.e = e; s.l = l; s.chain = chain; F.cnt += 1; s.order = F.cnt
    def cost(s): return 1 if isinstance(s.ins, tuple) else s.ins.cost
    def mem(s): return not isinstance(s.ins, tuple) and s.ins.is_mem()

def schedule(st, mfmas, fillers, cap=2, reserve=None, verbose=None, slack=6, mem2=False, minback=0, capx=None):
    pend = sorted(fillers, key=lambda f: f.order)
    for f in pend: f.e = min(f.e, len(mfmas) - 1); f.l = min(f.l, len(mfmas) - 1)
    over = 0
    def emit(f):
        if isinstance(f.ins, tuple):
            if f.ins[0] == "need": st.need(*f.ins[1])
            elif f.ins[0] == "barrier": st.need(*f.ins[1]); st.add("s_barrier")
            elif f.ins[0] == "call": f.ins[1]()
            elif f.ins[0] == "group":
                for t in f.ins[1]: st.add(t)
        else: st.add(f.ins)
    for g in range(-1, len(mfmas)):
        if g >= 0:
            w0 = st.nwait + st.nnop
            st.add(mfmas[g])
        budget = cap if g >= 0 else 0
        if capx and g in capx: budget = capx[g]
        if reserve and g in reserve: budget -= reserve[g]
        chosen = []
        blocked = set()
        while True:
            cand = []; seen = set()
            for f in pend:
                if f in chosen: continue
                if f.chain is not None:
                    if f.chain in seen: continue
                    seen.add(f.chain)
                if f.e <= g: cand.append(f)
            due = {}
            for f in pend:
                if f in chosen: continue
                if f.chain is not None: due[f.chain] = min(due.get(f.chain, 1 << 30), f.l)
            def dl(f): return due[f.chain] if f.chain is not None else f.l
            cand.sort(key=lambda f: (dl(f), f.order))
            pick = None
            have_mem = any(c.mem() for c in chosen)
            for f in cand:
                if dl(f) <= g: pick = f; break
            if pick is None and budget > 0:
                fit = [f for f in cand if f.cost() <= budget and not (f.mem() and have_mem)]
                mem = [f for f in fit if f.mem()]
                if mem and not chosen: pick = mem[0]
                elif fit:
                    nm = [f for f in fit if not f.mem()]
                    big = [f for f in nm if f.cost() == 2]
                    if big and not (nm[0].cost() == 1 and dl(nm[0]) <= g + slack): pick = big[0]
                    elif nm: pick = nm[0]
                if pick is None and mem2:
                    m2 = [f for f in cand if f.mem() and f.chain in mem2]
                    backlog = sum(1 for f in pend if f.e <= g and f.cost() == 2 and f not in chosen)
                    if m2 and backlog >= minback: pick = m2[0]
            if pick is None: break
            chosen.append(pick); budget -= pick.cost()
        if budget < 0: over += -budget
        res = []
        rem = list(chosen)
        while rem:
            k = None
            for i, f in enumerate(rem):
                if f.mem() and not any(o.chain == f.chain and f.chain is not None for o in rem[:i]): k = i; break
            if k is None: k = 0
            res.append(rem.pop(k))
        for f in res:
            emit(f); pend.remove(f)
    assert not pend, [(f.ins.txt if not isinstance(f.ins, tuple) else f.ins, f.e, f.l) for f in pend[:5]]
    if verbose: print(f"[sched {verbose}] mfma {len(mfmas)} fillers {len(fillers)} over-budget slots {over}")
```

```python
import sys, os, re, struct
sys.path.insert(0, os.path.join(os.path.dirname(os.path.abspath(__file__)), "tools"))
from asmgen import *
NAME = "adaLN_cond__sliding_block_cached__mixer_channel_mlp__prompt"
OPT = dict(stamps=0, gx=2, nt_wq=0, nt_wo=0, nt_kv=0, nt_mod=1, nt_x=0, pf_w1=1, pf_w2=2, pnt=1, early=1, dbg=-1)
for a in sys.argv[2:]:
    k, v = a.split("="); OPT[k] = int(v)
def nt(k): return " nt" if OPT["nt_" + k] else ""

KA, KB, VA, VB, XR = 0, 16512, 32896, 49408, 65920
HIMG = KB
RING0, RINGSZ, UNIT = 82304, 16512, 4128
MISC = 148352
MODV = MISC
SILU = MISC + 8192
RED = MISC + 9216
LDS_BYTES = 163840
WS_MOD, WS_F2, WS_F3, WS_F1 = 0x1000, 0x20000, 0x40000, 0x100000
WS_Y, WS_X1, WS_H1, WS_PART = 0x200000, 0x400000, 0x600000, 0x1000000
WS_STAMP = 0xF000000
OOB = 0x10000000
SCALE = 1.4426950408889634 / (128 ** 0.5)
def f2u(x): return struct.unpack("<I", struct.pack("<f", x))[0]
SPIN = 1 << 18

st = Stream()
A = st.A
stamp_n = [0]; stamp_names = []
def stamp(name=""):
    if not OPT["stamps"]: return
    if OPT["stamps"] == 5:
        if not (name in ("start", "Yin", "G1", "gelu", "G2a", "G2", "end") or name.startswith("m")) or name == "mod": return
    elif OPT["stamps"] == 6:
        if not (name in ("start", "O", "f1st", "_f2q", "f1ok", "ysent", "f2ok", "Yin", "end") or name.startswith("e")): return
    elif name[0] in "me" and name not in ("mod", "end"): return
    if OPT["stamps"] not in (4, 6) and name.startswith("_"): return
    if OPT["stamps"] == 4 and not (name in ("start", "x", "mod", "h", "Q", "end") or name.startswith("_")): return
    if OPT["stamps"] == 3 and not (name in ("start", "h", "Q", "end") or name.startswith("q")): return
    if OPT["stamps"] == 2 and name.startswith("q"): return
    if OPT["stamps"] == 2 and name in ("x", "mod", "f1st", "f1ok", "ysent", "f2ok", "Yin", "gelu", "G2a", "G2"): return
    n = stamp_n[0]; stamp_n[0] += 1; stamp_names.append(name)
    assert n < 26
    if n: st.add(f"s_mov_b32 s{64+n-1}, s90")
    st.add("s_memrealtime s[90:91]" if OPT.get("rt") else "s_memtime s[90:91]")
def stampF(name, g):
    return [F(("call", lambda: stamp(name)), g, g)] if OPT["stamps"] > 1 else []
def dummyI(t):
    i = I(t); i.wr = []; return i
def dummy(t): st.add(dummyI(t))
def dummyF(t, e, l, chain):
    f = F(t, e, l, chain); f.ins.wr = []; return f
def srd(base, ptr, size):
    A(f"s_mov_b32 s{base}, s{ptr}\ns_mov_b32 s{base+1}, s{ptr+1}\ns_mov_b32 s{base+2}, {size}\ns_mov_b32 s{base+3}, 0x20000")
def mf(d, a, b, c=None, dt="v", at="a", bt="a"):
    cs = f"{dt}[{d}:{d+3}]" if c is None else (c if isinstance(c, str) else f"{dt}[{c}:{c+3}]")
    return f"v_mfma_f32_16x16x32_bf16 {dt}[{d}:{d+3}], {at}[{a}:{a+3}], {bt}[{b}:{b+3}], {cs}"
STG = 192
def stg(u, tile, s): return STG + (u & 1) * 16 + tile * 8 + s * 4
def p16_reads(dst, off, addr="v10"):
    r = []
    for tile in range(2):
        for s in range(2):
            f, d = dst(tile, s)
            for hf in range(2): r.append(f"ds_read_b64_tr_b16 {f}[{d+2*hf}:{d+2*hf+1}], {addr} offset:{off + s*2064 + hf*256 + tile*8}")
    return r
def p8_reads(dst, off, addr="v9"):
    r = []
    for tp in range(2):
        for tile in range(2):
            f, d = dst(tp, tile)
            for hf in range(2): r.append(f"ds_read_b64_tr_b16 {f}[{d+2*hf}:{d+2*hf+1}], {addr} offset:{off + tp*512 + hf*256 + tile*8}")
    return r
def voffs16(stride):
    A(f"""
    v_lshrrev_b32 v2, 5, v1
    v_lshlrev_b32 v2, 4, v2
    v_bfe_u32 v3, v1, 2, 3
    v_add_u32 v2, v2, v3
    v_mul_u32_u24 v2, {stride}, v2
    v_and_b32 v3, 3, v1
    v_lshl_add_u32 v11, v3, 4, v2
    v_add_u32 v12, {8*stride-1032}, v11
    v_add_u32 v13, {32*stride-2064}, v11
    v_add_u32 v14, {40*stride-3096}, v11
    """)
def voffs8(stride):
    A(f"""
    v_bfe_u32 v2, v1, 2, 3
    v_mul_u32_u24 v2, {stride}, v2
    v_lshrrev_b32 v3, 5, v1
    v_lshl_add_u32 v2, v3, 6, v2
    v_and_b32 v3, 3, v1
    v_lshl_add_u32 v11, v3, 4, v2
    v_add_u32 v12, {8*stride-1032}, v11
    v_add_u32 v13, {16*stride-2064}, v11
    v_add_u32 v14, {24*stride-3096}, v11
    """)
def dma4(soff, fl=""): return [f"buffer_load_dwordx4 v{11+i}, s[36:39], {soff} offen offset:{i*1032}{fl} lds" for i in range(4)]
def chain_dma(Fl, g0, pre, dmas, tag, need, chain, late=3):
    if OPT.get("nodma") and tag[0] == "W": dmas = []
    for t in pre: Fl.append(F(t, g0 - 5, g0 + late, chain))
    for i, t in enumerate(dmas): Fl.append(F(t, g0 + i // 2, g0 + late + i, chain, tag=tag, need=need if i == 0 else None))
def spread_dma(Fl, g0, pre, dmas, post, tag, need, step):
    if OPT.get("nodma"): dmas = []
    for t in pre: Fl.append(F(t, g0 - 3, g0, "dma"))
    for i, t in enumerate(dmas): Fl.append(F(t, g0 + i * step, g0 + i * step + 1, "dma", tag=tag, need=need if i == 0 else None))
    for t in post: Fl.append(F(t, g0, g0 + 3 * step + 2, "dma"))
class Capture:
    def __enter__(s):
        global A
        s.lines = []; s.old = A
        def cap(text): s.lines.extend(l.strip() for l in text.split("\n") if l.strip() and not l.strip().startswith(";"))
        A = cap; return s
    def __exit__(s, *a):
        global A
        A = s.old
    def fillers(s, e, l, chain, ren=True):
        out = []
        for t in s.lines:
            if ren: t = re.sub(r"\bs60\b", "s100", re.sub(r"\bs61\b", "s101", t))
            if t.split()[0] in ("s_cselect_b32", "s_addc_u32", "v_cndmask_b32"): out[-1] += "\n" + t
            else: out.append(t)
        n = len(out)
        return [F(t, e, e + (l - e) * (i + 1) // n, chain) for i, t in enumerate(out)]
def spin(label, load, cond):
    A(f"s_mov_b32 s3, {SPIN}")
    st.raw(f"{label}:")
    for t in load: st.add(t)
    A("s_sub_u32 s3, s3, 1\ns_waitcnt vmcnt(0)")
    A(cond)
    A(f"s_cmp_eq_u32 s3, 0\ns_cbranch_scc1 {label}_x\ns_cbranch_vccnz {label}")
    st.raw(f"{label}_x:")

st.raw(f"""; adaLN + GQA window attention + channel MLP, one persistent launch, 256 workgroups (one per CU)
; @launch grid=(256,1,1) block=(256,1,1) lds={LDS_BYTES}
.amdgcn_target "amdgcn-amd-amdhsa--gfx950"
.text
.globl {NAME}_kernel
.p2align 8
.type {NAME}_kernel,@function
{NAME}_kernel:
L_start:""")
A("""
s_cmp_ge_u32 s2, 256
s_cbranch_scc1 L_end
s_load_dwordx16 s[4:19], s[0:1], 0
s_load_dwordx8 s[20:27], s[0:1], 64
s_load_dwordx4 s[28:31], s[0:1], 96
s_load_dwordx2 s[32:33], s[0:1], 112
""")
if OPT["stamps"]: A("s_memrealtime s[98:99]")
stamp("start")
GX = OPT["gx"]; lg = {1: 0, 2: 1, 4: 2}[GX]
A(f"""
v_and_b32 v1, 63, v0
v_lshrrev_b32 v2, 6, v0
s_and_b32 s96, s2, 7
s_lshr_b32 s97, s2, 3
v_readfirstlane_b32 s35, v2
s_and_b32 s56, s96, {8//GX - 1}
s_lshl_b32 s56, s56, {lg}
s_and_b32 s60, s97, {GX - 1}
s_add_u32 s56, s56, s60
s_lshr_b32 s57, s96, {3 - lg}
s_lshl_b32 s57, s57, {5 - lg}
s_lshr_b32 s61, s97, {lg}
s_add_u32 s57, s57, s61
s_lshl_b32 s60, s60, {3 - lg}
s_add_u32 s95, s57, s60
s_and_b32 s95, s95, {OPT.get("rotmask", 7)}
s_lshl_b32 s58, s96, 2
s_lshr_b32 s59, s97, 3
s_add_u32 s58, s58, s59
s_and_b32 s59, s97, 7
s_mul_i32 s63, s35, {RINGSZ}
s_add_u32 s63, s63, {RING0}
s_movk_i32 s101, 1023
v_lshlrev_b32 v16, 4, v1
v_lshrrev_b32 v2, 4, v1
v_and_b32 v5, 15, v1
v_mul_u32_u24 v3, 1032, v2
v_lshl_add_u32 v9, v5, 4, v3
v_add_u32 v9, s63, v9
v_and_b32 v3, 1, v2
v_mul_u32_u24 v3, 1032, v3
v_lshl_add_u32 v3, v5, 4, v3
v_lshrrev_b32 v4, 1, v2
v_lshl_add_u32 v10, v4, 9, v3
v_add_u32 v10, s63, v10
v_mul_u32_u24 v4, 2064, v4
v_add_u32 v21, v3, v4
v_add_u32 v21, {VA}, v21
s_lshl_b32 s60, s95, 7
v_lshl_add_u32 v3, v5, 4, s60
v_lshlrev_b32 v2, 10, v2
v_and_or_b32 v124, v3, s101, v2
v_add_u32 v3, 256, v3
v_and_or_b32 v125, v3, s101, v2
v_add_u32 v3, 256, v3
v_and_or_b32 v126, v3, s101, v2
v_add_u32 v3, 256, v3
v_and_or_b32 v127, v3, s101, v2
s_getpc_b64 s[92:93]
L_pc:
s_sub_u32 s92, s92, L_pc-L_start
s_subb_u32 s93, s93, 0
s_lshl_b32 s3, s97, 12
v_lshl_add_u32 v4, v0, 4, s3
v_min_u32 v4, L_codeend-L_start-16, v4
global_load_dwordx4 a[248:251], v4, s[92:93]
s_waitcnt lgkmcnt(0)
s_load_dword s34, s[32:33], 0
""")
st.vm = []
stamp("_karg")
srd(48, 32, 0x10000000)
KS = OPT.get("ks", 4)
WS_MOD2 = WS_MOD + 4096 * KS
def silu_to_lds(creg, t=2):
    A(re.sub(r"\bv([2-5])\b", lambda m: f"v{int(m.group(1)) - 2 + t}", f"""
    v_lshlrev_b32 v2, 16, v{creg}
    v_and_b32 v3, 0xffff0000, v{creg}
    v_mul_f32 v4, {f2u(-1.4426950408889634)}, v2
    v_mul_f32 v5, {f2u(-1.4426950408889634)}, v3
    v_exp_f32 v4, v4
    v_exp_f32 v5, v5
    v_add_f32 v4, 1.0, v4
    v_add_f32 v5, 1.0, v5
    v_rcp_f32 v4, v4
    v_rcp_f32 v5, v5
    v_mul_f32 v2, v2, v4
    v_mul_f32 v3, v3, v5
    v_cvt_pk_bf16_f32 v2, v2, v3
    v_lshlrev_b32 v3, 2, v0
    v_add_u32 v3, {SILU}, v3
    ds_write_b32 v3, v2
    """))
def publish(ntile, src, lab, dst, tag="s34", tmp=2, stmp="s60"):
    W = 64 * ntile
    A(f"""
    v_lshrrev_b32 v{tmp}, 4, v1
    v_lshlrev_b32 v{tmp}, 5, v{tmp}
    s_mul_i32 {stmp}, s35, {W}
    s_add_u32 {stmp}, {stmp}, {RED}
    v_add_u32 v{tmp}, {stmp}, v{tmp}
    s_mov_b32 exec_lo, 0x00010001
    s_mov_b32 exec_hi, 0x00010001
    """)
    for t in range(ntile): A(f"ds_write_b128 v{tmp}, v[{src+4*t}:{src+4*t+3}] offset:{(t>>1)*128 + (t&1)*16}")
    A(f"""
    s_mov_b64 exec, -1
    s_waitcnt lgkmcnt(0)
    s_barrier
    s_cmp_lg_u32 s35, 0
    s_cbranch_scc1 {lab}
    v_lshlrev_b32 v{tmp}, 3, v1
    v_add_u32 v{tmp+1}, {RED}, v{tmp}
    s_mov_b32 exec_lo, {(1 << (8*ntile)) - 1}
    s_mov_b32 exec_hi, 0
    """)
    for i in range(4): A(f"ds_read_b64 v[{src+2*i}:{src+2*i+1}], v{tmp+1} offset:{i*W}")
    A(f"""
    v_pk_add_f32 v[{src}:{src+1}], v[{src}:{src+1}], v[{src+2}:{src+3}]
    v_pk_add_f32 v[{src+4}:{src+5}], v[{src+4}:{src+5}], v[{src+6}:{src+7}]
    v_pk_add_f32 v[{src}:{src+1}], v[{src}:{src+1}], v[{src+4}:{src+5}]
    v_cvt_pk_bf16_f32 v{src}, v{src}, v{src+1}
    v_mov_b32 v{src+1}, {tag}
    buffer_store_dwordx2 v[{src}:{src+1}], v{tmp}, s[48:51], {dst} offen sc1
    s_mov_b64 exec, -1
    """)
def xr(i, jj): return 32 + (jj * 4 + i) * 4
def x_loads(n0, n1):
    for n in range(n0, n1):
        jj, i = n >> 2, n & 3
        st.add(f"buffer_load_dwordx4 v[{xr(i,jj)}:{xr(i,jj)+3}], v{124+jj}, s[52:55], s{[62, 0, 1, 100][i]} offen{nt('x')}")
def x_setup():
    srd(52, 4, 2048 * 1024)
    A("s_lshl_b32 s62, s57, 16\ns_lshl_b32 s61, s35, 14\ns_add_u32 s62, s62, s61\ns_add_u32 s0, s62, 4096\ns_add_u32 s1, s62, 8192\ns_add_u32 s100, s62, 12288")
NSL = 4 // KS
PX = OPT.get("px", 2)
A(f"s_cmp_lt_u32 s96, {PX}\ns_cselect_b32 s14, s97, 99\ns_cmp_lt_u32 s14, {16*KS//PX}\ns_cbranch_scc1 L_prod")
x_setup(); x_loads(0, 8)
A("s_branch L_join")
join_vm = list(st.vm)
A("L_prod:"); st.vm = []; st.hist = []; st.smem = True; st.smem_wr = {("s", 34)}
srd(52, 24, 1024); srd(36, 26, 512 * 6144)
A("v_lshlrev_b32 v2, 2, v0\nbuffer_load_dword v31, v2, s[52:55], 0 offen")
voffs8(6144)
A(f"""
s_mul_i32 s14, s97, {PX}
s_add_u32 s14, s14, s96
s_lshr_b32 s15, s14, 4
s_and_b32 s14, s14, 15
s_lshl_b32 s3, s15, 2
s_add_u32 s3, s3, s35
s_mul_i32 s60, s3, {32*NSL*6144}
s_lshl_b32 s61, s14, 7
s_add_u32 s60, s60, s61
""")
for k in range(NSL):
    A(f"s_add_u32 m0, s63, {(2+k)*UNIT}")
    for t in dma4("s60", nt("mod")): st.add(t, tag="wm")
    if k + 1 < NSL: A(f"s_add_u32 s60, s60, {32*6144}")
silu_to_lds(31)
A(f"""
v_lshrrev_b32 v2, 4, v1
v_lshlrev_b32 v2, 4, v2
s_mul_i32 s60, s3, {64*NSL}
s_add_u32 s60, s60, {SILU}
v_add_u32 v2, s60, v2
s_waitcnt lgkmcnt(0)
s_barrier
""")
for k in range(NSL): A(f"ds_read_b128 a[{4*k}:{4*k+3}], v2 offset:{k*64}")
x_setup()
st.need("wm")
for k in range(NSL):
    for t in p8_reads(lambda tp, tile: ("a", 16 + k * 16 + tp * 8 + tile * 4), (2 + k) * UNIT): A(t)
x_loads(0, 2)
for k in range(NSL):
    for t in range(4): A(mf(96 + 4 * t, 16 + k * 16 + 4 * t, 4 * k, "0" if k == 0 else None))
x_loads(2, 4)
A(f"s_lshl_b32 s3, s15, 12\ns_lshl_b32 s14, s14, 8\ns_add_u32 s3, s3, s14\ns_add_u32 s3, s3, {WS_MOD}\ns_mul_i32 s15, s34, 0x9E3779B1\ns_add_u32 s15, s15, 0x7F4A7C15")
publish(4, 96, "L_prod_x", "s3", "s15")
A("L_prod_x:"); st.lg = []; st.hist = []
x_loads(4, 8)
A("s_branch L_join"); st.raw(".p2align 12")
A("L_join:"); st.vm = join_vm; st.lg = []; st.hist = []; st.smem = True; st.smem_wr = {("s", 34)}
st.newphase(); stamp("_prod")

QST = 8192
A(f"""
s_lshl_b32 s60, s56, 10
s_lshl_b32 s61, s35, 8
s_add_u32 s60, s60, s61
s_add_u32 s36, s10, s60
s_addc_u32 s37, s11, 0
s_sub_u32 s38, {512*8192}, s60
s_mov_b32 s39, 0x20000
s_bfe_u32 s15, s57, 0x10003
s_lshl_b32 s14, s15, 7
s_lshl_b32 s92, s95, 19
s_add_u32 s94, s92, s14
s_xor_b32 s14, s14, 128
s_add_u32 s92, s92, s14
s_lshl_b32 s15, s15, 1
s_mul_i32 s93, s35, {UNIT}
s_sub_u32 s60, s93, s63
v_add_u32 v31, s60, v9
""")
voffs8(QST)
def wq_pre(n):
    r = n % 5; b = "s92" if n & 2 else "s94"
    p = [f"s_add_u32 m0, s63, {r*UNIT}" if r < 4 else "s_mov_b32 m0, s93", f"s_add_u32 s60, {b}, {(n&1)*32*QST}"]
    return p, ([f"s_add_u32 {b}, {b}, {64*QST}", f"s_and_b32 {b}, {b}, {512*QST-1}"] if n & 1 else [])
def wq_ops(n):
    p, q = wq_pre(n); return [(t, None) for t in p] + [(t, ("W", n)) for t in dma4("s60", nt("wq"))] + [(t, None) for t in q]
A(f"""
v_lshrrev_b32 v2, 4, v1
v_and_b32 v5, 15, v1
v_bfe_u32 v6, v1, 2, 2
v_lshlrev_b32 v6, 1, v6
s_movk_i32 s60, 0x78
v_lshrrev_b32 v6, v6, s60
v_and_b32 v6, 3, v6
v_xor_b32 v7, v6, v2
v_lshlrev_b32 v7, 4, v7
v_lshl_add_u32 v15, v5, 6, v7
v_add_u32 v15, {HIMG}, v15
v_bfe_u32 v4, v1, 2, 2
v_lshl_add_u32 v7, v4, 12, v7
v_and_b32 v4, 3, v1
v_lshl_add_u32 v7, v4, 8, v7
""")
A("v_xor_b32 v4, s15, v4")
for s in range(4): A(f"v_xor_b32 v5, {s}, v4\nv_lshl_add_u32 v{17+s}, v5, 6, v7")
A(f"""
s_lshl_b32 s60, s35, 1
s_lshr_b32 s60, 0x78, s60
s_and_b32 s60, s60, 3
v_lshlrev_b32 v3, 2, v2
v_xor_b32 v3, s60, v3
v_and_b32 v4, 15, v1
v_xor_b32 v3, v3, v4
v_lshlrev_b32 v3, 4, v3
v_lshl_add_u32 v3, v2, 8, v3
s_lshl_b32 s60, s35, 10
v_add_u32 v22, s60, v3
v_add_u32 v23, 3072, v22
v_add_u32 v24, 6144, v22
v_add_u32 v25, 9216, v22
v_bfe_u32 v3, v1, 2, 2
v_lshlrev_b32 v3, 8, v3
v_lshl_add_u32 v3, v2, 6, v3
v_and_b32 v4, 3, v1
v_lshl_add_u32 v3, v4, 4, v3
s_lshl_b32 s60, s35, 12
s_add_u32 s60, s60, 64
v_add_u32 v26, s60, v3
v_subrev_u32 v27, 8, v26
v_subrev_u32 v28, 16, v26
v_subrev_u32 v29, 24, v26
v_bfe_u32 v3, v1, 2, 1
v_xor_b32 v3, v3, v2
v_lshlrev_b32 v3, 6, v3
v_bfe_u32 v4, v1, 2, 2
v_lshl_add_u32 v3, v4, 12, v3
s_lshl_b32 s60, s35, 10
s_add_u32 s60, s60, {HIMG}
v_add_u32 v3, s60, v3
v_and_b32 v4, 3, v1
v_lshl_add_u32 v120, v4, 4, v3
v_xor_b32 v121, 32, v120
v_xor_b32 v122, 48, v120
v_xor_b32 v123, 16, v120
v_subrev_u32 v8, {HIMG}, v15
v_xor_b32 v8, 64, v8
v_add_u32 v8, {HIMG}, v8
""")
A(f"""
s_lshl_b32 s60, s56, 19
s_add_u32 s60, s60, {1536*256}
s_add_u32 s40, s6, s60
s_addc_u32 s41, s7, 0
s_mov_b32 s42, {512*256}
s_mov_b32 s43, 0x20000
s_sub_u32 s60, s60, 64
s_add_u32 s44, s8, s60
s_addc_u32 s45, s9, 0
s_mov_b32 s46, {512*256+64}
s_mov_b32 s47, 0x20000
s_lshl_b32 s6, s35, 12
s_mul_i32 s7, s35, 4128
s_add_u32 s7, s7, {VA}
s_lshl_b32 s8, s95, 14
s_mov_b32 s9, s8
""")
def k_ops(c): return ([f"s_add_u32 m0, s6, {KA if c%2==0 else KB}"], [f"buffer_load_dwordx4 v{22+i}, s[40:43], s8 offen offset:{i*1024}{nt('kv')} lds" for i in range(4)], ["s_add_u32 s8, s8, 16384", "s_and_b32 s8, s8, 0x1ffff"])
def v_ops(c): return ([f"s_add_u32 m0, s7, {(c&1)*16512}"], [f"buffer_load_dwordx4 v{26+i}, s[44:47], s9 offen offset:{i*1032}{nt('kv')} lds" for i in range(4)], ["s_add_u32 s9, s9, 16384", "s_and_b32 s9, s9, 0x1ffff"])
def kv_chain(Fl, g0, ops, tag, step=0):
    if step: spread_dma(Fl, g0, ops[0], ops[1], ops[2], tag, None, step); return
    chain_dma(Fl, g0, ops[0], ops[1], tag, None, "dma")
    for t in ops[2]: Fl.append(F(t, g0 + 4, g0 + 10, "dma"))
x_loads(8, 16)
def warm(lab):
    if not OPT.get("warm", 1): return
    t = "    s_mov_b64 exec, 0\n"
    for w in range(4):
        if w < 3: t += f"    s_cmp_eq_u32 s35, {w}\n    s_cbranch_scc0 {lab}_{w}\n"
        t += f"    s_call_b64 s[100:101], L_stub@{w}\n"
        if w < 3: t += f"    s_branch {lab}_ret\n{lab}_{w}:\n"
    st.raw(t + f"{lab}_ret:\n    s_mov_b64 exec, -1")
A("s_waitcnt vmcnt(12)")
warm("L_w1")

for i in range(4): A(f"v_mov_b32 v{112+2*i}, 0\nv_mov_b32 v{104+2*i}, 0")
A("v_mov_b32 v7, 0x3f803f80")
stamp("_issued")
def trickle(n=1):
    while pend and n:
        t, tag = pend.pop(0); st.add(t, tag=tag)
        if t.startswith("buffer") or t.startswith("global"): n -= 1
A(f"v_lshlrev_b32 v30, 4, v0\nv_add_u32 v30, {WS_MOD}, v30")
MC = [96, 100, 2 * 128 - 8, 2 * 128 - 4]
mchk = [f"buffer_load_dwordx4 a[{4*k}:{4*k+3}], v30, s[48:51], {['0', 's10', 's11', 's14'][k]} offen sc1" for k in range(KS)]
for k in range(1, KS): A(f"s_mov_b32 {['0', 's10', 's11', 's14'][k]}, {4096*k}")
for n in range(16):
    jj, i = n >> 2, n & 3
    for e in range(4): A(f"v_dot2c_f32_bf16 v{112+2*i}, v{xr(i,jj)+e}, v7\nv_dot2c_f32_bf16 v{104+2*i}, v{xr(i,jj)+e}, v{xr(i,jj)+e}")
    if n == 0: stamp("_x0")
stamp("x")
for t in mchk: A(t)
pend = wq_ops(0) + wq_ops(1); trickle(4)
for d in ("quad_perm:[1,0,3,2]", "quad_perm:[2,3,0,1]", "row_ror:4", "row_ror:8"):
    for i in range(4): A(f"v_add_f32_dpp v{112+2*i}, v{112+2*i}, v{112+2*i} {d} row_mask:0xf bank_mask:0xf\nv_add_f32_dpp v{104+2*i}, v{104+2*i}, v{104+2*i} {d} row_mask:0xf bank_mask:0xf")
for op in ["v_mul_f32 v{m}, {c512}, v{r}", "v_mul_f32 v{q}, {c512}, v{q}", "v_fma_f32 v{q}, -v{m}, v{m}, v{q}", "v_max_f32 v{q}, 0, v{q}", "v_add_f32 v{q}, {eps}, v{q}",
           "v_rsq_f32 v{r}, v{q}", "v_mul_f32_e64 v{q}, -v{m}, v{r}"]:
    for i in range(4): A(op.format(m=113 + 2 * i, r=112 + 2 * i, q=104 + 2 * i, c512=f2u(1 / 512), eps=f2u(1e-5)))
for r in range(64):
    i = (r >> 2) & 3
    A(f"v_lshlrev_b32 v{128+2*r}, 16, v{32+r}\nv_and_b32 v{129+2*r}, 0xffff0000, v{32+r}")
    A(f"v_pk_fma_f32 v[{128+2*r}:{129+2*r}], v[{128+2*r}:{129+2*r}], v[{112+2*i}:{113+2*i}], v[{104+2*i}:{105+2*i}] op_sel_hi:[1,0,0]")
    if r >= OPT.get("rw1", 36) and r % 6 == 0: trickle()
trickle(99)
stamp("_p6")
A("s_mul_i32 s34, s34, 0x9E3779B1\ns_add_u32 s34, s34, 0x7F4A7C15")
def mod_fetch():
    return "\n".join(f"v_accvgpr_read_b32 v{96+r}, a{r}" for r in range(4 * KS)) + "\nv_cmp_ne_u32 vcc, s34, v97\n" + "".join(f"v_cmp_ne_u32 s[100:101], s34, v{99+2*i}\ns_or_b64 vcc, vcc, s[100:101]\n" for i in range(2 * KS - 1))
A(mod_fetch()); A("s_cbranch_vccz L_pollmod_x")
keep = list(st.vm)
spin("L_pollmod", ["s_sleep 4"] + mchk, mod_fetch())
st.vm = keep
stamp("mod")
A(f"""
s_cmp_ge_u32 s35, 2
s_cselect_b32 s60, 1.0, 0
s_cselect_b32 s3, 2048, 0
s_add_u32 s3, s3, {MODV}
s_mov_b32 s61, {f2u(SCALE)}
""")
for k in range(KS):
    A(f"""v_lshlrev_b32 v2, 16, v{96+4*k}
    v_and_b32 v3, 0xffff0000, v{96+4*k}
    v_lshlrev_b32 v4, 16, v{98+4*k}
    v_and_b32 v5, 0xffff0000, v{98+4*k}""")
    for e in range(4): A(f"v_add_f32 v{112+e}, {'s60' if k == 0 else 'v' + str(112+e)}, v{2+e}")
for e in range(4): A(f"v_mul_f32 v{112+e}, s61, v{112+e}")
A(f"""
s_lshl_b32 s60, s95, 8
v_lshlrev_b32 v2, 4, v0
v_subrev_u32 v2, s60, v2
v_and_b32 v2, 2047, v2
v_add_u32 v2, s3, v2
ds_write_b128 v2, v[112:115]
v_and_b32 v30, 15, v1
v_lshlrev_b32 v30, 5, v30
v_add_u32 v30, {MODV}, v30
s_waitcnt lgkmcnt(0)
s_barrier
""")
stamp("_bar1")
QS = 64
def qstg(U, tp, tile, s): return QS + (U & 1) * 32 + s * 16 + tp * 8 + tile * 4
def q_reads(n):
    r = n % 5
    return p8_reads(lambda tp, tile: ("a", qstg(n >> 1, tp, tile, n & 1)), r * UNIT if r < 4 else 0, "v9" if r < 4 else "v31")
def modreads(jj, b):
    for i in range(4): A(f"ds_read_b128 v[{b+4*i}:{b+4*i+3}], v30 offset:{(i>>1)*2048 + jj*512 + (i&1)*16}")
for jj in range(4): modreads(jj, 32 + 16 * jj)
pend = wq_ops(2) + wq_ops(3) + wq_ops(4)
for n in range(16):
    jj, i = n >> 2, n & 3; b = 32 + 16 * jj; t = 128 + 8 * n; d = 96 + 4 * (n & 3)
    for e in range(4): A(f"v_pk_fma_f32 v[{t+2*e}:{t+2*e+1}], v[{t+2*e}:{t+2*e+1}], v[{b+8+2*e}:{b+9+2*e}], v[{b+2*e}:{b+2*e+1}]")
    for e in range(4): A(f"v_cvt_pk_bf16_f32 v{d+e}, v{t+2*e}, v{t+2*e+1}")
    A(f"ds_write_b128 v{120+i}, v[{d}:{d+3}] offset:{jj*16384 + i*256}")
    if n >= OPT.get("jw", 4): trickle()
stamp("_jloop")
for n in range(2):
    for i, t in enumerate(q_reads(n)): st.add(t, tag=("R", n), need=[("W", n)] if i == 0 else None)
stamp("_w01")
trickle(99)
stamp("_w34")
A("s_waitcnt lgkmcnt(0)\ns_barrier")
def hb(kk, s, cb): return (kk & 1) * 32 + (s * 4 + cb) * 4
for s in range(2):
    for cb in range(4): A(f"ds_read_b128 a[{hb(0,s,cb)}:{hb(0,s,cb)+3}], {'v8' if s else 'v15'} offset:{(s*4+cb)*1024}")
stamp("h")

def qacc(tp, tile, cb): return 128 + (tp * 8 + tile * 4 + cb) * 4
def qop(s, cb): return 32 + (s * 4 + cb) * 4
M = []; Fl = []; RES = {}; HBAR = 46
for U in range(16):
    kk, h2 = U >> 1, U & 1
    g0 = len(M)
    for tp in range(2):
        for tile in range(2):
            for cb in range(4):
                for s in range(2):
                    M.append(mf(qacc(2 * h2 + tp, tile, cb), qstg(U, tp, tile, s), hb(kk, s, cb), "0" if (kk == 0 and s == 0) else None))
    for s in range(2):
        n = 2 * U + 2 + s; g = g0 + 16 * s + (10 if n == 2 else 4 if n == 3 else 0)
        def refill(n, g, step):
            m = n + 5
            if m >= 32: return
            p, q = wq_pre(m)
            spread_dma(Fl, g, p, dma4("s60", nt("wq")), q, ("W", m), [("R", n)], step)
        if U == 0 and s == 0: refill(0, 3, 2); refill(1, 11, 2)
        if n < 32:
            for i, t in enumerate(q_reads(n)): Fl.append(F(t, g + i, g + i + 1, "rd", tag=("R", n), need=[("W", n)] if i == 0 else None))
            refill(n, g + 11, 4 if n > 4 else 2 if n == 2 else 3)
    RES[g0 + 31] = 1
    if U: Fl += stampF(f"q{U}", g0)
    if kk < 7:
        for i in range(4):
            n = 4 * h2 + i; s, cb = n >> 2, n & 3
            Fl.append(F(f"ds_read_b128 a[{hb(kk+1,s,cb)}:{hb(kk+1,s,cb)+3}], {'v8' if s else 'v15'} offset:{((kk+1)*8+n)*1024}", g0 + 8 + (i & 1) + 16 * (i >> 1), g0 + 12 + (i & 1) + 16 * (i >> 1), "hb", tag=("HB", kk + 1)))
    if U == 4:
        Fl.append(F("s_add_u32 s61, s8, s6", g0 + 20, g0 + 26, "kpf"))
        for i in range(4): Fl.append(dummyF(f"buffer_load_dwordx4 a[244:247], v16, s[40:43], s61 offen offset:{i*1024}", g0 + 26 + 8 * i, g0 + 30 + 8 * i, "kpf"))
    if kk == 7:
        for tp in range(2):
            T = 2 * h2 + tp - 1
            if T >= 0:
                for cb in range(4):
                    for e in range(4):
                        src = qacc(T, e >> 1, cb) + 2 * (e & 1)
                        Fl.append(F(f"v_cvt_pk_bf16_f32 v{qop(T,cb)+e}, v{src}, v{src+1}", g0 + 16 * tp + 2, g0 + 16 * tp + 15, "cv"))
        if h2 == 0:
            Fl.append(F(("barrier", [("HB", 7), ("R", 29)]), g0 + 1, g0 + 1, "dma"))
            kv_chain(Fl, g0 + 8, k_ops(0), ("K", 0))
            kv_chain(Fl, g0 + 24, k_ops(1), ("K", 1))
        else:
            kv_chain(Fl, g0 + 1, v_ops(0), ("V", 0))
            Fl.append(F(("barrier", [("K", 0)]), g0 + 15, g0 + 15, "rd"))
            for s in range(4): Fl.append(F(f"ds_read_b128 a[{STG+s*4}:{STG+s*4+3}], v{17+s} offset:{KA}", g0 + 16 + s, g0 + 22, "rd", tag=("R", "k00")))
LP0 = 2
def blk_addr(dst, src, add):
    A(f"""s_add_u32 s60, {src}, {add}
    s_and_b32 s60, s60, 3
    s_mul_i32 s61, s60, {KB}
    s_cmp_eq_u32 s60, 2
    s_cselect_b32 s61, {VA}, s61
    s_cmp_eq_u32 s60, 3
    s_cselect_b32 s61, {XR}, s61
    v_add_u32 v{dst}, s61, v16""")
with Capture() as cp:
    voffs16(1024)
    A(f"""
s_lshl_b32 s60, s56, 19
s_lshl_b32 s61, s35, {OPT.get("wocol", 6)}
s_and_b32 s61, s61, {OPT.get("womask", 1023)}
s_add_u32 s60, s60, s61
s_add_u32 s36, s12, s60
s_addc_u32 s37, s13, 0
s_sub_u32 s38, {4096*1024}, s60
v_mov_b32 v2, 0x3f803f80
v_accvgpr_write_b32 a240, v2
v_accvgpr_write_b32 a241, v2
v_accvgpr_write_b32 a242, v2
v_accvgpr_write_b32 a243, v2
s_and_b32 s14, s57, {OPT.get("rotmask", 7) & 3}
s_lshl_b32 s92, s14, 8
s_bfe_u32 s15, s57, 0x20002
s_and_b32 s15, s15, {OPT.get("rotmask", 7) & 3}
s_lshl_b32 s94, s15, 17
s_mul_i32 s93, s97, 57344
s_mul_i32 s60, s35, 14336
s_add_u32 s93, s93, s60
""")
    srd(52, 16, 512 * 3584)
    blk_addr(30, "s35", 0)
    for i in range(4): blk_addr(2 + i, "s15", i)
    A(f"""
s_sub_u32 s3, s96, {LP0}
s_lshl_b32 s13, s3, 5
s_add_u32 s13, s13, s97
s_lshl_b32 s60, s13, 6
s_mul_i32 s61, s35, {128*6144}
s_add_u32 s60, s60, s61
s_add_u32 s60, s60, 2048
s_cmp_lt_u32 s3, 2
s_cselect_b32 s10, s60, {OOB}
s_cselect_b32 s62, 0, {OOB}
s_mov_b32 s12, s2
s_cmp_lg_u32 s35, 0
s_cselect_b32 s11, {OOB}, 0
""")
    srd(0, 24, 1024)
Fl += cp.fillers(412, 508, "su")
schedule(st, M, Fl, reserve=RES, verbose="Q")
for cb in range(4):
    for e in range(4):
        src = qacc(3, e >> 1, cb) + 2 * (e & 1)
        A(f"v_cvt_pk_bf16_f32 v{qop(3,cb)+e}, v{src}, v{src+1}")
st.newphase(); stamp("Q")
def wo_pre(u, m0):
    p = [m0, "s_add_u32 s60, s92, s94" + ("\ns_add_u32 s60, s60, 0x10000" if u & 4 else ""), "s_add_u32 s94, s94, 0x20000", "s_and_b32 s94, s94, 0x7ffff"]
    return p
def wo_chain(Fl, g, u, m0, need, late=3):
    p = wo_pre(u, m0)
    chain_dma(Fl, g, p[:2], dma4("s60", nt("wo")), ("W", u), need, "dma", late)
    post = p[2:] + (["s_add_u32 s92, s92, 256", "s_and_b32 s92, s92, 1023"] if (u & 7) == 7 else [])
    for t in post: Fl.append(F(t, g, g + late + 8, "dma"))

def S(kt, cb): return 96 + (kt * 4 + cb) * 4
def P(c, s, cb): return 160 + (c & 1) * 32 + (s * 4 + cb) * 4
def CI(cb): return 224 + 4 * cb
def oacc(tp, tile, cb): return (tp * 8 + tile * 4 + cb) * 4
def woreg(u, tile, s):
    o = tile * 8 + s * 4
    return ("a", 128 + u * 16 + o) if u < 4 else (("v", 128 + (u - 4) * 16 + o) if u < 6 else ("v", 192 + (u - 6) * 16 + o))
LS = 224
def RS(u): return (u + 2) & 3
units = [("QK", 0, k) for k in range(4)]
for c in range(7): units += [("QK", c + 1, k) for k in range(4)] + [("L", c, 0)] + [("PV", c, k) for k in range(4)]
units += [("L", 7, 0)] + [("PV", 7, k) for k in range(4)]
M = []; Fl = []; RES = {}; G = {}; buf = {}
staged = [u for u in units if u[0] != "L"]
for n, u in enumerate(staged): buf[u] = n
pos = 0
for un in units: G[un] = pos; pos += 8 if un[0] == "L" else 16
NATT = pos
def oop(dp, cb): return 32 + (dp * 4 + cb) * 4
pf = []
if OPT["pf_w1"]: pf += [("w1", i) for i in range(14)]
if OPT["pf_w2"]: pf += [("w2", i) for i in range(14 if OPT["pf_w2"] == 1 else 2)]
with Capture() as cp:
    A(f"""
v_lshlrev_b32 v252, 2, v0
buffer_load_dword v252, v252, s[0:3], s62 offen
v_lshrrev_b32 v248, 5, v1
v_lshlrev_b32 v248, 4, v248
v_bfe_u32 v249, v1, 2, 3
v_add_u32 v248, v248, v249
v_mul_u32_u24 v248, 6144, v248
v_and_b32 v249, 3, v1
v_lshl_add_u32 v248, v249, 4, v248
v_add_u32 v249, {8*6144-1032}, v248
v_add_u32 v250, {32*6144-2064}, v248
v_add_u32 v251, {40*6144-3096}, v248
s_mov_b32 s0, s26
s_mov_b32 s1, s27
s_mov_b32 s2, {512*6144}
s_mov_b32 m0, s63
""")
Fl += cp.fillers(3, 12, "dma")
for i in range(4): Fl.append(F(f"buffer_load_dwordx4 v{248+i}, s[0:3], s10 offen offset:{i*1032}{nt('mod')} lds", 13 + 9 * i, 14 + 9 * i, "dma", tag="wm"))
with Capture() as cp:
    A(f"""
s_lshl_b32 s60, s57, 3
s_add_u32 s60, s60, s56
s_lshl_b32 s60, s60, 9
s_add_u32 s60, s60, {WS_F1}
v_lshlrev_b32 v253, 7, v1
s_lshl_b32 s61, s58, 3
s_add_u32 s61, s61, s59
v_add_u32 v254, s60, v253
s_lshl_b32 s61, s61, 7
s_add_u32 s61, s61, {WS_F2}
v_mov_b32 v253, s61
v_cmp_le_u32 vcc, 4, v1
v_cndmask_b32 v254, v254, v253, vcc
s_not_b32 s60, s34
v_mov_b32 v255, s60
""")
Fl += cp.fillers(G[("PV", 1, 0)], G[("PV", 2, 0)], "pw")
for un in units:
    ty, c, k = un; g0 = len(M); assert g0 == G[un]
    if ty == "QK":
        b = STG + (buf[un] & 1) * 16
        for cb in range(4):
            for s in range(4):
                M.append(mf(S(k, cb), b + 4 * s, qop(s, cb), None if s else ("0" if (c == 0 and k < 2) else CI(cb)), "v", "a", "v"))
    elif ty == "L":
        for cb in range(4):
            for s in range(2): M.append(mf(LS + 4 * cb, 240, P(c, s, cb), "0" if (c == 0 and s == 0) else None, "a", "a", "v"))
    else:
        for tile in range(2):
            for cb in range(4):
                for s in range(2): M.append(mf(oacc(k, tile, cb), stg(buf[un], tile, s), P(c, s, cb), "0" if (c == 0 and s == 0) else None, "a", "a", "v"))
    if ty == "L": continue
    RES[g0 + 15] = 1
    bar = None
    if (ty, c, k) == ("QK", 0, 3): bar = 1
    if ty == "PV" and k == 3 and c < 7: bar = c + 2
    rg = g0
    if bar is not None:
        Fl.append(F(("barrier", [("R", un), ("V", bar - 1)] + ([("K", bar)] if bar <= 7 else [])), g0 + 1, g0 + 1, "rd")); rg = g0 + 2
        Fl += stampF(f"B{bar}", g0 + 2)
        VS = OPT.get("vs", 5); gk = g0 + 8
        if bar + 1 <= 7: kv_chain(Fl, gk, k_ops(bar + 1), ("K", bar + 1), VS); gk += 4 * VS
        if bar <= 7: kv_chain(Fl, gk, v_ops(bar), ("V", bar), VS); gk += 4 * VS
        plan = {1: [("d", 0)], 2: [("d", 1)], 4: [("r", 0), ("d", 2), ("d", 3)], 5: [("r", 1), ("r", 2), ("d", 4), ("d", 5)], 6: [("r", 3), ("d", 6)], 7: [("d", 7)]}.get(bar, [])
        gr = g0 + 20
        for kind, u in plan:
            if kind == "d":
                p = wo_pre(u, f"s_add_u32 m0, s63, {RS(u)*UNIT}")
                spread_dma(Fl, gk, p[:2], dma4("s60", nt("wo")), p[2:] + (["s_add_u32 s92, s92, 256", "s_and_b32 s92, s92, 1023"] if (u & 7) == 7 else []), ("W", u), [("RW", u - 4)] if u >= 4 else None, VS); gk += 4 * VS
            else:
                for i, t in enumerate(p16_reads(lambda tile, s: woreg(u, tile, s), RS(u) * UNIT)):
                    Fl.append(F(t, gr + 2 * i, gr + 6 + 2 * i, "wor", tag=("RW", u), need=[("W", u)] if i == 0 else None))
                gr += 16
        if 3 <= bar <= 6:
            if bar == 3:
                for t in [f"v_accvgpr_write_b32 a{248+i}, -1" for i in range(4)] + ["s_lshl_b32 s10, s58, 3", "s_add_u32 s10, s10, s59", "s_lshl_b32 s10, s10, 3", "s_add_u32 s10, s10, s35",
                          "s_lshl_b32 s10, s10, 12", f"s_add_u32 s10, s10, {WS_H1}", "s_and_b32 s60, s35, 3"][:-1]: Fl.append(F(t, gk - 12, gk, "dma"))
            if bar == 5: Fl.append(F("s_add_u32 s10, s10, 16384", gk - 3, gk, "dma"))
            for n in range(2):
                Fl.append(F(f"buffer_store_dwordx4 a[248:251], v16, s[48:51], s10 offen offset:{(((bar - 3) & 1) * 2 + n) * 1024} sc1", gk, gk + 2, "dma")); gk += VS
        if bar <= 7:
            for n in range(4):
                if not pf: break
                nm, i = pf.pop(0)
                if nm == "w2" and i == 0:
                    for t in ["s_mov_b32 s52, s20", "s_mov_b32 s53, s21"] + ((["s_sub_u32 s93, s93, 12288"] if OPT["pf_w1"] else []) if OPT["pf_w2"] == 1 else ["s_mul_i32 s93, s2, 7168", "s_lshl_b32 s60, s35, 11\ns_add_u32 s93, s93, s60"]): Fl.append(F(t, gk - 3, gk, "dma"))
                if i and i % 4 == 0: Fl.append(F("s_add_u32 s93, s93, 4096", gk - 3, gk, "dma"))
                Fl.append(dummyF(f"buffer_load_dwordx4 a[244:247], v16, s[52:55], s93 offen offset:{(i%4)*1024}", gk, gk + 2, "dma")); gk += VS
    i = staged.index(un)
    if i + 1 < len(staged):
        nx = staged[i + 1]; nb = STG + (buf[nx] & 1) * 16
        if nx[0] == "QK":
            for s in range(4):
                Fl.append(F(f"ds_read_b128 a[{nb+4*s}:{nb+4*s+3}], v{17+s} offset:{(KA if nx[1]%2==0 else KB) + nx[2]*1024}", rg + s // 2, rg + 4 + s, "rd", tag=("R", nx)))
        else:
            i2 = 0
            for tile in range(2):
                for s in range(2):
                    for hf in range(2):
                        d = stg(buf[nx], tile, s) + 2 * hf
                        Fl.append(F(f"ds_read_b64_tr_b16 a[{d}:{d+1}], v21 offset:{(nx[1]&1)*16512 + (4*s+2*hf)*2064 + nx[2]*256 + tile*8}", rg + i2 // 2, rg + 1 + i2, "rd", tag=("R", nx))); i2 += 1
g1 = G[("QK", 0, 1)]
for cb in range(4):
    s0 = S(0, cb); t = 240 + 2 * cb; ch = ("mx", cb); e = g1 + max(0, 4 * cb - 8); l = g1 + 14 + 4 * cb
    for txt in [f"v_max3_f32 v{t}, v{s0}, v{s0+1}, v{s0+2}", f"v_max_f32 v{t}, v{t}, v{s0+3}", f"v_mov_b32 v{t+1}, v{t}",
                f"v_permlane16_swap_b32 v{t}, v{t+1}", f"v_max_f32 v{t}, v{t}, v{t+1}", f"v_mov_b32 v{t+1}, v{t}",
                f"v_permlane32_swap_b32 v{t}, v{t+1}", f"v_max_f32 v{t}, v{t}, v{t+1}"] + [f"v_sub_f32 v{CI(cb)+i}, 0, v{t}" for i in range(4)]:
        Fl.append(F(txt, e, l, ch))
for c in range(8):
    for kt in range(4):
        gq = G[("QK", c, kt)]
        for cb in range(4):
            e = gq + 4 * cb + 3 + 5
            l = (G[("QK", c + 1, kt)] + 4 * cb - 1) if c < 7 else G[("L", 7, 0)] - 2
            l = min(l, G[("L", c, 0)] - 2)
            ch = ("sm", kt, cb); s0 = S(kt, cb)
            if c == 0 and kt < 2:
                ch = ("mx", cb)
                for i in range(4): Fl.append(F(f"v_add_f32 v{s0+i}, v{CI(cb)}, v{s0+i}", e, l, ch))
            for i in range(4): Fl.append(F(f"v_exp_f32 v{s0+i}, v{s0+i}", e, l, ch))
            for i in range(2): Fl.append(F(f"v_cvt_pk_bf16_f32 v{P(c,kt>>1,cb)+2*(kt&1)+i}, v{s0+2*i}, v{s0+2*i+1}", e, l, ch))
gL = G[("L", 7, 0)]
for cb in range(4): Fl.append(F(f"v_accvgpr_read_b32 v{240+cb}, a{LS+4*cb}", gL + 12, gL + 20, "nrm"))
for cb in range(4): Fl.append(F(f"v_rcp_f32 v{244+2*cb}, v{240+cb}", gL + 12, gL + 24, "nrm"))
def norm_ops(dp, cb, pk):
    t = 160 + cb * 8; o = []
    for tile in range(2):
        for r in range(4): o.append(f"v_accvgpr_read_b32 v{t+4*tile+r}, a{oacc(dp,tile,cb)+r}")
    if pk: o += [f"v_pk_mul_f32 v[{t+2*r}:{t+2*r+1}], v[{t+2*r}:{t+2*r+1}], v[{244+2*cb}:{245+2*cb}] op_sel_hi:[1,0]" for r in range(4)]
    else: o += [f"v_mul_f32 v{t+r}, v{244+2*cb}, v{t+r}" for r in range(8)]
    d = 224 + cb * 4
    o += [f"v_cvt_pk_bf16_f32 v{d+e}, v{t+2*e}, v{t+2*e+1}" for e in range(4)]
    o.append(f"ds_write_b128 v30, v[{d}:{d+3}] offset:{(dp*4+cb)*1024}")
    return o
lpF = []; spread_dma(lpF, G[("PV", 0, 1)] + 4, [f"s_add_u32 m0, s63, {UNIT}", f"s_add_u32 s10, s10, {64*6144}"], [f"buffer_load_dwordx4 v{248+i}, s[0:3], s10 offen offset:{i*1032}{nt('mod')} lds" for i in range(4)], ["s_mov_b32 s2, s12"], "wm", None, 5)
cut = min(f.order for f in Fl if f.chain == "dma" and f.e >= G[("PV", 0, 3)])
for i, f in enumerate(lpF): f.order = cut - 1 + (i + 1) / 100.0
Fl += lpF
def late_producer():
    A(f"s_sub_u32 s3, s96, {LP0}\ns_cmp_ge_u32 s3, 2\ns_cbranch_scc1 L_nolp")
    keep = (list(st.vm), list(st.lg), list(st.hist))
    silu_to_lds(252, 240)
    A(f"v_lshrrev_b32 v240, 4, v1\nv_lshlrev_b32 v240, 4, v240\ns_lshl_b32 s3, s35, 8\ns_add_u32 s3, s3, {SILU}\nv_add_u32 v240, s3, v240\ns_waitcnt lgkmcnt(0)\ns_barrier")
    for k in range(4): A(f"ds_read_b128 a[{128+4*k}:{131+4*k}], v240 offset:{k*64}")
    st.need("wm")
    for u in range(2):
        for t in p16_reads(lambda tile, s: ("a", 144 + u * 16 + tile * 8 + s * 4), u * UNIT): A(t)
    for k in range(4):
        for tile in range(2): A(mf(244 + 4 * tile, 144 + (k >> 1) * 16 + tile * 8 + (k & 1) * 4, 128 + 4 * k, "0" if k == 0 else None))
    A(f"s_lshl_b32 s13, s13, 7\ns_add_u32 s13, s13, {WS_MOD2}")
    publish(2, 244, "L_lp_x", "s13", tmp=240, stmp="s3")
    A("L_lp_x:\ns_waitcnt lgkmcnt(0)\ns_nop 7\nL_nolp:")
    st.vm, st.lg, st.hist = keep
Fl.append(F(("call", late_producer), G[("PV", 2, 3)] + 1, G[("PV", 2, 3)] + 1, "lp"))
Fl.append(F("buffer_store_dword v255, v254, s[48:51], s11 offen sc1", G[("PV", 2, 1)] + 9, G[("PV", 2, 1)] + 12, "pw"))
NHID = 4
grp = [(dp, cb) for dp in range(4) for cb in range(4)]
for dp, cb in grp[:NHID]:
    for t in norm_ops(dp, cb, False): Fl.append(F(t, G[("PV", 7, dp)] + 16 + 3, NATT - 1, "nrm"))
for u in (4, 5):
    g = gL + 1 + (u - 4) * 30
    for i, t in enumerate(p16_reads(lambda tile, s: woreg(u, tile, s), RS(u) * UNIT)): Fl.append(F(t, g + i, g + 12 + i, "dma", tag=("RW", u), need=[("W", u)] if i == 0 else None))
    wo_chain(Fl, g + 18, u + 4, f"s_add_u32 m0, s63, {RS(u)*UNIT}", [("RW", u)], late=6)
schedule(st, M, Fl, reserve=RES, verbose="attn", mem2=("rd", "wor"), minback=OPT.get("minback", 10))
stamp("attn")
for u in (6, 7):
    for i, t in enumerate(p16_reads(lambda tile, s: woreg(u, tile, s), RS(u) * UNIT)): st.add(t, tag=("RW", u), need=[("W", u)] if i == 0 else None)
for n, (dp, cb) in enumerate(grp[NHID:8]):
    for t in norm_ops(dp, cb, True): st.add(t, tag="ow" if t.startswith("ds_write") else None)

def oB(i, cb): return ("v", 32 + (i * 4 + cb) * 4) if i < 4 else ("a", ((i - 4) * 4 + cb) * 4)
def pacc(i, tile, cb): return 96 + (i & 1) * 32 + (tile * 4 + cb) * 4
def oB_read(ks, cb):
    f, r = oB(ks, cb); return f"ds_read_b128 {f}[{r}:{r+3}], v{2 + ((ks>>1)&3)} offset:{(((ks>>3)*2+(ks&1))*4+cb)*1024}"
with Capture() as osu:
    A(f"""
v_and_b32 v6, 15, v1
v_lshrrev_b32 v7, 1, v6
v_and_b32 v6, 1, v1
v_lshrrev_b32 v8, 4, v1
v_lshlrev_b32 v31, 11, v7
v_lshl_add_u32 v31, v6, 4, v31
v_lshl_add_u32 v31, v8, 5, v31
v_lshrrev_b32 v7, 3, v1
v_and_b32 v8, 7, v1
v_lshlrev_b32 v23, 9, v8
v_and_b32 v22, 31, v1
v_lshlrev_b32 v24, 4, v22
v_lshlrev_b32 v22, 2, v22
v_lshrrev_b32 v8, 5, v1
v_lshl_add_u32 v24, v8, 16, v24
v_mov_b32 v25, s34
s_mul_i32 s6, s35, {UNIT}
s_add_u32 s6, s6, {VB}
s_sub_u32 s60, s6, s63
v_add_u32 v20, s60, v10
s_mul_i32 s7, s35, {2*UNIT}
s_sub_u32 s60, s7, s63
v_add_u32 v21, s60, v10
s_mul_i32 s62, s35, {UNIT}
s_add_u32 s62, s62, {8*UNIT}
s_cmp_eq_u32 s35, 3
s_cselect_b32 s62, {MISC+8192}, s62
s_sub_u32 s60, s62, s63
v_add_u32 v15, s60, v10
; s93 = partial store base, s8 = its running column offset; s9 = own flag line (wave 0) ; s0 = flag check base; s1 = read base; s12 = running read column
s_lshl_b32 s61, s57, 3
s_add_u32 s61, s61, s56
s_lshl_b32 s93, s61, 16
s_lshl_b32 s60, s35, 7
s_add_u32 s93, s93, s60
s_add_u32 s93, s93, {WS_PART}
s_lshl_b32 s8, s14, 9
s_lshl_b32 s9, s61, 9
s_add_u32 s9, s9, {WS_F1}
s_cmp_lg_u32 s35, 0
s_cselect_b32 s9, {OOB}, s9
s_lshl_b32 s0, s58, 12
s_add_u32 s0, s0, {WS_F1}
s_lshl_b32 s1, s58, 19
s_lshl_b32 s60, s59, 13
s_add_u32 s1, s1, s60
s_lshl_b32 s60, s35, 11
s_add_u32 s1, s1, s60
s_add_u32 s1, s1, {WS_PART}
s_and_b32 s12, s58, {OPT.get("rotmask", 7) & 3}
s_lshl_b32 s12, s12, 9
s_mov_b32 s15, 0
""")
    A(f"""
v_lshrrev_b32 v6, 5, v1
s_and_b32 s60, s58, {OPT.get("rotmask", 7) & 3}
v_add_u32 v6, s60, v6
v_add_u32 v7, 2, v6
v_and_b32 v6, 3, v6
v_and_b32 v7, 3, v7
v_and_b32 v8, 30, v1
v_lshlrev_b32 v8, 3, v8
v_lshl_add_u32 v6, v6, 8, v8
v_lshl_add_u32 v7, v7, 8, v8
v_lshlrev_b32 v240, 1, v6
v_lshlrev_b32 v241, 1, v7
v_add_u32 v242, {MODV}, v240
v_add_u32 v243, {MODV}, v241
v_and_b32 v8, 1, v1
v_lshl_add_u32 v6, v8, 10, v6
v_lshl_add_u32 v7, v8, 10, v7
v_lshlrev_b32 v8, 4, v0
v_add_u32 v8, {WS_MOD2}, v8
s_lshl_b32 s10, s58, 16
s_lshl_b32 s60, s59, 13
s_add_u32 s10, s10, s60
s_lshl_b32 s60, s35, 11
s_add_u32 s10, s10, s60
""")
    srd(52, 4, 2048 * 1024)
    A("s_movk_i32 s11, 4096")
st.need("ow"); A("s_barrier")
for ks in range(2):
    for cb in range(4): A(oB_read(ks, cb))
st.newphase(); stamp("norm")
def slot_m0(r): return f"s_add_u32 m0, s63, {r*UNIT}" if r < 4 else {4: "s_mov_b32 m0, s6", 5: "s_mov_b32 m0, s7", 6: f"s_add_u32 m0, s7, {UNIT}", 7: "s_mov_b32 m0, s62"}[r]
def slot_rd(r): return (r * UNIT, "v10") if r < 4 else {4: (0, "v20"), 5: (0, "v21"), 6: (UNIT, "v21"), 7: (0, "v15")}[r]
def part_cvt(n): return [f"v_cvt_pk_bf16_f32 v{224+4*cb+k}, v{pacc(n,k>>1,cb)+2*(k&1)}, v{pacc(n,k>>1,cb)+2*(k&1)+1}" for cb in range(4) for k in range(4)]
def flag1(n): return f"buffer_store_dword v25, v22, s[48:51], s9 offen offset:{n*128} sc1"
def pread(n, soff): return [f"buffer_load_dwordx4 v[{160+16*n+4*gp}:{163+16*n+4*gp}], v24, s[48:51], {soff[gp]} offen sc1{' nt' if OPT.get('pnt') else ''}" for gp in range(4)]
M = []; Fl = []; RES = {}
slot = {u: (RS(u) if (u & 7) < 4 else u & 7) for u in range(8, 32)}
ld = [(10, slot[10], 1, None), (11, slot[11], 17, None), (12, 4, 33, None), (13, 5, 4 * 16 + 11, None), (14, 6, 5 * 16 + 11, None), (15, 7, 6 * 16 + 11, None)] + [(u, slot[u], (u - 9) * 16 + 11, u - 8) for u in range(16, 32)]
for u in range(32):
    n, kk = u >> 3, u & 7; g0 = len(M)
    for tile in range(2):
        for cb in range(4):
            for s in range(2):
                f, r = oB(2 * kk + s, cb)
                fa, ra = woreg(u, tile, s) if u < 8 else ("a", stg(u, tile, s))
                M.append(mf(pacc(n, tile, cb), ra, r, "0" if (kk == 0 and s == 0) else None, "v", fa, f))
    if 8 <= u + 1 < 32:
        off, ad = slot_rd(slot[u + 1])
        for i, t in enumerate(p16_reads(lambda tile, s: ("a", stg(u + 1, tile, s)), off, ad)):
            Fl.append(F(t, g0 + i, g0 + i + 1, "rd", tag=("R", u + 1), need=[("W", u + 1)] if i == 0 else None))
    RES[g0 + 15] = 1
GW = OPT.get("gow", 40)
for i, (dp, cb) in enumerate(grp[8:]):
    o = norm_ops(dp, cb, True); g = i * (GW - 4) // 8
    Fl.append(F("\n".join(o[:-1]), g, g, "nrm")); Fl.append(F(o[-1], g + 1, g + 1, "nrm", tag="ow2"))
Fl.append(F(("barrier", ["ow2"]), GW, GW, "ob"))
i = 0
for ks in range(2, 16):
    for cb in range(4):
        e = i if ks < 8 else max(GW + 1 + i - 24, {14: 48, 15: 64}.get(ks, 0) + cb)
        f = F(oB_read(ks, cb), e, e + 1, "ob", tag="OB"); i += 1
        if ks < 8: f.order -= 1000
        Fl.append(f)
GX_ = GW + 38
Fl += osu.fillers(GW, 118, "su")
ld[2] = (12, 4, GX_ - 12, None)
for k in range(3): ld[3 + k] = (13 + k, 5 + k, GX_ + 2 + 12 * k, None)
for u, r, g, nd in ld:
    if u == 13: Fl.append(F(("barrier", ["OB"]), GX_, GX_, "dma"))
    p = wo_pre(u, slot_m0(r))
    spread_dma(Fl, g, p[:2], dma4("s60", nt("wo")), p[2:] + (["s_add_u32 s92, s92, 256", "s_and_b32 s92, s92, 1023"] if (u & 7) == 7 else []), ("W", u), [("R", nd)] if nd is not None else None, 4)
for n in range(3):
    g = (8 * n + 8) * 16
    Fl.append(F("s_add_u32 s61, s93, s8", g + 2, g + 8, "po"))
    SS = OPT.get("ss", 4)
    for cb in range(4):
        for t in part_cvt(n)[4 * cb:4 * cb + 4]: Fl.append(F(t, g + 2, g + 9 + SS * cb, "po"))
        if not OPT.get("nopart"): Fl.append(F(f"buffer_store_dwordx4 v[{224+4*cb}:{227+4*cb}], v31, s[48:51], s61 offen{'' if OPT.get('plainst') else ' sc1'}", g + 9 + SS * cb, g + 10 + SS * cb, "po", tag=("part", n)))
        Fl.append(F("s_add_u32 s61, s61, 16384" if cb < 3 else "s_add_u32 s8, s8, 512", g + 9, g + 12 + SS * cb, "po"))
    Fl.append(F("s_and_b32 s8, s8, 2047", g + 20, g + 14 + 3 * SS, "po"))
    gf = g + OPT.get("gf", 6 * 16 + 9)
    if n == 2 and OPT.get("nof2"): continue
    Fl.append(F(("barrier", [("part", n)]), gf, gf, "po"))
    Fl.append(F(flag1(n), gf + 1, gf + 1, "po"))
Fl.append(F("buffer_load_dword v240, v23, s[48:51], s0 offen offset:128 sc1", 31 * 16, 31 * 16 + 4, "po"))
for i, t in enumerate(["buffer_load_dwordx4 v[244:247], v6, s[52:55], s10 offen", "buffer_load_dwordx4 v[248:251], v7, s[52:55], s10 offen",
                       "buffer_load_dwordx4 v[252:255], v8, s[48:51], 0 offen sc1", "buffer_load_dwordx4 v[26:29], v8, s[48:51], s11 offen sc1"]):
    Fl.append(F(t, OPT.get("gsm", 24 * 16 + 30) + 16 * i, OPT.get("gsm", 24 * 16 + 30) + 4 + 16 * i, "sm"))
g = 23 * 16 + 12
w1s = ["s_min_u32 s62, s59, 6", "s_lshl_b32 s62, s62, 9", "s_lshl_b32 s60, s35, 7", "s_add_u32 s62, s62, s60", "s_add_u32 s36, s16, s62\ns_addc_u32 s37, s17, 0", f"s_sub_u32 s38, {512*3584}, s62", "s_lshl_b32 s14, s58, 1", f"s_and_b32 s14, s14, {6 if OPT.get('crot', 1) else 0}", "s_add_u32 s14, s14, s59", "s_and_b32 s92, s14, 7", f"s_mul_i32 s92, s92, {64*3584}",
       "v_bfe_u32 v18, v1, 2, 3", "v_mul_u32_u24 v18, 3584, v18", "v_lshrrev_b32 v19, 5, v1", "v_lshl_add_u32 v18, v19, 6, v18", "v_and_b32 v19, 3, v1", "v_lshl_add_u32 v11, v19, 4, v18",
       f"v_add_u32 v12, {8*3584-1032}, v11", f"v_add_u32 v13, {16*3584-2064}, v11", f"v_add_u32 v14, {24*3584-3096}, v11"]
for t in w1s: Fl.append(F(t, g, g + 14, "dma"))
NW0 = OPT.get('nw0', 7)
def w1_pre(): return ["s_mov_b32 s60, s92", f"s_add_u32 s92, s92, {32*3584}", f"s_cmp_eq_u32 s92, {512*3584}\ns_cselect_b32 s92, 0, s92"]
for k in range(NW0):
    p = w1_pre(); spread_dma(Fl, 24 * 16 + 12 + 16 * k - (k // 2) * 3, [slot_m0(slot[24 + k])] + p[:1], dma4("s60"), p[1:], ("W1", k), [("R", 24 + k)], 3)
for u in (8, 16, 24): Fl += stampF(f"O{u}", u * 16)
schedule(st, M, Fl, reserve=RES, verbose="O")
for t in part_cvt(3): A(t)
A("s_add_u32 s61, s93, s8")
for cb in range(4):
    st.add(f"buffer_store_dwordx4 v[{224+4*cb}:{227+4*cb}], v31, s[48:51], s61 offen sc1", tag=("part", 3))
    if cb < 3: A("s_add_u32 s61, s61, 16384")
stamp("O")

def w1reg(half, s, tile): return ((half * 16 + s) * 2 + tile) * 4
def w2reg(ks, tp, tile):
    o = tp * 8 + tile * 4
    if ks < 4: return ("v", 160 + ks * 16 + o)
    if ks < 9: return ("a", (ks - 4) * 16 + o)
    if ks < 13: return ("a", 192 + (ks - 9) * 16 + o)
    return ("v", 208 + o)
KS2 = [(p, 0) for p in range(7)] + [(p, 1) for p in range(7)]
class WS:
    nd = NW0; nr = 0; slot_of = {k: slot[24 + k] for k in range(NW0)}; last = {slot[24 + k]: k for k in range(NW0)}
def w_dma(n, slots):
    for _ in range(n):
        u = WS.nd; WS.nd += 1
        r = [x for x in slots if WS.last.get(x, -1) < WS.nr][0]
        A(slot_m0(r))
        if u == 16: w2_setup()
        A("\n".join(w1_pre()) if u < 16 else "\n".join(w2_pre(u - 16)))
        for i, t in enumerate(dma4("s60")): st.add(t, tag=("W1", u), need=[("R1", WS.last[r])] if (i == 0 and r in WS.last) else None)
        WS.slot_of[u] = r; WS.last[r] = u
def w_read(n):
    for _ in range(n):
        u = WS.nr; WS.nr += 1; r = WS.slot_of[u]
        if u < 16:
            off, ad = slot_rd(r); L = p8_reads(lambda tp, tile: ("a", w1reg(tp, u, tile)), off, "v9" if r < 4 else ad)
        else:
            L = p8_reads(lambda tp, tile: w2reg(u - 16, tp, tile), r * UNIT)
        for i, t in enumerate(L): st.add(t, tag=("R1", u), need=[("W1", u)] if i == 0 else None)
def w2_setup():
    voffs8(1024)
    A(f"""
    s_lshl_b32 s60, s35, 16
    s_lshl_b32 s61, s59, 7
    s_add_u32 s60, s60, s61
    s_add_u32 s36, s20, s60
    s_addc_u32 s37, s21, 0
    s_sub_u32 s38, {1792*1024}, s60
    s_sub_u32 s7, s14, 7
    s_cselect_b32 s7, s14, s7
    s_lshl_b32 s8, s7, 15
    s_lshl_b32 s7, s7, 18
    """)
def w2_pre(ks): return [f"s_add_u32 s60, s7, {(ks // 7) * 32768}", "s_add_u32 s7, s7, 0x40000", f"s_cmp_eq_u32 s7, {7 << 18}\ns_cselect_b32 s7, 0, s7"]
ALL7 = [0, 1, 2, 3, 4, 5, 6]
srd(52, 18, 3584)
A("v_lshrrev_b32 v2, 4, v1\nv_lshlrev_b32 v2, 4, v2\nbuffer_load_dwordx4 v[80:83], v2, s[52:55], s62 offen\nbuffer_load_dwordx4 v[84:87], v2, s[52:55], s62 offen offset:64")
A("v_subrev_u32 v2, v10, v9\nv_add_u32 v20, v2, v20\nv_add_u32 v21, v2, v21")
stamp("elp")
A("v_cmp_ne_u32 vcc, s34, v240\ns_cmp_lg_u32 vcc_lo, 0\ns_cselect_b32 s15, 1, 0")
def preads(n, sel=False):
    A(f"s_add_u32 s13, s12, {n*512}\ns_and_b32 s13, s13, 2047\ns_add_u32 s13, s13, s1")
    if sel: A(f"s_and_b32 s3, s15, {int(sel)}\ns_cselect_b32 s13, {OOB}, s13")
    for gp, t in enumerate(pread(n, ["s13"] * 4)):
        A(t)
        if gp < 3: A("s_add_u32 s13, s13, 0x20000")
m2 = ["buffer_load_dwordx4 v[252:255], v8, s[48:51], 0 offen sc1", "buffer_load_dwordx4 v[26:29], v8, s[48:51], s11 offen sc1"]
for n in range(2): preads(n, True)
w_read(NW0)
A("v_mov_b32 v2, 0x3f80\nv_mov_b32 v3, 0x3f800000")
for r in range(32): A(f"v_mov_b32 v{96+r}, 0")
def accq(n):
    for gp in range(4):
        for r in range(4): A(f"v_dot2c_f32_bf16 v{96+8*n+2*r}, v{160+16*n+4*gp+r}, v2\nv_dot2c_f32_bf16 v{97+8*n+2*r}, v{160+16*n+4*gp+r}, v3")
for r in range(8): A(f"v_lshlrev_b32 v{144+2*r}, 16, v{244+r}\nv_and_b32 v{145+2*r}, 0xffff0000, v{244+r}")
cond2 = """v_cmp_ne_u32 vcc, s34, v253
    v_cmp_ne_u32 s[100:101], s34, v255
    s_or_b64 vcc, vcc, s[100:101]
    v_cmp_ne_u32 s[100:101], s34, v27
    s_or_b64 vcc, vcc, s[100:101]
    v_cmp_ne_u32 s[100:101], s34, v29
    s_or_b64 vcc, vcc, s[100:101]"""
A(cond2); A("s_cbranch_vccz L_pm2_x")
keep = (list(st.vm), list(st.lg))
spin("L_pm2", ["s_sleep 8"] + m2, cond2)
st.vm, st.lg = keep
A(f"""
s_cmp_lt_u32 s35, 2
s_cselect_b32 s60, 1.0, 0
v_lshlrev_b32 v128, 16, v252
v_and_b32 v129, 0xffff0000, v252
v_lshlrev_b32 v130, 16, v254
v_and_b32 v131, 0xffff0000, v254
v_lshlrev_b32 v132, 16, v26
v_and_b32 v133, 0xffff0000, v26
v_lshlrev_b32 v134, 16, v28
v_and_b32 v135, 0xffff0000, v28
v_add_f32 v132, s60, v132
v_add_f32 v133, s60, v133
v_add_f32 v134, s60, v134
v_add_f32 v135, s60, v135
v_lshlrev_b32 v8, 4, v0
v_add_u32 v8, {MODV}, v8
ds_write_b128 v8, v[128:131]
ds_write_b128 v8, v[132:135] offset:4096
""")
w_dma(OPT.get("nA", 0), ALL7)
stamp("epr")
st.need(("part", 3))
stamp("eack")
A("s_waitcnt lgkmcnt(0)\ns_barrier"); A(flag1(3))
stamp("f1st")
def poll0(lab, off):
    A(f"s_cmp_lg_u32 s35, 0\ns_cbranch_scc1 {lab}_s\ns_mov_b64 exec, 0xff")
    keep = (list(st.vm), list(st.lg))
    spin(lab, [f"buffer_load_dword v240, v23, s[48:51], s0 offen offset:{off} sc1"], "v_cmp_ne_u32 vcc, s34, v240")
    A(f"s_mov_b64 exec, -1\n{lab}_s:"); st.vm, st.lg = keep
def modrd(dst, vec):
    for h in range(2):
        for q in range(2): A(f"ds_read_b128 v[{dst+8*h+4*q}:{dst+8*h+4*q+3}], v{242+h} offset:{vec*2048 + q*16}")
def poll_phase(lab, wave, off, n, slots, before, after, n2=0, nb=0):
    base = (list(st.vm), list(st.lg)); sv = (WS.nd, dict(WS.last))
    A(f"s_cmp_eq_u32 s35, {wave}\ns_cbranch_scc1 {lab}_b")
    sn = stamp_n[0]
    before(False); w_dma(n, slots)
    stamp("epre" + lab[-1]); A("s_waitcnt lgkmcnt(0)\ns_barrier"); stamp("ebar" + lab[-1]); after(False)
    if n2 is not None: w_dma(n2, slots); A(f"s_waitcnt vmcnt({4 * n2})")
    WS.nd, WS.last = sv[0], dict(sv[1]); st.vm, st.lg = list(base[0]), list(base[1]); st.newphase()
    A(f"s_branch {lab}_c\n{lab}_b:"); st.hist = []
    before(True); A("s_mov_b64 exec, 0xff")
    spin(lab, (["v_mov_b32 v240, 0", f"buffer_atomic_add v240, v23, s[48:51], s0 offen offset:{off} sc0 sc1"] if OPT.get("atom", 1) else
               [f"buffer_load_dword v240, v23, s[48:51], s0 offen offset:{off} sc1"]), "v_cmp_ne_u32 vcc, s34, v240")
    del stamp_names[sn:]; stamp_n[0] = sn
    A("s_mov_b64 exec, -1"); stamp("epre" + lab[-1]); A("s_waitcnt lgkmcnt(0)\ns_barrier"); stamp("ebar" + lab[-1])
    if n2 is None: w_dma(n, slots); after(True)
    else: after(True); w_dma(nb + n + n2, slots); A(f"s_waitcnt vmcnt({4 * (nb + n + n2)})")
    A(f"{lab}_c:"); st.hist = []
def q2_try(poller):
    if poller: accq(0); accq(1); return
    if OPT.get("nof2"): A("s_or_b32 s15, s15, 2"); accq(0); accq(1); return
    A("buffer_load_dword v240, v23, s[48:51], s0 offen offset:256 sc1")
    w_dma(2, ALL7); accq(0); accq(1)
    A(f"v_cmp_ne_u32 vcc, s34, v240\ns_cmp_lg_u32 vcc_lo, 0\ns_cselect_b32 s3, 2, 0\ns_or_b32 s15, s15, s3")
    preads(2, 2)
def q3_reads(poller):
    preads(3)
    if poller: preads(2)
    else:
        A("s_bitcmp0_b32 s15, 1\ns_cbranch_scc1 L_had2")
        keep = list(st.vm); preads(2); A("L_had2:"); st.vm = keep
    lab = "L_had01p" if poller else "L_had01"
    A(f"s_bitcmp0_b32 s15, 0\ns_cbranch_scc1 {lab}")
    keep = list(st.vm); preads(0); preads(1); accq(0); accq(1); A(f"s_nop 2\n{lab}:"); st.vm = keep
poll_phase("L_pf1", 0, 384, OPT.get("nB", 2), ALL7, q2_try, lambda p: (q3_reads(p), modrd(32, 0), modrd(48, 2), modrd(64, 1)), OPT.get("nC", 0), 0 if OPT.get("nof2") else 2)
stamp("f1ok")
stamp("ew")
accq(2); accq(3)
stamp("eacc3")
for h in range(2):
    for r in range(8): A(f"v_permlane32_swap_b32 v{96+16*h+r}, v{104+16*h+r}")
for h in range(2):
    for r in range(0, 8, 2): A(f"v_pk_add_f32 v[{128+8*h+r}:{129+8*h+r}], v[{96+16*h+r}:{97+16*h+r}], v[{104+16*h+r}:{105+16*h+r}]")
for r in range(8): A(f"v_pk_fma_f32 v[{128+2*r}:{129+2*r}], v[{128+2*r}:{129+2*r}], v[{32+2*r}:{33+2*r}], v[{144+2*r}:{145+2*r}]")
for r in range(8): A(f"v_cvt_pk_bf16_f32 v{144+r}, v{128+2*r}, v{129+2*r}")
def row_stats(x):
    A(f"v_pk_add_f32 v[96:97], v[{x}:{x+1}], v[{x+2}:{x+3}]\nv_pk_mul_f32 v[98:99], v[{x}:{x+1}], v[{x}:{x+1}]")
    A(f"v_pk_fma_f32 v[98:99], v[{x+2}:{x+3}], v[{x+2}:{x+3}], v[98:99]")
    for r in range(2, 8):
        A(f"v_pk_add_f32 v[96:97], v[96:97], v[{x+2*r}:{x+2*r+1}]\nv_pk_fma_f32 v[98:99], v[{x+2*r}:{x+2*r+1}], v[{x+2*r}:{x+2*r+1}], v[98:99]")
    A("v_add_f32 v96, v96, v97\nv_add_f32 v98, v98, v99")
    for d in ("quad_perm:[2,3,0,1]", "row_ror:4", "row_ror:8"):
        A(f"v_add_f32_dpp v96, v96, v96 {d} row_mask:0xf bank_mask:0xf\nv_add_f32_dpp v98, v98, v98 {d} row_mask:0xf bank_mask:0xf")
    for sw in ("16", "32"):
        A(f"v_mov_b32 v97, v96\nv_mov_b32 v99, v98\nv_permlane{sw}_swap_b32 v96, v97\nv_permlane{sw}_swap_b32 v98, v99\nv_add_f32 v96, v96, v97\nv_add_f32 v98, v98, v99")
    A(f"""v_mul_f32 v97, {f2u(1/512)}, v96
    v_mul_f32 v98, {f2u(1/512)}, v98
    v_fma_f32 v98, -v97, v97, v98
    v_max_f32 v98, 0, v98
    v_add_f32 v98, {f2u(1e-5)}, v98
    v_rsq_f32 v96, v98
    v_mul_f32_e64 v98, -v97, v96""")
row_stats(128)
for r in range(8): A(f"v_pk_fma_f32 v[{128+2*r}:{129+2*r}], v[{128+2*r}:{129+2*r}], v[96:97], v[98:99] op_sel_hi:[1,0,0]")
for r in range(8): A(f"v_pk_fma_f32 v[{128+2*r}:{129+2*r}], v[{128+2*r}:{129+2*r}], v[{48+2*r}:{49+2*r}], v[{64+2*r}:{65+2*r}]")
row_stats(128)
for r in range(8): A(f"v_pk_fma_f32 v[{128+2*r}:{129+2*r}], v[{128+2*r}:{129+2*r}], v[96:97], v[98:99] op_sel_hi:[1,0,0]")
for r in range(8): A(f"v_cvt_pk_bf16_f32 v{152+r}, v{128+2*r}, v{129+2*r}")
A(f"s_add_u32 s61, s10, {WS_Y}")
st.add("buffer_store_dwordx4 v[152:155], v6, s[48:51], s61 offen sc1", tag="y")
st.add("buffer_store_dwordx4 v[156:159], v7, s[48:51], s61 offen sc1", tag="y")
A(f"s_add_u32 s61, s10, {WS_X1}")
st.add("buffer_store_dwordx4 v[144:147], v6, s[48:51], s61 offen sc1", tag="y")
st.add("buffer_store_dwordx4 v[148:151], v7, s[48:51], s61 offen sc1", tag="y")
stamp("ysent")
w_read(WS.nd - WS.nr); w_dma(OPT.get("nD", 3), [0, 1, 2, 3])
A(f"""
v_lshrrev_b32 v2, 4, v1
s_lshl_b32 s61, s58, 3
s_add_u32 s61, s61, s59
s_lshl_b32 s9, s61, 7
s_add_u32 s9, s9, {WS_F2}
s_cmp_lg_u32 s35, 0
s_cselect_b32 s9, {OOB}, s9
s_lshl_b32 s0, s58, 10
s_add_u32 s0, s0, {WS_F2}
v_and_b32 v23, 7, v1
v_lshlrev_b32 v23, 7, v23
v_lshrrev_b32 v4, 3, v1
v_lshrrev_b32 v5, 1, v4
v_xor_b32 v5, v5, v1
v_and_b32 v5, 7, v5
v_lshlrev_b32 v5, 4, v5
v_lshl_add_u32 v4, v4, 10, v5
v_xor_b32 v5, 64, v4
v_add_u32 v5, 8192, v5
v_bfe_u32 v15, v1, 1, 3
v_xor_b32 v15, v15, v2
v_lshlrev_b32 v15, 4, v15
v_and_b32 v17, 7, v1
v_lshl_add_u32 v15, v17, 7, v15
v_bfe_u32 v17, v1, 3, 1
v_lshl_add_u32 v15, v17, 13, v15
v_xor_b32 v17, 64, v15
""")
stamp("ewr")
st.need("y")
stamp("eyack")
A("s_barrier"); A("buffer_store_dword v25, v22, s[48:51], s9 offen sc1")
w_read(WS.nd - WS.nr)
for r in range(8): A(f"v_lshlrev_b32 v{224+2*r}, 16, v{80+r}\nv_and_b32 v{225+2*r}, 0xffff0000, v{80+r}")
A(f"""
s_lshl_b32 s12, s58, 16
s_lshl_b32 s11, s35, 14
s_add_u32 s12, s12, s11
s_add_u32 s12, s12, {WS_Y}
s_mul_i32 s6, s35, {UNIT}
s_add_u32 s6, s6, 65536
s_sub_u32 s60, s6, s63
v_add_u32 v20, s60, v9
""")
def y_dma(poller):
    A("s_and_b32 s13, s14, 7\ns_lshl_b32 s13, s13, 7")
    for sp in range(8):
        A("s_add_u32 s61, s12, s13")
        for qh in range(2):
            A(f"s_add_u32 m0, s11, {qh*8192 + sp*1024}")
            st.add(f"buffer_load_dwordx4 v{4+qh}, s[48:51], s61 offen sc1 lds", tag=("Y", sp >> 2))
        if sp < 7: A("s_add_u32 s13, s13, 128\ns_and_b32 s13, s13, 1023")
nE = OPT.get("nE", 4)
assert nE <= 5
poll_phase("L_pf2", 3, 0, nE, [0, 1, 2, 3, 4], lambda p: None, y_dma, None)
stamp("f2ok")
if OPT.get("warm2", 1): warm("L_w2")
A(f"s_lshl_b32 s60, s2, 2\ns_add_u32 s60, s60, s35\ns_cmp_lg_u32 s60, 1\ns_cbranch_scc1 L_noep\nv_lshlrev_b32 v2, 9, v1\nv_add_u32 v2, {WS_F1 + 384}, v2\ns_mov_b32 s60, 0x8000\ns_mov_b32 s61, 0x10000\ns_mov_b32 s13, 0x18000")
keep = (list(st.vm), list(st.lg))
spin("L_ep", [f"buffer_load_dword v{40+i}, v2, s[48:51], {['0', 's60', 's61', 's13'][i]} offen sc1" for i in range(4)],
     "v_cmp_ne_u32 vcc, s34, v40\n" + "".join(f"v_cmp_ne_u32 s[100:101], s34, v{40+i}\ns_or_b64 vcc, vcc, s[100:101]\n" for i in range(1, 4)))
A("v_mov_b32 v2, 0\nbuffer_store_dword v25, v2, s[48:51], 0 offen sc1\nL_noep:"); st.vm, st.lg = keep
st.need(("Y", 0))
A("s_barrier")
stamp("Yin")

def yb(n, s, c2): return 96 + (n & 1) * 32 + (s * 2 + c2) * 4
def hacc(half, tile, cb): return 32 + half * 32 + (tile * 4 + cb) * 4
def yreads(n):
    cp, k4 = (n >> 2) & 1, n & 3
    return [f"ds_read_b128 v[{yb(n,s,c2)}:{yb(n,s,c2)+3}], v{15 if s % 2 == 0 else 17} offset:{(cp*2+c2)*16384 + (k4*2+(s>>1))*1024}" for c2 in range(2) for s in range(4)]
C1 = -2 * 0.7978845608028654 * 1.4426950408889634; C2 = C1 * 0.044715
def gelu_stages(q):
    half, cp = q >> 1, q & 1
    X = [hacc(half, t, cp * 2 + c2) + r for c2 in range(2) for t in range(2) for r in (0, 2)]; T = [240 + 2 * i for i in range(8)]
    pr = lambda r: f"v[{r}:{r+1}]"
    a = [f"v_pk_mul_f32 {pr(t)}, {pr(x)}, {pr(x)}" for x, t in zip(X, T)] + [f"v_pk_fma_f32 {pr(t)}, {pr(t)}, s[92:93], v[26:27] op_sel_hi:[1,0,0]" for t in T] + [f"v_pk_mul_f32 {pr(t)}, {pr(x)}, {pr(t)}" for x, t in zip(X, T)]
    b = [f"v_exp_f32 v{240+i}, v{240+i}" for i in range(16)]
    c = [f"v_pk_add_f32 {pr(t)}, {pr(t)}, 1.0 op_sel_hi:[1,0]" for t in T]
    d = [f"v_rcp_f32 v{240+i}, v{240+i}" for i in range(16)]
    e = [f"v_pk_mul_f32 {pr(x)}, {pr(x)}, {pr(t)}" for x, t in zip(X, T)]
    st_ = []
    for c2 in range(2):
        cb = cp * 2 + c2; dd = hacc(half, 0, cb)
        e += [f"v_cvt_pk_bf16_f32 v{dd+k}, v{X[4*c2+k]}, v{X[4*c2+k]+1}" for k in range(4)]
        e.append(f"v_min_u32 v{dd}, -2, v{dd}")
        st_.append(f"buffer_store_dwordx4 v[{dd}:{dd+3}], v16, s[48:51], s{93+1+half} offen offset:{cb*1024} sc1")
    return a, b, c, d, e, st_
def flag3(q): return f"buffer_store_dword v25, v22, s[48:51], s11 offen offset:{q*512} sc1"
for t in yreads(0): A(t)
late_w = []
assert WS.nr >= 12
while WS.nr < min(WS.nd, 20):
    u = WS.nr; WS.nr += 1; r = WS.slot_of[u]
    late_w += p8_reads((lambda tp, tile: ("a", w1reg(tp, u, tile))) if u < 16 else (lambda tp, tile: w2reg(u - 16, tp, tile)), r * UNIT if r < 4 else 0, "v9" if r < 4 else "v20")
A(f"""
s_mov_b32 s92, {f2u(C2)}
v_mov_b32 v26, {f2u(C1)}
s_lshl_b32 s60, s58, 3
s_add_u32 s60, s60, s59
s_lshl_b32 s94, s60, 15
s_lshl_b32 s61, s35, 12
s_add_u32 s94, s94, s61
s_add_u32 s94, s94, {WS_H1}
s_add_u32 s95, s94, 16384
s_lshl_b32 s1, s58, 18
s_add_u32 s1, s1, s61
s_add_u32 s1, s1, {WS_H1}
""")
NE = WS.nd - 16
W2S = {ks: ([0, 1, 2, 3, 4] * 3)[ks - NE] for ks in range(NE, 14)}
if NE == 5: W2S[4] = WS.slot_of[20]; assert W2S[4] == 4
def w2_m0(r): return f"s_add_u32 m0, s63, {r*UNIT}" if r < 4 else "s_mov_b32 m0, s6"
def w2_reads(ks): r = W2S[ks]; return p8_reads(lambda tp, tile: w2reg(ks, tp, tile), r * UNIT if r < 4 else 0, "v9" if r < 4 else "v20")
def hB(Q, k, c2):
    r = (k * 2 + c2) * 4
    if Q == 0: return ("a", 80 + r) if r < 48 else ("v", 224 + r - 48)
    if Q == 2: return ("v", 32 + r if r < 40 else (80 + r - 40 if r < 48 else 232 + r - 48))
    return [None, ("a", 136 + r), None, ("a", 80 + r)][Q]
def h_loads(Q, run="s8", tmp="s10"):
    o = []
    for k in range(7):
        o.append(f"s_add_u32 {tmp}, s1, {run}")
        for c2 in range(2):
            f, r = hB(Q, k, c2); o.append(f"buffer_load_dwordx4 {f}[{r}:{r+3}], v{16 + 2*(Q>>1)}, s[48:51], {tmp} offen offset:{((Q&1)*2+c2)*1024} sc1")
        o += [f"s_add_u32 {run}, {run}, 0x8000", f"s_cmp_eq_u32 {run}, {7 << 15}\ns_cselect_b32 {run}, 0, {run}"]
    return o
def chk3(q): return f"buffer_load_dword v{28 + (q&1)}, v23, s[48:51], s0 offen offset:{q*512} sc1"
A("v_add_u32 v18, 16384, v16\ns_mov_b32 s9, s8")
M = []; Fl = []; RES = {}
for n in range(16):
    q = n >> 2; half, cp, k4 = q >> 1, q & 1, n & 3; g0 = len(M)
    for tile in range(2):
        for c2 in range(2):
            for s in range(4):
                M.append(mf(hacc(half, tile, cp * 2 + c2), w1reg(half, 4 * k4 + s, tile), yb(n, s, c2), (224 + half * 8 + tile * 4) if (k4 == 0 and s == 0) else None, "v", "a", "v"))
    if n == 0:
        for i, t in enumerate(late_w): Fl.append(F(t, i // 2, i // 2, "lw", tag=("LW", i >> 3)))
    if n == 1: Fl.append(F(("barrier", [("Y", 1)]), g0, g0, "rd"))
    if n < 15:
        for i, t in enumerate(yreads(n + 1)): Fl.append(F(t, g0 + i, g0 + i + 1, "rd"))
    RES[g0 + 15] = 1
nlw = len(late_w) // 8; lslot = [WS.slot_of[u] for u in range(WS.nr - nlw, WS.nr)]
free = [(r, None) for r in range(5) if r not in lslot and not (NE == 5 and r == 4)] + [(r, ("LW", i)) for i, r in enumerate(lslot)]
ev = []; gd = OPT.get("gw2", 6); rdg = {}; PACE = OPT.get("pace", 14)
afree = {4: 81, 5: 86, 6: 97, 7: 102, 8: 113}
if NE == 5: rdg[4] = afree[4]; ev.append((rdg[4], "r", 4))
for ks in range(NE, 14):
    if free: r, nd = free.pop(0)
    else: r, nd = W2S[ks - 5], ("R2", ks - 5); gd = max(gd, rdg[ks - 5] + 8)
    W2S[ks] = r; ev.append((gd, "d", ks, nd))
    if ks < 9: rdg[ks] = max(gd + 44, afree.get(ks, 0)); ev.append((rdg[ks], "r", ks))
    gd += PACE
for e in sorted(ev, key=lambda e: e[0]):
    g, kind, ks = e[:3]
    if kind == "d":
        p = w2_pre(ks); spread_dma(Fl, g, [w2_m0(W2S[ks])] + p[:1], dma4("s60"), p[1:], ("W2", ks), [e[3]], 3)
    else:
        for k, t in enumerate(w2_reads(ks)): Fl.append(F(t, g + k // 2, g + (k + 1) // 2, "w2r", tag=("R2", ks), need=[("W2", ks)] if k == 0 else None))
CAP = {}
for q in range(3):
    g = 64 * (q + 1) + 4; a_, b_, c_, d_, e_, st_ = gelu_stages(q)
    Fl.append(F("\n".join(a_), g, g, "gelu"))
    for i, t in enumerate(b_): Fl.append(F(t, g + 1 + i, g + 1 + i, "gelu"))
    Fl.append(F("\n".join(c_), g + 18, g + 18, "gelu"))
    for i, t in enumerate(d_): Fl.append(F(t, g + 19 + i, g + 19 + i, "gelu"))
    Fl.append(F("\n".join(e_), g + 36, g + 36, "gelu"))
    for i, t in enumerate(st_): Fl.append(F(t, g + 37 + 2 * i, g + 37 + 2 * i, "gelu", tag=("h1", q)))
    for k in range(g + 1, g + 35): CAP[k] = 3
def h_check(Q):
    o = []
    for k in range(7):
        for c2 in range(2):
            f, r = hB(Q, k, c2)
            if f == "a": o.append(f"v_accvgpr_read_b32 v29, a{r}"); r = 29
            o.append(f"v_mov_b32 v28, v{r}" if not (k or c2) else f"v_max_u32 v28, v28, v{r}")
    return o
def check_F(Q, e, l, chain): return [F(t, e, l, chain, need=[("H", Q)] if i == 0 else None) for i, t in enumerate(h_check(Q))]
def spread_loads(Fl, ops, g0, step, chain="hl", tag=None):
    g = g0
    for t in ops:
        Fl.append(F(t, g - 2, g + 1, chain, tag=tag if t.startswith("buffer") else None))
        if t.startswith("buffer"): g += step
    return g
def have(Q):
    c = "v_cmp_eq_u32 vcc, -1, v28"
    A(c); A(f"s_cbranch_vccz L_h{Q}_x")
    keep = (list(st.vm), list(st.lg), list(st.hist))
    spin(f"L_h{Q}", ["s_sleep 4"] + [x for t in h_loads(Q, "s9", "s13") for x in t.split("\n")], "\n".join(h_check(Q)) + "\n" + c)
    st.vm, st.lg, st.hist = keep
    stamp(f"mchk{Q}")
spread_loads(Fl, h_loads(0), OPT.get("gl0", 176), 4, "ck", ("H", 0))
hl = h_loads(1); n1a = 5 * OPT.get("n1a", 3)
spread_loads(Fl, hl[:n1a], 234, 4, "ck", ("H", 1)); hl = hl[n1a:]
Fl += check_F(0, 241, 255, "hc")
for q in range(1, 4): Fl += stampF(f"mq{q}", 64 * q)
if OPT.get("abl"):
    ab = OPT["abl"]
    def drop(f):
        if isinstance(f.ins, tuple): return False
        t = f.ins.txt
        return (ab & 1 and t.endswith("lds")) or (ab & 2 and t.startswith("buffer_store_dwordx4")) or (ab & 4 and f.chain == "ck" and "dwordx4" in t) or (ab & 8 and f.chain == "w2r")
    Fl = [f for f in Fl if not drop(f)]
schedule(st, M, Fl, reserve=RES, verbose="G1", mem2=("rd", "dma", "w2r", "ck", "lw"), minback=0, capx=CAP)
stamp("G1")
a_, b_, c_, d_, e_, st_ = gelu_stages(3)
for i, t in enumerate(a_ + b_ + c_ + d_ + e_):
    A(t)
    if i % 9 == 8:
        while hl:
            x = hl.pop(0)
            if x.startswith("buffer"): st.add(x, tag=("H", 1)); break
            A(x)
for t in st_: A(t)
stamp("mgelu3")
have(0)
stamp("gelu")

def facc(tp, tile, cb): return 96 + (tp * 8 + tile * 4 + cb) * 4
def g2(Q):
    r = []
    for ch in ([0, 1], [2, 3], [4, 5, 6]):
        for tp in range(2):
            for tile in range(2):
                for c2 in range(2):
                    for k in ch:
                        fa, ra = w2reg((Q >> 1) * 7 + k, tp, tile); fb, rb = hB(Q, k, c2)
                        r.append(mf(facc(tp, tile, (Q & 1) * 2 + c2), ra, rb, "0" if (Q < 2 and k == 0) else None, "v", fa, fb))
    return r
Fl = []
for i in range(4):
    for k, t in enumerate(w2_reads(9 + i)): Fl.append(F(t, 8 * i + k, 8 * i + k + 1, "rd", need=[("W2", 9 + i)] if k == 0 else None))
g = spread_loads(Fl, hl, 0, 3, tag=("H", 1))
spread_loads(Fl, h_loads(2), max(g, OPT.get("gl2", 10)), OPT.get("st2", 3), tag=("H", 2))
Fl += check_F(1, 41, 55, "hc")
schedule(st, g2(0), Fl)
stamp("mg20")
have(1)
with Capture() as cp:
    A(f"""
v_and_b32 v2, 15, v1
v_lshlrev_b32 v2, 10, v2
v_lshrrev_b32 v3, 4, v1
v_lshl_add_u32 v2, v3, 4, v2
v_lshlrev_b32 v4, 4, v3
s_lshl_b32 s92, s58, 16
s_lshl_b32 s60, s35, 14
s_add_u32 s92, s92, s60
s_lshl_b32 s95, s59, 7
s_add_u32 s92, s92, s95
s_add_u32 s60, s92, {WS_X1}
""")
    srd(52, 22, 1024)
Fl = cp.fillers(0, 30, "su", ren=False)
Fl += [F(t, 32 + k, 33 + k, "rd", need=[("W2", 13)] if k == 0 else None) for k, t in enumerate(w2_reads(13))]
spread_loads(Fl, h_loads(3), OPT.get("gl3", 8), OPT.get("st2", 3), tag=("H", 3))
Fl += check_F(2, 46, 55, "hc")
schedule(st, g2(1), Fl)
stamp("G2a")
have(2)
Fl = []
spread_loads(Fl, ["buffer_load_dwordx4 v[240:243], v2, s[48:51], s60 offen sc1", "buffer_load_dwordx4 v[244:247], v2, s[48:51], s60 offen offset:64 sc1",
             "buffer_load_dwordx4 v[248:251], v4, s[52:55], s95 offen", "buffer_load_dwordx4 v[252:255], v4, s[52:55], s95 offen offset:64"], 2, 6)
Fl += check_F(3, 41, 55, "hc")
schedule(st, g2(2), Fl)
stamp("mg22")
have(3)
Fl = []
n2 = 0
for t in [f"s_lshl_b32 s3, s35, 12", "v_add_u32 v5, s3, v16"]: Fl.append(F(t, 0, 0, "fw"))
Fl.append(F(("barrier", []), n2 + 1, n2 + 1, "fw"))
def fwrite(cb, tp, tile): return f"ds_write_b128 v5, v[{facc(tp,tile,cb)}:{facc(tp,tile,cb)+3}] offset:{cb*16384 + (tp*2+tile)*1024}"
i = 0
for cb in range(2):
    for tp in range(2):
        for tile in range(2): Fl.append(F(fwrite(cb, tp, tile), n2 + 8 + 5 * i, n2 + 9 + 5 * i, "fw")); i += 1
schedule(st, g2(3), Fl)
stamp("G2")
A(f"""
s_lshl_b32 s60, s35, 14
v_add_u32 v6, s60, v16
v_lshlrev_b32 v7, 5, v3
s_lshl_b32 s60, s59, 8
s_add_u32 s60, s60, {MODV + 3*2048}
v_add_u32 v7, s60, v7
""")
for cb in range(2, 4):
    for tp in range(2):
        for tile in range(2): A(fwrite(cb, tp, tile))
for tp in range(2):
    for q in range(2): A(f"ds_read_b128 v[{208+tp*8+4*q}:{211+tp*8+4*q}], v7 offset:{tp*128+q*16}")
for r in range(8):
    A(f"v_lshlrev_b32 v{32+2*r}, 16, v{240+r}\nv_and_b32 v{33+2*r}, 0xffff0000, v{240+r}\nv_lshlrev_b32 v{48+2*r}, 16, v{248+r}\nv_and_b32 v{49+2*r}, 0xffff0000, v{248+r}")
stamp("mwr")
A("s_waitcnt lgkmcnt(0)\ns_barrier")
stamp("mbar")
for src in range(4):
    for n in range(4): A(f"ds_read_b128 v[{96+src*16+n*4}:{99+src*16+n*4}], v6 offset:{src*4096+n*1024}")
for src in range(4):
    for r in range(8): A(f"v_pk_add_f32 v[{48+2*r}:{49+2*r}], v[{48+2*r}:{49+2*r}], v[{96+src*16+2*r}:{97+src*16+2*r}]")
for r in range(8): A(f"v_pk_fma_f32 v[{32+2*r}:{33+2*r}], v[{48+2*r}:{49+2*r}], v[{208+2*r}:{209+2*r}], v[{32+2*r}:{33+2*r}]")
for r in range(8): A(f"v_cvt_pk_bf16_f32 v{64+r}, v{32+2*r}, v{33+2*r}")
srd(52, 28, 2048 * 1024)
A("buffer_store_dwordx4 v[64:67], v2, s[52:55], s92 offen\nbuffer_store_dwordx4 v[68:71], v2, s[52:55], s92 offen offset:64")
if OPT["stamps"]:
    stamp("end")
    A("s_memrealtime s[96:97]\ns_waitcnt lgkmcnt(0)\ns_cmp_lg_u32 s35, " + str(OPT.get("sw", 0)) + "\ns_cbranch_scc1 L_end\ns_mov_b64 exec, 1")
    A(f"s_lshl_b32 s60, s2, 9\ns_add_u32 s60, s60, {WS_STAMP}\nv_mov_b32 v6, 0")
    A(f"s_mov_b32 s{64+stamp_n[0]-1}, s90")
    lst = [64 + n for n in range(stamp_n[0])] + [98, 96, 15]
    A("v_mov_b32 v3, 0")
    for n, s in enumerate(lst): A(f"v_mov_b32 v2, s{s}\nbuffer_store_dwordx2 v[2:3], v6, s[48:51], s60 offen offset:{n*8}\ns_nop 1")
    if OPT["dbg"] >= 0:
        srd(52, 30, 256)
        A(f"s_cmp_lg_u32 s2, {OPT['dbg']}\ns_cbranch_scc1 L_end")
        sel = [i for i in range(1, stamp_n[0]) if stamp_names[i] not in ("norm", "gelu", "G2a")][:14]
        for n, k in enumerate(sel): A(f"s_sub_u32 s60, s{64+k}, s64\nv_mov_b32 v2, s60\nbuffer_store_dword v2, v6, s[52:55], 0 offen offset:{4+n*4}\ns_nop 1")
        A("s_sub_u32 s60, s96, s98\nv_mov_b32 v2, s60\nbuffer_store_dword v2, v6, s[52:55], 0 offen offset:60")
        print("dbg order:", [stamp_names[k] for k in sel], "realtime")
    open(os.path.splitext(sys.argv[1])[0] + ".names", "w").write(" ".join(stamp_names))
    print("stamps:", len(lst))
st.raw(f"""L_end:
    s_endpgm
L_codeend:
.section .rodata,"a"
.p2align 6
.amdhsa_kernel {NAME}_kernel
  .amdhsa_next_free_vgpr 512
  .amdhsa_next_free_sgpr 102
  .amdhsa_accum_offset 256
  .amdhsa_group_segment_fixed_size 0
  .amdhsa_kernarg_size 120
  .amdhsa_user_sgpr_count 2
  .amdhsa_user_sgpr_kernarg_segment_ptr 1
  .amdhsa_system_sgpr_workgroup_id_x 1
.end_amdhsa_kernel""")
def with_stubs(txt):
    import subprocess, tempfile
    lines = txt.split("\n")
    isins = lambda l: l.startswith("    ") and l.strip() and not l.strip().startswith((".", ";"))
    NS = 24
    tail = "".join(f"L_stub{k}:\n" for k in range(NS))
    with tempfile.TemporaryDirectory() as d:
        open(d + "/a.s", "w").write(txt.replace("L_codeend:", tail + "L_codeend:").replace("@", ""))
        subprocess.run(["clang", "-x", "assembler", "-target", "amdgcn-amd-amdhsa", "-mcpu=gfx950", "-c", d + "/a.s", "-o", d + "/a.o"], check=True)
        dis = subprocess.run(["llvm-objdump", "-d", "--mcpu=gfx950", d + "/a.o"], capture_output=True, text=True).stdout
    enc = [len(m.group(1).split()) * 4 for m in re.finditer(r"// [0-9A-F]+: ((?:[0-9A-F]{8} ?)+)", dis)]
    j = lines.index("L_join:"); n_after = sum(map(isins, lines[j:]))
    sizes = enc[len(enc) - n_after:]
    out = lines[:j + 1]; pos = 0; k = 1; i = 0; off = False
    for l in lines[j + 1:]:
        if isins(l):
            if pos >= k * 4096 and l.strip() != "s_endpgm" and not off:
                out += [f"L_stub{k}:", f"    s_cbranch_execz L_stub{k+4}"]; pos += 4; k += 1
            pos += sizes[i]; i += 1
            if l.strip() == "s_mov_b64 exec, 0": off = True
            if l.strip() == "s_mov_b64 exec, -1": off = False
        if l == "L_codeend:": out += [f"L_stub{q}:" for q in range(k, NS)] + ["    s_setpc_b64 s[100:101]"]
        out.append(re.sub(r"@(\d)", lambda m: str(k + int(m.group(1))), l))
    print("code after join:", pos, "stubs", k - 1)
    return "\n".join(out)
open(sys.argv[1], "w").write(with_stubs(st.text()) if OPT.get("warm", 1) else st.text())
print("waits", st.nwait, "nop states", st.nnop)
```

```python
import re
REG = re.compile(r'(?<![\w.])([vas])(?:\[(\d+):(\d+)\]|(\d+))(?![\w\[])')
def regs_of(txt):
    out = []
    for m in REG.finditer(txt):
        k = m.group(1)
        if m.group(2) is not None:
            out += [(k, i) for i in range(int(m.group(2)), int(m.group(3)) + 1)]
        else:
            out.append((k, int(m.group(4))))
    for nm in ("vcc", "exec", "m0"):
        if re.search(r'(?<![\w.])' + nm + r'(_lo|_hi)?(?![\w])', txt): out.append((nm, 0))
    return out
TRANS = ("v_exp_f32", "v_log_f32", "v_rcp_f32", "v_rsq_f32", "v_sqrt_f32")
class I:
    __slots__ = ("txt", "op", "rd", "wr", "kind", "tag", "need", "cost", "mc", "ma")
    def __init__(s, txt, tag=None, need=None):
        s.txt = txt.strip(); s.tag = tag; s.need = need or []
        body = s.txt.split(";")[0].strip()
        parts = body.split(None, 1); s.op = op = parts[0]
        ops = [x.strip() for x in parts[1].split(",")] if len(parts) > 1 else []
        rest = parts[1] if len(parts) > 1 else ""
        rest = re.sub(r'\b(quad_perm|op_sel|op_sel_hi|neg_lo|neg_hi):\[[^\]]*\]', '', rest)
        ops = [x.strip() for x in rest.split(",")] if rest else []
        s.rd = []; s.wr = []; s.mc = []; s.ma = []
        allr = lambda l: [r for o in l for r in regs_of(o)]
        s.cost = 1
        if op.startswith("v_mfma"):
            s.kind = "mfma"; s.wr = allr(ops[:1]); s.ma = allr(ops[1:3]); s.mc = allr(ops[3:4]); s.rd = s.ma + s.mc
        elif op.startswith("buffer_load") or op.startswith("global_load"):
            if re.search(r'\blds\b', rest) or "_lds_" in op:
                s.kind = "dma"; s.rd = allr(ops) + [("m0", 0)]
            else:
                s.kind = "vload"; s.wr = allr(ops[:1]); s.rd = allr(ops[1:])
        elif op.startswith("buffer_store") or op.startswith("global_store"):
            s.kind = "vstore"; s.rd = allr(ops)
        elif op.startswith("buffer_atomic"):
            s.kind = "vload" if "sc0" in rest else "vstore"; s.rd = allr(ops)
            if "sc0" in rest: s.wr = allr(ops[:1])
        elif op.startswith("ds_read") or op.startswith("ds_bpermute") or op.startswith("ds_swizzle"):
            s.kind = "dsr"; s.wr = allr(ops[:1]); s.rd = allr(ops[1:])
        elif op.startswith("ds_write"):
            s.kind = "dsw"; s.rd = allr(ops)
        elif op.startswith("s_load") or op in ("s_memtime", "s_memrealtime"):
            s.kind = "smem"; s.wr = allr(ops[:1]); s.rd = allr(ops[1:])
        elif op in ("s_waitcnt", "s_nop", "s_barrier", "s_sleep", "s_setprio", "s_endpgm", "s_branch") or op.startswith("s_cbranch") or op.endswith(":"):
            s.kind = "ctl"
        elif op.startswith("s_cmp") or op.startswith("s_bitcmp"):
            s.kind = "salu"; s.rd = allr(ops)
        elif op.startswith("s_"):
            s.kind = "salu"; s.wr = allr(ops[:1]); s.rd = allr(ops[1:])
            if "saveexec" in op: s.wr.append(("exec", 0)); s.rd.append(("exec", 0))
        elif op.startswith("v_"):
            s.kind = "valu"
            base = op.replace("_e32", "").replace("_e64", "")
            if base in TRANS: s.kind = "trans"; s.cost = 2
            if "permlane" in op and "swap" in op:
                s.wr = allr(ops[:2]); s.rd = allr(ops[:2])
            elif op.startswith("v_add_co") or op.startswith("v_sub_co") or op.startswith("v_addc_co"):
                s.wr = allr(ops[:2]); s.rd = allr(ops[2:])
            else:
                s.wr = allr(ops[:1]); s.rd = allr(ops[1:])
                if base.startswith("v_fmac") or base.startswith("v_dot2c") or "_dpp" in op or base.startswith("v_writelane"): s.rd += s.wr
        else:
            raise ValueError("unknown op " + txt)
    def is_valu(s): return s.kind in ("valu", "trans")
    def is_mem(s): return s.kind in ("dma", "vload", "vstore", "dsr", "dsw")

class Stream:
    def __init__(s, merge_dist=110):
        s.out = []; s.merge = merge_dist
        s.reset()
        s.nwait = 0; s.nnop = 0; s.slots = 0
        s.missing = {}; s.seen = set()
    def reset(s):
        s.vm = []
        s.lg = []
        s.smem = False; s.smem_wr = set()
        s.hist = []
        s.n = 0; s.t = 0; s.tm = -100
    def raw(s, txt):
        s.out.append(txt)
    def _emit(s, ins, states=1):
        s.out.append("    " + ins.txt); s.hist.append((ins, states)); s.n += states
        if ins.kind == "mfma":
            s.t = max(s.t, s.tm + (16 if "16x16" in ins.op else 32)); s.tm = s.t; s.t += 8
        else: s.t += 4 * states * ins.cost
        if len(s.hist) > 40: s.hist.pop(0)
    def _wait(s, vm=None, lg=None):
        t = "s_waitcnt"
        if vm is not None:
            vm = min(vm, 63); t += f" vmcnt({vm})"; del s.vm[:max(0, len(s.vm) - vm)]
        if lg is not None:
            lg = min(lg, 15); t += f" lgkmcnt({lg})"; del s.lg[:max(0, len(s.lg) - lg)]
            if lg == 0: s.smem = False; s.smem_wr = set()
        s._emit(I(t)); s.nwait += 1
    def newphase(s): s.missing = {}; s.seen = set()
    def _order(s, needs, tag, txt):
        for t in needs: s.missing.setdefault(t, txt)
        if tag is not None and tag in s.missing and tag not in s.okl: raise RuntimeError(f"{tag} emitted after its consumer: {s.missing[tag]}")
    okl = set()
    def _need_idx(s, q, regs, tags):
        last = -1
        for i, e in enumerate(q):
            if (e["wr"] & regs) or (e["tag"] is not None and e["tag"] in tags): last = i
        return last
    def add(s, ins, tag=None, need=None):
        if isinstance(ins, str): ins = I(ins, tag, need)
        if ins.op == "s_waitcnt":
            m = re.search(r'vmcnt\((\d+)\)', ins.txt); l = re.search(r'lgkmcnt\((\d+)\)', ins.txt)
            s._wait(int(m.group(1)) if m else None, int(l.group(1)) if l else None); return
        touched = set(ins.rd) | set(ins.wr); tags = set(ins.need)
        s._order(tags, ins.tag, ins.txt)
        vi = s._need_idx(s.vm, touched, tags); li = s._need_idx(s.lg, touched, tags)
        vmN = lgN = None
        if vi >= 0: vmN = len(s.vm) - 1 - vi
        if li >= 0:
            j = li
            while j + 1 < len(s.lg) and s.t - s.lg[j + 1]["t"] >= s.merge: j += 1
            lgN = len(s.lg) - 1 - j
            if s.smem: lgN = 0
        if s.smem and (touched & s.smem_wr): lgN = 0
        if vmN is not None or lgN is not None: s._wait(vmN, lgN)
        need = 0; dist = 0
        rd = set(ins.rd); wr = set(ins.wr)
        for p, st in reversed(s.hist):
            req = 0
            pw = set(p.wr)
            if p.kind == "mfma":
                n = 8 if "16x16" in p.op else 12
                if ins.kind == "mfma":
                    if pw & set(ins.ma): req = n
                    elif pw & set(ins.mc) and (set(ins.mc) != pw or p.op != ins.op): req = n - 2
                    elif pw & wr and not (pw & set(ins.mc)) : req = max(req, 0)
                elif ins.is_valu() or ins.is_mem():
                    if pw & (rd | wr): req = n
                if ins.is_valu() and set(p.mc) & wr: req = max(req, 3 if "16x16" in p.op else 7)
            elif p.is_valu():
                vw = {r for r in pw if r[0] in "va"}; sw = {r for r in pw if r[0] in ("s", "vcc")}
                if ins.kind == "mfma" and vw & rd: req = 2
                if p.op.startswith("v_dot2") and vw & (rd | wr) and not (ins.op == p.op and not (vw & set(regs_of(",".join(ins.txt.split(",")[1:]))))): req = max(req, 3)
                if ins.is_valu():
                    if p.kind == "trans" and vw & rd and ins.kind != "trans": req = max(req, 1)
                    if ("_dpp" in ins.op or "permlane" in ins.op) and vw & rd: req = max(req, 2)
                    if ("readfirstlane" in ins.op or "readlane" in ins.op) and vw & rd: req = max(req, 1)
                    if sw & rd: req = max(req, 2)
                    if "sdwa" in p.op and vw & (rd | wr): req = max(req, 1)
                if ins.is_mem() and sw & rd: req = max(req, 5)
                if ins.kind == "salu" and sw & rd: req = max(req, 1)
                if ("exec", 0) in pw: req = max(req, 5)
            elif p.kind == "salu":
                if ("m0", 0) in pw and ins.kind == "dma": req = 1
            elif p.kind == "vstore":
                data = set(p.rd[:4]) if ("x4" in p.op or "x3" in p.op) else set()
                if ins.is_valu() and data & wr: req = 2
                elif data & wr: req = 1
            need = max(need, req - dist)
            dist += st
            if dist >= 14: break
        while need > 0:
            k = min(need, 16); s._emit(I(f"s_nop {k-1}"), k); s.nnop += k; need -= k
        s._emit(ins)
        if ins.kind in ("dma", "vload", "vstore"):
            s.vm.append(dict(tag=ins.tag, wr=set(ins.wr), idx=s.n))
            if len(s.vm) > 63: raise RuntimeError("vmcnt overflow at " + ins.txt)
        elif ins.kind in ("dsr", "dsw"):
            s.lg.append(dict(tag=ins.tag, wr=set(ins.wr), idx=s.n, t=s.t))
        elif ins.kind == "smem":
            s.smem = True; s.smem_wr |= set(ins.wr)
    def A(s, text):
        for l in text.split("\n"):
            l = l.strip()
            if not l or l.startswith(";"): continue
            if l.endswith(":"): s.raw(l); continue
            s.add(l)
    def need(s, *tags):
        tags = set(tags); s._order(tags, None, "need")
        vi = s._need_idx(s.vm, set(), tags); li = s._need_idx(s.lg, set(), tags)
        vmN = len(s.vm) - 1 - vi if vi >= 0 else None
        lgN = len(s.lg) - 1 - li if li >= 0 else None
        if lgN is not None and s.smem: lgN = 0
        if vmN is not None or lgN is not None: s._wait(vmN, lgN)
    def sync(s, vm=True):
        if vm: s._wait(0, 0)
        else: s._wait(None, 0)
        s._emit(I("s_nop 7"), 8)
        s._emit(I("s_nop 3"), 4)
    def text(s): return "\n".join(s.out) + "\n"

class F:
    __slots__ = ("ins", "e", "l", "chain", "order")
    cnt = 0
    def __init__(s, txt, e, l, chain=None, tag=None, need=None):
        if isinstance(txt, str) and "\n" in txt: s.ins = ("group", txt.split("\n"))
        elif isinstance(txt, tuple): s.ins = txt
        else: s.ins = I(txt, tag, need)
        s.e = e; s.l = l; s.chain = chain; F.cnt += 1; s.order = F.cnt
    def cost(s): return 1 if isinstance(s.ins, tuple) else s.ins.cost
    def mem(s): return not isinstance(s.ins, tuple) and s.ins.is_mem()

def schedule(st, mfmas, fillers, cap=2, reserve=None, verbose=None, slack=6, mem2=False, minback=0, capx=None, pairfirst=None):
    pend = sorted(fillers, key=lambda f: f.order)
    for f in pend: f.e = min(f.e, len(mfmas) - 1); f.l = min(f.l, len(mfmas) - 1)
    over = 0
    def emit(f):
        if isinstance(f.ins, tuple):
            if f.ins[0] == "need": st.need(*f.ins[1])
            elif f.ins[0] == "barrier": st.need(*f.ins[1]); st.add("s_barrier")
            elif f.ins[0] == "call": f.ins[1]()
            elif f.ins[0] == "group":
                for t in f.ins[1]: st.add(t)
        else: st.add(f.ins)
    for g in range(-1, len(mfmas)):
        if g >= 0:
            w0 = st.nwait + st.nnop
            st.add(mfmas[g])
        budget = cap if g >= 0 else 0
        if capx and g in capx: budget = capx[g]
        if reserve and g in reserve: budget -= reserve[g]
        chosen = []
        blocked = set()
        while True:
            cand = []; seen = set()
            for f in pend:
                if f in chosen: continue
                if f.chain is not None:
                    if f.chain in seen: continue
                    seen.add(f.chain)
                if f.e <= g: cand.append(f)
            due = {}
            for f in pend:
                if f in chosen: continue
                if f.chain is not None: due[f.chain] = min(due.get(f.chain, 1 << 30), f.l)
            def dl(f): return due[f.chain] if f.chain is not None else f.l
            cand.sort(key=lambda f: (dl(f), f.order))
            pick = None
            have_mem = any(c.mem() for c in chosen)
            for f in cand:
                if dl(f) <= g: pick = f; break
            if pick is None and budget > 0:
                fit = [f for f in cand if f.cost() <= budget and not (f.mem() and have_mem)]
                mem = [f for f in fit if f.mem()]
                m2now = [f for f in cand if f.mem() and pairfirst and pairfirst(g) and f.chain in mem2] if (have_mem and len(chosen) == 1) else []
                if mem and not chosen: pick = mem[0]
                elif m2now: pick = m2now[0]
                elif fit:
                    nm = [f for f in fit if not f.mem()]
                    big = [f for f in nm if f.cost() == 2]
                    if big and not (nm[0].cost() == 1 and dl(nm[0]) <= g + slack): pick = big[0]
                    elif nm: pick = nm[0]
                if pick is None and mem2:
                    m2 = [f for f in cand if f.mem() and f.chain in mem2]
                    backlog = sum(1 for f in pend if f.e <= g and f.cost() == 2 and f not in chosen)
                    if m2 and backlog >= (minback(g) if callable(minback) else minback): pick = m2[0]
            if pick is None: break
            chosen.append(pick); budget -= pick.cost()
        if budget < 0: over += -budget
        res = []
        rem = list(chosen)
        while rem:
            k = None
            for i, f in enumerate(rem):
                if f.mem() and not any(o.chain == f.chain and f.chain is not None for o in rem[:i]): k = i; break
            if k is None: k = 0
            res.append(rem.pop(k))
        for f in res:
            emit(f); pend.remove(f)
    assert not pend, [(f.ins.txt if not isinstance(f.ins, tuple) else f.ins, f.e, f.l) for f in pend[:5]]
    if verbose: print(f"[sched {verbose}] mfma {len(mfmas)} fillers {len(fillers)} over-budget slots {over}")
```

```python
import sys, os, re, struct
sys.path.insert(0, os.path.join(os.path.dirname(os.path.abspath(__file__)), "tools"))
from asmgen import *
NAME = "adaLN_cond__sliding_block_cached__mixer_channel_mlp__prompt"
OPT = dict(stamps=0, gx=2, nt_wq=0, nt_wo=0, nt_kv=0, nt_mod=1, nt_x=0, pf_w1=1, pf_w2=2, pnt=1, early=1, dbg=-1)
for a in sys.argv[2:]:
    k, v = a.split("="); OPT[k] = int(v)
def nt(k): return " nt" if OPT["nt_" + k] else ""

KA, KB, VA, VB, XR = 0, 16512, 32896, 49408, 65920
HIMG = KB
RING0, RINGSZ, UNIT = 82304, 16512, 4128
MISC = 148352
MODV = MISC
SILU = MISC + 8192
RED = MISC + 9216
LGO = MISC + 12800
LDS_BYTES = 163840
WS_MOD, WS_F2, WS_F3, WS_F1 = 0x1000, 0x20000, 0x40000, 0x100000
WS_Y, WS_X1, WS_H1, WS_PART = 0x200000, 0x400000, 0x600000, 0x1000000
WS_STAMP = 0xF000000
OOB = 0x10000000
SCALE = 1.4426950408889634 / (128 ** 0.5)
def f2u(x): return struct.unpack("<I", struct.pack("<f", x))[0]
SPIN = 1 << 18

st = Stream()
A = st.A
stamp_n = [0]; stamp_names = []
def stamp(name=""):
    if not OPT["stamps"]: return
    if OPT["stamps"] == 7:
        if not (name in ("start", "norm", "O", "f1st", "end") or name.startswith("u")): return
    elif name.startswith("u"): return
    if OPT["stamps"] == 5:
        if not (name in ("start", "Yin", "G1", "gelu", "G2a", "G2", "end") or name.startswith("m")) or name == "mod": return
    elif OPT["stamps"] == 6:
        if not (name in ("start", "O", "f1st", "_f2q", "f1ok", "ysent", "f2ok", "Yin", "end") or name.startswith("e")): return
    elif name[0] in "me" and name not in ("mod", "end"): return
    if OPT["stamps"] not in (4, 6) and name.startswith("_"): return
    if OPT["stamps"] == 4 and not (name in ("start", "x", "mod", "h", "Q", "end") or name.startswith("_")): return
    if OPT["stamps"] == 3 and not (name in ("start", "h", "Q", "end") or name.startswith("q")): return
    if OPT["stamps"] == 2 and name.startswith("q"): return
    if OPT["stamps"] == 2 and name in ("x", "mod", "f1st", "f1ok", "ysent", "f2ok", "Yin", "gelu", "G2a", "G2"): return
    n = stamp_n[0]; stamp_n[0] += 1; stamp_names.append(name)
    assert n < 26
    if n: st.add(f"s_mov_b32 s{64+n-1}, s90")
    st.add("s_memrealtime s[90:91]" if OPT.get("rt") else "s_memtime s[90:91]")
def stampF(name, g):
    return [F(("call", lambda: stamp(name)), g, g)] if OPT["stamps"] > 1 else []
def dummyI(t):
    i = I(t); i.wr = []; return i
def dummy(t): st.add(dummyI(t))
def dummyF(t, e, l, chain):
    f = F(t, e, l, chain); f.ins.wr = []; return f
def srd(base, ptr, size):
    A(f"s_mov_b32 s{base}, s{ptr}\ns_mov_b32 s{base+1}, s{ptr+1}\ns_mov_b32 s{base+2}, {size}\ns_mov_b32 s{base+3}, 0x20000")
def mf(d, a, b, c=None, dt="v", at="a", bt="a"):
    cs = f"{dt}[{d}:{d+3}]" if c is None else (c if isinstance(c, str) else f"{dt}[{c}:{c+3}]")
    return f"v_mfma_f32_16x16x32_bf16 {dt}[{d}:{d+3}], {at}[{a}:{a+3}], {bt}[{b}:{b+3}], {cs}"
STG = 192
def stg(u, tile, s): return STG + (u & 1) * 16 + tile * 8 + s * 4
def p16_reads(dst, off, addr="v10"):
    r = []
    for tile in range(2):
        for s in range(2):
            f, d = dst(tile, s)
            for hf in range(2): r.append(f"ds_read_b64_tr_b16 {f}[{d+2*hf}:{d+2*hf+1}], {addr} offset:{off + s*2064 + hf*256 + tile*8}")
    return r
def p8_reads(dst, off, addr="v9"):
    r = []
    for tp in range(2):
        for tile in range(2):
            f, d = dst(tp, tile)
            for hf in range(2): r.append(f"ds_read_b64_tr_b16 {f}[{d+2*hf}:{d+2*hf+1}], {addr} offset:{off + tp*512 + hf*256 + tile*8}")
    return r
def voffs16(stride):
    A(f"""
    v_lshrrev_b32 v2, 5, v1
    v_lshlrev_b32 v2, 4, v2
    v_bfe_u32 v3, v1, 2, 3
    v_add_u32 v2, v2, v3
    v_mul_u32_u24 v2, {stride}, v2
    v_and_b32 v3, 3, v1
    v_lshl_add_u32 v11, v3, 4, v2
    v_add_u32 v12, {8*stride-1032}, v11
    v_add_u32 v13, {32*stride-2064}, v11
    v_add_u32 v14, {40*stride-3096}, v11
    """)
def voffs8(stride):
    A(f"""
    v_bfe_u32 v2, v1, 2, 3
    v_mul_u32_u24 v2, {stride}, v2
    v_lshrrev_b32 v3, 5, v1
    v_lshl_add_u32 v2, v3, 6, v2
    v_and_b32 v3, 3, v1
    v_lshl_add_u32 v11, v3, 4, v2
    v_add_u32 v12, {8*stride-1032}, v11
    v_add_u32 v13, {16*stride-2064}, v11
    v_add_u32 v14, {24*stride-3096}, v11
    """)
def dma4(soff, fl=""): return [f"buffer_load_dwordx4 v{11+i}, s[36:39], {soff} offen offset:{i*1032}{fl} lds" for i in range(4)]
def chain_dma(Fl, g0, pre, dmas, tag, need, chain, late=3):
    if OPT.get("nodma") and tag[0] == "W": dmas = []
    for t in pre: Fl.append(F(t, g0 - 5, g0 + late, chain))
    for i, t in enumerate(dmas): Fl.append(F(t, g0 + i // 2, g0 + late + i, chain, tag=tag, need=need if i == 0 else None))
def spread_dma(Fl, g0, pre, dmas, post, tag, need, step):
    if OPT.get("nodma"): dmas = []
    for t in pre: Fl.append(F(t, g0 - 3, g0, "dma"))
    for i, t in enumerate(dmas): Fl.append(F(t, g0 + i * step, g0 + i * step + 1, "dma", tag=tag, need=need if i == 0 else None))
    for t in post: Fl.append(F(t, g0, g0 + 3 * step + 2, "dma"))
class Capture:
    def __enter__(s):
        global A
        s.lines = []; s.old = A
        def cap(text): s.lines.extend(l.strip() for l in text.split("\n") if l.strip() and not l.strip().startswith(";"))
        A = cap; return s
    def __exit__(s, *a):
        global A
        A = s.old
    def fillers(s, e, l, chain, ren=True):
        out = []
        for t in s.lines:
            if ren: t = re.sub(r"\bs60\b", "s100", re.sub(r"\bs61\b", "s101", t))
            if t.split()[0] in ("s_cselect_b32", "s_addc_u32", "v_cndmask_b32"): out[-1] += "\n" + t
            else: out.append(t)
        n = len(out)
        return [F(t, e, e + (l - e) * (i + 1) // n, chain) for i, t in enumerate(out)]
def spin(label, load, cond):
    A(f"s_mov_b32 s3, {SPIN}")
    st.raw(f"{label}:")
    for t in load: st.add(t)
    A("s_sub_u32 s3, s3, 1\ns_waitcnt vmcnt(0)")
    A(cond)
    A(f"s_cmp_eq_u32 s3, 0\ns_cbranch_scc1 {label}_x\ns_cbranch_vccnz {label}")
    st.raw(f"{label}_x:")

st.raw(f"""; adaLN + GQA window attention + channel MLP, one persistent launch, 256 workgroups (one per CU)
; @launch grid=(256,1,1) block=(256,1,1) lds={LDS_BYTES}
.amdgcn_target "amdgcn-amd-amdhsa--gfx950"
.text
.globl {NAME}_kernel
.p2align 8
.type {NAME}_kernel,@function
{NAME}_kernel:
L_start:""")
A("""
s_cmp_ge_u32 s2, 256
s_cbranch_scc1 L_end
s_load_dwordx16 s[4:19], s[0:1], 0
s_load_dwordx8 s[20:27], s[0:1], 64
s_load_dwordx4 s[28:31], s[0:1], 96
s_load_dwordx2 s[32:33], s[0:1], 112
""")
if OPT["stamps"]: A("s_memrealtime s[98:99]")
stamp("start")
GX = OPT["gx"]; lg = {1: 0, 2: 1, 4: 2}[GX]
A(f"""
v_and_b32 v1, 63, v0
v_lshrrev_b32 v2, 6, v0
s_and_b32 s96, s2, 7
s_lshr_b32 s97, s2, 3
v_readfirstlane_b32 s35, v2
s_and_b32 s56, s96, {8//GX - 1}
s_lshl_b32 s56, s56, {lg}
s_and_b32 s60, s97, {GX - 1}
s_add_u32 s56, s56, s60
s_lshr_b32 s57, s96, {3 - lg}
s_lshl_b32 s57, s57, {5 - lg}
s_lshr_b32 s61, s97, {lg}
s_add_u32 s57, s57, s61
s_lshl_b32 s60, s60, {3 - lg}
s_add_u32 s95, s57, s60
s_and_b32 s95, s95, {OPT.get("rotmask", 7)}
s_lshl_b32 s58, s96, 2
s_lshr_b32 s59, s97, 3
s_add_u32 s58, s58, s59
s_and_b32 s59, s97, 7
s_mul_i32 s63, s35, {RINGSZ}
s_add_u32 s63, s63, {RING0}
s_movk_i32 s101, 1023
v_lshlrev_b32 v16, 4, v1
v_lshrrev_b32 v2, 4, v1
v_and_b32 v5, 15, v1
v_mul_u32_u24 v3, 1032, v2
v_lshl_add_u32 v9, v5, 4, v3
v_add_u32 v9, s63, v9
v_and_b32 v3, 1, v2
v_mul_u32_u24 v3, 1032, v3
v_lshl_add_u32 v3, v5, 4, v3
v_lshrrev_b32 v4, 1, v2
v_lshl_add_u32 v10, v4, 9, v3
v_add_u32 v10, s63, v10
v_mul_u32_u24 v4, 2064, v4
v_add_u32 v21, v3, v4
v_add_u32 v21, {VA}, v21
s_lshl_b32 s60, s95, 7
v_lshl_add_u32 v3, v5, 4, s60
v_lshlrev_b32 v2, 10, v2
v_and_or_b32 v124, v3, s101, v2
v_add_u32 v3, 256, v3
v_and_or_b32 v125, v3, s101, v2
v_add_u32 v3, 256, v3
v_and_or_b32 v126, v3, s101, v2
v_add_u32 v3, 256, v3
v_and_or_b32 v127, v3, s101, v2
s_getpc_b64 s[92:93]
L_pc:
s_sub_u32 s92, s92, L_pc-L_start
s_subb_u32 s93, s93, 0
s_lshl_b32 s3, s97, 12
v_lshl_add_u32 v4, v0, 4, s3
v_min_u32 v4, L_codeend-L_start-16, v4
global_load_dwordx4 a[248:251], v4, s[92:93]
s_waitcnt lgkmcnt(0)
s_load_dword s34, s[32:33], 0
""")
st.vm = []
stamp("_karg")
srd(48, 32, 0x10000000)
KS = OPT.get("ks", 4)
WS_MOD2 = WS_MOD + 4096 * KS
def silu_to_lds(creg, t=2):
    A(re.sub(r"\bv([2-5])\b", lambda m: f"v{int(m.group(1)) - 2 + t}", f"""
    v_lshlrev_b32 v2, 16, v{creg}
    v_and_b32 v3, 0xffff0000, v{creg}
    v_mul_f32 v4, {f2u(-1.4426950408889634)}, v2
    v_mul_f32 v5, {f2u(-1.4426950408889634)}, v3
    v_exp_f32 v4, v4
    v_exp_f32 v5, v5
    v_add_f32 v4, 1.0, v4
    v_add_f32 v5, 1.0, v5
    v_rcp_f32 v4, v4
    v_rcp_f32 v5, v5
    v_mul_f32 v2, v2, v4
    v_mul_f32 v3, v3, v5
    v_cvt_pk_bf16_f32 v2, v2, v3
    v_lshlrev_b32 v3, 2, v0
    v_add_u32 v3, {SILU}, v3
    ds_write_b32 v3, v2
    """))
def publish(ntile, src, lab, dst, tag="s34", tmp=2, stmp="s60"):
    W = 64 * ntile
    A(f"""
    v_lshrrev_b32 v{tmp}, 4, v1
    v_lshlrev_b32 v{tmp}, 5, v{tmp}
    s_mul_i32 {stmp}, s35, {W}
    s_add_u32 {stmp}, {stmp}, {RED}
    v_add_u32 v{tmp}, {stmp}, v{tmp}
    s_mov_b32 exec_lo, 0x00010001
    s_mov_b32 exec_hi, 0x00010001
    """)
    for t in range(ntile): A(f"ds_write_b128 v{tmp}, v[{src+4*t}:{src+4*t+3}] offset:{(t>>1)*128 + (t&1)*16}")
    A(f"""
    s_mov_b64 exec, -1
    s_waitcnt lgkmcnt(0)
    s_barrier
    s_cmp_lg_u32 s35, 0
    s_cbranch_scc1 {lab}
    v_lshlrev_b32 v{tmp}, 3, v1
    v_add_u32 v{tmp+1}, {RED}, v{tmp}
    s_mov_b32 exec_lo, {(1 << (8*ntile)) - 1}
    s_mov_b32 exec_hi, 0
    """)
    for i in range(4): A(f"ds_read_b64 v[{src+2*i}:{src+2*i+1}], v{tmp+1} offset:{i*W}")
    A(f"""
    v_pk_add_f32 v[{src}:{src+1}], v[{src}:{src+1}], v[{src+2}:{src+3}]
    v_pk_add_f32 v[{src+4}:{src+5}], v[{src+4}:{src+5}], v[{src+6}:{src+7}]
    v_pk_add_f32 v[{src}:{src+1}], v[{src}:{src+1}], v[{src+4}:{src+5}]
    v_cvt_pk_bf16_f32 v{src}, v{src}, v{src+1}
    v_mov_b32 v{src+1}, {tag}
    buffer_store_dwordx2 v[{src}:{src+1}], v{tmp}, s[48:51], {dst} offen sc1
    s_mov_b64 exec, -1
    """)
def xr(i, jj): return 32 + (jj * 4 + i) * 4
def x_loads(n0, n1):
    for n in range(n0, n1):
        jj, i = n >> 2, n & 3
        st.add(f"buffer_load_dwordx4 v[{xr(i,jj)}:{xr(i,jj)+3}], v{124+jj}, s[52:55], s{[62, 0, 1, 100][i]} offen{nt('x')}")
def x_setup():
    srd(52, 4, 2048 * 1024)
    A("s_lshl_b32 s62, s57, 16\ns_lshl_b32 s61, s35, 14\ns_add_u32 s62, s62, s61\ns_add_u32 s0, s62, 4096\ns_add_u32 s1, s62, 8192\ns_add_u32 s100, s62, 12288")
NSL = 4 // KS
PX = OPT.get("px", 2)
A(f"s_cmp_lt_u32 s96, {PX}\ns_cselect_b32 s14, s97, 99\ns_cmp_lt_u32 s14, {16*KS//PX}\ns_cbranch_scc1 L_prod")
x_setup(); x_loads(0, 8)
A("s_branch L_join")
join_vm = list(st.vm)
A("L_prod:"); st.vm = []; st.hist = []; st.smem = True; st.smem_wr = {("s", 34)}
srd(52, 24, 1024); srd(36, 26, 512 * 6144)
A("v_lshlrev_b32 v2, 2, v0\nbuffer_load_dword v31, v2, s[52:55], 0 offen")
voffs8(6144)
A(f"""
s_mul_i32 s14, s97, {PX}
s_add_u32 s14, s14, s96
s_lshr_b32 s15, s14, 4
s_and_b32 s14, s14, 15
s_lshl_b32 s3, s15, 2
s_add_u32 s3, s3, s35
s_mul_i32 s60, s3, {32*NSL*6144}
s_lshl_b32 s61, s14, 7
s_add_u32 s60, s60, s61
""")
for k in range(NSL):
    A(f"s_add_u32 m0, s63, {(2+k)*UNIT}")
    for t in dma4("s60", nt("mod")): st.add(t, tag="wm")
    if k + 1 < NSL: A(f"s_add_u32 s60, s60, {32*6144}")
x_setup(); x_loads(0, 4)
silu_to_lds(31)
A(f"""
v_lshrrev_b32 v2, 4, v1
v_lshlrev_b32 v2, 4, v2
s_mul_i32 s60, s3, {64*NSL}
s_add_u32 s60, s60, {SILU}
v_add_u32 v2, s60, v2
s_waitcnt lgkmcnt(0)
s_barrier
""")
for k in range(NSL): A(f"ds_read_b128 a[{4*k}:{4*k+3}], v2 offset:{k*64}")
st.need("wm")
for k in range(NSL):
    for t in p8_reads(lambda tp, tile: ("a", 16 + k * 16 + tp * 8 + tile * 4), (2 + k) * UNIT): A(t)
x_loads(4, 6)
for k in range(NSL):
    for t in range(4): A(mf(96 + 4 * t, 16 + k * 16 + 4 * t, 4 * k, "0" if k == 0 else None))
x_loads(6, 8)
A(f"s_lshl_b32 s3, s15, 12\ns_lshl_b32 s14, s14, 8\ns_add_u32 s3, s3, s14\ns_add_u32 s3, s3, {WS_MOD}\ns_mul_i32 s15, s34, 0x9E3779B1\ns_add_u32 s15, s15, 0x7F4A7C15")
publish(4, 96, "L_prod_x", "s3", "s15")
A("L_prod_x:"); st.lg = []; st.hist = []
A("s_branch L_join"); st.raw(".p2align 12")
A("L_join:"); st.vm = join_vm; st.lg = []; st.hist = []; st.smem = True; st.smem_wr = {("s", 34)}
st.newphase(); stamp("_prod")

QST = 8192
A(f"""
s_lshl_b32 s60, s56, 10
s_lshl_b32 s61, s35, 8
s_add_u32 s60, s60, s61
s_add_u32 s36, s10, s60
s_addc_u32 s37, s11, 0
s_sub_u32 s38, {512*8192}, s60
s_mov_b32 s39, 0x20000
s_bfe_u32 s15, s57, 0x10003
s_lshl_b32 s14, s15, 7
s_lshl_b32 s92, s95, 19
s_add_u32 s94, s92, s14
s_xor_b32 s14, s14, 128
s_add_u32 s92, s92, s14
s_lshl_b32 s15, s15, 1
s_mul_i32 s93, s35, {UNIT}
s_sub_u32 s60, s93, s63
v_add_u32 v31, s60, v9
""")
voffs8(QST)
def wq_pre(n):
    r = n % 5; b = "s92" if n & 2 else "s94"
    p = [f"s_add_u32 m0, s63, {r*UNIT}" if r < 4 else "s_mov_b32 m0, s93", f"s_add_u32 s60, {b}, {(n&1)*32*QST}"]
    return p, ([f"s_add_u32 {b}, {b}, {64*QST}", f"s_and_b32 {b}, {b}, {512*QST-1}"] if n & 1 else [])
def wq_ops(n):
    p, q = wq_pre(n); return [(t, None) for t in p] + [(t, ("W", n)) for t in dma4("s60", nt("wq"))] + [(t, None) for t in q]
A(f"""
v_lshrrev_b32 v2, 4, v1
v_and_b32 v5, 15, v1
v_bfe_u32 v6, v1, 2, 2
v_lshlrev_b32 v6, 1, v6
s_movk_i32 s60, 0x78
v_lshrrev_b32 v6, v6, s60
v_and_b32 v6, 3, v6
v_xor_b32 v7, v6, v2
v_lshlrev_b32 v7, 4, v7
v_lshl_add_u32 v15, v5, 6, v7
v_add_u32 v15, {HIMG}, v15
v_bfe_u32 v4, v1, 2, 2
v_lshl_add_u32 v7, v4, 12, v7
v_and_b32 v4, 3, v1
v_lshl_add_u32 v7, v4, 8, v7
""")
A("v_xor_b32 v4, s15, v4")
for s in range(4): A(f"v_xor_b32 v5, {s}, v4\nv_lshl_add_u32 v{17+s}, v5, 6, v7")
A(f"""
s_lshl_b32 s60, s35, 1
s_lshr_b32 s60, 0x78, s60
s_and_b32 s60, s60, 3
v_lshlrev_b32 v3, 2, v2
v_xor_b32 v3, s60, v3
v_and_b32 v4, 15, v1
v_xor_b32 v3, v3, v4
v_lshlrev_b32 v3, 4, v3
v_lshl_add_u32 v3, v2, 8, v3
s_lshl_b32 s60, s35, 10
v_add_u32 v22, s60, v3
v_add_u32 v23, 3072, v22
v_add_u32 v24, 6144, v22
v_add_u32 v25, 9216, v22
v_bfe_u32 v3, v1, 2, 2
v_lshlrev_b32 v3, 8, v3
v_lshl_add_u32 v3, v2, 6, v3
v_and_b32 v4, 3, v1
v_lshl_add_u32 v3, v4, 4, v3
s_lshl_b32 s60, s35, 12
s_add_u32 s60, s60, 64
v_add_u32 v26, s60, v3
v_subrev_u32 v27, 8, v26
v_subrev_u32 v28, 16, v26
v_subrev_u32 v29, 24, v26
v_bfe_u32 v3, v1, 2, 1
v_xor_b32 v3, v3, v2
v_lshlrev_b32 v3, 6, v3
v_bfe_u32 v4, v1, 2, 2
v_lshl_add_u32 v3, v4, 12, v3
s_lshl_b32 s60, s35, 10
s_add_u32 s60, s60, {HIMG}
v_add_u32 v3, s60, v3
v_and_b32 v4, 3, v1
v_lshl_add_u32 v120, v4, 4, v3
v_xor_b32 v121, 32, v120
v_xor_b32 v122, 48, v120
v_xor_b32 v123, 16, v120
v_subrev_u32 v8, {HIMG}, v15
v_xor_b32 v8, 64, v8
v_add_u32 v8, {HIMG}, v8
""")
A(f"""
s_lshl_b32 s60, s56, 19
s_add_u32 s60, s60, {1536*256}
s_add_u32 s40, s6, s60
s_addc_u32 s41, s7, 0
s_mov_b32 s42, {512*256}
s_mov_b32 s43, 0x20000
s_sub_u32 s60, s60, 64
s_add_u32 s44, s8, s60
s_addc_u32 s45, s9, 0
s_mov_b32 s46, {512*256+64}
s_mov_b32 s47, 0x20000
s_lshl_b32 s6, s35, 12
s_mul_i32 s7, s35, 4128
s_add_u32 s7, s7, {VA}
s_lshl_b32 s8, s95, 14
s_mov_b32 s9, s8
""")
def k_ops(c): return ([f"s_add_u32 m0, s6, {KA if c%2==0 else KB}"], [f"buffer_load_dwordx4 v{22+i}, s[40:43], s8 offen offset:{i*1024}{nt('kv')} lds" for i in range(4)], ["s_add_u32 s8, s8, 16384", "s_and_b32 s8, s8, 0x1ffff"])
def v_ops(c): return ([f"s_add_u32 m0, s7, {(c&1)*16512}"], [f"buffer_load_dwordx4 v{26+i}, s[44:47], s9 offen offset:{i*1032}{nt('kv')} lds" for i in range(4)], ["s_add_u32 s9, s9, 16384", "s_and_b32 s9, s9, 0x1ffff"])
def kv_chain(Fl, g0, ops, tag, step=0):
    if step: spread_dma(Fl, g0, ops[0], ops[1], ops[2], tag, None, step); return
    chain_dma(Fl, g0, ops[0], ops[1], tag, None, "dma")
    for t in ops[2]: Fl.append(F(t, g0 + 4, g0 + 10, "dma"))
x_loads(8, 16)
def warm(lab):
    if not OPT.get("warm", 1): return
    t = "    s_mov_b64 exec, 0\n"
    for w in range(4):
        if w < 3: t += f"    s_cmp_eq_u32 s35, {w}\n    s_cbranch_scc0 {lab}_{w}\n"
        t += f"    s_call_b64 s[100:101], L_stub@{w}\n"
        if w < 3: t += f"    s_branch {lab}_ret\n{lab}_{w}:\n"
    st.raw(t + f"{lab}_ret:\n    s_mov_b64 exec, -1")
A("s_waitcnt vmcnt(12)")
warm("L_w1")

for i in range(4): A(f"v_mov_b32 v{112+2*i}, 0\nv_mov_b32 v{104+2*i}, 0")
A("v_mov_b32 v7, 0x3f803f80")
stamp("_issued")
def trickle(n=1):
    while pend and n:
        t, tag = pend.pop(0); st.add(t, tag=tag)
        if t.startswith("buffer") or t.startswith("global"): n -= 1
A(f"v_lshlrev_b32 v30, 4, v0\nv_add_u32 v30, {WS_MOD}, v30")
MC = [96, 100, 2 * 128 - 8, 2 * 128 - 4]
mchk = [f"buffer_load_dwordx4 a[{4*k}:{4*k+3}], v30, s[48:51], {['0', 's10', 's11', 's14'][k]} offen sc1" for k in range(KS)]
for k in range(1, KS): A(f"s_mov_b32 {['0', 's10', 's11', 's14'][k]}, {4096*k}")
for n in range(16):
    jj, i = n >> 2, n & 3
    for e in range(4): A(f"v_dot2c_f32_bf16 v{112+2*i}, v{xr(i,jj)+e}, v7\nv_dot2c_f32_bf16 v{104+2*i}, v{xr(i,jj)+e}, v{xr(i,jj)+e}")
    if n == 0: stamp("_x0")
stamp("x")
RC = OPT.get("rc", -1); W0L = OPT.get("w0l", 0)
if RC < 0:
    for t in mchk: A(t)
pend = wq_ops(0) + wq_ops(1)
if not W0L: trickle(4)
for d in ("quad_perm:[1,0,3,2]", "quad_perm:[2,3,0,1]", "row_ror:4", "row_ror:8"):
    for i in range(4): A(f"v_add_f32_dpp v{112+2*i}, v{112+2*i}, v{112+2*i} {d} row_mask:0xf bank_mask:0xf\nv_add_f32_dpp v{104+2*i}, v{104+2*i}, v{104+2*i} {d} row_mask:0xf bank_mask:0xf")
for op in ["v_mul_f32 v{m}, {c512}, v{r}", "v_mul_f32 v{q}, {c512}, v{q}", "v_fma_f32 v{q}, -v{m}, v{m}, v{q}", "v_max_f32 v{q}, 0, v{q}", "v_add_f32 v{q}, {eps}, v{q}",
           "v_rsq_f32 v{r}, v{q}", "v_mul_f32_e64 v{q}, -v{m}, v{r}"]:
    for i in range(4): A(op.format(m=113 + 2 * i, r=112 + 2 * i, q=104 + 2 * i, c512=f2u(1 / 512), eps=f2u(1e-5)))
def normalise(r0, r1):
    for r in range(r0, r1):
        i = (r >> 2) & 3
        A(f"v_lshlrev_b32 v{128+2*r}, 16, v{32+r}\nv_and_b32 v{129+2*r}, 0xffff0000, v{32+r}")
        A(f"v_pk_fma_f32 v[{128+2*r}:{129+2*r}], v[{128+2*r}:{129+2*r}], v[{112+2*i}:{113+2*i}], v[{104+2*i}:{105+2*i}] op_sel_hi:[1,0,0]")
        if r == RC:
            for t in mchk: A(t)
            if W0L: trickle(4)
        if r >= OPT.get("rw1", 36) and r % 6 == 0: trickle()
RM = OPT.get("rm", 36)
def MB(r): return 32 + r
normalise(0, RM)
stamp("_p6")
A("s_mul_i32 s34, s34, 0x9E3779B1\ns_add_u32 s34, s34, 0x7F4A7C15")
def mod_fetch():
    return "\n".join(f"v_accvgpr_read_b32 v{MB(r)}, a{r}" for r in range(4 * KS)) + f"\nv_cmp_ne_u32 vcc, s34, v{MB(1)}\n" + "".join(f"v_cmp_ne_u32 s[100:101], s34, v{MB(3+2*i)}\ns_or_b64 vcc, vcc, s[100:101]\n" for i in range(2 * KS - 1))
A(mod_fetch()); A("s_cbranch_vccz L_pollmod_x")
keep = list(st.vm)
spin("L_pollmod", [f"s_sleep {OPT.get('slp', 4)}"] + mchk, mod_fetch())
st.vm = keep
stamp("mod")
A(f"""
s_cmp_ge_u32 s35, 2
s_cselect_b32 s60, 1.0, 0
s_cselect_b32 s3, 2048, 0
s_add_u32 s3, s3, {MODV}
s_mov_b32 s61, {f2u(SCALE)}
""")
for k in range(KS):
    A(f"""v_lshlrev_b32 v2, 16, v{MB(4*k)}
    v_and_b32 v3, 0xffff0000, v{MB(4*k)}
    v_lshlrev_b32 v4, 16, v{MB(4*k+2)}
    v_and_b32 v5, 0xffff0000, v{MB(4*k+2)}""")
    for e in range(4): A(f"v_add_f32 v{100+e}, {'s60' if k == 0 else 'v' + str(100+e)}, v{2+e}")
for e in range(4): A(f"v_mul_f32 v{100+e}, s61, v{100+e}")
A(f"""
s_lshl_b32 s60, s95, 8
v_lshlrev_b32 v2, 4, v0
v_subrev_u32 v2, s60, v2
v_and_b32 v2, 2047, v2
v_add_u32 v2, s3, v2
ds_write_b128 v2, v[100:103]
""")
normalise(RM, 64)
trickle(99)
def kv_prefetch():
    A("s_add_u32 s61, s8, s6")
    for i in range(4): dummy(f"buffer_load_dwordx4 a[244:247], v16, s[40:43], s61 offen offset:{i*1024}")
    if OPT.get("vpf", 0):
        A("s_add_u32 s61, s61, 64")
        for i in range(4): dummy(f"buffer_load_dwordx4 a[244:247], v16, s[44:47], s61 offen offset:{i*1024}")
if OPT.get("kpos", 0) == 0: kv_prefetch()
A(f"""
v_and_b32 v30, 15, v1
v_lshlrev_b32 v30, 5, v30
v_add_u32 v30, {MODV}, v30
s_waitcnt lgkmcnt(0)
s_barrier
""")
stamp("_bar1")
QS = 64
def qstg(U, tp, tile, s): return QS + (U & 1) * 32 + s * 16 + tp * 8 + tile * 4
def q_reads(n):
    r = n % 5
    return p8_reads(lambda tp, tile: ("a", qstg(n >> 1, tp, tile, n & 1)), r * UNIT if r < 4 else 0, "v9" if r < 4 else "v31")
def modreads(jj, b):
    for i in range(4): A(f"ds_read_b128 v[{b+4*i}:{b+4*i+3}], v30 offset:{(i>>1)*2048 + jj*512 + (i&1)*16}")
for jj in range(4): modreads(jj, 32 + 16 * jj)
pend = wq_ops(2) + wq_ops(3) + wq_ops(4)
for n in range(16):
    jj, i = n >> 2, n & 3; b = 32 + 16 * jj; t = 128 + 8 * n; d = 96 + 4 * (n & 3)
    for e in range(4): A(f"v_pk_fma_f32 v[{t+2*e}:{t+2*e+1}], v[{t+2*e}:{t+2*e+1}], v[{b+8+2*e}:{b+9+2*e}], v[{b+2*e}:{b+2*e+1}]")
    for e in range(4): A(f"v_cvt_pk_bf16_f32 v{d+e}, v{t+2*e}, v{t+2*e+1}")
    A(f"ds_write_b128 v{120+i}, v[{d}:{d+3}] offset:{jj*16384 + i*256}")
    if n >= OPT.get("jw", 8): trickle()
stamp("_jloop")
for n in range(2):
    for i, t in enumerate(q_reads(n)): st.add(t, tag=("R", n), need=[("W", n)] if i == 0 else None)
if OPT.get("kpos", 0) == 1: trickle(99); kv_prefetch()
stamp("_w01")
trickle(99)
stamp("_w34")
A("s_waitcnt lgkmcnt(0)\ns_barrier")
def hb(kk, s, cb): return (kk & 1) * 32 + (s * 4 + cb) * 4
for s in range(2):
    for cb in range(4): A(f"ds_read_b128 a[{hb(0,s,cb)}:{hb(0,s,cb)+3}], {'v8' if s else 'v15'} offset:{(s*4+cb)*1024}")
stamp("h")

def qacc(tp, tile, cb): return 128 + (tp * 8 + tile * 4 + cb) * 4
def qop(s, cb): return 32 + (s * 4 + cb) * 4
M = []; Fl = []; RES = {}; HBAR = 46
for U in range(16):
    kk, h2 = U >> 1, U & 1
    g0 = len(M)
    for tp in range(2):
        for tile in range(2):
            for cb in range(4):
                for s in range(2):
                    M.append(mf(qacc(2 * h2 + tp, tile, cb), qstg(U, tp, tile, s), hb(kk, s, cb), "0" if (kk == 0 and s == 0) else None))
    for s in range(2):
        n = 2 * U + 2 + s; g = g0 + 16 * s + (10 if n == 2 else 4 if n == 3 else 0)
        def refill(n, g, step):
            m = n + 5
            if m >= 32: return
            p, q = wq_pre(m)
            spread_dma(Fl, g, p, dma4("s60", nt("wq")), q, ("W", m), [("R", n)], step)
        if U == 0 and s == 0: refill(0, 3, 2); refill(1, 11, 2)
        if n < 32:
            for i, t in enumerate(q_reads(n)): Fl.append(F(t, g + i, g + i + 1, "rd", tag=("R", n), need=[("W", n)] if i == 0 else None))
            refill(n, g + 11, 4 if n > 4 else 2 if n == 2 else 3)
    RES[g0 + 31] = 1
    if U: Fl += stampF(f"q{U}", g0)
    if kk < 7:
        for i in range(4):
            n = 4 * h2 + i; s, cb = n >> 2, n & 3
            Fl.append(F(f"ds_read_b128 a[{hb(kk+1,s,cb)}:{hb(kk+1,s,cb)+3}], {'v8' if s else 'v15'} offset:{((kk+1)*8+n)*1024}", g0 + 8 + (i & 1) + 16 * (i >> 1), g0 + 12 + (i & 1) + 16 * (i >> 1), "hb", tag=("HB", kk + 1)))
    if kk == 7:
        for tp in range(2):
            T = 2 * h2 + tp - 1
            if T >= 0:
                for cb in range(4):
                    for e in range(4):
                        src = qacc(T, e >> 1, cb) + 2 * (e & 1)
                        Fl.append(F(f"v_cvt_pk_bf16_f32 v{qop(T,cb)+e}, v{src}, v{src+1}", g0 + 16 * tp + 2, g0 + 16 * tp + 15, "cv"))
        if h2 == 0:
            Fl.append(F(("barrier", [("HB", 7), ("R", 29)]), g0 + 1, g0 + 1, "dma"))
            kv_chain(Fl, g0 + 8, k_ops(0), ("K", 0))
            kv_chain(Fl, g0 + 24, k_ops(1), ("K", 1))
        else:
            kv_chain(Fl, g0 + 1, v_ops(0), ("V", 0))
            Fl.append(F(("barrier", [("K", 0)]), g0 + 15, g0 + 15, "rd"))
            for s in range(4): Fl.append(F(f"ds_read_b128 a[{STG+s*4}:{STG+s*4+3}], v{17+s} offset:{KA}", g0 + 16 + s, g0 + 22, "rd", tag=("R", "k00")))
LP0 = 2
def blk_addr(dst, src, add):
    A(f"""s_add_u32 s60, {src}, {add}
    s_and_b32 s60, s60, 3
    s_mul_i32 s61, s60, {KB}
    s_cmp_eq_u32 s60, 2
    s_cselect_b32 s61, {VA}, s61
    s_cmp_eq_u32 s60, 3
    s_cselect_b32 s61, {XR}, s61
    v_add_u32 v{dst}, s61, v16""")
FLOOR = [6, 7, 8, 15]
with Capture() as cp:
    voffs16(1024)
    A(f"""
s_lshl_b32 s60, s56, 19
s_lshl_b32 s61, s35, {OPT.get("wocol", 6)}
s_and_b32 s61, s61, {OPT.get("womask", 1023)}
s_add_u32 s60, s60, s61
s_add_u32 s36, s12, s60
s_addc_u32 s37, s13, 0
s_sub_u32 s38, {4096*1024}, s60
v_and_b32 v3, {3 if OPT.get("sparse1", 1) else 0}, v1
v_mov_b32 v2, 0x3f803f80
v_cmp_eq_u32 vcc, 0, v3
v_cndmask_b32 v2, 0, v2, vcc
v_accvgpr_write_b32 a240, v2
v_accvgpr_write_b32 a241, v2
v_accvgpr_write_b32 a242, v2
v_accvgpr_write_b32 a243, v2
s_and_b32 s14, s57, {OPT.get("rotmask", 7) & 3}
s_lshl_b32 s92, s14, 8
s_bfe_u32 s15, s57, 0x20002
s_and_b32 s15, s15, {OPT.get("rotmask", 7) & 3}
s_lshl_b32 s94, s15, 17
s_mul_i32 s93, s97, 57344
s_mul_i32 s60, s35, 14336
s_add_u32 s93, s93, s60
""")
    srd(52, 16, 512 * 3584)
    blk_addr(30, "s35", 0)
    for i in range(4): blk_addr(2 + i, "s15", i)
    A(f"""
s_sub_u32 s3, s96, {LP0}
s_lshl_b32 s13, s3, 5
s_add_u32 s13, s13, s97
s_lshl_b32 s60, s13, 6
s_mul_i32 s61, s35, {128*6144}
s_add_u32 s60, s60, s61
s_add_u32 s60, s60, 2048
s_cmp_lt_u32 s3, 2
s_cselect_b32 s10, s60, {OOB}
s_cselect_b32 s62, 0, {OOB}
s_mov_b32 s12, s2
s_cmp_lg_u32 s35, 0
s_cselect_b32 s11, {OOB}, 0
""")
    srd(0, 24, 1024)
attn_setup = list(cp.lines)
Fl += cp.fillers(412, 508, "su")
for t in [f"v_mov_b32 v{r}, 0xff800000" for r in FLOOR] + ["s_mov_b32 s95, 0", "v_lshrrev_b32 v31, 6, v0", "v_lshlrev_b32 v31, 2, v31", f"v_add_u32 v31, {LGO + 16}, v31"]: Fl.append(F(t, 470, 508, "su2"))
schedule(st, M, Fl, reserve=RES, verbose="Q")
for cb in range(4):
    for e in range(4):
        src = qacc(3, e >> 1, cb) + 2 * (e & 1)
        A(f"v_cvt_pk_bf16_f32 v{qop(3,cb)+e}, v{src}, v{src+1}")
st.newphase(); stamp("Q")
st.raw("L_attn:"); attn_entry = (list(st.vm), list(st.lg))
def wo_pre(u, m0):
    p = [m0, "s_add_u32 s60, s92, s94" + ("\ns_add_u32 s60, s60, 0x10000" if u & 4 else ""), "s_add_u32 s94, s94, 0x20000", "s_and_b32 s94, s94, 0x7ffff"]
    return p
def wo_chain(Fl, g, u, m0, need, late=3):
    p = wo_pre(u, m0)
    chain_dma(Fl, g, p[:2], dma4("s60", nt("wo")), ("W", u), need, "dma", late)
    post = p[2:] + (["s_add_u32 s92, s92, 256", "s_and_b32 s92, s92, 1023"] if (u & 7) == 7 else [])
    for t in post: Fl.append(F(t, g, g + late + 8, "dma"))

def S(kt, cb): return 96 + (kt * 4 + cb) * 4
def P(c, s, cb): return 160 + (c & 1) * 32 + (s * 4 + cb) * 4
def CI(cb): return 224 + 4 * cb
def oacc(tp, tile, cb): return (tp * 8 + tile * 4 + cb) * 4
def woreg(u, tile, s):
    o = tile * 8 + s * 4
    return ("a", 128 + u * 16 + o) if u < 4 else (("v", 128 + (u - 4) * 16 + o) if u < 6 else ("v", 192 + (u - 6) * 16 + o))
LS = 224
def RS(u): return (u + 2) & 3
units = [("QK", 0, k) for k in range(4)]
for c in range(7): units += [("QK", c + 1, k) for k in range(4)] + [("L", c, 0)] + [("PV", c, k) for k in range(4)]
units += [("L", 7, 0)] + [("PV", 7, k) for k in range(4)]
M = []; Fl = []; RES = {}; G = {}; buf = {}
staged = [u for u in units if u[0] != "L"]
for n, u in enumerate(staged): buf[u] = n
pos = 0
for un in units: G[un] = pos; pos += 8 if un[0] == "L" else 16
NATT = pos
def oop(dp, cb): return 32 + (dp * 4 + cb) * 4
pf = []
if OPT["pf_w1"]: pf += [("w1", i) for i in range(14)]
if OPT["pf_w2"]: pf += [("w2", i) for i in range(14 if OPT["pf_w2"] == 1 else 2)]
with Capture() as cp:
    A(f"""
v_lshlrev_b32 v252, 2, v0
buffer_load_dword v252, v252, s[0:3], s62 offen
v_lshrrev_b32 v248, 5, v1
v_lshlrev_b32 v248, 4, v248
v_bfe_u32 v249, v1, 2, 3
v_add_u32 v248, v248, v249
v_mul_u32_u24 v248, 6144, v248
v_and_b32 v249, 3, v1
v_lshl_add_u32 v248, v249, 4, v248
v_add_u32 v249, {8*6144-1032}, v248
v_add_u32 v250, {32*6144-2064}, v248
v_add_u32 v251, {40*6144-3096}, v248
s_mov_b32 s0, s26
s_mov_b32 s1, s27
s_mov_b32 s2, {512*6144}
s_mov_b32 m0, s63
""")
Fl += cp.fillers(3, 12, "dma")
for i in range(4): Fl.append(F(f"buffer_load_dwordx4 v{248+i}, s[0:3], s10 offen offset:{i*1032}{' nt' if OPT.get('nt_lp', 1) else ''} lds", 13 + 9 * i, 14 + 9 * i, "dma", tag="wm"))
with Capture() as cp:
    A(f"""
s_lshl_b32 s60, s57, 3
s_add_u32 s60, s60, s56
s_lshl_b32 s60, s60, 7
s_add_u32 s60, s60, {WS_F1}
s_lshl_b32 s61, s58, 3
s_add_u32 s61, s61, s59
s_lshl_b32 s61, s61, 7
s_add_u32 s61, s61, {WS_F2 - 128}
v_lshlrev_b32 v253, 2, v1
v_add_u32 v254, s60, v253
v_add_u32 v253, s61, v253
v_cmp_le_u32 vcc, 32, v1
v_cndmask_b32 v254, v254, v253, vcc
s_not_b32 s60, s34
v_mov_b32 v255, s60
""")
Fl += cp.fillers(G[("PV", 0, 0)], G[("PV", 1, 0)], "pw")
def pst(v, off=0): return f"buffer_store_dwordx4 a[248:251], {v}, s[48:51], s10 offen offset:{off} sc1"
psn = [f"v_accvgpr_write_b32 a{248+i}, -1" for i in range(4)] + ["s_lshl_b32 s10, s58, 3", "s_add_u32 s10, s10, s59", "s_lshl_b32 s10, s10, 3", "s_add_u32 s10, s10, s35",
       "s_mul_i32 s10, s10, 5120", f"s_add_u32 s10, s10, {WS_H1}"] + [pst("v16", i * 1024) for i in range(4)] + ["s_add_u32 s10, s10, 20480"] + [pst("v16", i * 1024) for i in range(4)]
psn += ["v_lshrrev_b32 v253, 5, v1", "v_lshlrev_b32 v253, 11, v253", "v_and_b32 v255, 31, v1", "v_lshl_add_u32 v253, v255, 4, v253"]
for n in (2, 3):
    psn += ["s_lshl_b32 s10, s57, 3", "s_add_u32 s10, s10, s56", "s_lshl_b32 s10, s10, 2", "s_add_u32 s10, s10, s35", "s_lshl_b32 s10, s10, 5", f"s_add_u32 s11, s14, {n}", "s_and_b32 s11, s11, 3",
            "s_add_u32 s10, s10, s11", "s_lshl_b32 s10, s10, 9", f"s_add_u32 s10, s10, {WS_PART}"]
    for i in range(4): psn += [pst("v253")] + (["s_add_u32 s10, s10, 4096"] if i < 3 else [])
for un in units:
    ty, c, k = un; g0 = len(M); assert g0 == G[un]
    if ty == "QK":
        b = STG + (buf[un] & 1) * 16
        for cb in range(4):
            for s in range(4):
                M.append(mf(S(k, cb), b + 4 * s, qop(s, cb), None if s else ("0" if (c == 0 and k < 2) else CI(cb)), "v", "a", "v"))
    elif ty == "L":
        for cb in range(4):
            for s in range(2): M.append(mf(LS + 4 * cb, 240, P(c, s, cb), "0" if (c == 0 and s == 0) else None, "a", "a", "v"))
    else:
        for tile in range(2):
            for cb in range(4):
                for s in range(2): M.append(mf(oacc(k, tile, cb), stg(buf[un], tile, s), P(c, s, cb), "0" if (c == 0 and s == 0) else None, "a", "a", "v"))
    if ty == "L": continue
    RES[g0 + 15] = 1
    bar = None
    if (ty, c, k) == ("QK", 0, 3): bar = 1
    if ty == "PV" and k == 3 and c < 7: bar = c + 2
    rg = g0
    if bar is not None:
        Fl.append(F(("barrier", [("R", un), ("V", bar - 1)] + ([("K", bar)] if bar <= 7 else [])), g0 + 1, g0 + 1, "rd")); rg = g0 + 2
        Fl += stampF(f"B{bar}", g0 + 2)
        VS = OPT.get("vs", 5); gk = g0 + 8
        if bar + 1 <= 7: kv_chain(Fl, gk, k_ops(bar + 1), ("K", bar + 1), VS); gk += 4 * VS
        if bar <= 7: kv_chain(Fl, gk, v_ops(bar), ("V", bar), VS); gk += 4 * VS
        plan = {**[{1: [("d", 0)], 2: [("d", 1)]}, {2: [("d", 0)], 3: [("d", 1)]}, {3: [("d", 0), ("d", 1)]}][OPT.get("wop", 1)], 4: [("r", 0), ("d", 2), ("d", 3)], 5: [("r", 1), ("r", 2), ("d", 4), ("d", 5)], 6: [("r", 3), ("d", 6)], 7: [("d", 7)]}.get(bar, [])
        gr = g0 + 20
        for kind, u in plan:
            if kind == "d":
                p = wo_pre(u, f"s_add_u32 m0, s63, {RS(u)*UNIT}")
                spread_dma(Fl, gk, p[:2], dma4("s60", nt("wo")), p[2:] + (["s_add_u32 s92, s92, 256", "s_and_b32 s92, s92, 1023"] if (u & 7) == 7 else []), ("W", u), [("RW", u - 4)] if u >= 4 else None, VS); gk += 4 * VS
            else:
                for i, t in enumerate(p16_reads(lambda tile, s: woreg(u, tile, s), RS(u) * UNIT)):
                    Fl.append(F(t, gr + 2 * i, gr + 6 + 2 * i, "wor", tag=("RW", u), need=[("W", u)] if i == 0 else None))
                gr += 16
        if bar <= 7:
            for n in range(int(str(OPT.get("pfp", 44044)).zfill(7)[bar - 1])):
                if not pf: break
                nm, i = pf.pop(0)
                if nm == "w2" and i == 0:
                    for t in ["s_mov_b32 s52, s20", "s_mov_b32 s53, s21"] + ((["s_sub_u32 s93, s93, 12288"] if OPT["pf_w1"] else []) if OPT["pf_w2"] == 1 else ["s_mul_i32 s93, s2, 7168", "s_lshl_b32 s60, s35, 11\ns_add_u32 s93, s93, s60"]): Fl.append(F(t, gk - 3, gk, "dma"))
                if i and i % 4 == 0: Fl.append(F("s_add_u32 s93, s93, 4096", gk - 3, gk, "dma"))
                Fl.append(dummyF(f"buffer_load_dwordx4 a[244:247], v16, s[52:55], s93 offen offset:{(i%4)*1024}", gk, gk + 2, "dma")); gk += VS
        for n in range(int(str(OPT.get("psp", 332233)).zfill(7)[bar - 1]) if bar <= 7 else 0):
            while True:
                t = psn.pop(0); stv = t.startswith("buffer")
                Fl.append(F(t, gk - (0 if stv else 4), gk + (2 if stv else 0), "dma", tag="psn" if stv else None))
                if stv: gk += OPT.get('ps', 5); break
    i = staged.index(un)
    if i + 1 < len(staged):
        nx = staged[i + 1]; nb = STG + (buf[nx] & 1) * 16
        if nx[0] == "QK":
            for s in range(4):
                Fl.append(F(f"ds_read_b128 a[{nb+4*s}:{nb+4*s+3}], v{17+s} offset:{(KA if nx[1]%2==0 else KB) + nx[2]*1024}", rg + s // 2, rg + 4 + s, "rd", tag=("R", nx)))
        else:
            i2 = 0
            for tile in range(2):
                for s in range(2):
                    for hf in range(2):
                        d = stg(buf[nx], tile, s) + 2 * hf
                        Fl.append(F(f"ds_read_b64_tr_b16 a[{d}:{d+1}], v21 offset:{(nx[1]&1)*16512 + (4*s+2*hf)*2064 + nx[2]*256 + tile*8}", rg + i2 // 2, rg + 1 + i2, "rd", tag=("R", nx))); i2 += 1
g1 = G[("QK", 0, 1)]
for cb in range(4):
    s0 = S(0, cb); t = 240 + 2 * cb; ch = ("mx", cb); e = g1 + max(0, 4 * cb - 8); l = g1 + 14 + 4 * cb
    for txt in [f"v_max3_f32 v{t}, v{s0}, v{s0+1}, v{s0+2}", f"v_max3_f32 v{t}, v{t}, v{s0+3}, v{FLOOR[cb]}", f"v_mov_b32 v{t+1}, v{t}",
                f"v_permlane16_swap_b32 v{t}, v{t+1}", f"v_max_f32 v{t}, v{t}, v{t+1}", f"v_mov_b32 v{t+1}, v{t}",
                f"v_permlane32_swap_b32 v{t}, v{t+1}", f"v_max_f32 v{t}, v{t}, v{t+1}"] + [f"v_sub_f32 v{CI(cb)+i}, 0, v{t}" for i in range(4)]:
        Fl.append(F(txt, e, l, ch))
for c in range(8):
    for kt in range(4):
        gq = G[("QK", c, kt)]
        for cb in range(4):
            e = gq + 4 * cb + 3 + 5
            l = (G[("QK", c + 1, kt)] + 4 * cb - 1) if c < 7 else G[("L", 7, 0)] - 2
            l = min(l, G[("L", c, 0)] - 2)
            ch = ("sm", kt, cb); s0 = S(kt, cb)
            if c == 0 and kt < 2:
                ch = ("mx", cb)
                for i in range(4): Fl.append(F(f"v_add_f32 v{s0+i}, v{CI(cb)}, v{s0+i}", e, l, ch))
            for i in range(4): Fl.append(F(f"v_exp_f32 v{s0+i}, v{s0+i}", e, l, ch))
            for i in range(2): Fl.append(F(f"v_cvt_pk_bf16_f32 v{P(c,kt>>1,cb)+2*(kt&1)+i}, v{s0+2*i}, v{s0+2*i+1}", e, l, ch))
gL = G[("L", 7, 0)]
for cb in range(4): Fl.append(F(f"v_accvgpr_read_b32 v{240+cb}, a{LS+4*cb}", gL + 12, gL + 20, "nrm"))
for cb in range(4): Fl.append(F(f"v_rcp_f32 v{244+2*cb}, v{240+cb}", gL + 12, gL + 24, "nrm"))
for t in ["v_add_f32 v252, v240, v241", "v_add_f32 v254, v242, v243", "v_add_f32 v252, v252, v254", f"v_cmp_nge_f32 vcc, {f2u(2.0**34)}, v252\ns_cmp_lg_u64 vcc, 0\ns_cselect_b32 s3, 1, 0",
          "v_mov_b32 v254, s3", "v_and_b32 v253, 3, v1", "v_lshlrev_b32 v253, 2, v253", f"v_add_u32 v253, {LGO + 16}, v253"]:
    Fl.append(F(t, gL + 14, gL + 34, "nrm"))
def norm_ops(dp, cb, pk):
    t = 160 + cb * 8; o = []
    for tile in range(2):
        for r in range(4): o.append(f"v_accvgpr_read_b32 v{t+4*tile+r}, a{oacc(dp,tile,cb)+r}")
    if pk: o += [f"v_pk_mul_f32 v[{t+2*r}:{t+2*r+1}], v[{t+2*r}:{t+2*r+1}], v[{244+2*cb}:{245+2*cb}] op_sel_hi:[1,0]" for r in range(4)]
    else: o += [f"v_mul_f32 v{t+r}, v{244+2*cb}, v{t+r}" for r in range(8)]
    d = 224 + cb * 4
    o += [f"v_cvt_pk_bf16_f32 v{d+e}, v{t+2*e}, v{t+2*e+1}" for e in range(4)]
    o.append(f"ds_write_b128 v30, v[{d}:{d+3}] offset:{(dp*4+cb)*1024}")
    return o
lpF = []; spread_dma(lpF, G[("PV", 0, 1)] + 4 - OPT.get("lpe", 40), [f"s_add_u32 m0, s63, {UNIT}", f"s_add_u32 s10, s10, {64*6144}"], [f"buffer_load_dwordx4 v{248+i}, s[0:3], s10 offen offset:{i*1032}{' nt' if OPT.get('nt_lp', 1) else ''} lds" for i in range(4)], ["s_mov_b32 s2, s12"], "wm", None, 5)
cut = min(f.order for f in Fl if f.chain == "dma" and f.e >= G[("PV", 0, 3)])
for i, f in enumerate(lpF): f.order = cut - 1 + (i + 1) / 100.0
Fl += lpF
def late_producer():
    A(f"s_sub_u32 s3, s96, {LP0}\ns_cmp_ge_u32 s3, 2\ns_cbranch_scc1 L_nolp")
    keep = (list(st.vm), list(st.lg), list(st.hist))
    silu_to_lds(252, 240)
    A(f"v_lshrrev_b32 v240, 4, v1\nv_lshlrev_b32 v240, 4, v240\ns_lshl_b32 s3, s35, 8\ns_add_u32 s3, s3, {SILU}\nv_add_u32 v240, s3, v240\ns_waitcnt lgkmcnt(0)\ns_barrier")
    for k in range(4): A(f"ds_read_b128 a[{128+4*k}:{131+4*k}], v240 offset:{k*64}")
    st.need("wm")
    for u in range(2):
        for t in p16_reads(lambda tile, s: ("a", 144 + u * 16 + tile * 8 + s * 4), u * UNIT): A(t)
    for k in range(4):
        for tile in range(2): A(mf(244 + 4 * tile, 144 + (k >> 1) * 16 + tile * 8 + (k & 1) * 4, 128 + 4 * k, "0" if k == 0 else None))
    A(f"s_lshl_b32 s13, s13, 7\ns_add_u32 s13, s13, {WS_MOD2}")
    publish(2, 244, "L_lp_x", "s13", tmp=240, stmp="s3")
    A("L_lp_x:\ns_waitcnt lgkmcnt(0)\ns_nop 7\nL_nolp:")
    st.vm, st.lg, st.hist = keep
Fl.append(F(("call", late_producer), G[("PV", 2, 3)] + 1, G[("PV", 2, 3)] + 1, "lp"))
Fl.append(F("buffer_store_dword v255, v254, s[48:51], s11 offen sc1", G[("PV", 1, 1)] + 9, G[("PV", 1, 1)] + 12, "pw"))
Fl.append(F(f"v_add_u32 v254, {WS_F3 - WS_F2}, v254", G[("PV", 1, 1)] + 12, G[("PV", 1, 2)] + 8, "pw"))
Fl.append(F("buffer_store_dword v255, v254, s[48:51], s11 offen sc1", G[("PV", 1, 2)] + 9, G[("PV", 1, 2)] + 12, "pw"))
NHID = 4
grp = [(dp, cb) for dp in range(4) for cb in range(4)]
for dp, cb in grp[:NHID]:
    for t in norm_ops(dp, cb, False): Fl.append(F(t, G[("PV", 7, dp)] + 16 + 3, NATT - 1, "nrm"))
for u in (4, 5):
    g = gL + 1 + (u - 4) * 16
    for i, t in enumerate(p16_reads(lambda tile, s: woreg(u, tile, s), RS(u) * UNIT)): Fl.append(F(t, g + i, g + 8 + i, "wor", tag=("RW", u), need=[("W", u)] if i == 0 else None))
E89 = OPT.get("e89", 1)
for u in (8, 9)[:2 * E89]:
    p = wo_pre(u, f"s_add_u32 m0, s63, {RS(u)*UNIT}"); spread_dma(Fl, gL + 22 + (u - 8) * 24, p[:2], dma4("s60", nt("wo")), p[2:], ("W", u), [("RW", u - 4)], 6)
assert not psn and not pf
schedule(st, M, Fl, reserve=RES, verbose="attn", mem2=("rd", "wor"), minback=OPT.get("minback", 10), pairfirst=lambda g: G[("QK", 7, 0)] - OPT.get("pfa", -1000) <= g < gL)
stamp("attn")
A("ds_write_b32 v31, v254")
for u in (6, 7):
    for i, t in enumerate(p16_reads(lambda tile, s: woreg(u, tile, s), RS(u) * UNIT)): st.add(t, tag=("RW", u), need=[("W", u)] if i == 0 else None)
for n, (dp, cb) in enumerate(grp[NHID:8]):
    for t in norm_ops(dp, cb, True): st.add(t, tag="ow" if t.startswith("ds_write") else None)

def oB(i, cb): return ("v", 32 + ((i - 4) * 4 + cb) * 4) if 4 <= i < 8 else ("a", ((i if i < 4 else i - 4) * 4 + cb) * 4)
def pacc(i, tile, cb): return 96 + (i & 1) * 32 + (tile * 4 + cb) * 4
def oB_read(ks, cb):
    f, r = oB(ks, cb); return f"ds_read_b128 {f}[{r}:{r+3}], v{2 + ((ks>>1)&3)} offset:{(((ks>>3)*2+(ks&1))*4+cb)*1024}"
with Capture() as osu:
    A(f"""
s_mul_i32 s6, s35, {UNIT}
s_add_u32 s6, s6, {VB}
s_sub_u32 s60, s6, s63
v_add_u32 v20, s60, v10
s_mul_i32 s7, s35, {2*UNIT}
s_sub_u32 s60, s7, s63
v_add_u32 v21, s60, v10
s_mul_i32 s62, s35, {UNIT}
s_add_u32 s62, s62, {8*UNIT}
s_cmp_eq_u32 s35, 3
s_cselect_b32 s62, {MISC+8192}, s62
s_sub_u32 s60, s62, s63
v_add_u32 v15, s60, v10
v_and_b32 v6, 15, v1
v_lshrrev_b32 v7, 1, v6
v_and_b32 v6, 1, v1
v_lshrrev_b32 v8, 4, v1
v_lshlrev_b32 v31, 11, v7
v_lshl_add_u32 v31, v6, 4, v31
v_lshl_add_u32 v31, v8, 5, v31
v_lshrrev_b32 v7, 3, v1
v_and_b32 v8, 7, v1
v_lshlrev_b32 v23, 7, v8
v_and_b32 v7, 1, v7
v_mul_u32_u24 v7, {WS_F1 - WS_F2}, v7
v_add_u32 v23, v23, v7
v_lshlrev_b32 v19, 16, v8
v_mov_b32 v7, {OOB}
v_cmp_le_u32 vcc, 8, v1
v_cndmask_b32 v19, v19, v7, vcc
v_and_b32 v24, 31, v1
v_lshlrev_b32 v24, 4, v24
s_lshl_b32 s60, s57, 3
s_add_u32 s60, s60, s56
s_lshl_b32 s60, s60, 7
s_add_u32 s60, s60, {WS_F1}
s_lshl_b32 s61, s58, 3
s_add_u32 s61, s61, s59
s_lshl_b32 s61, s61, 7
s_add_u32 s61, s61, {WS_F2 - 128}
v_lshlrev_b32 v8, 2, v1
v_add_u32 v22, s60, v8
v_add_u32 v8, s61, v8
v_cmp_le_u32 vcc, 32, v1
v_cndmask_b32 v22, v22, v8, vcc
v_lshrrev_b32 v8, 5, v1
v_lshl_add_u32 v24, v8, 16, v24
v_mov_b32 v25, s34
; s93 = partial store base, s8 = its running column offset; s9 = own flag line (wave 0) ; s0 = flag check base; s1 = read base; s12 = running read column
s_lshl_b32 s61, s57, 3
s_add_u32 s61, s61, s56
s_lshl_b32 s93, s61, 16
s_lshl_b32 s60, s35, 7
s_add_u32 s93, s93, s60
s_add_u32 s93, s93, {WS_PART}
s_lshl_b32 s8, s14, 9
s_cmp_lg_u32 s35, 0
s_cselect_b32 s9, {OOB}, 0
s_lshl_b32 s0, s58, 10
s_add_u32 s0, s0, {WS_F2}
s_lshl_b32 s1, s58, 19
s_lshl_b32 s60, s59, 13
s_add_u32 s1, s1, s60
s_lshl_b32 s60, s35, 11
s_add_u32 s1, s1, s60
s_add_u32 s1, s1, {WS_PART}
s_and_b32 s12, s58, {OPT.get("rotmask", 7) & 3}
s_lshl_b32 s12, s12, 9
s_mov_b32 s15, 0
""")
    A(f"""
v_lshrrev_b32 v6, 5, v1
s_and_b32 s60, s58, {OPT.get("rotmask", 7) & 3}
v_add_u32 v6, s60, v6
v_add_u32 v7, 2, v6
v_and_b32 v6, 3, v6
v_and_b32 v7, 3, v7
v_and_b32 v8, 30, v1
v_lshlrev_b32 v8, 3, v8
v_lshl_add_u32 v6, v6, 8, v8
v_lshl_add_u32 v7, v7, 8, v8
v_lshlrev_b32 v240, 1, v6
v_lshlrev_b32 v241, 1, v7
v_add_u32 v242, {MODV}, v240
v_add_u32 v243, {MODV}, v241
v_and_b32 v241, 3, v1
v_lshlrev_b32 v241, 2, v241
v_add_u32 v241, {LGO}, v241
v_not_b32 v240, v25
ds_write_b32 v241, v240
v_mov_b32 v241, {LGO}
v_and_b32 v8, 1, v1
v_lshl_add_u32 v6, v8, 10, v6
v_lshl_add_u32 v7, v8, 10, v7
v_lshlrev_b32 v8, 4, v0
v_add_u32 v8, {WS_MOD2}, v8
s_lshl_b32 s10, s58, 16
s_lshl_b32 s60, s59, 13
s_add_u32 s10, s10, s60
s_lshl_b32 s60, s35, 11
s_add_u32 s10, s10, s60
""")
    srd(52, 4, 2048 * 1024)
    A("s_movk_i32 s11, 4096")
st.need("ow", "psn"); A("s_barrier")
A("ds_read_b32 v252, v253")
for ks in range(2):
    for cb in range(4): A(oB_read(ks, cb))
st.newphase(); stamp("norm")
def slot_m0(r): return f"s_add_u32 m0, s63, {r*UNIT}" if r < 4 else {4: "s_mov_b32 m0, s6", 5: "s_mov_b32 m0, s7", 6: f"s_add_u32 m0, s7, {UNIT}", 7: "s_mov_b32 m0, s62"}[r]
def slot_rd(r): return (r * UNIT, "v10") if r < 4 else {4: (0, "v20"), 5: (0, "v21"), 6: (UNIT, "v21"), 7: (0, "v15")}[r]
def part_cvt(n, cb): return [f"v_cvt_pk_bf16_f32 v{224+4*cb+k}, v{pacc(n,k>>1,cb)+2*(k&1)}, v{pacc(n,k>>1,cb)+2*(k&1)+1}" for k in range(4)] + ([f"v_min_u32 v{224+4*cb}, -2, v{224+4*cb}"] if n >= 2 else [])
FLAG = "buffer_store_dword v25, v22, s[48:51], s9 offen sc1"
def pread(n, soff): return [f"buffer_load_dwordx4 v[{160+16*n+4*gp}:{163+16*n+4*gp}], v24, s[48:51], {soff[gp]} offen sc1{' nt' if OPT.get('pnt') else ''}" for gp in range(4)]
M = []; Fl = []; RES = {}
slot = {u: (RS(u) if (u & 7) < 4 else u & 7) for u in range(8, 32)}
ld = [(10, slot[10], 1, None), (11, slot[11], 17, None), (12, 4, 33, None), (13, 5, 4 * 16 + 11, None), (14, 6, 5 * 16 + 11, None), (15, 7, 6 * 16 + 11, None)] + [(u, slot[u], (u - 9) * 16 + 11, u - 8) for u in range(16, 32)]
for u in range(32):
    n, kk = u >> 3, u & 7; g0 = len(M)
    for tile in range(2):
        for cb in range(4):
            for s in range(2):
                f, r = oB(2 * kk + s, cb)
                fa, ra = woreg(u, tile, s) if u < 8 else ("a", stg(u, tile, s))
                M.append(mf(pacc(n, tile, cb), ra, r, "0" if (kk == 0 and s == 0) else None, "v", fa, f))
    if 8 <= u + 1 < 32:
        off, ad = slot_rd(slot[u + 1])
        for i, t in enumerate(p16_reads(lambda tile, s: ("a", stg(u + 1, tile, s)), off, ad)):
            Fl.append(F(t, g0 + i, g0 + i + 1, "rd", tag=("R", u + 1), need=[("W", u + 1)] if i == 0 else None))
    RES[g0 + 15] = 1
Fl.append(F("v_cmp_lt_u32 vcc, s95, v252\ns_cbranch_vccnz L_redo", 2, 2, "gd"))
GW = OPT.get("gow", 40)
for i, (dp, cb) in enumerate(grp[8:]):
    o = norm_ops(dp, cb, True); g = i * (GW - 4) // 8
    Fl.append(F("\n".join(o[:-1]), g, g, "nrm")); Fl.append(F(o[-1], g + 1, g + 1, "nrm", tag="ow2"))
Fl.append(F(("barrier", ["ow2"]), GW, GW, "ob"))
i = 0
for ks in range(2, 16):
    for cb in range(4):
        e = i if ks < 8 else max(GW + 1 + i - 24, {14: 48, 15: 64}.get(ks, 0) + cb)
        f = F(oB_read(ks, cb), e, e + 1, "ob", tag="OB"); i += 1
        if ks < 8: f.order -= 1000
        Fl.append(f)
GX_ = GW + 38
Fl += osu.fillers(GW - 8, 118, "su")
if E89: ld = [(10, slot[10], 1, None), (11, slot[11], 21, None), (12, 4, GW + 4, None)] + [(13 + k, 5 + k, GX_ + 2 + 14 * k, None) for k in range(3)] + ld[6:]
else: ld = [(u, slot[u], GW - 6 + 12 * (u - 8), None) for u in range(8, 16)] + ld[6:]
for u, r, g, nd in ld:
    if u == 13: Fl.append(F(("barrier", ["OB"]), GX_, GX_, "dma"))
    p = wo_pre(u, slot_m0(r))
    spread_dma(Fl, g, p[:2], dma4("s60", nt("wo")), p[2:] + (["s_add_u32 s92, s92, 256", "s_and_b32 s92, s92, 1023"] if (u & 7) == 7 else []), ("W", u), [("R", nd)] if nd is not None else None, 5 if g < GW else 4 if (u > 15 or E89) else 3)
for n in range(3):
    g = (8 * n + 8) * 16
    Fl.append(F("s_add_u32 s61, s93, s8", g + 2, g + 8, "po"))
    SS = OPT.get("ss", 4)
    for cb in range(4):
        for t in part_cvt(n, cb): Fl.append(F(t, g + 2, g + 9 + SS * cb, "po"))
        if not OPT.get("nopart"): Fl.append(F(f"buffer_store_dwordx4 v[{224+4*cb}:{227+4*cb}], v31, s[48:51], s61 offen{'' if OPT.get('plainst') else ' sc1'}", g + 9 + SS * cb, g + 10 + SS * cb, "po", tag=("part", n)))
        Fl.append(F("s_add_u32 s61, s61, 16384" if cb < 3 else "s_add_u32 s8, s8, 512", g + 9, g + 12 + SS * cb, "po"))
    Fl.append(F("s_and_b32 s8, s8, 2047", g + 20, g + 14 + 3 * SS, "po"))
    gf = g + OPT.get("gf", 6 * 16 + 9)
    if n != 1: continue
    Fl.append(F(("barrier", [("part", n)]), gf, gf, "po"))
    Fl.append(F(FLAG, gf + 1, gf + 1, "po"))
Fl.append(F("buffer_load_dword v240, v23, s[48:51], s0 offen sc1", 30 * 16 + 8, 30 * 16 + 12, "po"))
for i, t in enumerate(["buffer_load_dwordx4 v[244:247], v6, s[52:55], s10 offen", "buffer_load_dwordx4 v[248:251], v7, s[52:55], s10 offen",
                       "buffer_load_dwordx4 v[252:255], v8, s[48:51], 0 offen sc1", "buffer_load_dwordx4 v[26:29], v8, s[48:51], s11 offen sc1"]):
    Fl.append(F(t, OPT.get("gsm", 24 * 16 + 30) + 16 * i, OPT.get("gsm", 24 * 16 + 30) + 4 + 16 * i, "sm"))
g = 23 * 16 + 12
w1s = ["s_min_u32 s62, s59, 6", "s_lshl_b32 s62, s62, 9", "s_lshl_b32 s60, s35, 7", "s_add_u32 s62, s62, s60", "s_add_u32 s36, s16, s62\ns_addc_u32 s37, s17, 0", f"s_sub_u32 s38, {512*3584}, s62", "s_lshl_b32 s14, s58, 1", f"s_and_b32 s14, s14, {6 if OPT.get('crot', 1) else 0}", "s_add_u32 s14, s14, s59", "s_and_b32 s92, s14, 7", f"s_mul_i32 s92, s92, {64*3584}",
       "v_bfe_u32 v2, v1, 2, 3", "v_mul_u32_u24 v2, 3584, v2", "v_lshrrev_b32 v3, 5, v1", "v_lshl_add_u32 v2, v3, 6, v2", "v_and_b32 v3, 3, v1", "v_lshl_add_u32 v11, v3, 4, v2",
       f"v_add_u32 v12, {8*3584-1032}, v11", f"v_add_u32 v13, {16*3584-2064}, v11", f"v_add_u32 v14, {24*3584-3096}, v11"]
for t in w1s: Fl.append(F(t, g, g + 14, "dma"))
NW0 = OPT.get('nw0', 7)
def w1_pre(): return ["s_mov_b32 s60, s92", f"s_add_u32 s92, s92, {32*3584}", f"s_cmp_eq_u32 s92, {512*3584}\ns_cselect_b32 s92, 0, s92"]
for k in range(NW0):
    p = w1_pre(); spread_dma(Fl, 24 * 16 + 12 + 16 * k - (k // 2) * 3, [slot_m0(slot[24 + k])] + p[:1], dma4("s60"), p[1:], ("W1", k), [("R", 24 + k)], 3)
for u in (8, 16, 24): Fl += stampF(f"O{u}", u * 16)
for u in (16, 20, 22, 23, 24, 25, 26, 27, 28, 29, 30, 31): Fl += stampF(f"u{u}", u * 16)
Fl += stampF("u32", 511)
schedule(st, M, Fl, reserve=RES, verbose="O")
for cb in range(4):
    for t in part_cvt(3, cb): A(t)
A("s_add_u32 s61, s93, s8")
for cb in range(4):
    st.add(f"buffer_store_dwordx4 v[{224+4*cb}:{227+4*cb}], v31, s[48:51], s61 offen sc1", tag=("part", 3))
    if cb < 3: A("s_add_u32 s61, s61, 16384")
stamp("O")

def w1reg(half, s, tile): return ((half * 16 + s) * 2 + tile) * 4
def w2reg(ks, tp, tile):
    o = tp * 8 + tile * 4
    if ks < 4: return ("v", 160 + ks * 16 + o)
    if ks < 9: return ("a", (ks - 4) * 16 + o)
    if ks < 13: return ("a", 192 + (ks - 9) * 16 + o)
    return ("v", 208 + o)
KS2 = [(p, 0) for p in range(7)] + [(p, 1) for p in range(7)]
class WS:
    nd = NW0; nr = 0; slot_of = {k: slot[24 + k] for k in range(NW0)}; last = {slot[24 + k]: k for k in range(NW0)}
def w_dma(n, slots):
    for _ in range(n):
        u = WS.nd; WS.nd += 1
        r = [x for x in slots if WS.last.get(x, -1) < WS.nr][0]
        A(slot_m0(r))
        if u == 16: w2_setup()
        A("\n".join(w1_pre()) if u < 16 else "\n".join(w2_pre(u - 16)))
        for i, t in enumerate(dma4("s60")): st.add(t, tag=("W1", u), need=[("R1", WS.last[r])] if (i == 0 and r in WS.last) else None)
        WS.slot_of[u] = r; WS.last[r] = u
def w_read(n):
    for _ in range(n):
        u = WS.nr; WS.nr += 1; r = WS.slot_of[u]
        if u < 16:
            off, ad = slot_rd(r); L = p8_reads(lambda tp, tile: ("a", w1reg(tp, u, tile)), off, "v9" if r < 4 else ad)
        else:
            L = p8_reads(lambda tp, tile: w2reg(u - 16, tp, tile), r * UNIT if r < 4 else 0, "v9" if r < 4 else "v20")
        for i, t in enumerate(L): st.add(t, tag=("R1", u), need=[("W1", u)] if i == 0 else None)
def w2_setup():
    voffs8(1024)
    A(f"""
    s_lshl_b32 s60, s35, 16
    s_lshl_b32 s61, s59, 7
    s_add_u32 s60, s60, s61
    s_add_u32 s36, s20, s60
    s_addc_u32 s37, s21, 0
    s_sub_u32 s38, {1792*1024}, s60
    s_sub_u32 s7, s14, 7
    s_cselect_b32 s7, s14, s7
    s_mul_i32 s8, s7, 40960
    s_lshl_b32 s7, s7, 18
    """)
def w2_pre(ks): return [f"s_add_u32 s60, s7, {(ks // 7) * 32768}", "s_add_u32 s7, s7, 0x40000", f"s_cmp_eq_u32 s7, {7 << 18}\ns_cselect_b32 s7, 0, s7"]
ALL7 = [0, 1, 2, 3, 4, 5, 6]
srd(52, 18, 3584)
A("v_lshrrev_b32 v2, 4, v1\nv_lshlrev_b32 v2, 4, v2\nbuffer_load_dwordx4 v[80:83], v2, s[52:55], s62 offen\nbuffer_load_dwordx4 v[84:87], v2, s[52:55], s62 offen offset:64")
A("v_subrev_u32 v2, v10, v9\nv_add_u32 v20, v2, v20\nv_add_u32 v21, v2, v21")
stamp("elp")
def wave0_wait(lab, word, test, probe, ex=None):
    keep = None
    A(f"{test}\ns_cmp_eq_u32 s35, 0\ns_cbranch_scc1 {lab}_0\ns_cbranch_vccz {lab}_e\ns_mov_b32 s3, {SPIN * 8}")
    keep = (list(st.vm), list(st.lg))
    A(f"{lab}_l:\nds_read_b32 v240, v241 offset:{4*word}\ns_sub_u32 s3, s3, 1\ns_waitcnt lgkmcnt(0)\nv_cmp_ne_u32 vcc, s34, v240\ns_cmp_eq_u32 s3, 0\ns_cbranch_scc1 {lab}_e\ns_cbranch_vccz {lab}_e\ns_sleep 1\ns_branch {lab}_l")
    A(f"{lab}_0:\ns_cbranch_vccz {lab}_x")
    if ex: A(f"s_mov_b64 exec, {ex}")
    spin(lab, probe, test)
    if ex: A("s_mov_b64 exec, -1")
    A(f"ds_write_b32 v241, v25 offset:{4*word}\n{lab}_e:")
    st.vm, st.lg = keep; st.hist = []
wave0_wait("L_rdy", 0, "v_cmp_ne_u32 vcc, s34, v240", ["v_mov_b32 v240, 0", "buffer_atomic_add v240, v23, s[48:51], s0 offen sc0 sc1"], "0xffff")
def pre_off(n): return f"s_add_u32 s13, s12, {n*512}\ns_and_b32 s13, s13, 2047\ns_add_u32 s13, s13, s1"
def pread_ops(n):
    o = pre_off(n).split("\n")
    for gp, t in enumerate(pread(n, ["s13"] * 4)): o += [t] + (["s_add_u32 s13, s13, 0x20000"] if gp < 3 else [])
    return o
def preads(n, tag=None):
    for t in pread_ops(n): st.add(t, tag=tag if t.startswith("buffer") else None)
def hint(off): return ["v_mov_b32 v240, 0", f"buffer_atomic_add v240, v19, s[48:51], s15 offen offset:{off} sc0 sc1"]
def wait_hint(lab, word, off):
    wave0_wait(lab, word, "v_cmp_eq_u32 vcc, -1, v240", hint(off))
m2 = ["buffer_load_dwordx4 v[252:255], v8, s[48:51], 0 offen sc1", "buffer_load_dwordx4 v[26:29], v8, s[48:51], s11 offen sc1"]
for n in range(2): preads(n)
A(pre_off(3).replace("s13", "s15"))
for t in hint(384): A(t)
w_read(NW0)
A("v_mov_b32 v2, 0x3f80\nv_mov_b32 v3, 0x3f800000")
for r in range(32): A(f"v_mov_b32 v{96+r}, 0")
def accq(n):
    for gp in range(4):
        for r in range(4): A(f"v_dot2c_f32_bf16 v{96+8*n+2*r}, v{160+16*n+4*gp+r}, v2\nv_dot2c_f32_bf16 v{97+8*n+2*r}, v{160+16*n+4*gp+r}, v3")
for r in range(8): A(f"v_lshlrev_b32 v{144+2*r}, 16, v{244+r}\nv_and_b32 v{145+2*r}, 0xffff0000, v{244+r}")
cond2 = """v_cmp_ne_u32 vcc, s34, v253
    v_cmp_ne_u32 s[100:101], s34, v255
    s_or_b64 vcc, vcc, s[100:101]
    v_cmp_ne_u32 s[100:101], s34, v27
    s_or_b64 vcc, vcc, s[100:101]
    v_cmp_ne_u32 s[100:101], s34, v29
    s_or_b64 vcc, vcc, s[100:101]"""
A(cond2); A("s_cbranch_vccz L_pm2_x")
keep = (list(st.vm), list(st.lg))
spin("L_pm2", ["s_sleep 8"] + m2, cond2)
st.vm, st.lg = keep
A(f"""
s_cmp_lt_u32 s35, 2
s_cselect_b32 s60, 1.0, 0
v_lshlrev_b32 v128, 16, v252
v_and_b32 v129, 0xffff0000, v252
v_lshlrev_b32 v130, 16, v254
v_and_b32 v131, 0xffff0000, v254
v_lshlrev_b32 v132, 16, v26
v_and_b32 v133, 0xffff0000, v26
v_lshlrev_b32 v134, 16, v28
v_and_b32 v135, 0xffff0000, v28
v_add_f32 v132, s60, v132
v_add_f32 v133, s60, v133
v_add_f32 v134, s60, v134
v_add_f32 v135, s60, v135
v_lshlrev_b32 v8, 4, v0
v_add_u32 v8, {MODV}, v8
ds_write_b128 v8, v[128:131]
ds_write_b128 v8, v[132:135] offset:4096
""")
OWN5 = [0, 1, 2, 3, 4]
A(f"""
s_mul_i32 s6, s35, {UNIT}
s_add_u32 s6, s6, 65536
s_sub_u32 s60, s6, s63
s_waitcnt lgkmcnt(0)
v_add_u32 v20, s60, v9
s_barrier
""")
stamp("epr")
w_dma(OPT.get("nA", 0), OWN5)
def modrd(dst, vec):
    for h in range(2):
        for q in range(2): A(f"ds_read_b128 v[{dst+8*h+4*q}:{dst+8*h+4*q+3}], v{242+h} offset:{vec*2048 + q*16}")
modrd(32, 0); modrd(48, 2); modrd(64, 1)
wait_hint("L_hp", 1, 384)
stamp("f1st")
preads(2, "p23"); preads(3, "p23")
w_dma(OPT.get("nB", 4), OWN5)
accq(0); accq(1)
chk23 = "v_max3_u32 v240, v192, v196, v200\nv_max3_u32 v240, v240, v204, v208\nv_max3_u32 v240, v240, v212, v216\nv_max_u32 v240, v240, v220\nv_cmp_eq_u32 vcc, -1, v240"
st.need("p23")
A(chk23); A("s_cbranch_vccz L_p23_x")
keep = (list(st.vm), list(st.lg)); spin("L_p23", ["s_sleep 2"] + pread_ops(2) + pread_ops(3), chk23); st.vm, st.lg = keep
stamp("f1ok")
accq(2); accq(3)
stamp("eacc3")
for h in range(2):
    for r in range(8): A(f"v_permlane32_swap_b32 v{96+16*h+r}, v{104+16*h+r}")
for h in range(2):
    for r in range(0, 8, 2): A(f"v_pk_add_f32 v[{128+8*h+r}:{129+8*h+r}], v[{96+16*h+r}:{97+16*h+r}], v[{104+16*h+r}:{105+16*h+r}]")
for r in range(8): A(f"v_pk_fma_f32 v[{128+2*r}:{129+2*r}], v[{128+2*r}:{129+2*r}], v[{32+2*r}:{33+2*r}], v[{144+2*r}:{145+2*r}]")
for r in range(8): A(f"v_cvt_pk_bf16_f32 v{144+r}, v{128+2*r}, v{129+2*r}")
def row_stats(x):
    A(f"v_pk_add_f32 v[96:97], v[{x}:{x+1}], v[{x+2}:{x+3}]\nv_pk_mul_f32 v[98:99], v[{x}:{x+1}], v[{x}:{x+1}]")
    A(f"v_pk_fma_f32 v[98:99], v[{x+2}:{x+3}], v[{x+2}:{x+3}], v[98:99]")
    for r in range(2, 8):
        A(f"v_pk_add_f32 v[96:97], v[96:97], v[{x+2*r}:{x+2*r+1}]\nv_pk_fma_f32 v[98:99], v[{x+2*r}:{x+2*r+1}], v[{x+2*r}:{x+2*r+1}], v[98:99]")
    A("v_add_f32 v96, v96, v97\nv_add_f32 v98, v98, v99")
    for d in ("quad_perm:[2,3,0,1]", "row_ror:4", "row_ror:8"):
        A(f"v_add_f32_dpp v96, v96, v96 {d} row_mask:0xf bank_mask:0xf\nv_add_f32_dpp v98, v98, v98 {d} row_mask:0xf bank_mask:0xf")
    for sw in ("16", "32"):
        A(f"v_mov_b32 v97, v96\nv_mov_b32 v99, v98\nv_permlane{sw}_swap_b32 v96, v97\nv_permlane{sw}_swap_b32 v98, v99\nv_add_f32 v96, v96, v97\nv_add_f32 v98, v98, v99")
    A(f"""v_mul_f32 v97, {f2u(1/512)}, v96
    v_mul_f32 v98, {f2u(1/512)}, v98
    v_fma_f32 v98, -v97, v97, v98
    v_max_f32 v98, 0, v98
    v_add_f32 v98, {f2u(1e-5)}, v98
    v_rsq_f32 v96, v98
    v_mul_f32_e64 v98, -v97, v96""")
row_stats(128)
for r in range(8): A(f"v_pk_fma_f32 v[{128+2*r}:{129+2*r}], v[{128+2*r}:{129+2*r}], v[96:97], v[98:99] op_sel_hi:[1,0,0]")
for r in range(8): A(f"v_pk_fma_f32 v[{128+2*r}:{129+2*r}], v[{128+2*r}:{129+2*r}], v[{48+2*r}:{49+2*r}], v[{64+2*r}:{65+2*r}]")
row_stats(128)
for r in range(8): A(f"v_pk_fma_f32 v[{128+2*r}:{129+2*r}], v[{128+2*r}:{129+2*r}], v[96:97], v[98:99] op_sel_hi:[1,0,0]")
for r in range(8): A(f"v_cvt_pk_bf16_f32 v{152+r}, v{128+2*r}, v{129+2*r}")
A(f"s_add_u32 s61, s10, {WS_Y}")
st.add("buffer_store_dwordx4 v[152:155], v6, s[48:51], s61 offen sc1", tag="y")
st.add("buffer_store_dwordx4 v[156:159], v7, s[48:51], s61 offen sc1", tag="y")
A(f"s_add_u32 s61, s10, {WS_X1}")
st.add("buffer_store_dwordx4 v[144:147], v6, s[48:51], s61 offen sc1", tag="y")
st.add("buffer_store_dwordx4 v[148:151], v7, s[48:51], s61 offen sc1", tag="y")
stamp("ysent")
w_read(WS.nd - WS.nr); w_dma(OPT.get("nD", 3), OWN5)
A(f"""
v_lshrrev_b32 v2, 4, v1
s_lshl_b32 s12, s58, 16
s_lshl_b32 s11, s35, 14
s_add_u32 s12, s12, s11
s_add_u32 s12, s12, {WS_Y}
s_lshl_b32 s61, s58, 3
s_add_u32 s61, s61, s59
s_lshl_b32 s9, s61, 7
s_add_u32 s9, s9, {WS_F3}
s_cmp_lg_u32 s35, 0
s_cselect_b32 s9, {OOB}, s9
s_lshl_b32 s0, s58, 2
s_add_u32 s0, s0, s35
s_lshl_b32 s0, s0, 8
s_add_u32 s0, s0, {WS_F3}
v_min_u32 v23, 2, v1
v_lshrrev_b32 v22, 1, v23
v_lshlrev_b32 v23, 7, v23
v_lshl_add_u32 v23, v22, 28, v23
v_and_b32 v22, 31, v1
v_lshlrev_b32 v22, 2, v22
v_lshrrev_b32 v4, 3, v1
v_lshrrev_b32 v5, 1, v4
v_xor_b32 v5, v5, v1
v_and_b32 v5, 7, v5
v_lshlrev_b32 v5, 4, v5
v_lshl_add_u32 v4, v4, 10, v5
v_xor_b32 v5, 64, v4
v_add_u32 v5, 8192, v5
v_bfe_u32 v15, v1, 1, 3
v_xor_b32 v15, v15, v2
v_lshlrev_b32 v15, 4, v15
v_and_b32 v17, 7, v1
v_lshl_add_u32 v15, v17, 7, v15
v_bfe_u32 v17, v1, 3, 1
v_lshl_add_u32 v15, v17, 13, v15
v_xor_b32 v17, 64, v15
""")
for r in range(8): A(f"v_lshlrev_b32 v{224+2*r}, 16, v{80+r}\nv_and_b32 v{225+2*r}, 0xffff0000, v{80+r}")
stamp("ewr")
st.need("y")
stamp("eyack")
A("s_barrier"); A("buffer_store_dword v25, v22, s[48:51], s9 offen sc1")
w_read(WS.nd - WS.nr)
def y_dma(poller):
    A("s_and_b32 s13, s14, 7\ns_lshl_b32 s13, s13, 7")
    for sp in range(8):
        A("s_add_u32 s61, s12, s13")
        for qh in range(2):
            A(f"s_add_u32 m0, s11, {qh*8192 + sp*1024}")
            st.add(f"buffer_load_dwordx4 v{4+qh}, s[48:51], s61 offen sc1 lds", tag=("Y", sp >> 2))
        if sp < 7: A("s_add_u32 s13, s13, 128\ns_and_b32 s13, s13, 1023")
probe = ["v_mov_b32 v240, 0", "buffer_atomic_add v240, v23, s[48:51], s0 offen sc0 sc1"]; ctest = "v_cmp_ne_u32 vcc, s34, v240\ns_and_b64 vcc, vcc, 3"
w_dma(OPT.get("nE", 2), OWN5)
for t in probe: A(t)
w_dma(OPT.get("nE2", 1), OWN5)
stamp("epre2")
A(ctest); A("s_cbranch_vccz L_pf2_x")
keep = (list(st.vm), list(st.lg)); spin("L_pf2", probe, ctest); st.vm, st.lg = keep
stamp("ebar2")
y_dma(False)
w_dma(OPT.get("nE3", 1), OWN5)
assert WS.nd > 16
stamp("f2ok")
if OPT.get("warm2", 1): warm("L_w2")
A(f"s_lshl_b32 s60, s2, 2\ns_add_u32 s60, s60, s35\ns_cmp_lg_u32 s60, 1\ns_cbranch_scc1 L_noep\nv_lshlrev_b32 v2, 7, v1\nv_add_u32 v2, {WS_F1}, v2\ns_mov_b32 s60, 0x2000\ns_mov_b32 s61, 0x4000\ns_mov_b32 s13, 0x6000")
keep = (list(st.vm), list(st.lg))
spin("L_ep", [f"buffer_load_dword v{40+i}, v2, s[48:51], {['0', 's60', 's61', 's13'][i]} offen sc1" for i in range(4)],
     "v_cmp_ne_u32 vcc, s34, v40\n" + "".join(f"v_cmp_ne_u32 s[100:101], s34, v{40+i}\ns_or_b64 vcc, vcc, s[100:101]\n" for i in range(1, 4)))
A("v_mov_b32 v2, 0\nbuffer_store_dword v25, v2, s[48:51], 0 offen sc1\nL_noep:"); st.vm, st.lg = keep
st.need(("Y", 0))
A("s_barrier")
stamp("Yin")

def yb(n, s, c2): return 96 + (n & 1) * 32 + (s * 2 + c2) * 4
def hacc(half, tile, cb): return 32 + half * 32 + (tile * 4 + cb) * 4
def yreads(n):
    cp, k4 = (n >> 2) & 1, n & 3
    return [f"ds_read_b128 v[{yb(n,s,c2)}:{yb(n,s,c2)+3}], v{15 if s % 2 == 0 else 17} offset:{(cp*2+c2)*16384 + (k4*2+(s>>1))*1024}" for c2 in range(2) for s in range(4)]
C1 = -2 * 0.7978845608028654 * 1.4426950408889634; C2 = C1 * 0.044715
def gelu_stages(q):
    half, cp = q >> 1, q & 1
    X = [hacc(half, t, cp * 2 + c2) + r for c2 in range(2) for t in range(2) for r in (0, 2)]; T = [240 + 2 * i for i in range(8)]
    pr = lambda r: f"v[{r}:{r+1}]"
    a = [f"v_pk_mul_f32 {pr(t)}, {pr(x)}, {pr(x)}" for x, t in zip(X, T)] + [f"v_pk_fma_f32 {pr(t)}, {pr(t)}, s[92:93], v[26:27] op_sel_hi:[1,0,0]" for t in T] + [f"v_pk_mul_f32 {pr(t)}, {pr(x)}, {pr(t)}" for x, t in zip(X, T)]
    b = [f"v_exp_f32 v{240+i}, v{240+i}" for i in range(16)]
    c = [f"v_pk_add_f32 {pr(t)}, {pr(t)}, 1.0 op_sel_hi:[1,0]" for t in T]
    d = [f"v_rcp_f32 v{240+i}, v{240+i}" for i in range(16)]
    e = [f"v_pk_mul_f32 {pr(x)}, {pr(x)}, {pr(t)}" for x, t in zip(X, T)]
    st_ = []
    for c2 in range(2):
        cb = cp * 2 + c2; dd = hacc(half, 0, cb)
        e += [f"v_cvt_pk_bf16_f32 v{dd+k}, v{X[4*c2+k]}, v{X[4*c2+k]+1}" for k in range(4)]
        e.append(f"v_min_u32 v{dd}, -2, v{dd}")
        st_.append(f"buffer_store_dwordx4 v[{dd}:{dd+3}], v16, s[48:51], s{93+1+half} offen offset:{cb*1024} sc1")
    return a, b, c, d, e, st_
def flag3(q): return f"buffer_store_dword v25, v22, s[48:51], s11 offen offset:{q*512} sc1"
for t in yreads(0): A(t)
late_w = []
assert WS.nr >= 12
while WS.nr < min(WS.nd, 20):
    u = WS.nr; WS.nr += 1; r = WS.slot_of[u]
    late_w += [(t, u) for t in p8_reads((lambda tp, tile: ("a", w1reg(tp, u, tile))) if u < 16 else (lambda tp, tile: w2reg(u - 16, tp, tile)), r * UNIT if r < 4 else 0, "v9" if r < 4 else "v20")]
A(f"""
s_mov_b32 s92, {f2u(C2)}
v_mov_b32 v26, {f2u(C1)}
s_lshl_b32 s60, s58, 3
s_add_u32 s60, s60, s59
s_mul_i32 s94, s60, 40960
s_mul_i32 s61, s35, 5120
s_add_u32 s94, s94, s61
s_add_u32 s94, s94, {WS_H1}
s_add_u32 s95, s94, 20480
s_mul_i32 s1, s58, 327680
s_add_u32 s1, s1, s61
s_add_u32 s1, s1, {WS_H1}
""")
NE = WS.nd - 16
W2S = {ks: ([0, 1, 2, 3, 4] * 3)[ks - NE] for ks in range(NE, 14)}
if NE == 5: W2S[4] = WS.slot_of[20]; assert W2S[4] == 4
def w2_m0(r): return f"s_add_u32 m0, s63, {r*UNIT}" if r < 4 else "s_mov_b32 m0, s6"
def w2_reads(ks): r = W2S[ks]; return p8_reads(lambda tp, tile: w2reg(ks, tp, tile), r * UNIT if r < 4 else 0, "v9" if r < 4 else "v20")
def hB(Q, k, c2):
    r = (k * 2 + c2) * 4
    if Q == 0: return ("a", 80 + r) if r < 48 else ("v", 224 + r - 48)
    if Q == 2: return ("v", 32 + r if r < 40 else (80 + r - 40 if r < 48 else 232 + r - 48))
    return [None, ("a", 136 + r), None, ("a", 80 + r)][Q]
def h_loads(Q, run="s8", tmp="s10"):
    o = []
    for k in range(7):
        o.append(f"s_add_u32 {tmp}, s1, {run}")
        for c2 in range(2):
            f, r = hB(Q, k, c2); o.append(f"buffer_load_dwordx4 {f}[{r}:{r+3}], v{16 + 2*(Q>>1)}, s[48:51], {tmp} offen offset:{((Q&1)*2+c2)*1024} sc1")
        o += [f"s_add_u32 {run}, {run}, 40960", f"s_cmp_eq_u32 {run}, {7 * 40960}\ns_cselect_b32 {run}, 0, {run}"]
    return o
def chk3(q): return f"buffer_load_dword v{28 + (q&1)}, v23, s[48:51], s0 offen offset:{q*512} sc1"
A("v_add_u32 v18, 20480, v16\ns_mov_b32 s9, s8")
M = []; Fl = []; RES = {}
for n in range(16):
    q = n >> 2; half, cp, k4 = q >> 1, q & 1, n & 3; g0 = len(M)
    for tile in range(2):
        for c2 in range(2):
            for s in range(4):
                M.append(mf(hacc(half, tile, cp * 2 + c2), w1reg(half, 4 * k4 + s, tile), yb(n, s, c2), (224 + half * 8 + tile * 4) if (k4 == 0 and s == 0) else None, "v", "a", "v"))
    if n == 0:
        nl = len(late_w) - 8 * OPT.get("nE3", 1)
        for i, (t, u) in enumerate(late_w): Fl.append(F(t, i // 2 if i < nl else 17 + (i - nl) // 2, i // 2 if i < nl else 17 + (i - nl) // 2, "lw", tag=("LW", i >> 3), need=[("W1", u)] if i % 8 == 0 else None))
    if n == 1: Fl.append(F(("barrier", [("Y", 1)]), g0, g0, "rd"))
    if n < 15:
        for i, t in enumerate(yreads(n + 1)): Fl.append(F(t, g0 + i, g0 + i + 1, "rd"))
    RES[g0 + 15] = 1
nlw = len(late_w) // 8; lslot = [WS.slot_of[u] for u in range(WS.nr - nlw, WS.nr)]
free = [(r, None) for r in range(5) if r not in lslot and not (NE == 5 and r == 4)] + [(r, ("LW", i)) for i, r in enumerate(lslot)]
ev = []; gd = OPT.get("gw2", 6); rdg = {}; PACE = OPT.get("pace", 14)
afree = {4: 81, 5: 86, 6: 97, 7: 102, 8: 113}
if NE == 5: rdg[4] = afree[4]; ev.append((rdg[4], "r", 4))
for ks in range(NE, 14):
    if free: r, nd = free.pop(0)
    else: r, nd = W2S[ks - 5], ("R2", ks - 5); gd = max(gd, rdg[ks - 5] + 8)
    W2S[ks] = r; ev.append((gd, "d", ks, nd))
    if ks < 9: rdg[ks] = max(gd + 44, afree.get(ks, 0)); ev.append((rdg[ks], "r", ks))
    gd += PACE
for e in sorted(ev, key=lambda e: e[0]):
    g, kind, ks = e[:3]
    if kind == "d":
        p = w2_pre(ks); spread_dma(Fl, g, [w2_m0(W2S[ks])] + p[:1], dma4("s60"), p[1:], ("W2", ks), [e[3]], 3)
    else:
        for k, t in enumerate(w2_reads(ks)): Fl.append(F(t, g + k // 2, g + (k + 1) // 2, "w2r", tag=("R2", ks), need=[("W2", ks)] if k == 0 else None))
CAP = {}
for q in range(3):
    g = 64 * (q + 1) + 4; a_, b_, c_, d_, e_, st_ = gelu_stages(q)
    Fl.append(F("\n".join(a_), g, g, "gelu"))
    for i, t in enumerate(b_): Fl.append(F(t, g + 1 + i, g + 1 + i, "gelu"))
    Fl.append(F("\n".join(c_), g + 18, g + 18, "gelu"))
    for i, t in enumerate(d_): Fl.append(F(t, g + 19 + i, g + 19 + i, "gelu"))
    Fl.append(F("\n".join(e_), g + 36, g + 36, "gelu"))
    for i, t in enumerate(st_): Fl.append(F(t, g + 37 + 2 * i, g + 37 + 2 * i, "gelu", tag=("h1", q)))
    for k in range(g + 1, g + 35): CAP[k] = 3
def h_check(Q):
    o = []
    for k in range(7):
        for c2 in range(2):
            f, r = hB(Q, k, c2)
            if f == "a": o.append(f"v_accvgpr_read_b32 v29, a{r}"); r = 29
            o.append(f"v_mov_b32 v28, v{r}" if not (k or c2) else f"v_max_u32 v28, v28, v{r}")
    return o
def check_F(Q, e, l, chain): return [F(t, e, l, chain, need=[("H", Q)] if i == 0 else None) for i, t in enumerate(h_check(Q))]
def spread_loads(Fl, ops, g0, step, chain="hl", tag=None):
    g = g0
    for t in ops:
        Fl.append(F(t, g - 2, g + 1, chain, tag=tag if t.startswith("buffer") else None))
        if t.startswith("buffer"): g += step
    return g
def have(Q):
    c = "v_cmp_eq_u32 vcc, -1, v28"
    A(c); A(f"s_cbranch_vccz L_h{Q}_x")
    keep = (list(st.vm), list(st.lg), list(st.hist))
    spin(f"L_h{Q}", ["s_sleep 4"] + [x for t in h_loads(Q, "s9", "s13") for x in t.split("\n")], "\n".join(h_check(Q)) + "\n" + c)
    st.vm, st.lg, st.hist = keep
    stamp(f"mchk{Q}")
spread_loads(Fl, h_loads(0), OPT.get("gl0", 176), 4, "ck", ("H", 0))
hl = h_loads(1); n1a = 5 * OPT.get("n1a", 3)
spread_loads(Fl, hl[:n1a], 234, 4, "ck", ("H", 1)); hl = hl[n1a:]
Fl += check_F(0, 241, 255, "hc")
for q in range(1, 4): Fl += stampF(f"mq{q}", 64 * q)
if OPT.get("abl"):
    ab = OPT["abl"]
    def drop(f):
        if isinstance(f.ins, tuple): return False
        t = f.ins.txt
        return (ab & 1 and t.endswith("lds")) or (ab & 2 and t.startswith("buffer_store_dwordx4")) or (ab & 4 and f.chain == "ck" and "dwordx4" in t) or (ab & 8 and f.chain == "w2r")
    Fl = [f for f in Fl if not drop(f)]
schedule(st, M, Fl, reserve=RES, verbose="G1", mem2=("rd", "dma", "w2r", "ck", "lw"), minback=0, capx=CAP)
stamp("G1")
a_, b_, c_, d_, e_, st_ = gelu_stages(3)
for i, t in enumerate(a_ + b_ + c_ + d_ + e_):
    A(t)
    if i % 9 == 8:
        while hl:
            x = hl.pop(0)
            if x.startswith("buffer"): st.add(x, tag=("H", 1)); break
            A(x)
for t in st_: A(t)
stamp("mgelu3")
have(0)
stamp("gelu")

def facc(tp, tile, cb): return 96 + (tp * 8 + tile * 4 + cb) * 4
def g2(Q):
    r = []
    for ch in ([0, 1], [2, 3], [4, 5, 6]):
        for tp in range(2):
            for tile in range(2):
                for c2 in range(2):
                    for k in ch:
                        fa, ra = w2reg((Q >> 1) * 7 + k, tp, tile); fb, rb = hB(Q, k, c2)
                        r.append(mf(facc(tp, tile, (Q & 1) * 2 + c2), ra, rb, "0" if (Q < 2 and k == 0) else None, "v", fa, fb))
    return r
Fl = []
for i in range(4):
    for k, t in enumerate(w2_reads(9 + i)): Fl.append(F(t, 8 * i + k, 8 * i + k + 1, "rd", need=[("W2", 9 + i)] if k == 0 else None))
g = spread_loads(Fl, hl, 0, 3, tag=("H", 1))
spread_loads(Fl, h_loads(2), max(g, OPT.get("gl2", 10)), OPT.get("st2", 3), tag=("H", 2))
Fl += check_F(1, 41, 55, "hc")
schedule(st, g2(0), Fl)
stamp("mg20")
have(1)
with Capture() as cp:
    A(f"""
v_and_b32 v2, 15, v1
v_lshlrev_b32 v2, 10, v2
v_lshrrev_b32 v3, 4, v1
v_lshl_add_u32 v2, v3, 4, v2
v_lshlrev_b32 v4, 4, v3
s_lshl_b32 s92, s58, 16
s_lshl_b32 s60, s35, 14
s_add_u32 s92, s92, s60
s_lshl_b32 s95, s59, 7
s_add_u32 s92, s92, s95
s_add_u32 s60, s92, {WS_X1}
""")
    srd(52, 22, 1024)
Fl = cp.fillers(0, 30, "su", ren=False)
Fl += [F(t, 32 + k, 33 + k, "rd", need=[("W2", 13)] if k == 0 else None) for k, t in enumerate(w2_reads(13))]
spread_loads(Fl, h_loads(3), OPT.get("gl3", 8), OPT.get("st2", 3), tag=("H", 3))
Fl += check_F(2, 46, 55, "hc")
schedule(st, g2(1), Fl)
stamp("G2a")
have(2)
Fl = []
spread_loads(Fl, ["buffer_load_dwordx4 v[240:243], v2, s[48:51], s60 offen sc1", "buffer_load_dwordx4 v[244:247], v2, s[48:51], s60 offen offset:64 sc1",
             "buffer_load_dwordx4 v[248:251], v4, s[52:55], s95 offen", "buffer_load_dwordx4 v[252:255], v4, s[52:55], s95 offen offset:64"], 2, 6)
Fl += check_F(3, 41, 55, "hc")
schedule(st, g2(2), Fl)
stamp("mg22")
have(3)
Fl = []
n2 = 0
for t in [f"s_lshl_b32 s3, s35, 12", "v_add_u32 v5, s3, v16"]: Fl.append(F(t, 0, 0, "fw"))
Fl.append(F(("barrier", []), n2 + 1, n2 + 1, "fw"))
def fwrite(cb, tp, tile): return f"ds_write_b128 v5, v[{facc(tp,tile,cb)}:{facc(tp,tile,cb)+3}] offset:{cb*16384 + (tp*2+tile)*1024}"
i = 0
for cb in range(2):
    for tp in range(2):
        for tile in range(2): Fl.append(F(fwrite(cb, tp, tile), n2 + 8 + 5 * i, n2 + 9 + 5 * i, "fw")); i += 1
schedule(st, g2(3), Fl)
stamp("G2")
A(f"""
s_lshl_b32 s60, s35, 14
v_add_u32 v6, s60, v16
v_lshlrev_b32 v7, 5, v3
s_lshl_b32 s60, s59, 8
s_add_u32 s60, s60, {MODV + 3*2048}
v_add_u32 v7, s60, v7
""")
for cb in range(2, 4):
    for tp in range(2):
        for tile in range(2): A(fwrite(cb, tp, tile))
for tp in range(2):
    for q in range(2): A(f"ds_read_b128 v[{208+tp*8+4*q}:{211+tp*8+4*q}], v7 offset:{tp*128+q*16}")
for r in range(8):
    A(f"v_lshlrev_b32 v{32+2*r}, 16, v{240+r}\nv_and_b32 v{33+2*r}, 0xffff0000, v{240+r}\nv_lshlrev_b32 v{48+2*r}, 16, v{248+r}\nv_and_b32 v{49+2*r}, 0xffff0000, v{248+r}")
stamp("mwr")
A("s_waitcnt lgkmcnt(0)\ns_barrier")
stamp("mbar")
for src in range(4):
    for n in range(4): A(f"ds_read_b128 v[{96+src*16+n*4}:{99+src*16+n*4}], v6 offset:{src*4096+n*1024}")
for src in range(4):
    for r in range(8): A(f"v_pk_add_f32 v[{48+2*r}:{49+2*r}], v[{48+2*r}:{49+2*r}], v[{96+src*16+2*r}:{97+src*16+2*r}]")
for r in range(8): A(f"v_pk_fma_f32 v[{32+2*r}:{33+2*r}], v[{48+2*r}:{49+2*r}], v[{208+2*r}:{209+2*r}], v[{32+2*r}:{33+2*r}]")
for r in range(8): A(f"v_cvt_pk_bf16_f32 v{64+r}, v{32+2*r}, v{33+2*r}")
srd(52, 28, 2048 * 1024)
A("buffer_store_dwordx4 v[64:67], v2, s[52:55], s92 offen\nbuffer_store_dwordx4 v[68:71], v2, s[52:55], s92 offen offset:64")
if OPT["stamps"]:
    stamp("end")
    A("s_memrealtime s[96:97]\ns_waitcnt lgkmcnt(0)\ns_cmp_lg_u32 s35, " + str(OPT.get("sw", 0)) + "\ns_cbranch_scc1 L_end\ns_mov_b64 exec, 1")
    A(f"s_lshl_b32 s60, s2, 9\ns_add_u32 s60, s60, {WS_STAMP}\nv_mov_b32 v6, 0")
    A(f"s_mov_b32 s{64+stamp_n[0]-1}, s90")
    lst = [64 + n for n in range(stamp_n[0])] + [98, 96, 15]
    A("v_mov_b32 v3, 0")
    for n, s in enumerate(lst): A(f"v_mov_b32 v2, s{s}\nbuffer_store_dwordx2 v[2:3], v6, s[48:51], s60 offen offset:{n*8}\ns_nop 1")
    if OPT["dbg"] >= 0:
        srd(52, 30, 256)
        A(f"s_cmp_lg_u32 s2, {OPT['dbg']}\ns_cbranch_scc1 L_end")
        sel = [i for i in range(1, stamp_n[0]) if stamp_names[i] not in ("norm", "gelu", "G2a")][:14]
        for n, k in enumerate(sel): A(f"s_sub_u32 s60, s{64+k}, s64\nv_mov_b32 v2, s60\nbuffer_store_dword v2, v6, s[52:55], 0 offen offset:{4+n*4}\ns_nop 1")
        A("s_sub_u32 s60, s96, s98\nv_mov_b32 v2, s60\nbuffer_store_dword v2, v6, s[52:55], 0 offen offset:60")
        print("dbg order:", [stamp_names[k] for k in sel], "realtime")
    open(os.path.splitext(sys.argv[1])[0] + ".names", "w").write(" ".join(stamp_names))
    print("stamps:", len(lst))
A("s_endpgm")
st.reset(); st.newphase()
A(f"""
L_redo:
s_waitcnt vmcnt(0) lgkmcnt(0)
s_nop 15
s_mov_b32 s95, 1
s_mov_b32 s3, 8
s_barrier
L_redo_c:
""")
pre, d, post = k_ops(0)
for t in pre + d + post: A(t)
A("s_waitcnt vmcnt(0)\ns_barrier")
for kt in range(4):
    for sx in range(4): A(f"ds_read_b128 a[{STG+4*sx}:{STG+4*sx+3}], v{17+sx} offset:{KA + kt*1024}")
    for cb in range(4):
        for sx in range(4): A(mf(S(0, cb), STG + 4 * sx, qop(sx, cb), None if sx else "0", "v", "a", "v"))
    for cb in range(4): A(f"v_max3_f32 v{FLOOR[cb]}, v{FLOOR[cb]}, v{S(0,cb)}, v{S(0,cb)+1}\nv_max3_f32 v{FLOOR[cb]}, v{FLOOR[cb]}, v{S(0,cb)+2}, v{S(0,cb)+3}")
A("s_barrier\ns_sub_u32 s3, s3, 1\ns_cmp_lg_u32 s3, 0\ns_cbranch_scc1 L_redo_c")
for t in attn_setup:
    if t.split()[1] not in ("s36,", "s37,", "s38,"): A(t)
for ops in (k_ops(0), k_ops(1), v_ops(0)):
    for t in ops[0] + ops[1] + ops[2]: A(t)
A("s_waitcnt vmcnt(0)\ns_barrier")
for sx in range(4): A(f"ds_read_b128 a[{STG+sx*4}:{STG+sx*4+3}], v{17+sx} offset:{KA}")
A("s_waitcnt lgkmcnt(0)\ns_branch L_attn")
st.raw(f"""L_end:
    s_endpgm
L_codeend:
.section .rodata,"a"
.p2align 6
.amdhsa_kernel {NAME}_kernel
  .amdhsa_next_free_vgpr 512
  .amdhsa_next_free_sgpr 102
  .amdhsa_accum_offset 256
  .amdhsa_group_segment_fixed_size 0
  .amdhsa_kernarg_size 120
  .amdhsa_user_sgpr_count 2
  .amdhsa_user_sgpr_kernarg_segment_ptr 1
  .amdhsa_system_sgpr_workgroup_id_x 1
.end_amdhsa_kernel""")
def with_stubs(txt):
    import subprocess, tempfile
    lines = txt.split("\n")
    isins = lambda l: l.startswith("    ") and l.strip() and not l.strip().startswith((".", ";"))
    NS = 24
    tail = "".join(f"L_stub{k}:\n" for k in range(NS))
    with tempfile.TemporaryDirectory() as d:
        open(d + "/a.s", "w").write(txt.replace("L_codeend:", tail + "L_codeend:").replace("@", ""))
        subprocess.run(["clang", "-x", "assembler", "-target", "amdgcn-amd-amdhsa", "-mcpu=gfx950", "-c", d + "/a.s", "-o", d + "/a.o"], check=True)
        dis = subprocess.run(["llvm-objdump", "-d", "--mcpu=gfx950", d + "/a.o"], capture_output=True, text=True).stdout
    enc = [len(m.group(1).split()) * 4 for m in re.finditer(r"// [0-9A-F]+: ((?:[0-9A-F]{8} ?)+)", dis)]
    j = lines.index("L_join:"); n_after = sum(map(isins, lines[j:]))
    sizes = enc[len(enc) - n_after:]
    out = lines[:j + 1]; pos = 0; k = 1; i = 0; off = False
    for l in lines[j + 1:]:
        if isins(l):
            if pos >= k * 4096 and l.strip() != "s_endpgm" and not off:
                out += [f"L_stub{k}:", f"    s_cbranch_execz L_stub{k+4}"]; pos += 4; k += 1
            pos += sizes[i]; i += 1
            if l.strip() == "s_mov_b64 exec, 0": off = True
            if l.strip() == "s_mov_b64 exec, -1": off = False
        if l == "L_codeend:": out += [f"L_stub{q}:" for q in range(k, NS)] + ["    s_setpc_b64 s[100:101]"]
        out.append(re.sub(r"@(\d)", lambda m: str(k + int(m.group(1))), l))
    print("code after join:", pos, "stubs", k - 1)
    return "\n".join(out)
open(sys.argv[1], "w").write(with_stubs(st.text()) if OPT.get("warm", 1) else st.text())
print("waits", st.nwait, "nop states", st.nnop)
```

```python
import sys, os, re, struct
sys.path.insert(0, os.path.join(os.path.dirname(os.path.abspath(__file__)), "tools"))
from asmgen import *
NAME = "adaLN_cond__sliding_block_cached__mixer_channel_mlp__prompt"
OPT = dict(stamps=0, gx=2, nt_wq=0, nt_wo=0, nt_kv=0, nt_mod=1, nt_x=0, pf_w1=1, pf_w2=2, pnt=1, early=1, dbg=-1)
for a in sys.argv[2:]:
    k, v = a.split("="); OPT[k] = int(v)
def nt(k): return " nt" if OPT["nt_" + k] else ""

KA, KB, VA, VB, XR = 0, 16512, 32896, 49408, 65920
HIMG = KB
RING0, RINGSZ, UNIT = 82304, 16512, 4128
MISC = 148352
MODV = MISC
SILU = MISC + 8192
RED = MISC + 9216
LGO = MISC + 12800
LDS_BYTES = 163840
WS_MOD, WS_F2, WS_F3, WS_F1 = 0x1000, 0x20000, 0x40000, 0x100000
WS_Y, WS_X1, WS_H1, WS_PART = 0x200000, 0x400000, 0x600000, 0x1000000
WS_STAMP = 0xF000000
OOB = 0x10000000
SCALE = 1.4426950408889634 / (128 ** 0.5)
def f2u(x): return struct.unpack("<I", struct.pack("<f", x))[0]
SPIN = 1 << 18

st = Stream()
A = st.A
stamp_n = [0]; stamp_names = []
def stamp(name=""):
    if not OPT["stamps"]: return
    if OPT["stamps"] == 7:
        if not (name in ("start", "norm", "O", "f1st", "end") or name.startswith("u")): return
    elif name.startswith("u"): return
    if OPT["stamps"] == 5:
        if not (name in ("start", "Yin", "G1", "gelu", "G2a", "G2", "end") or name.startswith("m")) or name == "mod": return
    elif OPT["stamps"] == 6:
        if not (name in ("start", "O", "f1st", "_f2q", "f1ok", "ysent", "f2ok", "Yin", "end") or name.startswith("e")): return
    elif name[0] in "me" and name not in ("mod", "end"): return
    if OPT["stamps"] not in (4, 6) and name.startswith("_"): return
    if OPT["stamps"] == 4 and not (name in ("start", "x", "mod", "h", "Q", "end") or name.startswith("_")): return
    if OPT["stamps"] == 3 and not (name in ("start", "h", "Q", "end") or name.startswith("q")): return
    if OPT["stamps"] == 2 and name.startswith("q"): return
    if OPT["stamps"] == 2 and name in ("x", "mod", "f1st", "f1ok", "ysent", "f2ok", "Yin", "gelu", "G2a", "G2"): return
    n = stamp_n[0]; stamp_n[0] += 1; stamp_names.append(name)
    assert n < 26
    if n: st.add(f"s_mov_b32 s{64+n-1}, s90")
    st.add("s_memrealtime s[90:91]" if OPT.get("rt") else "s_memtime s[90:91]")
def stampF(name, g):
    return [F(("call", lambda: stamp(name)), g, g)] if OPT["stamps"] > 1 else []
def dummyI(t):
    i = I(t); i.wr = []; return i
def dummy(t): st.add(dummyI(t))
def dummyF(t, e, l, chain):
    f = F(t, e, l, chain); f.ins.wr = []; return f
def srd(base, ptr, size):
    A(f"s_mov_b32 s{base}, s{ptr}\ns_mov_b32 s{base+1}, s{ptr+1}\ns_mov_b32 s{base+2}, {size}\ns_mov_b32 s{base+3}, 0x20000")
def mf(d, a, b, c=None, dt="v", at="a", bt="a"):
    cs = f"{dt}[{d}:{d+3}]" if c is None else (c if isinstance(c, str) else f"{dt}[{c}:{c+3}]")
    return f"v_mfma_f32_16x16x32_bf16 {dt}[{d}:{d+3}], {at}[{a}:{a+3}], {bt}[{b}:{b+3}], {cs}"
STG = 192
def stg(u, tile, s): return STG + (u & 1) * 16 + tile * 8 + s * 4
def p16_reads(dst, off, addr="v10"):
    r = []
    for tile in range(2):
        for s in range(2):
            f, d = dst(tile, s)
            for hf in range(2): r.append(f"ds_read_b64_tr_b16 {f}[{d+2*hf}:{d+2*hf+1}], {addr} offset:{off + s*2064 + hf*256 + tile*8}")
    return r
def p8_reads(dst, off, addr="v9"):
    r = []
    for tp in range(2):
        for tile in range(2):
            f, d = dst(tp, tile)
            for hf in range(2): r.append(f"ds_read_b64_tr_b16 {f}[{d+2*hf}:{d+2*hf+1}], {addr} offset:{off + tp*512 + hf*256 + tile*8}")
    return r
def voffs16(stride):
    A(f"""
    v_lshrrev_b32 v2, 5, v1
    v_lshlrev_b32 v2, 4, v2
    v_bfe_u32 v3, v1, 2, 3
    v_add_u32 v2, v2, v3
    v_mul_u32_u24 v2, {stride}, v2
    v_and_b32 v3, 3, v1
    v_lshl_add_u32 v11, v3, 4, v2
    v_add_u32 v12, {8*stride-1032}, v11
    v_add_u32 v13, {32*stride-2064}, v11
    v_add_u32 v14, {40*stride-3096}, v11
    """)
def voffs8(stride):
    A(f"""
    v_bfe_u32 v2, v1, 2, 3
    v_mul_u32_u24 v2, {stride}, v2
    v_lshrrev_b32 v3, 5, v1
    v_lshl_add_u32 v2, v3, 6, v2
    v_and_b32 v3, 3, v1
    v_lshl_add_u32 v11, v3, 4, v2
    v_add_u32 v12, {8*stride-1032}, v11
    v_add_u32 v13, {16*stride-2064}, v11
    v_add_u32 v14, {24*stride-3096}, v11
    """)
def dma4(soff, fl=""): return [f"buffer_load_dwordx4 v{11+i}, s[36:39], {soff} offen offset:{i*1032}{fl} lds" for i in range(4)]
def chain_dma(Fl, g0, pre, dmas, tag, need, chain, late=3):
    if OPT.get("nodma") and tag[0] == "W": dmas = []
    for t in pre: Fl.append(F(t, g0 - 5, g0 + late, chain))
    for i, t in enumerate(dmas): Fl.append(F(t, g0 + i // 2, g0 + late + i, chain, tag=tag, need=need if i == 0 else None))
def spread_dma(Fl, g0, pre, dmas, post, tag, need, step):
    if OPT.get("nodma"): dmas = []
    for t in pre: Fl.append(F(t, g0 - 3, g0, "dma"))
    for i, t in enumerate(dmas): Fl.append(F(t, g0 + i * step, g0 + i * step + 1, "dma", tag=tag, need=need if i == 0 else None))
    for t in post: Fl.append(F(t, g0, g0 + 3 * step + 2, "dma"))
class Capture:
    def __enter__(s):
        global A
        s.lines = []; s.old = A
        def cap(text): s.lines.extend(l.strip() for l in text.split("\n") if l.strip() and not l.strip().startswith(";"))
        A = cap; return s
    def __exit__(s, *a):
        global A
        A = s.old
    def fillers(s, e, l, chain, ren=True):
        out = []
        for t in s.lines:
            if ren: t = re.sub(r"\bs60\b", "s100", re.sub(r"\bs61\b", "s101", t))
            if t.split()[0] in ("s_cselect_b32", "s_addc_u32", "v_cndmask_b32"): out[-1] += "\n" + t
            else: out.append(t)
        n = len(out)
        return [F(t, e, e + (l - e) * (i + 1) // n, chain) for i, t in enumerate(out)]
def spin(label, load, cond):
    A(f"s_mov_b32 s3, {SPIN}")
    st.raw(f"{label}:")
    for t in load: st.add(t)
    A("s_sub_u32 s3, s3, 1\ns_waitcnt vmcnt(0)")
    A(cond)
    A(f"s_cmp_eq_u32 s3, 0\ns_cbranch_scc1 {label}_x\ns_cbranch_vccnz {label}")
    st.raw(f"{label}_x:")

st.raw(f"""; adaLN + GQA window attention + channel MLP, one persistent launch, 256 workgroups (one per CU)
; @launch grid=(256,1,1) block=(256,1,1) lds={LDS_BYTES}
.amdgcn_target "amdgcn-amd-amdhsa--gfx950"
.text
.globl {NAME}_kernel
.p2align 8
.type {NAME}_kernel,@function
{NAME}_kernel:
L_start:""")
A("""
s_cmp_ge_u32 s2, 256
s_cbranch_scc1 L_end
s_load_dwordx16 s[4:19], s[0:1], 0
s_load_dwordx8 s[20:27], s[0:1], 64
s_load_dwordx4 s[28:31], s[0:1], 96
s_load_dwordx2 s[32:33], s[0:1], 112
""")
if OPT["stamps"]: A("s_memrealtime s[98:99]")
stamp("start")
GX = OPT["gx"]; lg = {1: 0, 2: 1, 4: 2}[GX]
A(f"""
v_and_b32 v1, 63, v0
v_lshrrev_b32 v2, 6, v0
s_and_b32 s96, s2, 7
s_lshr_b32 s97, s2, 3
v_readfirstlane_b32 s35, v2
s_and_b32 s56, s96, {8//GX - 1}
s_lshl_b32 s56, s56, {lg}
s_and_b32 s60, s97, {GX - 1}
s_add_u32 s56, s56, s60
s_lshr_b32 s57, s96, {3 - lg}
s_lshl_b32 s57, s57, {5 - lg}
s_lshr_b32 s61, s97, {lg}
s_add_u32 s57, s57, s61
s_lshl_b32 s60, s60, {3 - lg}
s_add_u32 s95, s57, s60
s_and_b32 s95, s95, {OPT.get("rotmask", 7)}
s_lshl_b32 s58, s96, 2
s_lshr_b32 s59, s97, 3
s_add_u32 s58, s58, s59
s_and_b32 s59, s97, 7
s_mul_i32 s63, s35, {RINGSZ}
s_add_u32 s63, s63, {RING0}
s_movk_i32 s101, 1023
v_lshlrev_b32 v16, 4, v1
v_lshrrev_b32 v2, 4, v1
v_and_b32 v5, 15, v1
v_mul_u32_u24 v3, 1032, v2
v_lshl_add_u32 v9, v5, 4, v3
v_add_u32 v9, s63, v9
v_and_b32 v3, 1, v2
v_mul_u32_u24 v3, 1032, v3
v_lshl_add_u32 v3, v5, 4, v3
v_lshrrev_b32 v4, 1, v2
v_lshl_add_u32 v10, v4, 9, v3
v_add_u32 v10, s63, v10
v_mul_u32_u24 v4, 2064, v4
v_add_u32 v21, v3, v4
v_add_u32 v21, {VA}, v21
s_lshl_b32 s60, s95, 7
v_lshl_add_u32 v3, v5, 4, s60
v_lshlrev_b32 v2, 10, v2
v_and_or_b32 v124, v3, s101, v2
v_add_u32 v3, 256, v3
v_and_or_b32 v125, v3, s101, v2
v_add_u32 v3, 256, v3
v_and_or_b32 v126, v3, s101, v2
v_add_u32 v3, 256, v3
v_and_or_b32 v127, v3, s101, v2
s_getpc_b64 s[92:93]
L_pc:
s_sub_u32 s92, s92, L_pc-L_start
s_subb_u32 s93, s93, 0
s_lshl_b32 s3, s97, 12
v_lshl_add_u32 v4, v0, 4, s3
v_min_u32 v4, L_codeend-L_start-16, v4
global_load_dwordx4 a[248:251], v4, s[92:93]
s_waitcnt lgkmcnt(0)
s_load_dword s34, s[32:33], 0
""")
st.vm = []
stamp("_karg")
srd(48, 32, 0x10000000)
KS = OPT.get("ks", 4)
WS_MOD2 = WS_MOD + 4096 * KS
def silu_to_lds(creg, t=2):
    A(re.sub(r"\bv([2-5])\b", lambda m: f"v{int(m.group(1)) - 2 + t}", f"""
    v_lshlrev_b32 v2, 16, v{creg}
    v_and_b32 v3, 0xffff0000, v{creg}
    v_mul_f32 v4, {f2u(-1.4426950408889634)}, v2
    v_mul_f32 v5, {f2u(-1.4426950408889634)}, v3
    v_exp_f32 v4, v4
    v_exp_f32 v5, v5
    v_add_f32 v4, 1.0, v4
    v_add_f32 v5, 1.0, v5
    v_rcp_f32 v4, v4
    v_rcp_f32 v5, v5
    v_mul_f32 v2, v2, v4
    v_mul_f32 v3, v3, v5
    v_cvt_pk_bf16_f32 v2, v2, v3
    v_lshlrev_b32 v3, 2, v0
    v_add_u32 v3, {SILU}, v3
    ds_write_b32 v3, v2
    """))
def publish(ntile, src, lab, dst, tag="s34", tmp=2, stmp="s60"):
    W = 64 * ntile
    A(f"""
    v_lshrrev_b32 v{tmp}, 4, v1
    v_lshlrev_b32 v{tmp}, 5, v{tmp}
    s_mul_i32 {stmp}, s35, {W}
    s_add_u32 {stmp}, {stmp}, {RED}
    v_add_u32 v{tmp}, {stmp}, v{tmp}
    s_mov_b32 exec_lo, 0x00010001
    s_mov_b32 exec_hi, 0x00010001
    """)
    for t in range(ntile): A(f"ds_write_b128 v{tmp}, v[{src+4*t}:{src+4*t+3}] offset:{(t>>1)*128 + (t&1)*16}")
    A(f"""
    s_mov_b64 exec, -1
    s_waitcnt lgkmcnt(0)
    s_barrier
    s_cmp_lg_u32 s35, 0
    s_cbranch_scc1 {lab}
    v_lshlrev_b32 v{tmp}, 3, v1
    v_add_u32 v{tmp+1}, {RED}, v{tmp}
    s_mov_b32 exec_lo, {(1 << (8*ntile)) - 1}
    s_mov_b32 exec_hi, 0
    """)
    for i in range(4): A(f"ds_read_b64 v[{src+2*i}:{src+2*i+1}], v{tmp+1} offset:{i*W}")
    A(f"""
    v_pk_add_f32 v[{src}:{src+1}], v[{src}:{src+1}], v[{src+2}:{src+3}]
    v_pk_add_f32 v[{src+4}:{src+5}], v[{src+4}:{src+5}], v[{src+6}:{src+7}]
    v_pk_add_f32 v[{src}:{src+1}], v[{src}:{src+1}], v[{src+4}:{src+5}]
    v_cvt_pk_bf16_f32 v{src}, v{src}, v{src+1}
    v_mov_b32 v{src+1}, {tag}
    buffer_store_dwordx2 v[{src}:{src+1}], v{tmp}, s[48:51], {dst} offen sc1
    s_mov_b64 exec, -1
    """)
def xr(i, jj): return 32 + (jj * 4 + i) * 4
def x_loads(n0, n1):
    for n in range(n0, n1):
        jj, i = n >> 2, n & 3
        st.add(f"buffer_load_dwordx4 v[{xr(i,jj)}:{xr(i,jj)+3}], v{124+jj}, s[52:55], s{[62, 0, 1, 100][i]} offen{nt('x')}")
def x_setup():
    srd(52, 4, 2048 * 1024)
    A("s_lshl_b32 s62, s57, 16\ns_lshl_b32 s61, s35, 14\ns_add_u32 s62, s62, s61\ns_add_u32 s0, s62, 4096\ns_add_u32 s1, s62, 8192\ns_add_u32 s100, s62, 12288")
NSL = 4 // KS
PX = OPT.get("px", 2)
A(f"s_cmp_lt_u32 s96, {PX}\ns_cselect_b32 s14, s97, 99\ns_cmp_lt_u32 s14, {16*KS//PX}\ns_cbranch_scc1 L_prod")
x_setup(); x_loads(0, 8)
A("s_branch L_join")
join_vm = list(st.vm)
A("L_prod:"); st.vm = []; st.hist = []; st.smem = True; st.smem_wr = {("s", 34)}
srd(52, 24, 1024); srd(36, 26, 512 * 6144)
A("v_lshlrev_b32 v2, 2, v0\nbuffer_load_dword v31, v2, s[52:55], 0 offen")
voffs8(6144)
A(f"""
s_mul_i32 s14, s97, {PX}
s_add_u32 s14, s14, s96
s_lshr_b32 s15, s14, 4
s_and_b32 s14, s14, 15
s_lshl_b32 s3, s15, 2
s_add_u32 s3, s3, s35
s_mul_i32 s60, s3, {32*NSL*6144}
s_lshl_b32 s61, s14, 7
s_add_u32 s60, s60, s61
""")
for k in range(NSL):
    A(f"s_add_u32 m0, s63, {(2+k)*UNIT}")
    for t in dma4("s60", nt("mod")): st.add(t, tag="wm")
    if k + 1 < NSL: A(f"s_add_u32 s60, s60, {32*6144}")
x_setup(); x_loads(0, 4)
silu_to_lds(31)
A(f"""
v_lshrrev_b32 v2, 4, v1
v_lshlrev_b32 v2, 4, v2
s_mul_i32 s60, s3, {64*NSL}
s_add_u32 s60, s60, {SILU}
v_add_u32 v2, s60, v2
s_waitcnt lgkmcnt(0)
s_barrier
""")
for k in range(NSL): A(f"ds_read_b128 a[{4*k}:{4*k+3}], v2 offset:{k*64}")
st.need("wm")
for k in range(NSL):
    for t in p8_reads(lambda tp, tile: ("a", 16 + k * 16 + tp * 8 + tile * 4), (2 + k) * UNIT): A(t)
x_loads(4, 6)
for k in range(NSL):
    for t in range(4): A(mf(96 + 4 * t, 16 + k * 16 + 4 * t, 4 * k, "0" if k == 0 else None))
x_loads(6, 8)
A(f"s_lshl_b32 s3, s15, 12\ns_lshl_b32 s14, s14, 8\ns_add_u32 s3, s3, s14\ns_add_u32 s3, s3, {WS_MOD}\ns_mul_i32 s15, s34, 0x9E3779B1\ns_add_u32 s15, s15, 0x7F4A7C15")
publish(4, 96, "L_prod_x", "s3", "s15")
A("L_prod_x:"); st.lg = []; st.hist = []
A("s_branch L_join"); st.raw(".p2align 12")
A("L_join:"); st.vm = join_vm; st.lg = []; st.hist = []; st.smem = True; st.smem_wr = {("s", 34)}
st.newphase(); stamp("_prod")

QST = 8192
A(f"""
s_lshl_b32 s60, s56, 10
s_lshl_b32 s61, s35, 8
s_add_u32 s60, s60, s61
s_add_u32 s36, s10, s60
s_addc_u32 s37, s11, 0
s_sub_u32 s38, {512*8192}, s60
s_mov_b32 s39, 0x20000
s_bfe_u32 s15, s57, 0x10003
s_lshl_b32 s14, s15, 7
s_lshl_b32 s92, s95, 19
s_add_u32 s94, s92, s14
s_xor_b32 s14, s14, 128
s_add_u32 s92, s92, s14
s_lshl_b32 s15, s15, 1
s_mul_i32 s93, s35, {UNIT}
s_sub_u32 s60, s93, s63
v_add_u32 v31, s60, v9
""")
voffs8(QST)
def wq_pre(n):
    r = n % 5; b = "s92" if n & 2 else "s94"
    p = [f"s_add_u32 m0, s63, {r*UNIT}" if r < 4 else "s_mov_b32 m0, s93", f"s_add_u32 s60, {b}, {(n&1)*32*QST}"]
    return p, ([f"s_add_u32 {b}, {b}, {64*QST}", f"s_and_b32 {b}, {b}, {512*QST-1}"] if n & 1 else [])
def wq_ops(n):
    p, q = wq_pre(n); return [(t, None) for t in p] + [(t, ("W", n)) for t in dma4("s60", nt("wq"))] + [(t, None) for t in q]
A(f"""
v_lshrrev_b32 v2, 4, v1
v_and_b32 v5, 15, v1
v_bfe_u32 v6, v1, 2, 2
v_lshlrev_b32 v6, 1, v6
s_movk_i32 s60, 0x78
v_lshrrev_b32 v6, v6, s60
v_and_b32 v6, 3, v6
v_xor_b32 v7, v6, v2
v_lshlrev_b32 v7, 4, v7
v_lshl_add_u32 v15, v5, 6, v7
v_add_u32 v15, {HIMG}, v15
v_bfe_u32 v4, v1, 2, 2
v_lshl_add_u32 v7, v4, 12, v7
v_and_b32 v4, 3, v1
v_lshl_add_u32 v7, v4, 8, v7
""")
A("v_xor_b32 v4, s15, v4")
for s in range(4): A(f"v_xor_b32 v5, {s}, v4\nv_lshl_add_u32 v{17+s}, v5, 6, v7")
A(f"""
s_lshl_b32 s60, s35, 1
s_lshr_b32 s60, 0x78, s60
s_and_b32 s60, s60, 3
v_lshlrev_b32 v3, 2, v2
v_xor_b32 v3, s60, v3
v_and_b32 v4, 15, v1
v_xor_b32 v3, v3, v4
v_lshlrev_b32 v3, 4, v3
v_lshl_add_u32 v3, v2, 8, v3
s_lshl_b32 s60, s35, 10
v_add_u32 v22, s60, v3
v_add_u32 v23, 3072, v22
v_add_u32 v24, 6144, v22
v_add_u32 v25, 9216, v22
v_bfe_u32 v3, v1, 2, 2
v_lshlrev_b32 v3, 8, v3
v_lshl_add_u32 v3, v2, 6, v3
v_and_b32 v4, 3, v1
v_lshl_add_u32 v3, v4, 4, v3
s_lshl_b32 s60, s35, 12
s_add_u32 s60, s60, 64
v_add_u32 v26, s60, v3
v_subrev_u32 v27, 8, v26
v_subrev_u32 v28, 16, v26
v_subrev_u32 v29, 24, v26
v_bfe_u32 v3, v1, 2, 1
v_xor_b32 v3, v3, v2
v_lshlrev_b32 v3, 6, v3
v_bfe_u32 v4, v1, 2, 2
v_lshl_add_u32 v3, v4, 12, v3
s_lshl_b32 s60, s35, 10
s_add_u32 s60, s60, {HIMG}
v_add_u32 v3, s60, v3
v_and_b32 v4, 3, v1
v_lshl_add_u32 v120, v4, 4, v3
v_xor_b32 v121, 32, v120
v_xor_b32 v122, 48, v120
v_xor_b32 v123, 16, v120
v_subrev_u32 v8, {HIMG}, v15
v_xor_b32 v8, 64, v8
v_add_u32 v8, {HIMG}, v8
""")
A(f"""
s_lshl_b32 s60, s56, 19
s_add_u32 s60, s60, {1536*256}
s_add_u32 s40, s6, s60
s_addc_u32 s41, s7, 0
s_mov_b32 s42, {512*256}
s_mov_b32 s43, 0x20000
s_sub_u32 s60, s60, 64
s_add_u32 s44, s8, s60
s_addc_u32 s45, s9, 0
s_mov_b32 s46, {512*256+64}
s_mov_b32 s47, 0x20000
s_lshl_b32 s6, s35, 12
s_mul_i32 s7, s35, 4128
s_add_u32 s7, s7, {VA}
s_lshl_b32 s8, s95, 14
s_mov_b32 s9, s8
""")
def k_ops(c): return ([f"s_add_u32 m0, s6, {KA if c%2==0 else KB}"], [f"buffer_load_dwordx4 v{22+i}, s[40:43], s8 offen offset:{i*1024}{nt('kv')} lds" for i in range(4)], ["s_add_u32 s8, s8, 16384", "s_and_b32 s8, s8, 0x1ffff"])
def v_ops(c): return ([f"s_add_u32 m0, s7, {(c&1)*16512}"], [f"buffer_load_dwordx4 v{26+i}, s[44:47], s9 offen offset:{i*1032}{nt('kv')} lds" for i in range(4)], ["s_add_u32 s9, s9, 16384", "s_and_b32 s9, s9, 0x1ffff"])
def kv_chain(Fl, g0, ops, tag, step=0):
    if step: spread_dma(Fl, g0, ops[0], ops[1], ops[2], tag, None, step); return
    chain_dma(Fl, g0, ops[0], ops[1], tag, None, "dma")
    for t in ops[2]: Fl.append(F(t, g0 + 4, g0 + 10, "dma"))
x_loads(8, 16)
def warm(lab):
    if not OPT.get("warm", 1): return
    t = "    s_mov_b64 exec, 0\n"
    for w in range(4):
        if w < 3: t += f"    s_cmp_eq_u32 s35, {w}\n    s_cbranch_scc0 {lab}_{w}\n"
        t += f"    s_call_b64 s[100:101], L_stub@{w}\n"
        if w < 3: t += f"    s_branch {lab}_ret\n{lab}_{w}:\n"
    st.raw(t + f"{lab}_ret:\n    s_mov_b64 exec, -1")
A("s_waitcnt vmcnt(12)")
warm("L_w1")

for i in range(4): A(f"v_mov_b32 v{112+2*i}, 0\nv_mov_b32 v{104+2*i}, 0")
A("v_mov_b32 v7, 0x3f803f80")
stamp("_issued")
def trickle(n=1):
    while pend and n:
        t, tag = pend.pop(0); st.add(t, tag=tag)
        if t.startswith("buffer") or t.startswith("global"): n -= 1
A(f"v_lshlrev_b32 v30, 4, v0\nv_add_u32 v30, {WS_MOD}, v30")
MC = [96, 100, 2 * 128 - 8, 2 * 128 - 4]
mchk = [f"buffer_load_dwordx4 a[{4*k}:{4*k+3}], v30, s[48:51], {['0', 's10', 's11', 's14'][k]} offen sc1" for k in range(KS)]
for k in range(1, KS): A(f"s_mov_b32 {['0', 's10', 's11', 's14'][k]}, {4096*k}")
for n in range(16):
    jj, i = n >> 2, n & 3
    for e in range(4): A(f"v_dot2c_f32_bf16 v{112+2*i}, v{xr(i,jj)+e}, v7\nv_dot2c_f32_bf16 v{104+2*i}, v{xr(i,jj)+e}, v{xr(i,jj)+e}")
    if n == 0: stamp("_x0")
stamp("x")
RC = OPT.get("rc", -1); W0L = OPT.get("w0l", 0)
if RC < 0:
    for t in mchk: A(t)
pend = wq_ops(0) + wq_ops(1)
if not W0L: trickle(4)
for d in ("quad_perm:[1,0,3,2]", "quad_perm:[2,3,0,1]", "row_ror:4", "row_ror:8"):
    for i in range(4): A(f"v_add_f32_dpp v{112+2*i}, v{112+2*i}, v{112+2*i} {d} row_mask:0xf bank_mask:0xf\nv_add_f32_dpp v{104+2*i}, v{104+2*i}, v{104+2*i} {d} row_mask:0xf bank_mask:0xf")
for op in ["v_mul_f32 v{m}, {c512}, v{r}", "v_mul_f32 v{q}, {c512}, v{q}", "v_fma_f32 v{q}, -v{m}, v{m}, v{q}", "v_max_f32 v{q}, 0, v{q}", "v_add_f32 v{q}, {eps}, v{q}",
           "v_rsq_f32 v{r}, v{q}", "v_mul_f32_e64 v{q}, -v{m}, v{r}"]:
    for i in range(4): A(op.format(m=113 + 2 * i, r=112 + 2 * i, q=104 + 2 * i, c512=f2u(1 / 512), eps=f2u(1e-5)))
def normalise(r0, r1):
    for r in range(r0, r1):
        i = (r >> 2) & 3
        A(f"v_lshlrev_b32 v{128+2*r}, 16, v{32+r}\nv_and_b32 v{129+2*r}, 0xffff0000, v{32+r}")
        A(f"v_pk_fma_f32 v[{128+2*r}:{129+2*r}], v[{128+2*r}:{129+2*r}], v[{112+2*i}:{113+2*i}], v[{104+2*i}:{105+2*i}] op_sel_hi:[1,0,0]")
        if r == RC:
            for t in mchk: A(t)
            if W0L: trickle(4)
        if r >= OPT.get("rw1", 36) and r % 6 == 0: trickle()
RM = OPT.get("rm", 36)
def MB(r): return 32 + r
normalise(0, RM)
stamp("_p6")
A("s_mul_i32 s34, s34, 0x9E3779B1\ns_add_u32 s34, s34, 0x7F4A7C15")
def mod_fetch():
    return "\n".join(f"v_accvgpr_read_b32 v{MB(r)}, a{r}" for r in range(4 * KS)) + f"\nv_cmp_ne_u32 vcc, s34, v{MB(1)}\n" + "".join(f"v_cmp_ne_u32 s[100:101], s34, v{MB(3+2*i)}\ns_or_b64 vcc, vcc, s[100:101]\n" for i in range(2 * KS - 1))
A(mod_fetch()); A("s_cbranch_vccz L_pollmod_x")
keep = list(st.vm)
spin("L_pollmod", [f"s_sleep {OPT.get('slp', 4)}"] + mchk, mod_fetch())
st.vm = keep
stamp("mod")
A(f"""
s_cmp_ge_u32 s35, 2
s_cselect_b32 s60, 1.0, 0
s_cselect_b32 s3, 2048, 0
s_add_u32 s3, s3, {MODV}
s_mov_b32 s61, {f2u(SCALE)}
""")
for k in range(KS):
    A(f"""v_lshlrev_b32 v2, 16, v{MB(4*k)}
    v_and_b32 v3, 0xffff0000, v{MB(4*k)}
    v_lshlrev_b32 v4, 16, v{MB(4*k+2)}
    v_and_b32 v5, 0xffff0000, v{MB(4*k+2)}""")
    for e in range(4): A(f"v_add_f32 v{100+e}, {'s60' if k == 0 else 'v' + str(100+e)}, v{2+e}")
for e in range(4): A(f"v_mul_f32 v{100+e}, s61, v{100+e}")
A(f"""
s_lshl_b32 s60, s95, 8
v_lshlrev_b32 v2, 4, v0
v_subrev_u32 v2, s60, v2
v_and_b32 v2, 2047, v2
v_add_u32 v2, s3, v2
ds_write_b128 v2, v[100:103]
""")
normalise(RM, 64)
trickle(99)
def kv_prefetch():
    A("s_add_u32 s61, s8, s6")
    for i in range(4): dummy(f"buffer_load_dwordx4 a[244:247], v16, s[40:43], s61 offen offset:{i*1024}")
    if OPT.get("vpf", 0):
        A("s_add_u32 s61, s61, 64")
        for i in range(4): dummy(f"buffer_load_dwordx4 a[244:247], v16, s[44:47], s61 offen offset:{i*1024}")
if OPT.get("kpos", 0) == 0: kv_prefetch()
A(f"""
v_and_b32 v30, 15, v1
v_lshlrev_b32 v30, 5, v30
v_add_u32 v30, {MODV}, v30
s_waitcnt lgkmcnt(0)
s_barrier
""")
stamp("_bar1")
QS = 64
def qstg(U, tp, tile, s): return QS + (U & 1) * 32 + s * 16 + tp * 8 + tile * 4
def q_reads(n):
    r = n % 5
    return p8_reads(lambda tp, tile: ("a", qstg(n >> 1, tp, tile, n & 1)), r * UNIT if r < 4 else 0, "v9" if r < 4 else "v31")
def modreads(jj, b):
    for i in range(4): A(f"ds_read_b128 v[{b+4*i}:{b+4*i+3}], v30 offset:{(i>>1)*2048 + jj*512 + (i&1)*16}")
for jj in range(4): modreads(jj, 32 + 16 * jj)
pend = wq_ops(2) + wq_ops(3) + wq_ops(4)
for n in range(16):
    jj, i = n >> 2, n & 3; b = 32 + 16 * jj; t = 128 + 8 * n; d = 96 + 4 * (n & 3)
    for e in range(4): A(f"v_pk_fma_f32 v[{t+2*e}:{t+2*e+1}], v[{t+2*e}:{t+2*e+1}], v[{b+8+2*e}:{b+9+2*e}], v[{b+2*e}:{b+2*e+1}]")
    for e in range(4): A(f"v_cvt_pk_bf16_f32 v{d+e}, v{t+2*e}, v{t+2*e+1}")
    A(f"ds_write_b128 v{120+i}, v[{d}:{d+3}] offset:{jj*16384 + i*256}")
    if n >= OPT.get("jw", 8): trickle()
stamp("_jloop")
for n in range(2):
    for i, t in enumerate(q_reads(n)): st.add(t, tag=("R", n), need=[("W", n)] if i == 0 else None)
if OPT.get("kpos", 0) == 1: trickle(99); kv_prefetch()
stamp("_w01")
trickle(99)
stamp("_w34")
A("s_waitcnt lgkmcnt(0)\ns_barrier")
def hb(kk, s, cb): return (kk & 1) * 32 + (s * 4 + cb) * 4
for s in range(2):
    for cb in range(4): A(f"ds_read_b128 a[{hb(0,s,cb)}:{hb(0,s,cb)+3}], {'v8' if s else 'v15'} offset:{(s*4+cb)*1024}")
stamp("h")

def qacc(tp, tile, cb): return 128 + (tp * 8 + tile * 4 + cb) * 4
def qop(s, cb): return 32 + (s * 4 + cb) * 4
M = []; Fl = []; RES = {}; HBAR = 46
for U in range(16):
    kk, h2 = U >> 1, U & 1
    g0 = len(M)
    for tp in range(2):
        for tile in range(2):
            for cb in range(4):
                for s in range(2):
                    M.append(mf(qacc(2 * h2 + tp, tile, cb), qstg(U, tp, tile, s), hb(kk, s, cb), "0" if (kk == 0 and s == 0) else None))
    for s in range(2):
        n = 2 * U + 2 + s; g = g0 + 16 * s + (10 if n == 2 else 4 if n == 3 else 0)
        def refill(n, g, step):
            m = n + 5
            if m >= 32: return
            p, q = wq_pre(m)
            spread_dma(Fl, g, p, dma4("s60", nt("wq")), q, ("W", m), [("R", n)], step)
        if U == 0 and s == 0: refill(0, 3, 2); refill(1, 11, 2)
        if n < 32:
            for i, t in enumerate(q_reads(n)): Fl.append(F(t, g + i, g + i + 1, "rd", tag=("R", n), need=[("W", n)] if i == 0 else None))
            refill(n, g + 11, 4 if n > 4 else 2 if n == 2 else 3)
    RES[g0 + 31] = 1
    if U: Fl += stampF(f"q{U}", g0)
    if kk < 7:
        for i in range(4):
            n = 4 * h2 + i; s, cb = n >> 2, n & 3
            Fl.append(F(f"ds_read_b128 a[{hb(kk+1,s,cb)}:{hb(kk+1,s,cb)+3}], {'v8' if s else 'v15'} offset:{((kk+1)*8+n)*1024}", g0 + 8 + (i & 1) + 16 * (i >> 1), g0 + 12 + (i & 1) + 16 * (i >> 1), "hb", tag=("HB", kk + 1)))
    if kk == 7:
        for tp in range(2):
            T = 2 * h2 + tp - 1
            if T >= 0:
                for cb in range(4):
                    for e in range(4):
                        src = qacc(T, e >> 1, cb) + 2 * (e & 1)
                        Fl.append(F(f"v_cvt_pk_bf16_f32 v{qop(T,cb)+e}, v{src}, v{src+1}", g0 + 16 * tp + 2, g0 + 16 * tp + 15, "cv"))
        if h2 == 0:
            Fl.append(F(("barrier", [("HB", 7), ("R", 29)]), g0 + 1, g0 + 1, "dma"))
            kv_chain(Fl, g0 + 8, k_ops(0), ("K", 0))
            kv_chain(Fl, g0 + 24, k_ops(1), ("K", 1))
        else:
            kv_chain(Fl, g0 + 1, v_ops(0), ("V", 0))
            Fl.append(F(("barrier", [("K", 0)]), g0 + 15, g0 + 15, "rd"))
            for s in range(4): Fl.append(F(f"ds_read_b128 a[{STG+s*4}:{STG+s*4+3}], v{17+s} offset:{KA}", g0 + 16 + s, g0 + 22, "rd", tag=("R", "k00")))
LP0 = 2
def blk_addr(dst, src, add):
    A(f"""s_add_u32 s60, {src}, {add}
    s_and_b32 s60, s60, 3
    s_mul_i32 s61, s60, {KB}
    s_cmp_eq_u32 s60, 2
    s_cselect_b32 s61, {VA}, s61
    s_cmp_eq_u32 s60, 3
    s_cselect_b32 s61, {XR}, s61
    v_add_u32 v{dst}, s61, v16""")
FLOOR = [6, 7, 8, 15]
with Capture() as cp:
    voffs16(1024)
    A(f"""
s_lshl_b32 s60, s56, 19
s_lshl_b32 s61, s35, {OPT.get("wocol", 6)}
s_and_b32 s61, s61, {OPT.get("womask", 1023)}
s_add_u32 s60, s60, s61
s_add_u32 s36, s12, s60
s_addc_u32 s37, s13, 0
s_sub_u32 s38, {4096*1024}, s60
v_and_b32 v3, {3 if OPT.get("sparse1", 1) else 0}, v1
v_mov_b32 v2, 0x3f803f80
v_cmp_eq_u32 vcc, 0, v3
v_cndmask_b32 v2, 0, v2, vcc
v_accvgpr_write_b32 a240, v2
v_accvgpr_write_b32 a241, v2
v_accvgpr_write_b32 a242, v2
v_accvgpr_write_b32 a243, v2
s_and_b32 s14, s57, {OPT.get("rotmask", 7) & 3}
s_lshl_b32 s92, s14, 8
s_bfe_u32 s15, s57, 0x20002
s_and_b32 s15, s15, {OPT.get("rotmask", 7) & 3}
s_lshl_b32 s94, s15, 17
s_mul_i32 s93, s97, 57344
s_mul_i32 s60, s35, 14336
s_add_u32 s93, s93, s60
""")
    srd(52, 16, 512 * 3584)
    blk_addr(30, "s35", 0)
    for i in range(4): blk_addr(2 + i, "s15", i)
    A(f"""
s_sub_u32 s3, s96, {LP0}
s_lshl_b32 s13, s3, 5
s_add_u32 s13, s13, s97
s_lshl_b32 s60, s13, 6
s_mul_i32 s61, s35, {128*6144}
s_add_u32 s60, s60, s61
s_add_u32 s60, s60, 2048
s_cmp_lt_u32 s3, 2
s_cselect_b32 s10, s60, {OOB}
s_cselect_b32 s62, 0, {OOB}
s_mov_b32 s12, s2
s_cmp_lg_u32 s35, 0
s_cselect_b32 s11, {OOB}, 0
""")
    srd(0, 24, 1024)
attn_setup = list(cp.lines)
Fl += cp.fillers(412, 508, "su")
for t in [f"v_mov_b32 v{r}, 0xff800000" for r in FLOOR] + ["s_mov_b32 s95, 0", "v_lshrrev_b32 v31, 6, v0", "v_lshlrev_b32 v31, 2, v31", f"v_add_u32 v31, {LGO + 16}, v31"]: Fl.append(F(t, 470, 508, "su2"))
schedule(st, M, Fl, reserve=RES, verbose="Q")
for cb in range(4):
    for e in range(4):
        src = qacc(3, e >> 1, cb) + 2 * (e & 1)
        A(f"v_cvt_pk_bf16_f32 v{qop(3,cb)+e}, v{src}, v{src+1}")
st.newphase(); stamp("Q")
st.raw("L_attn:"); attn_entry = (list(st.vm), list(st.lg))
def wo_pre(u, m0):
    p = [m0, "s_add_u32 s60, s92, s94" + ("\ns_add_u32 s60, s60, 0x10000" if u & 4 else ""), "s_add_u32 s94, s94, 0x20000", "s_and_b32 s94, s94, 0x7ffff"]
    return p
def wo_chain(Fl, g, u, m0, need, late=3):
    p = wo_pre(u, m0)
    chain_dma(Fl, g, p[:2], dma4("s60", nt("wo")), ("W", u), need, "dma", late)
    post = p[2:] + (["s_add_u32 s92, s92, 256", "s_and_b32 s92, s92, 1023"] if (u & 7) == 7 else [])
    for t in post: Fl.append(F(t, g, g + late + 8, "dma"))

def S(kt, cb): return 96 + (kt * 4 + cb) * 4
def P(c, s, cb): return 160 + (c & 1) * 32 + (s * 4 + cb) * 4
def CI(cb): return 224 + 4 * cb
def oacc(tp, tile, cb): return (tp * 8 + tile * 4 + cb) * 4
def woreg(u, tile, s):
    o = tile * 8 + s * 4
    return ("a", 128 + u * 16 + o) if u < 4 else (("v", 128 + (u - 4) * 16 + o) if u < 6 else ("v", 192 + (u - 6) * 16 + o))
LS = 224
def RS(u): return (u + 2) & 3
units = [("QK", 0, k) for k in range(4)]
for c in range(7): units += [("QK", c + 1, k) for k in range(4)] + [("L", c, 0)] + [("PV", c, k) for k in range(4)]
units += [("L", 7, 0)] + [("PV", 7, k) for k in range(4)]
M = []; Fl = []; RES = {}; G = {}; buf = {}
staged = [u for u in units if u[0] != "L"]
for n, u in enumerate(staged): buf[u] = n
pos = 0
for un in units: G[un] = pos; pos += 8 if un[0] == "L" else 16
NATT = pos
def oop(dp, cb): return 32 + (dp * 4 + cb) * 4
pf = []
if OPT["pf_w1"]: pf += [("w1", i) for i in range(14)]
if OPT["pf_w2"]: pf += [("w2", i) for i in range(14 if OPT["pf_w2"] == 1 else 2)]
with Capture() as cp:
    A(f"""
v_lshlrev_b32 v252, 2, v0
buffer_load_dword v252, v252, s[0:3], s62 offen
v_lshrrev_b32 v248, 5, v1
v_lshlrev_b32 v248, 4, v248
v_bfe_u32 v249, v1, 2, 3
v_add_u32 v248, v248, v249
v_mul_u32_u24 v248, 6144, v248
v_and_b32 v249, 3, v1
v_lshl_add_u32 v248, v249, 4, v248
v_add_u32 v249, {8*6144-1032}, v248
v_add_u32 v250, {32*6144-2064}, v248
v_add_u32 v251, {40*6144-3096}, v248
s_mov_b32 s0, s26
s_mov_b32 s1, s27
s_mov_b32 s2, {512*6144}
s_mov_b32 m0, s63
""")
Fl += cp.fillers(3, 12, "dma")
for i in range(4): Fl.append(F(f"buffer_load_dwordx4 v{248+i}, s[0:3], s10 offen offset:{i*1032}{' nt' if OPT.get('nt_lp', 1) else ''} lds", 13 + 9 * i, 14 + 9 * i, "dma", tag="wm"))
with Capture() as cp:
    A(f"""
s_lshl_b32 s60, s57, 3
s_add_u32 s60, s60, s56
s_lshl_b32 s60, s60, 7
s_add_u32 s60, s60, {WS_F1}
s_lshl_b32 s61, s58, 3
s_add_u32 s61, s61, s59
s_lshl_b32 s61, s61, 7
s_add_u32 s61, s61, {WS_F2 - 128}
v_lshlrev_b32 v253, 2, v1
v_add_u32 v254, s60, v253
v_add_u32 v253, s61, v253
v_cmp_le_u32 vcc, 32, v1
v_cndmask_b32 v254, v254, v253, vcc
s_not_b32 s60, s34
v_mov_b32 v255, s60
""")
Fl += cp.fillers(G[("PV", 0, 0)], G[("PV", 1, 0)], "pw")
def pst(v, off=0): return f"buffer_store_dwordx4 a[248:251], {v}, s[48:51], s10 offen offset:{off} sc1"
psn = [f"v_accvgpr_write_b32 a{248+i}, -1" for i in range(4)] + ["s_lshl_b32 s10, s58, 3", "s_add_u32 s10, s10, s59", "s_lshl_b32 s10, s10, 3", "s_add_u32 s10, s10, s35",
       "s_mul_i32 s10, s10, 5120", f"s_add_u32 s10, s10, {WS_H1}"] + [pst("v16", i * 1024) for i in range(4)] + ["s_add_u32 s10, s10, 20480"] + [pst("v16", i * 1024) for i in range(4)]
psn += ["v_lshrrev_b32 v253, 5, v1", "v_lshlrev_b32 v253, 11, v253", "v_and_b32 v255, 31, v1", "v_lshl_add_u32 v253, v255, 4, v253"]
for n in (2, 3):
    psn += ["s_lshl_b32 s10, s57, 3", "s_add_u32 s10, s10, s56", "s_lshl_b32 s10, s10, 2", "s_add_u32 s10, s10, s35", "s_lshl_b32 s10, s10, 5", f"s_add_u32 s11, s14, {n}", "s_and_b32 s11, s11, 3",
            "s_add_u32 s10, s10, s11", "s_lshl_b32 s10, s10, 9", f"s_add_u32 s10, s10, {WS_PART}"]
    for i in range(4): psn += [pst("v253")] + (["s_add_u32 s10, s10, 4096"] if i < 3 else [])
for un in units:
    ty, c, k = un; g0 = len(M); assert g0 == G[un]
    if ty == "QK":
        b = STG + (buf[un] & 1) * 16
        for cb in range(4):
            for s in range(4):
                M.append(mf(S(k, cb), b + 4 * s, qop(s, cb), None if s else ("0" if (c == 0 and k < 2) else CI(cb)), "v", "a", "v"))
    elif ty == "L":
        for cb in range(4):
            for s in range(2): M.append(mf(LS + 4 * cb, 240, P(c, s, cb), "0" if (c == 0 and s == 0) else None, "a", "a", "v"))
    else:
        for tile in range(2):
            for cb in range(4):
                for s in range(2): M.append(mf(oacc(k, tile, cb), stg(buf[un], tile, s), P(c, s, cb), "0" if (c == 0 and s == 0) else None, "a", "a", "v"))
    if ty == "L": continue
    RES[g0 + 15] = 1
    bar = None
    if (ty, c, k) == ("QK", 0, 3): bar = 1
    if ty == "PV" and k == 3 and c < 7: bar = c + 2
    rg = g0
    if bar is not None:
        Fl.append(F(("barrier", [("R", un), ("V", bar - 1)] + ([("K", bar)] if bar <= 7 else [])), g0 + 1, g0 + 1, "rd")); rg = g0 + 2
        Fl += stampF(f"B{bar}", g0 + 2)
        VS = OPT.get("vs", 5); gk = g0 + 8
        if bar + 1 <= 7: kv_chain(Fl, gk, k_ops(bar + 1), ("K", bar + 1), VS); gk += 4 * VS
        if bar <= 7: kv_chain(Fl, gk, v_ops(bar), ("V", bar), VS); gk += 4 * VS
        plan = {**[{1: [("d", 0)], 2: [("d", 1)]}, {2: [("d", 0)], 3: [("d", 1)]}, {3: [("d", 0), ("d", 1)]}][OPT.get("wop", 1)], 4: [("r", 0), ("d", 2), ("d", 3)], 5: [("r", 1), ("r", 2), ("d", 4), ("d", 5)], 6: [("r", 3), ("d", 6)], 7: [("d", 7)]}.get(bar, [])
        gr = g0 + 20
        for kind, u in plan:
            if kind == "d":
                p = wo_pre(u, f"s_add_u32 m0, s63, {RS(u)*UNIT}")
                spread_dma(Fl, gk, p[:2], dma4("s60", nt("wo")), p[2:] + (["s_add_u32 s92, s92, 256", "s_and_b32 s92, s92, 1023"] if (u & 7) == 7 else []), ("W", u), [("RW", u - 4)] if u >= 4 else None, VS); gk += 4 * VS
            else:
                for i, t in enumerate(p16_reads(lambda tile, s: woreg(u, tile, s), RS(u) * UNIT)):
                    Fl.append(F(t, gr + 2 * i, gr + 6 + 2 * i, "wor", tag=("RW", u), need=[("W", u)] if i == 0 else None))
                gr += 16
        if bar <= 7:
            for n in range(int(str(OPT.get("pfp", 44044)).zfill(7)[bar - 1])):
                if not pf: break
                nm, i = pf.pop(0)
                if nm == "w2" and i == 0:
                    for t in ["s_mov_b32 s52, s20", "s_mov_b32 s53, s21"] + ((["s_sub_u32 s93, s93, 12288"] if OPT["pf_w1"] else []) if OPT["pf_w2"] == 1 else ["s_mul_i32 s93, s2, 7168", "s_lshl_b32 s60, s35, 11\ns_add_u32 s93, s93, s60"]): Fl.append(F(t, gk - 3, gk, "dma"))
                if i and i % 4 == 0: Fl.append(F("s_add_u32 s93, s93, 4096", gk - 3, gk, "dma"))
                Fl.append(dummyF(f"buffer_load_dwordx4 a[244:247], v16, s[52:55], s93 offen offset:{(i%4)*1024}", gk, gk + 2, "dma")); gk += VS
        for n in range(int(str(OPT.get("psp", 332233)).zfill(7)[bar - 1]) if bar <= 7 else 0):
            while True:
                t = psn.pop(0); stv = t.startswith("buffer")
                Fl.append(F(t, gk - (0 if stv else 4), gk + (2 if stv else 0), "dma", tag="psn" if stv else None))
                if stv: gk += OPT.get('ps', 5); break
    i = staged.index(un)
    if i + 1 < len(staged):
        nx = staged[i + 1]; nb = STG + (buf[nx] & 1) * 16
        if nx[0] == "QK":
            for s in range(4):
                Fl.append(F(f"ds_read_b128 a[{nb+4*s}:{nb+4*s+3}], v{17+s} offset:{(KA if nx[1]%2==0 else KB) + nx[2]*1024}", rg + s // 2, rg + 4 + s, "rd", tag=("R", nx)))
        else:
            i2 = 0
            for tile in range(2):
                for s in range(2):
                    for hf in range(2):
                        d = stg(buf[nx], tile, s) + 2 * hf
                        Fl.append(F(f"ds_read_b64_tr_b16 a[{d}:{d+1}], v21 offset:{(nx[1]&1)*16512 + (4*s+2*hf)*2064 + nx[2]*256 + tile*8}", rg + i2 // 2, rg + 1 + i2, "rd", tag=("R", nx))); i2 += 1
g1 = G[("QK", 0, 1)]
for cb in range(4):
    s0 = S(0, cb); t = 240 + 2 * cb; ch = ("mx", cb); e = g1 + max(0, 4 * cb - 8); l = g1 + 14 + 4 * cb
    for txt in [f"v_max3_f32 v{t}, v{s0}, v{s0+1}, v{s0+2}", f"v_max3_f32 v{t}, v{t}, v{s0+3}, v{FLOOR[cb]}", f"v_mov_b32 v{t+1}, v{t}",
                f"v_permlane16_swap_b32 v{t}, v{t+1}", f"v_max_f32 v{t}, v{t}, v{t+1}", f"v_mov_b32 v{t+1}, v{t}",
                f"v_permlane32_swap_b32 v{t}, v{t+1}", f"v_max_f32 v{t}, v{t}, v{t+1}"] + [f"v_sub_f32 v{CI(cb)+i}, 0, v{t}" for i in range(4)]:
        Fl.append(F(txt, e, l, ch))
for c in range(8):
    for kt in range(4):
        gq = G[("QK", c, kt)]
        for cb in range(4):
            e = gq + 4 * cb + 3 + 5
            l = (G[("QK", c + 1, kt)] + 4 * cb - 1) if c < 7 else G[("L", 7, 0)] - 2
            l = min(l, G[("L", c, 0)] - 2)
            ch = ("sm", kt, cb); s0 = S(kt, cb)
            if c == 0 and kt < 2:
                ch = ("mx", cb)
                for i in range(4): Fl.append(F(f"v_add_f32 v{s0+i}, v{CI(cb)}, v{s0+i}", e, l, ch))
            for i in range(4): Fl.append(F(f"v_exp_f32 v{s0+i}, v{s0+i}", e, l, ch))
            for i in range(2): Fl.append(F(f"v_cvt_pk_bf16_f32 v{P(c,kt>>1,cb)+2*(kt&1)+i}, v{s0+2*i}, v{s0+2*i+1}", e, l, ch))
gL = G[("L", 7, 0)]
for cb in range(4): Fl.append(F(f"v_accvgpr_read_b32 v{240+cb}, a{LS+4*cb}", gL + 12, gL + 20, "nrm"))
for cb in range(4): Fl.append(F(f"v_rcp_f32 v{244+2*cb}, v{240+cb}", gL + 12, gL + 24, "nrm"))
for t in ["v_add_f32 v252, v240, v241", "v_add_f32 v254, v242, v243", "v_add_f32 v252, v252, v254", f"v_cmp_nge_f32 vcc, {f2u(2.0**34)}, v252\ns_cmp_lg_u64 vcc, 0\ns_cselect_b32 s3, 1, 0",
          "v_mov_b32 v254, s3", "v_and_b32 v253, 3, v1", "v_lshlrev_b32 v253, 2, v253", f"v_add_u32 v253, {LGO + 16}, v253"]:
    Fl.append(F(t, gL + 14, gL + 34, "nrm"))
def norm_ops(dp, cb, pk):
    t = 160 + cb * 8; o = []
    for tile in range(2):
        for r in range(4): o.append(f"v_accvgpr_read_b32 v{t+4*tile+r}, a{oacc(dp,tile,cb)+r}")
    if pk: o += [f"v_pk_mul_f32 v[{t+2*r}:{t+2*r+1}], v[{t+2*r}:{t+2*r+1}], v[{244+2*cb}:{245+2*cb}] op_sel_hi:[1,0]" for r in range(4)]
    else: o += [f"v_mul_f32 v{t+r}, v{244+2*cb}, v{t+r}" for r in range(8)]
    d = 224 + cb * 4
    o += [f"v_cvt_pk_bf16_f32 v{d+e}, v{t+2*e}, v{t+2*e+1}" for e in range(4)]
    o.append(f"ds_write_b128 v30, v[{d}:{d+3}] offset:{(dp*4+cb)*1024}")
    return o
lpF = []; spread_dma(lpF, G[("PV", 0, 1)] + 4 - OPT.get("lpe", 40), [f"s_add_u32 m0, s63, {UNIT}", f"s_add_u32 s10, s10, {64*6144}"], [f"buffer_load_dwordx4 v{248+i}, s[0:3], s10 offen offset:{i*1032}{' nt' if OPT.get('nt_lp', 1) else ''} lds" for i in range(4)], ["s_mov_b32 s2, s12"], "wm", None, 5)
cut = min(f.order for f in Fl if f.chain == "dma" and f.e >= G[("PV", 0, 3)])
for i, f in enumerate(lpF): f.order = cut - 1 + (i + 1) / 100.0
Fl += lpF
def late_producer():
    A(f"s_sub_u32 s3, s96, {LP0}\ns_cmp_ge_u32 s3, 2\ns_cbranch_scc1 L_nolp")
    keep = (list(st.vm), list(st.lg), list(st.hist))
    silu_to_lds(252, 240)
    A(f"v_lshrrev_b32 v240, 4, v1\nv_lshlrev_b32 v240, 4, v240\ns_lshl_b32 s3, s35, 8\ns_add_u32 s3, s3, {SILU}\nv_add_u32 v240, s3, v240\ns_waitcnt lgkmcnt(0)\ns_barrier")
    for k in range(4): A(f"ds_read_b128 a[{128+4*k}:{131+4*k}], v240 offset:{k*64}")
    st.need("wm")
    for u in range(2):
        for t in p16_reads(lambda tile, s: ("a", 144 + u * 16 + tile * 8 + s * 4), u * UNIT): A(t)
    for k in range(4):
        for tile in range(2): A(mf(244 + 4 * tile, 144 + (k >> 1) * 16 + tile * 8 + (k & 1) * 4, 128 + 4 * k, "0" if k == 0 else None))
    A(f"s_lshl_b32 s13, s13, 7\ns_add_u32 s13, s13, {WS_MOD2}")
    publish(2, 244, "L_lp_x", "s13", tmp=240, stmp="s3")
    A("L_lp_x:\ns_waitcnt lgkmcnt(0)\ns_nop 7\nL_nolp:")
    st.vm, st.lg, st.hist = keep
Fl.append(F(("call", late_producer), G[("PV", 2, 3)] + 1, G[("PV", 2, 3)] + 1, "lp"))
Fl.append(F("buffer_store_dword v255, v254, s[48:51], s11 offen sc1", G[("PV", 1, 1)] + 9, G[("PV", 1, 1)] + 12, "pw"))
Fl.append(F(f"v_add_u32 v254, {WS_F3 - WS_F2}, v254", G[("PV", 1, 1)] + 12, G[("PV", 1, 2)] + 8, "pw"))
Fl.append(F("buffer_store_dword v255, v254, s[48:51], s11 offen sc1", G[("PV", 1, 2)] + 9, G[("PV", 1, 2)] + 12, "pw"))
NHID = 4
grp = [(dp, cb) for dp in range(4) for cb in range(4)]
for dp, cb in grp[:NHID]:
    for t in norm_ops(dp, cb, False): Fl.append(F(t, G[("PV", 7, dp)] + 16 + 3, NATT - 1, "nrm"))
for u in (4, 5):
    g = gL + 1 + (u - 4) * 16
    for i, t in enumerate(p16_reads(lambda tile, s: woreg(u, tile, s), RS(u) * UNIT)): Fl.append(F(t, g + i, g + 8 + i, "wor", tag=("RW", u), need=[("W", u)] if i == 0 else None))
E89 = OPT.get("e89", 1)
for u in (8, 9)[:2 * E89]:
    p = wo_pre(u, f"s_add_u32 m0, s63, {RS(u)*UNIT}"); spread_dma(Fl, gL + 22 + (u - 8) * 24, p[:2], dma4("s60", nt("wo")), p[2:], ("W", u), [("RW", u - 4)], 6)
assert not psn and not pf
schedule(st, M, Fl, reserve=RES, verbose="attn", mem2=("rd", "wor"), minback=OPT.get("minback", 10), pairfirst=lambda g: G[("QK", 7, 0)] - OPT.get("pfa", -1000) <= g < gL)
stamp("attn")
A("ds_write_b32 v31, v254")
for u in (6, 7):
    for i, t in enumerate(p16_reads(lambda tile, s: woreg(u, tile, s), RS(u) * UNIT)): st.add(t, tag=("RW", u), need=[("W", u)] if i == 0 else None)
for n, (dp, cb) in enumerate(grp[NHID:8]):
    for t in norm_ops(dp, cb, True): st.add(t, tag="ow" if t.startswith("ds_write") else None)

def oB(i, cb): return ("v", 32 + ((i - 4) * 4 + cb) * 4) if 4 <= i < 8 else ("a", ((i if i < 4 else i - 4) * 4 + cb) * 4)
def pacc(i, tile, cb): return 96 + (i & 1) * 32 + (tile * 4 + cb) * 4
def oB_read(ks, cb):
    f, r = oB(ks, cb); return f"ds_read_b128 {f}[{r}:{r+3}], v{2 + ((ks>>1)&3)} offset:{(((ks>>3)*2+(ks&1))*4+cb)*1024}"
with Capture() as osu:
    A(f"""
s_mul_i32 s6, s35, {UNIT}
s_add_u32 s6, s6, {VB}
s_sub_u32 s60, s6, s63
v_add_u32 v20, s60, v10
s_mul_i32 s7, s35, {2*UNIT}
s_sub_u32 s60, s7, s63
v_add_u32 v21, s60, v10
s_mul_i32 s62, s35, {UNIT}
s_add_u32 s62, s62, {8*UNIT}
s_cmp_eq_u32 s35, 3
s_cselect_b32 s62, {MISC+8192}, s62
s_sub_u32 s60, s62, s63
v_add_u32 v15, s60, v10
v_and_b32 v6, 15, v1
v_lshrrev_b32 v7, 1, v6
v_and_b32 v6, 1, v1
v_lshrrev_b32 v8, 4, v1
v_lshlrev_b32 v31, 11, v7
v_lshl_add_u32 v31, v6, 4, v31
v_lshl_add_u32 v31, v8, 5, v31
v_lshrrev_b32 v7, 3, v1
v_and_b32 v8, 7, v1
v_lshlrev_b32 v23, 7, v8
v_and_b32 v7, 1, v7
v_mul_u32_u24 v7, {WS_F1 - WS_F2}, v7
v_add_u32 v23, v23, v7
v_lshlrev_b32 v19, 16, v8
v_mov_b32 v7, {OOB}
v_cmp_le_u32 vcc, 8, v1
v_cndmask_b32 v19, v19, v7, vcc
v_and_b32 v24, 31, v1
v_lshlrev_b32 v24, 4, v24
s_lshl_b32 s60, s57, 3
s_add_u32 s60, s60, s56
s_lshl_b32 s60, s60, 7
s_add_u32 s60, s60, {WS_F1}
s_lshl_b32 s61, s58, 3
s_add_u32 s61, s61, s59
s_lshl_b32 s61, s61, 7
s_add_u32 s61, s61, {WS_F2 - 128}
v_lshlrev_b32 v8, 2, v1
v_add_u32 v22, s60, v8
v_add_u32 v8, s61, v8
v_cmp_le_u32 vcc, 32, v1
v_cndmask_b32 v22, v22, v8, vcc
v_lshrrev_b32 v8, 5, v1
v_lshl_add_u32 v24, v8, 16, v24
v_mov_b32 v25, s34
; s93 = partial store base, s8 = its running column offset; s9 = own flag line (wave 0) ; s0 = flag check base; s1 = read base; s12 = running read column
s_lshl_b32 s61, s57, 3
s_add_u32 s61, s61, s56
s_lshl_b32 s93, s61, 16
s_lshl_b32 s60, s35, 7
s_add_u32 s93, s93, s60
s_add_u32 s93, s93, {WS_PART}
s_lshl_b32 s8, s14, 9
s_cmp_lg_u32 s35, 0
s_cselect_b32 s9, {OOB}, 0
s_lshl_b32 s0, s58, 10
s_add_u32 s0, s0, {WS_F2}
s_lshl_b32 s1, s58, 19
s_lshl_b32 s60, s59, 13
s_add_u32 s1, s1, s60
s_lshl_b32 s60, s35, 11
s_add_u32 s1, s1, s60
s_add_u32 s1, s1, {WS_PART}
s_and_b32 s12, s58, {OPT.get("rotmask", 7) & 3}
s_lshl_b32 s12, s12, 9
s_mov_b32 s15, 0
""")
    A(f"""
v_lshrrev_b32 v6, 5, v1
s_and_b32 s60, s58, {OPT.get("rotmask", 7) & 3}
v_add_u32 v6, s60, v6
v_add_u32 v7, 2, v6
v_and_b32 v6, 3, v6
v_and_b32 v7, 3, v7
v_and_b32 v8, 30, v1
v_lshlrev_b32 v8, 3, v8
v_lshl_add_u32 v6, v6, 8, v8
v_lshl_add_u32 v7, v7, 8, v8
v_lshlrev_b32 v240, 1, v6
v_lshlrev_b32 v241, 1, v7
v_add_u32 v242, {MODV}, v240
v_add_u32 v243, {MODV}, v241
v_and_b32 v241, 3, v1
v_lshlrev_b32 v241, 2, v241
v_add_u32 v241, {LGO}, v241
v_not_b32 v240, v25
ds_write_b32 v241, v240
v_mov_b32 v241, {LGO}
v_and_b32 v8, 1, v1
v_lshl_add_u32 v6, v8, 10, v6
v_lshl_add_u32 v7, v8, 10, v7
v_lshlrev_b32 v8, 4, v0
v_add_u32 v8, {WS_MOD2}, v8
s_lshl_b32 s10, s58, 16
s_lshl_b32 s60, s59, 13
s_add_u32 s10, s10, s60
s_lshl_b32 s60, s35, 11
s_add_u32 s10, s10, s60
""")
    srd(52, 4, 2048 * 1024)
    A("s_movk_i32 s11, 4096")
st.need("ow", "psn"); A("s_barrier")
A("ds_read_b32 v252, v253")
for ks in range(2):
    for cb in range(4): A(oB_read(ks, cb))
st.newphase(); stamp("norm")
def slot_m0(r): return f"s_add_u32 m0, s63, {r*UNIT}" if r < 4 else {4: "s_mov_b32 m0, s6", 5: "s_mov_b32 m0, s7", 6: f"s_add_u32 m0, s7, {UNIT}", 7: "s_mov_b32 m0, s62"}[r]
def slot_rd(r): return (r * UNIT, "v10") if r < 4 else {4: (0, "v20"), 5: (0, "v21"), 6: (UNIT, "v21"), 7: (0, "v15")}[r]
def part_cvt(n, cb): return [f"v_cvt_pk_bf16_f32 v{224+4*cb+k}, v{pacc(n,k>>1,cb)+2*(k&1)}, v{pacc(n,k>>1,cb)+2*(k&1)+1}" for k in range(4)] + ([f"v_min_u32 v{224+4*cb}, -2, v{224+4*cb}"] if n >= 2 else [])
FLAG = "buffer_store_dword v25, v22, s[48:51], s9 offen sc1"
def pread(n, soff): return [f"buffer_load_dwordx4 v[{160+16*n+4*gp}:{163+16*n+4*gp}], v24, s[48:51], {soff[gp]} offen sc1{' nt' if OPT.get('pnt') else ''}" for gp in range(4)]
M = []; Fl = []; RES = {}
slot = {u: (RS(u) if (u & 7) < 4 else u & 7) for u in range(8, 32)}
ld = [(10, slot[10], 1, None), (11, slot[11], 17, None), (12, 4, 33, None), (13, 5, 4 * 16 + 11, None), (14, 6, 5 * 16 + 11, None), (15, 7, 6 * 16 + 11, None)] + [(u, slot[u], (u - 9) * 16 + 11, u - 8) for u in range(16, 32)]
for u in range(32):
    n, kk = u >> 3, u & 7; g0 = len(M)
    for tile in range(2):
        for cb in range(4):
            for s in range(2):
                f, r = oB(2 * kk + s, cb)
                fa, ra = woreg(u, tile, s) if u < 8 else ("a", stg(u, tile, s))
                M.append(mf(pacc(n, tile, cb), ra, r, "0" if (kk == 0 and s == 0) else None, "v", fa, f))
    if 8 <= u + 1 < 32:
        off, ad = slot_rd(slot[u + 1])
        for i, t in enumerate(p16_reads(lambda tile, s: ("a", stg(u + 1, tile, s)), off, ad)):
            Fl.append(F(t, g0 + i, g0 + i + 1, "rd", tag=("R", u + 1), need=[("W", u + 1)] if i == 0 else None))
    RES[g0 + 15] = 1
Fl.append(F("v_cmp_lt_u32 vcc, s95, v252\ns_cbranch_vccnz L_redo", 2, 2, "gd"))
GW = OPT.get("gow", 40)
for i, (dp, cb) in enumerate(grp[8:]):
    o = norm_ops(dp, cb, True); g = i * (GW - 4) // 8
    Fl.append(F("\n".join(o[:-1]), g, g, "nrm")); Fl.append(F(o[-1], g + 1, g + 1, "nrm", tag="ow2"))
Fl.append(F(("barrier", ["ow2"]), GW, GW, "ob"))
i = 0
for ks in range(2, 16):
    for cb in range(4):
        e = i if ks < 8 else max(GW + 1 + i - 24, {14: 48, 15: 64}.get(ks, 0) + cb)
        f = F(oB_read(ks, cb), e, e + 1, "ob", tag="OB"); i += 1
        if ks < 8: f.order -= 1000
        Fl.append(f)
GX_ = GW + 38
Fl += osu.fillers(GW - 8, 118, "su")
if E89: ld = [(10, slot[10], 1, None), (11, slot[11], 21, None), (12, 4, GW + 4, None)] + [(13 + k, 5 + k, GX_ + 2 + 14 * k, None) for k in range(3)] + ld[6:]
else: ld = [(u, slot[u], GW - 6 + 12 * (u - 8), None) for u in range(8, 16)] + ld[6:]
for u, r, g, nd in ld:
    if u == 13: Fl.append(F(("barrier", ["OB"]), GX_, GX_, "dma"))
    p = wo_pre(u, slot_m0(r))
    spread_dma(Fl, g, p[:2], dma4("s60", nt("wo")), p[2:] + (["s_add_u32 s92, s92, 256", "s_and_b32 s92, s92, 1023"] if (u & 7) == 7 else []), ("W", u), [("R", nd)] if nd is not None else None, 5 if g < GW else 4 if (u > 15 or E89) else 3)
for n in range(3):
    g = (8 * n + 8) * 16
    Fl.append(F("s_add_u32 s61, s93, s8", g + 2, g + 8, "po"))
    SS = OPT.get("ss", 4)
    for cb in range(4):
        for t in part_cvt(n, cb): Fl.append(F(t, g + 2, g + 9 + SS * cb, "po"))
        if not OPT.get("nopart"): Fl.append(F(f"buffer_store_dwordx4 v[{224+4*cb}:{227+4*cb}], v31, s[48:51], s61 offen{'' if OPT.get('plainst') else ' sc1'}", g + 9 + SS * cb, g + 10 + SS * cb, "po", tag=("part", n)))
        Fl.append(F("s_add_u32 s61, s61, 16384" if cb < 3 else "s_add_u32 s8, s8, 512", g + 9, g + 12 + SS * cb, "po"))
    Fl.append(F("s_and_b32 s8, s8, 2047", g + 20, g + 14 + 3 * SS, "po"))
    gf = g + OPT.get("gf", 6 * 16 + 9)
    if n != 1: continue
    Fl.append(F(("barrier", [("part", n)]), gf, gf, "po"))
    Fl.append(F(FLAG, gf + 1, gf + 1, "po"))
Fl.append(F("buffer_load_dword v240, v23, s[48:51], s0 offen sc1", 30 * 16 + 8, 30 * 16 + 12, "po"))
for i, t in enumerate(["buffer_load_dwordx4 v[244:247], v6, s[52:55], s10 offen", "buffer_load_dwordx4 v[248:251], v7, s[52:55], s10 offen",
                       "buffer_load_dwordx4 v[252:255], v8, s[48:51], 0 offen sc1", "buffer_load_dwordx4 v[26:29], v8, s[48:51], s11 offen sc1"]):
    Fl.append(F(t, OPT.get("gsm", 24 * 16 + 30) + 16 * i, OPT.get("gsm", 24 * 16 + 30) + 4 + 16 * i, "sm"))
g = 23 * 16 + 12
w1s = ["s_min_u32 s62, s59, 6", "s_lshl_b32 s62, s62, 9", "s_lshl_b32 s60, s35, 7", "s_add_u32 s62, s62, s60", "s_add_u32 s36, s16, s62\ns_addc_u32 s37, s17, 0", f"s_sub_u32 s38, {512*3584}, s62", "s_lshl_b32 s14, s58, 1", f"s_and_b32 s14, s14, {6 if OPT.get('crot', 1) else 0}", "s_add_u32 s14, s14, s59", "s_and_b32 s92, s14, 7", f"s_mul_i32 s92, s92, {64*3584}",
       "v_bfe_u32 v2, v1, 2, 3", "v_mul_u32_u24 v2, 3584, v2", "v_lshrrev_b32 v3, 5, v1", "v_lshl_add_u32 v2, v3, 6, v2", "v_and_b32 v3, 3, v1", "v_lshl_add_u32 v11, v3, 4, v2",
       f"v_add_u32 v12, {8*3584-1032}, v11", f"v_add_u32 v13, {16*3584-2064}, v11", f"v_add_u32 v14, {24*3584-3096}, v11"]
for t in w1s: Fl.append(F(t, g, g + 14, "dma"))
NW0 = OPT.get('nw0', 7)
def w1_pre(): return ["s_mov_b32 s60, s92", f"s_add_u32 s92, s92, {32*3584}", f"s_cmp_eq_u32 s92, {512*3584}\ns_cselect_b32 s92, 0, s92"]
for k in range(NW0):
    p = w1_pre(); spread_dma(Fl, 24 * 16 + 12 + 16 * k - (k // 2) * 3, [slot_m0(slot[24 + k])] + p[:1], dma4("s60"), p[1:], ("W1", k), [("R", 24 + k)], 3)
for u in (8, 16, 24): Fl += stampF(f"O{u}", u * 16)
for u in (16, 20, 22, 23, 24, 25, 26, 27, 28, 29, 30, 31): Fl += stampF(f"u{u}", u * 16)
Fl += stampF("u32", 511)
schedule(st, M, Fl, reserve=RES, verbose="O")
for cb in range(4):
    for t in part_cvt(3, cb): A(t)
A("s_add_u32 s61, s93, s8")
for cb in range(4):
    st.add(f"buffer_store_dwordx4 v[{224+4*cb}:{227+4*cb}], v31, s[48:51], s61 offen sc1", tag=("part", 3))
    if cb < 3: A("s_add_u32 s61, s61, 16384")
stamp("O")

def w1reg(half, s, tile): return ((half * 16 + s) * 2 + tile) * 4
def w2reg(ks, tp, tile):
    o = tp * 8 + tile * 4
    if ks < 4: return ("v", 160 + ks * 16 + o)
    if ks < 9: return ("a", (ks - 4) * 16 + o)
    if ks < 13: return ("a", 192 + (ks - 9) * 16 + o)
    return ("v", 208 + o)
KS2 = [(p, 0) for p in range(7)] + [(p, 1) for p in range(7)]
class WS:
    nd = NW0; nr = 0; slot_of = {k: slot[24 + k] for k in range(NW0)}; last = {slot[24 + k]: k for k in range(NW0)}
def w_dma(n, slots):
    for _ in range(n):
        u = WS.nd; WS.nd += 1
        r = [x for x in slots if WS.last.get(x, -1) < WS.nr][0]
        A(slot_m0(r))
        if u == 16: w2_setup()
        A("\n".join(w1_pre()) if u < 16 else "\n".join(w2_pre(u - 16)))
        for i, t in enumerate(dma4("s60")): st.add(t, tag=("W1", u), need=[("R1", WS.last[r])] if (i == 0 and r in WS.last) else None)
        WS.slot_of[u] = r; WS.last[r] = u
def w_read(n):
    for _ in range(n):
        u = WS.nr; WS.nr += 1; r = WS.slot_of[u]
        if u < 16:
            off, ad = slot_rd(r); L = p8_reads(lambda tp, tile: ("a", w1reg(tp, u, tile)), off, "v9" if r < 4 else ad)
        else:
            L = p8_reads(lambda tp, tile: w2reg(u - 16, tp, tile), r * UNIT if r < 4 else 0, "v9" if r < 4 else "v20")
        for i, t in enumerate(L): st.add(t, tag=("R1", u), need=[("W1", u)] if i == 0 else None)
def w2_setup():
    voffs8(1024)
    A(f"""
    s_lshl_b32 s60, s35, 16
    s_lshl_b32 s61, s59, 7
    s_add_u32 s60, s60, s61
    s_add_u32 s36, s20, s60
    s_addc_u32 s37, s21, 0
    s_sub_u32 s38, {1792*1024}, s60
    s_sub_u32 s7, s14, 7
    s_cselect_b32 s7, s14, s7
    s_mul_i32 s8, s7, 40960
    s_lshl_b32 s7, s7, 18
    """)
def w2_pre(ks): return [f"s_add_u32 s60, s7, {(ks // 7) * 32768}", "s_add_u32 s7, s7, 0x40000", f"s_cmp_eq_u32 s7, {7 << 18}\ns_cselect_b32 s7, 0, s7"]
ALL7 = [0, 1, 2, 3, 4, 5, 6]
srd(52, 18, 3584)
A("v_lshrrev_b32 v2, 4, v1\nv_lshlrev_b32 v2, 4, v2\nbuffer_load_dwordx4 v[80:83], v2, s[52:55], s62 offen\nbuffer_load_dwordx4 v[84:87], v2, s[52:55], s62 offen offset:64")
A("v_subrev_u32 v2, v10, v9\nv_add_u32 v20, v2, v20\nv_add_u32 v21, v2, v21")
stamp("elp")
def wave0_wait(lab, word, test, probe, ex=None):
    keep = None
    A(f"{test}\ns_cmp_eq_u32 s35, 0\ns_cbranch_scc1 {lab}_0\ns_cbranch_vccz {lab}_e\ns_mov_b32 s3, {SPIN * 8}")
    keep = (list(st.vm), list(st.lg))
    A(f"{lab}_l:\nds_read_b32 v240, v241 offset:{4*word}\ns_sub_u32 s3, s3, 1\ns_waitcnt lgkmcnt(0)\nv_cmp_ne_u32 vcc, s34, v240\ns_cmp_eq_u32 s3, 0\ns_cbranch_scc1 {lab}_e\ns_cbranch_vccz {lab}_e\ns_sleep 1\ns_branch {lab}_l")
    A(f"{lab}_0:\ns_cbranch_vccz {lab}_x")
    if ex: A(f"s_mov_b64 exec, {ex}")
    spin(lab, probe, test)
    if ex: A("s_mov_b64 exec, -1")
    A(f"ds_write_b32 v241, v25 offset:{4*word}\n{lab}_e:")
    st.vm, st.lg = keep; st.hist = []
wave0_wait("L_rdy", 0, "v_cmp_ne_u32 vcc, s34, v240", ["v_mov_b32 v240, 0", "buffer_atomic_add v240, v23, s[48:51], s0 offen sc0 sc1"], "0xffff")
def pre_off(n): return f"s_add_u32 s13, s12, {n*512}\ns_and_b32 s13, s13, 2047\ns_add_u32 s13, s13, s1"
def pread_ops(n):
    o = pre_off(n).split("\n")
    for gp, t in enumerate(pread(n, ["s13"] * 4)): o += [t] + (["s_add_u32 s13, s13, 0x20000"] if gp < 3 else [])
    return o
def preads(n, tag=None):
    for t in pread_ops(n): st.add(t, tag=tag if t.startswith("buffer") else None)
def hint(off): return ["v_mov_b32 v240, 0", f"buffer_atomic_add v240, v19, s[48:51], s15 offen offset:{off} sc0 sc1"]
def wait_hint(lab, word, off):
    wave0_wait(lab, word, "v_cmp_eq_u32 vcc, -1, v240", hint(off))
m2 = ["buffer_load_dwordx4 v[252:255], v8, s[48:51], 0 offen sc1", "buffer_load_dwordx4 v[26:29], v8, s[48:51], s11 offen sc1"]
for n in range(2): preads(n)
A(pre_off(3).replace("s13", "s15"))
for t in hint(384): A(t)
w_read(NW0)
A("v_mov_b32 v2, 0x3f80\nv_mov_b32 v3, 0x3f800000")
for r in range(32): A(f"v_mov_b32 v{96+r}, 0")
def accq(n):
    for gp in range(4):
        for r in range(4): A(f"v_dot2c_f32_bf16 v{96+8*n+2*r}, v{160+16*n+4*gp+r}, v2\nv_dot2c_f32_bf16 v{97+8*n+2*r}, v{160+16*n+4*gp+r}, v3")
for r in range(8): A(f"v_lshlrev_b32 v{144+2*r}, 16, v{244+r}\nv_and_b32 v{145+2*r}, 0xffff0000, v{244+r}")
cond2 = """v_cmp_ne_u32 vcc, s34, v253
    v_cmp_ne_u32 s[100:101], s34, v255
    s_or_b64 vcc, vcc, s[100:101]
    v_cmp_ne_u32 s[100:101], s34, v27
    s_or_b64 vcc, vcc, s[100:101]
    v_cmp_ne_u32 s[100:101], s34, v29
    s_or_b64 vcc, vcc, s[100:101]"""
A(cond2); A("s_cbranch_vccz L_pm2_x")
keep = (list(st.vm), list(st.lg))
spin("L_pm2", ["s_sleep 8"] + m2, cond2)
st.vm, st.lg = keep
A(f"""
s_cmp_lt_u32 s35, 2
s_cselect_b32 s60, 1.0, 0
v_lshlrev_b32 v128, 16, v252
v_and_b32 v129, 0xffff0000, v252
v_lshlrev_b32 v130, 16, v254
v_and_b32 v131, 0xffff0000, v254
v_lshlrev_b32 v132, 16, v26
v_and_b32 v133, 0xffff0000, v26
v_lshlrev_b32 v134, 16, v28
v_and_b32 v135, 0xffff0000, v28
v_add_f32 v132, s60, v132
v_add_f32 v133, s60, v133
v_add_f32 v134, s60, v134
v_add_f32 v135, s60, v135
v_lshlrev_b32 v8, 4, v0
v_add_u32 v8, {MODV}, v8
ds_write_b128 v8, v[128:131]
ds_write_b128 v8, v[132:135] offset:4096
""")
OWN5 = [0, 1, 2, 3, 4]
A(f"""
s_mul_i32 s6, s35, {UNIT}
s_add_u32 s6, s6, 65536
s_sub_u32 s60, s6, s63
s_waitcnt lgkmcnt(0)
v_add_u32 v20, s60, v9
s_barrier
""")
stamp("epr")
w_dma(OPT.get("nA", 0), OWN5)
def modrd(dst, vec):
    for h in range(2):
        for q in range(2): A(f"ds_read_b128 v[{dst+8*h+4*q}:{dst+8*h+4*q+3}], v{242+h} offset:{vec*2048 + q*16}")
modrd(32, 0); modrd(48, 2); modrd(64, 1)
wait_hint("L_hp", 1, 384)
stamp("f1st")
preads(2, "p23"); preads(3, "p23")
w_dma(OPT.get("nB", 4), OWN5)
accq(0); accq(1)
chk23 = "v_max3_u32 v240, v192, v196, v200\nv_max3_u32 v240, v240, v204, v208\nv_max3_u32 v240, v240, v212, v216\nv_max_u32 v240, v240, v220\nv_cmp_eq_u32 vcc, -1, v240"
st.need("p23")
A(chk23); A("s_cbranch_vccz L_p23_x")
keep = (list(st.vm), list(st.lg)); spin("L_p23", ["s_sleep 2"] + pread_ops(2) + pread_ops(3), chk23); st.vm, st.lg = keep
stamp("f1ok")
accq(2); accq(3)
stamp("eacc3")
for h in range(2):
    for r in range(8): A(f"v_permlane32_swap_b32 v{96+16*h+r}, v{104+16*h+r}")
for h in range(2):
    for r in range(0, 8, 2): A(f"v_pk_add_f32 v[{128+8*h+r}:{129+8*h+r}], v[{96+16*h+r}:{97+16*h+r}], v[{104+16*h+r}:{105+16*h+r}]")
for r in range(8): A(f"v_pk_fma_f32 v[{128+2*r}:{129+2*r}], v[{128+2*r}:{129+2*r}], v[{32+2*r}:{33+2*r}], v[{144+2*r}:{145+2*r}]")
for r in range(8): A(f"v_cvt_pk_bf16_f32 v{144+r}, v{128+2*r}, v{129+2*r}")
def row_stats(x):
    A(f"v_pk_add_f32 v[96:97], v[{x}:{x+1}], v[{x+2}:{x+3}]\nv_pk_mul_f32 v[98:99], v[{x}:{x+1}], v[{x}:{x+1}]")
    A(f"v_pk_fma_f32 v[98:99], v[{x+2}:{x+3}], v[{x+2}:{x+3}], v[98:99]")
    for r in range(2, 8):
        A(f"v_pk_add_f32 v[96:97], v[96:97], v[{x+2*r}:{x+2*r+1}]\nv_pk_fma_f32 v[98:99], v[{x+2*r}:{x+2*r+1}], v[{x+2*r}:{x+2*r+1}], v[98:99]")
    A("v_add_f32 v96, v96, v97\nv_add_f32 v98, v98, v99")
    for d in ("quad_perm:[2,3,0,1]", "row_ror:4", "row_ror:8"):
        A(f"v_add_f32_dpp v96, v96, v96 {d} row_mask:0xf bank_mask:0xf\nv_add_f32_dpp v98, v98, v98 {d} row_mask:0xf bank_mask:0xf")
    for sw in ("16", "32"):
        A(f"v_mov_b32 v97, v96\nv_mov_b32 v99, v98\nv_permlane{sw}_swap_b32 v96, v97\nv_permlane{sw}_swap_b32 v98, v99\nv_add_f32 v96, v96, v97\nv_add_f32 v98, v98, v99")
    A(f"""v_mul_f32 v97, {f2u(1/512)}, v96
    v_mul_f32 v98, {f2u(1/512)}, v98
    v_fma_f32 v98, -v97, v97, v98
    v_max_f32 v98, 0, v98
    v_add_f32 v98, {f2u(1e-5)}, v98
    v_rsq_f32 v96, v98
    v_mul_f32_e64 v98, -v97, v96""")
row_stats(128)
for r in range(8): A(f"v_pk_fma_f32 v[{128+2*r}:{129+2*r}], v[{128+2*r}:{129+2*r}], v[96:97], v[98:99] op_sel_hi:[1,0,0]")
for r in range(8): A(f"v_pk_fma_f32 v[{128+2*r}:{129+2*r}], v[{128+2*r}:{129+2*r}], v[{48+2*r}:{49+2*r}], v[{64+2*r}:{65+2*r}]")
row_stats(128)
for r in range(8): A(f"v_pk_fma_f32 v[{128+2*r}:{129+2*r}], v[{128+2*r}:{129+2*r}], v[96:97], v[98:99] op_sel_hi:[1,0,0]")
for r in range(8): A(f"v_cvt_pk_bf16_f32 v{152+r}, v{128+2*r}, v{129+2*r}")
A(f"s_add_u32 s61, s10, {WS_Y}")
st.add("buffer_store_dwordx4 v[152:155], v6, s[48:51], s61 offen sc1", tag="y")
st.add("buffer_store_dwordx4 v[156:159], v7, s[48:51], s61 offen sc1", tag="y")
A(f"s_add_u32 s61, s10, {WS_X1}")
st.add("buffer_store_dwordx4 v[144:147], v6, s[48:51], s61 offen sc1", tag="y")
st.add("buffer_store_dwordx4 v[148:151], v7, s[48:51], s61 offen sc1", tag="y")
stamp("ysent")
w_read(WS.nd - WS.nr); w_dma(OPT.get("nD", 3), OWN5)
A(f"""
v_lshrrev_b32 v2, 4, v1
s_lshl_b32 s12, s58, 16
s_lshl_b32 s11, s35, 14
s_add_u32 s12, s12, s11
s_add_u32 s12, s12, {WS_Y}
s_lshl_b32 s61, s58, 3
s_add_u32 s61, s61, s59
s_lshl_b32 s9, s61, 7
s_add_u32 s9, s9, {WS_F3}
s_cmp_lg_u32 s35, 0
s_cselect_b32 s9, {OOB}, s9
s_lshl_b32 s0, s58, 2
s_add_u32 s0, s0, s35
s_lshl_b32 s0, s0, 8
s_add_u32 s0, s0, {WS_F3}
v_min_u32 v23, 2, v1
v_lshrrev_b32 v22, 1, v23
v_lshlrev_b32 v23, 7, v23
v_lshl_add_u32 v23, v22, 28, v23
v_and_b32 v22, 31, v1
v_lshlrev_b32 v22, 2, v22
v_lshrrev_b32 v4, 3, v1
v_lshrrev_b32 v5, 1, v4
v_xor_b32 v5, v5, v1
v_and_b32 v5, 7, v5
v_lshlrev_b32 v5, 4, v5
v_lshl_add_u32 v4, v4, 10, v5
v_xor_b32 v5, 64, v4
v_add_u32 v5, 8192, v5
v_bfe_u32 v15, v1, 1, 3
v_xor_b32 v15, v15, v2
v_lshlrev_b32 v15, 4, v15
v_and_b32 v17, 7, v1
v_lshl_add_u32 v15, v17, 7, v15
v_bfe_u32 v17, v1, 3, 1
v_lshl_add_u32 v15, v17, 13, v15
v_xor_b32 v17, 64, v15
""")
for r in range(8): A(f"v_lshlrev_b32 v{224+2*r}, 16, v{80+r}\nv_and_b32 v{225+2*r}, 0xffff0000, v{80+r}")
stamp("ewr")
st.need("y")
stamp("eyack")
A("s_barrier"); A("buffer_store_dword v25, v22, s[48:51], s9 offen sc1")
w_read(WS.nd - WS.nr)
def y_dma(poller):
    A("s_and_b32 s13, s14, 7\ns_lshl_b32 s13, s13, 7")
    for sp in range(8):
        A("s_add_u32 s61, s12, s13")
        for qh in range(2):
            A(f"s_add_u32 m0, s11, {qh*8192 + sp*1024}")
            st.add(f"buffer_load_dwordx4 v{4+qh}, s[48:51], s61 offen sc1 lds", tag=("Y", sp >> 2))
        if sp < 7: A("s_add_u32 s13, s13, 128\ns_and_b32 s13, s13, 1023")
probe = ["v_mov_b32 v240, 0", "buffer_atomic_add v240, v23, s[48:51], s0 offen sc0 sc1"]; ctest = "v_cmp_ne_u32 vcc, s34, v240\ns_and_b64 vcc, vcc, 3"
w_dma(OPT.get("nE", 2), OWN5)
for t in probe: A(t)
w_dma(OPT.get("nE2", 1), OWN5)
stamp("epre2")
A(ctest); A("s_cbranch_vccz L_pf2_x")
keep = (list(st.vm), list(st.lg)); spin("L_pf2", probe, ctest); st.vm, st.lg = keep
stamp("ebar2")
y_dma(False)
w_dma(OPT.get("nE3", 1), OWN5)
assert WS.nd > 16
stamp("f2ok")
if OPT.get("warm2", 1): warm("L_w2")
A(f"s_lshl_b32 s60, s2, 2\ns_add_u32 s60, s60, s35\ns_cmp_lg_u32 s60, 1\ns_cbranch_scc1 L_noep\nv_lshlrev_b32 v2, 7, v1\nv_add_u32 v2, {WS_F1}, v2\ns_mov_b32 s60, 0x2000\ns_mov_b32 s61, 0x4000\ns_mov_b32 s13, 0x6000")
keep = (list(st.vm), list(st.lg))
spin("L_ep", [f"buffer_load_dword v{40+i}, v2, s[48:51], {['0', 's60', 's61', 's13'][i]} offen sc1" for i in range(4)],
     "v_cmp_ne_u32 vcc, s34, v40\n" + "".join(f"v_cmp_ne_u32 s[100:101], s34, v{40+i}\ns_or_b64 vcc, vcc, s[100:101]\n" for i in range(1, 4)))
A("v_mov_b32 v2, 0\nbuffer_store_dword v25, v2, s[48:51], 0 offen sc1\nL_noep:"); st.vm, st.lg = keep
st.need(("Y", 0))
A("s_barrier")
stamp("Yin")

def yb(n, s, c2): return 96 + (n & 1) * 32 + (s * 2 + c2) * 4
def hacc(half, tile, cb): return 32 + half * 32 + (tile * 4 + cb) * 4
def yreads(n):
    cp, k4 = (n >> 2) & 1, n & 3
    return [f"ds_read_b128 v[{yb(n,s,c2)}:{yb(n,s,c2)+3}], v{15 if s % 2 == 0 else 17} offset:{(cp*2+c2)*16384 + (k4*2+(s>>1))*1024}" for c2 in range(2) for s in range(4)]
C1 = -2 * 0.7978845608028654 * 1.4426950408889634; C2 = C1 * 0.044715
def gelu_stages(q):
    half, cp = q >> 1, q & 1
    X = [hacc(half, t, cp * 2 + c2) + r for c2 in range(2) for t in range(2) for r in (0, 2)]; T = [240 + 2 * i for i in range(8)]
    pr = lambda r: f"v[{r}:{r+1}]"
    a = [f"v_pk_mul_f32 {pr(t)}, {pr(x)}, {pr(x)}" for x, t in zip(X, T)] + [f"v_pk_fma_f32 {pr(t)}, {pr(t)}, s[92:93], v[26:27] op_sel_hi:[1,0,0]" for t in T] + [f"v_pk_mul_f32 {pr(t)}, {pr(x)}, {pr(t)}" for x, t in zip(X, T)]
    b = [f"v_exp_f32 v{240+i}, v{240+i}" for i in range(16)]
    c = [f"v_pk_add_f32 {pr(t)}, {pr(t)}, 1.0 op_sel_hi:[1,0]" for t in T]
    d = [f"v_rcp_f32 v{240+i}, v{240+i}" for i in range(16)]
    e = [f"v_pk_mul_f32 {pr(x)}, {pr(x)}, {pr(t)}" for x, t in zip(X, T)]
    st_ = []
    for c2 in range(2):
        cb = cp * 2 + c2; dd = hacc(half, 0, cb)
        e += [f"v_cvt_pk_bf16_f32 v{dd+k}, v{X[4*c2+k]}, v{X[4*c2+k]+1}" for k in range(4)]
        e.append(f"v_min_u32 v{dd}, -2, v{dd}")
        st_.append(f"buffer_store_dwordx4 v[{dd}:{dd+3}], v16, s[48:51], s{93+1+half} offen offset:{cb*1024} sc1")
    return a, b, c, d, e, st_
def flag3(q): return f"buffer_store_dword v25, v22, s[48:51], s11 offen offset:{q*512} sc1"
for t in yreads(0): A(t)
late_w = []
assert WS.nr >= 12
while WS.nr < min(WS.nd, 20):
    u = WS.nr; WS.nr += 1; r = WS.slot_of[u]
    late_w += [(t, u) for t in p8_reads((lambda tp, tile: ("a", w1reg(tp, u, tile))) if u < 16 else (lambda tp, tile: w2reg(u - 16, tp, tile)), r * UNIT if r < 4 else 0, "v9" if r < 4 else "v20")]
A(f"""
s_mov_b32 s92, {f2u(C2)}
v_mov_b32 v26, {f2u(C1)}
s_lshl_b32 s60, s58, 3
s_add_u32 s60, s60, s59
s_mul_i32 s94, s60, 40960
s_mul_i32 s61, s35, 5120
s_add_u32 s94, s94, s61
s_add_u32 s94, s94, {WS_H1}
s_add_u32 s95, s94, 20480
s_mul_i32 s1, s58, 327680
s_add_u32 s1, s1, s61
s_add_u32 s1, s1, {WS_H1}
""")
NE = WS.nd - 16
W2S = {ks: ([0, 1, 2, 3, 4] * 3)[ks - NE] for ks in range(NE, 14)}
if NE == 5: W2S[4] = WS.slot_of[20]; assert W2S[4] == 4
def w2_m0(r): return f"s_add_u32 m0, s63, {r*UNIT}" if r < 4 else "s_mov_b32 m0, s6"
def w2_reads(ks): r = W2S[ks]; return p8_reads(lambda tp, tile: w2reg(ks, tp, tile), r * UNIT if r < 4 else 0, "v9" if r < 4 else "v20")
def hB(Q, k, c2):
    r = (k * 2 + c2) * 4
    if Q == 0: return ("a", 80 + r) if r < 48 else ("v", 224 + r - 48)
    if Q == 2: return ("v", 32 + r if r < 40 else (80 + r - 40 if r < 48 else 232 + r - 48))
    return [None, ("a", 136 + r), None, ("a", 80 + r)][Q]
def h_loads(Q, run="s8", tmp="s10"):
    o = []
    for k in range(7):
        o.append(f"s_add_u32 {tmp}, s1, {run}")
        for c2 in range(2):
            f, r = hB(Q, k, c2); o.append(f"buffer_load_dwordx4 {f}[{r}:{r+3}], v{16 + 2*(Q>>1)}, s[48:51], {tmp} offen offset:{((Q&1)*2+c2)*1024} sc1")
        o += [f"s_add_u32 {run}, {run}, 40960", f"s_cmp_eq_u32 {run}, {7 * 40960}\ns_cselect_b32 {run}, 0, {run}"]
    return o
def chk3(q): return f"buffer_load_dword v{28 + (q&1)}, v23, s[48:51], s0 offen offset:{q*512} sc1"
A("v_add_u32 v18, 20480, v16\ns_mov_b32 s9, s8")
M = []; Fl = []; RES = {}
for n in range(16):
    q = n >> 2; half, cp, k4 = q >> 1, q & 1, n & 3; g0 = len(M)
    for tile in range(2):
        for c2 in range(2):
            for s in range(4):
                M.append(mf(hacc(half, tile, cp * 2 + c2), w1reg(half, 4 * k4 + s, tile), yb(n, s, c2), (224 + half * 8 + tile * 4) if (k4 == 0 and s == 0) else None, "v", "a", "v"))
    if n == 0:
        nl = len(late_w) - 8 * OPT.get("nE3", 1)
        LW = OPT.get("lws", 3)
        for i, (t, u) in enumerate(late_w): Fl.append(F(t, i * LW // 4 if i < nl else max(17, nl * LW // 4) + (i - nl) // 2, i * LW // 4 if i < nl else max(17, nl * LW // 4) + (i - nl) // 2, "lw", tag=("LW", i >> 3), need=[("W1", u)] if i % 8 == 0 else None))
    if n == 1: Fl.append(F(("barrier", [("Y", 1)]), g0, g0, "rd"))
    if n < 15:
        for i, t in enumerate(yreads(n + 1)): Fl.append(F(t, g0 + i, g0 + i + 1, "rd"))
    RES[g0 + 15] = 1
nlw = len(late_w) // 8; lslot = [WS.slot_of[u] for u in range(WS.nr - nlw, WS.nr)]
free = [(r, None) for r in range(5) if r not in lslot and not (NE == 5 and r == 4)] + [(r, ("LW", i)) for i, r in enumerate(lslot)]
ev = []; gd = OPT.get("gw2", 14); rdg = {}; PACE = OPT.get("pace", 14)
afree = {4: 81, 5: 86, 6: 97, 7: 102, 8: 113}
if NE == 5: rdg[4] = afree[4]; ev.append((rdg[4], "r", 4))
for ks in range(NE, 14):
    if free: r, nd = free.pop(0)
    else: r, nd = W2S[ks - 5], ("R2", ks - 5); gd = max(gd, rdg[ks - 5] + 8)
    W2S[ks] = r; ev.append((gd, "d", ks, nd))
    if ks < 9: rdg[ks] = max(gd + 44, afree.get(ks, 0)); ev.append((rdg[ks], "r", ks))
    gd += PACE
for e in sorted(ev, key=lambda e: e[0]):
    g, kind, ks = e[:3]
    if kind == "d":
        p = w2_pre(ks); spread_dma(Fl, g, [w2_m0(W2S[ks])] + p[:1], dma4("s60"), p[1:], ("W2", ks), [e[3]], 3)
    else:
        for k, t in enumerate(w2_reads(ks)): Fl.append(F(t, g + k // 2, g + (k + 1) // 2, "w2r", tag=("R2", ks), need=[("W2", ks)] if k == 0 else None))
CAP = {}
for q in range(3):
    g = 64 * (q + 1) + 4; a_, b_, c_, d_, e_, st_ = gelu_stages(q)
    Fl.append(F("\n".join(a_), g, g, "gelu"))
    for i, t in enumerate(b_): Fl.append(F(t, g + 1 + i, g + 1 + i, "gelu"))
    Fl.append(F("\n".join(c_), g + 18, g + 18, "gelu"))
    for i, t in enumerate(d_): Fl.append(F(t, g + 19 + i, g + 19 + i, "gelu"))
    Fl.append(F("\n".join(e_), g + 36, g + 36, "gelu"))
    for i, t in enumerate(st_): Fl.append(F(t, g + 37 + 2 * i, g + 37 + 2 * i, "gelu", tag=("h1", q)))
    for k in range(g + 1, g + 35): CAP[k] = 3
def h_check(Q):
    o = []
    for k in range(7):
        for c2 in range(2):
            f, r = hB(Q, k, c2)
            if f == "a": o.append(f"v_accvgpr_read_b32 v29, a{r}"); r = 29
            o.append(f"v_mov_b32 v28, v{r}" if not (k or c2) else f"v_max_u32 v28, v28, v{r}")
    return o
def check_F(Q, e, l, chain): return [F(t, e, l, chain, need=[("H", Q)] if i == 0 else None) for i, t in enumerate(h_check(Q))]
def spread_loads(Fl, ops, g0, step, chain="hl", tag=None):
    g = g0
    for t in ops:
        Fl.append(F(t, g - 2, g + 1, chain, tag=tag if t.startswith("buffer") else None))
        if t.startswith("buffer"): g += step
    return g
def have(Q):
    c = "v_cmp_eq_u32 vcc, -1, v28"
    A(c); A(f"s_cbranch_vccz L_h{Q}_x")
    keep = (list(st.vm), list(st.lg), list(st.hist))
    spin(f"L_h{Q}", ["s_sleep 4"] + [x for t in h_loads(Q, "s9", "s13") for x in t.split("\n")], "\n".join(h_check(Q)) + "\n" + c)
    st.vm, st.lg, st.hist = keep
    stamp(f"mchk{Q}")
spread_loads(Fl, h_loads(0), OPT.get("gl0", 176), 4, "ck", ("H", 0))
hl = h_loads(1); n1a = 5 * OPT.get("n1a", 3)
spread_loads(Fl, hl[:n1a], 234, 4, "ck", ("H", 1)); hl = hl[n1a:]
Fl += check_F(0, 241, 255, "hc")
for q in range(1, 4): Fl += stampF(f"mq{q}", 64 * q)
if OPT.get("abl"):
    ab = OPT["abl"]
    def drop(f):
        if isinstance(f.ins, tuple): return False
        t = f.ins.txt
        return (ab & 1 and t.endswith("lds")) or (ab & 2 and t.startswith("buffer_store_dwordx4")) or (ab & 4 and f.chain == "ck" and "dwordx4" in t) or (ab & 8 and f.chain == "w2r")
    Fl = [f for f in Fl if not drop(f)]
schedule(st, M, Fl, reserve=RES, verbose="G1", mem2=("rd", "dma", "w2r", "ck", "lw"), minback=0, capx=CAP)
stamp("G1")
a_, b_, c_, d_, e_, st_ = gelu_stages(3)
for i, t in enumerate(a_ + b_ + c_ + d_ + e_):
    A(t)
    if i % 9 == 8:
        while hl:
            x = hl.pop(0)
            if x.startswith("buffer"): st.add(x, tag=("H", 1)); break
            A(x)
for t in st_: A(t)
stamp("mgelu3")
have(0)
stamp("gelu")

def facc(tp, tile, cb): return 96 + (tp * 8 + tile * 4 + cb) * 4
def g2(Q):
    r = []
    for ch in (([0, 1], [2, 3], [4, 5, 6]) if Q < 2 else ([0, 1, 2, 3, 4, 5, 6],)):
        for tp in range(2):
            for tile in range(2):
                for c2 in range(2):
                    for k in ch:
                        fa, ra = w2reg((Q >> 1) * 7 + k, tp, tile); fb, rb = hB(Q, k, c2)
                        r.append(mf(facc(tp, tile, (Q & 1) * 2 + c2), ra, rb, "0" if (Q < 2 and k == 0) else None, "v", fa, fb))
    return r
Fl = []
for i in range(4):
    for k, t in enumerate(w2_reads(9 + i)): Fl.append(F(t, 8 * i + k, 8 * i + k + 1, "rd", need=[("W2", 9 + i)] if k == 0 else None))
g = spread_loads(Fl, hl, 0, 3, tag=("H", 1))
spread_loads(Fl, h_loads(2), max(g, OPT.get("gl2", 10)), OPT.get("st2", 3), tag=("H", 2))
Fl += check_F(1, 41, 55, "hc")
schedule(st, g2(0), Fl)
stamp("mg20")
have(1)
with Capture() as cp:
    A(f"""
v_and_b32 v2, 15, v1
v_lshlrev_b32 v2, 10, v2
v_lshrrev_b32 v3, 4, v1
v_lshl_add_u32 v2, v3, 4, v2
v_lshlrev_b32 v4, 4, v3
s_lshl_b32 s92, s58, 16
s_lshl_b32 s60, s35, 14
s_add_u32 s92, s92, s60
s_lshl_b32 s95, s59, 7
s_add_u32 s92, s92, s95
s_add_u32 s60, s92, {WS_X1}
""")
    srd(52, 22, 1024)
Fl = cp.fillers(0, 30, "su", ren=False)
Fl += [F(t, 32 + k, 33 + k, "rd", need=[("W2", 13)] if k == 0 else None) for k, t in enumerate(w2_reads(13))]
spread_loads(Fl, h_loads(3), OPT.get("gl3", 8), OPT.get("st2", 3), tag=("H", 3))
Fl += check_F(2, 46, 55, "hc")
schedule(st, g2(1), Fl)
stamp("G2a")
have(2)
def fwrite(cb, tp, tile): return f"ds_write_b128 v5, v[{facc(tp,tile,cb)}:{facc(tp,tile,cb)+3}] offset:{cb*16384 + (tp*2+tile)*1024}"
def fw_F(Q, n0, n1, shift):
    return [F(fwrite((Q & 1) * 2 + (n & 1), n >> 2, (n >> 1) & 1), 7 * n + 6 + 8 + shift, 7 * n + 6 + 8 + shift, "fw") for n in range(n0, n1)]
Fl = []
spread_loads(Fl, ["buffer_load_dwordx4 v[240:243], v2, s[48:51], s60 offen sc1", "buffer_load_dwordx4 v[244:247], v2, s[48:51], s60 offen offset:64 sc1",
             "buffer_load_dwordx4 v[248:251], v4, s[52:55], s95 offen", "buffer_load_dwordx4 v[252:255], v4, s[52:55], s95 offen offset:64"], 2, 6)
Fl += check_F(3, 41, 55, "hc")
for t in ["s_lshl_b32 s3, s35, 12", "v_add_u32 v5, s3, v16"]: Fl.append(F(t, 0, 2, "fw"))
Fl.append(F(("barrier", []), 3, 3, "fw"))
Fl += fw_F(2, 0, 6, 0)
schedule(st, g2(2), Fl)
stamp("mg22")
have(3)
with Capture() as cp:
    A(f"""
s_lshl_b32 s60, s35, 14
v_add_u32 v6, s60, v16
v_lshlrev_b32 v7, 5, v3
s_lshl_b32 s60, s59, 8
s_add_u32 s60, s60, {MODV + 3*2048}
v_add_u32 v7, s60, v7
""")
    for tp in range(2):
        for q in range(2): A(f"ds_read_b128 v[{64+tp*8+4*q}:{67+tp*8+4*q}], v7 offset:{tp*128+q*16}")
    for r in range(8): A(f"v_lshlrev_b32 v{32+2*r}, 16, v{240+r}\nv_and_b32 v{33+2*r}, 0xffff0000, v{240+r}\nv_lshlrev_b32 v{48+2*r}, 16, v{248+r}\nv_and_b32 v{49+2*r}, 0xffff0000, v{248+r}")
    srd(52, 28, 2048 * 1024)
Fl = fw_F(2, 6, 8, -56 + 2) + fw_F(3, 0, 6, 0) + cp.fillers(0, 50, "su", ren=False)
schedule(st, g2(3), Fl)
stamp("G2")
A(fwrite(2, 1, 1)); A(fwrite(3, 1, 1))
stamp("mwr")
A("s_waitcnt lgkmcnt(0)\ns_barrier")
stamp("mbar")
for src in range(4):
    for n in range(4): A(f"ds_read_b128 v[{96+src*16+n*4}:{99+src*16+n*4}], v6 offset:{src*4096+n*1024}")
for src in range(4):
    for r in range(8): A(f"v_pk_add_f32 v[{48+2*r}:{49+2*r}], v[{48+2*r}:{49+2*r}], v[{96+src*16+2*r}:{97+src*16+2*r}]")
for r in range(8): A(f"v_pk_fma_f32 v[{32+2*r}:{33+2*r}], v[{48+2*r}:{49+2*r}], v[{64+2*r}:{65+2*r}], v[{32+2*r}:{33+2*r}]")
for h in range(2):
    for r in range(4 * h, 4 * h + 4): A(f"v_cvt_pk_bf16_f32 v{80+r}, v{32+2*r}, v{33+2*r}")
    A(f"buffer_store_dwordx4 v[{80+4*h}:{83+4*h}], v2, s[52:55], s92 offen offset:{64*h}")
if OPT["stamps"]:
    stamp("end")
    A("s_memrealtime s[96:97]\ns_waitcnt lgkmcnt(0)\ns_cmp_lg_u32 s35, " + str(OPT.get("sw", 0)) + "\ns_cbranch_scc1 L_end\ns_mov_b64 exec, 1")
    A(f"s_lshl_b32 s60, s2, 9\ns_add_u32 s60, s60, {WS_STAMP}\nv_mov_b32 v6, 0")
    A(f"s_mov_b32 s{64+stamp_n[0]-1}, s90")
    lst = [64 + n for n in range(stamp_n[0])] + [98, 96, 15]
    A("v_mov_b32 v3, 0")
    for n, s in enumerate(lst): A(f"v_mov_b32 v2, s{s}\nbuffer_store_dwordx2 v[2:3], v6, s[48:51], s60 offen offset:{n*8}\ns_nop 1")
    if OPT["dbg"] >= 0:
        srd(52, 30, 256)
        A(f"s_cmp_lg_u32 s2, {OPT['dbg']}\ns_cbranch_scc1 L_end")
        sel = [i for i in range(1, stamp_n[0]) if stamp_names[i] not in ("norm", "gelu", "G2a")][:14]
        for n, k in enumerate(sel): A(f"s_sub_u32 s60, s{64+k}, s64\nv_mov_b32 v2, s60\nbuffer_store_dword v2, v6, s[52:55], 0 offen offset:{4+n*4}\ns_nop 1")
        A("s_sub_u32 s60, s96, s98\nv_mov_b32 v2, s60\nbuffer_store_dword v2, v6, s[52:55], 0 offen offset:60")
        print("dbg order:", [stamp_names[k] for k in sel], "realtime")
    open(os.path.splitext(sys.argv[1])[0] + ".names", "w").write(" ".join(stamp_names))
    print("stamps:", len(lst))
A("s_endpgm")
st.reset(); st.newphase()
A(f"""
L_redo:
s_waitcnt vmcnt(0) lgkmcnt(0)
s_nop 15
s_mov_b32 s95, 1
s_mov_b32 s3, 8
s_barrier
L_redo_c:
""")
pre, d, post = k_ops(0)
for t in pre + d + post: A(t)
A("s_waitcnt vmcnt(0)\ns_barrier")
for kt in range(4):
    for sx in range(4): A(f"ds_read_b128 a[{STG+4*sx}:{STG+4*sx+3}], v{17+sx} offset:{KA + kt*1024}")
    for cb in range(4):
        for sx in range(4): A(mf(S(0, cb), STG + 4 * sx, qop(sx, cb), None if sx else "0", "v", "a", "v"))
    for cb in range(4): A(f"v_max3_f32 v{FLOOR[cb]}, v{FLOOR[cb]}, v{S(0,cb)}, v{S(0,cb)+1}\nv_max3_f32 v{FLOOR[cb]}, v{FLOOR[cb]}, v{S(0,cb)+2}, v{S(0,cb)+3}")
A("s_barrier\ns_sub_u32 s3, s3, 1\ns_cmp_lg_u32 s3, 0\ns_cbranch_scc1 L_redo_c")
for t in attn_setup:
    if t.split()[1] not in ("s36,", "s37,", "s38,"): A(t)
for ops in (k_ops(0), k_ops(1), v_ops(0)):
    for t in ops[0] + ops[1] + ops[2]: A(t)
A("s_waitcnt vmcnt(0)\ns_barrier")
for sx in range(4): A(f"ds_read_b128 a[{STG+sx*4}:{STG+sx*4+3}], v{17+sx} offset:{KA}")
A("s_waitcnt lgkmcnt(0)\ns_branch L_attn")
st.raw(f"""L_end:
    s_endpgm
L_codeend:
.section .rodata,"a"
.p2align 6
.amdhsa_kernel {NAME}_kernel
  .amdhsa_next_free_vgpr 512
  .amdhsa_next_free_sgpr 102
  .amdhsa_accum_offset 256
  .amdhsa_group_segment_fixed_size 0
  .amdhsa_kernarg_size 120
  .amdhsa_user_sgpr_count 2
  .amdhsa_user_sgpr_kernarg_segment_ptr 1
  .amdhsa_system_sgpr_workgroup_id_x 1
.end_amdhsa_kernel""")
def with_stubs(txt):
    import subprocess, tempfile
    lines = txt.split("\n")
    isins = lambda l: l.startswith("    ") and l.strip() and not l.strip().startswith((".", ";"))
    NS = 24
    tail = "".join(f"L_stub{k}:\n" for k in range(NS))
    with tempfile.TemporaryDirectory() as d:
        open(d + "/a.s", "w").write(txt.replace("L_codeend:", tail + "L_codeend:").replace("@", ""))
        subprocess.run(["clang", "-x", "assembler", "-target", "amdgcn-amd-amdhsa", "-mcpu=gfx950", "-c", d + "/a.s", "-o", d + "/a.o"], check=True)
        dis = subprocess.run(["llvm-objdump", "-d", "--mcpu=gfx950", d + "/a.o"], capture_output=True, text=True).stdout
    enc = [len(m.group(1).split()) * 4 for m in re.finditer(r"// [0-9A-F]+: ((?:[0-9A-F]{8} ?)+)", dis)]
    j = lines.index("L_join:"); n_after = sum(map(isins, lines[j:]))
    sizes = enc[len(enc) - n_after:]
    out = lines[:j + 1]; pos = 0; k = 1; i = 0; off = False
    for l in lines[j + 1:]:
        if isins(l):
            if pos >= k * 4096 and l.strip() != "s_endpgm" and not off:
                out += [f"L_stub{k}:", f"    s_cbranch_execz L_stub{k+4}"]; pos += 4; k += 1
            pos += sizes[i]; i += 1
            if l.strip() == "s_mov_b64 exec, 0": off = True
            if l.strip() == "s_mov_b64 exec, -1": off = False
        if l == "L_codeend:": out += [f"L_stub{q}:" for q in range(k, NS)] + ["    s_setpc_b64 s[100:101]"]
        out.append(re.sub(r"@(\d)", lambda m: str(k + int(m.group(1))), l))
    print("code after join:", pos, "stubs", k - 1)
    return "\n".join(out)
open(sys.argv[1], "w").write(with_stubs(st.text()) if OPT.get("warm", 1) else st.text())
print("waits", st.nwait, "nop states", st.nnop)
```

```python
import sys, os, re, struct
sys.path.insert(0, os.path.join(os.path.dirname(os.path.abspath(__file__)), "tools"))
from asmgen import *
NAME = "adaLN_cond__sliding_block_cached__mixer_channel_mlp__prompt"
OPT = dict(stamps=0, gx=2, nt_wq=0, nt_wo=0, nt_kv=0, nt_mod=1, nt_x=0, pf_w1=1, pf_w2=2, pnt=1, early=1, dbg=-1)
for a in sys.argv[2:]:
    k, v = a.split("="); OPT[k] = int(v)
def nt(k): return " nt" if OPT["nt_" + k] else ""

KA, KB, VA, VB, XR = 0, 16512, 32896, 49408, 65920
HIMG = KB
RING0, RINGSZ, UNIT = 82304, 16512, 4128
MISC = 148352
MODV = MISC
SILU = MISC + 8192
RED = MISC + 9216
LGO = MISC + 12800
LDS_BYTES = 163840
WS_MOD, WS_F2, WS_F3, WS_F1 = 0x1000, 0x20000, 0x40000, 0x100000
WS_Y, WS_X1, WS_H1, WS_PART = 0x200000, 0x400000, 0x600000, 0x1000000
WS_STAMP = 0xF000000
OOB = 0x10000000
SCALE = 1.4426950408889634 / (128 ** 0.5)
def f2u(x): return struct.unpack("<I", struct.pack("<f", x))[0]
SPIN = 1 << 18

st = Stream()
A = st.A
stamp_n = [0]; stamp_names = []
def stamp(name=""):
    if not OPT["stamps"]: return
    if OPT["stamps"] == 7:
        if not (name in ("start", "norm", "O", "f1st", "end") or name.startswith("u")): return
    elif name.startswith("u"): return
    if OPT["stamps"] == 5:
        if not (name in ("start", "Yin", "G1", "gelu", "G2a", "G2", "end") or name.startswith("m")) or name == "mod": return
    elif OPT["stamps"] == 6:
        if not (name in ("start", "O", "f1st", "_f2q", "f1ok", "ysent", "f2ok", "Yin", "end") or name.startswith("e")): return
    elif name[0] in "me" and name not in ("mod", "end"): return
    if OPT["stamps"] not in (4, 6) and name.startswith("_"): return
    if OPT["stamps"] == 4 and not (name in ("start", "x", "mod", "h", "Q", "end") or name.startswith("_")): return
    if OPT["stamps"] == 3 and not (name in ("start", "h", "Q", "end") or name.startswith("q")): return
    if OPT["stamps"] == 2 and name.startswith("q"): return
    if OPT["stamps"] == 2 and name in ("x", "mod", "f1st", "f1ok", "ysent", "f2ok", "Yin", "gelu", "G2a", "G2"): return
    n = stamp_n[0]; stamp_n[0] += 1; stamp_names.append(name)
    assert n < 26
    if n: st.add(f"s_mov_b32 s{64+n-1}, s90")
    st.add("s_memrealtime s[90:91]" if OPT.get("rt") else "s_memtime s[90:91]")
def stampF(name, g):
    return [F(("call", lambda: stamp(name)), g, g)] if OPT["stamps"] > 1 else []
def dummyI(t):
    i = I(t); i.wr = []; return i
def dummy(t): st.add(dummyI(t))
def dummyF(t, e, l, chain):
    f = F(t, e, l, chain); f.ins.wr = []; return f
def srd(base, ptr, size):
    A(f"s_mov_b32 s{base}, s{ptr}\ns_mov_b32 s{base+1}, s{ptr+1}\ns_mov_b32 s{base+2}, {size}\ns_mov_b32 s{base+3}, 0x20000")
def mf(d, a, b, c=None, dt="v", at="a", bt="a"):
    cs = f"{dt}[{d}:{d+3}]" if c is None else (c if isinstance(c, str) else f"{dt}[{c}:{c+3}]")
    return f"v_mfma_f32_16x16x32_bf16 {dt}[{d}:{d+3}], {at}[{a}:{a+3}], {bt}[{b}:{b+3}], {cs}"
STG = 192
def stg(u, tile, s): return STG + (u & 1) * 16 + tile * 8 + s * 4
def p16_reads(dst, off, addr="v10"):
    r = []
    for tile in range(2):
        for s in range(2):
            f, d = dst(tile, s)
            for hf in range(2): r.append(f"ds_read_b64_tr_b16 {f}[{d+2*hf}:{d+2*hf+1}], {addr} offset:{off + s*2064 + hf*256 + tile*8}")
    return r
def p8_reads(dst, off, addr="v9"):
    r = []
    for tp in range(2):
        for tile in range(2):
            f, d = dst(tp, tile)
            for hf in range(2): r.append(f"ds_read_b64_tr_b16 {f}[{d+2*hf}:{d+2*hf+1}], {addr} offset:{off + tp*512 + hf*256 + tile*8}")
    return r
def voffs16(stride):
    A(f"""
    v_lshrrev_b32 v2, 5, v1
    v_lshlrev_b32 v2, 4, v2
    v_bfe_u32 v3, v1, 2, 3
    v_add_u32 v2, v2, v3
    v_mul_u32_u24 v2, {stride}, v2
    v_and_b32 v3, 3, v1
    v_lshl_add_u32 v11, v3, 4, v2
    v_add_u32 v12, {8*stride-1032}, v11
    v_add_u32 v13, {32*stride-2064}, v11
    v_add_u32 v14, {40*stride-3096}, v11
    """)
def voffs8(stride):
    A(f"""
    v_bfe_u32 v2, v1, 2, 3
    v_mul_u32_u24 v2, {stride}, v2
    v_lshrrev_b32 v3, 5, v1
    v_lshl_add_u32 v2, v3, 6, v2
    v_and_b32 v3, 3, v1
    v_lshl_add_u32 v11, v3, 4, v2
    v_add_u32 v12, {8*stride-1032}, v11
    v_add_u32 v13, {16*stride-2064}, v11
    v_add_u32 v14, {24*stride-3096}, v11
    """)
def dma4(soff, fl=""): return [f"buffer_load_dwordx4 v{11+i}, s[36:39], {soff} offen offset:{i*1032}{fl} lds" for i in range(4)]
def chain_dma(Fl, g0, pre, dmas, tag, need, chain, late=3):
    if OPT.get("nodma") and tag[0] == "W": dmas = []
    for t in pre: Fl.append(F(t, g0 - 5, g0 + late, chain))
    for i, t in enumerate(dmas): Fl.append(F(t, g0 + i // 2, g0 + late + i, chain, tag=tag, need=need if i == 0 else None))
def spread_dma(Fl, g0, pre, dmas, post, tag, need, step):
    if OPT.get("nodma"): dmas = []
    for t in pre: Fl.append(F(t, g0 - 3, g0, "dma"))
    for i, t in enumerate(dmas): Fl.append(F(t, g0 + i * step, g0 + i * step + 1, "dma", tag=tag, need=need if i == 0 else None))
    for t in post: Fl.append(F(t, g0, g0 + 3 * step + 2, "dma"))
class Capture:
    def __enter__(s):
        global A
        s.lines = []; s.old = A
        def cap(text): s.lines.extend(l.strip() for l in text.split("\n") if l.strip() and not l.strip().startswith(";"))
        A = cap; return s
    def __exit__(s, *a):
        global A
        A = s.old
    def fillers(s, e, l, chain, ren=True):
        out = []
        for t in s.lines:
            if ren: t = re.sub(r"\bs60\b", "s100", re.sub(r"\bs61\b", "s101", t))
            if t.split()[0] in ("s_cselect_b32", "s_addc_u32", "v_cndmask_b32"): out[-1] += "\n" + t
            else: out.append(t)
        n = len(out)
        return [F(t, e, e + (l - e) * (i + 1) // n, chain) for i, t in enumerate(out)]
def spin(label, load, cond):
    A(f"s_mov_b32 s3, {SPIN}")
    st.raw(f"{label}:")
    for t in load: st.add(t)
    A("s_sub_u32 s3, s3, 1\ns_waitcnt vmcnt(0)")
    A(cond)
    A(f"s_cmp_eq_u32 s3, 0\ns_cbranch_scc1 {label}_x\ns_cbranch_vccnz {label}")
    st.raw(f"{label}_x:")

st.raw(f"""; adaLN + GQA window attention + channel MLP, one persistent launch, 256 workgroups (one per CU)
; @launch grid=(256,1,1) block=(256,1,1) lds={LDS_BYTES}
.amdgcn_target "amdgcn-amd-amdhsa--gfx950"
.text
.globl {NAME}_kernel
.p2align 8
.type {NAME}_kernel,@function
{NAME}_kernel:
L_start:""")
A("""
s_cmp_ge_u32 s2, 256
s_cbranch_scc1 L_end
s_load_dwordx16 s[4:19], s[0:1], 0
s_load_dwordx8 s[20:27], s[0:1], 64
s_load_dwordx4 s[28:31], s[0:1], 96
s_load_dwordx2 s[32:33], s[0:1], 112
""")
if OPT["stamps"]: A("s_memrealtime s[98:99]")
stamp("start")
GX = OPT["gx"]; lg = {1: 0, 2: 1, 4: 2}[GX]
A(f"""
v_and_b32 v1, 63, v0
v_lshrrev_b32 v2, 6, v0
s_and_b32 s96, s2, 7
s_lshr_b32 s97, s2, 3
v_readfirstlane_b32 s35, v2
s_and_b32 s56, s96, {8//GX - 1}
s_lshl_b32 s56, s56, {lg}
s_and_b32 s60, s97, {GX - 1}
s_add_u32 s56, s56, s60
s_lshr_b32 s57, s96, {3 - lg}
s_lshl_b32 s57, s57, {5 - lg}
s_lshr_b32 s61, s97, {lg}
s_add_u32 s57, s57, s61
s_lshl_b32 s60, s60, {3 - lg}
s_add_u32 s95, s57, s60
s_and_b32 s95, s95, {OPT.get("rotmask", 7)}
s_lshl_b32 s58, s96, 2
s_lshr_b32 s59, s97, 3
s_add_u32 s58, s58, s59
s_and_b32 s59, s97, 7
s_mul_i32 s63, s35, {RINGSZ}
s_add_u32 s63, s63, {RING0}
s_movk_i32 s101, 1023
v_lshlrev_b32 v16, 4, v1
v_lshrrev_b32 v2, 4, v1
v_and_b32 v5, 15, v1
v_mul_u32_u24 v3, 1032, v2
v_lshl_add_u32 v9, v5, 4, v3
v_add_u32 v9, s63, v9
v_and_b32 v3, 1, v2
v_mul_u32_u24 v3, 1032, v3
v_lshl_add_u32 v3, v5, 4, v3
v_lshrrev_b32 v4, 1, v2
v_lshl_add_u32 v10, v4, 9, v3
v_add_u32 v10, s63, v10
v_mul_u32_u24 v4, 2064, v4
v_add_u32 v21, v3, v4
v_add_u32 v21, {VA}, v21
s_lshl_b32 s60, s95, 7
v_lshl_add_u32 v3, v5, 4, s60
v_lshlrev_b32 v2, 10, v2
v_and_or_b32 v124, v3, s101, v2
v_add_u32 v3, 256, v3
v_and_or_b32 v125, v3, s101, v2
v_add_u32 v3, 256, v3
v_and_or_b32 v126, v3, s101, v2
v_add_u32 v3, 256, v3
v_and_or_b32 v127, v3, s101, v2
s_getpc_b64 s[92:93]
L_pc:
s_sub_u32 s92, s92, L_pc-L_start
s_subb_u32 s93, s93, 0
s_lshl_b32 s3, s97, 12
v_lshl_add_u32 v4, v0, 4, s3
v_min_u32 v4, L_codeend-L_start-16, v4
global_load_dwordx4 a[248:251], v4, s[92:93]
s_waitcnt lgkmcnt(0)
s_load_dword s34, s[32:33], 0
""")
st.vm = []
stamp("_karg")
srd(48, 32, 0x10000000)
KS = OPT.get("ks", 4)
WS_MOD2 = WS_MOD + 4096 * KS
def silu_to_lds(creg, t=2):
    A(re.sub(r"\bv([2-5])\b", lambda m: f"v{int(m.group(1)) - 2 + t}", f"""
    v_lshlrev_b32 v2, 16, v{creg}
    v_and_b32 v3, 0xffff0000, v{creg}
    v_mul_f32 v4, {f2u(-1.4426950408889634)}, v2
    v_mul_f32 v5, {f2u(-1.4426950408889634)}, v3
    v_exp_f32 v4, v4
    v_exp_f32 v5, v5
    v_add_f32 v4, 1.0, v4
    v_add_f32 v5, 1.0, v5
    v_rcp_f32 v4, v4
    v_rcp_f32 v5, v5
    v_mul_f32 v2, v2, v4
    v_mul_f32 v3, v3, v5
    v_cvt_pk_bf16_f32 v2, v2, v3
    v_lshlrev_b32 v3, 2, v0
    v_add_u32 v3, {SILU}, v3
    ds_write_b32 v3, v2
    """))
def publish(ntile, src, lab, dst, tag="s34", tmp=2, stmp="s60"):
    W = 64 * ntile
    A(f"""
    v_lshrrev_b32 v{tmp}, 4, v1
    v_lshlrev_b32 v{tmp}, 5, v{tmp}
    s_mul_i32 {stmp}, s35, {W}
    s_add_u32 {stmp}, {stmp}, {RED}
    v_add_u32 v{tmp}, {stmp}, v{tmp}
    s_mov_b32 exec_lo, 0x00010001
    s_mov_b32 exec_hi, 0x00010001
    """)
    for t in range(ntile): A(f"ds_write_b128 v{tmp}, v[{src+4*t}:{src+4*t+3}] offset:{(t>>1)*128 + (t&1)*16}")
    A(f"""
    s_mov_b64 exec, -1
    s_waitcnt lgkmcnt(0)
    s_barrier
    s_cmp_lg_u32 s35, 0
    s_cbranch_scc1 {lab}
    v_lshlrev_b32 v{tmp}, 3, v1
    v_add_u32 v{tmp+1}, {RED}, v{tmp}
    s_mov_b32 exec_lo, {(1 << (8*ntile)) - 1}
    s_mov_b32 exec_hi, 0
    """)
    for i in range(4): A(f"ds_read_b64 v[{src+2*i}:{src+2*i+1}], v{tmp+1} offset:{i*W}")
    A(f"""
    v_pk_add_f32 v[{src}:{src+1}], v[{src}:{src+1}], v[{src+2}:{src+3}]
    v_pk_add_f32 v[{src+4}:{src+5}], v[{src+4}:{src+5}], v[{src+6}:{src+7}]
    v_pk_add_f32 v[{src}:{src+1}], v[{src}:{src+1}], v[{src+4}:{src+5}]
    v_cvt_pk_bf16_f32 v{src}, v{src}, v{src+1}
    v_mov_b32 v{src+1}, {tag}
    buffer_store_dwordx2 v[{src}:{src+1}], v{tmp}, s[48:51], {dst} offen sc1
    s_mov_b64 exec, -1
    """)
def xr(i, jj): return 32 + (jj * 4 + i) * 4
def x_loads(n0, n1):
    for n in range(n0, n1):
        jj, i = n >> 2, n & 3
        st.add(f"buffer_load_dwordx4 v[{xr(i,jj)}:{xr(i,jj)+3}], v{124+jj}, s[52:55], s{[62, 0, 1, 100][i]} offen{nt('x')}")
def x_setup():
    srd(52, 4, 2048 * 1024)
    A("s_lshl_b32 s62, s57, 16\ns_lshl_b32 s61, s35, 14\ns_add_u32 s62, s62, s61\ns_add_u32 s0, s62, 4096\ns_add_u32 s1, s62, 8192\ns_add_u32 s100, s62, 12288")
NSL = 4 // KS
PX = OPT.get("px", 2)
A(f"s_cmp_lt_u32 s96, {PX}\ns_cselect_b32 s14, s97, 99\ns_cmp_lt_u32 s14, {16*KS//PX}\ns_cbranch_scc1 L_prod")
x_setup(); x_loads(0, 8)
A("s_branch L_join")
join_vm = list(st.vm)
A("L_prod:"); st.vm = []; st.hist = []; st.smem = True; st.smem_wr = {("s", 34)}
srd(52, 24, 1024); srd(36, 26, 512 * 6144)
A("v_lshlrev_b32 v2, 2, v0\nbuffer_load_dword v31, v2, s[52:55], 0 offen")
voffs8(6144)
A(f"""
s_mul_i32 s14, s97, {PX}
s_add_u32 s14, s14, s96
s_lshr_b32 s15, s14, 4
s_and_b32 s14, s14, 15
s_lshl_b32 s3, s15, 2
s_add_u32 s3, s3, s35
s_mul_i32 s60, s3, {32*NSL*6144}
s_lshl_b32 s61, s14, 7
s_add_u32 s60, s60, s61
""")
for k in range(NSL):
    A(f"s_add_u32 m0, s63, {(2+k)*UNIT}")
    for t in dma4("s60", nt("mod")): st.add(t, tag="wm")
    if k + 1 < NSL: A(f"s_add_u32 s60, s60, {32*6144}")
x_setup(); x_loads(0, 4)
silu_to_lds(31)
A(f"""
v_lshrrev_b32 v2, 4, v1
v_lshlrev_b32 v2, 4, v2
s_mul_i32 s60, s3, {64*NSL}
s_add_u32 s60, s60, {SILU}
v_add_u32 v2, s60, v2
s_waitcnt lgkmcnt(0)
s_barrier
""")
for k in range(NSL): A(f"ds_read_b128 a[{4*k}:{4*k+3}], v2 offset:{k*64}")
st.need("wm")
for k in range(NSL):
    for t in p8_reads(lambda tp, tile: ("a", 16 + k * 16 + tp * 8 + tile * 4), (2 + k) * UNIT): A(t)
x_loads(4, 6)
for k in range(NSL):
    for t in range(4): A(mf(96 + 4 * t, 16 + k * 16 + 4 * t, 4 * k, "0" if k == 0 else None))
x_loads(6, 8)
A(f"s_lshl_b32 s3, s15, 12\ns_lshl_b32 s14, s14, 8\ns_add_u32 s3, s3, s14\ns_add_u32 s3, s3, {WS_MOD}\ns_mul_i32 s15, s34, 0x9E3779B1\ns_add_u32 s15, s15, 0x7F4A7C15")
publish(4, 96, "L_prod_x", "s3", "s15")
A("L_prod_x:"); st.lg = []; st.hist = []
A("s_branch L_join"); st.raw(".p2align 12")
A("L_join:"); st.vm = join_vm; st.lg = []; st.hist = []; st.smem = True; st.smem_wr = {("s", 34)}
st.newphase(); stamp("_prod")

QST = 8192
A(f"""
s_lshl_b32 s60, s56, 10
s_lshl_b32 s61, s35, 8
s_add_u32 s60, s60, s61
s_add_u32 s36, s10, s60
s_addc_u32 s37, s11, 0
s_sub_u32 s38, {512*8192}, s60
s_mov_b32 s39, 0x20000
s_bfe_u32 s15, s57, 0x10003
s_lshl_b32 s14, s15, 7
s_lshl_b32 s92, s95, 19
s_add_u32 s94, s92, s14
s_xor_b32 s14, s14, 128
s_add_u32 s92, s92, s14
s_lshl_b32 s15, s15, 1
s_mul_i32 s93, s35, {UNIT}
s_sub_u32 s60, s93, s63
v_add_u32 v31, s60, v9
""")
voffs8(QST)
def wq_pre(n):
    r = n % 5; b = "s92" if n & 2 else "s94"
    p = [f"s_add_u32 m0, s63, {r*UNIT}" if r < 4 else "s_mov_b32 m0, s93", f"s_add_u32 s60, {b}, {(n&1)*32*QST}"]
    return p, ([f"s_add_u32 {b}, {b}, {64*QST}", f"s_and_b32 {b}, {b}, {512*QST-1}"] if n & 1 else [])
def wq_ops(n):
    p, q = wq_pre(n); return [(t, None) for t in p] + [(t, ("W", n)) for t in dma4("s60", nt("wq"))] + [(t, None) for t in q]
A(f"""
v_lshrrev_b32 v2, 4, v1
v_and_b32 v5, 15, v1
v_bfe_u32 v6, v1, 2, 2
v_lshlrev_b32 v6, 1, v6
s_movk_i32 s60, 0x78
v_lshrrev_b32 v6, v6, s60
v_and_b32 v6, 3, v6
v_xor_b32 v7, v6, v2
v_lshlrev_b32 v7, 4, v7
v_lshl_add_u32 v15, v5, 6, v7
v_add_u32 v15, {HIMG}, v15
v_bfe_u32 v4, v1, 2, 2
v_lshl_add_u32 v7, v4, 12, v7
v_and_b32 v4, 3, v1
v_lshl_add_u32 v7, v4, 8, v7
""")
A("v_xor_b32 v4, s15, v4")
for s in range(4): A(f"v_xor_b32 v5, {s}, v4\nv_lshl_add_u32 v{17+s}, v5, 6, v7")
A(f"""
s_lshl_b32 s60, s35, 1
s_lshr_b32 s60, 0x78, s60
s_and_b32 s60, s60, 3
v_lshlrev_b32 v3, 2, v2
v_xor_b32 v3, s60, v3
v_and_b32 v4, 15, v1
v_xor_b32 v3, v3, v4
v_lshlrev_b32 v3, 4, v3
v_lshl_add_u32 v3, v2, 8, v3
s_lshl_b32 s60, s35, 10
v_add_u32 v22, s60, v3
v_add_u32 v23, 3072, v22
v_add_u32 v24, 6144, v22
v_add_u32 v25, 9216, v22
v_bfe_u32 v3, v1, 2, 2
v_lshlrev_b32 v3, 8, v3
v_lshl_add_u32 v3, v2, 6, v3
v_and_b32 v4, 3, v1
v_lshl_add_u32 v3, v4, 4, v3
s_lshl_b32 s60, s35, 12
s_add_u32 s60, s60, 64
v_add_u32 v26, s60, v3
v_subrev_u32 v27, 8, v26
v_subrev_u32 v28, 16, v26
v_subrev_u32 v29, 24, v26
v_bfe_u32 v3, v1, 2, 1
v_xor_b32 v3, v3, v2
v_lshlrev_b32 v3, 6, v3
v_bfe_u32 v4, v1, 2, 2
v_lshl_add_u32 v3, v4, 12, v3
s_lshl_b32 s60, s35, 10
s_add_u32 s60, s60, {HIMG}
v_add_u32 v3, s60, v3
v_and_b32 v4, 3, v1
v_lshl_add_u32 v120, v4, 4, v3
v_xor_b32 v121, 32, v120
v_xor_b32 v122, 48, v120
v_xor_b32 v123, 16, v120
v_subrev_u32 v8, {HIMG}, v15
v_xor_b32 v8, 64, v8
v_add_u32 v8, {HIMG}, v8
""")
A(f"""
s_lshl_b32 s60, s56, 19
s_add_u32 s60, s60, {1536*256}
s_add_u32 s40, s6, s60
s_addc_u32 s41, s7, 0
s_mov_b32 s42, {512*256}
s_mov_b32 s43, 0x20000
s_sub_u32 s60, s60, 64
s_add_u32 s44, s8, s60
s_addc_u32 s45, s9, 0
s_mov_b32 s46, {512*256+64}
s_mov_b32 s47, 0x20000
s_lshl_b32 s6, s35, 12
s_mul_i32 s7, s35, 4128
s_add_u32 s7, s7, {VA}
s_lshl_b32 s8, s95, 14
s_mov_b32 s9, s8
""")
def k_ops(c): return ([f"s_add_u32 m0, s6, {KA if c%2==0 else KB}"], [f"buffer_load_dwordx4 v{22+i}, s[40:43], s8 offen offset:{i*1024}{nt('kv')} lds" for i in range(4)], ["s_add_u32 s8, s8, 16384", "s_and_b32 s8, s8, 0x1ffff"])
def v_ops(c): return ([f"s_add_u32 m0, s7, {(c&1)*16512}"], [f"buffer_load_dwordx4 v{26+i}, s[44:47], s9 offen offset:{i*1032}{nt('kv')} lds" for i in range(4)], ["s_add_u32 s9, s9, 16384", "s_and_b32 s9, s9, 0x1ffff"])
def kv_chain(Fl, g0, ops, tag, step=0):
    if step: spread_dma(Fl, g0, ops[0], ops[1], ops[2], tag, None, step); return
    chain_dma(Fl, g0, ops[0], ops[1], tag, None, "dma")
    for t in ops[2]: Fl.append(F(t, g0 + 4, g0 + 10, "dma"))
x_loads(8, 16)
def warm(lab):
    if not OPT.get("warm", 1): return
    t = "    s_mov_b64 exec, 0\n"
    for w in range(4):
        if w < 3: t += f"    s_cmp_eq_u32 s35, {w}\n    s_cbranch_scc0 {lab}_{w}\n"
        t += f"    s_call_b64 s[100:101], L_stub@{w}\n"
        if w < 3: t += f"    s_branch {lab}_ret\n{lab}_{w}:\n"
    st.raw(t + f"{lab}_ret:\n    s_mov_b64 exec, -1")
A("s_waitcnt vmcnt(12)")
warm("L_w1")

for i in range(4): A(f"v_mov_b32 v{112+2*i}, 0\nv_mov_b32 v{104+2*i}, 0")
A("v_mov_b32 v7, 0x3f803f80")
stamp("_issued")
def trickle(n=1):
    while pend and n:
        t, tag = pend.pop(0); st.add(t, tag=tag)
        if t.startswith("buffer") or t.startswith("global"): n -= 1
A(f"v_lshlrev_b32 v30, 4, v0\nv_add_u32 v30, {WS_MOD}, v30")
MC = [96, 100, 2 * 128 - 8, 2 * 128 - 4]
mchk = [f"buffer_load_dwordx4 a[{4*k}:{4*k+3}], v30, s[48:51], {['0', 's10', 's11', 's14'][k]} offen sc1" for k in range(KS)]
for k in range(1, KS): A(f"s_mov_b32 {['0', 's10', 's11', 's14'][k]}, {4096*k}")
for n in range(16):
    jj, i = n >> 2, n & 3
    for e in range(4): A(f"v_dot2c_f32_bf16 v{112+2*i}, v{xr(i,jj)+e}, v7\nv_dot2c_f32_bf16 v{104+2*i}, v{xr(i,jj)+e}, v{xr(i,jj)+e}")
    if n == 0: stamp("_x0")
stamp("x")
RC = OPT.get("rc", -1); W0L = OPT.get("w0l", 0)
if RC < 0:
    for t in mchk: A(t)
pend = wq_ops(0) + wq_ops(1)
if not W0L: trickle(4)
for d in ("quad_perm:[1,0,3,2]", "quad_perm:[2,3,0,1]", "row_ror:4", "row_ror:8"):
    for i in range(4): A(f"v_add_f32_dpp v{112+2*i}, v{112+2*i}, v{112+2*i} {d} row_mask:0xf bank_mask:0xf\nv_add_f32_dpp v{104+2*i}, v{104+2*i}, v{104+2*i} {d} row_mask:0xf bank_mask:0xf")
for op in ["v_mul_f32 v{m}, {c512}, v{r}", "v_mul_f32 v{q}, {c512}, v{q}", "v_fma_f32 v{q}, -v{m}, v{m}, v{q}", "v_max_f32 v{q}, 0, v{q}", "v_add_f32 v{q}, {eps}, v{q}",
           "v_rsq_f32 v{r}, v{q}", "v_mul_f32_e64 v{q}, -v{m}, v{r}"]:
    for i in range(4): A(op.format(m=113 + 2 * i, r=112 + 2 * i, q=104 + 2 * i, c512=f2u(1 / 512), eps=f2u(1e-5)))
def normalise(r0, r1):
    for r in range(r0, r1):
        i = (r >> 2) & 3
        A(f"v_lshlrev_b32 v{128+2*r}, 16, v{32+r}\nv_and_b32 v{129+2*r}, 0xffff0000, v{32+r}")
        A(f"v_pk_fma_f32 v[{128+2*r}:{129+2*r}], v[{128+2*r}:{129+2*r}], v[{112+2*i}:{113+2*i}], v[{104+2*i}:{105+2*i}] op_sel_hi:[1,0,0]")
        if r == RC:
            for t in mchk: A(t)
            if W0L: trickle(4)
        if r >= OPT.get("rw1", 36) and r % 6 == 0: trickle()
RM = OPT.get("rm", 36)
def MB(r): return 32 + r
normalise(0, RM)
stamp("_p6")
A("s_mul_i32 s34, s34, 0x9E3779B1\ns_add_u32 s34, s34, 0x7F4A7C15")
def mod_fetch():
    return "\n".join(f"v_accvgpr_read_b32 v{MB(r)}, a{r}" for r in range(4 * KS)) + f"\nv_cmp_ne_u32 vcc, s34, v{MB(1)}\n" + "".join(f"v_cmp_ne_u32 s[100:101], s34, v{MB(3+2*i)}\ns_or_b64 vcc, vcc, s[100:101]\n" for i in range(2 * KS - 1))
A(mod_fetch()); A("s_cbranch_vccz L_pollmod_x")
keep = list(st.vm)
spin("L_pollmod", [f"s_sleep {OPT.get('slp', 4)}"] + mchk, mod_fetch())
st.vm = keep
stamp("mod")
A(f"""
s_cmp_ge_u32 s35, 2
s_cselect_b32 s60, 1.0, 0
s_cselect_b32 s3, 2048, 0
s_add_u32 s3, s3, {MODV}
s_mov_b32 s61, {f2u(SCALE)}
""")
for k in range(KS):
    A(f"""v_lshlrev_b32 v2, 16, v{MB(4*k)}
    v_and_b32 v3, 0xffff0000, v{MB(4*k)}
    v_lshlrev_b32 v4, 16, v{MB(4*k+2)}
    v_and_b32 v5, 0xffff0000, v{MB(4*k+2)}""")
    for e in range(4): A(f"v_add_f32 v{100+e}, {'s60' if k == 0 else 'v' + str(100+e)}, v{2+e}")
for e in range(4): A(f"v_mul_f32 v{100+e}, s61, v{100+e}")
A(f"""
s_lshl_b32 s60, s95, 8
v_lshlrev_b32 v2, 4, v0
v_subrev_u32 v2, s60, v2
v_and_b32 v2, 2047, v2
v_add_u32 v2, s3, v2
ds_write_b128 v2, v[100:103]
""")
normalise(RM, 64)
trickle(99)
def kv_prefetch():
    A("s_add_u32 s61, s8, s6")
    for i in range(4): dummy(f"buffer_load_dwordx4 a[244:247], v16, s[40:43], s61 offen offset:{i*1024}")
    if OPT.get("vpf", 0):
        A("s_add_u32 s61, s61, 64")
        for i in range(4): dummy(f"buffer_load_dwordx4 a[244:247], v16, s[44:47], s61 offen offset:{i*1024}")
if OPT.get("kpos", 0) == 0: kv_prefetch()
A(f"""
v_and_b32 v30, 15, v1
v_lshlrev_b32 v30, 5, v30
v_add_u32 v30, {MODV}, v30
s_waitcnt lgkmcnt(0)
s_barrier
""")
stamp("_bar1")
QS = 64
def qstg(U, tp, tile, s): return QS + (U & 1) * 32 + s * 16 + tp * 8 + tile * 4
def q_reads(n):
    r = n % 5
    return p8_reads(lambda tp, tile: ("a", qstg(n >> 1, tp, tile, n & 1)), r * UNIT if r < 4 else 0, "v9" if r < 4 else "v31")
def modreads(jj, b):
    for i in range(4): A(f"ds_read_b128 v[{b+4*i}:{b+4*i+3}], v30 offset:{(i>>1)*2048 + jj*512 + (i&1)*16}")
for jj in range(4): modreads(jj, 32 + 16 * jj)
pend = wq_ops(2) + wq_ops(3) + wq_ops(4)
for n in range(16):
    jj, i = n >> 2, n & 3; b = 32 + 16 * jj; t = 128 + 8 * n; d = 96 + 4 * (n & 3)
    for e in range(4): A(f"v_pk_fma_f32 v[{t+2*e}:{t+2*e+1}], v[{t+2*e}:{t+2*e+1}], v[{b+8+2*e}:{b+9+2*e}], v[{b+2*e}:{b+2*e+1}]")
    for e in range(4): A(f"v_cvt_pk_bf16_f32 v{d+e}, v{t+2*e}, v{t+2*e+1}")
    A(f"ds_write_b128 v{120+i}, v[{d}:{d+3}] offset:{jj*16384 + i*256}")
    if n >= OPT.get("jw", 8): trickle()
stamp("_jloop")
for n in range(2):
    for i, t in enumerate(q_reads(n)): st.add(t, tag=("R", n), need=[("W", n)] if i == 0 else None)
if OPT.get("kpos", 0) == 1: trickle(99); kv_prefetch()
stamp("_w01")
trickle(99)
stamp("_w34")
A("s_waitcnt lgkmcnt(0)\ns_barrier")
def hb(kk, s, cb): return (kk & 1) * 32 + (s * 4 + cb) * 4
for s in range(2):
    for cb in range(4): A(f"ds_read_b128 a[{hb(0,s,cb)}:{hb(0,s,cb)+3}], {'v8' if s else 'v15'} offset:{(s*4+cb)*1024}")
stamp("h")

def qacc(tp, tile, cb): return 128 + (tp * 8 + tile * 4 + cb) * 4
def qop(s, cb): return 32 + (s * 4 + cb) * 4
M = []; Fl = []; RES = {}; HBAR = 46
for U in range(16):
    kk, h2 = U >> 1, U & 1
    g0 = len(M)
    for tp in range(2):
        for tile in range(2):
            for cb in range(4):
                for s in range(2):
                    M.append(mf(qacc(2 * h2 + tp, tile, cb), qstg(U, tp, tile, s), hb(kk, s, cb), "0" if (kk == 0 and s == 0) else None))
    for s in range(2):
        n = 2 * U + 2 + s; g = g0 + 16 * s + (10 if n == 2 else 4 if n == 3 else 0)
        def refill(n, g, step):
            m = n + 5
            if m >= 32: return
            p, q = wq_pre(m)
            spread_dma(Fl, g, p, dma4("s60", nt("wq")), q, ("W", m), [("R", n)], step)
        if U == 0 and s == 0: refill(0, 3, 2); refill(1, 11, 2)
        if n < 32:
            for i, t in enumerate(q_reads(n)): Fl.append(F(t, g + i, g + i + 1, "rd", tag=("R", n), need=[("W", n)] if i == 0 else None))
            refill(n, g + 11, 4 if n > 4 else 2 if n == 2 else 3)
    RES[g0 + 31] = 1
    if U: Fl += stampF(f"q{U}", g0)
    if kk < 7:
        for i in range(4):
            n = 4 * h2 + i; s, cb = n >> 2, n & 3
            Fl.append(F(f"ds_read_b128 a[{hb(kk+1,s,cb)}:{hb(kk+1,s,cb)+3}], {'v8' if s else 'v15'} offset:{((kk+1)*8+n)*1024}", g0 + 8 + (i & 1) + 16 * (i >> 1), g0 + 12 + (i & 1) + 16 * (i >> 1), "hb", tag=("HB", kk + 1)))
    if kk == 7:
        for tp in range(2):
            T = 2 * h2 + tp - 1
            if T >= 0:
                for cb in range(4):
                    for e in range(4):
                        src = qacc(T, e >> 1, cb) + 2 * (e & 1)
                        Fl.append(F(f"v_cvt_pk_bf16_f32 v{qop(T,cb)+e}, v{src}, v{src+1}", g0 + 16 * tp + 2, g0 + 16 * tp + 15, "cv"))
        if h2 == 0:
            Fl.append(F(("barrier", [("HB", 7), ("R", 29)]), g0 + 1, g0 + 1, "dma"))
            kv_chain(Fl, g0 + 8, k_ops(0), ("K", 0))
            kv_chain(Fl, g0 + 24, k_ops(1), ("K", 1))
        else:
            kv_chain(Fl, g0 + 1, v_ops(0), ("V", 0))
            Fl.append(F(("barrier", [("K", 0)]), g0 + 15, g0 + 15, "rd"))
            for s in range(4): Fl.append(F(f"ds_read_b128 a[{STG+s*4}:{STG+s*4+3}], v{17+s} offset:{KA}", g0 + 16 + s, g0 + 22, "rd", tag=("R", "k00")))
LP0 = 2
def blk_addr(dst, src, add):
    A(f"""s_add_u32 s60, {src}, {add}
    s_and_b32 s60, s60, 3
    s_mul_i32 s61, s60, {KB}
    s_cmp_eq_u32 s60, 2
    s_cselect_b32 s61, {VA}, s61
    s_cmp_eq_u32 s60, 3
    s_cselect_b32 s61, {XR}, s61
    v_add_u32 v{dst}, s61, v16""")
FLOOR = [6, 7, 8, 15]
with Capture() as cp:
    voffs16(1024)
    A(f"""
s_lshl_b32 s60, s56, 19
s_lshl_b32 s61, s35, {OPT.get("wocol", 6)}
s_and_b32 s61, s61, {OPT.get("womask", 1023)}
s_add_u32 s60, s60, s61
s_add_u32 s36, s12, s60
s_addc_u32 s37, s13, 0
s_sub_u32 s38, {4096*1024}, s60
v_and_b32 v3, {3 if OPT.get("sparse1", 1) else 0}, v1
v_mov_b32 v2, 0x3f803f80
v_cmp_eq_u32 vcc, 0, v3
v_cndmask_b32 v2, 0, v2, vcc
v_accvgpr_write_b32 a240, v2
v_accvgpr_write_b32 a241, v2
v_accvgpr_write_b32 a242, v2
v_accvgpr_write_b32 a243, v2
s_and_b32 s14, s57, {OPT.get("rotmask", 7) & 3}
s_lshl_b32 s92, s14, 8
s_bfe_u32 s15, s57, 0x20002
s_and_b32 s15, s15, {OPT.get("rotmask", 7) & 3}
s_lshl_b32 s94, s15, 17
s_mul_i32 s93, s97, 57344
s_mul_i32 s60, s35, 14336
s_add_u32 s93, s93, s60
""")
    srd(52, 16, 512 * 3584)
    blk_addr(30, "s35", 0)
    for i in range(4): blk_addr(2 + i, "s15", i)
    A(f"""
s_sub_u32 s3, s96, {LP0}
s_lshl_b32 s13, s3, 5
s_add_u32 s13, s13, s97
s_lshl_b32 s60, s13, 6
s_mul_i32 s61, s35, {128*6144}
s_add_u32 s60, s60, s61
s_add_u32 s60, s60, 2048
s_cmp_lt_u32 s3, 2
s_cselect_b32 s10, s60, {OOB}
s_cselect_b32 s62, 0, {OOB}
s_mov_b32 s12, s2
s_cmp_lg_u32 s35, 0
s_cselect_b32 s11, {OOB}, 0
""")
    srd(0, 24, 1024)
attn_setup = list(cp.lines)
Fl += cp.fillers(412, 508, "su")
for t in [f"v_mov_b32 v{r}, 0xff800000" for r in FLOOR] + ["s_mov_b32 s95, 0", "v_lshrrev_b32 v31, 6, v0", "v_lshlrev_b32 v31, 2, v31", f"v_add_u32 v31, {LGO + 16}, v31"]: Fl.append(F(t, 470, 508, "su2"))
schedule(st, M, Fl, reserve=RES, verbose="Q")
for cb in range(4):
    for e in range(4):
        src = qacc(3, e >> 1, cb) + 2 * (e & 1)
        A(f"v_cvt_pk_bf16_f32 v{qop(3,cb)+e}, v{src}, v{src+1}")
st.newphase(); stamp("Q")
st.raw("L_attn:"); attn_entry = (list(st.vm), list(st.lg))
def wo_pre(u, m0):
    p = [m0, "s_add_u32 s60, s92, s94" + ("\ns_add_u32 s60, s60, 0x10000" if u & 4 else ""), "s_add_u32 s94, s94, 0x20000", "s_and_b32 s94, s94, 0x7ffff"]
    return p
def wo_chain(Fl, g, u, m0, need, late=3):
    p = wo_pre(u, m0)
    chain_dma(Fl, g, p[:2], dma4("s60", nt("wo")), ("W", u), need, "dma", late)
    post = p[2:] + (["s_add_u32 s92, s92, 256", "s_and_b32 s92, s92, 1023"] if (u & 7) == 7 else [])
    for t in post: Fl.append(F(t, g, g + late + 8, "dma"))

def S(kt, cb): return 96 + (kt * 4 + cb) * 4
def P(c, s, cb): return 160 + (c & 1) * 32 + (s * 4 + cb) * 4
def CI(cb): return 224 + 4 * cb
def oacc(tp, tile, cb): return (tp * 8 + tile * 4 + cb) * 4
def woreg(u, tile, s):
    o = tile * 8 + s * 4
    return ("a", 128 + u * 16 + o) if u < 4 else (("v", 128 + (u - 4) * 16 + o) if u < 6 else ("v", 192 + (u - 6) * 16 + o))
LS = 224
def RS(u): return (u + 2) & 3
units = [("QK", 0, k) for k in range(4)]
for c in range(7): units += [("QK", c + 1, k) for k in range(4)] + [("L", c, 0)] + [("PV", c, k) for k in range(4)]
units += [("L", 7, 0)] + [("PV", 7, k) for k in range(4)]
M = []; Fl = []; RES = {}; G = {}; buf = {}
staged = [u for u in units if u[0] != "L"]
for n, u in enumerate(staged): buf[u] = n
pos = 0
for un in units: G[un] = pos; pos += 8 if un[0] == "L" else 16
NATT = pos
def oop(dp, cb): return 32 + (dp * 4 + cb) * 4
pf = []
if OPT["pf_w1"]: pf += [("w1", i) for i in range(14)]
if OPT["pf_w2"]: pf += [("w2", i) for i in range(14 if OPT["pf_w2"] == 1 else 2)]
with Capture() as cp:
    A(f"""
v_lshlrev_b32 v252, 2, v0
buffer_load_dword v252, v252, s[0:3], s62 offen
v_lshrrev_b32 v248, 5, v1
v_lshlrev_b32 v248, 4, v248
v_bfe_u32 v249, v1, 2, 3
v_add_u32 v248, v248, v249
v_mul_u32_u24 v248, 6144, v248
v_and_b32 v249, 3, v1
v_lshl_add_u32 v248, v249, 4, v248
v_add_u32 v249, {8*6144-1032}, v248
v_add_u32 v250, {32*6144-2064}, v248
v_add_u32 v251, {40*6144-3096}, v248
s_mov_b32 s0, s26
s_mov_b32 s1, s27
s_mov_b32 s2, {512*6144}
s_mov_b32 m0, s63
""")
Fl += cp.fillers(3, 12, "dma")
for i in range(4): Fl.append(F(f"buffer_load_dwordx4 v{248+i}, s[0:3], s10 offen offset:{i*1032}{' nt' if OPT.get('nt_lp', 1) else ''} lds", 13 + 9 * i, 14 + 9 * i, "dma", tag="wm"))
with Capture() as cp:
    A(f"""
s_lshl_b32 s60, s57, 3
s_add_u32 s60, s60, s56
s_lshl_b32 s60, s60, 7
s_add_u32 s60, s60, {WS_F1}
s_lshl_b32 s61, s58, 3
s_add_u32 s61, s61, s59
s_lshl_b32 s61, s61, 7
s_add_u32 s61, s61, {WS_F2 - 128}
v_lshlrev_b32 v253, 2, v1
v_add_u32 v254, s60, v253
v_add_u32 v253, s61, v253
v_cmp_le_u32 vcc, 32, v1
v_cndmask_b32 v254, v254, v253, vcc
s_not_b32 s60, s34
v_mov_b32 v255, s60
""")
Fl += cp.fillers(G[("PV", 0, 0)], G[("PV", 1, 0)], "pw")
def pst(v, off=0): return f"buffer_store_dwordx4 a[248:251], {v}, s[48:51], s10 offen offset:{off} sc1"
psn = [f"v_accvgpr_write_b32 a{248+i}, -1" for i in range(4)] + ["s_lshl_b32 s10, s58, 3", "s_add_u32 s10, s10, s59", "s_lshl_b32 s10, s10, 3", "s_add_u32 s10, s10, s35",
       "s_mul_i32 s10, s10, 5120", f"s_add_u32 s10, s10, {WS_H1}"] + [pst("v16", i * 1024) for i in range(4)] + ["s_add_u32 s10, s10, 20480"] + [pst("v16", i * 1024) for i in range(4)]
psn += ["v_lshrrev_b32 v253, 5, v1", "v_lshlrev_b32 v253, 11, v253", "v_and_b32 v255, 31, v1", "v_lshl_add_u32 v253, v255, 4, v253"]
for n in (2, 3):
    psn += ["s_lshl_b32 s10, s57, 3", "s_add_u32 s10, s10, s56", "s_lshl_b32 s10, s10, 2", "s_add_u32 s10, s10, s35", "s_lshl_b32 s10, s10, 5", f"s_add_u32 s11, s14, {n}", "s_and_b32 s11, s11, 3",
            "s_add_u32 s10, s10, s11", "s_lshl_b32 s10, s10, 9", f"s_add_u32 s10, s10, {WS_PART}"]
    for i in range(4): psn += [pst("v253")] + (["s_add_u32 s10, s10, 4096"] if i < 3 else [])
for un in units:
    ty, c, k = un; g0 = len(M); assert g0 == G[un]
    if ty == "QK":
        b = STG + (buf[un] & 1) * 16
        for cb in range(4):
            for s in range(4):
                M.append(mf(S(k, cb), b + 4 * s, qop(s, cb), None if s else ("0" if (c == 0 and k < 2) else CI(cb)), "v", "a", "v"))
    elif ty == "L":
        for cb in range(4):
            for s in range(2): M.append(mf(LS + 4 * cb, 240, P(c, s, cb), "0" if (c == 0 and s == 0) else None, "a", "a", "v"))
    else:
        for tile in range(2):
            for cb in range(4):
                for s in range(2): M.append(mf(oacc(k, tile, cb), stg(buf[un], tile, s), P(c, s, cb), "0" if (c == 0 and s == 0) else None, "a", "a", "v"))
    if ty == "L": continue
    RES[g0 + 15] = 1
    bar = None
    if (ty, c, k) == ("QK", 0, 3): bar = 1
    if ty == "PV" and k == 3 and c < 7: bar = c + 2
    rg = g0
    if bar is not None:
        Fl.append(F(("barrier", [("R", un), ("V", bar - 1)] + ([("K", bar)] if bar <= 7 else [])), g0 + 1, g0 + 1, "rd")); rg = g0 + 2
        Fl += stampF(f"B{bar}", g0 + 2)
        VS = OPT.get("vs", 5); gk = g0 + 8
        if bar + 1 <= 7: kv_chain(Fl, gk, k_ops(bar + 1), ("K", bar + 1), VS); gk += 4 * VS
        if bar <= 7: kv_chain(Fl, gk, v_ops(bar), ("V", bar), VS); gk += 4 * VS
        plan = {**[{1: [("d", 0)], 2: [("d", 1)]}, {2: [("d", 0)], 3: [("d", 1)]}, {3: [("d", 0), ("d", 1)]}][OPT.get("wop", 1)], 4: [("r", 0), ("d", 2), ("d", 3)], 5: [("r", 1), ("r", 2), ("d", 4), ("d", 5)], 6: [("r", 3), ("d", 6)], 7: [("d", 7)]}.get(bar, [])
        gr = g0 + 20
        for kind, u in plan:
            if kind == "d":
                p = wo_pre(u, f"s_add_u32 m0, s63, {RS(u)*UNIT}")
                spread_dma(Fl, gk, p[:2], dma4("s60", nt("wo")), p[2:] + (["s_add_u32 s92, s92, 256", "s_and_b32 s92, s92, 1023"] if (u & 7) == 7 else []), ("W", u), [("RW", u - 4)] if u >= 4 else None, VS); gk += 4 * VS
            else:
                for i, t in enumerate(p16_reads(lambda tile, s: woreg(u, tile, s), RS(u) * UNIT)):
                    Fl.append(F(t, gr + 2 * i, gr + 6 + 2 * i, "wor", tag=("RW", u), need=[("W", u)] if i == 0 else None))
                gr += 16
        if bar <= 7:
            for n in range(int(str(OPT.get("pfp", 44044)).zfill(7)[bar - 1])):
                if not pf: break
                nm, i = pf.pop(0)
                if nm == "w2" and i == 0:
                    for t in ["s_mov_b32 s52, s20", "s_mov_b32 s53, s21"] + ((["s_sub_u32 s93, s93, 12288"] if OPT["pf_w1"] else []) if OPT["pf_w2"] == 1 else ["s_mul_i32 s93, s2, 7168", "s_lshl_b32 s60, s35, 11\ns_add_u32 s93, s93, s60"]): Fl.append(F(t, gk - 3, gk, "dma"))
                if i and i % 4 == 0: Fl.append(F("s_add_u32 s93, s93, 4096", gk - 3, gk, "dma"))
                Fl.append(dummyF(f"buffer_load_dwordx4 a[244:247], v16, s[52:55], s93 offen offset:{(i%4)*1024}", gk, gk + 2, "dma")); gk += VS
        for n in range(int(str(OPT.get("psp", 332233)).zfill(7)[bar - 1]) if bar <= 7 else 0):
            while True:
                t = psn.pop(0); stv = t.startswith("buffer")
                Fl.append(F(t, gk - (0 if stv else 4), gk + (2 if stv else 0), "dma", tag="psn" if stv else None))
                if stv: gk += OPT.get('ps', 5); break
    i = staged.index(un)
    if i + 1 < len(staged):
        nx = staged[i + 1]; nb = STG + (buf[nx] & 1) * 16
        if nx[0] == "QK":
            for s in range(4):
                Fl.append(F(f"ds_read_b128 a[{nb+4*s}:{nb+4*s+3}], v{17+s} offset:{(KA if nx[1]%2==0 else KB) + nx[2]*1024}", rg + s // 2, rg + 4 + s, "rd", tag=("R", nx)))
        else:
            i2 = 0
            for tile in range(2):
                for s in range(2):
                    for hf in range(2):
                        d = stg(buf[nx], tile, s) + 2 * hf
                        Fl.append(F(f"ds_read_b64_tr_b16 a[{d}:{d+1}], v21 offset:{(nx[1]&1)*16512 + (4*s+2*hf)*2064 + nx[2]*256 + tile*8}", rg + i2 // 2, rg + 1 + i2, "rd", tag=("R", nx))); i2 += 1
g1 = G[("QK", 0, 1)]
for cb in range(4):
    s0 = S(0, cb); t = 240 + 2 * cb; ch = ("mx", cb); e = g1 + max(0, 4 * cb - 8); l = g1 + 14 + 4 * cb
    for txt in [f"v_max3_f32 v{t}, v{s0}, v{s0+1}, v{s0+2}", f"v_max3_f32 v{t}, v{t}, v{s0+3}, v{FLOOR[cb]}", f"v_mov_b32 v{t+1}, v{t}",
                f"v_permlane16_swap_b32 v{t}, v{t+1}", f"v_max_f32 v{t}, v{t}, v{t+1}", f"v_mov_b32 v{t+1}, v{t}",
                f"v_permlane32_swap_b32 v{t}, v{t+1}", f"v_max_f32 v{t}, v{t}, v{t+1}"] + [f"v_sub_f32 v{CI(cb)+i}, 0, v{t}" for i in range(4)]:
        Fl.append(F(txt, e, l, ch))
for c in range(8):
    for kt in range(4):
        gq = G[("QK", c, kt)]
        for cb in range(4):
            e = gq + 4 * cb + 3 + 5
            l = (G[("QK", c + 1, kt)] + 4 * cb - 1) if c < 7 else G[("L", 7, 0)] - 2
            l = min(l, G[("L", c, 0)] - 2)
            ch = ("sm", kt, cb); s0 = S(kt, cb)
            if c == 0 and kt < 2:
                ch = ("mx", cb)
                for i in range(4): Fl.append(F(f"v_add_f32 v{s0+i}, v{CI(cb)}, v{s0+i}", e, l, ch))
            for i in range(4): Fl.append(F(f"v_exp_f32 v{s0+i}, v{s0+i}", e, l, ch))
            for i in range(2): Fl.append(F(f"v_cvt_pk_bf16_f32 v{P(c,kt>>1,cb)+2*(kt&1)+i}, v{s0+2*i}, v{s0+2*i+1}", e, l, ch))
gL = G[("L", 7, 0)]
for cb in range(4): Fl.append(F(f"v_accvgpr_read_b32 v{240+cb}, a{LS+4*cb}", gL + 12, gL + 20, "nrm"))
for cb in range(4): Fl.append(F(f"v_rcp_f32 v{244+2*cb}, v{240+cb}", gL + 12, gL + 24, "nrm"))
for t in ["v_add_f32 v252, v240, v241", "v_add_f32 v254, v242, v243", "v_add_f32 v252, v252, v254", f"v_cmp_nge_f32 vcc, {f2u(2.0**34)}, v252\ns_cmp_lg_u64 vcc, 0\ns_cselect_b32 s3, 1, 0",
          "v_mov_b32 v254, s3", "v_and_b32 v253, 3, v1", "v_lshlrev_b32 v253, 2, v253", f"v_add_u32 v253, {LGO + 16}, v253"]:
    Fl.append(F(t, gL + 14, gL + 34, "nrm"))
def norm_ops(dp, cb, pk):
    t = 160 + cb * 8; o = []
    for tile in range(2):
        for r in range(4): o.append(f"v_accvgpr_read_b32 v{t+4*tile+r}, a{oacc(dp,tile,cb)+r}")
    if pk: o += [f"v_pk_mul_f32 v[{t+2*r}:{t+2*r+1}], v[{t+2*r}:{t+2*r+1}], v[{244+2*cb}:{245+2*cb}] op_sel_hi:[1,0]" for r in range(4)]
    else: o += [f"v_mul_f32 v{t+r}, v{244+2*cb}, v{t+r}" for r in range(8)]
    d = 224 + cb * 4
    o += [f"v_cvt_pk_bf16_f32 v{d+e}, v{t+2*e}, v{t+2*e+1}" for e in range(4)]
    o.append(f"ds_write_b128 v30, v[{d}:{d+3}] offset:{(dp*4+cb)*1024}")
    return o
lpF = []; spread_dma(lpF, G[("PV", 0, 1)] + 4 - OPT.get("lpe", 40), [f"s_add_u32 m0, s63, {UNIT}", f"s_add_u32 s10, s10, {64*6144}"], [f"buffer_load_dwordx4 v{248+i}, s[0:3], s10 offen offset:{i*1032}{' nt' if OPT.get('nt_lp', 1) else ''} lds" for i in range(4)], ["s_mov_b32 s2, s12"], "wm", None, 5)
cut = min(f.order for f in Fl if f.chain == "dma" and f.e >= G[("PV", 0, 3)])
for i, f in enumerate(lpF): f.order = cut - 1 + (i + 1) / 100.0
Fl += lpF
def late_producer():
    A(f"s_sub_u32 s3, s96, {LP0}\ns_cmp_ge_u32 s3, 2\ns_cbranch_scc1 L_nolp")
    keep = (list(st.vm), list(st.lg), list(st.hist))
    silu_to_lds(252, 240)
    A(f"v_lshrrev_b32 v240, 4, v1\nv_lshlrev_b32 v240, 4, v240\ns_lshl_b32 s3, s35, 8\ns_add_u32 s3, s3, {SILU}\nv_add_u32 v240, s3, v240\ns_waitcnt lgkmcnt(0)\ns_barrier")
    for k in range(4): A(f"ds_read_b128 a[{128+4*k}:{131+4*k}], v240 offset:{k*64}")
    st.need("wm")
    for u in range(2):
        for t in p16_reads(lambda tile, s: ("a", 144 + u * 16 + tile * 8 + s * 4), u * UNIT): A(t)
    for k in range(4):
        for tile in range(2): A(mf(244 + 4 * tile, 144 + (k >> 1) * 16 + tile * 8 + (k & 1) * 4, 128 + 4 * k, "0" if k == 0 else None))
    A(f"s_lshl_b32 s13, s13, 7\ns_add_u32 s13, s13, {WS_MOD2}")
    publish(2, 244, "L_lp_x", "s13", tmp=240, stmp="s3")
    A("L_lp_x:\ns_waitcnt lgkmcnt(0)\ns_nop 7\nL_nolp:")
    st.vm, st.lg, st.hist = keep
Fl.append(F(("call", late_producer), G[("PV", 2, 3)] + 1, G[("PV", 2, 3)] + 1, "lp"))
Fl.append(F("buffer_store_dword v255, v254, s[48:51], s11 offen sc1", G[("PV", 1, 1)] + 9, G[("PV", 1, 1)] + 12, "pw"))
Fl.append(F(f"v_add_u32 v254, {WS_F3 - WS_F2}, v254", G[("PV", 1, 1)] + 12, G[("PV", 1, 2)] + 8, "pw"))
Fl.append(F("buffer_store_dword v255, v254, s[48:51], s11 offen sc1", G[("PV", 1, 2)] + 9, G[("PV", 1, 2)] + 12, "pw"))
NHID = 4
grp = [(dp, cb) for dp in range(4) for cb in range(4)]
for dp, cb in grp[:NHID]:
    for t in norm_ops(dp, cb, False): Fl.append(F(t, G[("PV", 7, dp)] + 16 + 3, NATT - 1, "nrm"))
for u in (4, 5):
    g = gL + 1 + (u - 4) * 16
    for i, t in enumerate(p16_reads(lambda tile, s: woreg(u, tile, s), RS(u) * UNIT)): Fl.append(F(t, g + i, g + 8 + i, "wor", tag=("RW", u), need=[("W", u)] if i == 0 else None))
E89 = OPT.get("e89", 1)
for u in (8, 9)[:2 * E89]:
    p = wo_pre(u, f"s_add_u32 m0, s63, {RS(u)*UNIT}"); spread_dma(Fl, gL + 22 + (u - 8) * 24, p[:2], dma4("s60", nt("wo")), p[2:], ("W", u), [("RW", u - 4)], 6)
assert not psn and not pf
schedule(st, M, Fl, reserve=RES, verbose="attn", mem2=("rd", "wor"), minback=OPT.get("minback", 10), pairfirst=lambda g: G[("QK", 7, 0)] - OPT.get("pfa", -1000) <= g < gL)
stamp("attn")
A("ds_write_b32 v31, v254")
for u in (6, 7):
    for i, t in enumerate(p16_reads(lambda tile, s: woreg(u, tile, s), RS(u) * UNIT)): st.add(t, tag=("RW", u), need=[("W", u)] if i == 0 else None)
for n, (dp, cb) in enumerate(grp[NHID:8]):
    for t in norm_ops(dp, cb, True): st.add(t, tag="ow" if t.startswith("ds_write") else None)

def oB(i, cb): return ("v", 32 + ((i - 4) * 4 + cb) * 4) if 4 <= i < 8 else ("a", ((i if i < 4 else i - 4) * 4 + cb) * 4)
def pacc(i, tile, cb): return 96 + (i & 1) * 32 + (tile * 4 + cb) * 4
def oB_read(ks, cb):
    f, r = oB(ks, cb); return f"ds_read_b128 {f}[{r}:{r+3}], v{2 + ((ks>>1)&3)} offset:{(((ks>>3)*2+(ks&1))*4+cb)*1024}"
with Capture() as osu:
    A(f"""
s_mul_i32 s6, s35, {UNIT}
s_add_u32 s6, s6, {VB}
s_sub_u32 s60, s6, s63
v_add_u32 v20, s60, v10
s_mul_i32 s7, s35, {2*UNIT}
s_sub_u32 s60, s7, s63
v_add_u32 v21, s60, v10
s_mul_i32 s62, s35, {UNIT}
s_add_u32 s62, s62, {8*UNIT}
s_cmp_eq_u32 s35, 3
s_cselect_b32 s62, {MISC+8192}, s62
s_sub_u32 s60, s62, s63
v_add_u32 v15, s60, v10
v_and_b32 v6, 15, v1
v_lshrrev_b32 v7, 1, v6
v_and_b32 v6, 1, v1
v_lshrrev_b32 v8, 4, v1
v_lshlrev_b32 v31, 11, v7
v_lshl_add_u32 v31, v6, 4, v31
v_lshl_add_u32 v31, v8, 5, v31
v_lshrrev_b32 v7, 3, v1
v_and_b32 v8, 7, v1
v_lshlrev_b32 v23, 7, v8
v_and_b32 v7, 1, v7
v_mul_u32_u24 v7, {WS_F1 - WS_F2}, v7
v_add_u32 v23, v23, v7
v_lshlrev_b32 v19, 16, v8
v_mov_b32 v7, {OOB}
v_cmp_le_u32 vcc, 8, v1
v_cndmask_b32 v19, v19, v7, vcc
v_and_b32 v24, 31, v1
v_lshlrev_b32 v24, 4, v24
s_lshl_b32 s60, s57, 3
s_add_u32 s60, s60, s56
s_lshl_b32 s60, s60, 7
s_add_u32 s60, s60, {WS_F1}
s_lshl_b32 s61, s58, 3
s_add_u32 s61, s61, s59
s_lshl_b32 s61, s61, 7
s_add_u32 s61, s61, {WS_F2 - 128}
v_lshlrev_b32 v8, 2, v1
v_add_u32 v22, s60, v8
v_add_u32 v8, s61, v8
v_cmp_le_u32 vcc, 32, v1
v_cndmask_b32 v22, v22, v8, vcc
v_lshrrev_b32 v8, 5, v1
v_lshl_add_u32 v24, v8, 16, v24
v_mov_b32 v25, s34
; s93 = partial store base, s8 = its running column offset; s9 = own flag line (wave 0) ; s0 = flag check base; s1 = read base; s12 = running read column
s_lshl_b32 s61, s57, 3
s_add_u32 s61, s61, s56
s_lshl_b32 s93, s61, 16
s_lshl_b32 s60, s35, 7
s_add_u32 s93, s93, s60
s_add_u32 s93, s93, {WS_PART}
s_lshl_b32 s8, s14, 9
s_cmp_lg_u32 s35, 0
s_cselect_b32 s9, {OOB}, 0
s_lshl_b32 s0, s58, 10
s_add_u32 s0, s0, {WS_F2}
s_lshl_b32 s1, s58, 19
s_lshl_b32 s60, s59, 13
s_add_u32 s1, s1, s60
s_lshl_b32 s60, s35, 11
s_add_u32 s1, s1, s60
s_add_u32 s1, s1, {WS_PART}
s_and_b32 s12, s58, {OPT.get("rotmask", 7) & 3}
s_lshl_b32 s12, s12, 9
s_mov_b32 s15, 0
""")
    A(f"""
v_lshrrev_b32 v6, 5, v1
s_and_b32 s60, s58, {OPT.get("rotmask", 7) & 3}
v_add_u32 v6, s60, v6
v_add_u32 v7, 2, v6
v_and_b32 v6, 3, v6
v_and_b32 v7, 3, v7
v_and_b32 v8, 30, v1
v_lshlrev_b32 v8, 3, v8
v_lshl_add_u32 v6, v6, 8, v8
v_lshl_add_u32 v7, v7, 8, v8
v_lshlrev_b32 v240, 1, v6
v_lshlrev_b32 v241, 1, v7
v_add_u32 v242, {MODV}, v240
v_add_u32 v243, {MODV}, v241
v_and_b32 v241, 3, v1
v_lshlrev_b32 v241, 2, v241
v_add_u32 v241, {LGO}, v241
v_not_b32 v240, v25
ds_write_b32 v241, v240
v_mov_b32 v241, {LGO}
v_and_b32 v8, 1, v1
v_lshl_add_u32 v6, v8, 10, v6
v_lshl_add_u32 v7, v8, 10, v7
v_lshlrev_b32 v8, 4, v0
v_add_u32 v8, {WS_MOD2}, v8
s_lshl_b32 s10, s58, 16
s_lshl_b32 s60, s59, 13
s_add_u32 s10, s10, s60
s_lshl_b32 s60, s35, 11
s_add_u32 s10, s10, s60
""")
    srd(52, 4, 2048 * 1024)
    A("s_movk_i32 s11, 4096")
st.need("ow", "psn"); A("s_barrier")
A("ds_read_b32 v252, v253")
for ks in range(2):
    for cb in range(4): A(oB_read(ks, cb))
st.newphase(); stamp("norm")
def slot_m0(r): return f"s_add_u32 m0, s63, {r*UNIT}" if r < 4 else {4: "s_mov_b32 m0, s6", 5: "s_mov_b32 m0, s7", 6: f"s_add_u32 m0, s7, {UNIT}", 7: "s_mov_b32 m0, s62"}[r]
def slot_rd(r): return (r * UNIT, "v10") if r < 4 else {4: (0, "v20"), 5: (0, "v21"), 6: (UNIT, "v21"), 7: (0, "v15")}[r]
def part_cvt(n, cb): return [f"v_cvt_pk_bf16_f32 v{224+4*cb+k}, v{pacc(n,k>>1,cb)+2*(k&1)}, v{pacc(n,k>>1,cb)+2*(k&1)+1}" for k in range(4)] + ([f"v_min_u32 v{224+4*cb}, -2, v{224+4*cb}"] if n >= 2 else [])
FLAG = "buffer_store_dword v25, v22, s[48:51], s9 offen sc1"
def pread(n, soff): return [f"buffer_load_dwordx4 v[{160+16*n+4*gp}:{163+16*n+4*gp}], v24, s[48:51], {soff[gp]} offen sc1{' nt' if OPT.get('pnt') else ''}" for gp in range(4)]
M = []; Fl = []; RES = {}
slot = {u: (RS(u) if (u & 7) < 4 else u & 7) for u in range(8, 32)}
ld = [(10, slot[10], 1, None), (11, slot[11], 17, None), (12, 4, 33, None), (13, 5, 4 * 16 + 11, None), (14, 6, 5 * 16 + 11, None), (15, 7, 6 * 16 + 11, None)] + [(u, slot[u], (u - 9) * 16 + 11, u - 8) for u in range(16, 32)]
for u in range(32):
    n, kk = u >> 3, u & 7; g0 = len(M)
    for tile in range(2):
        for cb in range(4):
            for s in range(2):
                f, r = oB(2 * kk + s, cb)
                fa, ra = woreg(u, tile, s) if u < 8 else ("a", stg(u, tile, s))
                M.append(mf(pacc(n, tile, cb), ra, r, "0" if (kk == 0 and s == 0) else None, "v", fa, f))
    if 8 <= u + 1 < 32:
        off, ad = slot_rd(slot[u + 1])
        for i, t in enumerate(p16_reads(lambda tile, s: ("a", stg(u + 1, tile, s)), off, ad)):
            Fl.append(F(t, g0 + i, g0 + i + 1, "rd", tag=("R", u + 1), need=[("W", u + 1)] if i == 0 else None))
    RES[g0 + 15] = 1
Fl.append(F("v_cmp_lt_u32 vcc, s95, v252\ns_cbranch_vccnz L_redo", 2, 2, "gd"))
GW = OPT.get("gow", 40)
for i, (dp, cb) in enumerate(grp[8:]):
    o = norm_ops(dp, cb, True); g = i * (GW - 4) // 8
    Fl.append(F("\n".join(o[:-1]), g, g, "nrm")); Fl.append(F(o[-1], g + 1, g + 1, "nrm", tag="ow2"))
Fl.append(F(("barrier", ["ow2"]), GW, GW, "ob"))
i = 0
for ks in range(2, 16):
    for cb in range(4):
        e = i if ks < 8 else max(GW + 1 + i - 24, {14: 48, 15: 64}.get(ks, 0) + cb)
        f = F(oB_read(ks, cb), e, e + 1, "ob", tag="OB"); i += 1
        if ks < 8: f.order -= 1000
        Fl.append(f)
GX_ = GW + 38
Fl += osu.fillers(GW - 8, 118, "su")
if E89: ld = [(10, slot[10], 1, None), (11, slot[11], 21, None), (12, 4, GW + 4, None)] + [(13 + k, 5 + k, GX_ + 2 + 14 * k, None) for k in range(3)] + ld[6:]
else: ld = [(u, slot[u], GW - 6 + 12 * (u - 8), None) for u in range(8, 16)] + ld[6:]
for u, r, g, nd in ld:
    if u == 13: Fl.append(F(("barrier", ["OB"]), GX_, GX_, "dma"))
    p = wo_pre(u, slot_m0(r))
    spread_dma(Fl, g, p[:2], dma4("s60", nt("wo")), p[2:] + (["s_add_u32 s92, s92, 256", "s_and_b32 s92, s92, 1023"] if (u & 7) == 7 else []), ("W", u), [("R", nd)] if nd is not None else None, 5 if g < GW else 4 if (u > 15 or E89) else 3)
for n in range(3):
    g = (8 * n + 8) * 16
    Fl.append(F("s_add_u32 s61, s93, s8", g + 2, g + 8, "po"))
    SS = OPT.get("ss", 4)
    for cb in range(4):
        for t in part_cvt(n, cb): Fl.append(F(t, g + 2, g + 9 + SS * cb, "po"))
        if not OPT.get("nopart"): Fl.append(F(f"buffer_store_dwordx4 v[{224+4*cb}:{227+4*cb}], v31, s[48:51], s61 offen{'' if OPT.get('plainst') else ' sc1'}", g + 9 + SS * cb, g + 10 + SS * cb, "po", tag=("part", n)))
        Fl.append(F("s_add_u32 s61, s61, 16384" if cb < 3 else "s_add_u32 s8, s8, 512", g + 9, g + 12 + SS * cb, "po"))
    Fl.append(F("s_and_b32 s8, s8, 2047", g + 20, g + 14 + 3 * SS, "po"))
    gf = g + OPT.get("gf", 6 * 16 + 9)
    if n != 1: continue
    Fl.append(F(("barrier", [("part", n)]), gf, gf, "po"))
    Fl.append(F(FLAG, gf + 1, gf + 1, "po"))
Fl.append(F("buffer_load_dword v240, v23, s[48:51], s0 offen sc1", 30 * 16 + 8, 30 * 16 + 12, "po"))
for i, t in enumerate(["buffer_load_dwordx4 v[244:247], v6, s[52:55], s10 offen", "buffer_load_dwordx4 v[248:251], v7, s[52:55], s10 offen",
                       "buffer_load_dwordx4 v[252:255], v8, s[48:51], 0 offen sc1", "buffer_load_dwordx4 v[26:29], v8, s[48:51], s11 offen sc1"]):
    Fl.append(F(t, OPT.get("gsm", 24 * 16 + 30) + 16 * i, OPT.get("gsm", 24 * 16 + 30) + 4 + 16 * i, "sm"))
g = 23 * 16 + 12
w1s = ["s_min_u32 s62, s59, 6", "s_lshl_b32 s62, s62, 9", "s_lshl_b32 s60, s35, 7", "s_add_u32 s62, s62, s60", "s_add_u32 s36, s16, s62\ns_addc_u32 s37, s17, 0", f"s_sub_u32 s38, {512*3584}, s62", "s_lshl_b32 s14, s58, 1", f"s_and_b32 s14, s14, {6 if OPT.get('crot', 1) else 0}", "s_add_u32 s14, s14, s59", "s_and_b32 s92, s14, 7", f"s_mul_i32 s92, s92, {64*3584}",
       "v_bfe_u32 v2, v1, 2, 3", "v_mul_u32_u24 v2, 3584, v2", "v_lshrrev_b32 v3, 5, v1", "v_lshl_add_u32 v2, v3, 6, v2", "v_and_b32 v3, 3, v1", "v_lshl_add_u32 v11, v3, 4, v2",
       f"v_add_u32 v12, {8*3584-1032}, v11", f"v_add_u32 v13, {16*3584-2064}, v11", f"v_add_u32 v14, {24*3584-3096}, v11"]
for t in w1s: Fl.append(F(t, g, g + 14, "dma"))
NW0 = OPT.get('nw0', 7)
def w1_pre(): return ["s_mov_b32 s60, s92", f"s_add_u32 s92, s92, {32*3584}", f"s_cmp_eq_u32 s92, {512*3584}\ns_cselect_b32 s92, 0, s92"]
for k in range(NW0):
    p = w1_pre(); spread_dma(Fl, 24 * 16 + 12 + 16 * k - (k // 2) * 3, [slot_m0(slot[24 + k])] + p[:1], dma4("s60"), p[1:], ("W1", k), [("R", 24 + k)], 3)
for u in (8, 16, 24): Fl += stampF(f"O{u}", u * 16)
for u in (16, 20, 22, 23, 24, 25, 26, 27, 28, 29, 30, 31): Fl += stampF(f"u{u}", u * 16)
Fl += stampF("u32", 511)
schedule(st, M, Fl, reserve=RES, verbose="O")
for cb in range(4):
    for t in part_cvt(3, cb): A(t)
A("s_add_u32 s61, s93, s8")
for cb in range(4):
    st.add(f"buffer_store_dwordx4 v[{224+4*cb}:{227+4*cb}], v31, s[48:51], s61 offen sc1", tag=("part", 3))
    if cb < 3: A("s_add_u32 s61, s61, 16384")
stamp("O")

def w1reg(half, s, tile): return ((half * 16 + s) * 2 + tile) * 4
def w2reg(ks, tp, tile):
    o = tp * 8 + tile * 4
    if ks < 4: return ("v", 160 + ks * 16 + o)
    if ks < 9: return ("a", (ks - 4) * 16 + o)
    if ks < 13: return ("a", 192 + (ks - 9) * 16 + o)
    return ("v", 208 + o)
KS2 = [(p, 0) for p in range(7)] + [(p, 1) for p in range(7)]
class WS:
    nd = NW0; nr = 0; slot_of = {k: slot[24 + k] for k in range(NW0)}; last = {slot[24 + k]: k for k in range(NW0)}
def w_dma(n, slots):
    for _ in range(n):
        u = WS.nd; WS.nd += 1
        r = [x for x in slots if WS.last.get(x, -1) < WS.nr][0]
        A(slot_m0(r))
        if u == 16: w2_setup()
        A("\n".join(w1_pre()) if u < 16 else "\n".join(w2_pre(u - 16)))
        for i, t in enumerate(dma4("s60")): st.add(t, tag=("W1", u), need=[("R1", WS.last[r])] if (i == 0 and r in WS.last) else None)
        WS.slot_of[u] = r; WS.last[r] = u
def w_read(n):
    for _ in range(n):
        u = WS.nr; WS.nr += 1; r = WS.slot_of[u]
        if u < 16:
            off, ad = slot_rd(r); L = p8_reads(lambda tp, tile: ("a", w1reg(tp, u, tile)), off, "v9" if r < 4 else ad)
        else:
            L = p8_reads(lambda tp, tile: w2reg(u - 16, tp, tile), r * UNIT if r < 4 else 0, "v9" if r < 4 else "v20")
        for i, t in enumerate(L): st.add(t, tag=("R1", u), need=[("W1", u)] if i == 0 else None)
def w2_setup():
    voffs8(1024)
    A(f"""
    s_lshl_b32 s60, s35, 16
    s_lshl_b32 s61, s59, 7
    s_add_u32 s60, s60, s61
    s_add_u32 s36, s20, s60
    s_addc_u32 s37, s21, 0
    s_sub_u32 s38, {1792*1024}, s60
    s_sub_u32 s7, s14, 7
    s_cselect_b32 s7, s14, s7
    s_mul_i32 s8, s7, 40960
    s_lshl_b32 s7, s7, 18
    """)
def w2_pre(ks): return [f"s_add_u32 s60, s7, {(ks // 7) * 32768}", "s_add_u32 s7, s7, 0x40000", f"s_cmp_eq_u32 s7, {7 << 18}\ns_cselect_b32 s7, 0, s7"]
ALL7 = [0, 1, 2, 3, 4, 5, 6]
srd(52, 18, 3584)
A("v_lshrrev_b32 v2, 4, v1\nv_lshlrev_b32 v2, 4, v2\nbuffer_load_dwordx4 v[80:83], v2, s[52:55], s62 offen\nbuffer_load_dwordx4 v[84:87], v2, s[52:55], s62 offen offset:64")
A("v_subrev_u32 v2, v10, v9\nv_add_u32 v20, v2, v20\nv_add_u32 v21, v2, v21")
stamp("elp")
def wave0_wait(lab, word, test, probe, ex=None):
    keep = None
    A(f"{test}\ns_cmp_eq_u32 s35, 0\ns_cbranch_scc1 {lab}_0\ns_cbranch_vccz {lab}_e\ns_mov_b32 s3, {SPIN * 8}")
    keep = (list(st.vm), list(st.lg))
    A(f"{lab}_l:\nds_read_b32 v240, v241 offset:{4*word}\ns_sub_u32 s3, s3, 1\ns_waitcnt lgkmcnt(0)\nv_cmp_ne_u32 vcc, s34, v240\ns_cmp_eq_u32 s3, 0\ns_cbranch_scc1 {lab}_e\ns_cbranch_vccz {lab}_e\ns_sleep 1\ns_branch {lab}_l")
    A(f"{lab}_0:\ns_cbranch_vccz {lab}_x")
    if ex: A(f"s_mov_b64 exec, {ex}")
    spin(lab, probe, test)
    if ex: A("s_mov_b64 exec, -1")
    A(f"ds_write_b32 v241, v25 offset:{4*word}\n{lab}_e:")
    st.vm, st.lg = keep; st.hist = []
wave0_wait("L_rdy", 0, "v_cmp_ne_u32 vcc, s34, v240", ["v_mov_b32 v240, 0", "buffer_atomic_add v240, v23, s[48:51], s0 offen sc0 sc1"], "0xffff")
def pre_off(n): return f"s_add_u32 s13, s12, {n*512}\ns_and_b32 s13, s13, 2047\ns_add_u32 s13, s13, s1"
def pread_ops(n):
    o = pre_off(n).split("\n")
    for gp, t in enumerate(pread(n, ["s13"] * 4)): o += [t] + (["s_add_u32 s13, s13, 0x20000"] if gp < 3 else [])
    return o
def preads(n, tag=None):
    for t in pread_ops(n): st.add(t, tag=tag if t.startswith("buffer") else None)
def hint(off): return ["v_mov_b32 v240, 0", f"buffer_atomic_add v240, v19, s[48:51], s15 offen offset:{off} sc0 sc1"]
def wait_hint(lab, word, off):
    wave0_wait(lab, word, "v_cmp_eq_u32 vcc, -1, v240", hint(off))
m2 = ["buffer_load_dwordx4 v[252:255], v8, s[48:51], 0 offen sc1", "buffer_load_dwordx4 v[26:29], v8, s[48:51], s11 offen sc1"]
for n in range(2): preads(n)
A(pre_off(3).replace("s13", "s15"))
for t in hint(384): A(t)
w_read(NW0)
A("v_mov_b32 v2, 0x3f80\nv_mov_b32 v3, 0x3f800000")
for r in range(32): A(f"v_mov_b32 v{96+r}, 0")
def accq(n):
    for gp in range(4):
        for r in range(4): A(f"v_dot2c_f32_bf16 v{96+8*n+2*r}, v{160+16*n+4*gp+r}, v2\nv_dot2c_f32_bf16 v{97+8*n+2*r}, v{160+16*n+4*gp+r}, v3")
for r in range(8): A(f"v_lshlrev_b32 v{144+2*r}, 16, v{244+r}\nv_and_b32 v{145+2*r}, 0xffff0000, v{244+r}")
cond2 = """v_cmp_ne_u32 vcc, s34, v253
    v_cmp_ne_u32 s[100:101], s34, v255
    s_or_b64 vcc, vcc, s[100:101]
    v_cmp_ne_u32 s[100:101], s34, v27
    s_or_b64 vcc, vcc, s[100:101]
    v_cmp_ne_u32 s[100:101], s34, v29
    s_or_b64 vcc, vcc, s[100:101]"""
A(cond2); A("s_cbranch_vccz L_pm2_x")
keep = (list(st.vm), list(st.lg))
spin("L_pm2", ["s_sleep 8"] + m2, cond2)
st.vm, st.lg = keep
A(f"""
s_cmp_lt_u32 s35, 2
s_cselect_b32 s60, 1.0, 0
v_lshlrev_b32 v128, 16, v252
v_and_b32 v129, 0xffff0000, v252
v_lshlrev_b32 v130, 16, v254
v_and_b32 v131, 0xffff0000, v254
v_lshlrev_b32 v132, 16, v26
v_and_b32 v133, 0xffff0000, v26
v_lshlrev_b32 v134, 16, v28
v_and_b32 v135, 0xffff0000, v28
v_add_f32 v132, s60, v132
v_add_f32 v133, s60, v133
v_add_f32 v134, s60, v134
v_add_f32 v135, s60, v135
v_lshlrev_b32 v8, 4, v0
v_add_u32 v8, {MODV}, v8
ds_write_b128 v8, v[128:131]
ds_write_b128 v8, v[132:135] offset:4096
""")
OWN5 = [0, 1, 2, 3, 4]
A(f"""
s_mul_i32 s6, s35, {UNIT}
s_add_u32 s6, s6, 65536
s_sub_u32 s60, s6, s63
s_waitcnt lgkmcnt(0)
v_add_u32 v20, s60, v9
s_barrier
""")
stamp("epr")
w_dma(OPT.get("nA", 0), OWN5)
def modrd(dst, vec):
    for h in range(2):
        for q in range(2): A(f"ds_read_b128 v[{dst+8*h+4*q}:{dst+8*h+4*q+3}], v{242+h} offset:{vec*2048 + q*16}")
modrd(32, 0); modrd(48, 2); modrd(64, 1)
wait_hint("L_hp", 1, 384)
stamp("f1st")
preads(2, "p23"); preads(3, "p23")
w_dma(OPT.get("nB", 4), OWN5)
accq(0); accq(1)
chk23 = "v_max3_u32 v240, v192, v196, v200\nv_max3_u32 v240, v240, v204, v208\nv_max3_u32 v240, v240, v212, v216\nv_max_u32 v240, v240, v220\nv_cmp_eq_u32 vcc, -1, v240"
st.need("p23")
A(chk23); A("s_cbranch_vccz L_p23_x")
keep = (list(st.vm), list(st.lg)); spin("L_p23", ["s_sleep 2"] + pread_ops(2) + pread_ops(3), chk23); st.vm, st.lg = keep
stamp("f1ok")
accq(2); accq(3)
stamp("eacc3")
for h in range(2):
    for r in range(8): A(f"v_permlane32_swap_b32 v{96+16*h+r}, v{104+16*h+r}")
for h in range(2):
    for r in range(0, 8, 2): A(f"v_pk_add_f32 v[{128+8*h+r}:{129+8*h+r}], v[{96+16*h+r}:{97+16*h+r}], v[{104+16*h+r}:{105+16*h+r}]")
for r in range(8): A(f"v_pk_fma_f32 v[{128+2*r}:{129+2*r}], v[{128+2*r}:{129+2*r}], v[{32+2*r}:{33+2*r}], v[{144+2*r}:{145+2*r}]")
for r in range(8): A(f"v_cvt_pk_bf16_f32 v{144+r}, v{128+2*r}, v{129+2*r}")
def row_stats(x):
    A(f"v_pk_add_f32 v[96:97], v[{x}:{x+1}], v[{x+2}:{x+3}]\nv_pk_mul_f32 v[98:99], v[{x}:{x+1}], v[{x}:{x+1}]")
    A(f"v_pk_fma_f32 v[98:99], v[{x+2}:{x+3}], v[{x+2}:{x+3}], v[98:99]")
    for r in range(2, 8):
        A(f"v_pk_add_f32 v[96:97], v[96:97], v[{x+2*r}:{x+2*r+1}]\nv_pk_fma_f32 v[98:99], v[{x+2*r}:{x+2*r+1}], v[{x+2*r}:{x+2*r+1}], v[98:99]")
    A("v_add_f32 v96, v96, v97\nv_add_f32 v98, v98, v99")
    for d in ("quad_perm:[2,3,0,1]", "row_ror:4", "row_ror:8"):
        A(f"v_add_f32_dpp v96, v96, v96 {d} row_mask:0xf bank_mask:0xf\nv_add_f32_dpp v98, v98, v98 {d} row_mask:0xf bank_mask:0xf")
    for sw in ("16", "32"):
        A(f"v_mov_b32 v97, v96\nv_mov_b32 v99, v98\nv_permlane{sw}_swap_b32 v96, v97\nv_permlane{sw}_swap_b32 v98, v99\nv_add_f32 v96, v96, v97\nv_add_f32 v98, v98, v99")
    A(f"""v_mul_f32 v97, {f2u(1/512)}, v96
    v_mul_f32 v98, {f2u(1/512)}, v98
    v_fma_f32 v98, -v97, v97, v98
    v_max_f32 v98, 0, v98
    v_add_f32 v98, {f2u(1e-5)}, v98
    v_rsq_f32 v96, v98
    v_mul_f32_e64 v98, -v97, v96""")
row_stats(128)
for r in range(8): A(f"v_pk_fma_f32 v[{128+2*r}:{129+2*r}], v[{128+2*r}:{129+2*r}], v[96:97], v[98:99] op_sel_hi:[1,0,0]")
for r in range(8): A(f"v_pk_fma_f32 v[{128+2*r}:{129+2*r}], v[{128+2*r}:{129+2*r}], v[{48+2*r}:{49+2*r}], v[{64+2*r}:{65+2*r}]")
row_stats(128)
for r in range(8): A(f"v_pk_fma_f32 v[{128+2*r}:{129+2*r}], v[{128+2*r}:{129+2*r}], v[96:97], v[98:99] op_sel_hi:[1,0,0]")
for r in range(8): A(f"v_cvt_pk_bf16_f32 v{152+r}, v{128+2*r}, v{129+2*r}")
A(f"s_add_u32 s61, s10, {WS_Y}")
st.add("buffer_store_dwordx4 v[152:155], v6, s[48:51], s61 offen sc1", tag="y")
st.add("buffer_store_dwordx4 v[156:159], v7, s[48:51], s61 offen sc1", tag="y")
A(f"s_add_u32 s61, s10, {WS_X1}")
st.add("buffer_store_dwordx4 v[144:147], v6, s[48:51], s61 offen sc1", tag="y")
st.add("buffer_store_dwordx4 v[148:151], v7, s[48:51], s61 offen sc1", tag="y")
stamp("ysent")
w_read(WS.nd - WS.nr); w_dma(OPT.get("nD", 3), OWN5)
A(f"""
v_lshrrev_b32 v2, 4, v1
s_lshl_b32 s12, s58, 16
s_lshl_b32 s11, s35, 14
s_add_u32 s12, s12, s11
s_add_u32 s12, s12, {WS_Y}
s_lshl_b32 s61, s58, 3
s_add_u32 s61, s61, s59
s_lshl_b32 s9, s61, 7
s_add_u32 s9, s9, {WS_F3}
s_cmp_lg_u32 s35, 0
s_cselect_b32 s9, {OOB}, s9
s_lshl_b32 s0, s58, 2
s_add_u32 s0, s0, s35
s_lshl_b32 s0, s0, 8
s_add_u32 s0, s0, {WS_F3}
v_min_u32 v23, 2, v1
v_lshrrev_b32 v22, 1, v23
v_lshlrev_b32 v23, 7, v23
v_lshl_add_u32 v23, v22, 28, v23
v_and_b32 v22, 31, v1
v_lshlrev_b32 v22, 2, v22
v_lshrrev_b32 v4, 3, v1
v_lshrrev_b32 v5, 1, v4
v_xor_b32 v5, v5, v1
v_and_b32 v5, 7, v5
v_lshlrev_b32 v5, 4, v5
v_lshl_add_u32 v4, v4, 10, v5
v_xor_b32 v5, 64, v4
v_add_u32 v5, 8192, v5
v_bfe_u32 v15, v1, 1, 3
v_xor_b32 v15, v15, v2
v_lshlrev_b32 v15, 4, v15
v_and_b32 v17, 7, v1
v_lshl_add_u32 v15, v17, 7, v15
v_bfe_u32 v17, v1, 3, 1
v_lshl_add_u32 v15, v17, 13, v15
v_xor_b32 v17, 64, v15
""")
for r in range(8): A(f"v_lshlrev_b32 v{224+2*r}, 16, v{80+r}\nv_and_b32 v{225+2*r}, 0xffff0000, v{80+r}")
stamp("ewr")
st.need("y")
stamp("eyack")
A("s_barrier"); A("buffer_store_dword v25, v22, s[48:51], s9 offen sc1")
w_read(WS.nd - WS.nr)
def y_dma(poller):
    A("s_and_b32 s13, s14, 7\ns_lshl_b32 s13, s13, 7")
    for sp in range(8):
        A("s_add_u32 s61, s12, s13")
        for qh in range(2):
            A(f"s_add_u32 m0, s11, {qh*8192 + sp*1024}")
            st.add(f"buffer_load_dwordx4 v{4+qh}, s[48:51], s61 offen sc1 lds", tag=("Y", sp >> 2))
        if sp < 7: A("s_add_u32 s13, s13, 128\ns_and_b32 s13, s13, 1023")
probe = ["v_mov_b32 v240, 0", "buffer_atomic_add v240, v23, s[48:51], s0 offen sc0 sc1"]; ctest = "v_cmp_ne_u32 vcc, s34, v240\ns_and_b64 vcc, vcc, 3"
w_dma(OPT.get("nE", 2), OWN5)
for t in probe: A(t)
w_dma(OPT.get("nE2", 1), OWN5)
stamp("epre2")
A(ctest); A("s_cbranch_vccz L_pf2_x")
keep = (list(st.vm), list(st.lg)); spin("L_pf2", probe, ctest); st.vm, st.lg = keep
stamp("ebar2")
y_dma(False)
w_dma(OPT.get("nE3", 1), OWN5)
assert WS.nd > 16
stamp("f2ok")
if OPT.get("warm2", 1): warm("L_w2")
A(f"s_lshl_b32 s60, s2, 2\ns_add_u32 s60, s60, s35\ns_cmp_lg_u32 s60, 1\ns_cbranch_scc1 L_noep\nv_lshlrev_b32 v2, 7, v1\nv_add_u32 v2, {WS_F1}, v2\ns_mov_b32 s60, 0x2000\ns_mov_b32 s61, 0x4000\ns_mov_b32 s13, 0x6000")
keep = (list(st.vm), list(st.lg))
spin("L_ep", [f"buffer_load_dword v{40+i}, v2, s[48:51], {['0', 's60', 's61', 's13'][i]} offen sc1" for i in range(4)],
     "v_cmp_ne_u32 vcc, s34, v40\n" + "".join(f"v_cmp_ne_u32 s[100:101], s34, v{40+i}\ns_or_b64 vcc, vcc, s[100:101]\n" for i in range(1, 4)))
A("v_mov_b32 v2, 0\nbuffer_store_dword v25, v2, s[48:51], 0 offen sc1\nL_noep:"); st.vm, st.lg = keep
st.need(("Y", 0))
A("s_barrier")
stamp("Yin")

def yb(n, s, c2): return 96 + (n & 1) * 32 + (s * 2 + c2) * 4
def hacc(half, tile, cb): return 32 + half * 32 + (tile * 4 + cb) * 4
def yreads(n):
    cp, k4 = (n >> 2) & 1, n & 3
    return [f"ds_read_b128 v[{yb(n,s,c2)}:{yb(n,s,c2)+3}], v{15 if s % 2 == 0 else 17} offset:{(cp*2+c2)*16384 + (k4*2+(s>>1))*1024}" for c2 in range(2) for s in range(4)]
C1 = -2 * 0.7978845608028654 * 1.4426950408889634; C2 = C1 * 0.044715
def gelu_stages(q):
    half, cp = q >> 1, q & 1
    X = [hacc(half, t, cp * 2 + c2) + r for c2 in range(2) for t in range(2) for r in (0, 2)]; T = [240 + 2 * i for i in range(8)]
    pr = lambda r: f"v[{r}:{r+1}]"
    a = [f"v_pk_mul_f32 {pr(t)}, {pr(x)}, {pr(x)}" for x, t in zip(X, T)] + [f"v_pk_fma_f32 {pr(t)}, {pr(t)}, s[92:93], v[26:27] op_sel_hi:[1,0,0]" for t in T] + [f"v_pk_mul_f32 {pr(t)}, {pr(x)}, {pr(t)}" for x, t in zip(X, T)]
    b = [f"v_exp_f32 v{240+i}, v{240+i}" for i in range(16)]
    c = [f"v_pk_add_f32 {pr(t)}, {pr(t)}, 1.0 op_sel_hi:[1,0]" for t in T]
    d = [f"v_rcp_f32 v{240+i}, v{240+i}" for i in range(16)]
    e = [f"v_pk_mul_f32 {pr(x)}, {pr(x)}, {pr(t)}" for x, t in zip(X, T)]
    st_ = []
    for c2 in range(2):
        cb = cp * 2 + c2; dd = hacc(half, 0, cb)
        e += [f"v_cvt_pk_bf16_f32 v{dd+k}, v{X[4*c2+k]}, v{X[4*c2+k]+1}" for k in range(4)]
        e.append(f"v_min_u32 v{dd}, -2, v{dd}")
        st_.append(f"buffer_store_dwordx4 v[{dd}:{dd+3}], v16, s[48:51], s{93+1+half} offen offset:{cb*1024} sc1")
    return a, b, c, d, e, st_
def flag3(q): return f"buffer_store_dword v25, v22, s[48:51], s11 offen offset:{q*512} sc1"
for t in yreads(0): A(t)
late_w = []
assert WS.nr >= 12
while WS.nr < min(WS.nd, 20):
    u = WS.nr; WS.nr += 1; r = WS.slot_of[u]
    late_w += [(t, u) for t in p8_reads((lambda tp, tile: ("a", w1reg(tp, u, tile))) if u < 16 else (lambda tp, tile: w2reg(u - 16, tp, tile)), r * UNIT if r < 4 else 0, "v9" if r < 4 else "v20")]
A(f"""
s_mov_b32 s92, {f2u(C2)}
v_mov_b32 v26, {f2u(C1)}
s_lshl_b32 s60, s58, 3
s_add_u32 s60, s60, s59
s_mul_i32 s94, s60, 40960
s_mul_i32 s61, s35, 5120
s_add_u32 s94, s94, s61
s_add_u32 s94, s94, {WS_H1}
s_add_u32 s95, s94, 20480
s_mul_i32 s1, s58, 327680
s_add_u32 s1, s1, s61
s_add_u32 s1, s1, {WS_H1}
""")
NE = WS.nd - 16
W2S = {ks: ([0, 1, 2, 3, 4] * 3)[ks - NE] for ks in range(NE, 14)}
if NE == 5: W2S[4] = WS.slot_of[20]; assert W2S[4] == 4
def w2_m0(r): return f"s_add_u32 m0, s63, {r*UNIT}" if r < 4 else "s_mov_b32 m0, s6"
def w2_reads(ks): r = W2S[ks]; return p8_reads(lambda tp, tile: w2reg(ks, tp, tile), r * UNIT if r < 4 else 0, "v9" if r < 4 else "v20")
def hB(Q, k, c2):
    r = (k * 2 + c2) * 4
    if Q == 0: return ("a", 80 + r) if r < 48 else ("v", 224 + r - 48)
    if Q == 2: return ("v", 32 + r if r < 40 else (80 + r - 40 if r < 48 else 232 + r - 48))
    return [None, ("a", 136 + r), None, ("a", 80 + r)][Q]
def h_loads(Q, run="s8", tmp="s10"):
    o = []
    for k in range(7):
        o.append(f"s_add_u32 {tmp}, s1, {run}")
        for c2 in range(2):
            f, r = hB(Q, k, c2); o.append(f"buffer_load_dwordx4 {f}[{r}:{r+3}], v{16 + 2*(Q>>1)}, s[48:51], {tmp} offen offset:{((Q&1)*2+c2)*1024} sc1")
        o += [f"s_add_u32 {run}, {run}, 40960", f"s_cmp_eq_u32 {run}, {7 * 40960}\ns_cselect_b32 {run}, 0, {run}"]
    return o
def chk3(q): return f"buffer_load_dword v{28 + (q&1)}, v23, s[48:51], s0 offen offset:{q*512} sc1"
A("v_add_u32 v18, 20480, v16\ns_mov_b32 s9, s8")
M = []; Fl = []; RES = {}
for n in range(16):
    q = n >> 2; half, cp, k4 = q >> 1, q & 1, n & 3; g0 = len(M)
    for tile in range(2):
        for c2 in range(2):
            for s in range(4):
                M.append(mf(hacc(half, tile, cp * 2 + c2), w1reg(half, 4 * k4 + s, tile), yb(n, s, c2), (224 + half * 8 + tile * 4) if (k4 == 0 and s == 0) else None, "v", "a", "v"))
    if n == 0:
        nl = len(late_w) - 8 * OPT.get("nE3", 1)
        LW = OPT.get("lws", 3)
        for i, (t, u) in enumerate(late_w): Fl.append(F(t, i * LW // 4 if i < nl else max(17, nl * LW // 4) + (i - nl) // 2, i * LW // 4 if i < nl else max(17, nl * LW // 4) + (i - nl) // 2, "lw", tag=("LW", i >> 3), need=[("W1", u)] if i % 8 == 0 else None))
    if n == 1: Fl.append(F(("barrier", [("Y", 1)]), g0, g0, "rd"))
    if n < 15:
        for i, t in enumerate(yreads(n + 1)): Fl.append(F(t, g0 + i, g0 + i + 1, "rd"))
    RES[g0 + 15] = 1
nlw = len(late_w) // 8; lslot = [WS.slot_of[u] for u in range(WS.nr - nlw, WS.nr)]
free = [(r, None) for r in range(5) if r not in lslot and not (NE == 5 and r == 4)] + [(r, ("LW", i)) for i, r in enumerate(lslot)]
ev = []; gd = OPT.get("gw2", 14); rdg = {}; PACE = OPT.get("pace", 14)
afree = {4: 81, 5: 86, 6: 97, 7: 102, 8: 113}
if NE == 5: rdg[4] = afree[4]; ev.append((rdg[4], "r", 4))
for ks in range(NE, 14):
    if free: r, nd = free.pop(0)
    else: r, nd = W2S[ks - 5], ("R2", ks - 5); gd = max(gd, rdg[ks - 5] + 8)
    W2S[ks] = r; ev.append((gd, "d", ks, nd))
    if ks < 9: rdg[ks] = max(gd + 44, afree.get(ks, 0)); ev.append((rdg[ks], "r", ks))
    gd += PACE
for e in sorted(ev, key=lambda e: e[0]):
    g, kind, ks = e[:3]
    if kind == "d":
        p = w2_pre(ks); spread_dma(Fl, g, [w2_m0(W2S[ks])] + p[:1], dma4("s60"), p[1:], ("W2", ks), [e[3]], 3)
    else:
        for k, t in enumerate(w2_reads(ks)): Fl.append(F(t, g + k // 2, g + (k + 1) // 2, "w2r", tag=("R2", ks), need=[("W2", ks)] if k == 0 else None))
CAP = {}
for q in range(3):
    g = 64 * (q + 1) + 4; a_, b_, c_, d_, e_, st_ = gelu_stages(q)
    Fl.append(F("\n".join(a_), g, g, "gelu"))
    for i, t in enumerate(b_): Fl.append(F(t, g + 1 + i, g + 1 + i, "gelu"))
    Fl.append(F("\n".join(c_), g + 18, g + 18, "gelu"))
    for i, t in enumerate(d_): Fl.append(F(t, g + 19 + i, g + 19 + i, "gelu"))
    Fl.append(F("\n".join(e_), g + 36, g + 36, "gelu"))
    for i, t in enumerate(st_): Fl.append(F(t, g + 37 + 2 * i, g + 37 + 2 * i, "gelu", tag=("h1", q)))
    for k in range(g + 1, g + 35): CAP[k] = 3
def h_check(Q):
    o = []
    for k in range(7):
        for c2 in range(2):
            f, r = hB(Q, k, c2)
            if f == "a": o.append(f"v_accvgpr_read_b32 v29, a{r}"); r = 29
            o.append(f"v_mov_b32 v28, v{r}" if not (k or c2) else f"v_max_u32 v28, v28, v{r}")
    return o
def check_F(Q, e, l, chain): return [F(t, e, l, chain, need=[("H", Q)] if i == 0 else None) for i, t in enumerate(h_check(Q))]
def spread_loads(Fl, ops, g0, step, chain="hl", tag=None):
    g = g0
    for t in ops:
        Fl.append(F(t, g - 2, g + 1, chain, tag=tag if t.startswith("buffer") else None))
        if t.startswith("buffer"): g += step
    return g
def have(Q):
    c = "v_cmp_eq_u32 vcc, -1, v28"
    A(c); A(f"s_cbranch_vccz L_h{Q}_x")
    keep = (list(st.vm), list(st.lg), list(st.hist))
    spin(f"L_h{Q}", ["s_sleep 4"] + [x for t in h_loads(Q, "s9", "s13") for x in t.split("\n")], "\n".join(h_check(Q)) + "\n" + c)
    st.vm, st.lg, st.hist = keep
    stamp(f"mchk{Q}")
spread_loads(Fl, h_loads(0), OPT.get("gl0", 176), 4, "ck", ("H", 0))
hl = h_loads(1); n1a = 5 * OPT.get("n1a", 3)
spread_loads(Fl, hl[:n1a], 234, 4, "ck", ("H", 1)); hl = hl[n1a:]
Fl += check_F(0, 241, 255, "hc")
for q in range(1, 4): Fl += stampF(f"mq{q}", 64 * q)
if OPT.get("abl"):
    ab = OPT["abl"]
    def drop(f):
        if isinstance(f.ins, tuple): return False
        t = f.ins.txt
        return (ab & 1 and t.endswith("lds")) or (ab & 2 and t.startswith("buffer_store_dwordx4")) or (ab & 4 and f.chain == "ck" and "dwordx4" in t) or (ab & 8 and f.chain == "w2r")
    Fl = [f for f in Fl if not drop(f)]
schedule(st, M, Fl, reserve=RES, verbose="G1", mem2=("rd", "dma", "w2r", "ck", "lw"), minback=0, capx=CAP)
stamp("G1")
a_, b_, c_, d_, e_, st_ = gelu_stages(3)
for i, t in enumerate(a_ + b_ + c_ + d_ + e_):
    A(t)
    if i % 9 == 8:
        while hl:
            x = hl.pop(0)
            if x.startswith("buffer"): st.add(x, tag=("H", 1)); break
            A(x)
for t in st_: A(t)
stamp("mgelu3")
have(0)
stamp("gelu")

def facc(tp, tile, cb): return 96 + (tp * 8 + tile * 4 + cb) * 4
def g2(Q):
    r = []
    for ch in (([0, 1], [2, 3], [4, 5, 6]) if Q < 2 else ([0, 1, 2, 3, 4, 5, 6],)):
        for tp in range(2):
            for tile in range(2):
                for c2 in range(2):
                    for k in ch:
                        fa, ra = w2reg((Q >> 1) * 7 + k, tp, tile); fb, rb = hB(Q, k, c2)
                        r.append(mf(facc(tp, tile, (Q & 1) * 2 + c2), ra, rb, "0" if (Q < 2 and k == 0) else None, "v", fa, fb))
    return r
Fl = []
for i in range(4):
    for k, t in enumerate(w2_reads(9 + i)): Fl.append(F(t, 8 * i + k, 8 * i + k + 1, "rd", need=[("W2", 9 + i)] if k == 0 else None))
g = spread_loads(Fl, hl, 0, 3, tag=("H", 1))
spread_loads(Fl, h_loads(2), max(g, OPT.get("gl2", 10)), OPT.get("st2", 3), tag=("H", 2))
Fl += check_F(1, 41, 55, "hc")
schedule(st, g2(0), Fl)
stamp("mg20")
have(1)
with Capture() as cp:
    A(f"""
v_and_b32 v2, 15, v1
v_lshlrev_b32 v2, 10, v2
v_lshrrev_b32 v3, 4, v1
v_lshl_add_u32 v2, v3, 4, v2
v_lshlrev_b32 v4, 4, v3
s_lshl_b32 s92, s58, 16
s_lshl_b32 s60, s35, 14
s_add_u32 s92, s92, s60
s_lshl_b32 s95, s59, 7
s_add_u32 s92, s92, s95
s_add_u32 s60, s92, {WS_X1}
""")
    srd(52, 22, 1024)
Fl = cp.fillers(0, 30, "su", ren=False)
Fl += [F(t, 32 + k, 33 + k, "rd", need=[("W2", 13)] if k == 0 else None) for k, t in enumerate(w2_reads(13))]
spread_loads(Fl, h_loads(3), OPT.get("gl3", 8), OPT.get("st2", 3), tag=("H", 3))
Fl += check_F(2, 46, 55, "hc")
schedule(st, g2(1), Fl)
stamp("G2a")
have(2)
def fwrite(cb, tp, tile): return f"ds_write_b128 v5, v[{facc(tp,tile,cb)}:{facc(tp,tile,cb)+3}] offset:{cb*16384 + (tp*2+tile)*1024}"
def fw_F(Q, n0, n1, shift):
    return [F(fwrite((Q & 1) * 2 + (n & 1), n >> 2, (n >> 1) & 1), 7 * n + 6 + 8 + shift, 7 * n + 6 + 8 + shift, "fw") for n in range(n0, n1)]
Fl = []
spread_loads(Fl, ["buffer_load_dwordx4 v[240:243], v2, s[48:51], s60 offen sc1", "buffer_load_dwordx4 v[244:247], v2, s[48:51], s60 offen offset:64 sc1",
             "buffer_load_dwordx4 v[248:251], v4, s[52:55], s95 offen", "buffer_load_dwordx4 v[252:255], v4, s[52:55], s95 offen offset:64"], 2, 6)
Fl += check_F(3, 41, 55, "hc")
for t in ["s_lshl_b32 s3, s35, 12", "v_add_u32 v5, s3, v16"]: Fl.append(F(t, 0, 2, "fw"))
Fl.append(F(("barrier", []), 3, 3, "fw"))
Fl += fw_F(2, 0, 6, 0)
schedule(st, g2(2), Fl)
stamp("mg22")
have(3)
with Capture() as cp:
    A(f"""
s_lshl_b32 s60, s35, 14
v_add_u32 v6, s60, v16
v_lshlrev_b32 v7, 5, v3
s_lshl_b32 s60, s59, 8
s_add_u32 s60, s60, {MODV + 3*2048}
v_add_u32 v7, s60, v7
v_and_b32 v8, 7, v1
v_lshlrev_b32 v8, 10, v8
v_lshl_add_u32 v8, v3, 4, v8
v_bfe_u32 v9, v1, 3, 1
v_lshl_add_u32 v8, v9, 6, v8
""")
    for tp in range(2):
        for q in range(2): A(f"ds_read_b128 v[{64+tp*8+4*q}:{67+tp*8+4*q}], v7 offset:{tp*128+q*16}")
    for r in range(8): A(f"v_lshlrev_b32 v{32+2*r}, 16, v{240+r}\nv_and_b32 v{33+2*r}, 0xffff0000, v{240+r}\nv_lshlrev_b32 v{48+2*r}, 16, v{248+r}\nv_and_b32 v{49+2*r}, 0xffff0000, v{248+r}")
    srd(52, 28, 2048 * 1024)
Fl = fw_F(2, 6, 8, -56 + 2) + fw_F(3, 0, 6, 0) + cp.fillers(0, 50, "su", ren=False)
schedule(st, g2(3), Fl)
stamp("G2")
A(fwrite(2, 1, 1)); A(fwrite(3, 1, 1))
stamp("mwr")
A("s_waitcnt lgkmcnt(0)\ns_barrier")
stamp("mbar")
for src in range(4):
    for n in range(4): A(f"ds_read_b128 v[{96+src*16+n*4}:{99+src*16+n*4}], v6 offset:{src*4096+n*1024}")
for src in range(4):
    for r in range(8): A(f"v_pk_add_f32 v[{48+2*r}:{49+2*r}], v[{48+2*r}:{49+2*r}], v[{96+src*16+2*r}:{97+src*16+2*r}]")
for r in range(8): A(f"v_pk_fma_f32 v[{32+2*r}:{33+2*r}], v[{48+2*r}:{49+2*r}], v[{64+2*r}:{65+2*r}], v[{32+2*r}:{33+2*r}]")
OM = OPT.get("outm", 0); ofl = ["", " sc1", " nt", " sc1 nt", " sc0 sc1"][OPT.get("outf", 0)]
if OM == 0:
    for h in range(2):
        for r in range(4 * h, 4 * h + 4): A(f"v_cvt_pk_bf16_f32 v{80+r}, v{32+2*r}, v{33+2*r}")
        A(f"buffer_store_dwordx4 v[{80+4*h}:{83+4*h}], v2, s[52:55], s92 offen offset:{64*h}{ofl}")
else:
    for r in range(8): A(f"v_cvt_pk_bf16_f32 v{80+r}, v{32+2*r}, v{33+2*r}")
    for r in range(4): A(f"v_mov_b32 v{88+r}, v{80+r}")
    for r in range(4): A(f"v_mov_b32_dpp v{80+r}, v{84+r} row_ror:8 row_mask:0xf bank_mask:0xc")
    A(f"buffer_store_dwordx4 v[80:83], v8, s[52:55], s92 offen{ofl}")
    for r in range(4): A(f"v_mov_b32_dpp v{84+r}, v{88+r} row_ror:8 row_mask:0xf bank_mask:0x3")
    A(f"s_add_u32 s92, s92, 8192\nbuffer_store_dwordx4 v[84:87], v8, s[52:55], s92 offen{ofl}")
if OPT["stamps"]:
    stamp("end")
    A("s_memrealtime s[96:97]\ns_waitcnt lgkmcnt(0)\ns_cmp_lg_u32 s35, " + str(OPT.get("sw", 0)) + "\ns_cbranch_scc1 L_end\ns_mov_b64 exec, 1")
    A(f"s_lshl_b32 s60, s2, 9\ns_add_u32 s60, s60, {WS_STAMP}\nv_mov_b32 v6, 0")
    A(f"s_mov_b32 s{64+stamp_n[0]-1}, s90")
    lst = [64 + n for n in range(stamp_n[0])] + [98, 96, 15]
    A("v_mov_b32 v3, 0")
    for n, s in enumerate(lst): A(f"v_mov_b32 v2, s{s}\nbuffer_store_dwordx2 v[2:3], v6, s[48:51], s60 offen offset:{n*8}\ns_nop 1")
    if OPT["dbg"] >= 0:
        srd(52, 30, 256)
        A(f"s_cmp_lg_u32 s2, {OPT['dbg']}\ns_cbranch_scc1 L_end")
        sel = [i for i in range(1, stamp_n[0]) if stamp_names[i] not in ("norm", "gelu", "G2a")][:14]
        for n, k in enumerate(sel): A(f"s_sub_u32 s60, s{64+k}, s64\nv_mov_b32 v2, s60\nbuffer_store_dword v2, v6, s[52:55], 0 offen offset:{4+n*4}\ns_nop 1")
        A("s_sub_u32 s60, s96, s98\nv_mov_b32 v2, s60\nbuffer_store_dword v2, v6, s[52:55], 0 offen offset:60")
        print("dbg order:", [stamp_names[k] for k in sel], "realtime")
    open(os.path.splitext(sys.argv[1])[0] + ".names", "w").write(" ".join(stamp_names))
    print("stamps:", len(lst))
A("s_endpgm")
st.reset(); st.newphase()
A(f"""
L_redo:
s_waitcnt vmcnt(0) lgkmcnt(0)
s_nop 15
s_mov_b32 s95, 1
s_mov_b32 s3, 8
s_barrier
L_redo_c:
""")
pre, d, post = k_ops(0)
for t in pre + d + post: A(t)
A("s_waitcnt vmcnt(0)\ns_barrier")
for kt in range(4):
    for sx in range(4): A(f"ds_read_b128 a[{STG+4*sx}:{STG+4*sx+3}], v{17+sx} offset:{KA + kt*1024}")
    for cb in range(4):
        for sx in range(4): A(mf(S(0, cb), STG + 4 * sx, qop(sx, cb), None if sx else "0", "v", "a", "v"))
    for cb in range(4): A(f"v_max3_f32 v{FLOOR[cb]}, v{FLOOR[cb]}, v{S(0,cb)}, v{S(0,cb)+1}\nv_max3_f32 v{FLOOR[cb]}, v{FLOOR[cb]}, v{S(0,cb)+2}, v{S(0,cb)+3}")
A("s_barrier\ns_sub_u32 s3, s3, 1\ns_cmp_lg_u32 s3, 0\ns_cbranch_scc1 L_redo_c")
for t in attn_setup:
    if t.split()[1] not in ("s36,", "s37,", "s38,"): A(t)
for ops in (k_ops(0), k_ops(1), v_ops(0)):
    for t in ops[0] + ops[1] + ops[2]: A(t)
A("s_waitcnt vmcnt(0)\ns_barrier")
for sx in range(4): A(f"ds_read_b128 a[{STG+sx*4}:{STG+sx*4+3}], v{17+sx} offset:{KA}")
A("s_waitcnt lgkmcnt(0)\ns_branch L_attn")
st.raw(f"""L_end:
    s_endpgm
L_codeend:
.section .rodata,"a"
.p2align 6
.amdhsa_kernel {NAME}_kernel
  .amdhsa_next_free_vgpr 512
  .amdhsa_next_free_sgpr 102
  .amdhsa_accum_offset 256
  .amdhsa_group_segment_fixed_size 0
  .amdhsa_kernarg_size 120
  .amdhsa_user_sgpr_count 2
  .amdhsa_user_sgpr_kernarg_segment_ptr 1
  .amdhsa_system_sgpr_workgroup_id_x 1
.end_amdhsa_kernel""")
def with_stubs(txt):
    import subprocess, tempfile
    lines = txt.split("\n")
    isins = lambda l: l.startswith("    ") and l.strip() and not l.strip().startswith((".", ";"))
    NS = 24
    tail = "".join(f"L_stub{k}:\n" for k in range(NS))
    with tempfile.TemporaryDirectory() as d:
        open(d + "/a.s", "w").write(txt.replace("L_codeend:", tail + "L_codeend:").replace("@", ""))
        subprocess.run(["clang", "-x", "assembler", "-target", "amdgcn-amd-amdhsa", "-mcpu=gfx950", "-c", d + "/a.s", "-o", d + "/a.o"], check=True)
        dis = subprocess.run(["llvm-objdump", "-d", "--mcpu=gfx950", d + "/a.o"], capture_output=True, text=True).stdout
    enc = [len(m.group(1).split()) * 4 for m in re.finditer(r"// [0-9A-F]+: ((?:[0-9A-F]{8} ?)+)", dis)]
    j = lines.index("L_join:"); n_after = sum(map(isins, lines[j:]))
    sizes = enc[len(enc) - n_after:]
    out = lines[:j + 1]; pos = 0; k = 1; i = 0; off = False
    for l in lines[j + 1:]:
        if isins(l):
            if pos >= k * 4096 and l.strip() != "s_endpgm" and not off:
                out += [f"L_stub{k}:", f"    s_cbranch_execz L_stub{k+4}"]; pos += 4; k += 1
            pos += sizes[i]; i += 1
            if l.strip() == "s_mov_b64 exec, 0": off = True
            if l.strip() == "s_mov_b64 exec, -1": off = False
        if l == "L_codeend:": out += [f"L_stub{q}:" for q in range(k, NS)] + ["    s_setpc_b64 s[100:101]"]
        out.append(re.sub(r"@(\d)", lambda m: str(k + int(m.group(1))), l))
    print("code after join:", pos, "stubs", k - 1)
    return "\n".join(out)
open(sys.argv[1], "w").write(with_stubs(st.text()) if OPT.get("warm", 1) else st.text())
print("waits", st.nwait, "nop states", st.nnop)
```

```python
import sys, os, re, struct
sys.path.insert(0, os.path.join(os.path.dirname(os.path.abspath(__file__)), "tools"))
from asmgen import *
NAME = "adaLN_cond__sliding_block_cached__mixer_channel_mlp__prompt"
OPT = dict(stamps=0, gx=2, nt_wq=0, nt_wo=0, nt_kv=0, nt_mod=1, nt_x=0, pf_w1=1, pf_w2=2, pnt=1, early=1, dbg=-1)
for a in sys.argv[2:]:
    k, v = a.split("="); OPT[k] = int(v)
def nt(k): return " nt" if OPT["nt_" + k] else ""

KA, KB, VA, VB, XR = 0, 16512, 32896, 49408, 65920
HIMG = KB
RING0, RINGSZ, UNIT = 82304, 16512, 4128
MISC = 148352
MODV = MISC
SILU = MISC + 8192
RED = MISC + 9216
LGO = MISC + 12800
LDS_BYTES = 163840
WS_MOD, WS_F2, WS_F3, WS_F1 = 0x1000, 0x20000, 0x40000, 0x100000
WS_Y, WS_X1, WS_H1, WS_PART = 0x200000, 0x400000, 0x600000, 0x1000000
WS_STAMP = 0xF000000
OOB = 0x10000000
WSO = OPT.get("wso", 0) << 20
SCALE = 1.4426950408889634 / (128 ** 0.5)
def f2u(x): return struct.unpack("<I", struct.pack("<f", x))[0]
SPIN = 1 << 18

st = Stream()
A = st.A
stamp_n = [0]; stamp_names = []
def stamp(name=""):
    if not OPT["stamps"]: return
    if OPT["stamps"] == 7:
        if not (name in ("start", "norm", "O", "f1st", "end") or name.startswith("u")): return
    elif name.startswith("u"): return
    if OPT["stamps"] == 5:
        if not (name in ("start", "Yin", "G1", "gelu", "G2a", "G2", "end") or name.startswith("m")) or name == "mod": return
    elif OPT["stamps"] == 6:
        if not (name in ("start", "O", "f1st", "_f2q", "f1ok", "ysent", "f2ok", "Yin", "end") or name.startswith("e")): return
    elif name[0] in "me" and name not in ("mod", "end"): return
    if OPT["stamps"] not in (4, 6) and name.startswith("_"): return
    if OPT["stamps"] == 4 and not (name in ("start", "x", "mod", "h", "Q", "end") or name.startswith("_")): return
    if OPT["stamps"] == 3 and not (name in ("start", "h", "Q", "end") or name.startswith("q")): return
    if OPT["stamps"] == 2 and name.startswith("q"): return
    if OPT["stamps"] == 2 and name in ("x", "mod", "f1st", "f1ok", "ysent", "f2ok", "Yin", "gelu", "G2a", "G2"): return
    n = stamp_n[0]; stamp_n[0] += 1; stamp_names.append(name)
    assert n < 26
    if n: st.add(f"s_mov_b32 s{64+n-1}, s90")
    st.add("s_memrealtime s[90:91]" if OPT.get("rt") else "s_memtime s[90:91]")
def stampF(name, g):
    return [F(("call", lambda: stamp(name)), g, g)] if OPT["stamps"] > 1 else []
def dummyI(t):
    i = I(t); i.wr = []; return i
def dummy(t): st.add(dummyI(t))
def dummyF(t, e, l, chain):
    f = F(t, e, l, chain); f.ins.wr = []; return f
def srd(base, ptr, size):
    A(f"s_mov_b32 s{base}, s{ptr}\ns_mov_b32 s{base+1}, s{ptr+1}\ns_mov_b32 s{base+2}, {size}\ns_mov_b32 s{base+3}, 0x20000")
def mf(d, a, b, c=None, dt="v", at="a", bt="a"):
    cs = f"{dt}[{d}:{d+3}]" if c is None else (c if isinstance(c, str) else f"{dt}[{c}:{c+3}]")
    return f"v_mfma_f32_16x16x32_bf16 {dt}[{d}:{d+3}], {at}[{a}:{a+3}], {bt}[{b}:{b+3}], {cs}"
STG = 192
def stg(u, tile, s): return STG + (u & 1) * 16 + tile * 8 + s * 4
def p16_reads(dst, off, addr="v10"):
    r = []
    for tile in range(2):
        for s in range(2):
            f, d = dst(tile, s)
            for hf in range(2): r.append(f"ds_read_b64_tr_b16 {f}[{d+2*hf}:{d+2*hf+1}], {addr} offset:{off + s*2064 + hf*256 + tile*8}")
    return r
def p8_reads(dst, off, addr="v9"):
    r = []
    for tp in range(2):
        for tile in range(2):
            f, d = dst(tp, tile)
            for hf in range(2): r.append(f"ds_read_b64_tr_b16 {f}[{d+2*hf}:{d+2*hf+1}], {addr} offset:{off + tp*512 + hf*256 + tile*8}")
    return r
def voffs16(stride):
    A(f"""
    v_lshrrev_b32 v2, 5, v1
    v_lshlrev_b32 v2, 4, v2
    v_bfe_u32 v3, v1, 2, 3
    v_add_u32 v2, v2, v3
    v_mul_u32_u24 v2, {stride}, v2
    v_and_b32 v3, 3, v1
    v_lshl_add_u32 v11, v3, 4, v2
    v_add_u32 v12, {8*stride-1032}, v11
    v_add_u32 v13, {32*stride-2064}, v11
    v_add_u32 v14, {40*stride-3096}, v11
    """)
def voffs8(stride):
    A(f"""
    v_bfe_u32 v2, v1, 2, 3
    v_mul_u32_u24 v2, {stride}, v2
    v_lshrrev_b32 v3, 5, v1
    v_lshl_add_u32 v2, v3, 6, v2
    v_and_b32 v3, 3, v1
    v_lshl_add_u32 v11, v3, 4, v2
    v_add_u32 v12, {8*stride-1032}, v11
    v_add_u32 v13, {16*stride-2064}, v11
    v_add_u32 v14, {24*stride-3096}, v11
    """)
def dma4(soff, fl=""): return [f"buffer_load_dwordx4 v{11+i}, s[36:39], {soff} offen offset:{i*1032}{fl} lds" for i in range(4)]
def chain_dma(Fl, g0, pre, dmas, tag, need, chain, late=3):
    if OPT.get("nodma") and tag[0] == "W": dmas = []
    for t in pre: Fl.append(F(t, g0 - 5, g0 + late, chain))
    for i, t in enumerate(dmas): Fl.append(F(t, g0 + i // 2, g0 + late + i, chain, tag=tag, need=need if i == 0 else None))
def spread_dma(Fl, g0, pre, dmas, post, tag, need, step):
    if OPT.get("nodma"): dmas = []
    for t in pre: Fl.append(F(t, g0 - 3, g0, "dma"))
    for i, t in enumerate(dmas): Fl.append(F(t, g0 + i * step, g0 + i * step + 1, "dma", tag=tag, need=need if i == 0 else None))
    for t in post: Fl.append(F(t, g0, g0 + 3 * step + 2, "dma"))
class Capture:
    def __enter__(s):
        global A
        s.lines = []; s.old = A
        def cap(text): s.lines.extend(l.strip() for l in text.split("\n") if l.strip() and not l.strip().startswith(";"))
        A = cap; return s
    def __exit__(s, *a):
        global A
        A = s.old
    def fillers(s, e, l, chain, ren=True):
        out = []
        for t in s.lines:
            if ren: t = re.sub(r"\bs60\b", "s100", re.sub(r"\bs61\b", "s101", t))
            if t.split()[0] in ("s_cselect_b32", "s_addc_u32", "v_cndmask_b32"): out[-1] += "\n" + t
            else: out.append(t)
        n = len(out)
        return [F(t, e, e + (l - e) * (i + 1) // n, chain) for i, t in enumerate(out)]
def spin(label, load, cond):
    A(f"s_mov_b32 s3, {SPIN}")
    st.raw(f"{label}:")
    for t in load: st.add(t)
    A("s_sub_u32 s3, s3, 1\ns_waitcnt vmcnt(0)")
    A(cond)
    A(f"s_cmp_eq_u32 s3, 0\ns_cbranch_scc1 {label}_x\ns_cbranch_vccnz {label}")
    st.raw(f"{label}_x:")

st.raw(f"""; adaLN + GQA window attention + channel MLP, one persistent launch, 256 workgroups (one per CU)
; @launch grid=(256,1,1) block=(256,1,1) lds={LDS_BYTES}
.amdgcn_target "amdgcn-amd-amdhsa--gfx950"
.text
.globl {NAME}_kernel
.p2align 8
.type {NAME}_kernel,@function
{NAME}_kernel:
L_start:""")
A("""
s_cmp_ge_u32 s2, 256
s_cbranch_scc1 L_end
s_load_dwordx16 s[4:19], s[0:1], 0
s_load_dwordx8 s[20:27], s[0:1], 64
s_load_dwordx4 s[28:31], s[0:1], 96
s_load_dwordx2 s[32:33], s[0:1], 112
""")
if OPT["stamps"]: A("s_memrealtime s[98:99]")
stamp("start")
GX = OPT["gx"]; lg = {1: 0, 2: 1, 4: 2}[GX]
A(f"""
v_and_b32 v1, 63, v0
v_lshrrev_b32 v2, 6, v0
s_and_b32 s96, s2, 7
s_lshr_b32 s97, s2, 3
v_readfirstlane_b32 s35, v2
s_and_b32 s56, s96, {8//GX - 1}
s_lshl_b32 s56, s56, {lg}
s_and_b32 s60, s97, {GX - 1}
s_add_u32 s56, s56, s60
s_lshr_b32 s57, s96, {3 - lg}
s_lshl_b32 s57, s57, {5 - lg}
s_lshr_b32 s61, s97, {lg}
s_add_u32 s57, s57, s61
s_lshl_b32 s60, s60, {3 - lg}
s_add_u32 s95, s57, s60
s_and_b32 s95, s95, {OPT.get("rotmask", 7)}
s_lshl_b32 s58, s96, 2
s_lshr_b32 s59, s97, 3
s_add_u32 s58, s58, s59
s_and_b32 s59, s97, 7
s_mul_i32 s63, s35, {RINGSZ}
s_add_u32 s63, s63, {RING0}
s_movk_i32 s101, 1023
v_lshlrev_b32 v16, 4, v1
v_lshrrev_b32 v2, 4, v1
v_and_b32 v5, 15, v1
v_mul_u32_u24 v3, 1032, v2
v_lshl_add_u32 v9, v5, 4, v3
v_add_u32 v9, s63, v9
v_and_b32 v3, 1, v2
v_mul_u32_u24 v3, 1032, v3
v_lshl_add_u32 v3, v5, 4, v3
v_lshrrev_b32 v4, 1, v2
v_lshl_add_u32 v10, v4, 9, v3
v_add_u32 v10, s63, v10
v_mul_u32_u24 v4, 2064, v4
v_add_u32 v21, v3, v4
v_add_u32 v21, {VA}, v21
s_lshl_b32 s60, s95, 7
v_lshl_add_u32 v3, v5, 4, s60
v_lshlrev_b32 v2, 10, v2
v_and_or_b32 v124, v3, s101, v2
v_add_u32 v3, 256, v3
v_and_or_b32 v125, v3, s101, v2
v_add_u32 v3, 256, v3
v_and_or_b32 v126, v3, s101, v2
v_add_u32 v3, 256, v3
v_and_or_b32 v127, v3, s101, v2
s_getpc_b64 s[92:93]
L_pc:
s_sub_u32 s92, s92, L_pc-L_start
s_subb_u32 s93, s93, 0
s_lshl_b32 s3, s97, 12
v_lshl_add_u32 v4, v0, 4, s3
v_min_u32 v4, L_codeend-L_start-16, v4
global_load_dwordx4 a[248:251], v4, s[92:93]
s_waitcnt lgkmcnt(0)
s_add_u32 s32, s32, {WSO}
s_addc_u32 s33, s33, 0
s_load_dword s34, s[32:33], 0
""")
st.vm = []
stamp("_karg")
srd(48, 32, 0x10000000 - WSO)
KS = OPT.get("ks", 4)
WS_MOD2 = WS_MOD + 4096 * KS
def silu_to_lds(creg, t=2):
    A(re.sub(r"\bv([2-5])\b", lambda m: f"v{int(m.group(1)) - 2 + t}", f"""
    v_lshlrev_b32 v2, 16, v{creg}
    v_and_b32 v3, 0xffff0000, v{creg}
    v_mul_f32 v4, {f2u(-1.4426950408889634)}, v2
    v_mul_f32 v5, {f2u(-1.4426950408889634)}, v3
    v_exp_f32 v4, v4
    v_exp_f32 v5, v5
    v_add_f32 v4, 1.0, v4
    v_add_f32 v5, 1.0, v5
    v_rcp_f32 v4, v4
    v_rcp_f32 v5, v5
    v_mul_f32 v2, v2, v4
    v_mul_f32 v3, v3, v5
    v_cvt_pk_bf16_f32 v2, v2, v3
    v_lshlrev_b32 v3, 2, v0
    v_add_u32 v3, {SILU}, v3
    ds_write_b32 v3, v2
    """))
def publish(ntile, src, lab, dst, tag="s34", tmp=2, stmp="s60"):
    W = 64 * ntile
    A(f"""
    v_lshrrev_b32 v{tmp}, 4, v1
    v_lshlrev_b32 v{tmp}, 5, v{tmp}
    s_mul_i32 {stmp}, s35, {W}
    s_add_u32 {stmp}, {stmp}, {RED}
    v_add_u32 v{tmp}, {stmp}, v{tmp}
    s_mov_b32 exec_lo, 0x00010001
    s_mov_b32 exec_hi, 0x00010001
    """)
    for t in range(ntile): A(f"ds_write_b128 v{tmp}, v[{src+4*t}:{src+4*t+3}] offset:{(t>>1)*128 + (t&1)*16}")
    A(f"""
    s_mov_b64 exec, -1
    s_waitcnt lgkmcnt(0)
    s_barrier
    s_cmp_lg_u32 s35, 0
    s_cbranch_scc1 {lab}
    v_lshlrev_b32 v{tmp}, 3, v1
    v_add_u32 v{tmp+1}, {RED}, v{tmp}
    s_mov_b32 exec_lo, {(1 << (8*ntile)) - 1}
    s_mov_b32 exec_hi, 0
    """)
    for i in range(4): A(f"ds_read_b64 v[{src+2*i}:{src+2*i+1}], v{tmp+1} offset:{i*W}")
    A(f"""
    v_pk_add_f32 v[{src}:{src+1}], v[{src}:{src+1}], v[{src+2}:{src+3}]
    v_pk_add_f32 v[{src+4}:{src+5}], v[{src+4}:{src+5}], v[{src+6}:{src+7}]
    v_pk_add_f32 v[{src}:{src+1}], v[{src}:{src+1}], v[{src+4}:{src+5}]
    v_cvt_pk_bf16_f32 v{src}, v{src}, v{src+1}
    v_mov_b32 v{src+1}, {tag}
    buffer_store_dwordx2 v[{src}:{src+1}], v{tmp}, s[48:51], {dst} offen sc1
    s_mov_b64 exec, -1
    """)
def xr(i, jj): return 32 + (jj * 4 + i) * 4
def x_loads(n0, n1):
    for n in range(n0, n1):
        jj, i = n >> 2, n & 3
        st.add(f"buffer_load_dwordx4 v[{xr(i,jj)}:{xr(i,jj)+3}], v{124+jj}, s[52:55], s{[62, 0, 1, 100][i]} offen{nt('x')}")
def x_setup():
    srd(52, 4, 2048 * 1024)
    A("s_lshl_b32 s62, s57, 16\ns_lshl_b32 s61, s35, 14\ns_add_u32 s62, s62, s61\ns_add_u32 s0, s62, 4096\ns_add_u32 s1, s62, 8192\ns_add_u32 s100, s62, 12288")
NSL = 4 // KS
PX = OPT.get("px", 2)
A(f"s_cmp_lt_u32 s96, {PX}\ns_cselect_b32 s14, s97, 99\ns_cmp_lt_u32 s14, {16*KS//PX}\ns_cbranch_scc1 L_prod")
x_setup(); x_loads(0, 8)
A("s_branch L_join")
join_vm = list(st.vm)
A("L_prod:"); st.vm = []; st.hist = []; st.smem = True; st.smem_wr = {("s", 34)}
srd(52, 24, 1024); srd(36, 26, 512 * 6144)
A("v_lshlrev_b32 v2, 2, v0\nbuffer_load_dword v31, v2, s[52:55], 0 offen")
voffs8(6144)
A(f"""
s_mul_i32 s14, s97, {PX}
s_add_u32 s14, s14, s96
s_lshr_b32 s15, s14, 4
s_and_b32 s14, s14, 15
s_lshl_b32 s3, s15, 2
s_add_u32 s3, s3, s35
s_mul_i32 s60, s3, {32*NSL*6144}
s_lshl_b32 s61, s14, 7
s_add_u32 s60, s60, s61
""")
for k in range(NSL):
    A(f"s_add_u32 m0, s63, {(2+k)*UNIT}")
    for t in dma4("s60", nt("mod")): st.add(t, tag="wm")
    if k + 1 < NSL: A(f"s_add_u32 s60, s60, {32*6144}")
x_setup(); x_loads(0, 4)
silu_to_lds(31)
A(f"""
v_lshrrev_b32 v2, 4, v1
v_lshlrev_b32 v2, 4, v2
s_mul_i32 s60, s3, {64*NSL}
s_add_u32 s60, s60, {SILU}
v_add_u32 v2, s60, v2
s_waitcnt lgkmcnt(0)
s_barrier
""")
for k in range(NSL): A(f"ds_read_b128 a[{4*k}:{4*k+3}], v2 offset:{k*64}")
st.need("wm")
for k in range(NSL):
    for t in p8_reads(lambda tp, tile: ("a", 16 + k * 16 + tp * 8 + tile * 4), (2 + k) * UNIT): A(t)
x_loads(4, 6)
for k in range(NSL):
    for t in range(4): A(mf(96 + 4 * t, 16 + k * 16 + 4 * t, 4 * k, "0" if k == 0 else None))
x_loads(6, 8)
A(f"s_lshl_b32 s3, s15, 12\ns_lshl_b32 s14, s14, 8\ns_add_u32 s3, s3, s14\ns_add_u32 s3, s3, {WS_MOD}\ns_mul_i32 s15, s34, 0x9E3779B1\ns_add_u32 s15, s15, 0x7F4A7C15")
publish(4, 96, "L_prod_x", "s3", "s15")
A("L_prod_x:"); st.lg = []; st.hist = []
A("s_branch L_join"); st.raw(".p2align 12")
A("L_join:"); st.vm = join_vm; st.lg = []; st.hist = []; st.smem = True; st.smem_wr = {("s", 34)}
st.newphase(); stamp("_prod")

QST = 8192
A(f"""
s_lshl_b32 s60, s56, 10
s_lshl_b32 s61, s35, 8
s_add_u32 s60, s60, s61
s_add_u32 s36, s10, s60
s_addc_u32 s37, s11, 0
s_sub_u32 s38, {512*8192}, s60
s_mov_b32 s39, 0x20000
s_bfe_u32 s15, s57, 0x10003
s_lshl_b32 s14, s15, 7
s_lshl_b32 s92, s95, 19
s_add_u32 s94, s92, s14
s_xor_b32 s14, s14, 128
s_add_u32 s92, s92, s14
s_lshl_b32 s15, s15, 1
s_mul_i32 s93, s35, {UNIT}
s_sub_u32 s60, s93, s63
v_add_u32 v31, s60, v9
""")
voffs8(QST)
def wq_pre(n):
    r = n % 5; b = "s92" if n & 2 else "s94"
    p = [f"s_add_u32 m0, s63, {r*UNIT}" if r < 4 else "s_mov_b32 m0, s93", f"s_add_u32 s60, {b}, {(n&1)*32*QST}"]
    return p, ([f"s_add_u32 {b}, {b}, {64*QST}", f"s_and_b32 {b}, {b}, {512*QST-1}"] if n & 1 else [])
def wq_ops(n):
    p, q = wq_pre(n); return [(t, None) for t in p] + [(t, ("W", n)) for t in dma4("s60", nt("wq"))] + [(t, None) for t in q]
A(f"""
v_lshrrev_b32 v2, 4, v1
v_and_b32 v5, 15, v1
v_bfe_u32 v6, v1, 2, 2
v_lshlrev_b32 v6, 1, v6
s_movk_i32 s60, 0x78
v_lshrrev_b32 v6, v6, s60
v_and_b32 v6, 3, v6
v_xor_b32 v7, v6, v2
v_lshlrev_b32 v7, 4, v7
v_lshl_add_u32 v15, v5, 6, v7
v_add_u32 v15, {HIMG}, v15
v_bfe_u32 v4, v1, 2, 2
v_lshl_add_u32 v7, v4, 12, v7
v_and_b32 v4, 3, v1
v_lshl_add_u32 v7, v4, 8, v7
""")
A("v_xor_b32 v4, s15, v4")
for s in range(4): A(f"v_xor_b32 v5, {s}, v4\nv_lshl_add_u32 v{17+s}, v5, 6, v7")
A(f"""
s_lshl_b32 s60, s35, 1
s_lshr_b32 s60, 0x78, s60
s_and_b32 s60, s60, 3
v_lshlrev_b32 v3, 2, v2
v_xor_b32 v3, s60, v3
v_and_b32 v4, 15, v1
v_xor_b32 v3, v3, v4
v_lshlrev_b32 v3, 4, v3
v_lshl_add_u32 v3, v2, 8, v3
s_lshl_b32 s60, s35, 10
v_add_u32 v22, s60, v3
v_add_u32 v23, 3072, v22
v_add_u32 v24, 6144, v22
v_add_u32 v25, 9216, v22
v_bfe_u32 v3, v1, 2, 2
v_lshlrev_b32 v3, 8, v3
v_lshl_add_u32 v3, v2, 6, v3
v_and_b32 v4, 3, v1
v_lshl_add_u32 v3, v4, 4, v3
s_lshl_b32 s60, s35, 12
s_add_u32 s60, s60, 64
v_add_u32 v26, s60, v3
v_subrev_u32 v27, 8, v26
v_subrev_u32 v28, 16, v26
v_subrev_u32 v29, 24, v26
v_bfe_u32 v3, v1, 2, 1
v_xor_b32 v3, v3, v2
v_lshlrev_b32 v3, 6, v3
v_bfe_u32 v4, v1, 2, 2
v_lshl_add_u32 v3, v4, 12, v3
s_lshl_b32 s60, s35, 10
s_add_u32 s60, s60, {HIMG}
v_add_u32 v3, s60, v3
v_and_b32 v4, 3, v1
v_lshl_add_u32 v120, v4, 4, v3
v_xor_b32 v121, 32, v120
v_xor_b32 v122, 48, v120
v_xor_b32 v123, 16, v120
v_subrev_u32 v8, {HIMG}, v15
v_xor_b32 v8, 64, v8
v_add_u32 v8, {HIMG}, v8
""")
A(f"""
s_lshl_b32 s60, s56, 19
s_add_u32 s60, s60, {1536*256}
s_add_u32 s40, s6, s60
s_addc_u32 s41, s7, 0
s_mov_b32 s42, {512*256}
s_mov_b32 s43, 0x20000
s_sub_u32 s60, s60, 64
s_add_u32 s44, s8, s60
s_addc_u32 s45, s9, 0
s_mov_b32 s46, {512*256+64}
s_mov_b32 s47, 0x20000
s_lshl_b32 s6, s35, 12
s_mul_i32 s7, s35, 4128
s_add_u32 s7, s7, {VA}
s_lshl_b32 s8, s95, 14
s_mov_b32 s9, s8
""")
def k_ops(c): return ([f"s_add_u32 m0, s6, {KA if c%2==0 else KB}"], [f"buffer_load_dwordx4 v{22+i}, s[40:43], s8 offen offset:{i*1024}{nt('kv')} lds" for i in range(4)], ["s_add_u32 s8, s8, 16384", "s_and_b32 s8, s8, 0x1ffff"])
def v_ops(c): return ([f"s_add_u32 m0, s7, {(c&1)*16512}"], [f"buffer_load_dwordx4 v{26+i}, s[44:47], s9 offen offset:{i*1032}{nt('kv')} lds" for i in range(4)], ["s_add_u32 s9, s9, 16384", "s_and_b32 s9, s9, 0x1ffff"])
def kv_chain(Fl, g0, ops, tag, step=0):
    if step: spread_dma(Fl, g0, ops[0], ops[1], ops[2], tag, None, step); return
    chain_dma(Fl, g0, ops[0], ops[1], tag, None, "dma")
    for t in ops[2]: Fl.append(F(t, g0 + 4, g0 + 10, "dma"))
x_loads(8, 16)
def warm(lab):
    if not OPT.get("warm", 1): return
    t = "    s_mov_b64 exec, 0\n"
    for w in range(4):
        if w < 3: t += f"    s_cmp_eq_u32 s35, {w}\n    s_cbranch_scc0 {lab}_{w}\n"
        t += f"    s_call_b64 s[100:101], L_stub@{w}\n"
        if w < 3: t += f"    s_branch {lab}_ret\n{lab}_{w}:\n"
    st.raw(t + f"{lab}_ret:\n    s_mov_b64 exec, -1")
A("s_waitcnt vmcnt(12)")
warm("L_w1")

for i in range(4): A(f"v_mov_b32 v{112+2*i}, 0\nv_mov_b32 v{104+2*i}, 0")
A("v_mov_b32 v7, 0x3f803f80")
stamp("_issued")
def trickle(n=1):
    while pend and n:
        t, tag = pend.pop(0); st.add(t, tag=tag)
        if t.startswith("buffer") or t.startswith("global"): n -= 1
A(f"v_lshlrev_b32 v30, 4, v0\nv_add_u32 v30, {WS_MOD}, v30")
MC = [96, 100, 2 * 128 - 8, 2 * 128 - 4]
mchk = [f"buffer_load_dwordx4 a[{4*k}:{4*k+3}], v30, s[48:51], {['0', 's10', 's11', 's14'][k]} offen sc1" for k in range(KS)]
for k in range(1, KS): A(f"s_mov_b32 {['0', 's10', 's11', 's14'][k]}, {4096*k}")
for n in range(16):
    jj, i = n >> 2, n & 3
    for e in range(4): A(f"v_dot2c_f32_bf16 v{112+2*i}, v{xr(i,jj)+e}, v7\nv_dot2c_f32_bf16 v{104+2*i}, v{xr(i,jj)+e}, v{xr(i,jj)+e}")
    if n == 0: stamp("_x0")
stamp("x")
RC = OPT.get("rc", -1); W0L = OPT.get("w0l", 0)
if RC < 0:
    for t in mchk: A(t)
pend = wq_ops(0) + wq_ops(1)
if not W0L: trickle(4)
for d in ("quad_perm:[1,0,3,2]", "quad_perm:[2,3,0,1]", "row_ror:4", "row_ror:8"):
    for i in range(4): A(f"v_add_f32_dpp v{112+2*i}, v{112+2*i}, v{112+2*i} {d} row_mask:0xf bank_mask:0xf\nv_add_f32_dpp v{104+2*i}, v{104+2*i}, v{104+2*i} {d} row_mask:0xf bank_mask:0xf")
for op in ["v_mul_f32 v{m}, {c512}, v{r}", "v_mul_f32 v{q}, {c512}, v{q}", "v_fma_f32 v{q}, -v{m}, v{m}, v{q}", "v_max_f32 v{q}, 0, v{q}", "v_add_f32 v{q}, {eps}, v{q}",
           "v_rsq_f32 v{r}, v{q}", "v_mul_f32_e64 v{q}, -v{m}, v{r}"]:
    for i in range(4): A(op.format(m=113 + 2 * i, r=112 + 2 * i, q=104 + 2 * i, c512=f2u(1 / 512), eps=f2u(1e-5)))
def normalise(r0, r1):
    for r in range(r0, r1):
        i = (r >> 2) & 3
        A(f"v_lshlrev_b32 v{128+2*r}, 16, v{32+r}\nv_and_b32 v{129+2*r}, 0xffff0000, v{32+r}")
        A(f"v_pk_fma_f32 v[{128+2*r}:{129+2*r}], v[{128+2*r}:{129+2*r}], v[{112+2*i}:{113+2*i}], v[{104+2*i}:{105+2*i}] op_sel_hi:[1,0,0]")
        if r == RC:
            for t in mchk: A(t)
            if W0L: trickle(4)
        if r >= OPT.get("rw1", 36) and r % 6 == 0: trickle()
RM = OPT.get("rm", 36)
def MB(r): return 32 + r
normalise(0, RM)
stamp("_p6")
A("s_mul_i32 s34, s34, 0x9E3779B1\ns_add_u32 s34, s34, 0x7F4A7C15")
def mod_fetch():
    return "\n".join(f"v_accvgpr_read_b32 v{MB(r)}, a{r}" for r in range(4 * KS)) + f"\nv_cmp_ne_u32 vcc, s34, v{MB(1)}\n" + "".join(f"v_cmp_ne_u32 s[100:101], s34, v{MB(3+2*i)}\ns_or_b64 vcc, vcc, s[100:101]\n" for i in range(2 * KS - 1))
A(mod_fetch()); A("s_cbranch_vccz L_pollmod_x")
keep = list(st.vm)
spin("L_pollmod", [f"s_sleep {OPT.get('slp', 4)}"] + mchk, mod_fetch())
st.vm = keep
stamp("mod")
A(f"""
s_cmp_ge_u32 s35, 2
s_cselect_b32 s60, 1.0, 0
s_cselect_b32 s3, 2048, 0
s_add_u32 s3, s3, {MODV}
s_mov_b32 s61, {f2u(SCALE)}
""")
for k in range(KS):
    A(f"""v_lshlrev_b32 v2, 16, v{MB(4*k)}
    v_and_b32 v3, 0xffff0000, v{MB(4*k)}
    v_lshlrev_b32 v4, 16, v{MB(4*k+2)}
    v_and_b32 v5, 0xffff0000, v{MB(4*k+2)}""")
    for e in range(4): A(f"v_add_f32 v{100+e}, {'s60' if k == 0 else 'v' + str(100+e)}, v{2+e}")
for e in range(4): A(f"v_mul_f32 v{100+e}, s61, v{100+e}")
A(f"""
s_lshl_b32 s60, s95, 8
v_lshlrev_b32 v2, 4, v0
v_subrev_u32 v2, s60, v2
v_and_b32 v2, 2047, v2
v_add_u32 v2, s3, v2
ds_write_b128 v2, v[100:103]
""")
normalise(RM, 64)
trickle(99)
def kv_prefetch():
    A("s_add_u32 s61, s8, s6")
    for i in range(4): dummy(f"buffer_load_dwordx4 a[244:247], v16, s[40:43], s61 offen offset:{i*1024}")
    if OPT.get("vpf", 0):
        A("s_add_u32 s61, s61, 64")
        for i in range(4): dummy(f"buffer_load_dwordx4 a[244:247], v16, s[44:47], s61 offen offset:{i*1024}")
if OPT.get("kpos", 0) == 0: kv_prefetch()
A(f"""
v_and_b32 v30, 15, v1
v_lshlrev_b32 v30, 5, v30
v_add_u32 v30, {MODV}, v30
s_waitcnt lgkmcnt(0)
s_barrier
""")
stamp("_bar1")
QS = 64
def qstg(U, tp, tile, s): return QS + (U & 1) * 32 + s * 16 + tp * 8 + tile * 4
def q_reads(n):
    r = n % 5
    return p8_reads(lambda tp, tile: ("a", qstg(n >> 1, tp, tile, n & 1)), r * UNIT if r < 4 else 0, "v9" if r < 4 else "v31")
def modreads(jj, b):
    for i in range(4): A(f"ds_read_b128 v[{b+4*i}:{b+4*i+3}], v30 offset:{(i>>1)*2048 + jj*512 + (i&1)*16}")
for jj in range(4): modreads(jj, 32 + 16 * jj)
pend = wq_ops(2) + wq_ops(3) + wq_ops(4)
for n in range(16):
    jj, i = n >> 2, n & 3; b = 32 + 16 * jj; t = 128 + 8 * n; d = 96 + 4 * (n & 3)
    for e in range(4): A(f"v_pk_fma_f32 v[{t+2*e}:{t+2*e+1}], v[{t+2*e}:{t+2*e+1}], v[{b+8+2*e}:{b+9+2*e}], v[{b+2*e}:{b+2*e+1}]")
    for e in range(4): A(f"v_cvt_pk_bf16_f32 v{d+e}, v{t+2*e}, v{t+2*e+1}")
    A(f"ds_write_b128 v{120+i}, v[{d}:{d+3}] offset:{jj*16384 + i*256}")
    if n >= OPT.get("jw", 8): trickle()
stamp("_jloop")
for n in range(2):
    for i, t in enumerate(q_reads(n)): st.add(t, tag=("R", n), need=[("W", n)] if i == 0 else None)
if OPT.get("kpos", 0) == 1: trickle(99); kv_prefetch()
stamp("_w01")
trickle(99)
stamp("_w34")
A("s_waitcnt lgkmcnt(0)\ns_barrier")
def hb(kk, s, cb): return (kk & 1) * 32 + (s * 4 + cb) * 4
for s in range(2):
    for cb in range(4): A(f"ds_read_b128 a[{hb(0,s,cb)}:{hb(0,s,cb)+3}], {'v8' if s else 'v15'} offset:{(s*4+cb)*1024}")
stamp("h")

def qacc(tp, tile, cb): return 128 + (tp * 8 + tile * 4 + cb) * 4
def qop(s, cb): return 32 + (s * 4 + cb) * 4
M = []; Fl = []; RES = {}; HBAR = 46
for U in range(16):
    kk, h2 = U >> 1, U & 1
    g0 = len(M)
    for tp in range(2):
        for tile in range(2):
            for cb in range(4):
                for s in range(2):
                    M.append(mf(qacc(2 * h2 + tp, tile, cb), qstg(U, tp, tile, s), hb(kk, s, cb), "0" if (kk == 0 and s == 0) else None))
    for s in range(2):
        n = 2 * U + 2 + s; g = g0 + 16 * s + (10 if n == 2 else 4 if n == 3 else 0)
        def refill(n, g, step):
            m = n + 5
            if m >= 32: return
            p, q = wq_pre(m)
            spread_dma(Fl, g, p, dma4("s60", nt("wq")), q, ("W", m), [("R", n)], step)
        if U == 0 and s == 0: refill(0, 3, 2); refill(1, 11, 2)
        if n < 32:
            for i, t in enumerate(q_reads(n)): Fl.append(F(t, g + i, g + i + 1, "rd", tag=("R", n), need=[("W", n)] if i == 0 else None))
            refill(n, g + 11, 4 if n > 4 else 2 if n == 2 else 3)
    RES[g0 + 31] = 1
    if U: Fl += stampF(f"q{U}", g0)
    if kk < 7:
        for i in range(4):
            n = 4 * h2 + i; s, cb = n >> 2, n & 3
            Fl.append(F(f"ds_read_b128 a[{hb(kk+1,s,cb)}:{hb(kk+1,s,cb)+3}], {'v8' if s else 'v15'} offset:{((kk+1)*8+n)*1024}", g0 + 8 + (i & 1) + 16 * (i >> 1), g0 + 12 + (i & 1) + 16 * (i >> 1), "hb", tag=("HB", kk + 1)))
    if kk == 7:
        for tp in range(2):
            T = 2 * h2 + tp - 1
            if T >= 0:
                for cb in range(4):
                    for e in range(4):
                        src = qacc(T, e >> 1, cb) + 2 * (e & 1)
                        Fl.append(F(f"v_cvt_pk_bf16_f32 v{qop(T,cb)+e}, v{src}, v{src+1}", g0 + 16 * tp + 2, g0 + 16 * tp + 15, "cv"))
        if h2 == 0:
            Fl.append(F(("barrier", [("HB", 7), ("R", 29)]), g0 + 1, g0 + 1, "dma"))
            kv_chain(Fl, g0 + 8, k_ops(0), ("K", 0))
            kv_chain(Fl, g0 + 24, k_ops(1), ("K", 1))
        else:
            kv_chain(Fl, g0 + 1, v_ops(0), ("V", 0))
            Fl.append(F(("barrier", [("K", 0)]), g0 + 15, g0 + 15, "rd"))
            for s in range(4): Fl.append(F(f"ds_read_b128 a[{STG+s*4}:{STG+s*4+3}], v{17+s} offset:{KA}", g0 + 16 + s, g0 + 22, "rd", tag=("R", "k00")))
LP0 = 2
def blk_addr(dst, src, add):
    A(f"""s_add_u32 s60, {src}, {add}
    s_and_b32 s60, s60, 3
    s_mul_i32 s61, s60, {KB}
    s_cmp_eq_u32 s60, 2
    s_cselect_b32 s61, {VA}, s61
    s_cmp_eq_u32 s60, 3
    s_cselect_b32 s61, {XR}, s61
    v_add_u32 v{dst}, s61, v16""")
FLOOR = [6, 7, 8, 15]
with Capture() as cp:
    voffs16(1024)
    A(f"""
s_lshl_b32 s60, s56, 19
s_lshl_b32 s61, s35, {OPT.get("wocol", 6)}
s_and_b32 s61, s61, {OPT.get("womask", 1023)}
s_add_u32 s60, s60, s61
s_add_u32 s36, s12, s60
s_addc_u32 s37, s13, 0
s_sub_u32 s38, {4096*1024}, s60
v_and_b32 v3, {3 if OPT.get("sparse1", 1) else 0}, v1
v_mov_b32 v2, 0x3f803f80
v_cmp_eq_u32 vcc, 0, v3
v_cndmask_b32 v2, 0, v2, vcc
v_accvgpr_write_b32 a240, v2
v_accvgpr_write_b32 a241, v2
v_accvgpr_write_b32 a242, v2
v_accvgpr_write_b32 a243, v2
s_and_b32 s14, s57, {OPT.get("rotmask", 7) & 3}
s_lshl_b32 s92, s14, 8
s_bfe_u32 s15, s57, 0x20002
s_and_b32 s15, s15, {OPT.get("rotmask", 7) & 3}
s_lshl_b32 s94, s15, 17
s_mul_i32 s93, s97, 57344
s_mul_i32 s60, s35, 14336
s_add_u32 s93, s93, s60
""")
    srd(52, 16, 512 * 3584)
    blk_addr(30, "s35", 0)
    for i in range(4): blk_addr(2 + i, "s15", i)
    A(f"""
s_sub_u32 s3, s96, {LP0}
s_lshl_b32 s13, s3, 5
s_add_u32 s13, s13, s97
s_lshl_b32 s60, s13, 6
s_mul_i32 s61, s35, {128*6144}
s_add_u32 s60, s60, s61
s_add_u32 s60, s60, 2048
s_cmp_lt_u32 s3, 2
s_cselect_b32 s10, s60, {OOB}
s_cselect_b32 s62, 0, {OOB}
s_mov_b32 s12, s2
s_cmp_lg_u32 s35, 0
s_cselect_b32 s11, {OOB}, 0
""")
    srd(0, 24, 1024)
attn_setup = list(cp.lines)
Fl += cp.fillers(412, 508, "su")
for t in [f"v_mov_b32 v{r}, 0xff800000" for r in FLOOR] + ["s_mov_b32 s95, 0", "v_lshrrev_b32 v31, 6, v0", "v_lshlrev_b32 v31, 2, v31", f"v_add_u32 v31, {LGO + 16}, v31"]: Fl.append(F(t, 470, 508, "su2"))
schedule(st, M, Fl, reserve=RES, verbose="Q")
for cb in range(4):
    for e in range(4):
        src = qacc(3, e >> 1, cb) + 2 * (e & 1)
        A(f"v_cvt_pk_bf16_f32 v{qop(3,cb)+e}, v{src}, v{src+1}")
st.newphase(); stamp("Q")
st.raw("L_attn:"); attn_entry = (list(st.vm), list(st.lg))
def wo_pre(u, m0):
    p = [m0, "s_add_u32 s60, s92, s94" + ("\ns_add_u32 s60, s60, 0x10000" if u & 4 else ""), "s_add_u32 s94, s94, 0x20000", "s_and_b32 s94, s94, 0x7ffff"]
    return p
def wo_chain(Fl, g, u, m0, need, late=3):
    p = wo_pre(u, m0)
    chain_dma(Fl, g, p[:2], dma4("s60", nt("wo")), ("W", u), need, "dma", late)
    post = p[2:] + (["s_add_u32 s92, s92, 256", "s_and_b32 s92, s92, 1023"] if (u & 7) == 7 else [])
    for t in post: Fl.append(F(t, g, g + late + 8, "dma"))

def S(kt, cb): return 96 + (kt * 4 + cb) * 4
def P(c, s, cb): return 160 + (c & 1) * 32 + (s * 4 + cb) * 4
def CI(cb): return 224 + 4 * cb
def oacc(tp, tile, cb): return (tp * 8 + tile * 4 + cb) * 4
def woreg(u, tile, s):
    o = tile * 8 + s * 4
    return ("a", 128 + u * 16 + o) if u < 4 else (("v", 128 + (u - 4) * 16 + o) if u < 6 else ("v", 192 + (u - 6) * 16 + o))
LS = 224
def RS(u): return (u + 2) & 3
units = [("QK", 0, k) for k in range(4)]
for c in range(7): units += [("QK", c + 1, k) for k in range(4)] + [("L", c, 0)] + [("PV", c, k) for k in range(4)]
units += [("L", 7, 0)] + [("PV", 7, k) for k in range(4)]
M = []; Fl = []; RES = {}; G = {}; buf = {}
staged = [u for u in units if u[0] != "L"]
for n, u in enumerate(staged): buf[u] = n
pos = 0
for un in units: G[un] = pos; pos += 8 if un[0] == "L" else 16
NATT = pos
def oop(dp, cb): return 32 + (dp * 4 + cb) * 4
pf = []
if OPT["pf_w1"]: pf += [("w1", i) for i in range(14)]
if OPT["pf_w2"]: pf += [("w2", i) for i in range(14 if OPT["pf_w2"] == 1 else 2)]
with Capture() as cp:
    A(f"""
v_lshlrev_b32 v252, 2, v0
buffer_load_dword v252, v252, s[0:3], s62 offen
v_lshrrev_b32 v248, 5, v1
v_lshlrev_b32 v248, 4, v248
v_bfe_u32 v249, v1, 2, 3
v_add_u32 v248, v248, v249
v_mul_u32_u24 v248, 6144, v248
v_and_b32 v249, 3, v1
v_lshl_add_u32 v248, v249, 4, v248
v_add_u32 v249, {8*6144-1032}, v248
v_add_u32 v250, {32*6144-2064}, v248
v_add_u32 v251, {40*6144-3096}, v248
s_mov_b32 s0, s26
s_mov_b32 s1, s27
s_mov_b32 s2, {512*6144}
s_mov_b32 m0, s63
""")
Fl += cp.fillers(3, 12, "dma")
for i in range(4): Fl.append(F(f"buffer_load_dwordx4 v{248+i}, s[0:3], s10 offen offset:{i*1032}{' nt' if OPT.get('nt_lp', 1) else ''} lds", 13 + 9 * i, 14 + 9 * i, "dma", tag="wm"))
with Capture() as cp:
    A(f"""
s_lshl_b32 s60, s57, 3
s_add_u32 s60, s60, s56
s_lshl_b32 s60, s60, 7
s_add_u32 s60, s60, {WS_F1}
s_lshl_b32 s61, s58, 3
s_add_u32 s61, s61, s59
s_lshl_b32 s61, s61, 7
s_add_u32 s61, s61, {WS_F2 - 128}
v_lshlrev_b32 v253, 2, v1
v_add_u32 v254, s60, v253
v_add_u32 v253, s61, v253
v_cmp_le_u32 vcc, 32, v1
v_cndmask_b32 v254, v254, v253, vcc
s_not_b32 s60, s34
v_mov_b32 v255, s60
""")
Fl += cp.fillers(G[("PV", 0, 0)], G[("PV", 1, 0)], "pw")
def pst(v, off=0): return f"buffer_store_dwordx4 a[248:251], {v}, s[48:51], s10 offen offset:{off} sc1"
psn = [f"v_accvgpr_write_b32 a{248+i}, -1" for i in range(4)] + ["s_lshl_b32 s10, s58, 3", "s_add_u32 s10, s10, s59", "s_lshl_b32 s10, s10, 3", "s_add_u32 s10, s10, s35",
       "s_mul_i32 s10, s10, 5120", f"s_add_u32 s10, s10, {WS_H1}"] + [pst("v16", i * 1024) for i in range(4)] + ["s_add_u32 s10, s10, 20480"] + [pst("v16", i * 1024) for i in range(4)]
psn += ["v_lshrrev_b32 v253, 5, v1", "v_lshlrev_b32 v253, 11, v253", "v_and_b32 v255, 31, v1", "v_lshl_add_u32 v253, v255, 4, v253"]
for n in (2, 3):
    psn += ["s_lshl_b32 s10, s57, 3", "s_add_u32 s10, s10, s56", "s_lshl_b32 s10, s10, 2", "s_add_u32 s10, s10, s35", "s_lshl_b32 s10, s10, 5", f"s_add_u32 s11, s14, {n}", "s_and_b32 s11, s11, 3",
            "s_add_u32 s10, s10, s11", "s_lshl_b32 s10, s10, 9", f"s_add_u32 s10, s10, {WS_PART}"]
    for i in range(4): psn += [pst("v253")] + (["s_add_u32 s10, s10, 4096"] if i < 3 else [])
for un in units:
    ty, c, k = un; g0 = len(M); assert g0 == G[un]
    if ty == "QK":
        b = STG + (buf[un] & 1) * 16
        for cb in range(4):
            for s in range(4):
                M.append(mf(S(k, cb), b + 4 * s, qop(s, cb), None if s else ("0" if (c == 0 and k < 2) else CI(cb)), "v", "a", "v"))
    elif ty == "L":
        for cb in range(4):
            for s in range(2): M.append(mf(LS + 4 * cb, 240, P(c, s, cb), "0" if (c == 0 and s == 0) else None, "a", "a", "v"))
    else:
        for tile in range(2):
            for cb in range(4):
                for s in range(2): M.append(mf(oacc(k, tile, cb), stg(buf[un], tile, s), P(c, s, cb), "0" if (c == 0 and s == 0) else None, "a", "a", "v"))
    if ty == "L": continue
    RES[g0 + 15] = 1
    bar = None
    if (ty, c, k) == ("QK", 0, 3): bar = 1
    if ty == "PV" and k == 3 and c < 7: bar = c + 2
    rg = g0
    if bar is not None:
        Fl.append(F(("barrier", [("R", un), ("V", bar - 1)] + ([("K", bar)] if bar <= 7 else [])), g0 + 1, g0 + 1, "rd")); rg = g0 + 2
        Fl += stampF(f"B{bar}", g0 + 2)
        VS = OPT.get("vs", 5); gk = g0 + 8
        if bar + 1 <= 7: kv_chain(Fl, gk, k_ops(bar + 1), ("K", bar + 1), VS); gk += 4 * VS
        if bar <= 7: kv_chain(Fl, gk, v_ops(bar), ("V", bar), VS); gk += 4 * VS
        plan = {**[{1: [("d", 0)], 2: [("d", 1)]}, {2: [("d", 0)], 3: [("d", 1)]}, {3: [("d", 0), ("d", 1)]}][OPT.get("wop", 1)], 4: [("r", 0), ("d", 2), ("d", 3)], 5: [("r", 1), ("r", 2), ("d", 4), ("d", 5)], 6: [("r", 3), ("d", 6)], 7: [("d", 7)]}.get(bar, [])
        gr = g0 + 20
        for kind, u in plan:
            if kind == "d":
                p = wo_pre(u, f"s_add_u32 m0, s63, {RS(u)*UNIT}")
                spread_dma(Fl, gk, p[:2], dma4("s60", nt("wo")), p[2:] + (["s_add_u32 s92, s92, 256", "s_and_b32 s92, s92, 1023"] if (u & 7) == 7 else []), ("W", u), [("RW", u - 4)] if u >= 4 else None, VS); gk += 4 * VS
            else:
                for i, t in enumerate(p16_reads(lambda tile, s: woreg(u, tile, s), RS(u) * UNIT)):
                    Fl.append(F(t, gr + 2 * i, gr + 6 + 2 * i, "wor", tag=("RW", u), need=[("W", u)] if i == 0 else None))
                gr += 16
        if bar <= 7:
            for n in range(int(str(OPT.get("pfp", 44044)).zfill(7)[bar - 1])):
                if not pf: break
                nm, i = pf.pop(0)
                if nm == "w2" and i == 0:
                    for t in ["s_mov_b32 s52, s20", "s_mov_b32 s53, s21"] + ((["s_sub_u32 s93, s93, 12288"] if OPT["pf_w1"] else []) if OPT["pf_w2"] == 1 else ["s_mul_i32 s93, s2, 7168", "s_lshl_b32 s60, s35, 11\ns_add_u32 s93, s93, s60"]): Fl.append(F(t, gk - 3, gk, "dma"))
                if i and i % 4 == 0: Fl.append(F("s_add_u32 s93, s93, 4096", gk - 3, gk, "dma"))
                Fl.append(dummyF(f"buffer_load_dwordx4 a[244:247], v16, s[52:55], s93 offen offset:{(i%4)*1024}", gk, gk + 2, "dma")); gk += VS
        for n in range(int(str(OPT.get("psp", 332233)).zfill(7)[bar - 1]) if bar <= 7 else 0):
            while True:
                t = psn.pop(0); stv = t.startswith("buffer")
                Fl.append(F(t, gk - (0 if stv else 4), gk + (2 if stv else 0), "dma", tag="psn" if stv else None))
                if stv: gk += OPT.get('ps', 5); break
    i = staged.index(un)
    if i + 1 < len(staged):
        nx = staged[i + 1]; nb = STG + (buf[nx] & 1) * 16
        if nx[0] == "QK":
            for s in range(4):
                Fl.append(F(f"ds_read_b128 a[{nb+4*s}:{nb+4*s+3}], v{17+s} offset:{(KA if nx[1]%2==0 else KB) + nx[2]*1024}", rg + s // 2, rg + 4 + s, "rd", tag=("R", nx)))
        else:
            i2 = 0
            for tile in range(2):
                for s in range(2):
                    for hf in range(2):
                        d = stg(buf[nx], tile, s) + 2 * hf
                        Fl.append(F(f"ds_read_b64_tr_b16 a[{d}:{d+1}], v21 offset:{(nx[1]&1)*16512 + (4*s+2*hf)*2064 + nx[2]*256 + tile*8}", rg + i2 // 2, rg + 1 + i2, "rd", tag=("R", nx))); i2 += 1
g1 = G[("QK", 0, 1)]
for cb in range(4):
    s0 = S(0, cb); t = 240 + 2 * cb; ch = ("mx", cb); e = g1 + max(0, 4 * cb - 8); l = g1 + 14 + 4 * cb
    for txt in [f"v_max3_f32 v{t}, v{s0}, v{s0+1}, v{s0+2}", f"v_max3_f32 v{t}, v{t}, v{s0+3}, v{FLOOR[cb]}", f"v_mov_b32 v{t+1}, v{t}",
                f"v_permlane16_swap_b32 v{t}, v{t+1}", f"v_max_f32 v{t}, v{t}, v{t+1}", f"v_mov_b32 v{t+1}, v{t}",
                f"v_permlane32_swap_b32 v{t}, v{t+1}", f"v_max_f32 v{t}, v{t}, v{t+1}"] + [f"v_sub_f32 v{CI(cb)+i}, 0, v{t}" for i in range(4)]:
        Fl.append(F(txt, e, l, ch))
for c in range(8):
    for kt in range(4):
        gq = G[("QK", c, kt)]
        for cb in range(4):
            e = gq + 4 * cb + 3 + 5
            l = (G[("QK", c + 1, kt)] + 4 * cb - 1) if c < 7 else G[("L", 7, 0)] - 2
            l = min(l, G[("L", c, 0)] - 2)
            ch = ("sm", kt, cb); s0 = S(kt, cb)
            if c == 0 and kt < 2:
                ch = ("mx", cb)
                for i in range(4): Fl.append(F(f"v_add_f32 v{s0+i}, v{CI(cb)}, v{s0+i}", e, l, ch))
            for i in range(4): Fl.append(F(f"v_exp_f32 v{s0+i}, v{s0+i}", e, l, ch))
            for i in range(2): Fl.append(F(f"v_cvt_pk_bf16_f32 v{P(c,kt>>1,cb)+2*(kt&1)+i}, v{s0+2*i}, v{s0+2*i+1}", e, l, ch))
gL = G[("L", 7, 0)]
for cb in range(4): Fl.append(F(f"v_accvgpr_read_b32 v{240+cb}, a{LS+4*cb}", gL + 12, gL + 20, "nrm"))
for cb in range(4): Fl.append(F(f"v_rcp_f32 v{244+2*cb}, v{240+cb}", gL + 12, gL + 24, "nrm"))
for t in ["v_add_f32 v252, v240, v241", "v_add_f32 v254, v242, v243", "v_add_f32 v252, v252, v254", f"v_cmp_nge_f32 vcc, {f2u(2.0**34)}, v252\ns_cmp_lg_u64 vcc, 0\ns_cselect_b32 s3, 1, 0",
          "v_mov_b32 v254, s3", "v_and_b32 v253, 3, v1", "v_lshlrev_b32 v253, 2, v253", f"v_add_u32 v253, {LGO + 16}, v253"]:
    Fl.append(F(t, gL + 14, gL + 34, "nrm"))
def norm_ops(dp, cb, pk):
    t = 160 + cb * 8; o = []
    for tile in range(2):
        for r in range(4): o.append(f"v_accvgpr_read_b32 v{t+4*tile+r}, a{oacc(dp,tile,cb)+r}")
    if pk: o += [f"v_pk_mul_f32 v[{t+2*r}:{t+2*r+1}], v[{t+2*r}:{t+2*r+1}], v[{244+2*cb}:{245+2*cb}] op_sel_hi:[1,0]" for r in range(4)]
    else: o += [f"v_mul_f32 v{t+r}, v{244+2*cb}, v{t+r}" for r in range(8)]
    d = 224 + cb * 4
    o += [f"v_cvt_pk_bf16_f32 v{d+e}, v{t+2*e}, v{t+2*e+1}" for e in range(4)]
    o.append(f"ds_write_b128 v30, v[{d}:{d+3}] offset:{(dp*4+cb)*1024}")
    return o
lpF = []; spread_dma(lpF, G[("PV", 0, 1)] + 4 - OPT.get("lpe", 40), [f"s_add_u32 m0, s63, {UNIT}", f"s_add_u32 s10, s10, {64*6144}"], [f"buffer_load_dwordx4 v{248+i}, s[0:3], s10 offen offset:{i*1032}{' nt' if OPT.get('nt_lp', 1) else ''} lds" for i in range(4)], ["s_mov_b32 s2, s12"], "wm", None, 5)
cut = min(f.order for f in Fl if f.chain == "dma" and f.e >= G[("PV", 0, 3)])
for i, f in enumerate(lpF): f.order = cut - 1 + (i + 1) / 100.0
Fl += lpF
def late_producer():
    A(f"s_sub_u32 s3, s96, {LP0}\ns_cmp_ge_u32 s3, 2\ns_cbranch_scc1 L_nolp")
    keep = (list(st.vm), list(st.lg), list(st.hist))
    silu_to_lds(252, 240)
    A(f"v_lshrrev_b32 v240, 4, v1\nv_lshlrev_b32 v240, 4, v240\ns_lshl_b32 s3, s35, 8\ns_add_u32 s3, s3, {SILU}\nv_add_u32 v240, s3, v240\ns_waitcnt lgkmcnt(0)\ns_barrier")
    for k in range(4): A(f"ds_read_b128 a[{128+4*k}:{131+4*k}], v240 offset:{k*64}")
    st.need("wm")
    for u in range(2):
        for t in p16_reads(lambda tile, s: ("a", 144 + u * 16 + tile * 8 + s * 4), u * UNIT): A(t)
    for k in range(4):
        for tile in range(2): A(mf(244 + 4 * tile, 144 + (k >> 1) * 16 + tile * 8 + (k & 1) * 4, 128 + 4 * k, "0" if k == 0 else None))
    A(f"s_lshl_b32 s13, s13, 7\ns_add_u32 s13, s13, {WS_MOD2}")
    publish(2, 244, "L_lp_x", "s13", tmp=240, stmp="s3")
    A("L_lp_x:\ns_waitcnt lgkmcnt(0)\ns_nop 7\nL_nolp:")
    st.vm, st.lg, st.hist = keep
Fl.append(F(("call", late_producer), G[("PV", 2, 3)] + 1, G[("PV", 2, 3)] + 1, "lp"))
Fl.append(F("buffer_store_dword v255, v254, s[48:51], s11 offen sc1", G[("PV", 1, 1)] + 9, G[("PV", 1, 1)] + 12, "pw"))
Fl.append(F(f"v_add_u32 v254, {WS_F3 - WS_F2}, v254", G[("PV", 1, 1)] + 12, G[("PV", 1, 2)] + 8, "pw"))
Fl.append(F("buffer_store_dword v255, v254, s[48:51], s11 offen sc1", G[("PV", 1, 2)] + 9, G[("PV", 1, 2)] + 12, "pw"))
NHID = 4
grp = [(dp, cb) for dp in range(4) for cb in range(4)]
for dp, cb in grp[:NHID]:
    for t in norm_ops(dp, cb, False): Fl.append(F(t, G[("PV", 7, dp)] + 16 + 3, NATT - 1, "nrm"))
for u in (4, 5):
    g = gL + 1 + (u - 4) * 16
    for i, t in enumerate(p16_reads(lambda tile, s: woreg(u, tile, s), RS(u) * UNIT)): Fl.append(F(t, g + i, g + 8 + i, "wor", tag=("RW", u), need=[("W", u)] if i == 0 else None))
E89 = OPT.get("e89", 1)
for u in (8, 9)[:2 * E89]:
    p = wo_pre(u, f"s_add_u32 m0, s63, {RS(u)*UNIT}"); spread_dma(Fl, gL + 22 + (u - 8) * 24, p[:2], dma4("s60", nt("wo")), p[2:], ("W", u), [("RW", u - 4)], 6)
assert not psn and not pf
schedule(st, M, Fl, reserve=RES, verbose="attn", mem2=("rd", "wor"), minback=OPT.get("minback", 10), pairfirst=lambda g: G[("QK", 7, 0)] - OPT.get("pfa", -1000) <= g < gL)
stamp("attn")
A("ds_write_b32 v31, v254")
for u in (6, 7):
    for i, t in enumerate(p16_reads(lambda tile, s: woreg(u, tile, s), RS(u) * UNIT)): st.add(t, tag=("RW", u), need=[("W", u)] if i == 0 else None)
for n, (dp, cb) in enumerate(grp[NHID:8]):
    for t in norm_ops(dp, cb, True): st.add(t, tag="ow" if t.startswith("ds_write") else None)

def oB(i, cb): return ("v", 32 + ((i - 4) * 4 + cb) * 4) if 4 <= i < 8 else ("a", ((i if i < 4 else i - 4) * 4 + cb) * 4)
def pacc(i, tile, cb): return 96 + (i & 1) * 32 + (tile * 4 + cb) * 4
def oB_read(ks, cb):
    f, r = oB(ks, cb); return f"ds_read_b128 {f}[{r}:{r+3}], v{2 + ((ks>>1)&3)} offset:{(((ks>>3)*2+(ks&1))*4+cb)*1024}"
with Capture() as osu:
    A(f"""
s_mul_i32 s6, s35, {UNIT}
s_add_u32 s6, s6, {VB}
s_sub_u32 s60, s6, s63
v_add_u32 v20, s60, v10
s_mul_i32 s7, s35, {2*UNIT}
s_sub_u32 s60, s7, s63
v_add_u32 v21, s60, v10
s_mul_i32 s62, s35, {UNIT}
s_add_u32 s62, s62, {8*UNIT}
s_cmp_eq_u32 s35, 3
s_cselect_b32 s62, {MISC+8192}, s62
s_sub_u32 s60, s62, s63
v_add_u32 v15, s60, v10
v_and_b32 v6, 15, v1
v_lshrrev_b32 v7, 1, v6
v_and_b32 v6, 1, v1
v_lshrrev_b32 v8, 4, v1
v_lshlrev_b32 v31, 11, v7
v_lshl_add_u32 v31, v6, 4, v31
v_lshl_add_u32 v31, v8, 5, v31
v_lshrrev_b32 v7, 3, v1
v_and_b32 v8, 7, v1
v_lshlrev_b32 v23, 7, v8
v_and_b32 v7, 1, v7
v_mul_u32_u24 v7, {WS_F1 - WS_F2}, v7
v_add_u32 v23, v23, v7
v_lshlrev_b32 v19, 16, v8
v_mov_b32 v7, {OOB}
v_cmp_le_u32 vcc, 8, v1
v_cndmask_b32 v19, v19, v7, vcc
v_and_b32 v24, 31, v1
v_lshlrev_b32 v24, 4, v24
s_lshl_b32 s60, s57, 3
s_add_u32 s60, s60, s56
s_lshl_b32 s60, s60, 7
s_add_u32 s60, s60, {WS_F1}
s_lshl_b32 s61, s58, 3
s_add_u32 s61, s61, s59
s_lshl_b32 s61, s61, 7
s_add_u32 s61, s61, {WS_F2 - 128}
v_lshlrev_b32 v8, 2, v1
v_add_u32 v22, s60, v8
v_add_u32 v8, s61, v8
v_cmp_le_u32 vcc, 32, v1
v_cndmask_b32 v22, v22, v8, vcc
v_lshrrev_b32 v8, 5, v1
v_lshl_add_u32 v24, v8, 16, v24
v_mov_b32 v25, s34
; s93 = partial store base, s8 = its running column offset; s9 = own flag line (wave 0) ; s0 = flag check base; s1 = read base; s12 = running read column
s_lshl_b32 s61, s57, 3
s_add_u32 s61, s61, s56
s_lshl_b32 s93, s61, 16
s_lshl_b32 s60, s35, 7
s_add_u32 s93, s93, s60
s_add_u32 s93, s93, {WS_PART}
s_lshl_b32 s8, s14, 9
s_cmp_lg_u32 s35, 0
s_cselect_b32 s9, {OOB}, 0
s_lshl_b32 s0, s58, 10
s_add_u32 s0, s0, {WS_F2}
s_lshl_b32 s1, s58, 19
s_lshl_b32 s60, s59, 13
s_add_u32 s1, s1, s60
s_lshl_b32 s60, s35, 11
s_add_u32 s1, s1, s60
s_add_u32 s1, s1, {WS_PART}
s_and_b32 s12, s58, {OPT.get("rotmask", 7) & 3}
s_lshl_b32 s12, s12, 9
s_mov_b32 s15, 0
""")
    A(f"""
v_lshrrev_b32 v6, 5, v1
s_and_b32 s60, s58, {OPT.get("rotmask", 7) & 3}
v_add_u32 v6, s60, v6
v_add_u32 v7, 2, v6
v_and_b32 v6, 3, v6
v_and_b32 v7, 3, v7
v_and_b32 v8, 30, v1
v_lshlrev_b32 v8, 3, v8
v_lshl_add_u32 v6, v6, 8, v8
v_lshl_add_u32 v7, v7, 8, v8
v_lshlrev_b32 v240, 1, v6
v_lshlrev_b32 v241, 1, v7
v_add_u32 v242, {MODV}, v240
v_add_u32 v243, {MODV}, v241
v_and_b32 v241, 3, v1
v_lshlrev_b32 v241, 2, v241
v_add_u32 v241, {LGO}, v241
v_not_b32 v240, v25
ds_write_b32 v241, v240
v_mov_b32 v241, {LGO}
v_and_b32 v8, 1, v1
v_lshl_add_u32 v6, v8, 10, v6
v_lshl_add_u32 v7, v8, 10, v7
v_lshlrev_b32 v8, 4, v0
v_add_u32 v8, {WS_MOD2}, v8
s_lshl_b32 s10, s58, 16
s_lshl_b32 s60, s59, 13
s_add_u32 s10, s10, s60
s_lshl_b32 s60, s35, 11
s_add_u32 s10, s10, s60
""")
    srd(52, 4, 2048 * 1024)
    A("s_movk_i32 s11, 4096")
st.need("ow", "psn"); A("s_barrier")
A("ds_read_b32 v252, v253")
for ks in range(2):
    for cb in range(4): A(oB_read(ks, cb))
st.newphase(); stamp("norm")
def slot_m0(r): return f"s_add_u32 m0, s63, {r*UNIT}" if r < 4 else {4: "s_mov_b32 m0, s6", 5: "s_mov_b32 m0, s7", 6: f"s_add_u32 m0, s7, {UNIT}", 7: "s_mov_b32 m0, s62"}[r]
def slot_rd(r): return (r * UNIT, "v10") if r < 4 else {4: (0, "v20"), 5: (0, "v21"), 6: (UNIT, "v21"), 7: (0, "v15")}[r]
def part_cvt(n, cb): return [f"v_cvt_pk_bf16_f32 v{224+4*cb+k}, v{pacc(n,k>>1,cb)+2*(k&1)}, v{pacc(n,k>>1,cb)+2*(k&1)+1}" for k in range(4)] + ([f"v_min_u32 v{224+4*cb}, -2, v{224+4*cb}"] if n >= 2 else [])
FLAG = "buffer_store_dword v25, v22, s[48:51], s9 offen sc1"
def pread(n, soff): return [f"buffer_load_dwordx4 v[{160+16*n+4*gp}:{163+16*n+4*gp}], v24, s[48:51], {soff[gp]} offen sc1{' nt' if OPT.get('pnt') else ''}" for gp in range(4)]
M = []; Fl = []; RES = {}
slot = {u: (RS(u) if (u & 7) < 4 else u & 7) for u in range(8, 32)}
ld = [(10, slot[10], 1, None), (11, slot[11], 17, None), (12, 4, 33, None), (13, 5, 4 * 16 + 11, None), (14, 6, 5 * 16 + 11, None), (15, 7, 6 * 16 + 11, None)] + [(u, slot[u], (u - 9) * 16 + 11, u - 8) for u in range(16, 32)]
for u in range(32):
    n, kk = u >> 3, u & 7; g0 = len(M)
    for tile in range(2):
        for cb in range(4):
            for s in range(2):
                f, r = oB(2 * kk + s, cb)
                fa, ra = woreg(u, tile, s) if u < 8 else ("a", stg(u, tile, s))
                M.append(mf(pacc(n, tile, cb), ra, r, "0" if (kk == 0 and s == 0) else None, "v", fa, f))
    if 8 <= u + 1 < 32:
        off, ad = slot_rd(slot[u + 1])
        for i, t in enumerate(p16_reads(lambda tile, s: ("a", stg(u + 1, tile, s)), off, ad)):
            Fl.append(F(t, g0 + i, g0 + i + 1, "rd", tag=("R", u + 1), need=[("W", u + 1)] if i == 0 else None))
    RES[g0 + 15] = 1
Fl.append(F("v_cmp_lt_u32 vcc, s95, v252\ns_cbranch_vccnz L_redo", 2, 2, "gd"))
GW = OPT.get("gow", 40)
for i, (dp, cb) in enumerate(grp[8:]):
    o = norm_ops(dp, cb, True); g = i * (GW - 4) // 8
    Fl.append(F("\n".join(o[:-1]), g, g, "nrm")); Fl.append(F(o[-1], g + 1, g + 1, "nrm", tag="ow2"))
Fl.append(F(("barrier", ["ow2"]), GW, GW, "ob"))
i = 0
for ks in range(2, 16):
    for cb in range(4):
        e = i if ks < 8 else max(GW + 1 + i - 24, {14: 48, 15: 64}.get(ks, 0) + cb)
        f = F(oB_read(ks, cb), e, e + 1, "ob", tag="OB"); i += 1
        if ks < 8: f.order -= 1000
        Fl.append(f)
GX_ = GW + 38
Fl += osu.fillers(GW - 8, 118, "su")
if E89: ld = [(10, slot[10], 1, None), (11, slot[11], 21, None), (12, 4, GW + 4, None)] + [(13 + k, 5 + k, GX_ + 2 + 14 * k, None) for k in range(3)] + ld[6:]
else: ld = [(u, slot[u], GW - 6 + 12 * (u - 8), None) for u in range(8, 16)] + ld[6:]
for u, r, g, nd in ld:
    if u == 13: Fl.append(F(("barrier", ["OB"]), GX_, GX_, "dma"))
    p = wo_pre(u, slot_m0(r))
    spread_dma(Fl, g, p[:2], dma4("s60", nt("wo")), p[2:] + (["s_add_u32 s92, s92, 256", "s_and_b32 s92, s92, 1023"] if (u & 7) == 7 else []), ("W", u), [("R", nd)] if nd is not None else None, 5 if g < GW else 4 if (u > 15 or E89) else 3)
for n in range(3):
    g = (8 * n + 8) * 16
    Fl.append(F("s_add_u32 s61, s93, s8", g + 2, g + 8, "po"))
    SS = OPT.get("ss", 4)
    for cb in range(4):
        for t in part_cvt(n, cb): Fl.append(F(t, g + 2, g + 9 + SS * cb, "po"))
        if not OPT.get("nopart"): Fl.append(F(f"buffer_store_dwordx4 v[{224+4*cb}:{227+4*cb}], v31, s[48:51], s61 offen{'' if OPT.get('plainst') else ' sc1'}", g + 9 + SS * cb, g + 10 + SS * cb, "po", tag=("part", n)))
        Fl.append(F("s_add_u32 s61, s61, 16384" if cb < 3 else "s_add_u32 s8, s8, 512", g + 9, g + 12 + SS * cb, "po"))
    Fl.append(F("s_and_b32 s8, s8, 2047", g + 20, g + 14 + 3 * SS, "po"))
    gf = g + OPT.get("gf", 6 * 16 + 9)
    if n != 1: continue
    Fl.append(F(("barrier", [("part", n)]), gf, gf, "po"))
    Fl.append(F(FLAG, gf + 1, gf + 1, "po"))
Fl.append(F("buffer_load_dword v240, v23, s[48:51], s0 offen sc1", 30 * 16 + 8, 30 * 16 + 12, "po"))
for i, t in enumerate(["buffer_load_dwordx4 v[244:247], v6, s[52:55], s10 offen", "buffer_load_dwordx4 v[248:251], v7, s[52:55], s10 offen",
                       "buffer_load_dwordx4 v[252:255], v8, s[48:51], 0 offen sc1", "buffer_load_dwordx4 v[26:29], v8, s[48:51], s11 offen sc1"]):
    Fl.append(F(t, OPT.get("gsm", 24 * 16 + 30) + 16 * i, OPT.get("gsm", 24 * 16 + 30) + 4 + 16 * i, "sm"))
g = 23 * 16 + 12
w1s = ["s_min_u32 s62, s59, 6", "s_lshl_b32 s62, s62, 9", "s_lshl_b32 s60, s35, 7", "s_add_u32 s62, s62, s60", "s_add_u32 s36, s16, s62\ns_addc_u32 s37, s17, 0", f"s_sub_u32 s38, {512*3584}, s62", "s_lshl_b32 s14, s58, 1", f"s_and_b32 s14, s14, {6 if OPT.get('crot', 1) else 0}", "s_add_u32 s14, s14, s59", "s_and_b32 s92, s14, 7", f"s_mul_i32 s92, s92, {64*3584}",
       "v_bfe_u32 v2, v1, 2, 3", "v_mul_u32_u24 v2, 3584, v2", "v_lshrrev_b32 v3, 5, v1", "v_lshl_add_u32 v2, v3, 6, v2", "v_and_b32 v3, 3, v1", "v_lshl_add_u32 v11, v3, 4, v2",
       f"v_add_u32 v12, {8*3584-1032}, v11", f"v_add_u32 v13, {16*3584-2064}, v11", f"v_add_u32 v14, {24*3584-3096}, v11"]
for t in w1s: Fl.append(F(t, g, g + 14, "dma"))
NW0 = OPT.get('nw0', 7)
def w1_pre(): return ["s_mov_b32 s60, s92", f"s_add_u32 s92, s92, {32*3584}", f"s_cmp_eq_u32 s92, {512*3584}\ns_cselect_b32 s92, 0, s92"]
for k in range(NW0):
    p = w1_pre(); spread_dma(Fl, 24 * 16 + 12 + 16 * k - (k // 2) * 3, [slot_m0(slot[24 + k])] + p[:1], dma4("s60"), p[1:], ("W1", k), [("R", 24 + k)], 3)
for u in (8, 16, 24): Fl += stampF(f"O{u}", u * 16)
for u in (16, 20, 22, 23, 24, 25, 26, 27, 28, 29, 30, 31): Fl += stampF(f"u{u}", u * 16)
Fl += stampF("u32", 511)
schedule(st, M, Fl, reserve=RES, verbose="O")
for cb in range(4):
    for t in part_cvt(3, cb): A(t)
A("s_add_u32 s61, s93, s8")
for cb in range(4):
    st.add(f"buffer_store_dwordx4 v[{224+4*cb}:{227+4*cb}], v31, s[48:51], s61 offen sc1", tag=("part", 3))
    if cb < 3: A("s_add_u32 s61, s61, 16384")
stamp("O")

def w1reg(half, s, tile): return ((half * 16 + s) * 2 + tile) * 4
def w2reg(ks, tp, tile):
    o = tp * 8 + tile * 4
    if ks < 4: return ("v", 160 + ks * 16 + o)
    if ks < 9: return ("a", (ks - 4) * 16 + o)
    if ks < 13: return ("a", 192 + (ks - 9) * 16 + o)
    return ("v", 208 + o)
KS2 = [(p, 0) for p in range(7)] + [(p, 1) for p in range(7)]
class WS:
    nd = NW0; nr = 0; slot_of = {k: slot[24 + k] for k in range(NW0)}; last = {slot[24 + k]: k for k in range(NW0)}
def w_dma(n, slots):
    for _ in range(n):
        u = WS.nd; WS.nd += 1
        r = [x for x in slots if WS.last.get(x, -1) < WS.nr][0]
        A(slot_m0(r))
        if u == 16: w2_setup()
        A("\n".join(w1_pre()) if u < 16 else "\n".join(w2_pre(u - 16)))
        for i, t in enumerate(dma4("s60")): st.add(t, tag=("W1", u), need=[("R1", WS.last[r])] if (i == 0 and r in WS.last) else None)
        WS.slot_of[u] = r; WS.last[r] = u
def w_read(n):
    for _ in range(n):
        u = WS.nr; WS.nr += 1; r = WS.slot_of[u]
        if u < 16:
            off, ad = slot_rd(r); L = p8_reads(lambda tp, tile: ("a", w1reg(tp, u, tile)), off, "v9" if r < 4 else ad)
        else:
            L = p8_reads(lambda tp, tile: w2reg(u - 16, tp, tile), r * UNIT if r < 4 else 0, "v9" if r < 4 else "v20")
        for i, t in enumerate(L): st.add(t, tag=("R1", u), need=[("W1", u)] if i == 0 else None)
def w2_setup():
    voffs8(1024)
    A(f"""
    s_lshl_b32 s60, s35, 16
    s_lshl_b32 s61, s59, 7
    s_add_u32 s60, s60, s61
    s_add_u32 s36, s20, s60
    s_addc_u32 s37, s21, 0
    s_sub_u32 s38, {1792*1024}, s60
    s_sub_u32 s7, s14, 7
    s_cselect_b32 s7, s14, s7
    s_mul_i32 s8, s7, 40960
    s_lshl_b32 s7, s7, 18
    """)
def w2_pre(ks): return [f"s_add_u32 s60, s7, {(ks // 7) * 32768}", "s_add_u32 s7, s7, 0x40000", f"s_cmp_eq_u32 s7, {7 << 18}\ns_cselect_b32 s7, 0, s7"]
ALL7 = [0, 1, 2, 3, 4, 5, 6]
srd(52, 18, 3584)
A("v_lshrrev_b32 v2, 4, v1\nv_lshlrev_b32 v2, 4, v2\nbuffer_load_dwordx4 v[80:83], v2, s[52:55], s62 offen\nbuffer_load_dwordx4 v[84:87], v2, s[52:55], s62 offen offset:64")
A("v_subrev_u32 v2, v10, v9\nv_add_u32 v20, v2, v20\nv_add_u32 v21, v2, v21")
stamp("elp")
def wave0_wait(lab, word, test, probe, ex=None):
    keep = None
    A(f"{test}\ns_cmp_eq_u32 s35, 0\ns_cbranch_scc1 {lab}_0\ns_cbranch_vccz {lab}_e\ns_mov_b32 s3, {SPIN * 8}")
    keep = (list(st.vm), list(st.lg))
    A(f"{lab}_l:\nds_read_b32 v240, v241 offset:{4*word}\ns_sub_u32 s3, s3, 1\ns_waitcnt lgkmcnt(0)\nv_cmp_ne_u32 vcc, s34, v240\ns_cmp_eq_u32 s3, 0\ns_cbranch_scc1 {lab}_e\ns_cbranch_vccz {lab}_e\ns_sleep 1\ns_branch {lab}_l")
    A(f"{lab}_0:\ns_cbranch_vccz {lab}_x")
    if ex: A(f"s_mov_b64 exec, {ex}")
    spin(lab, probe, test)
    if ex: A("s_mov_b64 exec, -1")
    A(f"ds_write_b32 v241, v25 offset:{4*word}\n{lab}_e:")
    st.vm, st.lg = keep; st.hist = []
wave0_wait("L_rdy", 0, "v_cmp_ne_u32 vcc, s34, v240", ["v_mov_b32 v240, 0", "buffer_atomic_add v240, v23, s[48:51], s0 offen sc0 sc1"], "0xffff")
def pre_off(n): return f"s_add_u32 s13, s12, {n*512}\ns_and_b32 s13, s13, 2047\ns_add_u32 s13, s13, s1"
def pread_ops(n):
    o = pre_off(n).split("\n")
    for gp, t in enumerate(pread(n, ["s13"] * 4)): o += [t] + (["s_add_u32 s13, s13, 0x20000"] if gp < 3 else [])
    return o
def preads(n, tag=None):
    for t in pread_ops(n): st.add(t, tag=tag if t.startswith("buffer") else None)
def hint(off): return ["v_mov_b32 v240, 0", f"buffer_atomic_add v240, v19, s[48:51], s15 offen offset:{off} sc0 sc1"]
def wait_hint(lab, word, off):
    wave0_wait(lab, word, "v_cmp_eq_u32 vcc, -1, v240", hint(off))
m2 = ["buffer_load_dwordx4 v[252:255], v8, s[48:51], 0 offen sc1", "buffer_load_dwordx4 v[26:29], v8, s[48:51], s11 offen sc1"]
for n in range(2): preads(n)
A(pre_off(3).replace("s13", "s15"))
for t in hint(384): A(t)
w_read(NW0)
A("v_mov_b32 v2, 0x3f80\nv_mov_b32 v3, 0x3f800000")
for r in range(32): A(f"v_mov_b32 v{96+r}, 0")
def accq(n):
    for gp in range(4):
        for r in range(4): A(f"v_dot2c_f32_bf16 v{96+8*n+2*r}, v{160+16*n+4*gp+r}, v2\nv_dot2c_f32_bf16 v{97+8*n+2*r}, v{160+16*n+4*gp+r}, v3")
for r in range(8): A(f"v_lshlrev_b32 v{144+2*r}, 16, v{244+r}\nv_and_b32 v{145+2*r}, 0xffff0000, v{244+r}")
cond2 = """v_cmp_ne_u32 vcc, s34, v253
    v_cmp_ne_u32 s[100:101], s34, v255
    s_or_b64 vcc, vcc, s[100:101]
    v_cmp_ne_u32 s[100:101], s34, v27
    s_or_b64 vcc, vcc, s[100:101]
    v_cmp_ne_u32 s[100:101], s34, v29
    s_or_b64 vcc, vcc, s[100:101]"""
A(cond2); A("s_cbranch_vccz L_pm2_x")
keep = (list(st.vm), list(st.lg))
spin("L_pm2", ["s_sleep 8"] + m2, cond2)
st.vm, st.lg = keep
A(f"""
s_cmp_lt_u32 s35, 2
s_cselect_b32 s60, 1.0, 0
v_lshlrev_b32 v128, 16, v252
v_and_b32 v129, 0xffff0000, v252
v_lshlrev_b32 v130, 16, v254
v_and_b32 v131, 0xffff0000, v254
v_lshlrev_b32 v132, 16, v26
v_and_b32 v133, 0xffff0000, v26
v_lshlrev_b32 v134, 16, v28
v_and_b32 v135, 0xffff0000, v28
v_add_f32 v132, s60, v132
v_add_f32 v133, s60, v133
v_add_f32 v134, s60, v134
v_add_f32 v135, s60, v135
v_lshlrev_b32 v8, 4, v0
v_add_u32 v8, {MODV}, v8
ds_write_b128 v8, v[128:131]
ds_write_b128 v8, v[132:135] offset:4096
""")
OWN5 = [0, 1, 2, 3, 4]
A(f"""
s_mul_i32 s6, s35, {UNIT}
s_add_u32 s6, s6, 65536
s_sub_u32 s60, s6, s63
s_waitcnt lgkmcnt(0)
v_add_u32 v20, s60, v9
s_barrier
""")
stamp("epr")
w_dma(OPT.get("nA", 0), OWN5)
def modrd(dst, vec):
    for h in range(2):
        for q in range(2): A(f"ds_read_b128 v[{dst+8*h+4*q}:{dst+8*h+4*q+3}], v{242+h} offset:{vec*2048 + q*16}")
modrd(32, 0); modrd(48, 2); modrd(64, 1)
wait_hint("L_hp", 1, 384)
stamp("f1st")
preads(2, "p23"); preads(3, "p23")
w_dma(OPT.get("nB", 4), OWN5)
accq(0); accq(1)
chk23 = "v_max3_u32 v240, v192, v196, v200\nv_max3_u32 v240, v240, v204, v208\nv_max3_u32 v240, v240, v212, v216\nv_max_u32 v240, v240, v220\nv_cmp_eq_u32 vcc, -1, v240"
st.need("p23")
A(chk23); A("s_cbranch_vccz L_p23_x")
keep = (list(st.vm), list(st.lg)); spin("L_p23", ["s_sleep 2"] + pread_ops(2) + pread_ops(3), chk23); st.vm, st.lg = keep
stamp("f1ok")
accq(2); accq(3)
stamp("eacc3")
for h in range(2):
    for r in range(8): A(f"v_permlane32_swap_b32 v{96+16*h+r}, v{104+16*h+r}")
for h in range(2):
    for r in range(0, 8, 2): A(f"v_pk_add_f32 v[{128+8*h+r}:{129+8*h+r}], v[{96+16*h+r}:{97+16*h+r}], v[{104+16*h+r}:{105+16*h+r}]")
for r in range(8): A(f"v_pk_fma_f32 v[{128+2*r}:{129+2*r}], v[{128+2*r}:{129+2*r}], v[{32+2*r}:{33+2*r}], v[{144+2*r}:{145+2*r}]")
for r in range(8): A(f"v_cvt_pk_bf16_f32 v{144+r}, v{128+2*r}, v{129+2*r}")
def row_stats(x):
    A(f"v_pk_add_f32 v[96:97], v[{x}:{x+1}], v[{x+2}:{x+3}]\nv_pk_mul_f32 v[98:99], v[{x}:{x+1}], v[{x}:{x+1}]")
    A(f"v_pk_fma_f32 v[98:99], v[{x+2}:{x+3}], v[{x+2}:{x+3}], v[98:99]")
    for r in range(2, 8):
        A(f"v_pk_add_f32 v[96:97], v[96:97], v[{x+2*r}:{x+2*r+1}]\nv_pk_fma_f32 v[98:99], v[{x+2*r}:{x+2*r+1}], v[{x+2*r}:{x+2*r+1}], v[98:99]")
    A("v_add_f32 v96, v96, v97\nv_add_f32 v98, v98, v99")
    for d in ("quad_perm:[2,3,0,1]", "row_ror:4", "row_ror:8"):
        A(f"v_add_f32_dpp v96, v96, v96 {d} row_mask:0xf bank_mask:0xf\nv_add_f32_dpp v98, v98, v98 {d} row_mask:0xf bank_mask:0xf")
    for sw in ("16", "32"):
        A(f"v_mov_b32 v97, v96\nv_mov_b32 v99, v98\nv_permlane{sw}_swap_b32 v96, v97\nv_permlane{sw}_swap_b32 v98, v99\nv_add_f32 v96, v96, v97\nv_add_f32 v98, v98, v99")
    A(f"""v_mul_f32 v97, {f2u(1/512)}, v96
    v_mul_f32 v98, {f2u(1/512)}, v98
    v_fma_f32 v98, -v97, v97, v98
    v_max_f32 v98, 0, v98
    v_add_f32 v98, {f2u(1e-5)}, v98
    v_rsq_f32 v96, v98
    v_mul_f32_e64 v98, -v97, v96""")
row_stats(128)
for r in range(8): A(f"v_pk_fma_f32 v[{128+2*r}:{129+2*r}], v[{128+2*r}:{129+2*r}], v[96:97], v[98:99] op_sel_hi:[1,0,0]")
for r in range(8): A(f"v_pk_fma_f32 v[{128+2*r}:{129+2*r}], v[{128+2*r}:{129+2*r}], v[{48+2*r}:{49+2*r}], v[{64+2*r}:{65+2*r}]")
row_stats(128)
for r in range(8): A(f"v_pk_fma_f32 v[{128+2*r}:{129+2*r}], v[{128+2*r}:{129+2*r}], v[96:97], v[98:99] op_sel_hi:[1,0,0]")
for r in range(8): A(f"v_cvt_pk_bf16_f32 v{152+r}, v{128+2*r}, v{129+2*r}")
A(f"s_add_u32 s61, s10, {WS_Y}")
st.add("buffer_store_dwordx4 v[152:155], v6, s[48:51], s61 offen sc1", tag="y")
st.add("buffer_store_dwordx4 v[156:159], v7, s[48:51], s61 offen sc1", tag="y")
A(f"s_add_u32 s61, s10, {WS_X1}")
st.add("buffer_store_dwordx4 v[144:147], v6, s[48:51], s61 offen sc1", tag="y")
st.add("buffer_store_dwordx4 v[148:151], v7, s[48:51], s61 offen sc1", tag="y")
stamp("ysent")
w_read(WS.nd - WS.nr); w_dma(OPT.get("nD", 3), OWN5)
A(f"""
v_lshrrev_b32 v2, 4, v1
s_lshl_b32 s12, s58, 16
s_lshl_b32 s11, s35, 14
s_add_u32 s12, s12, s11
s_add_u32 s12, s12, {WS_Y}
s_lshl_b32 s61, s58, 3
s_add_u32 s61, s61, s59
s_lshl_b32 s9, s61, 7
s_add_u32 s9, s9, {WS_F3}
s_cmp_lg_u32 s35, 0
s_cselect_b32 s9, {OOB}, s9
s_lshl_b32 s0, s58, 2
s_add_u32 s0, s0, s35
s_lshl_b32 s0, s0, 8
s_add_u32 s0, s0, {WS_F3}
v_min_u32 v23, 2, v1
v_lshrrev_b32 v22, 1, v23
v_lshlrev_b32 v23, 7, v23
v_lshl_add_u32 v23, v22, 28, v23
v_and_b32 v22, 31, v1
v_lshlrev_b32 v22, 2, v22
v_lshrrev_b32 v4, 3, v1
v_lshrrev_b32 v5, 1, v4
v_xor_b32 v5, v5, v1
v_and_b32 v5, 7, v5
v_lshlrev_b32 v5, 4, v5
v_lshl_add_u32 v4, v4, 10, v5
v_xor_b32 v5, 64, v4
v_add_u32 v5, 8192, v5
v_bfe_u32 v15, v1, 1, 3
v_xor_b32 v15, v15, v2
v_lshlrev_b32 v15, 4, v15
v_and_b32 v17, 7, v1
v_lshl_add_u32 v15, v17, 7, v15
v_bfe_u32 v17, v1, 3, 1
v_lshl_add_u32 v15, v17, 13, v15
v_xor_b32 v17, 64, v15
""")
for r in range(8): A(f"v_lshlrev_b32 v{224+2*r}, 16, v{80+r}\nv_and_b32 v{225+2*r}, 0xffff0000, v{80+r}")
stamp("ewr")
st.need("y")
stamp("eyack")
A("s_barrier"); A("buffer_store_dword v25, v22, s[48:51], s9 offen sc1")
w_read(WS.nd - WS.nr)
def y_dma(poller):
    A("s_and_b32 s13, s14, 7\ns_lshl_b32 s13, s13, 7")
    for sp in range(8):
        A("s_add_u32 s61, s12, s13")
        for qh in range(2):
            A(f"s_add_u32 m0, s11, {qh*8192 + sp*1024}")
            st.add(f"buffer_load_dwordx4 v{4+qh}, s[48:51], s61 offen sc1 lds", tag=("Y", sp >> 2))
        if sp < 7: A("s_add_u32 s13, s13, 128\ns_and_b32 s13, s13, 1023")
probe = ["v_mov_b32 v240, 0", "buffer_atomic_add v240, v23, s[48:51], s0 offen sc0 sc1"]; ctest = "v_cmp_ne_u32 vcc, s34, v240\ns_and_b64 vcc, vcc, 3"
w_dma(OPT.get("nE", 2), OWN5)
for t in probe: A(t)
w_dma(OPT.get("nE2", 1), OWN5)
stamp("epre2")
A(ctest); A("s_cbranch_vccz L_pf2_x")
keep = (list(st.vm), list(st.lg)); spin("L_pf2", probe, ctest); st.vm, st.lg = keep
stamp("ebar2")
y_dma(False)
w_dma(OPT.get("nE3", 1), OWN5)
assert WS.nd > 16
stamp("f2ok")
if OPT.get("warm2", 1): warm("L_w2")
A(f"s_lshl_b32 s60, s2, 2\ns_add_u32 s60, s60, s35\ns_cmp_lg_u32 s60, 1\ns_cbranch_scc1 L_noep\nv_lshlrev_b32 v2, 7, v1\nv_add_u32 v2, {WS_F1}, v2\ns_mov_b32 s60, 0x2000\ns_mov_b32 s61, 0x4000\ns_mov_b32 s13, 0x6000")
keep = (list(st.vm), list(st.lg))
spin("L_ep", [f"buffer_load_dword v{40+i}, v2, s[48:51], {['0', 's60', 's61', 's13'][i]} offen sc1" for i in range(4)],
     "v_cmp_ne_u32 vcc, s34, v40\n" + "".join(f"v_cmp_ne_u32 s[100:101], s34, v{40+i}\ns_or_b64 vcc, vcc, s[100:101]\n" for i in range(1, 4)))
A("v_mov_b32 v2, 0\nbuffer_store_dword v25, v2, s[48:51], 0 offen sc1\nL_noep:"); st.vm, st.lg = keep
st.need(("Y", 0))
A("s_barrier")
stamp("Yin")

def yb(n, s, c2): return 96 + (n & 1) * 32 + (s * 2 + c2) * 4
def hacc(half, tile, cb): return 32 + half * 32 + (tile * 4 + cb) * 4
def yreads(n):
    cp, k4 = (n >> 2) & 1, n & 3
    return [f"ds_read_b128 v[{yb(n,s,c2)}:{yb(n,s,c2)+3}], v{15 if s % 2 == 0 else 17} offset:{(cp*2+c2)*16384 + (k4*2+(s>>1))*1024}" for c2 in range(2) for s in range(4)]
C1 = -2 * 0.7978845608028654 * 1.4426950408889634; C2 = C1 * 0.044715
def gelu_stages(q):
    half, cp = q >> 1, q & 1
    X = [hacc(half, t, cp * 2 + c2) + r for c2 in range(2) for t in range(2) for r in (0, 2)]; T = [240 + 2 * i for i in range(8)]
    pr = lambda r: f"v[{r}:{r+1}]"
    a = [f"v_pk_mul_f32 {pr(t)}, {pr(x)}, {pr(x)}" for x, t in zip(X, T)] + [f"v_pk_fma_f32 {pr(t)}, {pr(t)}, s[92:93], v[26:27] op_sel_hi:[1,0,0]" for t in T] + [f"v_pk_mul_f32 {pr(t)}, {pr(x)}, {pr(t)}" for x, t in zip(X, T)]
    b = [f"v_exp_f32 v{240+i}, v{240+i}" for i in range(16)]
    c = [f"v_pk_add_f32 {pr(t)}, {pr(t)}, 1.0 op_sel_hi:[1,0]" for t in T]
    d = [f"v_rcp_f32 v{240+i}, v{240+i}" for i in range(16)]
    e = [f"v_pk_mul_f32 {pr(x)}, {pr(x)}, {pr(t)}" for x, t in zip(X, T)]
    st_ = []
    for c2 in range(2):
        cb = cp * 2 + c2; dd = hacc(half, 0, cb)
        e += [f"v_cvt_pk_bf16_f32 v{dd+k}, v{X[4*c2+k]}, v{X[4*c2+k]+1}" for k in range(4)]
        e.append(f"v_min_u32 v{dd}, -2, v{dd}")
        st_.append(f"buffer_store_dwordx4 v[{dd}:{dd+3}], v16, s[48:51], s{93+1+half} offen offset:{cb*1024} sc1")
    return a, b, c, d, e, st_
def flag3(q): return f"buffer_store_dword v25, v22, s[48:51], s11 offen offset:{q*512} sc1"
for t in yreads(0): A(t)
late_w = []
assert WS.nr >= 12
while WS.nr < min(WS.nd, 20):
    u = WS.nr; WS.nr += 1; r = WS.slot_of[u]
    late_w += [(t, u) for t in p8_reads((lambda tp, tile: ("a", w1reg(tp, u, tile))) if u < 16 else (lambda tp, tile: w2reg(u - 16, tp, tile)), r * UNIT if r < 4 else 0, "v9" if r < 4 else "v20")]
A(f"""
s_mov_b32 s92, {f2u(C2)}
v_mov_b32 v26, {f2u(C1)}
s_lshl_b32 s60, s58, 3
s_add_u32 s60, s60, s59
s_mul_i32 s94, s60, 40960
s_mul_i32 s61, s35, 5120
s_add_u32 s94, s94, s61
s_add_u32 s94, s94, {WS_H1}
s_add_u32 s95, s94, 20480
s_mul_i32 s1, s58, 327680
s_add_u32 s1, s1, s61
s_add_u32 s1, s1, {WS_H1}
""")
NE = WS.nd - 16
W2S = {ks: ([0, 1, 2, 3, 4] * 3)[ks - NE] for ks in range(NE, 14)}
if NE == 5: W2S[4] = WS.slot_of[20]; assert W2S[4] == 4
def w2_m0(r): return f"s_add_u32 m0, s63, {r*UNIT}" if r < 4 else "s_mov_b32 m0, s6"
def w2_reads(ks): r = W2S[ks]; return p8_reads(lambda tp, tile: w2reg(ks, tp, tile), r * UNIT if r < 4 else 0, "v9" if r < 4 else "v20")
def hB(Q, k, c2):
    r = (k * 2 + c2) * 4
    if Q == 0: return ("a", 80 + r) if r < 48 else ("v", 224 + r - 48)
    if Q == 2: return ("v", 32 + r if r < 40 else (80 + r - 40 if r < 48 else 232 + r - 48))
    return [None, ("a", 136 + r), None, ("a", 80 + r)][Q]
def h_loads(Q, run="s8", tmp="s10"):
    o = []
    for k in range(7):
        o.append(f"s_add_u32 {tmp}, s1, {run}")
        for c2 in range(2):
            f, r = hB(Q, k, c2); o.append(f"buffer_load_dwordx4 {f}[{r}:{r+3}], v{16 + 2*(Q>>1)}, s[48:51], {tmp} offen offset:{((Q&1)*2+c2)*1024} sc1")
        o += [f"s_add_u32 {run}, {run}, 40960", f"s_cmp_eq_u32 {run}, {7 * 40960}\ns_cselect_b32 {run}, 0, {run}"]
    return o
def chk3(q): return f"buffer_load_dword v{28 + (q&1)}, v23, s[48:51], s0 offen offset:{q*512} sc1"
A("v_add_u32 v18, 20480, v16\ns_mov_b32 s9, s8")
M = []; Fl = []; RES = {}
for n in range(16):
    q = n >> 2; half, cp, k4 = q >> 1, q & 1, n & 3; g0 = len(M)
    for tile in range(2):
        for c2 in range(2):
            for s in range(4):
                M.append(mf(hacc(half, tile, cp * 2 + c2), w1reg(half, 4 * k4 + s, tile), yb(n, s, c2), (224 + half * 8 + tile * 4) if (k4 == 0 and s == 0) else None, "v", "a", "v"))
    if n == 0:
        nl = len(late_w) - 8 * OPT.get("nE3", 1)
        LW = OPT.get("lws", 3)
        for i, (t, u) in enumerate(late_w): Fl.append(F(t, i * LW // 4 if i < nl else max(17, nl * LW // 4) + (i - nl) // 2, i * LW // 4 if i < nl else max(17, nl * LW // 4) + (i - nl) // 2, "lw", tag=("LW", i >> 3), need=[("W1", u)] if i % 8 == 0 else None))
    if n == 1: Fl.append(F(("barrier", [("Y", 1)]), g0, g0, "rd"))
    if n < 15:
        for i, t in enumerate(yreads(n + 1)): Fl.append(F(t, g0 + i, g0 + i + 1, "rd"))
    RES[g0 + 15] = 1
nlw = len(late_w) // 8; lslot = [WS.slot_of[u] for u in range(WS.nr - nlw, WS.nr)]
free = [(r, None) for r in range(5) if r not in lslot and not (NE == 5 and r == 4)] + [(r, ("LW", i)) for i, r in enumerate(lslot)]
ev = []; gd = OPT.get("gw2", 14); rdg = {}; PACE = OPT.get("pace", 14)
afree = {4: 81, 5: 86, 6: 97, 7: 102, 8: 113}
if NE == 5: rdg[4] = afree[4]; ev.append((rdg[4], "r", 4))
for ks in range(NE, 14):
    if free: r, nd = free.pop(0)
    else: r, nd = W2S[ks - 5], ("R2", ks - 5); gd = max(gd, rdg[ks - 5] + 8)
    W2S[ks] = r; ev.append((gd, "d", ks, nd))
    if ks < 9: rdg[ks] = max(gd + 44, afree.get(ks, 0)); ev.append((rdg[ks], "r", ks))
    gd += PACE
for e in sorted(ev, key=lambda e: e[0]):
    g, kind, ks = e[:3]
    if kind == "d":
        p = w2_pre(ks); spread_dma(Fl, g, [w2_m0(W2S[ks])] + p[:1], dma4("s60"), p[1:], ("W2", ks), [e[3]], 3)
    else:
        for k, t in enumerate(w2_reads(ks)): Fl.append(F(t, g + k // 2, g + (k + 1) // 2, "w2r", tag=("R2", ks), need=[("W2", ks)] if k == 0 else None))
CAP = {}
for q in range(3):
    g = 64 * (q + 1) + 4; a_, b_, c_, d_, e_, st_ = gelu_stages(q)
    Fl.append(F("\n".join(a_), g, g, "gelu"))
    for i, t in enumerate(b_): Fl.append(F(t, g + 1 + i, g + 1 + i, "gelu"))
    Fl.append(F("\n".join(c_), g + 18, g + 18, "gelu"))
    for i, t in enumerate(d_): Fl.append(F(t, g + 19 + i, g + 19 + i, "gelu"))
    Fl.append(F("\n".join(e_), g + 36, g + 36, "gelu"))
    for i, t in enumerate(st_): Fl.append(F(t, g + 37 + 2 * i, g + 37 + 2 * i, "gelu", tag=("h1", q)))
    for k in range(g + 1, g + 35): CAP[k] = 3
def h_check(Q):
    o = []
    for k in range(7):
        for c2 in range(2):
            f, r = hB(Q, k, c2)
            if f == "a": o.append(f"v_accvgpr_read_b32 v29, a{r}"); r = 29
            o.append(f"v_mov_b32 v28, v{r}" if not (k or c2) else f"v_max_u32 v28, v28, v{r}")
    return o
def check_F(Q, e, l, chain): return [F(t, e, l, chain, need=[("H", Q)] if i == 0 else None) for i, t in enumerate(h_check(Q))]
def spread_loads(Fl, ops, g0, step, chain="hl", tag=None):
    g = g0
    for t in ops:
        Fl.append(F(t, g - 2, g + 1, chain, tag=tag if t.startswith("buffer") else None))
        if t.startswith("buffer"): g += step
    return g
def have(Q):
    c = "v_cmp_eq_u32 vcc, -1, v28"
    A(c); A(f"s_cbranch_vccz L_h{Q}_x")
    keep = (list(st.vm), list(st.lg), list(st.hist))
    spin(f"L_h{Q}", ["s_sleep 4"] + [x for t in h_loads(Q, "s9", "s13") for x in t.split("\n")], "\n".join(h_check(Q)) + "\n" + c)
    st.vm, st.lg, st.hist = keep
    stamp(f"mchk{Q}")
spread_loads(Fl, h_loads(0), OPT.get("gl0", 176), 4, "ck", ("H", 0))
hl = h_loads(1); n1a = 5 * OPT.get("n1a", 3)
spread_loads(Fl, hl[:n1a], 234, 4, "ck", ("H", 1)); hl = hl[n1a:]
Fl += check_F(0, 241, 255, "hc")
for q in range(1, 4): Fl += stampF(f"mq{q}", 64 * q)
if OPT.get("abl"):
    ab = OPT["abl"]
    def drop(f):
        if isinstance(f.ins, tuple): return False
        t = f.ins.txt
        return (ab & 1 and t.endswith("lds")) or (ab & 2 and t.startswith("buffer_store_dwordx4")) or (ab & 4 and f.chain == "ck" and "dwordx4" in t) or (ab & 8 and f.chain == "w2r")
    Fl = [f for f in Fl if not drop(f)]
schedule(st, M, Fl, reserve=RES, verbose="G1", mem2=("rd", "dma", "w2r", "ck", "lw"), minback=0, capx=CAP)
stamp("G1")
a_, b_, c_, d_, e_, st_ = gelu_stages(3)
for i, t in enumerate(a_ + b_ + c_ + d_ + e_):
    A(t)
    if i % 9 == 8:
        while hl:
            x = hl.pop(0)
            if x.startswith("buffer"): st.add(x, tag=("H", 1)); break
            A(x)
for t in st_: A(t)
stamp("mgelu3")
have(0)
stamp("gelu")

def facc(tp, tile, cb): return 96 + (tp * 8 + tile * 4 + cb) * 4
def g2(Q):
    r = []
    for ch in (([0, 1], [2, 3], [4, 5, 6]) if Q < 2 else ([0, 1, 2, 3, 4, 5, 6],)):
        for tp in range(2):
            for tile in range(2):
                for c2 in range(2):
                    for k in ch:
                        fa, ra = w2reg((Q >> 1) * 7 + k, tp, tile); fb, rb = hB(Q, k, c2)
                        r.append(mf(facc(tp, tile, (Q & 1) * 2 + c2), ra, rb, "0" if (Q < 2 and k == 0) else None, "v", fa, fb))
    return r
Fl = []
for i in range(4):
    for k, t in enumerate(w2_reads(9 + i)): Fl.append(F(t, 8 * i + k, 8 * i + k + 1, "rd", need=[("W2", 9 + i)] if k == 0 else None))
g = spread_loads(Fl, hl, 0, 3, tag=("H", 1))
spread_loads(Fl, h_loads(2), max(g, OPT.get("gl2", 10)), OPT.get("st2", 3), tag=("H", 2))
Fl += check_F(1, 41, 55, "hc")
schedule(st, g2(0), Fl)
stamp("mg20")
have(1)
with Capture() as cp:
    A(f"""
v_and_b32 v2, 15, v1
v_lshlrev_b32 v2, 10, v2
v_lshrrev_b32 v3, 4, v1
v_lshl_add_u32 v2, v3, 4, v2
v_lshlrev_b32 v4, 4, v3
s_lshl_b32 s92, s58, 16
s_lshl_b32 s60, s35, 14
s_add_u32 s92, s92, s60
s_lshl_b32 s95, s59, 7
s_add_u32 s92, s92, s95
s_add_u32 s60, s92, {WS_X1}
""")
    srd(52, 22, 1024)
Fl = cp.fillers(0, 30, "su", ren=False)
Fl += [F(t, 32 + k, 33 + k, "rd", need=[("W2", 13)] if k == 0 else None) for k, t in enumerate(w2_reads(13))]
spread_loads(Fl, h_loads(3), OPT.get("gl3", 8), OPT.get("st2", 3), tag=("H", 3))
Fl += check_F(2, 46, 55, "hc")
schedule(st, g2(1), Fl)
stamp("G2a")
have(2)
def fwrite(cb, tp, tile): return f"ds_write_b128 v5, v[{facc(tp,tile,cb)}:{facc(tp,tile,cb)+3}] offset:{cb*16384 + (tp*2+tile)*1024}"
def fw_F(Q, n0, n1, shift):
    return [F(fwrite((Q & 1) * 2 + (n & 1), n >> 2, (n >> 1) & 1), 7 * n + 6 + 8 + shift, 7 * n + 6 + 8 + shift, "fw") for n in range(n0, n1)]
Fl = []
spread_loads(Fl, ["buffer_load_dwordx4 v[240:243], v2, s[48:51], s60 offen sc1", "buffer_load_dwordx4 v[244:247], v2, s[48:51], s60 offen offset:64 sc1",
             "buffer_load_dwordx4 v[248:251], v4, s[52:55], s95 offen", "buffer_load_dwordx4 v[252:255], v4, s[52:55], s95 offen offset:64"], 2, 6)
Fl += check_F(3, 41, 55, "hc")
for t in ["s_lshl_b32 s3, s35, 12", "v_add_u32 v5, s3, v16"]: Fl.append(F(t, 0, 2, "fw"))
Fl.append(F(("barrier", []), 3, 3, "fw"))
Fl += fw_F(2, 0, 6, 0)
schedule(st, g2(2), Fl)
stamp("mg22")
have(3)
with Capture() as cp:
    A(f"""
s_lshl_b32 s60, s35, 14
v_add_u32 v6, s60, v16
v_lshlrev_b32 v7, 5, v3
s_lshl_b32 s60, s59, 8
s_add_u32 s60, s60, {MODV + 3*2048}
v_add_u32 v7, s60, v7
v_and_b32 v8, 7, v1
v_lshlrev_b32 v8, 10, v8
v_lshl_add_u32 v8, v3, 4, v8
v_bfe_u32 v9, v1, 3, 1
v_lshl_add_u32 v8, v9, 6, v8
""")
    for tp in range(2):
        for q in range(2): A(f"ds_read_b128 v[{64+tp*8+4*q}:{67+tp*8+4*q}], v7 offset:{tp*128+q*16}")
    for r in range(8): A(f"v_lshlrev_b32 v{32+2*r}, 16, v{240+r}\nv_and_b32 v{33+2*r}, 0xffff0000, v{240+r}\nv_lshlrev_b32 v{48+2*r}, 16, v{248+r}\nv_and_b32 v{49+2*r}, 0xffff0000, v{248+r}")
    srd(52, 28, 2048 * 1024)
Fl = fw_F(2, 6, 8, -56 + 2) + fw_F(3, 0, 6, 0) + cp.fillers(0, 50, "su", ren=False)
schedule(st, g2(3), Fl)
stamp("G2")
A(fwrite(2, 1, 1)); A(fwrite(3, 1, 1))
stamp("mwr")
A("s_waitcnt lgkmcnt(0)\ns_barrier")
stamp("mbar")
for src in range(4):
    for n in range(4): A(f"ds_read_b128 v[{96+src*16+n*4}:{99+src*16+n*4}], v6 offset:{src*4096+n*1024}")
for src in range(4):
    for r in range(8): A(f"v_pk_add_f32 v[{48+2*r}:{49+2*r}], v[{48+2*r}:{49+2*r}], v[{96+src*16+2*r}:{97+src*16+2*r}]")
for r in range(8): A(f"v_pk_fma_f32 v[{32+2*r}:{33+2*r}], v[{48+2*r}:{49+2*r}], v[{64+2*r}:{65+2*r}], v[{32+2*r}:{33+2*r}]")
OM = OPT.get("outm", 1); ofl = ["", " sc1", " nt", " sc1 nt", " sc0 sc1"][OPT.get("outf", 3)]
if OM == 0:
    for h in range(2):
        for r in range(4 * h, 4 * h + 4): A(f"v_cvt_pk_bf16_f32 v{80+r}, v{32+2*r}, v{33+2*r}")
        A(f"buffer_store_dwordx4 v[{80+4*h}:{83+4*h}], v2, s[52:55], s92 offen offset:{64*h}{ofl}")
else:
    for r in range(8): A(f"v_cvt_pk_bf16_f32 v{80+r}, v{32+2*r}, v{33+2*r}")
    for r in range(4): A(f"v_mov_b32 v{88+r}, v{80+r}")
    for r in range(4): A(f"v_mov_b32_dpp v{80+r}, v{84+r} row_ror:8 row_mask:0xf bank_mask:0xc")
    A(f"buffer_store_dwordx4 v[80:83], v8, s[52:55], s92 offen{ofl}")
    for r in range(4): A(f"v_mov_b32_dpp v{84+r}, v{88+r} row_ror:8 row_mask:0xf bank_mask:0x3")
    A(f"s_add_u32 s92, s92, 8192\nbuffer_store_dwordx4 v[84:87], v8, s[52:55], s92 offen{ofl}")
if OPT["stamps"]:
    stamp("end")
    A("s_memrealtime s[96:97]\ns_waitcnt lgkmcnt(0)\ns_cmp_lg_u32 s35, " + str(OPT.get("sw", 0)) + "\ns_cbranch_scc1 L_end\ns_mov_b64 exec, 1")
    A(f"s_lshl_b32 s60, s2, 9\ns_add_u32 s60, s60, {WS_STAMP - WSO}\nv_mov_b32 v6, 0")
    A(f"s_mov_b32 s{64+stamp_n[0]-1}, s90")
    lst = [64 + n for n in range(stamp_n[0])] + [98, 96, 15]
    A("v_mov_b32 v3, 0")
    for n, s in enumerate(lst): A(f"v_mov_b32 v2, s{s}\nbuffer_store_dwordx2 v[2:3], v6, s[48:51], s60 offen offset:{n*8}\ns_nop 1")
    if OPT["dbg"] >= 0:
        srd(52, 30, 256)
        A(f"s_cmp_lg_u32 s2, {OPT['dbg']}\ns_cbranch_scc1 L_end")
        sel = [i for i in range(1, stamp_n[0]) if stamp_names[i] not in ("norm", "gelu", "G2a")][:14]
        for n, k in enumerate(sel): A(f"s_sub_u32 s60, s{64+k}, s64\nv_mov_b32 v2, s60\nbuffer_store_dword v2, v6, s[52:55], 0 offen offset:{4+n*4}\ns_nop 1")
        A("s_sub_u32 s60, s96, s98\nv_mov_b32 v2, s60\nbuffer_store_dword v2, v6, s[52:55], 0 offen offset:60")
        print("dbg order:", [stamp_names[k] for k in sel], "realtime")
    open(os.path.splitext(sys.argv[1])[0] + ".names", "w").write(" ".join(stamp_names))
    print("stamps:", len(lst))
A("s_endpgm")
st.reset(); st.newphase()
A(f"""
L_redo:
s_waitcnt vmcnt(0) lgkmcnt(0)
s_nop 15
s_mov_b32 s95, 1
s_mov_b32 s3, 8
s_barrier
L_redo_c:
""")
pre, d, post = k_ops(0)
for t in pre + d + post: A(t)
A("s_waitcnt vmcnt(0)\ns_barrier")
for kt in range(4):
    for sx in range(4): A(f"ds_read_b128 a[{STG+4*sx}:{STG+4*sx+3}], v{17+sx} offset:{KA + kt*1024}")
    for cb in range(4):
        for sx in range(4): A(mf(S(0, cb), STG + 4 * sx, qop(sx, cb), None if sx else "0", "v", "a", "v"))
    for cb in range(4): A(f"v_max3_f32 v{FLOOR[cb]}, v{FLOOR[cb]}, v{S(0,cb)}, v{S(0,cb)+1}\nv_max3_f32 v{FLOOR[cb]}, v{FLOOR[cb]}, v{S(0,cb)+2}, v{S(0,cb)+3}")
A("s_barrier\ns_sub_u32 s3, s3, 1\ns_cmp_lg_u32 s3, 0\ns_cbranch_scc1 L_redo_c")
for t in attn_setup:
    if t.split()[1] not in ("s36,", "s37,", "s38,"): A(t)
for ops in (k_ops(0), k_ops(1), v_ops(0)):
    for t in ops[0] + ops[1] + ops[2]: A(t)
A("s_waitcnt vmcnt(0)\ns_barrier")
for sx in range(4): A(f"ds_read_b128 a[{STG+sx*4}:{STG+sx*4+3}], v{17+sx} offset:{KA}")
A("s_waitcnt lgkmcnt(0)\ns_branch L_attn")
st.raw(f"""L_end:
    s_endpgm
L_codeend:
.section .rodata,"a"
.p2align 6
.amdhsa_kernel {NAME}_kernel
  .amdhsa_next_free_vgpr 512
  .amdhsa_next_free_sgpr 102
  .amdhsa_accum_offset 256
  .amdhsa_group_segment_fixed_size 0
  .amdhsa_kernarg_size 120
  .amdhsa_user_sgpr_count 2
  .amdhsa_user_sgpr_kernarg_segment_ptr 1
  .amdhsa_system_sgpr_workgroup_id_x 1
.end_amdhsa_kernel""")
def with_stubs(txt):
    import subprocess, tempfile
    lines = txt.split("\n")
    isins = lambda l: l.startswith("    ") and l.strip() and not l.strip().startswith((".", ";"))
    NS = 24
    tail = "".join(f"L_stub{k}:\n" for k in range(NS))
    with tempfile.TemporaryDirectory() as d:
        open(d + "/a.s", "w").write(txt.replace("L_codeend:", tail + "L_codeend:").replace("@", ""))
        subprocess.run(["clang", "-x", "assembler", "-target", "amdgcn-amd-amdhsa", "-mcpu=gfx950", "-c", d + "/a.s", "-o", d + "/a.o"], check=True)
        dis = subprocess.run(["llvm-objdump", "-d", "--mcpu=gfx950", d + "/a.o"], capture_output=True, text=True).stdout
    enc = [len(m.group(1).split()) * 4 for m in re.finditer(r"// [0-9A-F]+: ((?:[0-9A-F]{8} ?)+)", dis)]
    j = lines.index("L_join:"); n_after = sum(map(isins, lines[j:]))
    sizes = enc[len(enc) - n_after:]
    out = lines[:j + 1]; pos = 0; k = 1; i = 0; off = False
    for l in lines[j + 1:]:
        if isins(l):
            if pos >= k * 4096 and l.strip() != "s_endpgm" and not off:
                out += [f"L_stub{k}:", f"    s_cbranch_execz L_stub{k+4}"]; pos += 4; k += 1
            pos += sizes[i]; i += 1
            if l.strip() == "s_mov_b64 exec, 0": off = True
            if l.strip() == "s_mov_b64 exec, -1": off = False
        if l == "L_codeend:": out += [f"L_stub{q}:" for q in range(k, NS)] + ["    s_setpc_b64 s[100:101]"]
        out.append(re.sub(r"@(\d)", lambda m: str(k + int(m.group(1))), l))
    print("code after join:", pos, "stubs", k - 1)
    return "\n".join(out)
open(sys.argv[1], "w").write(with_stubs(st.text()) if OPT.get("warm", 1) else st.text())
print("waits", st.nwait, "nop states", st.nnop)
```

```python
import sys, os, re, struct
sys.path.insert(0, os.path.join(os.path.dirname(os.path.abspath(__file__)), "tools"))
from asmgen import *
NAME = "adaLN_cond__sliding_block_cached__mixer_channel_mlp__prompt"
OPT = dict(stamps=0, gx=2, nt_wq=0, nt_wo=0, nt_kv=0, nt_mod=1, nt_x=0, pf_w1=1, pf_w2=2, pnt=1, early=1, dbg=-1)
for a in sys.argv[2:]:
    k, v = a.split("="); OPT[k] = int(v)
def nt(k): return " nt" if OPT["nt_" + k] else ""

KA, KB, VA, VB, XR = 0, 16512, 32896, 49408, 65920
HIMG = KB
RING0, RINGSZ, UNIT = 82304, 16512, 4128
MISC = 148352
MODV = MISC
SILU = MISC + 8192
RED = MISC + 9216
LGO = MISC + 12800
LDS_BYTES = 163840
WS_MOD, WS_F2, WS_F3, WS_F1 = 0x1000, 0x20000, 0x40000, 0x100000
WS_Y, WS_X1, WS_H1, WS_PART = 0x200000, 0x400000, 0x600000, 0x1000000
WS_STAMP = 0xF000000
OOB = 0x10000000
WSO = OPT.get("wso", 0) << 20
SCALE = 1.4426950408889634 / (128 ** 0.5)
def f2u(x): return struct.unpack("<I", struct.pack("<f", x))[0]
SPIN = 1 << 18

st = Stream()
A = st.A
stamp_n = [0]; stamp_names = []
def stamp(name=""):
    if not OPT["stamps"]: return
    if OPT["stamps"] == 7:
        if not (name in ("start", "norm", "O", "f1st", "end") or name.startswith("u")): return
    elif name.startswith("u"): return
    if OPT["stamps"] == 5:
        if not (name in ("start", "Yin", "G1", "gelu", "G2a", "G2", "end") or name.startswith("m")) or name == "mod": return
    elif OPT["stamps"] == 6:
        if not (name in ("start", "O", "f1st", "_f2q", "f1ok", "ysent", "f2ok", "Yin", "end") or name.startswith("e")): return
    elif name[0] in "me" and name not in ("mod", "end"): return
    if OPT["stamps"] not in (4, 6) and name.startswith("_"): return
    if OPT["stamps"] == 4 and not (name in ("start", "x", "mod", "h", "Q", "end") or name.startswith("_")): return
    if OPT["stamps"] == 3 and not (name in ("start", "h", "Q", "end") or name.startswith("q")): return
    if OPT["stamps"] == 2 and name.startswith("q"): return
    if OPT["stamps"] == 2 and name in ("x", "mod", "f1st", "f1ok", "ysent", "f2ok", "Yin", "gelu", "G2a", "G2"): return
    n = stamp_n[0]; stamp_n[0] += 1; stamp_names.append(name)
    assert n < 21
    if n: st.add(f"s_mov_b32 s{64+n-1}, s90")
    st.add("s_memrealtime s[90:91]" if OPT.get("rt") else "s_memtime s[90:91]")
def stampF(name, g):
    return [F(("call", lambda: stamp(name)), g, g)] if OPT["stamps"] > 1 else []
def dummyI(t):
    i = I(t); i.wr = []; return i
def dummy(t): st.add(dummyI(t))
def dummyF(t, e, l, chain):
    f = F(t, e, l, chain); f.ins.wr = []; return f
def srd(base, ptr, size):
    A(f"s_mov_b32 s{base}, s{ptr}\ns_mov_b32 s{base+1}, s{ptr+1}\ns_mov_b32 s{base+2}, {size}\ns_mov_b32 s{base+3}, 0x20000")
def mf(d, a, b, c=None, dt="v", at="a", bt="a"):
    cs = f"{dt}[{d}:{d+3}]" if c is None else (c if isinstance(c, str) else f"{dt}[{c}:{c+3}]")
    return f"v_mfma_f32_16x16x32_bf16 {dt}[{d}:{d+3}], {at}[{a}:{a+3}], {bt}[{b}:{b+3}], {cs}"
STG = 192
def stg(u, tile, s): return STG + (u & 1) * 16 + tile * 8 + s * 4
def p16_reads(dst, off, addr="v10"):
    r = []
    for tile in range(2):
        for s in range(2):
            f, d = dst(tile, s)
            for hf in range(2): r.append(f"ds_read_b64_tr_b16 {f}[{d+2*hf}:{d+2*hf+1}], {addr} offset:{off + s*2064 + hf*256 + tile*8}")
    return r
def p8_reads(dst, off, addr="v9"):
    r = []
    for tp in range(2):
        for tile in range(2):
            f, d = dst(tp, tile)
            for hf in range(2): r.append(f"ds_read_b64_tr_b16 {f}[{d+2*hf}:{d+2*hf+1}], {addr} offset:{off + tp*512 + hf*256 + tile*8}")
    return r
def voffs16(stride):
    A(f"""
    v_lshrrev_b32 v2, 5, v1
    v_lshlrev_b32 v2, 4, v2
    v_bfe_u32 v3, v1, 2, 3
    v_add_u32 v2, v2, v3
    v_mul_u32_u24 v2, {stride}, v2
    v_and_b32 v3, 3, v1
    v_lshl_add_u32 v11, v3, 4, v2
    v_add_u32 v12, {8*stride-1032}, v11
    v_add_u32 v13, {32*stride-2064}, v11
    v_add_u32 v14, {40*stride-3096}, v11
    """)
def voffs8(stride):
    A(f"""
    v_bfe_u32 v2, v1, 2, 3
    v_mul_u32_u24 v2, {stride}, v2
    v_lshrrev_b32 v3, 5, v1
    v_lshl_add_u32 v2, v3, 6, v2
    v_and_b32 v3, 3, v1
    v_lshl_add_u32 v11, v3, 4, v2
    v_add_u32 v12, {8*stride-1032}, v11
    v_add_u32 v13, {16*stride-2064}, v11
    v_add_u32 v14, {24*stride-3096}, v11
    """)
def dma4(soff, fl=""): return [f"buffer_load_dwordx4 v{11+i}, s[36:39], {soff} offen offset:{i*1032}{fl} lds" for i in range(4)]
def chain_dma(Fl, g0, pre, dmas, tag, need, chain, late=3):
    if OPT.get("nodma") and tag[0] == "W": dmas = []
    for t in pre: Fl.append(F(t, g0 - 5, g0 + late, chain))
    for i, t in enumerate(dmas): Fl.append(F(t, g0 + i // 2, g0 + late + i, chain, tag=tag, need=need if i == 0 else None))
def spread_dma(Fl, g0, pre, dmas, post, tag, need, step):
    if OPT.get("nodma"): dmas = []
    for t in pre: Fl.append(F(t, g0 - 3, g0, "dma"))
    for i, t in enumerate(dmas): Fl.append(F(t, g0 + i * step, g0 + i * step + 1, "dma", tag=tag, need=need if i == 0 else None))
    for t in post: Fl.append(F(t, g0, g0 + 3 * step + 2, "dma"))
class Capture:
    def __enter__(s):
        global A
        s.lines = []; s.old = A
        def cap(text): s.lines.extend(l.strip() for l in text.split("\n") if l.strip() and not l.strip().startswith(";"))
        A = cap; return s
    def __exit__(s, *a):
        global A
        A = s.old
    def fillers(s, e, l, chain, ren=True):
        out = []
        for t in s.lines:
            if ren: t = re.sub(r"\bs60\b", "s100", re.sub(r"\bs61\b", "s101", t))
            if t.split()[0] in ("s_cselect_b32", "s_addc_u32", "v_cndmask_b32"): out[-1] += "\n" + t
            else: out.append(t)
        n = len(out)
        return [F(t, e, e + (l - e) * (i + 1) // n, chain) for i, t in enumerate(out)]
def spin(label, load, cond):
    A(f"s_mov_b32 s3, {SPIN}")
    st.raw(f"{label}:")
    for t in load: st.add(t)
    A("s_sub_u32 s3, s3, 1\ns_waitcnt vmcnt(0)")
    A(cond)
    A(f"s_cmp_eq_u32 s3, 0\ns_cbranch_scc1 {label}_x\ns_cbranch_vccnz {label}")
    st.raw(f"{label}_x:")

st.raw(f"""; adaLN + GQA window attention + channel MLP, one persistent launch, 256 workgroups (one per CU)
; @launch grid=(256,1,1) block=(256,1,1) lds={LDS_BYTES}
.amdgcn_target "amdgcn-amd-amdhsa--gfx950"
.text
.globl {NAME}_kernel
.p2align 8
.type {NAME}_kernel,@function
{NAME}_kernel:
L_start:""")
A("""
s_cmp_ge_u32 s2, 256
s_cbranch_scc1 L_end
s_load_dwordx16 s[4:19], s[0:1], 0
s_load_dwordx8 s[20:27], s[0:1], 64
s_load_dwordx4 s[28:31], s[0:1], 96
s_load_dwordx2 s[32:33], s[0:1], 112
""")
if OPT["stamps"] or OPT.get("diag"): A("s_memrealtime s[98:99]")
stamp("start")
GX = OPT["gx"]; lg = {1: 0, 2: 1, 4: 2}[GX]
A(f"""
v_and_b32 v1, 63, v0
v_lshrrev_b32 v2, 6, v0
s_and_b32 s96, s2, 7
s_lshr_b32 s97, s2, 3
v_readfirstlane_b32 s35, v2
s_and_b32 s56, s96, {8//GX - 1}
s_lshl_b32 s56, s56, {lg}
s_and_b32 s60, s97, {GX - 1}
s_add_u32 s56, s56, s60
s_lshr_b32 s57, s96, {3 - lg}
s_lshl_b32 s57, s57, {5 - lg}
s_lshr_b32 s61, s97, {lg}
s_add_u32 s57, s57, s61
s_lshl_b32 s60, s60, {3 - lg}
s_add_u32 s95, s57, s60
s_and_b32 s95, s95, {OPT.get("rotmask", 7)}
s_lshl_b32 s58, s96, 2
s_lshr_b32 s59, s97, 3
s_add_u32 s58, s58, s59
s_and_b32 s59, s97, 7
s_mul_i32 s63, s35, {RINGSZ}
s_add_u32 s63, s63, {RING0}
s_movk_i32 s101, 1023
v_lshlrev_b32 v16, 4, v1
v_lshrrev_b32 v2, 4, v1
v_and_b32 v5, 15, v1
v_mul_u32_u24 v3, 1032, v2
v_lshl_add_u32 v9, v5, 4, v3
v_add_u32 v9, s63, v9
v_and_b32 v3, 1, v2
v_mul_u32_u24 v3, 1032, v3
v_lshl_add_u32 v3, v5, 4, v3
v_lshrrev_b32 v4, 1, v2
v_lshl_add_u32 v10, v4, 9, v3
v_add_u32 v10, s63, v10
v_mul_u32_u24 v4, 2064, v4
v_add_u32 v21, v3, v4
v_add_u32 v21, {VA}, v21
s_lshl_b32 s60, s95, 7
v_lshl_add_u32 v3, v5, 4, s60
v_lshlrev_b32 v2, 10, v2
v_and_or_b32 v124, v3, s101, v2
v_add_u32 v3, 256, v3
v_and_or_b32 v125, v3, s101, v2
v_add_u32 v3, 256, v3
v_and_or_b32 v126, v3, s101, v2
v_add_u32 v3, 256, v3
v_and_or_b32 v127, v3, s101, v2
s_getpc_b64 s[92:93]
L_pc:
s_sub_u32 s92, s92, L_pc-L_start
s_subb_u32 s93, s93, 0
s_lshl_b32 s3, s97, 12
v_lshl_add_u32 v4, v0, 4, s3
v_min_u32 v4, L_codeend-L_start-16, v4
global_load_dwordx4 a[248:251], v4, s[92:93]
s_waitcnt lgkmcnt(0)
s_add_u32 s32, s32, {WSO}
s_addc_u32 s33, s33, 0
s_load_dword s34, s[32:33], 0
""")
st.vm = []
stamp("_karg")
srd(48, 32, 0x10000000 - WSO)
KS = OPT.get("ks", 4)
WS_MOD2 = WS_MOD + 4096 * KS
def silu_to_lds(creg, t=2):
    A(re.sub(r"\bv([2-5])\b", lambda m: f"v{int(m.group(1)) - 2 + t}", f"""
    v_lshlrev_b32 v2, 16, v{creg}
    v_and_b32 v3, 0xffff0000, v{creg}
    v_mul_f32 v4, {f2u(-1.4426950408889634)}, v2
    v_mul_f32 v5, {f2u(-1.4426950408889634)}, v3
    v_exp_f32 v4, v4
    v_exp_f32 v5, v5
    v_add_f32 v4, 1.0, v4
    v_add_f32 v5, 1.0, v5
    v_rcp_f32 v4, v4
    v_rcp_f32 v5, v5
    v_mul_f32 v2, v2, v4
    v_mul_f32 v3, v3, v5
    v_cvt_pk_bf16_f32 v2, v2, v3
    v_lshlrev_b32 v3, 2, v0
    v_add_u32 v3, {SILU}, v3
    ds_write_b32 v3, v2
    """))
def publish(ntile, src, lab, dst, tag="s34", tmp=2, stmp="s60"):
    W = 64 * ntile
    A(f"""
    v_lshrrev_b32 v{tmp}, 4, v1
    v_lshlrev_b32 v{tmp}, 5, v{tmp}
    s_mul_i32 {stmp}, s35, {W}
    s_add_u32 {stmp}, {stmp}, {RED}
    v_add_u32 v{tmp}, {stmp}, v{tmp}
    s_mov_b32 exec_lo, 0x00010001
    s_mov_b32 exec_hi, 0x00010001
    """)
    for t in range(ntile): A(f"ds_write_b128 v{tmp}, v[{src+4*t}:{src+4*t+3}] offset:{(t>>1)*128 + (t&1)*16}")
    A(f"""
    s_mov_b64 exec, -1
    s_waitcnt lgkmcnt(0)
    s_barrier
    s_cmp_lg_u32 s35, 0
    s_cbranch_scc1 {lab}
    v_lshlrev_b32 v{tmp}, 3, v1
    v_add_u32 v{tmp+1}, {RED}, v{tmp}
    s_mov_b32 exec_lo, {(1 << (8*ntile)) - 1}
    s_mov_b32 exec_hi, 0
    """)
    for i in range(4): A(f"ds_read_b64 v[{src+2*i}:{src+2*i+1}], v{tmp+1} offset:{i*W}")
    A(f"""
    v_pk_add_f32 v[{src}:{src+1}], v[{src}:{src+1}], v[{src+2}:{src+3}]
    v_pk_add_f32 v[{src+4}:{src+5}], v[{src+4}:{src+5}], v[{src+6}:{src+7}]
    v_pk_add_f32 v[{src}:{src+1}], v[{src}:{src+1}], v[{src+4}:{src+5}]
    v_cvt_pk_bf16_f32 v{src}, v{src}, v{src+1}
    v_mov_b32 v{src+1}, {tag}
    buffer_store_dwordx2 v[{src}:{src+1}], v{tmp}, s[48:51], {dst} offen sc1
    s_mov_b64 exec, -1
    """)
def xr(i, jj): return 32 + (jj * 4 + i) * 4
def x_loads(n0, n1):
    for n in range(n0, n1):
        jj, i = n >> 2, n & 3
        st.add(f"buffer_load_dwordx4 v[{xr(i,jj)}:{xr(i,jj)+3}], v{124+jj}, s[52:55], s{[62, 0, 1, 100][i]} offen{nt('x')}")
def x_setup():
    srd(52, 4, 2048 * 1024)
    A("s_lshl_b32 s62, s57, 16\ns_lshl_b32 s61, s35, 14\ns_add_u32 s62, s62, s61\ns_add_u32 s0, s62, 4096\ns_add_u32 s1, s62, 8192\ns_add_u32 s100, s62, 12288")
XJ = OPT.get("xj", 8)
NSL = 4 // KS
PX = OPT.get("px", 2)
A(f"s_cmp_lt_u32 s96, {PX}\ns_cselect_b32 s14, s97, 99\ns_cmp_lt_u32 s14, {16*KS//PX}\ns_cbranch_scc1 L_prod")
x_setup(); x_loads(0, XJ)
A("s_branch L_join")
join_vm = list(st.vm)
A("L_prod:"); st.vm = []; st.hist = []; st.smem = True; st.smem_wr = {("s", 34)}
srd(52, 24, 1024); srd(36, 26, 512 * 6144)
A("v_lshlrev_b32 v2, 2, v0\nbuffer_load_dword v31, v2, s[52:55], 0 offen")
voffs8(6144)
A(f"""
s_mul_i32 s14, s97, {PX}
s_add_u32 s14, s14, s96
s_lshr_b32 s15, s14, 4
s_and_b32 s14, s14, 15
s_lshl_b32 s3, s15, 2
s_add_u32 s3, s3, s35
s_mul_i32 s60, s3, {32*NSL*6144}
s_lshl_b32 s61, s14, 7
s_add_u32 s60, s60, s61
""")
for k in range(NSL):
    A(f"s_add_u32 m0, s63, {(2+k)*UNIT}")
    for t in dma4("s60", nt("mod")): st.add(t, tag="wm")
    if k + 1 < NSL: A(f"s_add_u32 s60, s60, {32*6144}")
x_setup(); x_loads(0, 4)
silu_to_lds(31)
A(f"""
v_lshrrev_b32 v2, 4, v1
v_lshlrev_b32 v2, 4, v2
s_mul_i32 s60, s3, {64*NSL}
s_add_u32 s60, s60, {SILU}
v_add_u32 v2, s60, v2
s_waitcnt lgkmcnt(0)
s_barrier
""")
for k in range(NSL): A(f"ds_read_b128 a[{4*k}:{4*k+3}], v2 offset:{k*64}")
st.need("wm")
for k in range(NSL):
    for t in p8_reads(lambda tp, tile: ("a", 16 + k * 16 + tp * 8 + tile * 4), (2 + k) * UNIT): A(t)
x_loads(4, 8)
for k in range(NSL):
    for t in range(4): A(mf(96 + 4 * t, 16 + k * 16 + 4 * t, 4 * k, "0" if k == 0 else None))
x_loads(8, XJ)
A(f"s_lshl_b32 s3, s15, 12\ns_lshl_b32 s14, s14, 8\ns_add_u32 s3, s3, s14\ns_add_u32 s3, s3, {WS_MOD}\ns_mul_i32 s15, s34, 0x9E3779B1\ns_add_u32 s15, s15, 0x7F4A7C15")
publish(4, 96, "L_prod_x", "s3", "s15")
A("L_prod_x:"); st.lg = []; st.hist = []
A("s_branch L_join"); st.raw(".p2align 12")
A("L_join:"); st.vm = join_vm; st.lg = []; st.hist = []; st.smem = True; st.smem_wr = {("s", 34)}
st.newphase(); stamp("_prod")

QST = 8192
A(f"""
s_lshl_b32 s60, s56, 10
s_lshl_b32 s61, s35, 8
s_add_u32 s60, s60, s61
s_add_u32 s36, s10, s60
s_addc_u32 s37, s11, 0
s_sub_u32 s38, {512*8192}, s60
s_mov_b32 s39, 0x20000
s_bfe_u32 s15, s57, 0x10003
s_lshl_b32 s14, s15, 7
s_lshl_b32 s92, s95, 19
s_add_u32 s94, s92, s14
s_xor_b32 s14, s14, 128
s_add_u32 s92, s92, s14
s_lshl_b32 s15, s15, 1
s_mul_i32 s93, s35, {UNIT}
s_sub_u32 s60, s93, s63
v_add_u32 v31, s60, v9
""")
voffs8(QST)
def wq_pre(n):
    r = n % 5; b = "s92" if n & 2 else "s94"
    p = [f"s_add_u32 m0, s63, {r*UNIT}" if r < 4 else "s_mov_b32 m0, s93", f"s_add_u32 s60, {b}, {(n&1)*32*QST}"]
    return p, ([f"s_add_u32 {b}, {b}, {64*QST}", f"s_and_b32 {b}, {b}, {512*QST-1}"] if n & 1 else [])
def wq_ops(n):
    p, q = wq_pre(n); return [(t, None) for t in p] + [(t, ("W", n)) for t in dma4("s60", nt("wq"))] + [(t, None) for t in q]
A(f"""
v_lshrrev_b32 v2, 4, v1
v_and_b32 v5, 15, v1
v_bfe_u32 v6, v1, 2, 2
v_lshlrev_b32 v6, 1, v6
s_movk_i32 s60, 0x78
v_lshrrev_b32 v6, v6, s60
v_and_b32 v6, 3, v6
v_xor_b32 v7, v6, v2
v_lshlrev_b32 v7, 4, v7
v_lshl_add_u32 v15, v5, 6, v7
v_add_u32 v15, {HIMG}, v15
v_bfe_u32 v4, v1, 2, 2
v_lshl_add_u32 v7, v4, 12, v7
v_and_b32 v4, 3, v1
v_lshl_add_u32 v7, v4, 8, v7
""")
A("s_bfe_u32 s15, s57, 0x10003\ns_lshl_b32 s15, s15, 1\nv_xor_b32 v4, s15, v4")
for s in range(4): A(f"v_xor_b32 v5, {s}, v4\nv_lshl_add_u32 v{17+s}, v5, 6, v7")
A(f"""
s_lshl_b32 s60, s35, 1
s_lshr_b32 s60, 0x78, s60
s_and_b32 s60, s60, 3
v_lshlrev_b32 v3, 2, v2
v_xor_b32 v3, s60, v3
v_and_b32 v4, 15, v1
v_xor_b32 v3, v3, v4
v_lshlrev_b32 v3, 4, v3
v_lshl_add_u32 v3, v2, 8, v3
s_lshl_b32 s60, s35, 10
v_add_u32 v22, s60, v3
v_add_u32 v23, 3072, v22
v_add_u32 v24, 6144, v22
v_add_u32 v25, 9216, v22
v_bfe_u32 v3, v1, 2, 2
v_lshlrev_b32 v3, 8, v3
v_lshl_add_u32 v3, v2, 6, v3
v_and_b32 v4, 3, v1
v_lshl_add_u32 v3, v4, 4, v3
s_lshl_b32 s60, s35, 12
s_add_u32 s60, s60, 64
v_add_u32 v26, s60, v3
v_subrev_u32 v27, 8, v26
v_subrev_u32 v28, 16, v26
v_subrev_u32 v29, 24, v26
v_bfe_u32 v3, v1, 2, 1
v_xor_b32 v3, v3, v2
v_lshlrev_b32 v3, 6, v3
v_bfe_u32 v4, v1, 2, 2
v_lshl_add_u32 v3, v4, 12, v3
s_lshl_b32 s60, s35, 10
s_add_u32 s60, s60, {HIMG}
v_add_u32 v3, s60, v3
v_and_b32 v4, 3, v1
v_lshl_add_u32 v120, v4, 4, v3
v_xor_b32 v121, 32, v120
v_xor_b32 v122, 48, v120
v_xor_b32 v123, 16, v120
v_subrev_u32 v8, {HIMG}, v15
v_xor_b32 v8, 64, v8
v_add_u32 v8, {HIMG}, v8
""")
A(f"""
s_lshl_b32 s60, s56, 19
s_add_u32 s60, s60, {1536*256}
s_add_u32 s40, s6, s60
s_addc_u32 s41, s7, 0
s_mov_b32 s42, {512*256}
s_mov_b32 s43, 0x20000
s_sub_u32 s60, s60, 64
s_add_u32 s44, s8, s60
s_addc_u32 s45, s9, 0
s_mov_b32 s46, {512*256+64}
s_mov_b32 s47, 0x20000
s_lshl_b32 s6, s35, 12
s_mul_i32 s7, s35, 4128
s_add_u32 s7, s7, {VA}
s_lshl_b32 s8, s95, 14
s_mov_b32 s9, s8
""")
def k_ops(c): return ([f"s_add_u32 m0, s6, {KA if c%2==0 else KB}"], [f"buffer_load_dwordx4 v{22+i}, s[40:43], s8 offen offset:{i*1024}{nt('kv')} lds" for i in range(4)], ["s_add_u32 s8, s8, 16384", "s_and_b32 s8, s8, 0x1ffff"])
def v_ops(c): return ([f"s_add_u32 m0, s7, {(c&1)*16512}"], [f"buffer_load_dwordx4 v{26+i}, s[44:47], s9 offen offset:{i*1032}{nt('kv')} lds" for i in range(4)], ["s_add_u32 s9, s9, 16384", "s_and_b32 s9, s9, 0x1ffff"])
def kv_chain(Fl, g0, ops, tag, step=0):
    if step: spread_dma(Fl, g0, ops[0], ops[1], ops[2], tag, None, step); return
    chain_dma(Fl, g0, ops[0], ops[1], tag, None, "dma")
    for t in ops[2]: Fl.append(F(t, g0 + 4, g0 + 10, "dma"))
x_loads(XJ, 16)
if OPT.get("tlb"):
    A(f"v_lshlrev_b32 v2, 5, v1\nv_add_u32 v2, s97, v2\nv_lshlrev_b32 v2, {OPT['tlb']}, v2")
    for i, (ptr, size) in enumerate([(32, 0x2000000), (10, 4 << 20), (12, 4 << 20), (16, 1835008), (20, 1835008), (28, 2 << 20), (26, 3 << 20), (18, 3584), (22, 1024)]):
        srd(52, ptr, size)
        A(f"s_cmp_eq_u32 s35, {i & 3}\ns_cselect_b32 s60, 0, {OOB}")
        dummy("buffer_load_dword a244, v2, s[52:55], s60 offen")
def warm(lab):
    if not OPT.get("warm", 1): return
    t = "    s_mov_b64 exec, 0\n"
    for w in range(4):
        if w < 3: t += f"    s_cmp_eq_u32 s35, {w}\n    s_cbranch_scc0 {lab}_{w}\n"
        t += f"    s_call_b64 s[100:101], L_stub@{w}\n"
        if w < 3: t += f"    s_branch {lab}_ret\n{lab}_{w}:\n"
    st.raw(t + f"{lab}_ret:\n    s_mov_b64 exec, -1")
A(f"s_waitcnt vmcnt({12 + (9 if OPT.get('tlb') else 0)})")
warm("L_w1")

for i in range(4): A(f"v_mov_b32 v{112+2*i}, 0\nv_mov_b32 v{104+2*i}, 0")
A("v_mov_b32 v7, 0x3f803f80")
stamp("_issued")
def trickle(n=1):
    while pend and n:
        t, tag = pend.pop(0); st.add(t, tag=tag)
        if t.startswith("buffer") or t.startswith("global"): n -= 1
A(f"v_lshlrev_b32 v30, 4, v0\nv_add_u32 v30, {WS_MOD}, v30")
MC = [96, 100, 2 * 128 - 8, 2 * 128 - 4]
mchk = [f"buffer_load_dwordx4 a[{4*k}:{4*k+3}], v30, s[48:51], {['0', 's10', 's11', 's14'][k]} offen sc1" for k in range(KS)]
for k in range(1, KS): A(f"s_mov_b32 {['0', 's10', 's11', 's14'][k]}, {4096*k}")
for n in range(16):
    jj, i = n >> 2, n & 3
    for e in range(4): A(f"v_dot2c_f32_bf16 v{112+2*i}, v{xr(i,jj)+e}, v7\nv_dot2c_f32_bf16 v{104+2*i}, v{xr(i,jj)+e}, v{xr(i,jj)+e}")
    if n == 0: stamp("_x0")
stamp("x")
RC = OPT.get("rc", -1); W0L = OPT.get("w0l", 0)
if RC < 0:
    for t in mchk: A(t)
pend = wq_ops(0) + wq_ops(1)
if not W0L: trickle(4)
for d in ("quad_perm:[1,0,3,2]", "quad_perm:[2,3,0,1]", "row_ror:4", "row_ror:8"):
    for i in range(4): A(f"v_add_f32_dpp v{112+2*i}, v{112+2*i}, v{112+2*i} {d} row_mask:0xf bank_mask:0xf\nv_add_f32_dpp v{104+2*i}, v{104+2*i}, v{104+2*i} {d} row_mask:0xf bank_mask:0xf")
for op in ["v_mul_f32 v{m}, {c512}, v{r}", "v_mul_f32 v{q}, {c512}, v{q}", "v_fma_f32 v{q}, -v{m}, v{m}, v{q}", "v_max_f32 v{q}, 0, v{q}", "v_add_f32 v{q}, {eps}, v{q}",
           "v_rsq_f32 v{r}, v{q}", "v_mul_f32_e64 v{q}, -v{m}, v{r}"]:
    for i in range(4): A(op.format(m=113 + 2 * i, r=112 + 2 * i, q=104 + 2 * i, c512=f2u(1 / 512), eps=f2u(1e-5)))
def normalise(r0, r1):
    for r in range(r0, r1):
        i = (r >> 2) & 3
        A(f"v_lshlrev_b32 v{128+2*r}, 16, v{32+r}\nv_and_b32 v{129+2*r}, 0xffff0000, v{32+r}")
        A(f"v_pk_fma_f32 v[{128+2*r}:{129+2*r}], v[{128+2*r}:{129+2*r}], v[{112+2*i}:{113+2*i}], v[{104+2*i}:{105+2*i}] op_sel_hi:[1,0,0]")
        if r == RC:
            for t in mchk: A(t)
            if W0L: trickle(4)
        if r >= OPT.get("rw1", 36) and r % 6 == 0: trickle()
RM = OPT.get("rm", 36)
def MB(r): return 32 + r
normalise(0, RM)
stamp("_p6")
A("s_mul_i32 s34, s34, 0x9E3779B1\ns_add_u32 s34, s34, 0x7F4A7C15")
def mod_fetch():
    return "\n".join(f"v_accvgpr_read_b32 v{MB(r)}, a{r}" for r in range(4 * KS)) + f"\nv_cmp_ne_u32 vcc, s34, v{MB(1)}\n" + "".join(f"v_cmp_ne_u32 s[100:101], s34, v{MB(3+2*i)}\ns_or_b64 vcc, vcc, s[100:101]\n" for i in range(2 * KS - 1))
A(mod_fetch()); A("s_cbranch_vccz L_pollmod_x")
keep = list(st.vm)
spin("L_pollmod", [f"s_sleep {OPT.get('slp', 4)}"] + mchk, mod_fetch())
st.vm = keep
stamp("mod")
A(f"""
s_cmp_ge_u32 s35, 2
s_cselect_b32 s60, 1.0, 0
s_cselect_b32 s3, 2048, 0
s_add_u32 s3, s3, {MODV}
s_mov_b32 s61, {f2u(SCALE)}
""")
for k in range(KS):
    A(f"""v_lshlrev_b32 v2, 16, v{MB(4*k)}
    v_and_b32 v3, 0xffff0000, v{MB(4*k)}
    v_lshlrev_b32 v4, 16, v{MB(4*k+2)}
    v_and_b32 v5, 0xffff0000, v{MB(4*k+2)}""")
    for e in range(4): A(f"v_add_f32 v{100+e}, {'s60' if k == 0 else 'v' + str(100+e)}, v{2+e}")
for e in range(4): A(f"v_mul_f32 v{100+e}, s61, v{100+e}")
A(f"""
s_lshl_b32 s60, s95, 8
v_lshlrev_b32 v2, 4, v0
v_subrev_u32 v2, s60, v2
v_and_b32 v2, 2047, v2
v_add_u32 v2, s3, v2
ds_write_b128 v2, v[100:103]
""")
if OPT.get("kpos", 2) == 2: trickle(99)
normalise(RM, 64)
trickle(99)
def kv_prefetch():
    A("s_add_u32 s61, s8, s6")
    for i in range(4): dummy(f"buffer_load_dwordx4 a[244:247], v16, s[40:43], s61 offen offset:{i*1024}")
    if OPT.get("vpf", 0):
        A("s_add_u32 s61, s61, 64")
        for i in range(4): dummy(f"buffer_load_dwordx4 a[244:247], v16, s[44:47], s61 offen offset:{i*1024}")
if OPT.get("kpos", 2) == 0: kv_prefetch()
A(f"""
v_and_b32 v30, 15, v1
v_lshlrev_b32 v30, 5, v30
v_add_u32 v30, {MODV}, v30
s_waitcnt lgkmcnt(0)
s_barrier
""")
stamp("_bar1")
QS = 64
def qstg(U, tp, tile, s): return QS + (U & 1) * 32 + s * 16 + tp * 8 + tile * 4
def q_reads(n):
    r = n % 5
    return p8_reads(lambda tp, tile: ("a", qstg(n >> 1, tp, tile, n & 1)), r * UNIT if r < 4 else 0, "v9" if r < 4 else "v31")
def modreads(jj, b):
    for i in range(4): A(f"ds_read_b128 v[{b+4*i}:{b+4*i+3}], v30 offset:{(i>>1)*2048 + jj*512 + (i&1)*16}")
for jj in range(4): modreads(jj, 32 + 16 * jj)
pend = wq_ops(2) + wq_ops(3) + wq_ops(4)
if OPT.get("kpos", 2) == 2: A("s_add_u32 s61, s8, s6")
for n in range(16):
    jj, i = n >> 2, n & 3; b = 32 + 16 * jj; t = 128 + 8 * n; d = 96 + 4 * (n & 3)
    for e in range(4): A(f"v_pk_fma_f32 v[{t+2*e}:{t+2*e+1}], v[{t+2*e}:{t+2*e+1}], v[{b+8+2*e}:{b+9+2*e}], v[{b+2*e}:{b+2*e+1}]")
    for e in range(4): A(f"v_cvt_pk_bf16_f32 v{d+e}, v{t+2*e}, v{t+2*e+1}")
    A(f"ds_write_b128 v{120+i}, v[{d}:{d+3}] offset:{jj*16384 + i*256}")
    if OPT.get("kpos", 2) == 2 and OPT.get("jk", 0) <= n < OPT.get("jk", 0) + 4: dummy(f"buffer_load_dwordx4 a[244:247], v16, s[40:43], s61 offen offset:{(n - OPT.get('jk', 0))*1024}")
    if n >= OPT.get("jw", 8): trickle()
stamp("_jloop")
for n in range(2):
    for i, t in enumerate(q_reads(n)): st.add(t, tag=("R", n), need=[("W", n)] if i == 0 else None)
if OPT.get("kpos", 2) == 1: trickle(99); kv_prefetch()
stamp("_w01")
trickle(99)
stamp("_w34")
A("s_waitcnt lgkmcnt(0)\ns_barrier")
def hb(kk, s, cb): return (kk & 1) * 32 + (s * 4 + cb) * 4
for s in range(2):
    for cb in range(4): A(f"ds_read_b128 a[{hb(0,s,cb)}:{hb(0,s,cb)+3}], {'v8' if s else 'v15'} offset:{(s*4+cb)*1024}")
stamp("h")

def qacc(tp, tile, cb): return 128 + (tp * 8 + tile * 4 + cb) * 4
def qop(s, cb): return 32 + (s * 4 + cb) * 4
M = []; Fl = []; RES = {}; HBAR = 46
for U in range(16):
    kk, h2 = U >> 1, U & 1
    g0 = len(M)
    for tp in range(2):
        for tile in range(2):
            for cb in range(4):
                for s in range(2):
                    M.append(mf(qacc(2 * h2 + tp, tile, cb), qstg(U, tp, tile, s), hb(kk, s, cb), "0" if (kk == 0 and s == 0) else None))
    for s in range(2):
        n = 2 * U + 2 + s; g = g0 + 16 * s + (10 if n == 2 else 4 if n == 3 else 0)
        def refill(n, g, step):
            m = n + 5
            if m >= 32: return
            p, q = wq_pre(m)
            spread_dma(Fl, g, p, dma4("s60", nt("wq")), q, ("W", m), [("R", n)], step)
        if U == 0 and s == 0: refill(0, 3, 2); refill(1, 11, 2)
        if n < 32:
            for i, t in enumerate(q_reads(n)): Fl.append(F(t, g + i, g + i + 1, "rd", tag=("R", n), need=[("W", n)] if i == 0 else None))
            refill(n, g + 11, 4 if n > 4 else 2 if n == 2 else 3)
    RES[g0 + 31] = 1
    if U: Fl += stampF(f"q{U}", g0)
    if kk < 7:
        for i in range(4):
            n = 4 * h2 + i; s, cb = n >> 2, n & 3
            Fl.append(F(f"ds_read_b128 a[{hb(kk+1,s,cb)}:{hb(kk+1,s,cb)+3}], {'v8' if s else 'v15'} offset:{((kk+1)*8+n)*1024}", g0 + 8 + (i & 1) + 16 * (i >> 1), g0 + 12 + (i & 1) + 16 * (i >> 1), "hb", tag=("HB", kk + 1)))
    if kk == 7:
        for tp in range(2):
            T = 2 * h2 + tp - 1
            if T >= 0:
                for cb in range(4):
                    for e in range(4):
                        src = qacc(T, e >> 1, cb) + 2 * (e & 1)
                        Fl.append(F(f"v_cvt_pk_bf16_f32 v{qop(T,cb)+e}, v{src}, v{src+1}", g0 + 16 * tp + 2, g0 + 16 * tp + 15, "cv"))
        if h2 == 0:
            Fl.append(F(("barrier", [("HB", 7), ("R", 29)]), g0 + 1, g0 + 1, "dma"))
            kv_chain(Fl, g0 + 8, k_ops(0), ("K", 0))
            kv_chain(Fl, g0 + 24, k_ops(1), ("K", 1))
        else:
            kv_chain(Fl, g0 + 1, v_ops(0), ("V", 0))
            Fl.append(F(("barrier", [("K", 0)]), g0 + 15, g0 + 15, "rd"))
            for s in range(4): Fl.append(F(f"ds_read_b128 a[{STG+s*4}:{STG+s*4+3}], v{17+s} offset:{KA}", g0 + 16 + s, g0 + 22, "rd", tag=("R", "k00")))
LP0 = 2
def blk_addr(dst, src, add):
    A(f"""s_add_u32 s60, {src}, {add}
    s_and_b32 s60, s60, 3
    s_mul_i32 s61, s60, {KB}
    s_cmp_eq_u32 s60, 2
    s_cselect_b32 s61, {VA}, s61
    s_cmp_eq_u32 s60, 3
    s_cselect_b32 s{dst}, {XR}, s61""")
FLOOR = [6, 7, 8, 15]
with Capture() as cp:
    voffs16(1024)
    A(f"""
s_lshl_b32 s60, s56, 19
s_lshl_b32 s61, s35, {OPT.get("wocol", 6)}
s_and_b32 s61, s61, {OPT.get("womask", 1023)}
s_add_u32 s60, s60, s61
s_add_u32 s36, s12, s60
s_addc_u32 s37, s13, 0
s_sub_u32 s38, {4096*1024}, s60
v_and_b32 v3, {3 if OPT.get("sparse1", 1) else 0}, v1
v_mov_b32 v2, 0x3f803f80
v_cmp_eq_u32 vcc, 0, v3
v_cndmask_b32 v2, 0, v2, vcc
v_accvgpr_write_b32 a240, v2
v_accvgpr_write_b32 a241, v2
v_accvgpr_write_b32 a242, v2
v_accvgpr_write_b32 a243, v2
s_and_b32 s14, s57, {OPT.get("rotmask", 7) & 3}
s_lshl_b32 s92, s14, 8
s_bfe_u32 s15, s57, 0x20002
s_and_b32 s15, s15, {OPT.get("rotmask", 7) & 3}
s_lshl_b32 s94, s15, 17
s_mul_i32 s93, s97, 57344
s_mul_i32 s60, s35, 14336
s_add_u32 s93, s93, s60
""")
    srd(52, 16, 512 * 3584)
    A(f"""
v_lshrrev_b32 v2, 5, v1
v_lshlrev_b32 v2, 4, v2
v_bfe_u32 v3, v1, 2, 3
v_add_u32 v2, v2, v3
v_mul_u32_u24 v2, 6144, v2
v_and_b32 v3, 3, v1
v_lshl_add_u32 v2, v3, 4, v2
v_add_u32 v3, {8*6144-1032}, v2
v_add_u32 v4, {32*6144-2064}, v2
v_add_u32 v5, {40*6144-3096}, v2
v_lshlrev_b32 v30, 2, v0
""")
    blk_addr(85, "s35", 0)
    for i in range(4): blk_addr(86 + i, "s15", i)
    A(f"""
s_sub_u32 s3, s96, {LP0}
s_lshl_b32 s13, s3, 5
s_add_u32 s13, s13, s97
s_lshl_b32 s60, s13, 6
s_mul_i32 s61, s35, {128*6144}
s_add_u32 s60, s60, s61
s_add_u32 s60, s60, 2048
s_cmp_lt_u32 s3, 2
s_cselect_b32 s10, s60, {OOB}
s_cselect_b32 s62, 0, {OOB}
s_mov_b32 s12, s2
s_cmp_lg_u32 s35, 0
s_cselect_b32 s11, {OOB}, 0
""")
    srd(0, 24, 1024)
attn_setup = list(cp.lines)
Fl += cp.fillers(412, 508, "su")
for t in [f"v_mov_b32 v{r}, 0xff800000" for r in FLOOR] + ["s_mov_b32 s95, 0", "v_lshrrev_b32 v31, 6, v0", "v_lshlrev_b32 v31, 2, v31", f"v_add_u32 v31, {LGO + 16}, v31"]: Fl.append(F(t, 470, 508, "su2"))
schedule(st, M, Fl, reserve=RES, verbose="Q")
for cb in range(4):
    for e in range(4):
        src = qacc(3, e >> 1, cb) + 2 * (e & 1)
        A(f"v_cvt_pk_bf16_f32 v{qop(3,cb)+e}, v{src}, v{src+1}")
st.newphase(); stamp("Q")
st.raw("L_attn:"); attn_entry = (list(st.vm), list(st.lg))
def wo_pre(u, m0):
    p = [m0, "s_add_u32 s60, s92, s94" + ("\ns_add_u32 s60, s60, 0x10000" if u & 4 else ""), "s_add_u32 s94, s94, 0x20000", "s_and_b32 s94, s94, 0x7ffff"]
    return p
def wo_chain(Fl, g, u, m0, need, late=3):
    p = wo_pre(u, m0)
    chain_dma(Fl, g, p[:2], dma4("s60", nt("wo")), ("W", u), need, "dma", late)
    post = p[2:] + (["s_add_u32 s92, s92, 256", "s_and_b32 s92, s92, 1023"] if (u & 7) == 7 else [])
    for t in post: Fl.append(F(t, g, g + late + 8, "dma"))

def S(kt, cb, c=0): return (192 if (c == 1 and kt < 2 and OPT.get("s2", 0)) else 96) + (kt * 4 + cb) * 4
def P(c, s, cb): return 160 + (c & 1) * 32 + (s * 4 + cb) * 4
def CI(cb): return 224 + 4 * cb
def oacc(tp, tile, cb): return (tp * 8 + tile * 4 + cb) * 4
def woreg(u, tile, s):
    o = tile * 8 + s * 4
    return ("a", 128 + u * 16 + o) if u < 4 else (("v", 128 + (u - 4) * 16 + o) if u < 6 else ("v", 192 + (u - 6) * 16 + o))
LS = 224
def RS(u): return (u + 2) & 3
units = [("QK", 0, k) for k in range(4)]
for c in range(7): units += [("QK", c + 1, k) for k in range(4)] + [("L", c, 0)] + [("PV", c, k) for k in range(4)]
units += [("L", 7, 0)] + [("PV", 7, k) for k in range(4)]
M = []; Fl = []; RES = {}; G = {}; buf = {}
staged = [u for u in units if u[0] != "L"]
for n, u in enumerate(staged): buf[u] = n
pos = 0
for un in units: G[un] = pos; pos += 8 if un[0] == "L" else 16
NATT = pos
def oop(dp, cb): return 32 + (dp * 4 + cb) * 4
pf = []
if OPT["pf_w1"]: pf += [("w1", i) for i in range(14)]
if OPT["pf_w2"]: pf += [("w2", i) for i in range(14 if OPT["pf_w2"] == 1 else 2)]
with Capture() as cp:
    A(f"""
buffer_load_dword v30, v30, s[0:3], s62 offen
s_mov_b32 s0, s26
s_mov_b32 s1, s27
s_mov_b32 s2, {512*6144}
s_mov_b32 m0, s63
""")
Fl += cp.fillers(3, 7, "dma")
for i in range(4): Fl.append(F(f"buffer_load_dwordx4 v{2+i}, s[0:3], s10 offen offset:{i*1032}{' nt' if OPT.get('nt_lp', 1) else ''} lds", 13 + 9 * i, 14 + 9 * i, "dma", tag="wm"))
with Capture() as cp:
    A(f"""
s_lshl_b32 s60, s57, 3
s_add_u32 s60, s60, s56
s_lshl_b32 s60, s60, 7
s_add_u32 s60, s60, {WS_F1}
s_lshl_b32 s61, s58, 3
s_add_u32 s61, s61, s59
s_lshl_b32 s61, s61, 7
s_add_u32 s61, s61, {WS_F2 - 128}
v_lshlrev_b32 v253, 2, v1
v_add_u32 v254, s60, v253
v_add_u32 v253, s61, v253
v_cmp_le_u32 vcc, 32, v1
v_cndmask_b32 v254, v254, v253, vcc
s_not_b32 s60, s34
v_mov_b32 v255, s60
""")
Fl += cp.fillers(G[("PV", 0, 0)], G[("PV", 1, 0)], "pw")
def pst(v, off=0): return f"buffer_store_dwordx4 a[248:251], {v}, s[48:51], s10 offen offset:{off} sc1"
psn = [f"v_accvgpr_write_b32 a{248+i}, -1" for i in range(4)] + ["s_lshl_b32 s10, s58, 3", "s_add_u32 s10, s10, s59", "s_lshl_b32 s10, s10, 3", "s_add_u32 s10, s10, s35",
       "s_mul_i32 s10, s10, 5120", f"s_add_u32 s10, s10, {WS_H1}", f"s_cmp_eq_u32 s59, {7 if OPT.get('j7', 0) else 9}\ns_cselect_b32 s10, {OOB}, s10"] + [pst("v16", i * 1024) for i in range(4)] + ["s_add_u32 s10, s10, 20480"] + [pst("v16", i * 1024) for i in range(4)]
psn += ["v_lshrrev_b32 v253, 5, v1", "v_lshlrev_b32 v253, 11, v253", "v_and_b32 v255, 31, v1", "v_lshl_add_u32 v253, v255, 4, v253"]
for n in (2, 3):
    psn += ["s_lshl_b32 s10, s57, 3", "s_add_u32 s10, s10, s56", "s_lshl_b32 s10, s10, 2", "s_add_u32 s10, s10, s35", "s_lshl_b32 s10, s10, 5", f"s_add_u32 s11, s14, {n}", "s_and_b32 s11, s11, 3",
            "s_add_u32 s10, s10, s11", "s_lshl_b32 s10, s10, 9", f"s_add_u32 s10, s10, {WS_PART}"]
    for i in range(4): psn += [pst("v253")] + (["s_add_u32 s10, s10, 4096"] if i < 3 else [])
for un in units:
    ty, c, k = un; g0 = len(M); assert g0 == G[un]
    if ty == "QK":
        b = STG + (buf[un] & 1) * 16
        for cb in range(4):
            for s in range(4):
                M.append(mf(S(k, cb, c), b + 4 * s, qop(s, cb), None if s else ("0" if (c == 0 and k < 1) else CI(cb)), "v", "a", "v"))
    elif ty == "L":
        for cb in range(4):
            for s in range(2): M.append(mf(LS + 4 * cb, 240, P(c, s, cb), "0" if (c == 0 and s == 0) else None, "a", "a", "v"))
    else:
        for tile in range(2):
            for cb in range(4):
                for s in range(2): M.append(mf(oacc(k, tile, cb), stg(buf[un], tile, s), P(c, s, cb), "0" if (c == 0 and s == 0) else None, "a", "a", "v"))
    if ty == "L": continue
    RES[g0 + 15] = 1
    bar = None
    if (ty, c, k) == ("QK", 0, 3): bar = 1
    if ty == "PV" and k == 3 and c < 7: bar = c + 2
    rg = g0
    if bar is not None:
        Fl.append(F(("barrier", [("R", un), ("V", bar - 1)] + ([("K", bar)] if bar <= 7 else [])), g0 + 1, g0 + 1, "rd")); rg = g0 + 2
        Fl += stampF(f"B{bar}", g0 + 2)
        VS = OPT.get("vs", 5); gk = g0 + 8
        if bar + 1 <= 7: kv_chain(Fl, gk, k_ops(bar + 1), ("K", bar + 1), VS); gk += 4 * VS
        if bar <= 7: kv_chain(Fl, gk, v_ops(bar), ("V", bar), VS); gk += 4 * VS
        plan = {**[{1: [("d", 0)], 2: [("d", 1)]}, {2: [("d", 0)], 3: [("d", 1)]}, {3: [("d", 0), ("d", 1)]}][OPT.get("wop", 1)], 4: [("r", 0), ("d", 2), ("d", 3)], 5: [("r", 1), ("r", 2), ("d", 4), ("d", 5)], 6: [("r", 3), ("d", 6)], 7: [("d", 7)]}.get(bar, [])
        gr = g0 + 20
        for kind, u in plan:
            if kind == "d":
                p = wo_pre(u, f"s_add_u32 m0, s63, {RS(u)*UNIT}")
                spread_dma(Fl, gk, p[:2], dma4("s60", nt("wo")), p[2:] + (["s_add_u32 s92, s92, 256", "s_and_b32 s92, s92, 1023"] if (u & 7) == 7 else []), ("W", u), [("RW", u - 4)] if u >= 4 else None, VS); gk += 4 * VS
            else:
                for i, t in enumerate(p16_reads(lambda tile, s: woreg(u, tile, s), RS(u) * UNIT)):
                    Fl.append(F(t, gr + 2 * i, gr + 6 + 2 * i, "wor", tag=("RW", u), need=[("W", u)] if i == 0 else None))
                gr += 16
        if bar <= 7:
            for n in range(int(str(OPT.get("pfp", 44044)).zfill(7)[bar - 1])):
                if not pf: break
                nm, i = pf.pop(0)
                if nm == "w2" and i == 0:
                    for t in ["s_mov_b32 s52, s20", "s_mov_b32 s53, s21"] + ((["s_sub_u32 s93, s93, 12288"] if OPT["pf_w1"] else []) if OPT["pf_w2"] == 1 else ["s_mul_i32 s93, s2, 7168", "s_lshl_b32 s60, s35, 11\ns_add_u32 s93, s93, s60"]): Fl.append(F(t, gk - 3, gk, "dma"))
                if i and i % 4 == 0: Fl.append(F("s_add_u32 s93, s93, 4096", gk - 3, gk, "dma"))
                Fl.append(dummyF(f"buffer_load_dwordx4 a[244:247], v16, s[52:55], s93 offen offset:{(i%4)*1024}", gk, gk + 2, "dma")); gk += VS
        for n in range(int(str(OPT.get("psp", 332233)).zfill(7)[bar - 1]) if bar <= 7 else 0):
            while True:
                t = psn.pop(0); stv = t.startswith("buffer")
                Fl.append(F(t, gk - (0 if stv else 4), gk + (2 if stv else 0), "dma", tag="psn" if stv else None))
                if stv: gk += OPT.get('ps', 5); break
    i = staged.index(un)
    if i + 1 < len(staged):
        nx = staged[i + 1]; nb = STG + (buf[nx] & 1) * 16
        if nx[0] == "QK":
            for s in range(4):
                Fl.append(F(f"ds_read_b128 a[{nb+4*s}:{nb+4*s+3}], v{17+s} offset:{(KA if nx[1]%2==0 else KB) + nx[2]*1024}", rg + s // 2, rg + 4 + s, "rd", tag=("R", nx)))
        else:
            i2 = 0
            for tile in range(2):
                for s in range(2):
                    for hf in range(2):
                        d = stg(buf[nx], tile, s) + 2 * hf
                        Fl.append(F(f"ds_read_b64_tr_b16 a[{d}:{d+1}], v21 offset:{(nx[1]&1)*16512 + (4*s+2*hf)*2064 + nx[2]*256 + tile*8}", rg + i2 // 2, rg + 1 + i2, "rd", tag=("R", nx))); i2 += 1
g1 = G[("QK", 0, 1)]
for cb in range(4):
    s0 = S(0, cb); t = 240 + 2 * cb; ch = ("mx", cb); e = 4 * cb + 7; l = g1 - 2 + 4 * cb
    for txt in [f"v_max3_f32 v{t}, v{s0}, v{s0+1}, v{s0+2}", f"v_max3_f32 v{t}, v{t}, v{s0+3}, v{FLOOR[cb]}", f"v_mov_b32 v{t+1}, v{t}",
                f"v_permlane16_swap_b32 v{t}, v{t+1}", f"v_max_f32 v{t}, v{t}, v{t+1}", f"v_mov_b32 v{t+1}, v{t}",
                f"v_permlane32_swap_b32 v{t}, v{t+1}", f"v_max_f32 v{t}, v{t}, v{t+1}"] + [f"v_sub_f32 v{CI(cb)+i}, 0, v{t}" for i in range(4)]:
        Fl.append(F(txt, e, l, ch))
for c in range(8):
    for kt in range(4):
        gq = G[("QK", c, kt)]
        for cb in range(4):
            e = gq + 4 * cb + 3 + 5
            l = (G[("QK", c + 1, kt)] + 4 * cb - 1) if c < 7 else G[("L", 7, 0)] - 2
            if c == 0 and kt < 2 and OPT.get("s2", 0): l = 1 << 20
            l = min(l, G[("L", c, 0)] - 2)
            ch = ("sm", kt, cb); s0 = S(kt, cb, c)
            if c == 1 and OPT.get("s2", 0): ch = ("sm1", cb)
            if c == 0 and kt < 1:
                ch = ("mx", cb)
                for i in range(4): Fl.append(F(f"v_add_f32 v{s0+i}, v{CI(cb)}, v{s0+i}", e, l, ch))
            for i in range(4): Fl.append(F(f"v_exp_f32 v{s0+i}, v{s0+i}", e, l, ch))
            for i in range(2): Fl.append(F(f"v_cvt_pk_bf16_f32 v{P(c,kt>>1,cb)+2*(kt&1)+i}, v{s0+2*i}, v{s0+2*i+1}", e, l, ch))
gL = G[("L", 7, 0)]
for cb in range(4): Fl.append(F(f"v_accvgpr_read_b32 v{240+cb}, a{LS+4*cb}", gL + 12, gL + 20, "nrm"))
for cb in range(4): Fl.append(F(f"v_rcp_f32 v{244+2*cb}, v{240+cb}", gL + 12, gL + 24, "nrm"))
for t in ["v_add_f32 v252, v240, v241", "v_add_f32 v254, v242, v243", "v_add_f32 v252, v252, v254", f"v_cmp_nge_f32 vcc, {f2u(2.0**34)}, v252\ns_cmp_lg_u64 vcc, 0\ns_cselect_b32 s3, 1, 0",
          "v_mov_b32 v254, s3", "v_and_b32 v253, 3, v1", "v_lshlrev_b32 v253, 2, v253", f"v_add_u32 v253, {LGO + 16}, v253"]:
    Fl.append(F(t, gL + 14, gL + 34, "nrm"))
def norm_ops(dp, cb, pk):
    t = 160 + cb * 8; o = []
    for tile in range(2):
        for r in range(4): o.append(f"v_accvgpr_read_b32 v{t+4*tile+r}, a{oacc(dp,tile,cb)+r}")
    if pk: o += [f"v_pk_mul_f32 v[{t+2*r}:{t+2*r+1}], v[{t+2*r}:{t+2*r+1}], v[{244+2*cb}:{245+2*cb}] op_sel_hi:[1,0]" for r in range(4)]
    else: o += [f"v_mul_f32 v{t+r}, v{244+2*cb}, v{t+r}" for r in range(8)]
    d = 224 + cb * 4
    o += [f"v_cvt_pk_bf16_f32 v{d+e}, v{t+2*e}, v{t+2*e+1}" for e in range(4)]
    o.append(f"ds_write_b128 v30, v[{d}:{d+3}] offset:{(dp*4+cb)*1024}")
    return o
lpF = []; spread_dma(lpF, G[("PV", 0, 1)] + 4 - OPT.get("lpe", 40), [f"s_add_u32 m0, s63, {UNIT}", f"s_add_u32 s10, s10, {64*6144}"], [f"buffer_load_dwordx4 v{2+i}, s[0:3], s10 offen offset:{i*1032}{' nt' if OPT.get('nt_lp', 1) else ''} lds" for i in range(4)], ["s_mov_b32 s2, s12"], "wm", None, 5)
cut = min(f.order for f in Fl if f.chain == "dma" and f.e >= G[("PV", 0, 3)])
for i, f in enumerate(lpF): f.order = cut - 1 + (i + 1) / 100.0
Fl += lpF
def late_producer():
    A(f"s_sub_u32 s3, s96, {LP0}\ns_cmp_ge_u32 s3, 2\ns_cbranch_scc1 L_nolp")
    keep = (list(st.vm), list(st.lg), list(st.hist))
    silu_to_lds(30, 240)
    A(f"v_lshrrev_b32 v240, 4, v1\nv_lshlrev_b32 v240, 4, v240\ns_lshl_b32 s3, s35, 8\ns_add_u32 s3, s3, {SILU}\nv_add_u32 v240, s3, v240\ns_waitcnt lgkmcnt(0)\ns_barrier")
    for k in range(4): A(f"ds_read_b128 a[{128+4*k}:{131+4*k}], v240 offset:{k*64}")
    st.need("wm")
    for u in range(2):
        for t in p16_reads(lambda tile, s: ("a", 144 + u * 16 + tile * 8 + s * 4), u * UNIT): A(t)
    for k in range(4):
        for tile in range(2): A(mf(244 + 4 * tile, 144 + (k >> 1) * 16 + tile * 8 + (k & 1) * 4, 128 + 4 * k, "0" if k == 0 else None))
    A(f"s_lshl_b32 s13, s13, 7\ns_add_u32 s13, s13, {WS_MOD2}")
    publish(2, 244, "L_lp_x", "s13", tmp=240, stmp="s3")
    A("L_lp_x:\ns_waitcnt lgkmcnt(0)\ns_nop 7\nL_nolp:")
    st.vm, st.lg, st.hist = keep
Fl.append(F(("call", late_producer), G[("PV", 2, 3)] + 1, G[("PV", 2, 3)] + 1, "lp"))
Fl.append(F("buffer_store_dword v255, v254, s[48:51], s11 offen sc1", G[("PV", 1, 1)] + 9, G[("PV", 1, 1)] + 12, "pw"))
Fl.append(F(f"v_add_u32 v254, {WS_F3 - WS_F2}, v254", G[("PV", 1, 1)] + 12, G[("PV", 1, 2)] + 8, "pw"))
Fl.append(F("buffer_store_dword v255, v254, s[48:51], s11 offen sc1", G[("PV", 1, 2)] + 9, G[("PV", 1, 2)] + 12, "pw"))
for i, r in enumerate((30, 2, 3, 4, 5)): Fl.append(F(f"v_add_u32 v{r}, s{85+i}, v16", G[("QK", 4, 0)], G[("PV", 6, 0)], "ba"))
NHID = 4
grp = [(dp, cb) for dp in range(4) for cb in range(4)]
for dp, cb in grp[:NHID]:
    for t in norm_ops(dp, cb, False): Fl.append(F(t, G[("PV", 7, dp)] + 16 + 3, NATT - 1, "nrm"))
for u in (4, 5):
    g = gL + 1 + (u - 4) * 16
    for i, t in enumerate(p16_reads(lambda tile, s: woreg(u, tile, s), RS(u) * UNIT)): Fl.append(F(t, g + i, g + 8 + i, "wor", tag=("RW", u), need=[("W", u)] if i == 0 else None))
E89 = OPT.get("e89", 1)
for u in (8, 9)[:2 * E89]:
    p = wo_pre(u, f"s_add_u32 m0, s63, {RS(u)*UNIT}"); spread_dma(Fl, gL + 22 + (u - 8) * 24, p[:2], dma4("s60", nt("wo")), p[2:], ("W", u), [("RW", u - 4)], 6)
assert not psn and not pf
schedule(st, M, Fl, reserve=RES, verbose="attn", mem2=("rd", "wor"), minback=OPT.get("minback", 10), pairfirst=lambda g: G[("QK", 7, 0)] - OPT.get("pfa", -1000) <= g < gL)
stamp("attn")
A("ds_write_b32 v31, v254")
for u in (6, 7):
    for i, t in enumerate(p16_reads(lambda tile, s: woreg(u, tile, s), RS(u) * UNIT)): st.add(t, tag=("RW", u), need=[("W", u)] if i == 0 else None)
for n, (dp, cb) in enumerate(grp[NHID:8]):
    for t in norm_ops(dp, cb, True): st.add(t, tag="ow" if t.startswith("ds_write") else None)

def oB(i, cb): return ("v", 32 + ((i - 4) * 4 + cb) * 4) if 4 <= i < 8 else ("a", ((i if i < 4 else i - 4) * 4 + cb) * 4)
def pacc(i, tile, cb): return 96 + (i & 1) * 32 + (tile * 4 + cb) * 4
def oB_read(ks, cb):
    f, r = oB(ks, cb); return f"ds_read_b128 {f}[{r}:{r+3}], v{2 + ((ks>>1)&3)} offset:{(((ks>>3)*2+(ks&1))*4+cb)*1024}"
with Capture() as osu:
    A(f"""
s_mul_i32 s6, s35, {UNIT}
s_add_u32 s6, s6, {VB}
s_sub_u32 s60, s6, s63
v_add_u32 v20, s60, v10
s_mul_i32 s7, s35, {2*UNIT}
s_sub_u32 s60, s7, s63
v_add_u32 v21, s60, v10
s_mul_i32 s62, s35, {UNIT}
s_add_u32 s62, s62, {8*UNIT}
s_cmp_eq_u32 s35, 3
s_cselect_b32 s62, {MISC+8192}, s62
s_sub_u32 s60, s62, s63
v_add_u32 v15, s60, v10
v_and_b32 v6, 15, v1
v_lshrrev_b32 v7, 1, v6
v_and_b32 v6, 1, v1
v_lshrrev_b32 v8, 4, v1
v_lshlrev_b32 v31, 11, v7
v_lshl_add_u32 v31, v6, 4, v31
v_lshl_add_u32 v31, v8, 5, v31
v_lshrrev_b32 v7, 3, v1
v_and_b32 v8, 7, v1
v_lshlrev_b32 v23, 7, v8
v_and_b32 v7, 1, v7
v_mul_u32_u24 v7, {WS_F1 - WS_F2}, v7
v_add_u32 v23, v23, v7
v_lshlrev_b32 v19, 16, v8
v_mov_b32 v7, {OOB}
v_cmp_le_u32 vcc, 8, v1
v_cndmask_b32 v19, v19, v7, vcc
v_and_b32 v24, 31, v1
v_lshlrev_b32 v24, 4, v24
s_lshl_b32 s60, s57, 3
s_add_u32 s60, s60, s56
s_lshl_b32 s60, s60, 7
s_add_u32 s60, s60, {WS_F1}
s_lshl_b32 s61, s58, 3
s_add_u32 s61, s61, s59
s_lshl_b32 s61, s61, 7
s_add_u32 s61, s61, {WS_F2 - 128}
v_lshlrev_b32 v8, 2, v1
v_add_u32 v22, s60, v8
v_add_u32 v8, s61, v8
v_cmp_le_u32 vcc, 32, v1
v_cndmask_b32 v22, v22, v8, vcc
v_lshrrev_b32 v8, 5, v1
v_lshl_add_u32 v24, v8, 16, v24
v_mov_b32 v25, s34
; s93 = partial store base, s8 = its running column offset; s9 = own flag line (wave 0) ; s0 = flag check base; s1 = read base; s12 = running read column
s_lshl_b32 s61, s57, 3
s_add_u32 s61, s61, s56
s_lshl_b32 s93, s61, 16
s_lshl_b32 s60, s35, 7
s_add_u32 s93, s93, s60
s_add_u32 s93, s93, {WS_PART}
s_lshl_b32 s8, s14, 9
s_cmp_lg_u32 s35, 0
s_cselect_b32 s9, {OOB}, 0
s_lshl_b32 s0, s58, 10
s_add_u32 s0, s0, {WS_F2}
s_lshl_b32 s1, s58, 19
s_lshl_b32 s60, s59, 13
s_add_u32 s1, s1, s60
s_lshl_b32 s60, s35, 11
s_add_u32 s1, s1, s60
s_add_u32 s1, s1, {WS_PART}
s_and_b32 s12, s58, {OPT.get("rotmask", 7) & 3}
s_lshl_b32 s12, s12, 9
s_mov_b32 s15, 0
""")
    A(f"""
v_lshrrev_b32 v6, 5, v1
s_and_b32 s60, s58, {OPT.get("rotmask", 7) & 3}
v_add_u32 v6, s60, v6
v_add_u32 v7, 2, v6
v_and_b32 v6, 3, v6
v_and_b32 v7, 3, v7
v_and_b32 v8, 30, v1
v_lshlrev_b32 v8, 3, v8
v_lshl_add_u32 v6, v6, 8, v8
v_lshl_add_u32 v7, v7, 8, v8
v_lshlrev_b32 v240, 1, v6
v_lshlrev_b32 v241, 1, v7
v_add_u32 v242, {MODV}, v240
v_add_u32 v243, {MODV}, v241
v_and_b32 v241, 3, v1
v_lshlrev_b32 v241, 2, v241
v_add_u32 v241, {LGO}, v241
v_not_b32 v240, v25
ds_write_b32 v241, v240
v_mov_b32 v241, {LGO}
v_and_b32 v8, 1, v1
v_lshl_add_u32 v6, v8, 10, v6
v_lshl_add_u32 v7, v8, 10, v7
v_lshlrev_b32 v8, 4, v0
v_add_u32 v8, {WS_MOD2}, v8
s_lshl_b32 s10, s58, 16
s_lshl_b32 s60, s59, 13
s_add_u32 s10, s10, s60
s_lshl_b32 s60, s35, 11
s_add_u32 s10, s10, s60
""")
    srd(52, 4, 2048 * 1024)
    A("s_movk_i32 s11, 4096")
st.need("ow", "psn"); A("s_barrier")
A("ds_read_b32 v252, v253")
for ks in range(2):
    for cb in range(4): A(oB_read(ks, cb))
st.newphase(); stamp("norm")
def slot_m0(r): return f"s_add_u32 m0, s63, {r*UNIT}" if r < 4 else {4: "s_mov_b32 m0, s6", 5: "s_mov_b32 m0, s7", 6: f"s_add_u32 m0, s7, {UNIT}", 7: "s_mov_b32 m0, s62"}[r]
def slot_rd(r): return (r * UNIT, "v10") if r < 4 else {4: (0, "v20"), 5: (0, "v21"), 6: (UNIT, "v21"), 7: (0, "v15")}[r]
def part_cvt(n, cb): return [f"v_cvt_pk_bf16_f32 v{224+4*cb+k}, v{pacc(n,k>>1,cb)+2*(k&1)}, v{pacc(n,k>>1,cb)+2*(k&1)+1}" for k in range(4)] + ([f"v_min_u32 v{224+4*cb}, -2, v{224+4*cb}"] if n >= 2 else [])
FLAG = "buffer_store_dword v25, v22, s[48:51], s9 offen sc1"
def pread(n, soff): return [f"buffer_load_dwordx4 v[{160+16*n+4*gp}:{163+16*n+4*gp}], v24, s[48:51], {soff[gp]} offen sc1{' nt' if OPT.get('pnt') else ''}" for gp in range(4)]
M = []; Fl = []; RES = {}
slot = {u: (RS(u) if (u & 7) < 4 else u & 7) for u in range(8, 32)}
ld = [(10, slot[10], 1, None), (11, slot[11], 17, None), (12, 4, 33, None), (13, 5, 4 * 16 + 11, None), (14, 6, 5 * 16 + 11, None), (15, 7, 6 * 16 + 11, None)] + [(u, slot[u], (u - 9) * 16 + 11, u - 8) for u in range(16, 32)]
for u in range(32):
    n, kk = u >> 3, u & 7; g0 = len(M)
    for tile in range(2):
        for cb in range(4):
            for s in range(2):
                f, r = oB(2 * kk + s, cb)
                fa, ra = woreg(u, tile, s) if u < 8 else ("a", stg(u, tile, s))
                M.append(mf(pacc(n, tile, cb), ra, r, "0" if (kk == 0 and s == 0) else None, "v", fa, f))
    if 8 <= u + 1 < 32:
        off, ad = slot_rd(slot[u + 1])
        for i, t in enumerate(p16_reads(lambda tile, s: ("a", stg(u + 1, tile, s)), off, ad)):
            Fl.append(F(t, g0 + i, g0 + i + 1, "rd", tag=("R", u + 1), need=[("W", u + 1)] if i == 0 else None))
    RES[g0 + 15] = 1
Fl.append(F("v_cmp_lt_u32 vcc, s95, v252\ns_cbranch_vccnz L_redo", 2, 2, "gd"))
GW = OPT.get("gow", 40)
for i, (dp, cb) in enumerate(grp[8:]):
    o = norm_ops(dp, cb, True); g = i * (GW - 4) // 8
    Fl.append(F("\n".join(o[:-1]), g, g, "nrm")); Fl.append(F(o[-1], g + 1, g + 1, "nrm", tag="ow2"))
Fl.append(F(("barrier", ["ow2"]), GW, GW, "ob"))
i = 0
for ks in range(2, 16):
    for cb in range(4):
        e = i if ks < 8 else max(GW + 1 + i - 24, {14: 48, 15: 64}.get(ks, 0) + cb)
        f = F(oB_read(ks, cb), e, e + 1, "ob", tag="OB"); i += 1
        if ks < 8: f.order -= 1000
        Fl.append(f)
GX_ = GW + 38
Fl += osu.fillers(GW - 8, 118, "su")
if E89: ld = [(10, slot[10], 1, None), (11, slot[11], 21, None), (12, 4, GW + 4, None)] + [(13 + k, 5 + k, GX_ + 2 + 14 * k, None) for k in range(3)] + ld[6:]
else: ld = [(u, slot[u], GW - 6 + 12 * (u - 8), None) for u in range(8, 16)] + ld[6:]
for u, r, g, nd in ld:
    if u == 13: Fl.append(F(("barrier", ["OB"]), GX_, GX_, "dma"))
    p = wo_pre(u, slot_m0(r))
    spread_dma(Fl, g, p[:2], dma4("s60", nt("wo")), p[2:] + (["s_add_u32 s92, s92, 256", "s_and_b32 s92, s92, 1023"] if (u & 7) == 7 else []), ("W", u), [("R", nd)] if nd is not None else None, 5 if g < GW else 4 if (u > 15 or E89) else 3)
for n in range(3):
    g = (8 * n + 8) * 16
    Fl.append(F("s_add_u32 s61, s93, s8", g + 2, g + 8, "po"))
    SS = OPT.get("ss", 4)
    for cb in range(4):
        for t in part_cvt(n, cb): Fl.append(F(t, g + 2, g + 9 + SS * cb, "po"))
        if not OPT.get("nopart"): Fl.append(F(f"buffer_store_dwordx4 v[{224+4*cb}:{227+4*cb}], v31, s[48:51], s61 offen{'' if OPT.get('plainst') else ' sc1'}", g + 9 + SS * cb, g + 10 + SS * cb, "po", tag=("part", n)))
        Fl.append(F("s_add_u32 s61, s61, 16384" if cb < 3 else "s_add_u32 s8, s8, 512", g + 9, g + 12 + SS * cb, "po"))
    Fl.append(F("s_and_b32 s8, s8, 2047", g + 20, g + 14 + 3 * SS, "po"))
    gf = g + OPT.get("gf", 6 * 16 + 9)
    if n != 1: continue
    Fl.append(F(("barrier", [("part", n)]), gf, gf, "po"))
    Fl.append(F(FLAG, gf + 1, gf + 1, "po"))
Fl.append(F("buffer_load_dword v240, v23, s[48:51], s0 offen sc1", 30 * 16 + 8, 30 * 16 + 12, "po"))
for i, t in enumerate(["buffer_load_dwordx4 v[244:247], v6, s[52:55], s10 offen", "buffer_load_dwordx4 v[248:251], v7, s[52:55], s10 offen",
                       "buffer_load_dwordx4 v[252:255], v8, s[48:51], 0 offen sc1", "buffer_load_dwordx4 v[26:29], v8, s[48:51], s11 offen sc1"]):
    Fl.append(F(t, OPT.get("gsm", 23 * 16 + 14) + 16 * i, OPT.get("gsm", 23 * 16 + 14) + 4 + 16 * i, "sm"))
g = 23 * 16 + 12
w1s = ["s_min_u32 s62, s59, 6", "s_lshl_b32 s62, s62, 9", "s_lshl_b32 s60, s35, 7", "s_add_u32 s62, s62, s60", "s_add_u32 s36, s16, s62\ns_addc_u32 s37, s17, 0", f"s_sub_u32 s38, {512*3584}, s62", f"s_cmp_eq_u32 s59, {7 if OPT.get('j7', 0) else 9}\ns_cselect_b32 s38, 0, s38", "s_lshl_b32 s14, s58, 1", f"s_and_b32 s14, s14, {6 if OPT.get('crot', 1) else 0}", "s_add_u32 s14, s14, s59", "s_and_b32 s92, s14, 7", f"s_mul_i32 s92, s92, {64*3584}",
       "v_bfe_u32 v2, v1, 2, 3", "v_mul_u32_u24 v2, 3584, v2", "v_lshrrev_b32 v3, 5, v1", "v_lshl_add_u32 v2, v3, 6, v2", "v_and_b32 v3, 3, v1", "v_lshl_add_u32 v11, v3, 4, v2",
       f"v_add_u32 v12, {8*3584-1032}, v11", f"v_add_u32 v13, {16*3584-2064}, v11", f"v_add_u32 v14, {24*3584-3096}, v11"]
for t in w1s: Fl.append(F(t, g, g + 14, "dma"))
NW0 = OPT.get('nw0', 7)
def w1_pre(): return ["s_mov_b32 s60, s92", f"s_add_u32 s92, s92, {32*3584}", f"s_cmp_eq_u32 s92, {512*3584}\ns_cselect_b32 s92, 0, s92"]
for k in range(NW0):
    p = w1_pre(); spread_dma(Fl, 24 * 16 + 12 + 16 * k - (k // 2) * 3, [slot_m0(slot[24 + k])] + p[:1], dma4("s60"), p[1:], ("W1", k), [("R", 24 + k)], 3)
m2 = ["buffer_load_dwordx4 v[252:255], v8, s[48:51], 0 offen sc1", "buffer_load_dwordx4 v[26:29], v8, s[48:51], s11 offen sc1"]
def mod2_check():
    cond2 = """v_cmp_ne_u32 vcc, s34, v253
    v_cmp_ne_u32 s[100:101], s34, v255
    s_or_b64 vcc, vcc, s[100:101]
    v_cmp_ne_u32 s[100:101], s34, v27
    s_or_b64 vcc, vcc, s[100:101]
    v_cmp_ne_u32 s[100:101], s34, v29
    s_or_b64 vcc, vcc, s[100:101]"""
    A(cond2); A("s_cbranch_vccz L_pm2_x")
    keep = (list(st.vm), list(st.lg), list(st.hist))
    spin("L_pm2", ["s_sleep 8"] + m2, cond2)
    st.vm, st.lg, st.hist = keep
with Capture() as cp:
    A(f"""
s_cmp_lt_u32 s35, 2
s_cselect_b32 s60, 1.0, 0
v_lshlrev_b32 v160, 16, v252
v_and_b32 v161, 0xffff0000, v252
v_lshlrev_b32 v162, 16, v254
v_and_b32 v163, 0xffff0000, v254
v_lshlrev_b32 v164, 16, v26
v_and_b32 v165, 0xffff0000, v26
v_lshlrev_b32 v166, 16, v28
v_and_b32 v167, 0xffff0000, v28
v_add_f32 v164, s60, v164
v_add_f32 v165, s60, v165
v_add_f32 v166, s60, v166
v_add_f32 v167, s60, v167
v_lshlrev_b32 v8, 4, v0
v_add_u32 v8, {MODV}, v8
ds_write_b128 v8, v[160:163]
ds_write_b128 v8, v[164:167] offset:4096
""")
Fl.append(F(("call", mod2_check), 30 * 16 + 9, 30 * 16 + 9, "m2"))
Fl += cp.fillers(30 * 16 + 10, 31 * 16 + 8, "m2")
for u in (8, 16, 24): Fl += stampF(f"O{u}", u * 16)
for u in (16, 20, 22, 23, 24, 25, 26, 27, 28, 29, 30, 31): Fl += stampF(f"u{u}", u * 16)
Fl += stampF("u32", 511)
schedule(st, M, Fl, reserve=RES, verbose="O")
for cb in range(4):
    for t in part_cvt(3, cb): A(t)
A("s_add_u32 s61, s93, s8")
for cb in range(4):
    st.add(f"buffer_store_dwordx4 v[{224+4*cb}:{227+4*cb}], v31, s[48:51], s61 offen sc1", tag=("part", 3))
    if cb < 3: A("s_add_u32 s61, s61, 16384")
stamp("O")

def w1reg(half, s, tile): return ((half * 16 + s) * 2 + tile) * 4
def w2reg(ks, tp, tile):
    o = tp * 8 + tile * 4
    if ks < 4: return ("v", 160 + ks * 16 + o)
    if ks < 9: return ("a", (ks - 4) * 16 + o)
    if ks < 13: return ("a", 192 + (ks - 9) * 16 + o)
    return ("v", 208 + o)
KS2 = [(p, 0) for p in range(7)] + [(p, 1) for p in range(7)]
class WS:
    nd = NW0; nr = 0; slot_of = {k: slot[24 + k] for k in range(NW0)}; last = {slot[24 + k]: k for k in range(NW0)}
def w_dma(n, slots):
    for _ in range(n):
        u = WS.nd; WS.nd += 1
        r = [x for x in slots if WS.last.get(x, -1) < WS.nr][0]
        A(slot_m0(r))
        if u == 16: w2_setup()
        A("\n".join(w1_pre()) if u < 16 else "\n".join(w2_pre(u - 16)))
        for i, t in enumerate(dma4("s60")): st.add(t, tag=("W1", u), need=[("R1", WS.last[r])] if (i == 0 and r in WS.last) else None)
        WS.slot_of[u] = r; WS.last[r] = u
def w_ops(n, slots):
    global A
    got = []; oa, oadd = A, st.add
    A = lambda t: got.extend((l.strip(), None, None) for l in t.split("\n") if l.strip())
    st.add = lambda t, tag=None, need=None: got.append((t, tag, need))
    try: w_dma(n, slots)
    finally: A = oa; del st.add
    return got
def interleave(lines, ops, every):
    for i, l in enumerate(lines):
        A(l)
        if i % every == every - 1 and not l.startswith(("v_cmp", "s_")):
            while ops:
                t, tag, need = ops.pop(0); st.add(t, tag=tag, need=need)
                if t.startswith("buffer"): break
    for t, tag, need in ops: st.add(t, tag=tag, need=need)
def w_read(n):
    for _ in range(n):
        u = WS.nr; WS.nr += 1; r = WS.slot_of[u]
        if u < 16:
            off, ad = slot_rd(r); L = p8_reads(lambda tp, tile: ("a", w1reg(tp, u, tile)), off, "v9" if r < 4 else ad)
        else:
            L = p8_reads(lambda tp, tile: w2reg(u - 16, tp, tile), r * UNIT if r < 4 else 0, "v9" if r < 4 else "v20")
        for i, t in enumerate(L): st.add(t, tag=("R1", u), need=[("W1", u)] if i == 0 else None)
def w2_setup():
    voffs8(1024)
    A(f"""
    s_lshl_b32 s60, s35, 16
    s_lshl_b32 s61, s59, 7
    s_add_u32 s60, s60, s61
    s_add_u32 s36, s20, s60
    s_addc_u32 s37, s21, 0
    s_sub_u32 s38, {1792*1024}, s60
    s_sub_u32 s7, s14, 7
    s_cselect_b32 s7, s14, s7
    s_mul_i32 s8, s7, 40960
    s_lshl_b32 s7, s7, 18
    """)
def w2_pre(ks): return [f"s_add_u32 s60, s7, {(ks // 7) * 32768}", "s_add_u32 s7, s7, 0x40000", f"s_cmp_eq_u32 s7, {7 << 18}\ns_cselect_b32 s7, 0, s7"]
ALL7 = [0, 1, 2, 3, 4, 5, 6]
srd(52, 18, 3584)
A("v_lshrrev_b32 v2, 4, v1\nv_lshlrev_b32 v2, 4, v2\nbuffer_load_dwordx4 v[80:83], v2, s[52:55], s62 offen\nbuffer_load_dwordx4 v[84:87], v2, s[52:55], s62 offen offset:64")
A("v_subrev_u32 v2, v10, v9\nv_add_u32 v20, v2, v20\nv_add_u32 v21, v2, v21")
stamp("elp")
def wave0_wait(lab, word, test, probe, ex=None):
    keep = None
    A(f"{test}\ns_cmp_eq_u32 s35, 0\ns_cbranch_scc1 {lab}_0\ns_cbranch_vccz {lab}_e\ns_mov_b32 s3, {SPIN * 8}")
    keep = (list(st.vm), list(st.lg))
    A(f"{lab}_l:\nds_read_b32 v240, v241 offset:{4*word}\ns_sub_u32 s3, s3, 1\ns_waitcnt lgkmcnt(0)\nv_cmp_ne_u32 vcc, s34, v240\ns_cmp_eq_u32 s3, 0\ns_cbranch_scc1 {lab}_e\ns_cbranch_vccz {lab}_e\ns_sleep 1\ns_branch {lab}_l")
    A(f"{lab}_0:\ns_cbranch_vccz {lab}_x")
    if ex: A(f"s_mov_b64 exec, {ex}")
    spin(lab, probe, test)
    if ex: A("s_mov_b64 exec, -1")
    A(f"ds_write_b32 v241, v25 offset:{4*word}\n{lab}_e:")
    st.vm, st.lg = keep; st.hist = []
wave0_wait("L_rdy", 0, "v_cmp_ne_u32 vcc, s34, v240", ["v_mov_b32 v240, 0", "buffer_atomic_add v240, v23, s[48:51], s0 offen sc0 sc1"], "0xffff")
def pre_off(n): return f"s_add_u32 s13, s12, {n*512}\ns_and_b32 s13, s13, 2047\ns_add_u32 s13, s13, s1"
def pread_ops(n):
    o = pre_off(n).split("\n")
    for gp, t in enumerate(pread(n, ["s13"] * 4)): o += [t] + (["s_add_u32 s13, s13, 0x20000"] if gp < 3 else [])
    return o
def preads(n, tag=None):
    for t in pread_ops(n): st.add(t, tag=tag if t.startswith("buffer") else None)
def hint(off): return ["v_mov_b32 v240, 0", f"buffer_atomic_add v240, v19, s[48:51], s15 offen offset:{off} sc0 sc1"]
def wait_hint(lab, word, off):
    wave0_wait(lab, word, "v_cmp_eq_u32 vcc, -1, v240", hint(off))
for n in range(2): preads(n)
A(pre_off(3).replace("s13", "s15"))
for t in hint(384): A(t)
w_read(NW0)
SP2 = OPT.get("sp2", 0)
if SP2: preads(2, "p2")
A("v_mov_b32 v2, 0x3f80\nv_mov_b32 v3, 0x3f800000")
def accq(n):
    for r in range(4): A(f"v_lshlrev_b32 v{96+8*n+2*r}, 16, v{160+16*n+r}\nv_and_b32 v{97+8*n+2*r}, 0xffff0000, v{160+16*n+r}")
    for gp in range(1, 4):
        for r in range(4): A(f"v_dot2c_f32_bf16 v{96+8*n+2*r}, v{160+16*n+4*gp+r}, v2\nv_dot2c_f32_bf16 v{97+8*n+2*r}, v{160+16*n+4*gp+r}, v3")
OWN5 = [0, 1, 2, 3, 4]; OWN7 = [0, 1, 2, 3, 4, 5, 6]
A(f"""
s_mul_i32 s6, s35, {UNIT}
s_add_u32 s6, s6, 65536
s_sub_u32 s60, s6, s63
s_waitcnt lgkmcnt(0)
v_add_u32 v20, s60, v9
s_barrier
""")
stamp("epr")
w_dma(OPT.get("nA", 0), OWN5)
def modrd(dst, vec):
    for h in range(2):
        for q in range(2): A(f"ds_read_b128 v[{dst+8*h+4*q}:{dst+8*h+4*q+3}], v{242+h} offset:{vec*2048 + q*16}")
modrd(32, 0); modrd(48, 2); modrd(64, 1)
wait_hint("L_hp", 1, 384)
stamp("f1st")
if SP2:
    preads(3, "p23")
    A("v_max3_u32 v240, v192, v196, v200\nv_max_u32 v240, v240, v204\nv_cmp_eq_u32 vcc, -1, v240\ns_cbranch_vccz L_had2")
    keep = list(st.vm); preads(2); A("s_waitcnt vmcnt(0)\nL_had2:"); st.vm = keep
else: preads(2, "p23"); preads(3, "p23")
w_dma(OPT.get("nB", 4), [5, 6, 0, 1, 2, 3, 4])
for r in range(8): A(f"v_lshlrev_b32 v{144+2*r}, 16, v{244+r}\nv_and_b32 v{145+2*r}, 0xffff0000, v{244+r}")
accq(0); accq(1)
chk23 = "v_max3_u32 v240, v192, v196, v200\nv_max3_u32 v240, v240, v204, v208\nv_max3_u32 v240, v240, v212, v216\nv_max_u32 v240, v240, v220\nv_cmp_eq_u32 vcc, -1, v240"
st.need("p23")
A(chk23); A("s_cbranch_vccz L_p23_x")
keep = (list(st.vm), list(st.lg)); spin("L_p23", ["s_sleep 2"] + pread_ops(2) + pread_ops(3), chk23); st.vm, st.lg = keep
stamp("f1ok")
def row_stats(x):
    A(f"v_pk_add_f32 v[96:97], v[{x}:{x+1}], v[{x+2}:{x+3}]\nv_pk_mul_f32 v[98:99], v[{x}:{x+1}], v[{x}:{x+1}]")
    A(f"v_pk_fma_f32 v[98:99], v[{x+2}:{x+3}], v[{x+2}:{x+3}], v[98:99]")
    for r in range(2, 8):
        A(f"v_pk_add_f32 v[96:97], v[96:97], v[{x+2*r}:{x+2*r+1}]\nv_pk_fma_f32 v[98:99], v[{x+2*r}:{x+2*r+1}], v[{x+2*r}:{x+2*r+1}], v[98:99]")
    A("v_add_f32 v96, v96, v97\nv_add_f32 v98, v98, v99")
    for d in ("quad_perm:[2,3,0,1]", "row_ror:4", "row_ror:8"):
        A(f"v_add_f32_dpp v96, v96, v96 {d} row_mask:0xf bank_mask:0xf\nv_add_f32_dpp v98, v98, v98 {d} row_mask:0xf bank_mask:0xf")
    for sw in ("16", "32"):
        A(f"v_mov_b32 v97, v96\nv_mov_b32 v99, v98\nv_permlane{sw}_swap_b32 v96, v97\nv_permlane{sw}_swap_b32 v98, v99\nv_add_f32 v96, v96, v97\nv_add_f32 v98, v98, v99")
    A(f"""v_mul_f32 v97, {f2u(1/512)}, v96
    v_mul_f32 v98, {f2u(1/512)}, v98
    v_fma_f32 v98, -v97, v97, v98
    v_max_f32 v98, 0, v98
    v_add_f32 v98, {f2u(1e-5)}, v98
    v_rsq_f32 v96, v98
    v_mul_f32_e64 v98, -v97, v96""")
with Capture() as lnc:
    accq(2); accq(3)
    for h in range(2):
        for r in range(8): A(f"v_permlane32_swap_b32 v{96+16*h+r}, v{104+16*h+r}")
    for h in range(2):
        for r in range(0, 8, 2): A(f"v_pk_add_f32 v[{128+8*h+r}:{129+8*h+r}], v[{96+16*h+r}:{97+16*h+r}], v[{104+16*h+r}:{105+16*h+r}]")
    for r in range(8): A(f"v_pk_fma_f32 v[{128+2*r}:{129+2*r}], v[{128+2*r}:{129+2*r}], v[{32+2*r}:{33+2*r}], v[{144+2*r}:{145+2*r}]")
    for r in range(8): A(f"v_cvt_pk_bf16_f32 v{144+r}, v{128+2*r}, v{129+2*r}")
    row_stats(128)
    for r in range(8): A(f"v_pk_fma_f32 v[{128+2*r}:{129+2*r}], v[{128+2*r}:{129+2*r}], v[96:97], v[98:99] op_sel_hi:[1,0,0]")
    for r in range(8): A(f"v_pk_fma_f32 v[{128+2*r}:{129+2*r}], v[{128+2*r}:{129+2*r}], v[{48+2*r}:{49+2*r}], v[{64+2*r}:{65+2*r}]")
    row_stats(128)
    for r in range(8): A(f"v_pk_fma_f32 v[{128+2*r}:{129+2*r}], v[{128+2*r}:{129+2*r}], v[96:97], v[98:99] op_sel_hi:[1,0,0]")
    for r in range(8): A(f"v_cvt_pk_bf16_f32 v{152+r}, v{128+2*r}, v{129+2*r}")
interleave(lnc.lines, w_ops(OPT.get("nL", 0), OWN7), OPT.get("evl", 18))
A(f"s_add_u32 s61, s10, {WS_Y}")
st.add("buffer_store_dwordx4 v[152:155], v6, s[48:51], s61 offen sc1", tag="y")
st.add("buffer_store_dwordx4 v[156:159], v7, s[48:51], s61 offen sc1", tag="y")
A(f"s_add_u32 s61, s10, {WS_X1}")
st.add("buffer_store_dwordx4 v[144:147], v6, s[48:51], s61 offen sc1", tag="y")
st.add("buffer_store_dwordx4 v[148:151], v7, s[48:51], s61 offen sc1", tag="y")
stamp("ysent")
w_read(WS.nd - WS.nr); w_dma(OPT.get("nD", 3), OWN5)
A(f"""
v_lshrrev_b32 v2, 4, v1
s_lshl_b32 s12, s58, 16
s_and_b32 s11, s35, 1
s_lshl_b32 s11, s11, 14
s_add_u32 s12, s12, s11
s_add_u32 s12, s12, {WS_Y}
s_lshr_b32 s15, s35, 1
s_lshl_b32 s61, s15, 13
s_add_u32 s11, s11, s61
s_mul_i32 s15, s15, 0x2040
s_lshl_b32 s61, s58, 3
s_add_u32 s61, s61, s59
s_lshl_b32 s9, s61, 7
s_add_u32 s9, s9, {WS_F3}
s_cmp_lg_u32 s35, 0
s_cselect_b32 s9, {OOB}, s9
s_lshl_b32 s0, s58, 2
s_add_u32 s0, s0, s35
s_lshl_b32 s0, s0, 8
s_add_u32 s0, s0, {WS_F3}
v_min_u32 v23, 2, v1
v_lshrrev_b32 v22, 1, v23
v_lshlrev_b32 v23, 7, v23
v_lshl_add_u32 v23, v22, 28, v23
v_and_b32 v22, 31, v1
v_lshlrev_b32 v22, 2, v22
v_lshrrev_b32 v4, 3, v1
v_lshrrev_b32 v5, 1, v4
v_xor_b32 v5, v5, v1
v_and_b32 v5, 7, v5
v_lshlrev_b32 v5, 4, v5
v_lshl_add_u32 v4, v4, 10, v5
v_xor_b32 v4, s15, v4
v_bfe_u32 v15, v1, 1, 3
v_xor_b32 v15, v15, v2
v_lshlrev_b32 v15, 4, v15
v_and_b32 v17, 7, v1
v_lshl_add_u32 v15, v17, 7, v15
v_bfe_u32 v17, v1, 3, 1
v_lshl_add_u32 v15, v17, 13, v15
v_xor_b32 v17, 64, v15
""")
for r in range(8): A(f"v_lshlrev_b32 v{224+2*r}, 16, v{80+r}\nv_and_b32 v{225+2*r}, 0xffff0000, v{80+r}")
stamp("ewr")
st.need("y")
stamp("eyack")
A("s_barrier"); A("buffer_store_dword v25, v22, s[48:51], s9 offen sc1")
w_read(WS.nd - WS.nr)
def y_ops(c):
    o = [("v_add_u32 v4, 32768, v4", None)] if c else [("s_and_b32 s13, s14, 7", None), ("s_lshl_b32 s13, s13, 7", None), ("v_add_u32 v4, s12, v4", None)]
    for sp in range(8):
        o += [(f"s_add_u32 m0, s11, {c*32768 + sp*1024}", None), ("buffer_load_dwordx4 v4, s[48:51], s13 offen sc1 lds", ("Y", 2 if c else sp >> 2))]
        o += [("s_add_u32 s13, s13, 128", None), ("s_and_b32 s13, s13, 1023", None)]
    return o
probe = ["v_mov_b32 v240, 0", "buffer_atomic_add v240, v23, s[48:51], s0 offen sc0 sc1"]; ctest = "v_cmp_ne_u32 vcc, s34, v240\ns_and_b64 vcc, vcc, 3"
w_dma(OPT.get("nE", 2), OWN5)
for t in probe: A(t)
w_dma(OPT.get("nE2", 2), OWN5)
stamp("epre2")
A(ctest); A("s_cbranch_vccz L_pf2_x")
keep = (list(st.vm), list(st.lg)); spin("L_pf2", probe, ctest); st.vm, st.lg = keep
A("s_waitcnt lgkmcnt(0)\ns_barrier")
stamp("ebar2")
for t, tag in y_ops(0): st.add(t, tag=tag)
assert WS.nd > 16
stamp("f2ok")
if OPT.get("warm2", 1): warm("L_w2")
A(f"s_lshl_b32 s60, s2, 2\ns_add_u32 s60, s60, s35\ns_cmp_lg_u32 s60, 1\ns_cbranch_scc1 L_noep\nv_lshlrev_b32 v2, 7, v1\nv_add_u32 v2, {WS_F1}, v2\ns_mov_b32 s60, 0x2000\ns_mov_b32 s61, 0x4000\ns_mov_b32 s15, 0x6000")
keep = (list(st.vm), list(st.lg))
spin("L_ep", [f"buffer_load_dword v{40+i}, v2, s[48:51], {['0', 's60', 's61', 's15'][i]} offen sc1" for i in range(4)],
     "v_cmp_ne_u32 vcc, s34, v40\n" + "".join(f"v_cmp_ne_u32 s[100:101], s34, v{40+i}\ns_or_b64 vcc, vcc, s[100:101]\n" for i in range(1, 4)))
A("v_mov_b32 v2, 0\nbuffer_store_dword v25, v2, s[48:51], 0 offen sc1\nL_noep:"); st.vm, st.lg = keep
st.need(("Y", 0))
A("s_barrier")
stamp("Yin")

def yb(n, s, c2): return 96 + (n & 1) * 32 + (s * 2 + c2) * 4
def hacc(half, tile, cb): return 32 + half * 32 + (tile * 4 + cb) * 4
def yreads(n):
    cp, k4 = (n >> 2) & 1, n & 3
    return [f"ds_read_b128 v[{yb(n,s,c2)}:{yb(n,s,c2)+3}], v{15 if s % 2 == 0 else 17} offset:{(cp*2+c2)*16384 + (k4*2+(s>>1))*1024}" for c2 in range(2) for s in range(4)]
C1 = -2 * 0.7978845608028654 * 1.4426950408889634; C2 = C1 * 0.044715
def gelu_stages(q):
    half, cp = q >> 1, q & 1
    X = [hacc(half, t, cp * 2 + c2) + r for c2 in range(2) for t in range(2) for r in (0, 2)]; T = [240 + 2 * i for i in range(8)]
    pr = lambda r: f"v[{r}:{r+1}]"
    a = [f"v_pk_mul_f32 {pr(t)}, {pr(x)}, {pr(x)}" for x, t in zip(X, T)] + [f"v_pk_fma_f32 {pr(t)}, {pr(t)}, s[92:93], v[26:27] op_sel_hi:[1,0,0]" for t in T] + [f"v_pk_mul_f32 {pr(t)}, {pr(x)}, {pr(t)}" for x, t in zip(X, T)]
    b = [f"v_exp_f32 v{240+i}, v{240+i}" for i in range(16)]
    c = [f"v_pk_add_f32 {pr(t)}, {pr(t)}, 1.0 op_sel_hi:[1,0]" for t in T]
    d = [f"v_rcp_f32 v{240+i}, v{240+i}" for i in range(16)]
    e = [f"v_pk_mul_f32 {pr(x)}, {pr(x)}, {pr(t)}" for x, t in zip(X, T)]
    st_ = []
    for c2 in range(2):
        cb = cp * 2 + c2; dd = hacc(half, 0, cb)
        e += [f"v_cvt_pk_bf16_f32 v{dd+k}, v{X[4*c2+k]}, v{X[4*c2+k]+1}" for k in range(4)]
        e.append(f"v_min_u32 v{dd}, -2, v{dd}")
        st_.append(f"buffer_store_dwordx4 v[{dd}:{dd+3}], v16, s[48:51], s{93+1+half} offen offset:{cb*1024} sc1")
    return a, b, c, d, e, st_
def flag3(q): return f"buffer_store_dword v25, v22, s[48:51], s11 offen offset:{q*512} sc1"
for t in yreads(0): A(t)
late_w = []
assert WS.nr >= 12
while WS.nr < min(WS.nd, 20):
    u = WS.nr; WS.nr += 1; r = WS.slot_of[u]
    late_w += [(t, u) for t in p8_reads((lambda tp, tile: ("a", w1reg(tp, u, tile))) if u < 16 else (lambda tp, tile: w2reg(u - 16, tp, tile)), r * UNIT if r < 4 else 0, "v9" if r < 4 else "v20")]
A(f"""
s_mov_b32 s92, {f2u(C2)}
v_mov_b32 v26, {f2u(C1)}
s_lshl_b32 s60, s58, 3
s_add_u32 s60, s60, s59
s_mul_i32 s94, s60, 40960
s_mul_i32 s61, s35, 5120
s_add_u32 s94, s94, s61
s_add_u32 s94, s94, {WS_H1}
s_cmp_eq_u32 s59, {7 if OPT.get('j7', 0) else 9}
s_cselect_b32 s94, {OOB}, s94
s_add_u32 s95, s94, 20480
s_mul_i32 s1, s58, 327680
s_add_u32 s1, s1, s61
s_add_u32 s1, s1, {WS_H1}
""")
NE = WS.nd - 16
W2S = {ks: ([0, 1, 2, 3, 4] * 3)[ks - NE] for ks in range(NE, 14)}
if NE == 5: W2S[4] = WS.slot_of[20]
def w2_m0(r): return f"s_add_u32 m0, s63, {r*UNIT}" if r < 4 else "s_mov_b32 m0, s6"
def w2_reads(ks): r = W2S[ks]; return p8_reads(lambda tp, tile: w2reg(ks, tp, tile), r * UNIT if r < 4 else 0, "v9" if r < 4 else "v20")
def hB(Q, k, c2):
    r = (k * 2 + c2) * 4
    if Q == 0: return ("a", 80 + r) if r < 48 else ("v", 224 + r - 48)
    if Q == 2: return ("v", 32 + r if r < 40 else (80 + r - 40 if r < 48 else 232 + r - 48))
    return [None, ("a", 136 + r), None, ("a", 80 + r)][Q]
def h_loads(Q, run="s8", tmp="s10"):
    o = []
    for k in range(7):
        o.append(f"s_add_u32 {tmp}, s1, {run}")
        for c2 in range(2):
            f, r = hB(Q, k, c2); o.append(f"buffer_load_dwordx4 {f}[{r}:{r+3}], v{16 + 2*(Q>>1)}, s[48:51], {tmp} offen offset:{((Q&1)*2+c2)*1024} sc1")
        o += [f"s_add_u32 {run}, {run}, 40960", f"s_cmp_eq_u32 {run}, {7 * 40960}\ns_cselect_b32 {run}, 0, {run}"]
    return o
def chk3(q): return f"buffer_load_dword v{28 + (q&1)}, v23, s[48:51], s0 offen offset:{q*512} sc1"
A("v_add_u32 v18, 20480, v16\ns_mov_b32 s9, s8")
M = []; Fl = []; RES = {}
for n in range(16):
    q = n >> 2; half, cp, k4 = q >> 1, q & 1, n & 3; g0 = len(M)
    for tile in range(2):
        for c2 in range(2):
            for s in range(4):
                M.append(mf(hacc(half, tile, cp * 2 + c2), w1reg(half, 4 * k4 + s, tile), yb(n, s, c2), (224 + half * 8 + tile * 4) if (k4 == 0 and s == 0) else None, "v", "a", "v"))
    if n == 0:
        nl = len(late_w)
        LW = OPT.get("lws", 3)
        for i, (t, u) in enumerate(late_w): Fl.append(F(t, i * LW // 4 if i < nl else 49 + (i - nl) // 2, i * LW // 4 if i < nl else 49 + (i - nl) // 2, "lw", tag=("LW", i >> 3), need=[("W1", u)] if i % 8 == 0 else None))
    if n in (1, 3): Fl.append(F(("barrier", [("Y", 1 + n // 2)]), g0, g0, "rd"))
    if n < 15:
        for i, t in enumerate(yreads(n + 1)): Fl.append(F(t, g0 + i, g0 + i + 1, "rd"))
    RES[g0 + 15] = 1
g = 0
for t, tag in y_ops(1):
    Fl.append(F(t, max(0, g - 3) if not tag else g, g, "dma", tag=tag))
    if tag: g += OPT.get("ys", 3)
nlw = len(late_w) // 8; lslot = [WS.slot_of[u] for u in range(WS.nr - nlw, WS.nr)]
free = [(r, None) for r in range(5) if r not in lslot and not (NE == 5 and r == W2S[4])] + [(r, ("LW", i)) for i, r in enumerate(lslot)]
ev = []; gd = OPT.get("gw2", 26); rdg = {}; PACE = OPT.get("pace", 14)
afree = {4: 81, 5: 86, 6: 97, 7: 102, 8: 113}
if NE == 5: rdg[4] = afree[4]; ev.append((rdg[4], "r", 4))
for ks in range(NE, 14):
    if free: r, nd = free.pop(0)
    else: r, nd = W2S[ks - 5], ("R2", ks - 5); gd = max(gd, rdg[ks - 5] + 8)
    W2S[ks] = r; ev.append((gd, "d", ks, nd))
    if ks < 9: rdg[ks] = max(gd + 44, afree.get(ks, 0)); ev.append((rdg[ks], "r", ks))
    gd += PACE
for e in sorted(ev, key=lambda e: e[0]):
    g, kind, ks = e[:3]
    if kind == "d":
        p = w2_pre(ks); spread_dma(Fl, g, [w2_m0(W2S[ks])] + p[:1], dma4("s60"), p[1:], ("W2", ks), [e[3]], 3)
    else:
        for k, t in enumerate(w2_reads(ks)): Fl.append(F(t, g + k // 2, g + (k + 1) // 2, "w2r", tag=("R2", ks), need=[("W2", ks)] if k == 0 else None))
CAP = {}
for q in range(3):
    g = 64 * (q + 1) + 4; a_, b_, c_, d_, e_, st_ = gelu_stages(q)
    Fl.append(F("\n".join(a_), g, g, "gelu"))
    for i, t in enumerate(b_): Fl.append(F(t, g + 1 + i, g + 1 + i, "gelu"))
    Fl.append(F("\n".join(c_), g + 18, g + 18, "gelu"))
    for i, t in enumerate(d_): Fl.append(F(t, g + 19 + i, g + 19 + i, "gelu"))
    Fl.append(F("\n".join(e_), g + 36, g + 36, "gelu"))
    for i, t in enumerate(st_): Fl.append(F(t, g + 37 + 2 * i, g + 37 + 2 * i, "gelu", tag=("h1", q)))
    for k in range(g + 1, g + 35): CAP[k] = 3
def h_check(Q):
    o = []
    for k in range(7):
        for c2 in range(2):
            f, r = hB(Q, k, c2)
            if f == "a": o.append(f"v_accvgpr_read_b32 v29, a{r}"); r = 29
            o.append(f"v_mov_b32 v28, v{r}" if not (k or c2) else f"v_max_u32 v28, v28, v{r}")
    return o
def check_F(Q, e, l, chain): return [F(t, e, l, chain, need=[("H", Q)] if i == 0 else None) for i, t in enumerate(h_check(Q))]
def spread_loads(Fl, ops, g0, step, chain="hl", tag=None):
    g = g0
    for t in ops:
        Fl.append(F(t, g - 2, g + 1, chain, tag=tag if t.startswith("buffer") else None))
        if t.startswith("buffer"): g += step
    return g
def have(Q):
    c = "v_cmp_eq_u32 vcc, -1, v28"
    A(c); A(f"s_cbranch_vccz L_h{Q}_x")
    keep = (list(st.vm), list(st.lg), list(st.hist))
    spin(f"L_h{Q}", ["s_sleep 4"] + [x for t in h_loads(Q, "s9", "s13") for x in t.split("\n")], "\n".join(h_check(Q)) + "\n" + c)
    st.vm, st.lg, st.hist = keep
    stamp(f"mchk{Q}")
spread_loads(Fl, h_loads(0), OPT.get("gl0", 176), 4, "ck", ("H", 0))
hl = h_loads(1); n1a = 5 * OPT.get("n1a", 3)
spread_loads(Fl, hl[:n1a], 234, 4, "ck", ("H", 1)); hl = hl[n1a:]
Fl += check_F(0, 241, 255, "hc")
for q in range(1, 4): Fl += stampF(f"mq{q}", 64 * q)
if OPT.get("abl"):
    ab = OPT["abl"]
    def drop(f):
        if isinstance(f.ins, tuple): return False
        t = f.ins.txt
        return (ab & 1 and t.endswith("lds")) or (ab & 2 and t.startswith("buffer_store_dwordx4")) or (ab & 4 and f.chain == "ck" and "dwordx4" in t) or (ab & 8 and f.chain == "w2r")
    Fl = [f for f in Fl if not drop(f)]
schedule(st, M, Fl, reserve=RES, verbose="G1", mem2=("rd", "dma", "w2r", "ck", "lw"), minback=0, capx=CAP)
stamp("G1")
a_, b_, c_, d_, e_, st_ = gelu_stages(3)
for i, t in enumerate(a_ + b_ + c_ + d_ + e_):
    A(t)
    if i % 9 == 8:
        while hl:
            x = hl.pop(0)
            if x.startswith("buffer"): st.add(x, tag=("H", 1)); break
            A(x)
for t in st_: A(t)
stamp("mgelu3")
have(0)
stamp("gelu")

def facc(tp, tile, cb): return 96 + (tp * 8 + tile * 4 + cb) * 4
def g2(Q):
    r = []
    for ch in (([0, 1], [2, 3], [4, 5, 6]) if Q < 2 else ([0, 1, 2, 3, 4, 5, 6],)):
        for tp in range(2):
            for tile in range(2):
                for c2 in range(2):
                    for k in ch:
                        fa, ra = w2reg((Q >> 1) * 7 + k, tp, tile); fb, rb = hB(Q, k, c2)
                        r.append(mf(facc(tp, tile, (Q & 1) * 2 + c2), ra, rb, "0" if (Q < 2 and k == 0) else None, "v", fa, fb))
    return r
Fl = []
for i in range(4):
    for k, t in enumerate(w2_reads(9 + i)): Fl.append(F(t, 8 * i + k, 8 * i + k + 1, "rd", need=[("W2", 9 + i)] if k == 0 else None))
g = spread_loads(Fl, hl, 0, 3, tag=("H", 1))
spread_loads(Fl, h_loads(2), max(g, OPT.get("gl2", 10)), OPT.get("st2", 3), tag=("H", 2))
Fl += check_F(1, 41, 55, "hc")
schedule(st, g2(0), Fl)
stamp("mg20")
have(1)
with Capture() as cp:
    A(f"""
v_and_b32 v2, 15, v1
v_lshlrev_b32 v2, 10, v2
v_lshrrev_b32 v3, 4, v1
v_lshl_add_u32 v2, v3, 4, v2
v_lshlrev_b32 v4, 4, v3
s_lshl_b32 s92, s58, 16
s_lshl_b32 s60, s35, 14
s_add_u32 s92, s92, s60
s_lshl_b32 s95, s59, 7
s_add_u32 s92, s92, s95
s_add_u32 s60, s92, {WS_X1}
""")
    srd(52, 22, 1024)
Fl = cp.fillers(0, 30, "su", ren=False)
Fl += [F(t, 32 + k, 33 + k, "rd", need=[("W2", 13)] if k == 0 else None) for k, t in enumerate(w2_reads(13))]
spread_loads(Fl, h_loads(3), OPT.get("gl3", 8), OPT.get("st2", 3), tag=("H", 3))
Fl += check_F(2, 46, 55, "hc")
schedule(st, g2(1), Fl)
stamp("G2a")
have(2)
def fwrite(cb, tp, tile): return f"ds_write_b128 v5, v[{facc(tp,tile,cb)}:{facc(tp,tile,cb)+3}] offset:{cb*16384 + (tp*2+tile)*1024}"
def fw_F(Q, n0, n1, shift):
    return [F(fwrite((Q & 1) * 2 + (n & 1), n >> 2, (n >> 1) & 1), 7 * n + 6 + 8 + shift, 7 * n + 6 + 8 + shift, "fw") for n in range(n0, n1)]
Fl = []
spread_loads(Fl, ["buffer_load_dwordx4 v[240:243], v2, s[48:51], s60 offen sc1", "buffer_load_dwordx4 v[244:247], v2, s[48:51], s60 offen offset:64 sc1",
             "buffer_load_dwordx4 v[248:251], v4, s[52:55], s95 offen", "buffer_load_dwordx4 v[252:255], v4, s[52:55], s95 offen offset:64"], 2, 6)
Fl += check_F(3, 41, 55, "hc")
for t in ["s_lshl_b32 s3, s35, 12", "v_add_u32 v5, s3, v16"]: Fl.append(F(t, 0, 2, "fw"))
Fl.append(F(("barrier", []), 3, 3, "fw"))
Fl += fw_F(2, 0, 6, 0)
schedule(st, g2(2), Fl)
stamp("mg22")
have(3)
with Capture() as cp:
    A(f"""
s_lshl_b32 s60, s35, 14
v_add_u32 v6, s60, v16
v_lshlrev_b32 v7, 5, v3
s_lshl_b32 s60, s59, 8
s_add_u32 s60, s60, {MODV + 3*2048}
v_add_u32 v7, s60, v7
v_and_b32 v8, 7, v1
v_lshlrev_b32 v8, 10, v8
v_lshl_add_u32 v8, v3, 4, v8
v_bfe_u32 v9, v1, 3, 1
v_lshl_add_u32 v8, v9, 6, v8
""")
    for tp in range(2):
        for q in range(2): A(f"ds_read_b128 v[{64+tp*8+4*q}:{67+tp*8+4*q}], v7 offset:{tp*128+q*16}")
    for r in range(8): A(f"v_lshlrev_b32 v{32+2*r}, 16, v{240+r}\nv_and_b32 v{33+2*r}, 0xffff0000, v{240+r}\nv_lshlrev_b32 v{48+2*r}, 16, v{248+r}\nv_and_b32 v{49+2*r}, 0xffff0000, v{248+r}")
    srd(52, 28, 2048 * 1024)
Fl = fw_F(2, 6, 8, -56 + 2) + fw_F(3, 0, 6, 0) + cp.fillers(0, 50, "su", ren=False)
schedule(st, g2(3), Fl)
stamp("G2")
A(fwrite(2, 1, 1)); A(fwrite(3, 1, 1))
stamp("mwr")
A("s_waitcnt lgkmcnt(0)\ns_barrier")
stamp("mbar")
for src in range(4):
    for n in range(4): A(f"ds_read_b128 v[{96+src*16+n*4}:{99+src*16+n*4}], v6 offset:{src*4096+n*1024}")
for src in range(4):
    for r in range(8): A(f"v_pk_add_f32 v[{48+2*r}:{49+2*r}], v[{48+2*r}:{49+2*r}], v[{96+src*16+2*r}:{97+src*16+2*r}]")
for r in range(8): A(f"v_pk_fma_f32 v[{32+2*r}:{33+2*r}], v[{48+2*r}:{49+2*r}], v[{64+2*r}:{65+2*r}], v[{32+2*r}:{33+2*r}]")
OM = OPT.get("outm", 1); ofl = ["", " sc1", " nt", " sc1 nt", " sc0 sc1"][OPT.get("outf", 3)]
if OM == 0:
    for h in range(2):
        for r in range(4 * h, 4 * h + 4): A(f"v_cvt_pk_bf16_f32 v{80+r}, v{32+2*r}, v{33+2*r}")
        A(f"buffer_store_dwordx4 v[{80+4*h}:{83+4*h}], v2, s[52:55], s92 offen offset:{64*h}{ofl}")
else:
    for r in range(8): A(f"v_cvt_pk_bf16_f32 v{80+r}, v{32+2*r}, v{33+2*r}")
    for r in range(4): A(f"v_mov_b32 v{88+r}, v{80+r}")
    for r in range(4): A(f"v_mov_b32_dpp v{80+r}, v{84+r} row_ror:8 row_mask:0xf bank_mask:0xc")
    A(f"buffer_store_dwordx4 v[80:83], v8, s[52:55], s92 offen{ofl}")
    for r in range(4): A(f"v_mov_b32_dpp v{84+r}, v{88+r} row_ror:8 row_mask:0xf bank_mask:0x3")
    A(f"s_add_u32 s92, s92, 8192\nbuffer_store_dwordx4 v[84:87], v8, s[52:55], s92 offen{ofl}")
if OPT["stamps"]:
    stamp("end")
    A("s_memrealtime s[96:97]\ns_waitcnt lgkmcnt(0)\ns_cmp_lg_u32 s35, " + str(OPT.get("sw", 0)) + "\ns_cbranch_scc1 L_end\ns_mov_b64 exec, 1")
    A(f"s_lshl_b32 s60, s2, 9\ns_add_u32 s60, s60, {WS_STAMP - WSO}\nv_mov_b32 v6, 0")
    A(f"s_mov_b32 s{64+stamp_n[0]-1}, s90")
    lst = [64 + n for n in range(stamp_n[0])] + [98, 96, 15]
    A("v_mov_b32 v3, 0")
    for n, s in enumerate(lst): A(f"v_mov_b32 v2, s{s}\nbuffer_store_dwordx2 v[2:3], v6, s[48:51], s60 offen offset:{n*8}\ns_nop 1")
    if OPT["dbg"] >= 0:
        srd(52, 30, 256)
        A(f"s_cmp_lg_u32 s2, {OPT['dbg']}\ns_cbranch_scc1 L_end")
        sel = [i for i in range(1, stamp_n[0]) if stamp_names[i] not in ("norm", "gelu", "G2a")][:14]
        for n, k in enumerate(sel): A(f"s_sub_u32 s60, s{64+k}, s64\nv_mov_b32 v2, s60\nbuffer_store_dword v2, v6, s[52:55], 0 offen offset:{4+n*4}\ns_nop 1")
        A("s_sub_u32 s60, s96, s98\nv_mov_b32 v2, s60\nbuffer_store_dword v2, v6, s[52:55], 0 offen offset:60")
        print("dbg order:", [stamp_names[k] for k in sel], "realtime")
    open(os.path.splitext(sys.argv[1])[0] + ".names", "w").write(" ".join(stamp_names))
    print("stamps:", len(lst))
if OPT.get("diag"):
    A(f"L_diag:\ns_memrealtime s[96:97]\ns_waitcnt lgkmcnt(0)\ns_sub_u32 s96, s96, s98\ns_cmp_lt_u32 s96, {OPT['diag'] * 100}\ns_cbranch_scc1 L_diag")
A("s_endpgm")
st.reset(); st.newphase()
A(f"""
L_redo:
s_waitcnt vmcnt(0) lgkmcnt(0)
s_nop 15
s_mov_b32 s95, 1
s_mov_b32 s3, 8
s_barrier
L_redo_c:
""")
pre, d, post = k_ops(0)
for t in pre + d + post: A(t)
A("s_waitcnt vmcnt(0)\ns_barrier")
for kt in range(4):
    for sx in range(4): A(f"ds_read_b128 a[{STG+4*sx}:{STG+4*sx+3}], v{17+sx} offset:{KA + kt*1024}")
    for cb in range(4):
        for sx in range(4): A(mf(S(0, cb), STG + 4 * sx, qop(sx, cb), None if sx else "0", "v", "a", "v"))
    for cb in range(4): A(f"v_max3_f32 v{FLOOR[cb]}, v{FLOOR[cb]}, v{S(0,cb)}, v{S(0,cb)+1}\nv_max3_f32 v{FLOOR[cb]}, v{FLOOR[cb]}, v{S(0,cb)+2}, v{S(0,cb)+3}")
A("s_barrier\ns_sub_u32 s3, s3, 1\ns_cmp_lg_u32 s3, 0\ns_cbranch_scc1 L_redo_c")
for t in attn_setup:
    if t.split()[1] not in ("s36,", "s37,", "s38,"): A(t)
for ops in (k_ops(0), k_ops(1), v_ops(0)):
    for t in ops[0] + ops[1] + ops[2]: A(t)
A("s_waitcnt vmcnt(0)\ns_barrier")
for sx in range(4): A(f"ds_read_b128 a[{STG+sx*4}:{STG+sx*4+3}], v{17+sx} offset:{KA}")
A("s_waitcnt lgkmcnt(0)\ns_branch L_attn")
st.raw(f"""L_end:
    s_endpgm
L_codeend:
.section .rodata,"a"
.p2align 6
.amdhsa_kernel {NAME}_kernel
  .amdhsa_next_free_vgpr 512
  .amdhsa_next_free_sgpr 102
  .amdhsa_accum_offset 256
  .amdhsa_group_segment_fixed_size 0
  .amdhsa_kernarg_size 120
  .amdhsa_user_sgpr_count 2
  .amdhsa_user_sgpr_kernarg_segment_ptr 1
  .amdhsa_system_sgpr_workgroup_id_x 1
.end_amdhsa_kernel""")
def with_stubs(txt):
    import subprocess, tempfile
    lines = txt.split("\n")
    isins = lambda l: l.startswith("    ") and l.strip() and not l.strip().startswith((".", ";"))
    NS = 24
    tail = "".join(f"L_stub{k}:\n" for k in range(NS))
    with tempfile.TemporaryDirectory() as d:
        open(d + "/a.s", "w").write(txt.replace("L_codeend:", tail + "L_codeend:").replace("@", ""))
        subprocess.run(["clang", "-x", "assembler", "-target", "amdgcn-amd-amdhsa", "-mcpu=gfx950", "-c", d + "/a.s", "-o", d + "/a.o"], check=True)
        dis = subprocess.run(["llvm-objdump", "-d", "--mcpu=gfx950", d + "/a.o"], capture_output=True, text=True).stdout
    enc = [len(m.group(1).split()) * 4 for m in re.finditer(r"// [0-9A-F]+: ((?:[0-9A-F]{8} ?)+)", dis)]
    j = lines.index("L_join:"); n_after = sum(map(isins, lines[j:]))
    sizes = enc[len(enc) - n_after:]
    out = lines[:j + 1]; pos = 0; k = 1; i = 0; off = False
    for l in lines[j + 1:]:
        if isins(l):
            if pos >= k * 4096 and l.strip() != "s_endpgm" and not off:
                out += [f"L_stub{k}:", f"    s_cbranch_execz L_stub{k+4}"]; pos += 4; k += 1
            pos += sizes[i]; i += 1
            if l.strip() == "s_mov_b64 exec, 0": off = True
            if l.strip() == "s_mov_b64 exec, -1": off = False
        if l == "L_codeend:": out += [f"L_stub{q}:" for q in range(k, NS)] + ["    s_setpc_b64 s[100:101]"]
        out.append(re.sub(r"@(\d)", lambda m: str(k + int(m.group(1))), l))
    print("code after join:", pos, "stubs", k - 1)
    return "\n".join(out)
open(sys.argv[1], "w").write(with_stubs(st.text()) if OPT.get("warm", 1) else st.text())
print("waits", st.nwait, "nop states", st.nnop)
```

```python
import sys, os, re, struct
sys.path.insert(0, os.path.join(os.path.dirname(os.path.abspath(__file__)), "tools"))
from asmgen import *
NAME = "adaLN_cond__sliding_block_cached__mixer_channel_mlp__prompt"
OPT = dict(stamps=0, gx=2, nt_wq=0, nt_wo=0, nt_kv=0, nt_mod=1, nt_x=0, pf_w1=1, pf_w2=2, pnt=1, early=1, dbg=-1)
for a in sys.argv[2:]:
    k, v = a.split("="); OPT[k] = int(v)
def nt(k): return " nt" if OPT["nt_" + k] else ""

KA, KB, VA, VB, XR = 0, 16512, 32896, 49408, 65920
HIMG = KB
RING0, RINGSZ, UNIT = 82304, 16512, 4128
MISC = 148352
MODV = MISC
SILU = MISC + 8192
RED = MISC + 9216
LGO = MISC + 12800
LDS_BYTES = 163840
WS_MOD, WS_F2, WS_F3, WS_F1 = 0x1000, 0x20000, 0x40000, 0x100000
WS_Y, WS_X1, WS_H1, WS_PART = 0x200000, 0x400000, 0x600000, 0x1000000
WS_STAMP = 0xF000000
OOB = 0x10000000
WSO = OPT.get("wso", 0) << 20
SCALE = 1.4426950408889634 / (128 ** 0.5)
def f2u(x): return struct.unpack("<I", struct.pack("<f", x))[0]
SPIN = 1 << 18

st = Stream()
A = st.A
stamp_n = [0]; stamp_names = []
def stamp(name=""):
    if not OPT["stamps"]: return
    if OPT["stamps"] == 7:
        if not (name in ("start", "norm", "O", "f1st", "end") or name.startswith("u")): return
    elif name.startswith("u"): return
    if OPT["stamps"] == 5:
        if not (name in ("start", "Yin", "G1", "gelu", "G2a", "G2", "end") or name.startswith("m")) or name == "mod": return
    elif OPT["stamps"] == 6:
        if not (name in ("start", "O", "f1st", "_f2q", "f1ok", "ysent", "f2ok", "Yin", "end") or name.startswith("e")): return
    elif name[0] in "me" and name not in ("mod", "end"): return
    if OPT["stamps"] not in (4, 6) and name.startswith("_"): return
    if OPT["stamps"] == 4 and not (name in ("start", "x", "mod", "h", "Q", "end") or name.startswith("_")): return
    if OPT["stamps"] == 3 and not (name in ("start", "h", "Q", "end") or name.startswith("q")): return
    if OPT["stamps"] == 2 and name.startswith("q"): return
    if OPT["stamps"] == 2 and name in ("x", "mod", "f1st", "f1ok", "ysent", "f2ok", "Yin", "gelu", "G2a", "G2"): return
    n = stamp_n[0]; stamp_n[0] += 1; stamp_names.append(name)
    assert n < 21
    if n: st.add(f"s_mov_b32 s{64+n-1}, s90")
    st.add("s_memrealtime s[90:91]" if OPT.get("rt") else "s_memtime s[90:91]")
def stampF(name, g):
    return [F(("call", lambda: stamp(name)), g, g)] if OPT["stamps"] > 1 else []
def dummyI(t):
    i = I(t); i.wr = []; return i
def dummy(t): st.add(dummyI(t))
def dummyF(t, e, l, chain):
    f = F(t, e, l, chain); f.ins.wr = []; return f
def srd(base, ptr, size):
    A(f"s_mov_b32 s{base}, s{ptr}\ns_mov_b32 s{base+1}, s{ptr+1}\ns_mov_b32 s{base+2}, {size}\ns_mov_b32 s{base+3}, 0x20000")
def mf(d, a, b, c=None, dt="v", at="a", bt="a"):
    cs = f"{dt}[{d}:{d+3}]" if c is None else (c if isinstance(c, str) else f"{dt}[{c}:{c+3}]")
    return f"v_mfma_f32_16x16x32_bf16 {dt}[{d}:{d+3}], {at}[{a}:{a+3}], {bt}[{b}:{b+3}], {cs}"
STG = 192
def stg(u, tile, s): return STG + (u & 1) * 16 + tile * 8 + s * 4
def p16_reads(dst, off, addr="v10"):
    r = []
    for tile in range(2):
        for s in range(2):
            f, d = dst(tile, s)
            for hf in range(2): r.append(f"ds_read_b64_tr_b16 {f}[{d+2*hf}:{d+2*hf+1}], {addr} offset:{off + s*2064 + hf*256 + tile*8}")
    return r
def p8_reads(dst, off, addr="v9"):
    r = []
    for tp in range(2):
        for tile in range(2):
            f, d = dst(tp, tile)
            for hf in range(2): r.append(f"ds_read_b64_tr_b16 {f}[{d+2*hf}:{d+2*hf+1}], {addr} offset:{off + tp*512 + hf*256 + tile*8}")
    return r
def voffs16(stride):
    A(f"""
    v_lshrrev_b32 v2, 5, v1
    v_lshlrev_b32 v2, 4, v2
    v_bfe_u32 v3, v1, 2, 3
    v_add_u32 v2, v2, v3
    v_mul_u32_u24 v2, {stride}, v2
    v_and_b32 v3, 3, v1
    v_lshl_add_u32 v11, v3, 4, v2
    v_add_u32 v12, {8*stride-1032}, v11
    v_add_u32 v13, {32*stride-2064}, v11
    v_add_u32 v14, {40*stride-3096}, v11
    """)
def voffs8(stride):
    A(f"""
    v_bfe_u32 v2, v1, 2, 3
    v_mul_u32_u24 v2, {stride}, v2
    v_lshrrev_b32 v3, 5, v1
    v_lshl_add_u32 v2, v3, 6, v2
    v_and_b32 v3, 3, v1
    v_lshl_add_u32 v11, v3, 4, v2
    v_add_u32 v12, {8*stride-1032}, v11
    v_add_u32 v13, {16*stride-2064}, v11
    v_add_u32 v14, {24*stride-3096}, v11
    """)
def dma4(soff, fl=""): return [f"buffer_load_dwordx4 v{11+i}, s[36:39], {soff} offen offset:{i*1032}{fl} lds" for i in range(4)]
def chain_dma(Fl, g0, pre, dmas, tag, need, chain, late=3):
    if OPT.get("nodma") and tag[0] == "W": dmas = []
    for t in pre: Fl.append(F(t, g0 - 5, g0 + late, chain))
    for i, t in enumerate(dmas): Fl.append(F(t, g0 + i // 2, g0 + late + i, chain, tag=tag, need=need if i == 0 else None))
def spread_dma(Fl, g0, pre, dmas, post, tag, need, step):
    if OPT.get("nodma"): dmas = []
    for t in pre: Fl.append(F(t, g0 - 3, g0, "dma"))
    for i, t in enumerate(dmas): Fl.append(F(t, g0 + i * step, g0 + i * step + 1, "dma", tag=tag, need=need if i == 0 else None))
    for t in post: Fl.append(F(t, g0, g0 + 3 * step + 2, "dma"))
class Capture:
    def __enter__(s):
        global A
        s.lines = []; s.old = A
        def cap(text): s.lines.extend(l.strip() for l in text.split("\n") if l.strip() and not l.strip().startswith(";"))
        A = cap; return s
    def __exit__(s, *a):
        global A
        A = s.old
    def fillers(s, e, l, chain, ren=True):
        out = []
        for t in s.lines:
            if ren: t = re.sub(r"\bs60\b", "s100", re.sub(r"\bs61\b", "s101", t))
            if t.split()[0] in ("s_cselect_b32", "s_addc_u32", "v_cndmask_b32"): out[-1] += "\n" + t
            else: out.append(t)
        n = len(out)
        return [F(t, e, e + (l - e) * (i + 1) // n, chain) for i, t in enumerate(out)]
def spin(label, load, cond):
    A(f"s_mov_b32 s3, {SPIN}")
    st.raw(f"{label}:")
    for t in load: st.add(t)
    A("s_sub_u32 s3, s3, 1\ns_waitcnt vmcnt(0)")
    A(cond)
    A(f"s_cmp_eq_u32 s3, 0\ns_cbranch_scc1 {label}_x\ns_cbranch_vccnz {label}")
    st.raw(f"{label}_x:")

st.raw(f"""; adaLN + GQA window attention + channel MLP, one persistent launch, 256 workgroups (one per CU)
; @launch grid=(256,1,1) block=(256,1,1) lds={LDS_BYTES}
.amdgcn_target "amdgcn-amd-amdhsa--gfx950"
.text
.globl {NAME}_kernel
.p2align 8
.type {NAME}_kernel,@function
{NAME}_kernel:
L_start:""")
A("""
s_cmp_ge_u32 s2, 256
s_cbranch_scc1 L_end
s_load_dwordx16 s[4:19], s[0:1], 0
s_load_dwordx8 s[20:27], s[0:1], 64
s_load_dwordx4 s[28:31], s[0:1], 96
s_load_dwordx2 s[32:33], s[0:1], 112
""")
if OPT["stamps"] or OPT.get("diag"): A("s_memrealtime s[98:99]")
stamp("start")
GX = OPT["gx"]; lg = {1: 0, 2: 1, 4: 2}[GX]
A(f"""
v_and_b32 v1, 63, v0
v_lshrrev_b32 v2, 6, v0
s_and_b32 s96, s2, 7
s_lshr_b32 s97, s2, 3
v_readfirstlane_b32 s35, v2
s_and_b32 s56, s96, {8//GX - 1}
s_lshl_b32 s56, s56, {lg}
s_and_b32 s60, s97, {GX - 1}
s_add_u32 s56, s56, s60
s_lshr_b32 s57, s96, {3 - lg}
s_lshl_b32 s57, s57, {5 - lg}
s_lshr_b32 s61, s97, {lg}
s_add_u32 s57, s57, s61
s_lshl_b32 s60, s60, {3 - lg}
s_add_u32 s95, s57, s60
s_and_b32 s95, s95, {OPT.get("rotmask", 7)}
s_lshl_b32 s58, s96, 2
s_lshr_b32 s59, s97, 3
s_add_u32 s58, s58, s59
s_and_b32 s59, s97, 7
s_mul_i32 s63, s35, {RINGSZ}
s_add_u32 s63, s63, {RING0}
s_movk_i32 s101, 1023
v_lshlrev_b32 v16, 4, v1
v_lshrrev_b32 v2, 4, v1
v_and_b32 v5, 15, v1
v_mul_u32_u24 v3, 1032, v2
v_lshl_add_u32 v9, v5, 4, v3
v_add_u32 v9, s63, v9
v_and_b32 v3, 1, v2
v_mul_u32_u24 v3, 1032, v3
v_lshl_add_u32 v3, v5, 4, v3
v_lshrrev_b32 v4, 1, v2
v_lshl_add_u32 v10, v4, 9, v3
v_add_u32 v10, s63, v10
v_mul_u32_u24 v4, 2064, v4
v_add_u32 v21, v3, v4
v_add_u32 v21, {VA}, v21
s_lshl_b32 s60, s95, 7
v_lshl_add_u32 v3, v5, 4, s60
v_lshlrev_b32 v2, 10, v2
v_and_or_b32 v124, v3, s101, v2
v_add_u32 v3, 256, v3
v_and_or_b32 v125, v3, s101, v2
v_add_u32 v3, 256, v3
v_and_or_b32 v126, v3, s101, v2
v_add_u32 v3, 256, v3
v_and_or_b32 v127, v3, s101, v2
s_getpc_b64 s[92:93]
L_pc:
s_sub_u32 s92, s92, L_pc-L_start
s_subb_u32 s93, s93, 0
s_lshl_b32 s3, s97, 12
v_lshl_add_u32 v4, v0, 4, s3
v_min_u32 v4, L_codeend-L_start-16, v4
global_load_dwordx4 a[248:251], v4, s[92:93]
s_waitcnt lgkmcnt(0)
s_add_u32 s32, s32, {WSO}
s_addc_u32 s33, s33, 0
s_load_dword s34, s[32:33], 0
""")
st.vm = []
stamp("_karg")
srd(48, 32, 0x10000000 - WSO)
KS = OPT.get("ks", 4)
WS_MOD2 = WS_MOD + 4096 * KS
def silu_to_lds(creg, t=2):
    A(re.sub(r"\bv([2-5])\b", lambda m: f"v{int(m.group(1)) - 2 + t}", f"""
    v_lshlrev_b32 v2, 16, v{creg}
    v_and_b32 v3, 0xffff0000, v{creg}
    v_mul_f32 v4, {f2u(-1.4426950408889634)}, v2
    v_mul_f32 v5, {f2u(-1.4426950408889634)}, v3
    v_exp_f32 v4, v4
    v_exp_f32 v5, v5
    v_add_f32 v4, 1.0, v4
    v_add_f32 v5, 1.0, v5
    v_rcp_f32 v4, v4
    v_rcp_f32 v5, v5
    v_mul_f32 v2, v2, v4
    v_mul_f32 v3, v3, v5
    v_cvt_pk_bf16_f32 v2, v2, v3
    v_lshlrev_b32 v3, 2, v0
    v_add_u32 v3, {SILU}, v3
    ds_write_b32 v3, v2
    """))
def publish(ntile, src, lab, dst, tag="s34", tmp=2, stmp="s60"):
    W = 64 * ntile
    A(f"""
    v_lshrrev_b32 v{tmp}, 4, v1
    v_lshlrev_b32 v{tmp}, 5, v{tmp}
    s_mul_i32 {stmp}, s35, {W}
    s_add_u32 {stmp}, {stmp}, {RED}
    v_add_u32 v{tmp}, {stmp}, v{tmp}
    s_mov_b32 exec_lo, 0x00010001
    s_mov_b32 exec_hi, 0x00010001
    """)
    for t in range(ntile): A(f"ds_write_b128 v{tmp}, v[{src+4*t}:{src+4*t+3}] offset:{(t>>1)*128 + (t&1)*16}")
    A(f"""
    s_mov_b64 exec, -1
    s_waitcnt lgkmcnt(0)
    s_barrier
    s_cmp_lg_u32 s35, 0
    s_cbranch_scc1 {lab}
    v_lshlrev_b32 v{tmp}, 3, v1
    v_add_u32 v{tmp+1}, {RED}, v{tmp}
    s_mov_b32 exec_lo, {(1 << (8*ntile)) - 1}
    s_mov_b32 exec_hi, 0
    """)
    for i in range(4): A(f"ds_read_b64 v[{src+2*i}:{src+2*i+1}], v{tmp+1} offset:{i*W}")
    A(f"""
    v_pk_add_f32 v[{src}:{src+1}], v[{src}:{src+1}], v[{src+2}:{src+3}]
    v_pk_add_f32 v[{src+4}:{src+5}], v[{src+4}:{src+5}], v[{src+6}:{src+7}]
    v_pk_add_f32 v[{src}:{src+1}], v[{src}:{src+1}], v[{src+4}:{src+5}]
    v_cvt_pk_bf16_f32 v{src}, v{src}, v{src+1}
    v_mov_b32 v{src+1}, {tag}
    buffer_store_dwordx2 v[{src}:{src+1}], v{tmp}, s[48:51], {dst} offen sc1
    s_mov_b64 exec, -1
    """)
def xr(i, jj): return 32 + (jj * 4 + i) * 4
def x_loads(n0, n1):
    for n in range(n0, n1):
        jj, i = n >> 2, n & 3
        st.add(f"buffer_load_dwordx4 v[{xr(i,jj)}:{xr(i,jj)+3}], v{124+jj}, s[52:55], s{[62, 0, 1, 100][i]} offen{nt('x')}")
def x_setup():
    srd(52, 4, 2048 * 1024)
    A("s_lshl_b32 s62, s57, 16\ns_lshl_b32 s61, s35, 14\ns_add_u32 s62, s62, s61\ns_add_u32 s0, s62, 4096\ns_add_u32 s1, s62, 8192\ns_add_u32 s100, s62, 12288")
XJ = OPT.get("xj", 8)
NSL = 4 // KS
PX = OPT.get("px", 2)
A(f"s_cmp_lt_u32 s96, {PX}\ns_cselect_b32 s14, s97, 99\ns_cmp_lt_u32 s14, {16*KS//PX}\ns_cbranch_scc1 L_prod")
x_setup(); x_loads(0, XJ)
A("s_branch L_join")
join_vm = list(st.vm)
A("L_prod:"); st.vm = []; st.hist = []; st.smem = True; st.smem_wr = {("s", 34)}
srd(52, 24, 1024); srd(36, 26, 512 * 6144)
A("v_lshlrev_b32 v2, 2, v0\nbuffer_load_dword v31, v2, s[52:55], 0 offen")
voffs8(6144)
A(f"""
s_mul_i32 s14, s97, {PX}
s_add_u32 s14, s14, s96
s_lshr_b32 s15, s14, 4
s_and_b32 s14, s14, 15
s_lshl_b32 s3, s15, 2
s_add_u32 s3, s3, s35
s_mul_i32 s60, s3, {32*NSL*6144}
s_lshl_b32 s61, s14, 7
s_add_u32 s60, s60, s61
""")
for k in range(NSL):
    A(f"s_add_u32 m0, s63, {(2+k)*UNIT}")
    for t in dma4("s60", nt("mod")): st.add(t, tag="wm")
    if k + 1 < NSL: A(f"s_add_u32 s60, s60, {32*6144}")
x_setup(); x_loads(0, 4)
silu_to_lds(31)
A(f"""
v_lshrrev_b32 v2, 4, v1
v_lshlrev_b32 v2, 4, v2
s_mul_i32 s60, s3, {64*NSL}
s_add_u32 s60, s60, {SILU}
v_add_u32 v2, s60, v2
s_waitcnt lgkmcnt(0)
s_barrier
""")
for k in range(NSL): A(f"ds_read_b128 a[{4*k}:{4*k+3}], v2 offset:{k*64}")
st.need("wm")
for k in range(NSL):
    for t in p8_reads(lambda tp, tile: ("a", 16 + k * 16 + tp * 8 + tile * 4), (2 + k) * UNIT): A(t)
x_loads(4, 8)
for k in range(NSL):
    for t in range(4): A(mf(96 + 4 * t, 16 + k * 16 + 4 * t, 4 * k, "0" if k == 0 else None))
x_loads(8, XJ)
A(f"s_lshl_b32 s3, s15, 12\ns_lshl_b32 s14, s14, 8\ns_add_u32 s3, s3, s14\ns_add_u32 s3, s3, {WS_MOD}\ns_mul_i32 s15, s34, 0x9E3779B1\ns_add_u32 s15, s15, 0x7F4A7C15")
publish(4, 96, "L_prod_x", "s3", "s15")
A("L_prod_x:"); st.lg = []; st.hist = []
A("s_branch L_join"); st.raw(".p2align 12")
A("L_join:"); st.vm = join_vm; st.lg = []; st.hist = []; st.smem = True; st.smem_wr = {("s", 34)}
st.newphase(); stamp("_prod")

QST = 8192
A(f"""
s_lshl_b32 s60, s56, 10
s_lshl_b32 s61, s35, 8
s_add_u32 s60, s60, s61
s_add_u32 s36, s10, s60
s_addc_u32 s37, s11, 0
s_sub_u32 s38, {512*8192}, s60
s_mov_b32 s39, 0x20000
s_bfe_u32 s15, s57, 0x10003
s_lshl_b32 s14, s15, 7
s_lshl_b32 s92, s95, 19
s_add_u32 s94, s92, s14
s_xor_b32 s14, s14, 128
s_add_u32 s92, s92, s14
s_lshl_b32 s15, s15, 1
s_mul_i32 s93, s35, {UNIT}
s_sub_u32 s60, s93, s63
v_add_u32 v31, s60, v9
""")
voffs8(QST)
def wq_pre(n):
    r = n % 5; b = "s92" if n & 2 else "s94"
    p = [f"s_add_u32 m0, s63, {r*UNIT}" if r < 4 else "s_mov_b32 m0, s93", f"s_add_u32 s60, {b}, {(n&1)*32*QST}"]
    return p, ([f"s_add_u32 {b}, {b}, {64*QST}", f"s_and_b32 {b}, {b}, {512*QST-1}"] if n & 1 else [])
def wq_ops(n):
    p, q = wq_pre(n); return [(t, None) for t in p] + [(t, ("W", n)) for t in dma4("s60", nt("wq"))] + [(t, None) for t in q]
A(f"""
v_lshrrev_b32 v2, 4, v1
v_and_b32 v5, 15, v1
v_bfe_u32 v6, v1, 2, 2
v_lshlrev_b32 v6, 1, v6
s_movk_i32 s60, 0x78
v_lshrrev_b32 v6, v6, s60
v_and_b32 v6, 3, v6
v_xor_b32 v7, v6, v2
v_lshlrev_b32 v7, 4, v7
v_lshl_add_u32 v15, v5, 6, v7
v_add_u32 v15, {HIMG}, v15
v_bfe_u32 v4, v1, 2, 2
v_lshl_add_u32 v7, v4, 12, v7
v_and_b32 v4, 3, v1
v_lshl_add_u32 v7, v4, 8, v7
""")
A("s_bfe_u32 s15, s57, 0x10003\ns_lshl_b32 s15, s15, 1\nv_xor_b32 v4, s15, v4")
for s in range(4): A(f"v_xor_b32 v5, {s}, v4\nv_lshl_add_u32 v{17+s}, v5, 6, v7")
A(f"""
s_lshl_b32 s60, s35, 1
s_lshr_b32 s60, 0x78, s60
s_and_b32 s60, s60, 3
v_lshlrev_b32 v3, 2, v2
v_xor_b32 v3, s60, v3
v_and_b32 v4, 15, v1
v_xor_b32 v3, v3, v4
v_lshlrev_b32 v3, 4, v3
v_lshl_add_u32 v3, v2, 8, v3
s_lshl_b32 s60, s35, 10
v_add_u32 v22, s60, v3
v_add_u32 v23, 3072, v22
v_add_u32 v24, 6144, v22
v_add_u32 v25, 9216, v22
v_bfe_u32 v3, v1, 2, 2
v_lshlrev_b32 v3, 8, v3
v_lshl_add_u32 v3, v2, 6, v3
v_and_b32 v4, 3, v1
v_lshl_add_u32 v3, v4, 4, v3
s_lshl_b32 s60, s35, 12
s_add_u32 s60, s60, 64
v_add_u32 v26, s60, v3
v_subrev_u32 v27, 8, v26
v_subrev_u32 v28, 16, v26
v_subrev_u32 v29, 24, v26
v_bfe_u32 v3, v1, 2, 1
v_xor_b32 v3, v3, v2
v_lshlrev_b32 v3, 6, v3
v_bfe_u32 v4, v1, 2, 2
v_lshl_add_u32 v3, v4, 12, v3
s_lshl_b32 s60, s35, 10
s_add_u32 s60, s60, {HIMG}
v_add_u32 v3, s60, v3
v_and_b32 v4, 3, v1
v_lshl_add_u32 v120, v4, 4, v3
v_xor_b32 v121, 32, v120
v_xor_b32 v122, 48, v120
v_xor_b32 v123, 16, v120
v_subrev_u32 v8, {HIMG}, v15
v_xor_b32 v8, 64, v8
v_add_u32 v8, {HIMG}, v8
""")
A(f"""
s_lshl_b32 s60, s56, 19
s_add_u32 s60, s60, {1536*256}
s_add_u32 s40, s6, s60
s_addc_u32 s41, s7, 0
s_mov_b32 s42, {512*256}
s_mov_b32 s43, 0x20000
s_sub_u32 s60, s60, 64
s_add_u32 s44, s8, s60
s_addc_u32 s45, s9, 0
s_mov_b32 s46, {512*256+64}
s_mov_b32 s47, 0x20000
s_lshl_b32 s6, s35, 12
s_mul_i32 s7, s35, 4128
s_add_u32 s7, s7, {VA}
s_lshl_b32 s8, s95, 14
s_mov_b32 s9, s8
""")
def k_ops(c): return ([f"s_add_u32 m0, s6, {KA if c%2==0 else KB}"], [f"buffer_load_dwordx4 v{22+i}, s[40:43], s8 offen offset:{i*1024}{nt('kv')} lds" for i in range(4)], ["s_add_u32 s8, s8, 16384", "s_and_b32 s8, s8, 0x1ffff"])
def v_ops(c): return ([f"s_add_u32 m0, s7, {(c&1)*16512}"], [f"buffer_load_dwordx4 v{26+i}, s[44:47], s9 offen offset:{i*1032}{nt('kv')} lds" for i in range(4)], ["s_add_u32 s9, s9, 16384", "s_and_b32 s9, s9, 0x1ffff"])
def kv_chain(Fl, g0, ops, tag, step=0):
    if step: spread_dma(Fl, g0, ops[0], ops[1], ops[2], tag, None, step); return
    chain_dma(Fl, g0, ops[0], ops[1], tag, None, "dma")
    for t in ops[2]: Fl.append(F(t, g0 + 4, g0 + 10, "dma"))
x_loads(XJ, 16)
if OPT.get("tlb"):
    A(f"v_lshlrev_b32 v2, 5, v1\nv_add_u32 v2, s97, v2\nv_lshlrev_b32 v2, {OPT['tlb']}, v2")
    for i, (ptr, size) in enumerate([(32, 0x2000000), (10, 4 << 20), (12, 4 << 20), (16, 1835008), (20, 1835008), (28, 2 << 20), (26, 3 << 20), (18, 3584), (22, 1024)]):
        srd(52, ptr, size)
        A(f"s_cmp_eq_u32 s35, {i & 3}\ns_cselect_b32 s60, 0, {OOB}")
        dummy("buffer_load_dword a244, v2, s[52:55], s60 offen")
def warm(lab):
    if not OPT.get("warm", 1): return
    t = "    s_mov_b64 exec, 0\n"
    for w in range(4):
        if w < 3: t += f"    s_cmp_eq_u32 s35, {w}\n    s_cbranch_scc0 {lab}_{w}\n"
        t += f"    s_call_b64 s[100:101], L_stub@{w}\n"
        if w < 3: t += f"    s_branch {lab}_ret\n{lab}_{w}:\n"
    st.raw(t + f"{lab}_ret:\n    s_mov_b64 exec, -1")
A(f"s_waitcnt vmcnt({12 + (9 if OPT.get('tlb') else 0)})")
warm("L_w1")

for i in range(4): A(f"v_mov_b32 v{112+2*i}, 0\nv_mov_b32 v{104+2*i}, 0")
A("v_mov_b32 v7, 0x3f803f80")
stamp("_issued")
def trickle(n=1):
    while pend and n:
        t, tag = pend.pop(0); st.add(t, tag=tag)
        if t.startswith("buffer") or t.startswith("global"): n -= 1
A(f"v_lshlrev_b32 v30, 4, v0\nv_add_u32 v30, {WS_MOD}, v30")
MC = [96, 100, 2 * 128 - 8, 2 * 128 - 4]
mchk = [f"buffer_load_dwordx4 a[{4*k}:{4*k+3}], v30, s[48:51], {['0', 's10', 's11', 's14'][k]} offen sc1" for k in range(KS)]
for k in range(1, KS): A(f"s_mov_b32 {['0', 's10', 's11', 's14'][k]}, {4096*k}")
for n in range(16):
    jj, i = n >> 2, n & 3
    for e in range(4): A(f"v_dot2c_f32_bf16 v{112+2*i}, v{xr(i,jj)+e}, v7\nv_dot2c_f32_bf16 v{104+2*i}, v{xr(i,jj)+e}, v{xr(i,jj)+e}")
    if n == 0: stamp("_x0")
stamp("x")
RC = OPT.get("rc", -1); W0L = OPT.get("w0l", 0)
if RC < 0:
    for t in mchk: A(t)
pend = wq_ops(0) + wq_ops(1)
if not W0L: trickle(4)
for d in ("quad_perm:[1,0,3,2]", "quad_perm:[2,3,0,1]", "row_ror:4", "row_ror:8"):
    for i in range(4): A(f"v_add_f32_dpp v{112+2*i}, v{112+2*i}, v{112+2*i} {d} row_mask:0xf bank_mask:0xf\nv_add_f32_dpp v{104+2*i}, v{104+2*i}, v{104+2*i} {d} row_mask:0xf bank_mask:0xf")
for op in ["v_mul_f32 v{m}, {c512}, v{r}", "v_mul_f32 v{q}, {c512}, v{q}", "v_fma_f32 v{q}, -v{m}, v{m}, v{q}", "v_max_f32 v{q}, 0, v{q}", "v_add_f32 v{q}, {eps}, v{q}",
           "v_rsq_f32 v{r}, v{q}", "v_mul_f32_e64 v{q}, -v{m}, v{r}"]:
    for i in range(4): A(op.format(m=113 + 2 * i, r=112 + 2 * i, q=104 + 2 * i, c512=f2u(1 / 512), eps=f2u(1e-5)))
def normalise(r0, r1):
    for r in range(r0, r1):
        i = (r >> 2) & 3
        A(f"v_lshlrev_b32 v{128+2*r}, 16, v{32+r}\nv_and_b32 v{129+2*r}, 0xffff0000, v{32+r}")
        A(f"v_pk_fma_f32 v[{128+2*r}:{129+2*r}], v[{128+2*r}:{129+2*r}], v[{112+2*i}:{113+2*i}], v[{104+2*i}:{105+2*i}] op_sel_hi:[1,0,0]")
        if r == RC:
            for t in mchk: A(t)
            if W0L: trickle(4)
        if r >= OPT.get("rw1", 36) and r % 6 == 0: trickle()
RM = OPT.get("rm", 36)
def MB(r): return 32 + r
normalise(0, RM)
stamp("_p6")
A("s_mul_i32 s34, s34, 0x9E3779B1\ns_add_u32 s34, s34, 0x7F4A7C15")
def mod_fetch():
    return "\n".join(f"v_accvgpr_read_b32 v{MB(r)}, a{r}" for r in range(4 * KS)) + f"\nv_cmp_ne_u32 vcc, s34, v{MB(1)}\n" + "".join(f"v_cmp_ne_u32 s[100:101], s34, v{MB(3+2*i)}\ns_or_b64 vcc, vcc, s[100:101]\n" for i in range(2 * KS - 1))
A(mod_fetch()); A("s_cbranch_vccz L_pollmod_x")
keep = list(st.vm)
spin("L_pollmod", [f"s_sleep {OPT.get('slp', 4)}"] + mchk, mod_fetch())
st.vm = keep
stamp("mod")
A(f"""
s_cmp_ge_u32 s35, 2
s_cselect_b32 s60, 1.0, 0
s_cselect_b32 s3, 2048, 0
s_add_u32 s3, s3, {MODV}
s_mov_b32 s61, {f2u(SCALE)}
""")
for k in range(KS):
    A(f"""v_lshlrev_b32 v2, 16, v{MB(4*k)}
    v_and_b32 v3, 0xffff0000, v{MB(4*k)}
    v_lshlrev_b32 v4, 16, v{MB(4*k+2)}
    v_and_b32 v5, 0xffff0000, v{MB(4*k+2)}""")
    for e in range(4): A(f"v_add_f32 v{100+e}, {'s60' if k == 0 else 'v' + str(100+e)}, v{2+e}")
for e in range(4): A(f"v_mul_f32 v{100+e}, s61, v{100+e}")
A(f"""
s_lshl_b32 s60, s95, 8
v_lshlrev_b32 v2, 4, v0
v_subrev_u32 v2, s60, v2
v_and_b32 v2, 2047, v2
v_add_u32 v2, s3, v2
ds_write_b128 v2, v[100:103]
""")
if OPT.get("kpos", 2) == 2: trickle(99)
normalise(RM, 64)
trickle(99)
def kv_prefetch():
    A("s_add_u32 s61, s8, s6")
    for i in range(4): dummy(f"buffer_load_dwordx4 a[244:247], v16, s[40:43], s61 offen offset:{i*1024}")
    if OPT.get("vpf", 0):
        A("s_add_u32 s61, s61, 64")
        for i in range(4): dummy(f"buffer_load_dwordx4 a[244:247], v16, s[44:47], s61 offen offset:{i*1024}")
if OPT.get("kpos", 2) == 0: kv_prefetch()
A(f"""
v_and_b32 v30, 15, v1
v_lshlrev_b32 v30, 5, v30
v_add_u32 v30, {MODV}, v30
s_waitcnt lgkmcnt(0)
s_barrier
""")
stamp("_bar1")
QS = 64
def qstg(U, tp, tile, s): return QS + (U & 1) * 32 + s * 16 + tp * 8 + tile * 4
def q_reads(n):
    r = n % 5
    return p8_reads(lambda tp, tile: ("a", qstg(n >> 1, tp, tile, n & 1)), r * UNIT if r < 4 else 0, "v9" if r < 4 else "v31")
def modreads(jj, b):
    for i in range(4): A(f"ds_read_b128 v[{b+4*i}:{b+4*i+3}], v30 offset:{(i>>1)*2048 + jj*512 + (i&1)*16}")
for jj in range(4): modreads(jj, 32 + 16 * jj)
pend = wq_ops(2) + wq_ops(3) + wq_ops(4)
if OPT.get("kpos", 2) == 2: A("s_add_u32 s61, s8, s6")
for n in range(16):
    jj, i = n >> 2, n & 3; b = 32 + 16 * jj; t = 128 + 8 * n; d = 96 + 4 * (n & 3)
    for e in range(4): A(f"v_pk_fma_f32 v[{t+2*e}:{t+2*e+1}], v[{t+2*e}:{t+2*e+1}], v[{b+8+2*e}:{b+9+2*e}], v[{b+2*e}:{b+2*e+1}]")
    for e in range(4): A(f"v_cvt_pk_bf16_f32 v{d+e}, v{t+2*e}, v{t+2*e+1}")
    A(f"ds_write_b128 v{120+i}, v[{d}:{d+3}] offset:{jj*16384 + i*256}")
    if OPT.get("kpos", 2) == 2 and OPT.get("jk", 0) <= n < OPT.get("jk", 0) + 4: dummy(f"buffer_load_dwordx4 a[244:247], v16, s[40:43], s61 offen offset:{(n - OPT.get('jk', 0))*1024}")
    if n >= OPT.get("jw", 8): trickle()
stamp("_jloop")
for n in range(2):
    for i, t in enumerate(q_reads(n)): st.add(t, tag=("R", n), need=[("W", n)] if i == 0 else None)
if OPT.get("kpos", 2) == 1: trickle(99); kv_prefetch()
stamp("_w01")
trickle(99)
stamp("_w34")
A("s_waitcnt lgkmcnt(0)\ns_barrier")
def hb(kk, s, cb): return (kk & 1) * 32 + (s * 4 + cb) * 4
for s in range(2):
    for cb in range(4): A(f"ds_read_b128 a[{hb(0,s,cb)}:{hb(0,s,cb)+3}], {'v8' if s else 'v15'} offset:{(s*4+cb)*1024}")
stamp("h")

def qacc(tp, tile, cb): return 128 + (tp * 8 + tile * 4 + cb) * 4
def qop(s, cb): return 32 + (s * 4 + cb) * 4
M = []; Fl = []; RES = {}; HBAR = 46
for U in range(16):
    kk, h2 = U >> 1, U & 1
    g0 = len(M)
    for tp in range(2):
        for tile in range(2):
            for cb in range(4):
                for s in range(2):
                    M.append(mf(qacc(2 * h2 + tp, tile, cb), qstg(U, tp, tile, s), hb(kk, s, cb), "0" if (kk == 0 and s == 0) else None))
    for s in range(2):
        n = 2 * U + 2 + s; g = g0 + 16 * s + (10 if n == 2 else 4 if n == 3 else 0)
        def refill(n, g, step):
            m = n + 5
            if m >= 32: return
            p, q = wq_pre(m)
            spread_dma(Fl, g, p, dma4("s60", nt("wq")), q, ("W", m), [("R", n)], step)
        if U == 0 and s == 0: refill(0, 3, 2); refill(1, 11, 2)
        if n < 32:
            for i, t in enumerate(q_reads(n)): Fl.append(F(t, g + i, g + i + 1, "rd", tag=("R", n), need=[("W", n)] if i == 0 else None))
            refill(n, g + 11, 4 if n > 4 else 2 if n == 2 else 3)
    RES[g0 + 31] = 1
    if U: Fl += stampF(f"q{U}", g0)
    if kk < 7:
        for i in range(4):
            n = 4 * h2 + i; s, cb = n >> 2, n & 3
            Fl.append(F(f"ds_read_b128 a[{hb(kk+1,s,cb)}:{hb(kk+1,s,cb)+3}], {'v8' if s else 'v15'} offset:{((kk+1)*8+n)*1024}", g0 + 8 + (i & 1) + 16 * (i >> 1), g0 + 12 + (i & 1) + 16 * (i >> 1), "hb", tag=("HB", kk + 1)))
    if kk == 7:
        for tp in range(2):
            T = 2 * h2 + tp - 1
            if T >= 0:
                for cb in range(4):
                    for e in range(4):
                        src = qacc(T, e >> 1, cb) + 2 * (e & 1)
                        Fl.append(F(f"v_cvt_pk_bf16_f32 v{qop(T,cb)+e}, v{src}, v{src+1}", g0 + 16 * tp + 2, g0 + 16 * tp + 15, "cv"))
        if h2 == 0:
            Fl.append(F(("barrier", [("HB", 7), ("R", 29)]), g0 + 1, g0 + 1, "dma"))
            kv_chain(Fl, g0 + 8, k_ops(0), ("K", 0))
            kv_chain(Fl, g0 + 24, k_ops(1), ("K", 1))
        else:
            kv_chain(Fl, g0 + 1, v_ops(0), ("V", 0))
            Fl.append(F(("barrier", [("K", 0)]), g0 + 15, g0 + 15, "rd"))
            for s in range(4): Fl.append(F(f"ds_read_b128 a[{STG+s*4}:{STG+s*4+3}], v{17+s} offset:{KA}", g0 + 16 + s, g0 + 22, "rd", tag=("R", "k00")))
LP0 = 2
def blk_addr(dst, src, add):
    A(f"""s_add_u32 s60, {src}, {add}
    s_and_b32 s60, s60, 3
    s_mul_i32 s61, s60, {KB}
    s_cmp_eq_u32 s60, 2
    s_cselect_b32 s61, {VA}, s61
    s_cmp_eq_u32 s60, 3
    s_cselect_b32 s{dst}, {XR}, s61""")
FLOOR = [6, 7, 8, 15]
with Capture() as cp:
    voffs16(1024)
    A(f"""
s_lshl_b32 s60, s56, 19
s_lshl_b32 s61, s35, {OPT.get("wocol", 6)}
s_and_b32 s61, s61, {OPT.get("womask", 1023)}
s_add_u32 s60, s60, s61
s_add_u32 s36, s12, s60
s_addc_u32 s37, s13, 0
s_sub_u32 s38, {4096*1024}, s60
v_and_b32 v3, {3 if OPT.get("sparse1", 1) else 0}, v1
v_mov_b32 v2, 0x3f803f80
v_cmp_eq_u32 vcc, 0, v3
v_cndmask_b32 v2, 0, v2, vcc
v_accvgpr_write_b32 a240, v2
v_accvgpr_write_b32 a241, v2
v_accvgpr_write_b32 a242, v2
v_accvgpr_write_b32 a243, v2
s_and_b32 s14, s57, {OPT.get("rotmask", 7) & 3}
s_lshl_b32 s92, s14, 8
s_bfe_u32 s15, s57, 0x20002
s_and_b32 s15, s15, {OPT.get("rotmask", 7) & 3}
s_lshl_b32 s94, s15, 17
s_mul_i32 s93, s97, 57344
s_mul_i32 s60, s35, 14336
s_add_u32 s93, s93, s60
""")
    srd(52, 16, 512 * 3584)
    A(f"""
v_lshrrev_b32 v2, 5, v1
v_lshlrev_b32 v2, 4, v2
v_bfe_u32 v3, v1, 2, 3
v_add_u32 v2, v2, v3
v_mul_u32_u24 v2, 6144, v2
v_and_b32 v3, 3, v1
v_lshl_add_u32 v2, v3, 4, v2
v_add_u32 v3, {8*6144-1032}, v2
v_add_u32 v4, {32*6144-2064}, v2
v_add_u32 v5, {40*6144-3096}, v2
v_lshlrev_b32 v30, 2, v0
""")
    blk_addr(85, "s35", 0)
    for i in range(4): blk_addr(86 + i, "s15", i)
    A(f"""
s_sub_u32 s3, s96, {LP0}
s_lshl_b32 s13, s3, 5
s_add_u32 s13, s13, s97
s_lshl_b32 s60, s13, 6
s_mul_i32 s61, s35, {128*6144}
s_add_u32 s60, s60, s61
s_add_u32 s60, s60, 2048
s_cmp_lt_u32 s3, 2
s_cselect_b32 s10, s60, {OOB}
s_cselect_b32 s62, 0, {OOB}
s_mov_b32 s12, s2
s_cmp_lg_u32 s35, 0
s_cselect_b32 s11, {OOB}, 0
""")
    srd(0, 24, 1024)
attn_setup = list(cp.lines)
Fl += cp.fillers(412, 508, "su")
for t in [f"v_mov_b32 v{r}, 0xff800000" for r in FLOOR] + ["s_mov_b32 s95, 0", "v_lshrrev_b32 v31, 6, v0", "v_lshlrev_b32 v31, 2, v31", f"v_add_u32 v31, {LGO + 16}, v31"]: Fl.append(F(t, 470, 508, "su2"))
schedule(st, M, Fl, reserve=RES, verbose="Q")
for cb in range(4):
    for e in range(4):
        src = qacc(3, e >> 1, cb) + 2 * (e & 1)
        A(f"v_cvt_pk_bf16_f32 v{qop(3,cb)+e}, v{src}, v{src+1}")
st.newphase(); stamp("Q")
st.raw("L_attn:"); attn_entry = (list(st.vm), list(st.lg))
def wo_pre(u, m0):
    p = [m0, "s_add_u32 s60, s92, s94" + ("\ns_add_u32 s60, s60, 0x10000" if u & 4 else ""), "s_add_u32 s94, s94, 0x20000", "s_and_b32 s94, s94, 0x7ffff"]
    return p
def wo_chain(Fl, g, u, m0, need, late=3):
    p = wo_pre(u, m0)
    chain_dma(Fl, g, p[:2], dma4("s60", nt("wo")), ("W", u), need, "dma", late)
    post = p[2:] + (["s_add_u32 s92, s92, 256", "s_and_b32 s92, s92, 1023"] if (u & 7) == 7 else [])
    for t in post: Fl.append(F(t, g, g + late + 8, "dma"))

def S(kt, cb, c=0): return (192 if (c == 1 and kt < 2 and OPT.get("s2", 0)) else 96) + (kt * 4 + cb) * 4
def P(c, s, cb): return 160 + (c & 1) * 32 + (s * 4 + cb) * 4
def CI(cb): return 224 + 4 * cb
def oacc(tp, tile, cb): return (tp * 8 + tile * 4 + cb) * 4
def woreg(u, tile, s):
    o = tile * 8 + s * 4
    return ("a", 128 + u * 16 + o) if u < 4 else (("v", 128 + (u - 4) * 16 + o) if u < 6 else ("v", 192 + (u - 6) * 16 + o))
LS = 224
def RS(u): return (u + 2) & 3
units = [("QK", 0, k) for k in range(4)]
for c in range(7): units += [("QK", c + 1, k) for k in range(4)] + [("L", c, 0)] + [("PV", c, k) for k in range(4)]
units += [("L", 7, 0)] + [("PV", 7, k) for k in range(4)]
M = []; Fl = []; RES = {}; G = {}; buf = {}
staged = [u for u in units if u[0] != "L"]
for n, u in enumerate(staged): buf[u] = n
pos = 0
for un in units: G[un] = pos; pos += 8 if un[0] == "L" else 16
NATT = pos
def oop(dp, cb): return 32 + (dp * 4 + cb) * 4
pf = []
if OPT["pf_w1"]: pf += [("w1", i) for i in range(14)]
if OPT["pf_w2"]: pf += [("w2", i) for i in range(14 if OPT["pf_w2"] == 1 else 2)]
with Capture() as cp:
    A(f"""
buffer_load_dword v30, v30, s[0:3], s62 offen
s_mov_b32 s0, s26
s_mov_b32 s1, s27
s_mov_b32 s2, {512*6144}
s_mov_b32 m0, s63
""")
Fl += cp.fillers(3, 7, "dma")
for i in range(4): Fl.append(F(f"buffer_load_dwordx4 v{2+i}, s[0:3], s10 offen offset:{i*1032}{' nt' if OPT.get('nt_lp', 1) else ''} lds", 13 + 9 * i, 14 + 9 * i, "dma", tag="wm"))
with Capture() as cp:
    A(f"""
s_lshl_b32 s60, s57, 3
s_add_u32 s60, s60, s56
s_lshl_b32 s60, s60, 7
s_add_u32 s60, s60, {WS_F1}
s_lshl_b32 s61, s58, 3
s_add_u32 s61, s61, s59
s_lshl_b32 s61, s61, 7
s_add_u32 s61, s61, {WS_F2 - 128}
v_lshlrev_b32 v253, 2, v1
v_add_u32 v254, s60, v253
v_add_u32 v253, s61, v253
v_cmp_le_u32 vcc, 32, v1
v_cndmask_b32 v254, v254, v253, vcc
s_not_b32 s60, s34
v_mov_b32 v255, s60
""")
Fl += cp.fillers(G[("PV", 0, 0)], G[("PV", 1, 0)], "pw")
def pst(v, off=0): return f"buffer_store_dwordx4 a[248:251], {v}, s[48:51], s10 offen offset:{off} sc1"
psn = [f"v_accvgpr_write_b32 a{248+i}, -1" for i in range(4)] + ["s_lshl_b32 s10, s58, 3", "s_add_u32 s10, s10, s59", "s_lshl_b32 s10, s10, 3", "s_add_u32 s10, s10, s35",
       "s_mul_i32 s10, s10, 5120", f"s_add_u32 s10, s10, {WS_H1}", f"s_cmp_eq_u32 s59, {7 if OPT.get('j7', 0) else 9}\ns_cselect_b32 s10, {OOB}, s10"] + [pst("v16", i * 1024) for i in range(4)] + ["s_add_u32 s10, s10, 20480"] + [pst("v16", i * 1024) for i in range(4)]
psn += ["v_lshrrev_b32 v253, 5, v1", "v_lshlrev_b32 v253, 11, v253", "v_and_b32 v255, 31, v1", "v_lshl_add_u32 v253, v255, 4, v253"]
for n in (2, 3):
    psn += ["s_lshl_b32 s10, s57, 3", "s_add_u32 s10, s10, s56", "s_lshl_b32 s10, s10, 2", "s_add_u32 s10, s10, s35", "s_lshl_b32 s10, s10, 5", f"s_add_u32 s11, s14, {n}", "s_and_b32 s11, s11, 3",
            "s_add_u32 s10, s10, s11", "s_lshl_b32 s10, s10, 9", f"s_add_u32 s10, s10, {WS_PART}"]
    for i in range(4): psn += [pst("v253")] + (["s_add_u32 s10, s10, 4096"] if i < 3 else [])
for un in units:
    ty, c, k = un; g0 = len(M); assert g0 == G[un]
    if ty == "QK":
        b = STG + (buf[un] & 1) * 16
        for cb in range(4):
            for s in range(4):
                M.append(mf(S(k, cb, c), b + 4 * s, qop(s, cb), None if s else ("0" if (c == 0 and k < 1) else CI(cb)), "v", "a", "v"))
    elif ty == "L":
        for cb in range(4):
            for s in range(2): M.append(mf(LS + 4 * cb, 240, P(c, s, cb), "0" if (c == 0 and s == 0) else None, "a", "a", "v"))
    else:
        for tile in range(2):
            for cb in range(4):
                for s in range(2): M.append(mf(oacc(k, tile, cb), stg(buf[un], tile, s), P(c, s, cb), "0" if (c == 0 and s == 0) else None, "a", "a", "v"))
    if ty == "L": continue
    RES[g0 + 15] = 1
    bar = None
    if (ty, c, k) == ("QK", 0, 3): bar = 1
    if ty == "PV" and k == 3 and c < 7: bar = c + 2
    rg = g0
    if bar is not None:
        Fl.append(F(("barrier", [("R", un), ("V", bar - 1)] + ([("K", bar)] if bar <= 7 else [])), g0 + 1, g0 + 1, "rd")); rg = g0 + 2
        Fl += stampF(f"B{bar}", g0 + 2)
        VS = OPT.get("vs", 5); gk = g0 + 8
        if bar + 1 <= 7: kv_chain(Fl, gk, k_ops(bar + 1), ("K", bar + 1), VS); gk += 4 * VS
        if bar <= 7: kv_chain(Fl, gk, v_ops(bar), ("V", bar), VS); gk += 4 * VS
        plan = {**[{1: [("d", 0)], 2: [("d", 1)]}, {2: [("d", 0)], 3: [("d", 1)]}, {3: [("d", 0), ("d", 1)]}][OPT.get("wop", 1)], 4: [("r", 0), ("d", 2), ("d", 3)], 5: [("r", 1), ("r", 2), ("d", 4), ("d", 5)], 6: [("r", 3), ("d", 6)], 7: [("d", 7)]}.get(bar, [])
        gr = g0 + 20
        for kind, u in plan:
            if kind == "d":
                p = wo_pre(u, f"s_add_u32 m0, s63, {RS(u)*UNIT}")
                spread_dma(Fl, gk, p[:2], dma4("s60", nt("wo")), p[2:] + (["s_add_u32 s92, s92, 256", "s_and_b32 s92, s92, 1023"] if (u & 7) == 7 else []), ("W", u), [("RW", u - 4)] if u >= 4 else None, VS); gk += 4 * VS
            else:
                for i, t in enumerate(p16_reads(lambda tile, s: woreg(u, tile, s), RS(u) * UNIT)):
                    Fl.append(F(t, gr + 2 * i, gr + 6 + 2 * i, "wor", tag=("RW", u), need=[("W", u)] if i == 0 else None))
                gr += 16
        if bar <= 7:
            for n in range(int(str(OPT.get("pfp", 44044)).zfill(7)[bar - 1])):
                if not pf: break
                nm, i = pf.pop(0)
                if nm == "w2" and i == 0:
                    for t in ["s_mov_b32 s52, s20", "s_mov_b32 s53, s21"] + ((["s_sub_u32 s93, s93, 12288"] if OPT["pf_w1"] else []) if OPT["pf_w2"] == 1 else ["s_mul_i32 s93, s2, 7168", "s_lshl_b32 s60, s35, 11\ns_add_u32 s93, s93, s60"]): Fl.append(F(t, gk - 3, gk, "dma"))
                if i and i % 4 == 0: Fl.append(F("s_add_u32 s93, s93, 4096", gk - 3, gk, "dma"))
                Fl.append(dummyF(f"buffer_load_dwordx4 a[244:247], v16, s[52:55], s93 offen offset:{(i%4)*1024}", gk, gk + 2, "dma")); gk += VS
        for n in range(int(str(OPT.get("psp", 332233)).zfill(7)[bar - 1]) if bar <= 7 else 0):
            while True:
                t = psn.pop(0); stv = t.startswith("buffer")
                Fl.append(F(t, gk - (0 if stv else 4), gk + (2 if stv else 0), "dma", tag="psn" if stv else None))
                if stv: gk += OPT.get('ps', 5); break
    i = staged.index(un)
    if i + 1 < len(staged):
        nx = staged[i + 1]; nb = STG + (buf[nx] & 1) * 16
        if nx[0] == "QK":
            for s in range(4):
                Fl.append(F(f"ds_read_b128 a[{nb+4*s}:{nb+4*s+3}], v{17+s} offset:{(KA if nx[1]%2==0 else KB) + nx[2]*1024}", rg + s // 2, rg + 4 + s, "rd", tag=("R", nx)))
        else:
            i2 = 0
            for tile in range(2):
                for s in range(2):
                    for hf in range(2):
                        d = stg(buf[nx], tile, s) + 2 * hf
                        Fl.append(F(f"ds_read_b64_tr_b16 a[{d}:{d+1}], v21 offset:{(nx[1]&1)*16512 + (4*s+2*hf)*2064 + nx[2]*256 + tile*8}", rg + i2 // 2, rg + 1 + i2, "rd", tag=("R", nx))); i2 += 1
g1 = G[("QK", 0, 1)]
for cb in range(4):
    s0 = S(0, cb); t = 240 + 2 * cb; ch = ("mx", cb); e = 4 * cb + 7; l = g1 - 2 + 4 * cb
    for txt in [f"v_max3_f32 v{t}, v{s0}, v{s0+1}, v{s0+2}", f"v_max3_f32 v{t}, v{t}, v{s0+3}, v{FLOOR[cb]}", f"v_mov_b32 v{t+1}, v{t}",
                f"v_permlane16_swap_b32 v{t}, v{t+1}", f"v_max_f32 v{t}, v{t}, v{t+1}", f"v_mov_b32 v{t+1}, v{t}",
                f"v_permlane32_swap_b32 v{t}, v{t+1}", f"v_max_f32 v{t}, v{t}, v{t+1}"] + [f"v_sub_f32 v{CI(cb)+i}, 0, v{t}" for i in range(4)]:
        Fl.append(F(txt, e, l, ch))
for c in range(8):
    for kt in range(4):
        gq = G[("QK", c, kt)]
        for cb in range(4):
            e = gq + 4 * cb + 3 + 5
            l = (G[("QK", c + 1, kt)] + 4 * cb - 1) if c < 7 else G[("L", 7, 0)] - 2
            if c == 0 and kt < 2 and OPT.get("s2", 0): l = 1 << 20
            l = min(l, G[("L", c, 0)] - 2)
            ch = ("sm", kt, cb); s0 = S(kt, cb, c)
            if c == 1 and OPT.get("s2", 0): ch = ("sm1", cb)
            if c == 0 and kt < 1:
                ch = ("mx", cb)
                for i in range(4): Fl.append(F(f"v_add_f32 v{s0+i}, v{CI(cb)}, v{s0+i}", e, l, ch))
            for i in range(4): Fl.append(F(f"v_exp_f32 v{s0+i}, v{s0+i}", e, l, ch))
            for i in range(2): Fl.append(F(f"v_cvt_pk_bf16_f32 v{P(c,kt>>1,cb)+2*(kt&1)+i}, v{s0+2*i}, v{s0+2*i+1}", e, l, ch))
gL = G[("L", 7, 0)]
for cb in range(4): Fl.append(F(f"v_accvgpr_read_b32 v{240+cb}, a{LS+4*cb}", gL + 12, gL + 20, "nrm"))
for cb in range(4): Fl.append(F(f"v_rcp_f32 v{244+2*cb}, v{240+cb}", gL + 12, gL + 24, "nrm"))
for t in ["v_add_f32 v252, v240, v241", "v_add_f32 v254, v242, v243", "v_add_f32 v252, v252, v254", f"v_cmp_nge_f32 vcc, {f2u(2.0**34)}, v252\ns_cmp_lg_u64 vcc, 0\ns_cselect_b32 s3, 1, 0",
          "v_mov_b32 v254, s3", "v_and_b32 v253, 3, v1", "v_lshlrev_b32 v253, 2, v253", f"v_add_u32 v253, {LGO + 16}, v253"]:
    Fl.append(F(t, gL + 14, gL + 34, "nrm"))
def norm_ops(dp, cb, pk):
    t = 160 + cb * 8; o = []
    for tile in range(2):
        for r in range(4): o.append(f"v_accvgpr_read_b32 v{t+4*tile+r}, a{oacc(dp,tile,cb)+r}")
    if pk: o += [f"v_pk_mul_f32 v[{t+2*r}:{t+2*r+1}], v[{t+2*r}:{t+2*r+1}], v[{244+2*cb}:{245+2*cb}] op_sel_hi:[1,0]" for r in range(4)]
    else: o += [f"v_mul_f32 v{t+r}, v{244+2*cb}, v{t+r}" for r in range(8)]
    d = 224 + cb * 4
    o += [f"v_cvt_pk_bf16_f32 v{d+e}, v{t+2*e}, v{t+2*e+1}" for e in range(4)]
    o.append(f"ds_write_b128 v30, v[{d}:{d+3}] offset:{(dp*4+cb)*1024}")
    return o
lpF = []; spread_dma(lpF, G[("PV", 0, 1)] + 4 - OPT.get("lpe", 40), [f"s_add_u32 m0, s63, {UNIT}", f"s_add_u32 s10, s10, {64*6144}"], [f"buffer_load_dwordx4 v{2+i}, s[0:3], s10 offen offset:{i*1032}{' nt' if OPT.get('nt_lp', 1) else ''} lds" for i in range(4)], ["s_mov_b32 s2, s12"], "wm", None, 5)
cut = min(f.order for f in Fl if f.chain == "dma" and f.e >= G[("PV", 0, 3)])
for i, f in enumerate(lpF): f.order = cut - 1 + (i + 1) / 100.0
Fl += lpF
def late_producer():
    A(f"s_sub_u32 s3, s96, {LP0}\ns_cmp_ge_u32 s3, 2\ns_cbranch_scc1 L_nolp")
    keep = (list(st.vm), list(st.lg), list(st.hist))
    silu_to_lds(30, 240)
    A(f"v_lshrrev_b32 v240, 4, v1\nv_lshlrev_b32 v240, 4, v240\ns_lshl_b32 s3, s35, 8\ns_add_u32 s3, s3, {SILU}\nv_add_u32 v240, s3, v240\ns_waitcnt lgkmcnt(0)\ns_barrier")
    for k in range(4): A(f"ds_read_b128 a[{128+4*k}:{131+4*k}], v240 offset:{k*64}")
    st.need("wm")
    for u in range(2):
        for t in p16_reads(lambda tile, s: ("a", 144 + u * 16 + tile * 8 + s * 4), u * UNIT): A(t)
    for k in range(4):
        for tile in range(2): A(mf(244 + 4 * tile, 144 + (k >> 1) * 16 + tile * 8 + (k & 1) * 4, 128 + 4 * k, "0" if k == 0 else None))
    A(f"s_lshl_b32 s13, s13, 7\ns_add_u32 s13, s13, {WS_MOD2}")
    publish(2, 244, "L_lp_x", "s13", tmp=240, stmp="s3")
    A("L_lp_x:\ns_waitcnt lgkmcnt(0)\ns_nop 7\nL_nolp:")
    st.vm, st.lg, st.hist = keep
Fl.append(F(("call", late_producer), G[("PV", 2, 3)] + 1, G[("PV", 2, 3)] + 1, "lp"))
Fl.append(F("buffer_store_dword v255, v254, s[48:51], s11 offen sc1", G[("PV", 1, 1)] + 9, G[("PV", 1, 1)] + 12, "pw"))
Fl.append(F(f"v_add_u32 v254, {WS_F3 - WS_F2}, v254", G[("PV", 1, 1)] + 12, G[("PV", 1, 2)] + 8, "pw"))
Fl.append(F("buffer_store_dword v255, v254, s[48:51], s11 offen sc1", G[("PV", 1, 2)] + 9, G[("PV", 1, 2)] + 12, "pw"))
for i, r in enumerate((30, 2, 3, 4, 5)): Fl.append(F(f"v_add_u32 v{r}, s{85+i}, v16", G[("QK", 4, 0)], G[("PV", 6, 0)], "ba"))
NHID = 4
grp = [(dp, cb) for dp in range(4) for cb in range(4)]
for dp, cb in grp[:NHID]:
    for t in norm_ops(dp, cb, False): Fl.append(F(t, G[("PV", 7, dp)] + 16 + 3, NATT - 1, "nrm"))
for u in (4, 5):
    g = gL + 1 + (u - 4) * 16
    for i, t in enumerate(p16_reads(lambda tile, s: woreg(u, tile, s), RS(u) * UNIT)): Fl.append(F(t, g + i, g + 8 + i, "wor", tag=("RW", u), need=[("W", u)] if i == 0 else None))
E89 = OPT.get("e89", 1)
for u in (8, 9)[:2 * E89]:
    p = wo_pre(u, f"s_add_u32 m0, s63, {RS(u)*UNIT}"); spread_dma(Fl, gL + 22 + (u - 8) * 24, p[:2], dma4("s60", nt("wo")), p[2:], ("W", u), [("RW", u - 4)], 6)
assert not psn and not pf
schedule(st, M, Fl, reserve=RES, verbose="attn", mem2=("rd", "wor"), minback=OPT.get("minback", 10), pairfirst=lambda g: G[("QK", 7, 0)] - OPT.get("pfa", -1000) <= g < gL)
stamp("attn")
A("ds_write_b32 v31, v254")
for u in (6, 7):
    for i, t in enumerate(p16_reads(lambda tile, s: woreg(u, tile, s), RS(u) * UNIT)): st.add(t, tag=("RW", u), need=[("W", u)] if i == 0 else None)
for n, (dp, cb) in enumerate(grp[NHID:8]):
    for t in norm_ops(dp, cb, True): st.add(t, tag="ow" if t.startswith("ds_write") else None)

def oB(i, cb): return ("v", 32 + ((i - 4) * 4 + cb) * 4) if 4 <= i < 8 else ("a", ((i if i < 4 else i - 4) * 4 + cb) * 4)
def pacc(i, tile, cb): return 96 + (i & 1) * 32 + (tile * 4 + cb) * 4
def oB_read(ks, cb):
    f, r = oB(ks, cb); return f"ds_read_b128 {f}[{r}:{r+3}], v{2 + ((ks>>1)&3)} offset:{(((ks>>3)*2+(ks&1))*4+cb)*1024}"
with Capture() as osu:
    A(f"""
s_mul_i32 s6, s35, {UNIT}
s_add_u32 s6, s6, {VB}
s_sub_u32 s60, s6, s63
v_add_u32 v20, s60, v10
s_mul_i32 s7, s35, {2*UNIT}
s_sub_u32 s60, s7, s63
v_add_u32 v21, s60, v10
s_mul_i32 s62, s35, {UNIT}
s_add_u32 s62, s62, {8*UNIT}
s_cmp_eq_u32 s35, 3
s_cselect_b32 s62, {MISC+8192}, s62
s_sub_u32 s60, s62, s63
v_add_u32 v15, s60, v10
v_and_b32 v6, 15, v1
v_lshrrev_b32 v7, 1, v6
v_and_b32 v6, 1, v1
v_lshrrev_b32 v8, 4, v1
v_lshlrev_b32 v31, 11, v7
v_lshl_add_u32 v31, v6, 4, v31
v_lshl_add_u32 v31, v8, 5, v31
v_lshrrev_b32 v7, 3, v1
v_and_b32 v8, 7, v1
v_lshlrev_b32 v23, 7, v8
v_and_b32 v7, 1, v7
v_mul_u32_u24 v7, {WS_F1 - WS_F2}, v7
v_add_u32 v23, v23, v7
v_lshlrev_b32 v19, 16, v8
v_mov_b32 v7, {OOB}
v_cmp_le_u32 vcc, 8, v1
v_cndmask_b32 v19, v19, v7, vcc
v_and_b32 v24, 31, v1
v_lshlrev_b32 v24, 4, v24
s_lshl_b32 s60, s57, 3
s_add_u32 s60, s60, s56
s_lshl_b32 s60, s60, 7
s_add_u32 s60, s60, {WS_F1}
s_lshl_b32 s61, s58, 3
s_add_u32 s61, s61, s59
s_lshl_b32 s61, s61, 7
s_add_u32 s61, s61, {WS_F2 - 128}
v_lshlrev_b32 v8, 2, v1
v_add_u32 v22, s60, v8
v_add_u32 v8, s61, v8
v_cmp_le_u32 vcc, 32, v1
v_cndmask_b32 v22, v22, v8, vcc
v_lshrrev_b32 v8, 5, v1
v_lshl_add_u32 v24, v8, 16, v24
v_mov_b32 v25, s34
; s93 = partial store base, s8 = its running column offset; s9 = own flag line (wave 0) ; s0 = flag check base; s1 = read base; s12 = running read column
s_lshl_b32 s61, s57, 3
s_add_u32 s61, s61, s56
s_lshl_b32 s93, s61, 16
s_lshl_b32 s60, s35, 7
s_add_u32 s93, s93, s60
s_add_u32 s93, s93, {WS_PART}
s_lshl_b32 s8, s14, 9
s_cmp_lg_u32 s35, 0
s_cselect_b32 s9, {OOB}, 0
s_lshl_b32 s0, s58, 10
s_add_u32 s0, s0, {WS_F2}
s_lshl_b32 s1, s58, 19
s_lshl_b32 s60, s59, 13
s_add_u32 s1, s1, s60
s_lshl_b32 s60, s35, 11
s_add_u32 s1, s1, s60
s_add_u32 s1, s1, {WS_PART}
s_and_b32 s12, s58, {OPT.get("rotmask", 7) & 3}
s_lshl_b32 s12, s12, 9
s_mov_b32 s15, 0
""")
    A(f"""
v_lshrrev_b32 v6, 5, v1
s_and_b32 s60, s58, {OPT.get("rotmask", 7) & 3}
v_add_u32 v6, s60, v6
v_add_u32 v7, 2, v6
v_and_b32 v6, 3, v6
v_and_b32 v7, 3, v7
v_and_b32 v8, 30, v1
v_lshlrev_b32 v8, 3, v8
v_lshl_add_u32 v6, v6, 8, v8
v_lshl_add_u32 v7, v7, 8, v8
v_lshlrev_b32 v240, 1, v6
v_lshlrev_b32 v241, 1, v7
v_add_u32 v242, {MODV}, v240
v_add_u32 v243, {MODV}, v241
v_and_b32 v241, 3, v1
v_lshlrev_b32 v241, 2, v241
v_add_u32 v241, {LGO}, v241
v_not_b32 v240, v25
ds_write_b32 v241, v240
v_mov_b32 v241, {LGO}
v_and_b32 v8, 1, v1
v_lshl_add_u32 v6, v8, 10, v6
v_lshl_add_u32 v7, v8, 10, v7
v_lshlrev_b32 v8, 4, v0
v_add_u32 v8, {WS_MOD2}, v8
s_lshl_b32 s10, s58, 16
s_lshl_b32 s60, s59, 13
s_add_u32 s10, s10, s60
s_lshl_b32 s60, s35, 11
s_add_u32 s10, s10, s60
""")
    srd(52, 4, 2048 * 1024)
    A("s_movk_i32 s11, 4096")
st.need("ow", "psn"); A("s_barrier")
A("ds_read_b32 v252, v253")
for ks in range(2):
    for cb in range(4): A(oB_read(ks, cb))
st.newphase(); stamp("norm")
def slot_m0(r): return f"s_add_u32 m0, s63, {r*UNIT}" if r < 4 else {4: "s_mov_b32 m0, s6", 5: "s_mov_b32 m0, s7", 6: f"s_add_u32 m0, s7, {UNIT}", 7: "s_mov_b32 m0, s62"}[r]
def slot_rd(r): return (r * UNIT, "v10") if r < 4 else {4: (0, "v20"), 5: (0, "v21"), 6: (UNIT, "v21"), 7: (0, "v15")}[r]
def part_cvt(n, cb): return [f"v_cvt_pk_bf16_f32 v{224+4*cb+k}, v{pacc(n,k>>1,cb)+2*(k&1)}, v{pacc(n,k>>1,cb)+2*(k&1)+1}" for k in range(4)] + ([f"v_min_u32 v{224+4*cb}, -2, v{224+4*cb}"] if n >= 2 else [])
FLAG = "buffer_store_dword v25, v22, s[48:51], s9 offen sc1"
def pread(n, soff): return [f"buffer_load_dwordx4 v[{160+16*n+4*gp}:{163+16*n+4*gp}], v24, s[48:51], {soff[gp]} offen sc1{' nt' if OPT.get('pnt') else ''}" for gp in range(4)]
M = []; Fl = []; RES = {}
slot = {u: (RS(u) if (u & 7) < 4 else u & 7) for u in range(8, 32)}
ld = [(10, slot[10], 1, None), (11, slot[11], 17, None), (12, 4, 33, None), (13, 5, 4 * 16 + 11, None), (14, 6, 5 * 16 + 11, None), (15, 7, 6 * 16 + 11, None)] + [(u, slot[u], (u - 9) * 16 + 11, u - 8) for u in range(16, 32)]
for u in range(32):
    n, kk = u >> 3, u & 7; g0 = len(M)
    for tile in range(2):
        for cb in range(4):
            for s in range(2):
                f, r = oB(2 * kk + s, cb)
                fa, ra = woreg(u, tile, s) if u < 8 else ("a", stg(u, tile, s))
                M.append(mf(pacc(n, tile, cb), ra, r, "0" if (kk == 0 and s == 0) else None, "v", fa, f))
    if 8 <= u + 1 < 32:
        off, ad = slot_rd(slot[u + 1])
        for i, t in enumerate(p16_reads(lambda tile, s: ("a", stg(u + 1, tile, s)), off, ad)):
            Fl.append(F(t, g0 + i, g0 + i + 1, "rd", tag=("R", u + 1), need=[("W", u + 1)] if i == 0 else None))
    RES[g0 + 15] = 1
Fl.append(F("v_cmp_lt_u32 vcc, s95, v252\ns_cbranch_vccnz L_redo", 2, 2, "gd"))
GW = OPT.get("gow", 40)
for i, (dp, cb) in enumerate(grp[8:]):
    o = norm_ops(dp, cb, True); g = i * (GW - 4) // 8
    Fl.append(F("\n".join(o[:-1]), g, g, "nrm")); Fl.append(F(o[-1], g + 1, g + 1, "nrm", tag="ow2"))
Fl.append(F(("barrier", ["ow2"]), GW, GW, "ob"))
i = 0
for ks in range(2, 16):
    for cb in range(4):
        e = i if ks < 8 else max(GW + 1 + i - 24, {14: 48, 15: 64}.get(ks, 0) + cb)
        f = F(oB_read(ks, cb), e, e + 1, "ob", tag="OB"); i += 1
        if ks < 8: f.order -= 1000
        Fl.append(f)
GX_ = GW + 38
Fl += osu.fillers(GW - 8, 118, "su")
if E89: ld = [(10, slot[10], 1, None), (11, slot[11], 21, None), (12, 4, GW + 4, None)] + [(13 + k, 5 + k, GX_ + 2 + 14 * k, None) for k in range(3)] + ld[6:]
else: ld = [(u, slot[u], GW - 6 + 12 * (u - 8), None) for u in range(8, 16)] + ld[6:]
for u, r, g, nd in ld:
    if u == 13: Fl.append(F(("barrier", ["OB"]), GX_, GX_, "dma"))
    p = wo_pre(u, slot_m0(r))
    spread_dma(Fl, g, p[:2], dma4("s60", nt("wo")), p[2:] + (["s_add_u32 s92, s92, 256", "s_and_b32 s92, s92, 1023"] if (u & 7) == 7 else []), ("W", u), [("R", nd)] if nd is not None else None, 5 if g < GW else 4 if (u > 15 or E89) else 3)
for n in range(3):
    g = (8 * n + 8) * 16
    Fl.append(F("s_add_u32 s61, s93, s8", g + 2, g + 8, "po"))
    SS = OPT.get("ss", 4)
    for cb in range(4):
        for t in part_cvt(n, cb): Fl.append(F(t, g + 2, g + 9 + SS * cb, "po"))
        if not OPT.get("nopart"): Fl.append(F(f"buffer_store_dwordx4 v[{224+4*cb}:{227+4*cb}], v31, s[48:51], s61 offen{'' if OPT.get('plainst') else ' sc1'}", g + 9 + SS * cb, g + 10 + SS * cb, "po", tag=("part", n)))
        Fl.append(F("s_add_u32 s61, s61, 16384" if cb < 3 else "s_add_u32 s8, s8, 512", g + 9, g + 12 + SS * cb, "po"))
    Fl.append(F("s_and_b32 s8, s8, 2047", g + 20, g + 14 + 3 * SS, "po"))
    gf = g + OPT.get("gf", 6 * 16 + 9)
    if n != 1: continue
    Fl.append(F(("barrier", [("part", n)]), gf, gf, "po"))
    Fl.append(F(FLAG, gf + 1, gf + 1, "po"))
Fl.append(F("buffer_load_dword v240, v23, s[48:51], s0 offen sc1", 30 * 16 + 8, 30 * 16 + 12, "po"))
for i, t in enumerate(["buffer_load_dwordx4 v[244:247], v6, s[52:55], s10 offen", "buffer_load_dwordx4 v[248:251], v7, s[52:55], s10 offen",
                       "buffer_load_dwordx4 v[252:255], v8, s[48:51], 0 offen sc1", "buffer_load_dwordx4 v[26:29], v8, s[48:51], s11 offen sc1"]):
    Fl.append(F(t, OPT.get("gsm", 23 * 16 + 14) + 16 * i, OPT.get("gsm", 23 * 16 + 14) + 4 + 16 * i, "sm"))
g = 23 * 16 + 12
w1s = ["s_min_u32 s62, s59, 6", "s_lshl_b32 s62, s62, 9", "s_lshl_b32 s60, s35, 7", "s_add_u32 s62, s62, s60", "s_add_u32 s36, s16, s62\ns_addc_u32 s37, s17, 0", f"s_sub_u32 s38, {512*3584}, s62", f"s_cmp_eq_u32 s59, {7 if OPT.get('j7', 0) else 9}\ns_cselect_b32 s38, 0, s38", "s_lshl_b32 s14, s58, 1", f"s_and_b32 s14, s14, {6 if OPT.get('crot', 1) else 0}", "s_add_u32 s14, s14, s59", "s_and_b32 s92, s14, 7", f"s_mul_i32 s92, s92, {64*3584}",
       "v_bfe_u32 v2, v1, 2, 3", "v_mul_u32_u24 v2, 3584, v2", "v_lshrrev_b32 v3, 5, v1", "v_lshl_add_u32 v2, v3, 6, v2", "v_and_b32 v3, 3, v1", "v_lshl_add_u32 v11, v3, 4, v2",
       f"v_add_u32 v12, {8*3584-1032}, v11", f"v_add_u32 v13, {16*3584-2064}, v11", f"v_add_u32 v14, {24*3584-3096}, v11"]
for t in w1s: Fl.append(F(t, g, g + 14, "dma"))
NW0 = OPT.get('nw0', 7)
def w1_pre(): return ["s_mov_b32 s60, s92", f"s_add_u32 s92, s92, {32*3584}", f"s_cmp_eq_u32 s92, {512*3584}\ns_cselect_b32 s92, 0, s92"]
for k in range(NW0):
    p = w1_pre(); spread_dma(Fl, 24 * 16 + 12 + 16 * k - (k // 2) * 3, [slot_m0(slot[24 + k])] + p[:1], dma4("s60"), p[1:], ("W1", k), [("R", 24 + k)], 3)
m2 = ["buffer_load_dwordx4 v[252:255], v8, s[48:51], 0 offen sc1", "buffer_load_dwordx4 v[26:29], v8, s[48:51], s11 offen sc1"]
def mod2_check():
    cond2 = """v_cmp_ne_u32 vcc, s34, v253
    v_cmp_ne_u32 s[100:101], s34, v255
    s_or_b64 vcc, vcc, s[100:101]
    v_cmp_ne_u32 s[100:101], s34, v27
    s_or_b64 vcc, vcc, s[100:101]
    v_cmp_ne_u32 s[100:101], s34, v29
    s_or_b64 vcc, vcc, s[100:101]"""
    A(cond2); A("s_cbranch_vccz L_pm2_x")
    keep = (list(st.vm), list(st.lg), list(st.hist))
    spin("L_pm2", ["s_sleep 8"] + m2, cond2)
    st.vm, st.lg, st.hist = keep
with Capture() as cp:
    A(f"""
s_cmp_lt_u32 s35, 2
s_cselect_b32 s60, 1.0, 0
v_lshlrev_b32 v160, 16, v252
v_and_b32 v161, 0xffff0000, v252
v_lshlrev_b32 v162, 16, v254
v_and_b32 v163, 0xffff0000, v254
v_lshlrev_b32 v164, 16, v26
v_and_b32 v165, 0xffff0000, v26
v_lshlrev_b32 v166, 16, v28
v_and_b32 v167, 0xffff0000, v28
v_add_f32 v164, s60, v164
v_add_f32 v165, s60, v165
v_add_f32 v166, s60, v166
v_add_f32 v167, s60, v167
v_lshlrev_b32 v8, 4, v0
v_add_u32 v8, {MODV}, v8
ds_write_b128 v8, v[160:163]
ds_write_b128 v8, v[164:167] offset:4096
""")
Fl.append(F(("call", mod2_check), 30 * 16 + 9, 30 * 16 + 9, "m2"))
Fl += cp.fillers(30 * 16 + 10, 31 * 16 + 8, "m2")
for u in (8, 16, 24): Fl += stampF(f"O{u}", u * 16)
for u in (16, 20, 22, 23, 24, 25, 26, 27, 28, 29, 30, 31): Fl += stampF(f"u{u}", u * 16)
Fl += stampF("u32", 511)
schedule(st, M, Fl, reserve=RES, verbose="O")
for cb in range(4):
    for t in part_cvt(3, cb): A(t)
A("s_add_u32 s61, s93, s8")
for cb in range(4):
    st.add(f"buffer_store_dwordx4 v[{224+4*cb}:{227+4*cb}], v31, s[48:51], s61 offen sc1", tag=("part", 3))
    if cb < 3: A("s_add_u32 s61, s61, 16384")
stamp("O")

def w1reg(half, s, tile): return ((half * 16 + s) * 2 + tile) * 4
def w2reg(ks, tp, tile):
    o = tp * 8 + tile * 4
    if ks < 4: return ("v", 160 + ks * 16 + o)
    if ks < 9: return ("a", (ks - 4) * 16 + o)
    if ks < 13: return ("a", 192 + (ks - 9) * 16 + o)
    return ("v", 208 + o)
KS2 = [(p, 0) for p in range(7)] + [(p, 1) for p in range(7)]
class WS:
    nd = NW0; nr = 0; slot_of = {k: slot[24 + k] for k in range(NW0)}; last = {slot[24 + k]: k for k in range(NW0)}
def w_dma(n, slots):
    for _ in range(n):
        u = WS.nd; WS.nd += 1
        r = [x for x in slots if WS.last.get(x, -1) < WS.nr][0]
        A(slot_m0(r))
        if u == 16: w2_setup()
        A("\n".join(w1_pre()) if u < 16 else "\n".join(w2_pre(u - 16)))
        for i, t in enumerate(dma4("s60")): st.add(t, tag=("W1", u), need=[("R1", WS.last[r])] if (i == 0 and r in WS.last) else None)
        WS.slot_of[u] = r; WS.last[r] = u
def w_ops(n, slots):
    global A
    got = []; oa, oadd = A, st.add
    A = lambda t: got.extend((l.strip(), None, None) for l in t.split("\n") if l.strip())
    st.add = lambda t, tag=None, need=None: got.append((t, tag, need))
    try: w_dma(n, slots)
    finally: A = oa; del st.add
    return got
def interleave(lines, ops, every):
    for i, l in enumerate(lines):
        A(l)
        if i % every == every - 1 and not l.startswith(("v_cmp", "s_")):
            while ops:
                t, tag, need = ops.pop(0); st.add(t, tag=tag, need=need)
                if t.startswith("buffer"): break
    for t, tag, need in ops: st.add(t, tag=tag, need=need)
def w_read(n):
    for _ in range(n):
        u = WS.nr; WS.nr += 1; r = WS.slot_of[u]
        if u < 16:
            off, ad = slot_rd(r); L = p8_reads(lambda tp, tile: ("a", w1reg(tp, u, tile)), off, "v9" if r < 4 else ad)
        else:
            L = p8_reads(lambda tp, tile: w2reg(u - 16, tp, tile), r * UNIT if r < 4 else 0, "v9" if r < 4 else "v20")
        for i, t in enumerate(L): st.add(t, tag=("R1", u), need=[("W1", u)] if i == 0 else None)
def w2_setup():
    voffs8(1024)
    A(f"""
    s_lshl_b32 s60, s35, 16
    s_lshl_b32 s61, s59, 7
    s_add_u32 s60, s60, s61
    s_add_u32 s36, s20, s60
    s_addc_u32 s37, s21, 0
    s_sub_u32 s38, {1792*1024}, s60
    s_sub_u32 s7, s14, 7
    s_cselect_b32 s7, s14, s7
    s_mul_i32 s8, s7, 40960
    s_lshl_b32 s7, s7, 18
    """)
def w2_pre(ks): return [f"s_add_u32 s60, s7, {(ks // 7) * 32768}", "s_add_u32 s7, s7, 0x40000", f"s_cmp_eq_u32 s7, {7 << 18}\ns_cselect_b32 s7, 0, s7"]
ALL7 = [0, 1, 2, 3, 4, 5, 6]
srd(52, 18, 3584)
A("v_lshrrev_b32 v2, 4, v1\nv_lshlrev_b32 v2, 4, v2\nbuffer_load_dwordx4 v[80:83], v2, s[52:55], s62 offen\nbuffer_load_dwordx4 v[84:87], v2, s[52:55], s62 offen offset:64")
A("v_subrev_u32 v2, v10, v9\nv_add_u32 v20, v2, v20\nv_add_u32 v21, v2, v21")
stamp("elp")
def wave0_wait(lab, word, test, probe, ex=None):
    keep = None
    A(f"{test}\ns_cmp_eq_u32 s35, 0\ns_cbranch_scc1 {lab}_0\ns_cbranch_vccz {lab}_e\ns_mov_b32 s3, {SPIN * 8}")
    keep = (list(st.vm), list(st.lg))
    A(f"{lab}_l:\nds_read_b32 v240, v241 offset:{4*word}\ns_sub_u32 s3, s3, 1\ns_waitcnt lgkmcnt(0)\nv_cmp_ne_u32 vcc, s34, v240\ns_cmp_eq_u32 s3, 0\ns_cbranch_scc1 {lab}_e\ns_cbranch_vccz {lab}_e\ns_sleep 1\ns_branch {lab}_l")
    A(f"{lab}_0:\ns_cbranch_vccz {lab}_x")
    if ex: A(f"s_mov_b64 exec, {ex}")
    spin(lab, probe, test)
    if ex: A("s_mov_b64 exec, -1")
    A(f"ds_write_b32 v241, v25 offset:{4*word}\n{lab}_e:")
    st.vm, st.lg = keep; st.hist = []
wave0_wait("L_rdy", 0, "v_cmp_ne_u32 vcc, s34, v240", ["v_mov_b32 v240, 0", "buffer_atomic_add v240, v23, s[48:51], s0 offen sc0 sc1"], "0xffff")
def pre_off(n): return f"s_add_u32 s13, s12, {n*512}\ns_and_b32 s13, s13, 2047\ns_add_u32 s13, s13, s1"
def pread_ops(n):
    o = pre_off(n).split("\n")
    for gp, t in enumerate(pread(n, ["s13"] * 4)): o += [t] + (["s_add_u32 s13, s13, 0x20000"] if gp < 3 else [])
    return o
def preads(n, tag=None):
    for t in pread_ops(n): st.add(t, tag=tag if t.startswith("buffer") else None)
def hint(off): return ["v_mov_b32 v240, 0", f"buffer_atomic_add v240, v19, s[48:51], s15 offen offset:{off} sc0 sc1"]
def wait_hint(lab, word, off):
    wave0_wait(lab, word, "v_cmp_eq_u32 vcc, -1, v240", hint(off))
for n in range(2): preads(n)
A(pre_off(3).replace("s13", "s15"))
for t in hint(384): A(t)
w_read(NW0)
SP2 = OPT.get("sp2", 0)
if SP2: preads(2, "p2")
A("v_mov_b32 v2, 0x3f80\nv_mov_b32 v3, 0x3f800000")
def accq(n):
    for r in range(4): A(f"v_lshlrev_b32 v{96+8*n+2*r}, 16, v{160+16*n+r}\nv_and_b32 v{97+8*n+2*r}, 0xffff0000, v{160+16*n+r}")
    for gp in range(1, 4):
        for r in range(4): A(f"v_dot2c_f32_bf16 v{96+8*n+2*r}, v{160+16*n+4*gp+r}, v2\nv_dot2c_f32_bf16 v{97+8*n+2*r}, v{160+16*n+4*gp+r}, v3")
OWN5 = [0, 1, 2, 3, 4]; OWN7 = [0, 1, 2, 3, 4, 5, 6]
A(f"""
s_mul_i32 s6, s35, {UNIT}
s_add_u32 s6, s6, 65536
s_sub_u32 s60, s6, s63
s_waitcnt lgkmcnt(0)
v_add_u32 v20, s60, v9
s_barrier
""")
stamp("epr")
w_dma(OPT.get("nA", 0), OWN5)
def modrd(dst, vec):
    for h in range(2):
        for q in range(2): A(f"ds_read_b128 v[{dst+8*h+4*q}:{dst+8*h+4*q+3}], v{242+h} offset:{vec*2048 + q*16}")
modrd(32, 0); modrd(48, 2); modrd(64, 1)
wait_hint("L_hp", 1, 384)
stamp("f1st")
if SP2:
    preads(3, "p23")
    A("v_max3_u32 v240, v192, v196, v200\nv_max_u32 v240, v240, v204\nv_cmp_eq_u32 vcc, -1, v240\ns_cbranch_vccz L_had2")
    keep = list(st.vm); preads(2); A("s_waitcnt vmcnt(0)\nL_had2:"); st.vm = keep
else: preads(2, "p23"); preads(3, "p23")
w_dma(OPT.get("nB", 4), [5, 6, 0, 1, 2, 3, 4])
for r in range(8): A(f"v_lshlrev_b32 v{144+2*r}, 16, v{244+r}\nv_and_b32 v{145+2*r}, 0xffff0000, v{244+r}")
accq(0); accq(1)
chk23 = "v_max3_u32 v240, v192, v196, v200\nv_max3_u32 v240, v240, v204, v208\nv_max3_u32 v240, v240, v212, v216\nv_max_u32 v240, v240, v220\nv_cmp_eq_u32 vcc, -1, v240"
st.need("p23")
A(chk23); A("s_cbranch_vccz L_p23_x")
keep = (list(st.vm), list(st.lg)); spin("L_p23", ["s_sleep 2"] + pread_ops(2) + pread_ops(3), chk23); st.vm, st.lg = keep
stamp("f1ok")
def row_stats(x):
    A(f"v_pk_add_f32 v[96:97], v[{x}:{x+1}], v[{x+2}:{x+3}]\nv_pk_mul_f32 v[98:99], v[{x}:{x+1}], v[{x}:{x+1}]")
    A(f"v_pk_fma_f32 v[98:99], v[{x+2}:{x+3}], v[{x+2}:{x+3}], v[98:99]")
    for r in range(2, 8):
        A(f"v_pk_add_f32 v[96:97], v[96:97], v[{x+2*r}:{x+2*r+1}]\nv_pk_fma_f32 v[98:99], v[{x+2*r}:{x+2*r+1}], v[{x+2*r}:{x+2*r+1}], v[98:99]")
    A("v_add_f32 v96, v96, v97\nv_add_f32 v98, v98, v99")
    for d in ("quad_perm:[2,3,0,1]", "row_ror:4", "row_ror:8"):
        A(f"v_add_f32_dpp v96, v96, v96 {d} row_mask:0xf bank_mask:0xf\nv_add_f32_dpp v98, v98, v98 {d} row_mask:0xf bank_mask:0xf")
    for sw in ("16", "32"):
        A(f"v_mov_b32 v97, v96\nv_mov_b32 v99, v98\nv_permlane{sw}_swap_b32 v96, v97\nv_permlane{sw}_swap_b32 v98, v99\nv_add_f32 v96, v96, v97\nv_add_f32 v98, v98, v99")
    A(f"""v_mul_f32 v97, {f2u(1/512)}, v96
    v_mul_f32 v98, {f2u(1/512)}, v98
    v_fma_f32 v98, -v97, v97, v98
    v_max_f32 v98, 0, v98
    v_add_f32 v98, {f2u(1e-5)}, v98
    v_rsq_f32 v96, v98
    v_mul_f32_e64 v98, -v97, v96""")
with Capture() as lnc:
    accq(2); accq(3)
    for h in range(2):
        for r in range(8): A(f"v_permlane32_swap_b32 v{96+16*h+r}, v{104+16*h+r}")
    for h in range(2):
        for r in range(0, 8, 2): A(f"v_pk_add_f32 v[{128+8*h+r}:{129+8*h+r}], v[{96+16*h+r}:{97+16*h+r}], v[{104+16*h+r}:{105+16*h+r}]")
    for r in range(8): A(f"v_pk_fma_f32 v[{128+2*r}:{129+2*r}], v[{128+2*r}:{129+2*r}], v[{32+2*r}:{33+2*r}], v[{144+2*r}:{145+2*r}]")
    for r in range(8): A(f"v_cvt_pk_bf16_f32 v{144+r}, v{128+2*r}, v{129+2*r}")
    row_stats(128)
    for r in range(8): A(f"v_pk_fma_f32 v[{128+2*r}:{129+2*r}], v[{128+2*r}:{129+2*r}], v[96:97], v[98:99] op_sel_hi:[1,0,0]")
    for r in range(8): A(f"v_pk_fma_f32 v[{128+2*r}:{129+2*r}], v[{128+2*r}:{129+2*r}], v[{48+2*r}:{49+2*r}], v[{64+2*r}:{65+2*r}]")
    row_stats(128)
    for r in range(8): A(f"v_pk_fma_f32 v[{128+2*r}:{129+2*r}], v[{128+2*r}:{129+2*r}], v[96:97], v[98:99] op_sel_hi:[1,0,0]")
    for r in range(8): A(f"v_cvt_pk_bf16_f32 v{152+r}, v{128+2*r}, v{129+2*r}")
interleave(lnc.lines, w_ops(OPT.get("nL", 0), OWN7), OPT.get("evl", 18))
A(f"s_add_u32 s61, s10, {WS_Y}")
st.add("buffer_store_dwordx4 v[152:155], v6, s[48:51], s61 offen sc1", tag="y")
st.add("buffer_store_dwordx4 v[156:159], v7, s[48:51], s61 offen sc1", tag="y")
A(f"s_add_u32 s61, s10, {WS_X1}")
st.add("buffer_store_dwordx4 v[144:147], v6, s[48:51], s61 offen sc1", tag="y")
st.add("buffer_store_dwordx4 v[148:151], v7, s[48:51], s61 offen sc1", tag="y")
stamp("ysent")
w_read(WS.nd - WS.nr); w_dma(OPT.get("nD", 3), OWN5)
A(f"""
v_lshrrev_b32 v2, 4, v1
s_lshl_b32 s12, s58, 16
s_and_b32 s11, s35, 1
s_lshl_b32 s11, s11, 14
s_add_u32 s12, s12, s11
s_add_u32 s12, s12, {WS_Y}
s_lshr_b32 s15, s35, 1
s_lshl_b32 s61, s15, 13
s_add_u32 s11, s11, s61
s_mul_i32 s15, s15, 0x2040
s_lshl_b32 s61, s58, 3
s_add_u32 s61, s61, s59
s_lshl_b32 s9, s61, 7
s_add_u32 s9, s9, {WS_F3}
s_cmp_lg_u32 s35, 0
s_cselect_b32 s9, {OOB}, s9
s_lshl_b32 s0, s58, 2
s_add_u32 s0, s0, s35
s_lshl_b32 s0, s0, 8
s_add_u32 s0, s0, {WS_F3}
v_min_u32 v23, 2, v1
v_lshrrev_b32 v22, 1, v23
v_lshlrev_b32 v23, 7, v23
v_lshl_add_u32 v23, v22, 28, v23
v_and_b32 v22, 31, v1
v_lshlrev_b32 v22, 2, v22
v_lshrrev_b32 v4, 3, v1
v_lshrrev_b32 v5, 1, v4
v_xor_b32 v5, v5, v1
v_and_b32 v5, 7, v5
v_lshlrev_b32 v5, 4, v5
v_lshl_add_u32 v4, v4, 10, v5
v_xor_b32 v4, s15, v4
v_bfe_u32 v15, v1, 1, 3
v_xor_b32 v15, v15, v2
v_lshlrev_b32 v15, 4, v15
v_and_b32 v17, 7, v1
v_lshl_add_u32 v15, v17, 7, v15
v_bfe_u32 v17, v1, 3, 1
v_lshl_add_u32 v15, v17, 13, v15
v_xor_b32 v17, 64, v15
""")
for r in range(8): A(f"v_lshlrev_b32 v{224+2*r}, 16, v{80+r}\nv_and_b32 v{225+2*r}, 0xffff0000, v{80+r}")
stamp("ewr")
st.need("y")
stamp("eyack")
A("s_barrier"); A("buffer_store_dword v25, v22, s[48:51], s9 offen sc1")
w_read(WS.nd - WS.nr)
def y_ops(c):
    o = [("v_add_u32 v4, 32768, v4", None)] if c else [("s_and_b32 s13, s14, 7", None), ("s_lshl_b32 s13, s13, 7", None), ("v_add_u32 v4, s12, v4", None)]
    for sp in range(8):
        o += [(f"s_add_u32 m0, s11, {c*32768 + sp*1024}", None), ("buffer_load_dwordx4 v4, s[48:51], s13 offen sc1 lds", ("Y", 2 if c else sp >> 2))]
        o += [("s_add_u32 s13, s13, 128", None), ("s_and_b32 s13, s13, 1023", None)]
    return o
probe = ["v_mov_b32 v240, 0", "buffer_atomic_add v240, v23, s[48:51], s0 offen sc0 sc1"]; ctest = "v_cmp_ne_u32 vcc, s34, v240\ns_and_b64 vcc, vcc, 3"
w_dma(OPT.get("nE", 2), OWN5)
for t in probe: A(t)
w_dma(OPT.get("nE2", 2), OWN5)
stamp("epre2")
A(ctest); A("s_cbranch_vccz L_pf2_x")
keep = (list(st.vm), list(st.lg)); spin("L_pf2", probe, ctest); st.vm, st.lg = keep
A("s_waitcnt lgkmcnt(0)\ns_barrier")
stamp("ebar2")
for t, tag in y_ops(0): st.add(t, tag=tag)
assert WS.nd > 16
stamp("f2ok")
if OPT.get("warm2", 1): warm("L_w2")
A(f"s_lshl_b32 s60, s2, 2\ns_add_u32 s60, s60, s35\ns_cmp_lg_u32 s60, 1\ns_cbranch_scc1 L_noep\nv_lshlrev_b32 v2, 7, v1\nv_add_u32 v2, {WS_F1}, v2\ns_mov_b32 s60, 0x2000\ns_mov_b32 s61, 0x4000\ns_mov_b32 s15, 0x6000")
keep = (list(st.vm), list(st.lg))
spin("L_ep", [f"buffer_load_dword v{40+i}, v2, s[48:51], {['0', 's60', 's61', 's15'][i]} offen sc1" for i in range(4)],
     "v_cmp_ne_u32 vcc, s34, v40\n" + "".join(f"v_cmp_ne_u32 s[100:101], s34, v{40+i}\ns_or_b64 vcc, vcc, s[100:101]\n" for i in range(1, 4)))
A("v_mov_b32 v2, 0\nbuffer_store_dword v25, v2, s[48:51], 0 offen sc1\nL_noep:"); st.vm, st.lg = keep
st.need(("Y", 0))
A("s_barrier")
stamp("Yin")

def yb(n, s, c2): return 96 + (n & 1) * 32 + (s * 2 + c2) * 4
def hacc(half, tile, cb): return 32 + half * 32 + (tile * 4 + cb) * 4
def yreads(n):
    cp, k4 = (n >> 2) & 1, n & 3
    return [f"ds_read_b128 v[{yb(n,s,c2)}:{yb(n,s,c2)+3}], v{15 if s % 2 == 0 else 17} offset:{(cp*2+c2)*16384 + (k4*2+(s>>1))*1024}" for c2 in range(2) for s in range(4)]
C1 = -2 * 0.7978845608028654 * 1.4426950408889634; C2 = C1 * 0.044715
def gelu_stages(q):
    half, cp = q >> 1, q & 1
    X = [hacc(half, t, cp * 2 + c2) + r for c2 in range(2) for t in range(2) for r in (0, 2)]; T = [240 + 2 * i for i in range(8)]
    pr = lambda r: f"v[{r}:{r+1}]"
    a = [f"v_pk_mul_f32 {pr(t)}, {pr(x)}, {pr(x)}" for x, t in zip(X, T)] + [f"v_pk_fma_f32 {pr(t)}, {pr(t)}, s[92:93], v[26:27] op_sel_hi:[1,0,0]" for t in T] + [f"v_pk_mul_f32 {pr(t)}, {pr(x)}, {pr(t)}" for x, t in zip(X, T)]
    b = [f"v_exp_f32 v{240+i}, v{240+i}" for i in range(16)]
    c = [f"v_pk_add_f32 {pr(t)}, {pr(t)}, 1.0 op_sel_hi:[1,0]" for t in T]
    d = [f"v_rcp_f32 v{240+i}, v{240+i}" for i in range(16)]
    e = [f"v_pk_mul_f32 {pr(x)}, {pr(x)}, {pr(t)}" for x, t in zip(X, T)]
    st_ = []
    for c2 in range(2):
        cb = cp * 2 + c2; dd = hacc(half, 0, cb)
        e += [f"v_cvt_pk_bf16_f32 v{dd+k}, v{X[4*c2+k]}, v{X[4*c2+k]+1}" for k in range(4)]
        e.append(f"v_min_u32 v{dd}, -2, v{dd}")
        st_.append(f"buffer_store_dwordx4 v[{dd}:{dd+3}], v16, s[48:51], s{93+1+half} offen offset:{cb*1024} sc1")
    return a, b, c, d, e, st_
def flag3(q): return f"buffer_store_dword v25, v22, s[48:51], s11 offen offset:{q*512} sc1"
for t in yreads(0): A(t)
late_w = []
assert WS.nr >= 12
while WS.nr < min(WS.nd, 20):
    u = WS.nr; WS.nr += 1; r = WS.slot_of[u]
    late_w += [(t, u) for t in p8_reads((lambda tp, tile: ("a", w1reg(tp, u, tile))) if u < 16 else (lambda tp, tile: w2reg(u - 16, tp, tile)), r * UNIT if r < 4 else 0, "v9" if r < 4 else "v20")]
A(f"""
s_mov_b32 s92, {f2u(C2)}
v_mov_b32 v26, {f2u(C1)}
s_lshl_b32 s60, s58, 3
s_add_u32 s60, s60, s59
s_mul_i32 s94, s60, 40960
s_mul_i32 s61, s35, 5120
s_add_u32 s94, s94, s61
s_add_u32 s94, s94, {WS_H1}
s_cmp_eq_u32 s59, {7 if OPT.get('j7', 0) else 9}
s_cselect_b32 s94, {OOB}, s94
s_add_u32 s95, s94, 20480
s_mul_i32 s1, s58, 327680
s_add_u32 s1, s1, s61
s_add_u32 s1, s1, {WS_H1}
""")
NE = WS.nd - 16
W2S = {ks: ([0, 1, 2, 3, 4] * 3)[ks - NE] for ks in range(NE, 14)}
if NE == 5: W2S[4] = WS.slot_of[20]
def w2_m0(r): return f"s_add_u32 m0, s63, {r*UNIT}" if r < 4 else "s_mov_b32 m0, s6"
def w2_reads(ks): r = W2S[ks]; return p8_reads(lambda tp, tile: w2reg(ks, tp, tile), r * UNIT if r < 4 else 0, "v9" if r < 4 else "v20")
def hB(Q, k, c2):
    r = (k * 2 + c2) * 4
    if Q == 0: return ("a", 80 + r) if r < 48 else ("v", 224 + r - 48)
    if Q == 2: return ("v", 32 + r if r < 40 else (80 + r - 40 if r < 48 else 232 + r - 48))
    return [None, ("a", 136 + r), None, ("a", 80 + r)][Q]
def h_loads(Q, run="s8", tmp="s10"):
    o = []
    for k in range(7):
        o.append(f"s_add_u32 {tmp}, s1, {run}")
        for c2 in range(2):
            f, r = hB(Q, k, c2); o.append(f"buffer_load_dwordx4 {f}[{r}:{r+3}], v{16 + 2*(Q>>1)}, s[48:51], {tmp} offen offset:{((Q&1)*2+c2)*1024} sc1")
        o += [f"s_add_u32 {run}, {run}, 40960", f"s_cmp_eq_u32 {run}, {7 * 40960}\ns_cselect_b32 {run}, 0, {run}"]
    return o
def chk3(q): return f"buffer_load_dword v{28 + (q&1)}, v23, s[48:51], s0 offen offset:{q*512} sc1"
A("v_add_u32 v18, 20480, v16\ns_mov_b32 s9, s8")
M = []; Fl = []; RES = {}
for n in range(16):
    q = n >> 2; half, cp, k4 = q >> 1, q & 1, n & 3; g0 = len(M)
    for tile in range(2):
        for c2 in range(2):
            for s in range(4):
                M.append(mf(hacc(half, tile, cp * 2 + c2), w1reg(half, 4 * k4 + s, tile), yb(n, s, c2), (224 + half * 8 + tile * 4) if (k4 == 0 and s == 0) else None, "v", "a", "v"))
    if n == 0:
        nl = len(late_w)
        LW = OPT.get("lws", 3)
        for i, (t, u) in enumerate(late_w): Fl.append(F(t, i * LW // 4 if i < nl else 49 + (i - nl) // 2, i * LW // 4 if i < nl else 49 + (i - nl) // 2, "lw", tag=("LW", i >> 3), need=[("W1", u)] if i % 8 == 0 else None))
    if n in (1, 3): Fl.append(F(("barrier", [("Y", 1 + n // 2)]), g0, g0, "rd"))
    if n < 15:
        for i, t in enumerate(yreads(n + 1)): Fl.append(F(t, g0 + i, g0 + i + 1, "rd"))
    RES[g0 + 15] = 1
g = 0
for t, tag in y_ops(1):
    Fl.append(F(t, max(0, g - 3) if not tag else g, g, "dma", tag=tag))
    if tag: g += OPT.get("ys", 3)
nlw = len(late_w) // 8; lslot = [WS.slot_of[u] for u in range(WS.nr - nlw, WS.nr)]
free = [(r, None) for r in range(5) if r not in lslot and not (NE == 5 and r == W2S[4])] + [(r, ("LW", i)) for i, r in enumerate(lslot)]
ev = []; gd = OPT.get("gw2", 26); rdg = {}; PACE = OPT.get("pace", 14)
afree = {4: 81, 5: 86, 6: 97, 7: 102, 8: 113}
if NE == 5: rdg[4] = afree[4]; ev.append((rdg[4], "r", 4))
for ks in range(NE, 14):
    if free: r, nd = free.pop(0)
    else: r, nd = W2S[ks - 5], ("R2", ks - 5); gd = max(gd, rdg[ks - 5] + 8)
    W2S[ks] = r; ev.append((gd, "d", ks, nd))
    if ks < 9: rdg[ks] = max(gd + 44, afree.get(ks, 0)); ev.append((rdg[ks], "r", ks))
    gd += PACE
for e in sorted(ev, key=lambda e: e[0]):
    g, kind, ks = e[:3]
    if kind == "d":
        p = w2_pre(ks); spread_dma(Fl, g, [w2_m0(W2S[ks])] + p[:1], dma4("s60"), p[1:], ("W2", ks), [e[3]], 3)
    else:
        for k, t in enumerate(w2_reads(ks)): Fl.append(F(t, g + k // 2, g + (k + 1) // 2, "w2r", tag=("R2", ks), need=[("W2", ks)] if k == 0 else None))
CAP = {}
for q in range(3):
    g = 64 * (q + 1) + 4; a_, b_, c_, d_, e_, st_ = gelu_stages(q)
    Fl.append(F("\n".join(a_), g, g, "gelu"))
    for i, t in enumerate(b_): Fl.append(F(t, g + 1 + i, g + 1 + i, "gelu"))
    Fl.append(F("\n".join(c_), g + 18, g + 18, "gelu"))
    for i, t in enumerate(d_): Fl.append(F(t, g + 19 + i, g + 19 + i, "gelu"))
    Fl.append(F("\n".join(e_), g + 36, g + 36, "gelu"))
    for i, t in enumerate(st_): Fl.append(F(t, g + 37 + 2 * i, g + 37 + 2 * i, "gelu", tag=("h1", q)))
    for k in range(g + 1, g + 35): CAP[k] = 3
def h_check(Q):
    o = []
    for k in range(7):
        for c2 in range(2):
            f, r = hB(Q, k, c2)
            if f == "a": o.append(f"v_accvgpr_read_b32 v29, a{r}"); r = 29
            o.append(f"v_mov_b32 v28, v{r}" if not (k or c2) else f"v_max_u32 v28, v28, v{r}")
    return o
def check_F(Q, e, l, chain): return [F(t, e, l, chain, need=[("H", Q)] if i == 0 else None) for i, t in enumerate(h_check(Q))]
def spread_loads(Fl, ops, g0, step, chain="hl", tag=None):
    g = g0
    for t in ops:
        Fl.append(F(t, g - 2, g + 1, chain, tag=tag if t.startswith("buffer") else None))
        if t.startswith("buffer"): g += step
    return g
def have(Q):
    c = "v_cmp_eq_u32 vcc, -1, v28"
    A(c); A(f"s_cbranch_vccz L_h{Q}_x")
    keep = (list(st.vm), list(st.lg), list(st.hist))
    spin(f"L_h{Q}", ["s_sleep 4"] + [x for t in h_loads(Q, "s9", "s13") for x in t.split("\n")], "\n".join(h_check(Q)) + "\n" + c)
    st.vm, st.lg, st.hist = keep
    stamp(f"mchk{Q}")
spread_loads(Fl, h_loads(0), OPT.get("gl0", 176), 4, "ck", ("H", 0))
hl = h_loads(1); n1a = 5 * OPT.get("n1a", 3)
spread_loads(Fl, hl[:n1a], 234, 4, "ck", ("H", 1)); hl = hl[n1a:]
Fl += check_F(0, 241, 255, "hc")
for q in range(1, 4): Fl += stampF(f"mq{q}", 64 * q)
if OPT.get("abl"):
    ab = OPT["abl"]
    def drop(f):
        if isinstance(f.ins, tuple): return False
        t = f.ins.txt
        return (ab & 1 and t.endswith("lds")) or (ab & 2 and t.startswith("buffer_store_dwordx4")) or (ab & 4 and f.chain == "ck" and "dwordx4" in t) or (ab & 8 and f.chain == "w2r")
    Fl = [f for f in Fl if not drop(f)]
schedule(st, M, Fl, reserve=RES, verbose="G1", mem2=("rd", "dma", "w2r", "ck", "lw"), minback=0, capx=CAP)
stamp("G1")
a_, b_, c_, d_, e_, st_ = gelu_stages(3)
for i, t in enumerate(a_ + b_ + c_ + d_ + e_):
    A(t)
    if i % 9 == 8:
        while hl:
            x = hl.pop(0)
            if x.startswith("buffer"): st.add(x, tag=("H", 1)); break
            A(x)
for t in st_: A(t)
stamp("mgelu3")
have(0)
stamp("gelu")

def facc(tp, tile, cb): return 96 + (tp * 8 + tile * 4 + cb) * 4
def g2(Q):
    r = []
    for ch in (([0, 1], [2, 3], [4, 5, 6]) if Q < 2 else ([0, 1, 2, 3, 4, 5, 6],)):
        for tp in range(2):
            for tile in range(2):
                for c2 in range(2):
                    for k in ch:
                        fa, ra = w2reg((Q >> 1) * 7 + k, tp, tile); fb, rb = hB(Q, k, c2)
                        r.append(mf(facc(tp, tile, (Q & 1) * 2 + c2), ra, rb, "0" if (Q < 2 and k == 0) else None, "v", fa, fb))
    return r
Fl = []
for i in range(4):
    for k, t in enumerate(w2_reads(9 + i)): Fl.append(F(t, 8 * i + k, 8 * i + k + 1, "rd", need=[("W2", 9 + i)] if k == 0 else None))
g = spread_loads(Fl, hl, 0, 3, tag=("H", 1))
spread_loads(Fl, h_loads(2), max(g, OPT.get("gl2", 10)), OPT.get("st2", 3), tag=("H", 2))
Fl += check_F(1, 41, 55, "hc")
schedule(st, g2(0), Fl)
stamp("mg20")
have(1)
with Capture() as cp:
    A(f"""
v_and_b32 v2, 15, v1
v_lshlrev_b32 v2, 10, v2
v_lshrrev_b32 v3, 4, v1
v_lshl_add_u32 v2, v3, 4, v2
v_lshlrev_b32 v4, 4, v3
s_lshl_b32 s92, s58, 16
s_lshl_b32 s60, s35, 14
s_add_u32 s92, s92, s60
s_lshl_b32 s95, s59, 7
s_add_u32 s92, s92, s95
s_add_u32 s60, s92, {WS_X1}
""")
    srd(52, 22, 1024)
Fl = cp.fillers(0, 30, "su", ren=False)
Fl += [F(t, 32 + k, 33 + k, "rd", need=[("W2", 13)] if k == 0 else None) for k, t in enumerate(w2_reads(13))]
spread_loads(Fl, h_loads(3), OPT.get("gl3", 8), OPT.get("st2", 3), tag=("H", 3))
Fl += check_F(2, 46, 55, "hc")
schedule(st, g2(1), Fl)
stamp("G2a")
have(2)
def fwrite(cb, tp, tile): return f"ds_write_b128 v5, v[{facc(tp,tile,cb)}:{facc(tp,tile,cb)+3}] offset:{cb*16384 + (tp*2+tile)*1024}"
def fw_F(Q, n0, n1, shift):
    return [F(fwrite((Q & 1) * 2 + (n & 1), n >> 2, (n >> 1) & 1), 7 * n + 6 + 8 + shift, 7 * n + 6 + 8 + shift, "fw") for n in range(n0, n1)]
Fl = []
spread_loads(Fl, ["buffer_load_dwordx4 v[240:243], v2, s[48:51], s60 offen sc1", "buffer_load_dwordx4 v[244:247], v2, s[48:51], s60 offen offset:64 sc1",
             "buffer_load_dwordx4 v[248:251], v4, s[52:55], s95 offen", "buffer_load_dwordx4 v[252:255], v4, s[52:55], s95 offen offset:64"], 2, 6)
Fl += check_F(3, 41, 55, "hc")
for t in ["s_lshl_b32 s3, s35, 12", "v_add_u32 v5, s3, v16"]: Fl.append(F(t, 0, 2, "fw"))
Fl.append(F(("barrier", []), 3, 3, "fw"))
Fl += fw_F(2, 0, 6, 0)
schedule(st, g2(2), Fl)
stamp("mg22")
have(3)
with Capture() as cp:
    A(f"""
s_lshl_b32 s60, s35, 14
v_add_u32 v6, s60, v16
v_lshlrev_b32 v7, 5, v3
s_lshl_b32 s60, s59, 8
s_add_u32 s60, s60, {MODV + 3*2048}
v_add_u32 v7, s60, v7
v_and_b32 v8, 7, v1
v_lshlrev_b32 v8, 10, v8
v_lshl_add_u32 v8, v3, 4, v8
v_bfe_u32 v9, v1, 3, 1
v_lshl_add_u32 v8, v9, 6, v8
""")
    for tp in range(2):
        for q in range(2): A(f"ds_read_b128 v[{64+tp*8+4*q}:{67+tp*8+4*q}], v7 offset:{tp*128+q*16}")
    for r in range(8): A(f"v_lshlrev_b32 v{32+2*r}, 16, v{240+r}\nv_and_b32 v{33+2*r}, 0xffff0000, v{240+r}\nv_lshlrev_b32 v{48+2*r}, 16, v{248+r}\nv_and_b32 v{49+2*r}, 0xffff0000, v{248+r}")
    srd(52, 28, 2048 * 1024)
Fl = fw_F(2, 6, 8, -56 + 2) + fw_F(3, 0, 6, 0) + cp.fillers(0, 50, "su", ren=False)
schedule(st, g2(3), Fl)
stamp("G2")
A(fwrite(2, 1, 1)); A(fwrite(3, 1, 1))
stamp("mwr")
A("s_waitcnt lgkmcnt(0)\ns_barrier")
stamp("mbar")
for src in range(4):
    for n in range(4): A(f"ds_read_b128 v[{96+src*16+n*4}:{99+src*16+n*4}], v6 offset:{src*4096+n*1024}")
for src in range(4):
    for r in range(8): A(f"v_pk_add_f32 v[{48+2*r}:{49+2*r}], v[{48+2*r}:{49+2*r}], v[{96+src*16+2*r}:{97+src*16+2*r}]")
for r in range(8): A(f"v_pk_fma_f32 v[{32+2*r}:{33+2*r}], v[{48+2*r}:{49+2*r}], v[{64+2*r}:{65+2*r}], v[{32+2*r}:{33+2*r}]")
OM = OPT.get("outm", 1); ofl = ["", " sc1", " nt", " sc1 nt", " sc0 sc1"][OPT.get("outf", 3)]
if OM == 0:
    for h in range(2):
        for r in range(4 * h, 4 * h + 4): A(f"v_cvt_pk_bf16_f32 v{80+r}, v{32+2*r}, v{33+2*r}")
        A(f"buffer_store_dwordx4 v[{80+4*h}:{83+4*h}], v2, s[52:55], s92 offen offset:{64*h}{ofl}")
else:
    for r in range(8): A(f"v_cvt_pk_bf16_f32 v{80+r}, v{32+2*r}, v{33+2*r}")
    for r in range(4): A(f"v_mov_b32 v{88+r}, v{80+r}")
    for r in range(4): A(f"v_mov_b32_dpp v{80+r}, v{84+r} row_ror:8 row_mask:0xf bank_mask:0xc")
    A(f"buffer_store_dwordx4 v[80:83], v8, s[52:55], s92 offen{ofl}")
    for r in range(4): A(f"v_mov_b32_dpp v{84+r}, v{88+r} row_ror:8 row_mask:0xf bank_mask:0x3")
    A(f"s_add_u32 s92, s92, 8192\nbuffer_store_dwordx4 v[84:87], v8, s[52:55], s92 offen{ofl}")
if OPT["stamps"]:
    stamp("end")
    A("s_memrealtime s[96:97]\ns_waitcnt lgkmcnt(0)\ns_cmp_lg_u32 s35, " + str(OPT.get("sw", 0)) + "\ns_cbranch_scc1 L_end\ns_mov_b64 exec, 1")
    A(f"s_lshl_b32 s60, s2, 9\ns_add_u32 s60, s60, {WS_STAMP - WSO}\nv_mov_b32 v6, 0")
    A(f"s_mov_b32 s{64+stamp_n[0]-1}, s90")
    lst = [64 + n for n in range(stamp_n[0])] + [98, 96, 15]
    A("v_mov_b32 v3, 0")
    for n, s in enumerate(lst): A(f"v_mov_b32 v2, s{s}\nbuffer_store_dwordx2 v[2:3], v6, s[48:51], s60 offen offset:{n*8}\ns_nop 1")
    if OPT["dbg"] >= 0:
        srd(52, 30, 256)
        A(f"s_cmp_lg_u32 s2, {OPT['dbg']}\ns_cbranch_scc1 L_end")
        sel = [i for i in range(1, stamp_n[0]) if stamp_names[i] not in ("norm", "gelu", "G2a")][:14]
        for n, k in enumerate(sel): A(f"s_sub_u32 s60, s{64+k}, s64\nv_mov_b32 v2, s60\nbuffer_store_dword v2, v6, s[52:55], 0 offen offset:{4+n*4}\ns_nop 1")
        A("s_sub_u32 s60, s96, s98\nv_mov_b32 v2, s60\nbuffer_store_dword v2, v6, s[52:55], 0 offen offset:60")
        print("dbg order:", [stamp_names[k] for k in sel], "realtime")
    open(os.path.splitext(sys.argv[1])[0] + ".names", "w").write(" ".join(stamp_names))
    print("stamps:", len(lst))
if OPT.get("diag2"):
    srd(52, 30, 256)
    A("s_not_b32 s60, s98\nv_mov_b32 v2, s60\nv_mov_b32 v3, 0\ns_mov_b64 exec, 1\nbuffer_atomic_umax v2, v3, s[52:55], 0 offen sc1\ns_waitcnt vmcnt(0)")
    A("L_dg2:\ns_memrealtime s[96:97]\ns_waitcnt lgkmcnt(0)\ns_sub_u32 s96, s96, s98\ns_cmp_lt_u32 s96, 5500\ns_cbranch_scc1 L_dg2")
    A("buffer_load_dword v2, v3, s[52:55], 0 offen sc1\nv_readfirstlane_b32 s60, v2\ns_not_b32 s98, s60")
if OPT.get("diag"):
    A(f"L_diag:\ns_memrealtime s[96:97]\ns_waitcnt lgkmcnt(0)\ns_sub_u32 s96, s96, s98\ns_cmp_lt_u32 s96, {OPT['diag'] * 100}\ns_cbranch_scc1 L_diag")
A("s_endpgm")
st.reset(); st.newphase()
A(f"""
L_redo:
s_waitcnt vmcnt(0) lgkmcnt(0)
s_nop 15
s_mov_b32 s95, 1
s_mov_b32 s3, 8
s_barrier
L_redo_c:
""")
pre, d, post = k_ops(0)
for t in pre + d + post: A(t)
A("s_waitcnt vmcnt(0)\ns_barrier")
for kt in range(4):
    for sx in range(4): A(f"ds_read_b128 a[{STG+4*sx}:{STG+4*sx+3}], v{17+sx} offset:{KA + kt*1024}")
    for cb in range(4):
        for sx in range(4): A(mf(S(0, cb), STG + 4 * sx, qop(sx, cb), None if sx else "0", "v", "a", "v"))
    for cb in range(4): A(f"v_max3_f32 v{FLOOR[cb]}, v{FLOOR[cb]}, v{S(0,cb)}, v{S(0,cb)+1}\nv_max3_f32 v{FLOOR[cb]}, v{FLOOR[cb]}, v{S(0,cb)+2}, v{S(0,cb)+3}")
A("s_barrier\ns_sub_u32 s3, s3, 1\ns_cmp_lg_u32 s3, 0\ns_cbranch_scc1 L_redo_c")
for t in attn_setup:
    if t.split()[1] not in ("s36,", "s37,", "s38,"): A(t)
for ops in (k_ops(0), k_ops(1), v_ops(0)):
    for t in ops[0] + ops[1] + ops[2]: A(t)
A("s_waitcnt vmcnt(0)\ns_barrier")
for sx in range(4): A(f"ds_read_b128 a[{STG+sx*4}:{STG+sx*4+3}], v{17+sx} offset:{KA}")
A("s_waitcnt lgkmcnt(0)\ns_branch L_attn")
st.raw(f"""L_end:
    s_endpgm
L_codeend:
.section .rodata,"a"
.p2align 6
.amdhsa_kernel {NAME}_kernel
  .amdhsa_next_free_vgpr 512
  .amdhsa_next_free_sgpr 102
  .amdhsa_accum_offset 256
  .amdhsa_group_segment_fixed_size 0
  .amdhsa_kernarg_size 120
  .amdhsa_user_sgpr_count 2
  .amdhsa_user_sgpr_kernarg_segment_ptr 1
  .amdhsa_system_sgpr_workgroup_id_x 1
.end_amdhsa_kernel""")
def with_stubs(txt):
    import subprocess, tempfile
    lines = txt.split("\n")
    isins = lambda l: l.startswith("    ") and l.strip() and not l.strip().startswith((".", ";"))
    NS = 24
    tail = "".join(f"L_stub{k}:\n" for k in range(NS))
    with tempfile.TemporaryDirectory() as d:
        open(d + "/a.s", "w").write(txt.replace("L_codeend:", tail + "L_codeend:").replace("@", ""))
        subprocess.run(["clang", "-x", "assembler", "-target", "amdgcn-amd-amdhsa", "-mcpu=gfx950", "-c", d + "/a.s", "-o", d + "/a.o"], check=True)
        dis = subprocess.run(["llvm-objdump", "-d", "--mcpu=gfx950", d + "/a.o"], capture_output=True, text=True).stdout
    enc = [len(m.group(1).split()) * 4 for m in re.finditer(r"// [0-9A-F]+: ((?:[0-9A-F]{8} ?)+)", dis)]
    j = lines.index("L_join:"); n_after = sum(map(isins, lines[j:]))
    sizes = enc[len(enc) - n_after:]
    out = lines[:j + 1]; pos = 0; k = 1; i = 0; off = False
    for l in lines[j + 1:]:
        if isins(l):
            if pos >= k * 4096 and l.strip() != "s_endpgm" and not off:
                out += [f"L_stub{k}:", f"    s_cbranch_execz L_stub{k+4}"]; pos += 4; k += 1
            pos += sizes[i]; i += 1
            if l.strip() == "s_mov_b64 exec, 0": off = True
            if l.strip() == "s_mov_b64 exec, -1": off = False
        if l == "L_codeend:": out += [f"L_stub{q}:" for q in range(k, NS)] + ["    s_setpc_b64 s[100:101]"]
        out.append(re.sub(r"@(\d)", lambda m: str(k + int(m.group(1))), l))
    print("code after join:", pos, "stubs", k - 1)
    return "\n".join(out)
open(sys.argv[1], "w").write(with_stubs(st.text()) if OPT.get("warm", 1) else st.text())
print("waits", st.nwait, "nop states", st.nnop)
```

```python
import sys, os, re, struct
sys.path.insert(0, os.path.join(os.path.dirname(os.path.abspath(__file__)), "tools"))
from asmgen import *
NAME = "adaLN_cond__sliding_block_cached__mixer_channel_mlp__prompt"
OPT = dict(stamps=0, gx=2, nt_wq=0, nt_wo=0, nt_kv=0, nt_mod=1, nt_x=0, pf_w1=1, pf_w2=2, pnt=1, early=1, dbg=-1)
for a in sys.argv[2:]:
    k, v = a.split("="); OPT[k] = int(v)
def nt(k): return " nt" if OPT["nt_" + k] else ""

KA, KB, VA, VB, XR = 0, 16512, 32896, 49408, 65920
HIMG = KB
RING0, RINGSZ, UNIT = 82304, 16512, 4128
MISC = 148352
MODV = MISC
SILU = MISC + 8192
RED = MISC + 9216
LGO = MISC + 12800
LDS_BYTES = 163840
WS_MOD, WS_F2, WS_F3, WS_F1 = 0x1000, 0x20000, 0x40000, 0x100000
WS_Y, WS_X1, WS_H1, WS_PART = 0x200000, 0x400000, 0x600000, 0x1000000
WS_STAMP = 0xF000000
OOB = 0x10000000
WSO = OPT.get("wso", 0) << 20
SCALE = 1.4426950408889634 / (128 ** 0.5)
def f2u(x): return struct.unpack("<I", struct.pack("<f", x))[0]
SPIN = 1 << 18
C1 = -2 * 0.7978845608028654 * 1.4426950408889634; C2 = C1 * 0.044715
GS = (-C2) ** (1 / 3); GK = -C1 / GS

st = Stream()
A = st.A
stamp_n = [0]; stamp_names = []
def stamp(name=""):
    if not OPT["stamps"]: return
    if OPT["stamps"] == 7:
        if not (name in ("start", "norm", "O", "f1st", "end") or name.startswith("u")): return
    elif name.startswith("u"): return
    if OPT["stamps"] == 5:
        if not (name in ("start", "Yin", "G1", "gelu", "G2a", "G2", "end") or name.startswith("m")) or name == "mod": return
    elif OPT["stamps"] == 6:
        if not (name in ("start", "O", "f1st", "_f2q", "f1ok", "ysent", "f2ok", "Yin", "end") or name.startswith("e")): return
    elif name[0] in "me" and name not in ("mod", "end"): return
    if OPT["stamps"] not in (4, 6) and name.startswith("_"): return
    if OPT["stamps"] == 4 and not (name in ("start", "x", "mod", "h", "Q", "end") or name.startswith("_")): return
    if OPT["stamps"] == 3 and not (name in ("start", "h", "Q", "end") or name.startswith("q")): return
    if OPT["stamps"] == 2 and name.startswith("q"): return
    if OPT["stamps"] == 2 and name in ("x", "mod", "f1st", "f1ok", "ysent", "f2ok", "Yin", "gelu", "G2a", "G2"): return
    n = stamp_n[0]; stamp_n[0] += 1; stamp_names.append(name)
    assert n < 21
    if n: st.add(f"s_mov_b32 s{64+n-1}, s90")
    st.add("s_memrealtime s[90:91]" if OPT.get("rt") else "s_memtime s[90:91]")
def stampF(name, g):
    return [F(("call", lambda: stamp(name)), g, g)] if OPT["stamps"] > 1 else []
def dummyI(t):
    i = I(t); i.wr = []; return i
def dummy(t): st.add(dummyI(t))
def dummyF(t, e, l, chain):
    f = F(t, e, l, chain); f.ins.wr = []; return f
def srd(base, ptr, size):
    A(f"s_mov_b32 s{base}, s{ptr}\ns_mov_b32 s{base+1}, s{ptr+1}\ns_mov_b32 s{base+2}, {size}\ns_mov_b32 s{base+3}, 0x20000")
def mf(d, a, b, c=None, dt="v", at="a", bt="a"):
    cs = f"{dt}[{d}:{d+3}]" if c is None else (c if isinstance(c, str) else f"{dt}[{c}:{c+3}]")
    return f"v_mfma_f32_16x16x32_bf16 {dt}[{d}:{d+3}], {at}[{a}:{a+3}], {bt}[{b}:{b+3}], {cs}"
STG = 192
def stg(u, tile, s): return STG + (u & 1) * 16 + tile * 8 + s * 4
def p16_reads(dst, off, addr="v10"):
    r = []
    for tile in range(2):
        for s in range(2):
            f, d = dst(tile, s)
            for hf in range(2): r.append(f"ds_read_b64_tr_b16 {f}[{d+2*hf}:{d+2*hf+1}], {addr} offset:{off + s*2064 + hf*256 + tile*8}")
    return r
def p8_reads(dst, off, addr="v9"):
    r = []
    for tp in range(2):
        for tile in range(2):
            f, d = dst(tp, tile)
            for hf in range(2): r.append(f"ds_read_b64_tr_b16 {f}[{d+2*hf}:{d+2*hf+1}], {addr} offset:{off + tp*512 + hf*256 + tile*8}")
    return r
def voffs16(stride):
    A(f"""
    v_lshrrev_b32 v2, 5, v1
    v_lshlrev_b32 v2, 4, v2
    v_bfe_u32 v3, v1, 2, 3
    v_add_u32 v2, v2, v3
    v_mul_u32_u24 v2, {stride}, v2
    v_and_b32 v3, 3, v1
    v_lshl_add_u32 v11, v3, 4, v2
    v_add_u32 v12, {8*stride-1032}, v11
    v_add_u32 v13, {32*stride-2064}, v11
    v_add_u32 v14, {40*stride-3096}, v11
    """)
def voffs8(stride):
    A(f"""
    v_bfe_u32 v2, v1, 2, 3
    v_mul_u32_u24 v2, {stride}, v2
    v_lshrrev_b32 v3, 5, v1
    v_lshl_add_u32 v2, v3, 6, v2
    v_and_b32 v3, 3, v1
    v_lshl_add_u32 v11, v3, 4, v2
    v_add_u32 v12, {8*stride-1032}, v11
    v_add_u32 v13, {16*stride-2064}, v11
    v_add_u32 v14, {24*stride-3096}, v11
    """)
def dma4(soff, fl=""): return [f"buffer_load_dwordx4 v{11+i}, s[36:39], {soff} offen offset:{i*1032}{fl} lds" for i in range(4)]
def chain_dma(Fl, g0, pre, dmas, tag, need, chain, late=3):
    if OPT.get("nodma") and tag[0] == "W": dmas = []
    for t in pre: Fl.append(F(t, g0 - 5, g0 + late, chain))
    for i, t in enumerate(dmas): Fl.append(F(t, g0 + i // 2, g0 + late + i, chain, tag=tag, need=need if i == 0 else None))
def spread_dma(Fl, g0, pre, dmas, post, tag, need, step):
    if OPT.get("nodma"): dmas = []
    for t in pre: Fl.append(F(t, g0 - 3, g0, "dma"))
    for i, t in enumerate(dmas): Fl.append(F(t, g0 + i * step, g0 + i * step + 1, "dma", tag=tag, need=need if i == 0 else None))
    for t in post: Fl.append(F(t, g0, g0 + 3 * step + 2, "dma"))
class Capture:
    def __enter__(s):
        global A
        s.lines = []; s.old = A
        def cap(text): s.lines.extend(l.strip() for l in text.split("\n") if l.strip() and not l.strip().startswith(";"))
        A = cap; return s
    def __exit__(s, *a):
        global A
        A = s.old
    def fillers(s, e, l, chain, ren=True):
        out = []
        for t in s.lines:
            if ren: t = re.sub(r"\bs60\b", "s100", re.sub(r"\bs61\b", "s101", t))
            if t.split()[0] in ("s_cselect_b32", "s_addc_u32", "v_cndmask_b32"): out[-1] += "\n" + t
            else: out.append(t)
        n = len(out)
        return [F(t, e, e + (l - e) * (i + 1) // n, chain) for i, t in enumerate(out)]
def spin(label, load, cond):
    A(f"s_mov_b32 s3, {SPIN}")
    st.raw(f"{label}:")
    for t in load: st.add(t)
    A("s_sub_u32 s3, s3, 1\ns_waitcnt vmcnt(0)")
    A(cond)
    A(f"s_cmp_eq_u32 s3, 0\ns_cbranch_scc1 {label}_x\ns_cbranch_vccnz {label}")
    st.raw(f"{label}_x:")

st.raw(f"""; adaLN + GQA window attention + channel MLP, one persistent launch, 256 workgroups (one per CU)
; @launch grid=(256,1,1) block=(256,1,1) lds={LDS_BYTES}
.amdgcn_target "amdgcn-amd-amdhsa--gfx950"
.text
.globl {NAME}_kernel
.p2align 8
.type {NAME}_kernel,@function
{NAME}_kernel:
L_start:""")
A("""
s_cmp_ge_u32 s2, 256
s_cbranch_scc1 L_end
s_load_dwordx16 s[4:19], s[0:1], 0
s_load_dwordx8 s[20:27], s[0:1], 64
s_load_dwordx4 s[28:31], s[0:1], 96
s_load_dwordx2 s[32:33], s[0:1], 112
""")
if OPT["stamps"] or OPT.get("diag"): A("s_memrealtime s[98:99]")
stamp("start")
GX = OPT["gx"]; lg = {1: 0, 2: 1, 4: 2}[GX]
A(f"""
v_and_b32 v1, 63, v0
v_lshrrev_b32 v2, 6, v0
s_and_b32 s96, s2, 7
s_lshr_b32 s97, s2, 3
v_readfirstlane_b32 s35, v2
s_and_b32 s56, s96, {8//GX - 1}
s_lshl_b32 s56, s56, {lg}
s_and_b32 s60, s97, {GX - 1}
s_add_u32 s56, s56, s60
s_lshr_b32 s57, s96, {3 - lg}
s_lshl_b32 s57, s57, {5 - lg}
s_lshr_b32 s61, s97, {lg}
s_add_u32 s57, s57, s61
s_lshl_b32 s60, s60, {3 - lg}
s_add_u32 s95, s57, s60
s_and_b32 s95, s95, {OPT.get("rotmask", 7)}
s_lshl_b32 s58, s96, 2
s_lshr_b32 s59, s97, 3
s_add_u32 s58, s58, s59
s_and_b32 s59, s97, 7
s_mul_i32 s63, s35, {RINGSZ}
s_add_u32 s63, s63, {RING0}
s_movk_i32 s101, 1023
v_lshlrev_b32 v16, 4, v1
v_lshrrev_b32 v2, 4, v1
v_and_b32 v5, 15, v1
v_mul_u32_u24 v3, 1032, v2
v_lshl_add_u32 v9, v5, 4, v3
v_add_u32 v9, s63, v9
v_and_b32 v3, 1, v2
v_mul_u32_u24 v3, 1032, v3
v_lshl_add_u32 v3, v5, 4, v3
v_lshrrev_b32 v4, 1, v2
v_lshl_add_u32 v10, v4, 9, v3
v_add_u32 v10, s63, v10
v_mul_u32_u24 v4, 2064, v4
v_add_u32 v21, v3, v4
v_add_u32 v21, {VA}, v21
s_lshl_b32 s60, s95, 7
v_lshl_add_u32 v3, v5, 4, s60
v_lshlrev_b32 v2, 10, v2
v_and_or_b32 v124, v3, s101, v2
v_add_u32 v3, 256, v3
v_and_or_b32 v125, v3, s101, v2
v_add_u32 v3, 256, v3
v_and_or_b32 v126, v3, s101, v2
v_add_u32 v3, 256, v3
v_and_or_b32 v127, v3, s101, v2
s_getpc_b64 s[92:93]
L_pc:
s_sub_u32 s92, s92, L_pc-L_start
s_subb_u32 s93, s93, 0
s_lshl_b32 s3, s97, 12
v_lshl_add_u32 v4, v0, 4, s3
v_min_u32 v4, L_codeend-L_start-16, v4
global_load_dwordx4 a[248:251], v4, s[92:93]
s_waitcnt lgkmcnt(0)
s_add_u32 s32, s32, {WSO}
s_addc_u32 s33, s33, 0
s_load_dword s34, s[32:33], 0
""")
st.vm = []
stamp("_karg")
srd(48, 32, 0x10000000 - WSO)
KS = OPT.get("ks", 4)
WS_MOD2 = WS_MOD + 4096 * KS
def silu_to_lds(creg, t=2):
    A(re.sub(r"\bv([2-5])\b", lambda m: f"v{int(m.group(1)) - 2 + t}", f"""
    v_lshlrev_b32 v2, 16, v{creg}
    v_and_b32 v3, 0xffff0000, v{creg}
    v_mul_f32 v4, {f2u(-1.4426950408889634)}, v2
    v_mul_f32 v5, {f2u(-1.4426950408889634)}, v3
    v_exp_f32 v4, v4
    v_exp_f32 v5, v5
    v_add_f32 v4, 1.0, v4
    v_add_f32 v5, 1.0, v5
    v_rcp_f32 v4, v4
    v_rcp_f32 v5, v5
    v_mul_f32 v2, v2, v4
    v_mul_f32 v3, v3, v5
    v_cvt_pk_bf16_f32 v2, v2, v3
    v_lshlrev_b32 v3, 2, v0
    v_add_u32 v3, {SILU}, v3
    ds_write_b32 v3, v2
    """))
def publish(ntile, src, lab, dst, tag="s34", tmp=2, stmp="s60"):
    W = 64 * ntile
    A(f"""
    v_lshrrev_b32 v{tmp}, 4, v1
    v_lshlrev_b32 v{tmp}, 5, v{tmp}
    s_mul_i32 {stmp}, s35, {W}
    s_add_u32 {stmp}, {stmp}, {RED}
    v_add_u32 v{tmp}, {stmp}, v{tmp}
    s_mov_b32 exec_lo, 0x00010001
    s_mov_b32 exec_hi, 0x00010001
    """)
    for t in range(ntile): A(f"ds_write_b128 v{tmp}, v[{src+4*t}:{src+4*t+3}] offset:{(t>>1)*128 + (t&1)*16}")
    A(f"""
    s_mov_b64 exec, -1
    s_waitcnt lgkmcnt(0)
    s_barrier
    s_cmp_lg_u32 s35, 0
    s_cbranch_scc1 {lab}
    v_lshlrev_b32 v{tmp}, 3, v1
    v_add_u32 v{tmp+1}, {RED}, v{tmp}
    s_mov_b32 exec_lo, {(1 << (8*ntile)) - 1}
    s_mov_b32 exec_hi, 0
    """)
    for i in range(4): A(f"ds_read_b64 v[{src+2*i}:{src+2*i+1}], v{tmp+1} offset:{i*W}")
    A(f"""
    v_pk_add_f32 v[{src}:{src+1}], v[{src}:{src+1}], v[{src+2}:{src+3}]
    v_pk_add_f32 v[{src+4}:{src+5}], v[{src+4}:{src+5}], v[{src+6}:{src+7}]
    v_pk_add_f32 v[{src}:{src+1}], v[{src}:{src+1}], v[{src+4}:{src+5}]
    v_cvt_pk_bf16_f32 v{src}, v{src}, v{src+1}
    v_mov_b32 v{src+1}, {tag}
    buffer_store_dwordx2 v[{src}:{src+1}], v{tmp}, s[48:51], {dst} offen sc1
    s_mov_b64 exec, -1
    """)
def xr(i, jj): return 32 + (jj * 4 + i) * 4
def x_loads(n0, n1):
    for n in range(n0, n1):
        jj, i = n >> 2, n & 3
        st.add(f"buffer_load_dwordx4 v[{xr(i,jj)}:{xr(i,jj)+3}], v{124+jj}, s[52:55], s{[62, 0, 1, 100][i]} offen{nt('x')}")
def x_setup():
    srd(52, 4, 2048 * 1024)
    A("s_lshl_b32 s62, s57, 16\ns_lshl_b32 s61, s35, 14\ns_add_u32 s62, s62, s61\ns_add_u32 s0, s62, 4096\ns_add_u32 s1, s62, 8192\ns_add_u32 s100, s62, 12288")
XJ = OPT.get("xj", 8)
NSL = 4 // KS
PX = OPT.get("px", 2)
A(f"s_cmp_lt_u32 s96, {PX}\ns_cselect_b32 s14, s97, 99\ns_cmp_lt_u32 s14, {16*KS//PX}\ns_cbranch_scc1 L_prod")
x_setup(); x_loads(0, XJ)
A("s_branch L_join")
join_vm = list(st.vm)
A("L_prod:"); st.vm = []; st.hist = []; st.smem = True; st.smem_wr = {("s", 34)}
srd(52, 24, 1024); srd(36, 26, 512 * 6144)
A("v_lshlrev_b32 v2, 2, v0\nbuffer_load_dword v31, v2, s[52:55], 0 offen")
voffs8(6144)
A(f"""
s_mul_i32 s14, s97, {PX}
s_add_u32 s14, s14, s96
s_lshr_b32 s15, s14, 4
s_and_b32 s14, s14, 15
s_lshl_b32 s3, s15, 2
s_add_u32 s3, s3, s35
s_mul_i32 s60, s3, {32*NSL*6144}
s_lshl_b32 s61, s14, 7
s_add_u32 s60, s60, s61
""")
for k in range(NSL):
    A(f"s_add_u32 m0, s63, {(2+k)*UNIT}")
    for t in dma4("s60", nt("mod")): st.add(t, tag="wm")
    if k + 1 < NSL: A(f"s_add_u32 s60, s60, {32*6144}")
x_setup(); x_loads(0, 4)
silu_to_lds(31)
A(f"""
v_lshrrev_b32 v2, 4, v1
v_lshlrev_b32 v2, 4, v2
s_mul_i32 s60, s3, {64*NSL}
s_add_u32 s60, s60, {SILU}
v_add_u32 v2, s60, v2
s_waitcnt lgkmcnt(0)
s_barrier
""")
for k in range(NSL): A(f"ds_read_b128 a[{4*k}:{4*k+3}], v2 offset:{k*64}")
st.need("wm")
for k in range(NSL):
    for t in p8_reads(lambda tp, tile: ("a", 16 + k * 16 + tp * 8 + tile * 4), (2 + k) * UNIT): A(t)
x_loads(4, 8)
for k in range(NSL):
    for t in range(4): A(mf(96 + 4 * t, 16 + k * 16 + 4 * t, 4 * k, "0" if k == 0 else None))
x_loads(8, XJ)
A(f"s_lshl_b32 s3, s15, 12\ns_lshl_b32 s14, s14, 8\ns_add_u32 s3, s3, s14\ns_add_u32 s3, s3, {WS_MOD}\ns_mul_i32 s15, s34, 0x9E3779B1\ns_add_u32 s15, s15, 0x7F4A7C15")
publish(4, 96, "L_prod_x", "s3", "s15")
A("L_prod_x:"); st.lg = []; st.hist = []
A("s_branch L_join"); st.raw(".p2align 12")
A("L_join:"); st.vm = join_vm; st.lg = []; st.hist = []; st.smem = True; st.smem_wr = {("s", 34)}
st.newphase(); stamp("_prod")

QST = 8192
A(f"""
s_lshl_b32 s60, s56, 10
s_lshl_b32 s61, s35, 8
s_add_u32 s60, s60, s61
s_add_u32 s36, s10, s60
s_addc_u32 s37, s11, 0
s_sub_u32 s38, {512*8192}, s60
s_mov_b32 s39, 0x20000
s_bfe_u32 s15, s57, 0x10003
s_lshl_b32 s14, s15, 7
s_lshl_b32 s92, s95, 19
s_add_u32 s94, s92, s14
s_xor_b32 s14, s14, 128
s_add_u32 s92, s92, s14
s_lshl_b32 s15, s15, 1
s_mul_i32 s93, s35, {UNIT}
s_sub_u32 s60, s93, s63
v_add_u32 v31, s60, v9
""")
voffs8(QST)
def wq_pre(n):
    r = n % 5; b = "s92" if n & 2 else "s94"
    p = [f"s_add_u32 m0, s63, {r*UNIT}" if r < 4 else "s_mov_b32 m0, s93", f"s_add_u32 s60, {b}, {(n&1)*32*QST}"]
    return p, ([f"s_add_u32 {b}, {b}, {64*QST}", f"s_and_b32 {b}, {b}, {512*QST-1}"] if n & 1 else [])
def wq_ops(n):
    p, q = wq_pre(n); return [(t, None) for t in p] + [(t, ("W", n)) for t in dma4("s60", nt("wq"))] + [(t, None) for t in q]
A(f"""
v_lshrrev_b32 v2, 4, v1
v_and_b32 v5, 15, v1
v_bfe_u32 v6, v1, 2, 2
v_lshlrev_b32 v6, 1, v6
s_movk_i32 s60, 0x78
v_lshrrev_b32 v6, v6, s60
v_and_b32 v6, 3, v6
v_xor_b32 v7, v6, v2
v_lshlrev_b32 v7, 4, v7
v_lshl_add_u32 v15, v5, 6, v7
v_add_u32 v15, {HIMG}, v15
v_bfe_u32 v4, v1, 2, 2
v_lshl_add_u32 v7, v4, 12, v7
v_and_b32 v4, 3, v1
v_lshl_add_u32 v7, v4, 8, v7
""")
A("s_bfe_u32 s15, s57, 0x10003\ns_lshl_b32 s15, s15, 1\nv_xor_b32 v4, s15, v4")
for s in range(4): A(f"v_xor_b32 v5, {s}, v4\nv_lshl_add_u32 v{17+s}, v5, 6, v7")
A(f"""
s_lshl_b32 s60, s35, 1
s_lshr_b32 s60, 0x78, s60
s_and_b32 s60, s60, 3
v_lshlrev_b32 v3, 2, v2
v_xor_b32 v3, s60, v3
v_and_b32 v4, 15, v1
v_xor_b32 v3, v3, v4
v_lshlrev_b32 v3, 4, v3
v_lshl_add_u32 v3, v2, 8, v3
s_lshl_b32 s60, s35, 10
v_add_u32 v22, s60, v3
v_add_u32 v23, 3072, v22
v_add_u32 v24, 6144, v22
v_add_u32 v25, 9216, v22
v_bfe_u32 v3, v1, 2, 2
v_lshlrev_b32 v3, 8, v3
v_lshl_add_u32 v3, v2, 6, v3
v_and_b32 v4, 3, v1
v_lshl_add_u32 v3, v4, 4, v3
s_lshl_b32 s60, s35, 12
s_add_u32 s60, s60, 64
v_add_u32 v26, s60, v3
v_subrev_u32 v27, 8, v26
v_subrev_u32 v28, 16, v26
v_subrev_u32 v29, 24, v26
v_bfe_u32 v3, v1, 2, 1
v_xor_b32 v3, v3, v2
v_lshlrev_b32 v3, 6, v3
v_bfe_u32 v4, v1, 2, 2
v_lshl_add_u32 v3, v4, 12, v3
s_lshl_b32 s60, s35, 10
s_add_u32 s60, s60, {HIMG}
v_add_u32 v3, s60, v3
v_and_b32 v4, 3, v1
v_lshl_add_u32 v120, v4, 4, v3
v_xor_b32 v121, 32, v120
v_xor_b32 v122, 48, v120
v_xor_b32 v123, 16, v120
v_subrev_u32 v8, {HIMG}, v15
v_xor_b32 v8, 64, v8
v_add_u32 v8, {HIMG}, v8
""")
A(f"""
s_lshl_b32 s60, s56, 19
s_add_u32 s60, s60, {1536*256}
s_add_u32 s40, s6, s60
s_addc_u32 s41, s7, 0
s_mov_b32 s42, {512*256}
s_mov_b32 s43, 0x20000
s_sub_u32 s60, s60, 64
s_add_u32 s44, s8, s60
s_addc_u32 s45, s9, 0
s_mov_b32 s46, {512*256+64}
s_mov_b32 s47, 0x20000
s_lshl_b32 s6, s35, 12
s_mul_i32 s7, s35, 4128
s_add_u32 s7, s7, {VA}
s_lshl_b32 s8, s95, 14
s_mov_b32 s9, s8
""")
def k_ops(c): return ([f"s_add_u32 m0, s6, {KA if c%2==0 else KB}"], [f"buffer_load_dwordx4 v{22+i}, s[40:43], s8 offen offset:{i*1024}{nt('kv')} lds" for i in range(4)], ["s_add_u32 s8, s8, 16384", "s_and_b32 s8, s8, 0x1ffff"])
def v_ops(c): return ([f"s_add_u32 m0, s7, {(c&1)*16512}"], [f"buffer_load_dwordx4 v{26+i}, s[44:47], s9 offen offset:{i*1032}{nt('kv')} lds" for i in range(4)], ["s_add_u32 s9, s9, 16384", "s_and_b32 s9, s9, 0x1ffff"])
def kv_chain(Fl, g0, ops, tag, step=0):
    if step: spread_dma(Fl, g0, ops[0], ops[1], ops[2], tag, None, step); return
    chain_dma(Fl, g0, ops[0], ops[1], tag, None, "dma")
    for t in ops[2]: Fl.append(F(t, g0 + 4, g0 + 10, "dma"))
x_loads(XJ, 16)
if OPT.get("tlb"):
    A(f"v_lshlrev_b32 v2, 5, v1\nv_add_u32 v2, s97, v2\nv_lshlrev_b32 v2, {OPT['tlb']}, v2")
    for i, (ptr, size) in enumerate([(32, 0x2000000), (10, 4 << 20), (12, 4 << 20), (16, 1835008), (20, 1835008), (28, 2 << 20), (26, 3 << 20), (18, 3584), (22, 1024)]):
        srd(52, ptr, size)
        A(f"s_cmp_eq_u32 s35, {i & 3}\ns_cselect_b32 s60, 0, {OOB}")
        dummy("buffer_load_dword a244, v2, s[52:55], s60 offen")
def warm(lab):
    if not OPT.get("warm", 1): return
    t = "    s_mov_b64 exec, 0\n"
    for w in range(4):
        if w < 3: t += f"    s_cmp_eq_u32 s35, {w}\n    s_cbranch_scc0 {lab}_{w}\n"
        t += f"    s_call_b64 s[100:101], L_stub@{w}\n"
        if w < 3: t += f"    s_branch {lab}_ret\n{lab}_{w}:\n"
    st.raw(t + f"{lab}_ret:\n    s_mov_b64 exec, -1")
A(f"s_waitcnt vmcnt({12 + (9 if OPT.get('tlb') else 0)})")
warm("L_w1")

for i in range(4): A(f"v_mov_b32 v{112+2*i}, 0\nv_mov_b32 v{104+2*i}, 0")
A("v_mov_b32 v7, 0x3f803f80")
stamp("_issued")
def trickle(n=1):
    while pend and n:
        t, tag = pend.pop(0); st.add(t, tag=tag)
        if t.startswith("buffer") or t.startswith("global"): n -= 1
A(f"v_lshlrev_b32 v30, 4, v0\nv_add_u32 v30, {WS_MOD}, v30")
MC = [96, 100, 2 * 128 - 8, 2 * 128 - 4]
mchk = [f"buffer_load_dwordx4 a[{4*k}:{4*k+3}], v30, s[48:51], {['0', 's10', 's11', 's14'][k]} offen sc1" for k in range(KS)]
for k in range(1, KS): A(f"s_mov_b32 {['0', 's10', 's11', 's14'][k]}, {4096*k}")
for n in range(16):
    jj, i = n >> 2, n & 3
    for e in range(4): A(f"v_dot2c_f32_bf16 v{112+2*i}, v{xr(i,jj)+e}, v7\nv_dot2c_f32_bf16 v{104+2*i}, v{xr(i,jj)+e}, v{xr(i,jj)+e}")
    if n == 0: stamp("_x0")
stamp("x")
RC = OPT.get("rc", -1); W0L = OPT.get("w0l", 0)
if RC < 0:
    for t in mchk: A(t)
pend = wq_ops(0) + wq_ops(1)
if not W0L: trickle(4)
for d in ("quad_perm:[1,0,3,2]", "quad_perm:[2,3,0,1]", "row_ror:4", "row_ror:8"):
    for i in range(4): A(f"v_add_f32_dpp v{112+2*i}, v{112+2*i}, v{112+2*i} {d} row_mask:0xf bank_mask:0xf\nv_add_f32_dpp v{104+2*i}, v{104+2*i}, v{104+2*i} {d} row_mask:0xf bank_mask:0xf")
for op in ["v_mul_f32 v{m}, {c512}, v{r}", "v_mul_f32 v{q}, {c512}, v{q}", "v_fma_f32 v{q}, -v{m}, v{m}, v{q}", "v_max_f32 v{q}, 0, v{q}", "v_add_f32 v{q}, {eps}, v{q}",
           "v_rsq_f32 v{r}, v{q}", "v_mul_f32_e64 v{q}, -v{m}, v{r}"]:
    for i in range(4): A(op.format(m=113 + 2 * i, r=112 + 2 * i, q=104 + 2 * i, c512=f2u(1 / 512), eps=f2u(1e-5)))
def normalise(r0, r1):
    for r in range(r0, r1):
        i = (r >> 2) & 3
        A(f"v_lshlrev_b32 v{128+2*r}, 16, v{32+r}\nv_and_b32 v{129+2*r}, 0xffff0000, v{32+r}")
        A(f"v_pk_fma_f32 v[{128+2*r}:{129+2*r}], v[{128+2*r}:{129+2*r}], v[{112+2*i}:{113+2*i}], v[{104+2*i}:{105+2*i}] op_sel_hi:[1,0,0]")
        if r == RC:
            for t in mchk: A(t)
            if W0L: trickle(4)
        if r >= OPT.get("rw1", 36) and r % 6 == 0: trickle()
RM = OPT.get("rm", 36)
def MB(r): return 32 + r
normalise(0, RM)
stamp("_p6")
A("s_mul_i32 s34, s34, 0x9E3779B1\ns_add_u32 s34, s34, 0x7F4A7C15")
def mod_fetch():
    return "\n".join(f"v_accvgpr_read_b32 v{MB(r)}, a{r}" for r in range(4 * KS)) + f"\nv_cmp_ne_u32 vcc, s34, v{MB(1)}\n" + "".join(f"v_cmp_ne_u32 s[100:101], s34, v{MB(3+2*i)}\ns_or_b64 vcc, vcc, s[100:101]\n" for i in range(2 * KS - 1))
A(mod_fetch()); A("s_cbranch_vccz L_pollmod_x")
keep = list(st.vm)
spin("L_pollmod", [f"s_sleep {OPT.get('slp', 4)}"] + mchk, mod_fetch())
st.vm = keep
stamp("mod")
A(f"""
s_cmp_ge_u32 s35, 2
s_cselect_b32 s60, 1.0, 0
s_cselect_b32 s3, 2048, 0
s_add_u32 s3, s3, {MODV}
s_mov_b32 s61, {f2u(SCALE)}
""")
for k in range(KS):
    A(f"""v_lshlrev_b32 v2, 16, v{MB(4*k)}
    v_and_b32 v3, 0xffff0000, v{MB(4*k)}
    v_lshlrev_b32 v4, 16, v{MB(4*k+2)}
    v_and_b32 v5, 0xffff0000, v{MB(4*k+2)}""")
    for e in range(4): A(f"v_add_f32 v{100+e}, {'s60' if k == 0 else 'v' + str(100+e)}, v{2+e}")
for e in range(4): A(f"v_mul_f32 v{100+e}, s61, v{100+e}")
A(f"""
s_lshl_b32 s60, s95, 8
v_lshlrev_b32 v2, 4, v0
v_subrev_u32 v2, s60, v2
v_and_b32 v2, 2047, v2
v_add_u32 v2, s3, v2
ds_write_b128 v2, v[100:103]
""")
if OPT.get("kpos", 2) == 2: trickle(99)
normalise(RM, 64)
trickle(99)
def kv_prefetch():
    A("s_add_u32 s61, s8, s6")
    for i in range(4): dummy(f"buffer_load_dwordx4 a[244:247], v16, s[40:43], s61 offen offset:{i*1024}")
    if OPT.get("vpf", 0):
        A("s_add_u32 s61, s61, 64")
        for i in range(4): dummy(f"buffer_load_dwordx4 a[244:247], v16, s[44:47], s61 offen offset:{i*1024}")
if OPT.get("kpos", 2) == 0: kv_prefetch()
A(f"""
v_and_b32 v30, 15, v1
v_lshlrev_b32 v30, 5, v30
v_add_u32 v30, {MODV}, v30
s_waitcnt lgkmcnt(0)
s_barrier
""")
stamp("_bar1")
QS = 64
def qstg(U, tp, tile, s): return QS + (U & 1) * 32 + s * 16 + tp * 8 + tile * 4
def q_reads(n):
    r = n % 5
    return p8_reads(lambda tp, tile: ("a", qstg(n >> 1, tp, tile, n & 1)), r * UNIT if r < 4 else 0, "v9" if r < 4 else "v31")
def modreads(jj, b):
    for i in range(4): A(f"ds_read_b128 v[{b+4*i}:{b+4*i+3}], v30 offset:{(i>>1)*2048 + jj*512 + (i&1)*16}")
for jj in range(4): modreads(jj, 32 + 16 * jj)
pend = wq_ops(2) + wq_ops(3) + wq_ops(4)
if OPT.get("kpos", 2) == 2: A("s_add_u32 s61, s8, s6")
for n in range(16):
    jj, i = n >> 2, n & 3; b = 32 + 16 * jj; t = 128 + 8 * n; d = 96 + 4 * (n & 3)
    for e in range(4): A(f"v_pk_fma_f32 v[{t+2*e}:{t+2*e+1}], v[{t+2*e}:{t+2*e+1}], v[{b+8+2*e}:{b+9+2*e}], v[{b+2*e}:{b+2*e+1}]")
    for e in range(4): A(f"v_cvt_pk_bf16_f32 v{d+e}, v{t+2*e}, v{t+2*e+1}")
    A(f"ds_write_b128 v{120+i}, v[{d}:{d+3}] offset:{jj*16384 + i*256}")
    if OPT.get("kpos", 2) == 2 and OPT.get("jk", 0) <= n < OPT.get("jk", 0) + 4: dummy(f"buffer_load_dwordx4 a[244:247], v16, s[40:43], s61 offen offset:{(n - OPT.get('jk', 0))*1024}")
    if n >= OPT.get("jw", 8): trickle()
stamp("_jloop")
for n in range(2):
    for i, t in enumerate(q_reads(n)): st.add(t, tag=("R", n), need=[("W", n)] if i == 0 else None)
if OPT.get("kpos", 2) == 1: trickle(99); kv_prefetch()
stamp("_w01")
trickle(99)
stamp("_w34")
A("s_waitcnt lgkmcnt(0)\ns_barrier")
def hb(kk, s, cb): return (kk & 1) * 32 + (s * 4 + cb) * 4
for s in range(2):
    for cb in range(4): A(f"ds_read_b128 a[{hb(0,s,cb)}:{hb(0,s,cb)+3}], {'v8' if s else 'v15'} offset:{(s*4+cb)*1024}")
stamp("h")

def qacc(tp, tile, cb): return 128 + (tp * 8 + tile * 4 + cb) * 4
def qop(s, cb): return 32 + (s * 4 + cb) * 4
M = []; Fl = []; RES = {}; HBAR = 46
for U in range(16):
    kk, h2 = U >> 1, U & 1
    g0 = len(M)
    for tp in range(2):
        for tile in range(2):
            for cb in range(4):
                for s in range(2):
                    M.append(mf(qacc(2 * h2 + tp, tile, cb), qstg(U, tp, tile, s), hb(kk, s, cb), "0" if (kk == 0 and s == 0) else None))
    for s in range(2):
        n = 2 * U + 2 + s; g = g0 + 16 * s + (10 if n == 2 else 4 if n == 3 else 0)
        def refill(n, g, step):
            m = n + 5
            if m >= 32: return
            p, q = wq_pre(m)
            spread_dma(Fl, g, p, dma4("s60", nt("wq")), q, ("W", m), [("R", n)], step)
        if U == 0 and s == 0: refill(0, 3, 2); refill(1, 11, 2)
        if n < 32:
            for i, t in enumerate(q_reads(n)): Fl.append(F(t, g + i, g + i + 1, "rd", tag=("R", n), need=[("W", n)] if i == 0 else None))
            refill(n, g + 11, 4 if n > 4 else 2 if n == 2 else 3)
    RES[g0 + 31] = 1
    if U: Fl += stampF(f"q{U}", g0)
    if kk < 7:
        for i in range(4):
            n = 4 * h2 + i; s, cb = n >> 2, n & 3
            Fl.append(F(f"ds_read_b128 a[{hb(kk+1,s,cb)}:{hb(kk+1,s,cb)+3}], {'v8' if s else 'v15'} offset:{((kk+1)*8+n)*1024}", g0 + 8 + (i & 1) + 16 * (i >> 1), g0 + 12 + (i & 1) + 16 * (i >> 1), "hb", tag=("HB", kk + 1)))
    if kk == 7:
        for tp in range(2):
            T = 2 * h2 + tp - 1
            if T >= 0:
                for cb in range(4):
                    for e in range(4):
                        src = qacc(T, e >> 1, cb) + 2 * (e & 1)
                        Fl.append(F(f"v_cvt_pk_bf16_f32 v{qop(T,cb)+e}, v{src}, v{src+1}", g0 + 16 * tp + 2, g0 + 16 * tp + 15, "cv"))
        if h2 == 0:
            Fl.append(F(("barrier", [("HB", 7), ("R", 29)]), g0 + 1, g0 + 1, "dma"))
            kv_chain(Fl, g0 + 8, k_ops(0), ("K", 0))
            kv_chain(Fl, g0 + 24, k_ops(1), ("K", 1))
        else:
            kv_chain(Fl, g0 + 1, v_ops(0), ("V", 0))
            Fl.append(F(("barrier", [("K", 0)]), g0 + 15, g0 + 15, "rd"))
            for s in range(4): Fl.append(F(f"ds_read_b128 a[{STG+s*4}:{STG+s*4+3}], v{17+s} offset:{KA}", g0 + 16 + s, g0 + 22, "rd", tag=("R", "k00")))
LP0 = 2
def blk_addr(dst, src, add):
    A(f"""s_add_u32 s60, {src}, {add}
    s_and_b32 s60, s60, 3
    s_mul_i32 s61, s60, {KB}
    s_cmp_eq_u32 s60, 2
    s_cselect_b32 s61, {VA}, s61
    s_cmp_eq_u32 s60, 3
    s_cselect_b32 s{dst}, {XR}, s61""")
FLOOR = [6, 7, 8, 15]
with Capture() as cp:
    voffs16(1024)
    A(f"""
s_lshl_b32 s60, s56, 19
s_lshl_b32 s61, s35, {OPT.get("wocol", 6)}
s_and_b32 s61, s61, {OPT.get("womask", 1023)}
s_add_u32 s60, s60, s61
s_add_u32 s36, s12, s60
s_addc_u32 s37, s13, 0
s_sub_u32 s38, {4096*1024}, s60
v_and_b32 v3, {3 if OPT.get("sparse1", 1) else 0}, v1
v_mov_b32 v2, 0x3f803f80
v_cmp_eq_u32 vcc, 0, v3
v_cndmask_b32 v2, 0, v2, vcc
v_accvgpr_write_b32 a240, v2
v_accvgpr_write_b32 a241, v2
v_accvgpr_write_b32 a242, v2
v_accvgpr_write_b32 a243, v2
s_and_b32 s14, s57, {OPT.get("rotmask", 7) & 3}
s_lshl_b32 s92, s14, 8
s_bfe_u32 s15, s57, 0x20002
s_and_b32 s15, s15, {OPT.get("rotmask", 7) & 3}
s_lshl_b32 s94, s15, 17
s_mul_i32 s93, s97, 57344
s_mul_i32 s60, s35, 14336
s_add_u32 s93, s93, s60
""")
    srd(52, 16, 512 * 3584)
    A(f"""
v_lshrrev_b32 v2, 5, v1
v_lshlrev_b32 v2, 4, v2
v_bfe_u32 v3, v1, 2, 3
v_add_u32 v2, v2, v3
v_mul_u32_u24 v2, 6144, v2
v_and_b32 v3, 3, v1
v_lshl_add_u32 v2, v3, 4, v2
v_add_u32 v3, {8*6144-1032}, v2
v_add_u32 v4, {32*6144-2064}, v2
v_add_u32 v5, {40*6144-3096}, v2
v_lshlrev_b32 v30, 2, v0
""")
    blk_addr(85, "s35", 0)
    for i in range(4): blk_addr(86 + i, "s15", i)
    A(f"""
s_sub_u32 s3, s96, {LP0}
s_lshl_b32 s13, s3, 5
s_add_u32 s13, s13, s97
s_lshl_b32 s60, s13, 6
s_mul_i32 s61, s35, {128*6144}
s_add_u32 s60, s60, s61
s_add_u32 s60, s60, 2048
s_cmp_lt_u32 s3, 2
s_cselect_b32 s10, s60, {OOB}
s_cselect_b32 s62, 0, {OOB}
s_mov_b32 s12, s2
s_cmp_lg_u32 s35, 0
s_cselect_b32 s11, {OOB}, 0
""")
    srd(0, 24, 1024)
attn_setup = list(cp.lines)
Fl += cp.fillers(412, 508, "su")
for t in [f"v_mov_b32 v{r}, 0xff800000" for r in FLOOR] + ["s_mov_b32 s95, 0", "v_lshrrev_b32 v31, 6, v0", "v_lshlrev_b32 v31, 2, v31", f"v_add_u32 v31, {LGO + 16}, v31"]: Fl.append(F(t, 470, 508, "su2"))
schedule(st, M, Fl, reserve=RES, verbose="Q")
for cb in range(4):
    for e in range(4):
        src = qacc(3, e >> 1, cb) + 2 * (e & 1)
        A(f"v_cvt_pk_bf16_f32 v{qop(3,cb)+e}, v{src}, v{src+1}")
st.newphase(); stamp("Q")
st.raw("L_attn:"); attn_entry = (list(st.vm), list(st.lg))
def wo_pre(u, m0):
    p = [m0, "s_add_u32 s60, s92, s94" + ("\ns_add_u32 s60, s60, 0x10000" if u & 4 else ""), "s_add_u32 s94, s94, 0x20000", "s_and_b32 s94, s94, 0x7ffff"]
    return p
def wo_chain(Fl, g, u, m0, need, late=3):
    p = wo_pre(u, m0)
    chain_dma(Fl, g, p[:2], dma4("s60", nt("wo")), ("W", u), need, "dma", late)
    post = p[2:] + (["s_add_u32 s92, s92, 256", "s_and_b32 s92, s92, 1023"] if (u & 7) == 7 else [])
    for t in post: Fl.append(F(t, g, g + late + 8, "dma"))

BLK = [(0, 1, 2, 3), (4, 5, 1, 3)]
for c in range(2, 8): BLK.append((BLK[c - 2][0], BLK[c - 2][2], BLK[c - 1][1], 3))
def S(kt, cb, c=0): return 96 + BLK[c][kt] * 16 + cb * 4
def P(c, s, cb): return S(2 * s, cb, c)
def CI(cb): return 224 + 4 * cb
def oacc(tp, tile, cb): return (tp * 8 + tile * 4 + cb) * 4
NREG = 10
WOB = {6: BLK[7][3], 7: BLK[7][1], 8: BLK[7][0], 9: BLK[7][2]}
def woreg(u, tile, s):
    o = tile * 8 + s * 4
    return ("a", 128 + u * 16 + o) if u < 4 else ("v", (192 + (u - 4) * 16 if u < 6 else 96 + WOB[u] * 16) + o)
LS = 224
def RS(u): return (u + 2) & 3
units = [("QK", 0, k) for k in range(4)]
for c in range(7): units += [("QK", c + 1, k) for k in range(4)] + [("L", c, 0)] + [("PV", c, k) for k in range(4)]
units += [("L", 7, 0)] + [("PV", 7, k) for k in range(4)]
M = []; Fl = []; RES = {}; G = {}; buf = {}
staged = [u for u in units if u[0] != "L"]
for n, u in enumerate(staged): buf[u] = n
pos = 0
for un in units: G[un] = pos; pos += 8 if un[0] == "L" else 16
NATT = pos
def oop(dp, cb): return 32 + (dp * 4 + cb) * 4
pf = []
if OPT["pf_w1"]: pf += [("w1", i) for i in range(14)]
if OPT["pf_w2"]: pf += [("w2", i) for i in range(14 if OPT["pf_w2"] == 1 else 2)]
with Capture() as cp:
    A(f"""
buffer_load_dword v30, v30, s[0:3], s62 offen
s_mov_b32 s0, s26
s_mov_b32 s1, s27
s_mov_b32 s2, {512*6144}
s_mov_b32 m0, s63
""")
Fl += cp.fillers(3, 7, "dma")
for i in range(4): Fl.append(F(f"buffer_load_dwordx4 v{2+i}, s[0:3], s10 offen offset:{i*1032}{' nt' if OPT.get('nt_lp', 1) else ''} lds", 13 + 9 * i, 14 + 9 * i, "dma", tag="wm"))
with Capture() as cp:
    A(f"""
s_lshl_b32 s60, s57, 3
s_add_u32 s60, s60, s56
s_lshl_b32 s60, s60, 7
s_add_u32 s60, s60, {WS_F1}
s_lshl_b32 s61, s58, 3
s_add_u32 s61, s61, s59
s_lshl_b32 s61, s61, 7
s_add_u32 s61, s61, {WS_F2 - 128}
v_lshlrev_b32 v253, 2, v1
v_add_u32 v254, s60, v253
v_add_u32 v253, s61, v253
v_cmp_le_u32 vcc, 32, v1
v_cndmask_b32 v254, v254, v253, vcc
s_not_b32 s60, s34
v_mov_b32 v255, s60
""")
Fl += cp.fillers(G[("PV", 0, 0)], G[("PV", 1, 0)], "pw")
def pst(v, off=0): return f"buffer_store_dwordx4 a[248:251], {v}, s[48:51], s10 offen offset:{off} sc1"
psn = [f"v_accvgpr_write_b32 a{248+i}, -1" for i in range(4)] + ["s_lshl_b32 s10, s58, 3", "s_add_u32 s10, s10, s59", "s_lshl_b32 s10, s10, 3", "s_add_u32 s10, s10, s35",
       "s_mul_i32 s10, s10, 5120", f"s_add_u32 s10, s10, {WS_H1}", f"s_cmp_eq_u32 s59, {7 if OPT.get('j7', 0) else 9}\ns_cselect_b32 s10, {OOB}, s10"] + [pst("v16", i * 1024) for i in range(4)] + ["s_add_u32 s10, s10, 20480"] + [pst("v16", i * 1024) for i in range(4)]
psn += ["v_lshrrev_b32 v253, 5, v1", "v_lshlrev_b32 v253, 11, v253", "v_and_b32 v255, 31, v1", "v_lshl_add_u32 v253, v255, 4, v253"]
for n in (2, 3):
    psn += ["s_lshl_b32 s10, s57, 3", "s_add_u32 s10, s10, s56", "s_lshl_b32 s10, s10, 2", "s_add_u32 s10, s10, s35", "s_lshl_b32 s10, s10, 5", f"s_add_u32 s11, s14, {n}", "s_and_b32 s11, s11, 3",
            "s_add_u32 s10, s10, s11", "s_lshl_b32 s10, s10, 9", f"s_add_u32 s10, s10, {WS_PART}"]
    for i in range(4): psn += [pst("v253")] + (["s_add_u32 s10, s10, 4096"] if i < 3 else [])
for un in units:
    ty, c, k = un; g0 = len(M); assert g0 == G[un]
    if ty == "QK":
        b = STG + (buf[un] & 1) * 16
        for cb in range(4):
            for s in range(4):
                M.append(mf(S(k, cb, c), b + 4 * s, qop(s, cb), None if s else ("0" if (c == 0 and k < 1) else CI(cb)), "v", "a", "v"))
    elif ty == "L":
        for cb in range(4):
            for s in range(2): M.append(mf(LS + 4 * cb, 240, P(c, s, cb), "0" if (c == 0 and s == 0) else None, "a", "a", "v"))
    else:
        for tile in range(2):
            for cb in range(4):
                for s in range(2): M.append(mf(oacc(k, tile, cb), stg(buf[un], tile, s), P(c, s, cb), "0" if (c == 0 and s == 0) else None, "a", "a", "v"))
    if ty == "L": continue
    RES[g0 + 15] = 1
    bar = None
    if (ty, c, k) == ("QK", 0, 3): bar = 1
    if ty == "PV" and k == 3 and c < 7: bar = c + 2
    rg = g0
    if bar is not None:
        Fl.append(F(("barrier", [("R", un), ("V", bar - 1)] + ([("K", bar)] if bar <= 7 else [])), g0 + 1, g0 + 1, "rd")); rg = g0 + 2
        Fl += stampF(f"B{bar}", g0 + 2)
        VS = OPT.get("vs", 5); gk = g0 + 8
        if bar + 1 <= 7: kv_chain(Fl, gk, k_ops(bar + 1), ("K", bar + 1), VS); gk += 4 * VS
        if bar <= 7: kv_chain(Fl, gk, v_ops(bar), ("V", bar), VS); gk += 4 * VS
        plan = {**[{1: [("d", 0)], 2: [("d", 1)]}, {2: [("d", 0)], 3: [("d", 1)]}, {3: [("d", 0), ("d", 1)]}][OPT.get("wop", 1)], 4: [("r", 0), ("d", 2), ("d", 3)], 5: [("r", 1), ("r", 2), ("d", 4), ("d", 5)], 6: [("r", 3), ("r", 4), ("d", 6), ("d", 7)], 7: [("r", 5), ("d", 8), ("d", 9)]}.get(bar, [])
        gr = g0 + 20
        for kind, u in plan:
            if kind == "d":
                p = wo_pre(u, f"s_add_u32 m0, s63, {RS(u)*UNIT}")
                spread_dma(Fl, gk, p[:2], dma4("s60", nt("wo")), p[2:] + (["s_add_u32 s92, s92, 256", "s_and_b32 s92, s92, 1023"] if (u & 7) == 7 else []), ("W", u), [("RW", u - 4)] if u >= 4 else None, VS); gk += 4 * VS
            else:
                for i, t in enumerate(p16_reads(lambda tile, s: woreg(u, tile, s), RS(u) * UNIT)):
                    Fl.append(F(t, gr + 2 * i, gr + 6 + 2 * i, "wor", tag=("RW", u), need=[("W", u)] if i == 0 else None))
                gr += 16
        if bar <= 7:
            for n in range(int(str(OPT.get("pfp", 44044)).zfill(7)[bar - 1])):
                if not pf: break
                nm, i = pf.pop(0)
                if nm == "w2" and i == 0:
                    for t in ["s_mov_b32 s52, s20", "s_mov_b32 s53, s21"] + ((["s_sub_u32 s93, s93, 12288"] if OPT["pf_w1"] else []) if OPT["pf_w2"] == 1 else ["s_mul_i32 s93, s2, 7168", "s_lshl_b32 s60, s35, 11\ns_add_u32 s93, s93, s60"]): Fl.append(F(t, gk - 3, gk, "dma"))
                if i and i % 4 == 0: Fl.append(F("s_add_u32 s93, s93, 4096", gk - 3, gk, "dma"))
                Fl.append(dummyF(f"buffer_load_dwordx4 a[244:247], v16, s[52:55], s93 offen offset:{(i%4)*1024}", gk, gk + 2, "dma")); gk += VS
        for n in range(int(str(OPT.get("psp", 332233)).zfill(7)[bar - 1]) if bar <= 7 else 0):
            while True:
                t = psn.pop(0); stv = t.startswith("buffer")
                Fl.append(F(t, gk - (0 if stv else 4), gk + (2 if stv else 0), "dma", tag="psn" if stv else None))
                if stv: gk += OPT.get('ps', 5); break
    i = staged.index(un)
    if i + 1 < len(staged):
        nx = staged[i + 1]; nb = STG + (buf[nx] & 1) * 16
        if nx[0] == "QK":
            for s in range(4):
                Fl.append(F(f"ds_read_b128 a[{nb+4*s}:{nb+4*s+3}], v{17+s} offset:{(KA if nx[1]%2==0 else KB) + nx[2]*1024}", rg + s // 2, rg + 4 + s, "rd", tag=("R", nx)))
        else:
            i2 = 0
            for tile in range(2):
                for s in range(2):
                    for hf in range(2):
                        d = stg(buf[nx], tile, s) + 2 * hf
                        Fl.append(F(f"ds_read_b64_tr_b16 a[{d}:{d+1}], v21 offset:{(nx[1]&1)*16512 + (4*s+2*hf)*2064 + nx[2]*256 + tile*8}", rg + i2 // 2, rg + 1 + i2, "rd", tag=("R", nx))); i2 += 1
g1 = G[("QK", 0, 1)]
for cb in range(4):
    s0 = S(0, cb); t = 240 + 2 * cb; ch = ("mx", cb); e = 4 * cb + 7; l = g1 - 2 + 4 * cb
    for txt in [f"v_max3_f32 v{t}, v{s0}, v{s0+1}, v{s0+2}", f"v_max3_f32 v{t}, v{t}, v{s0+3}, v{FLOOR[cb]}", f"v_mov_b32 v{t+1}, v{t}",
                f"v_permlane16_swap_b32 v{t}, v{t+1}", f"v_max_f32 v{t}, v{t}, v{t+1}", f"v_mov_b32 v{t+1}, v{t}",
                f"v_permlane32_swap_b32 v{t}, v{t+1}", f"v_max_f32 v{t}, v{t}, v{t+1}"] + [f"v_sub_f32 v{CI(cb)+i}, 0, v{t}" for i in range(4)]:
        Fl.append(F(txt, e, l, ch))
for c in range(8):
    for kt in range(4):
        gq = G[("QK", c, kt)]
        for cb in range(4):
            e = gq + 4 * cb + 3 + 5
            l = G[("L", c, 0)] - 2
            if c < 7 and kt & 1: l = min(l, G[("QK", c + 1, 2 if kt == 1 else 3)] + 4 * cb - 1)
            ch = ("sm", c, kt >> 1, cb); s0 = S(kt, cb, c)
            if c == 0 and kt == 1: ch = ("mx", cb)
            if c == 0 and kt < 1:
                ch = ("mx", cb)
                for i in range(4): Fl.append(F(f"v_add_f32 v{s0+i}, v{CI(cb)}, v{s0+i}", e, l, ch))
            for i in range(4): Fl.append(F(f"v_exp_f32 v{s0+i}, v{s0+i}", e, l, ch))
            for i in range(2): Fl.append(F(f"v_cvt_pk_bf16_f32 v{P(c,kt>>1,cb)+2*(kt&1)+i}, v{s0+2*i}, v{s0+2*i+1}", e, l, ch))
gL = G[("L", 7, 0)]
for cb in range(4): Fl.append(F(f"v_accvgpr_read_b32 v{240+cb}, a{LS+4*cb}", gL + 12, gL + 20, "nrm"))
for cb in range(4): Fl.append(F(f"v_rcp_f32 v{244+2*cb}, v{240+cb}", gL + 12, gL + 24, "nrm"))
for t in ["v_add_f32 v252, v240, v241", "v_add_f32 v254, v242, v243", "v_add_f32 v252, v252, v254", f"v_cmp_nge_f32 vcc, {f2u(2.0**34)}, v252\ns_cmp_lg_u64 vcc, 0\ns_cselect_b32 s3, 1, 0",
          "v_mov_b32 v254, s3", "v_and_b32 v253, 3, v1", "v_lshlrev_b32 v253, 2, v253", f"v_add_u32 v253, {LGO + 16}, v253"]:
    Fl.append(F(t, gL + 14, gL + 34, "nrm"))
def norm_ops(dp, cb, pk):
    t = 224 + (cb & 1) * 8; o = []
    for tile in range(2):
        for r in range(4): o.append(f"v_accvgpr_read_b32 v{t+4*tile+r}, a{oacc(dp,tile,cb)+r}")
    if pk: o += [f"v_pk_mul_f32 v[{t+2*r}:{t+2*r+1}], v[{t+2*r}:{t+2*r+1}], v[{244+2*cb}:{245+2*cb}] op_sel_hi:[1,0]" for r in range(4)]
    else: o += [f"v_mul_f32 v{t+r}, v{244+2*cb}, v{t+r}" for r in range(8)]
    d = t
    o += [f"v_cvt_pk_bf16_f32 v{d+e}, v{t+2*e}, v{t+2*e+1}" for e in range(4)]
    o.append(f"ds_write_b128 v30, v[{d}:{d+3}] offset:{(dp*4+cb)*1024}")
    return o
lpF = []; spread_dma(lpF, G[("PV", 0, 1)] + 4 - OPT.get("lpe", 40), [f"s_add_u32 m0, s63, {UNIT}", f"s_add_u32 s10, s10, {64*6144}"], [f"buffer_load_dwordx4 v{2+i}, s[0:3], s10 offen offset:{i*1032}{' nt' if OPT.get('nt_lp', 1) else ''} lds" for i in range(4)], ["s_mov_b32 s2, s12"], "wm", None, 5)
cut = min(f.order for f in Fl if f.chain == "dma" and f.e >= G[("PV", 0, 3)])
for i, f in enumerate(lpF): f.order = cut - 1 + (i + 1) / 100.0
Fl += lpF
def late_producer():
    A(f"s_sub_u32 s3, s96, {LP0}\ns_cmp_ge_u32 s3, 2\ns_cbranch_scc1 L_nolp")
    keep = (list(st.vm), list(st.lg), list(st.hist))
    silu_to_lds(30, 240)
    A(f"v_lshrrev_b32 v240, 4, v1\nv_lshlrev_b32 v240, 4, v240\ns_lshl_b32 s3, s35, 8\ns_add_u32 s3, s3, {SILU}\nv_add_u32 v240, s3, v240\ns_waitcnt lgkmcnt(0)\ns_barrier")
    for k in range(4): A(f"ds_read_b128 a[{128+4*k}:{131+4*k}], v240 offset:{k*64}")
    st.need("wm")
    for u in range(2):
        for t in p16_reads(lambda tile, s: ("a", 144 + u * 16 + tile * 8 + s * 4), u * UNIT): A(t)
    for k in range(4):
        for tile in range(2): A(mf(244 + 4 * tile, 144 + (k >> 1) * 16 + tile * 8 + (k & 1) * 4, 128 + 4 * k, "0" if k == 0 else None))
    A(f"s_lshl_b32 s13, s13, 7\ns_add_u32 s13, s13, {WS_MOD2}")
    publish(2, 244, "L_lp_x", "s13", tmp=240, stmp="s3")
    A("L_lp_x:\ns_waitcnt lgkmcnt(0)\ns_nop 7\nL_nolp:")
    st.vm, st.lg, st.hist = keep
Fl.append(F(("call", late_producer), G[("PV", 2, 3)] + 1, G[("PV", 2, 3)] + 1, "lp"))
Fl.append(F("buffer_store_dword v255, v254, s[48:51], s11 offen sc1", G[("PV", 1, 1)] + 9, G[("PV", 1, 1)] + 12, "pw"))
Fl.append(F(f"v_add_u32 v254, {WS_F3 - WS_F2}, v254", G[("PV", 1, 1)] + 12, G[("PV", 1, 2)] + 8, "pw"))
Fl.append(F("buffer_store_dword v255, v254, s[48:51], s11 offen sc1", G[("PV", 1, 2)] + 9, G[("PV", 1, 2)] + 12, "pw"))
for i, r in enumerate((30, 2, 3, 4, 5)): Fl.append(F(f"v_add_u32 v{r}, s{85+i}, v16", G[("QK", 4, 0)], G[("PV", 6, 0)], "ba"))
NHID = 4
grp = [(dp, cb) for dp in range(4) for cb in range(4)]
for dp, cb in grp[:NHID]:
    for t in norm_ops(dp, cb, False): Fl.append(F(t, G[("PV", 7, dp)] + 16 + 3, NATT - 1, "nrm"))
for u in (6, 7):
    g = gL + 1 + (u - 6) * 16
    for i, t in enumerate(p16_reads(lambda tile, s: woreg(u, tile, s), RS(u) * UNIT)): Fl.append(F(t, g + i, g + 8 + i, "wor", tag=("RW", u), need=[("W", u)] if i == 0 else None))
for u in (10, 11):
    p = wo_pre(u, f"s_add_u32 m0, s63, {RS(u)*UNIT}"); spread_dma(Fl, gL + 22 + (u - 10) * 24, p[:2], dma4("s60", nt("wo")), p[2:], ("W", u), [("RW", u - 4)], 6)
assert not psn and not pf
schedule(st, M, Fl, reserve=RES, verbose="attn", mem2=("rd", "wor"), minback=OPT.get("minback", 10), pairfirst=lambda g: G[("QK", 7, 0)] - OPT.get("pfa", -1000) <= g < gL)
stamp("attn")
A("ds_write_b32 v31, v254")
for u in (8, 9):
    for i, t in enumerate(p16_reads(lambda tile, s: woreg(u, tile, s), RS(u) * UNIT)): st.add(t, tag=("RW", u), need=[("W", u)] if i == 0 else None)
for n, (dp, cb) in enumerate(grp[NHID:8]):
    for t in norm_ops(dp, cb, True): st.add(t, tag="ow" if t.startswith("ds_write") else None)

def oB(i, cb): return ("v", 32 + ((i - 4) * 4 + cb) * 4) if 4 <= i < 8 else ("a", ((i if i < 4 else i - 4) * 4 + cb) * 4)
def pacc(i, tile, cb): return 96 + ((BLK[6][0], BLK[6][2]), (WOB[6], WOB[7]))[i & 1][tile] * 16 + cb * 4
def oB_read(ks, cb):
    f, r = oB(ks, cb); return f"ds_read_b128 {f}[{r}:{r+3}], v{2 + ((ks>>1)&3)} offset:{(((ks>>3)*2+(ks&1))*4+cb)*1024}"
with Capture() as osu:
    A(f"""
s_mul_i32 s6, s35, {UNIT}
s_add_u32 s6, s6, {VB}
s_sub_u32 s60, s6, s63
v_add_u32 v20, s60, v10
s_mul_i32 s7, s35, {2*UNIT}
s_sub_u32 s60, s7, s63
v_add_u32 v21, s60, v10
s_mul_i32 s62, s35, {UNIT}
s_add_u32 s62, s62, {8*UNIT}
s_cmp_eq_u32 s35, 3
s_cselect_b32 s62, {MISC+8192}, s62
s_sub_u32 s60, s62, s63
v_add_u32 v15, s60, v10
v_and_b32 v6, 15, v1
v_lshrrev_b32 v7, 1, v6
v_and_b32 v6, 1, v1
v_lshrrev_b32 v8, 4, v1
v_lshlrev_b32 v31, 11, v7
v_lshl_add_u32 v31, v6, 4, v31
v_lshl_add_u32 v31, v8, 5, v31
v_lshrrev_b32 v7, 3, v1
v_and_b32 v8, 7, v1
v_lshlrev_b32 v23, 7, v8
v_and_b32 v7, 1, v7
v_mul_u32_u24 v7, {WS_F1 - WS_F2}, v7
v_add_u32 v23, v23, v7
v_lshlrev_b32 v19, 16, v8
v_mov_b32 v7, {OOB}
v_cmp_le_u32 vcc, 8, v1
v_cndmask_b32 v19, v19, v7, vcc
v_and_b32 v24, 31, v1
v_lshlrev_b32 v24, 4, v24
s_lshl_b32 s60, s57, 3
s_add_u32 s60, s60, s56
s_lshl_b32 s60, s60, 7
s_add_u32 s60, s60, {WS_F1}
s_lshl_b32 s61, s58, 3
s_add_u32 s61, s61, s59
s_lshl_b32 s61, s61, 7
s_add_u32 s61, s61, {WS_F2 - 128}
v_lshlrev_b32 v8, 2, v1
v_add_u32 v22, s60, v8
v_add_u32 v8, s61, v8
v_cmp_le_u32 vcc, 32, v1
v_cndmask_b32 v22, v22, v8, vcc
v_lshrrev_b32 v8, 5, v1
v_lshl_add_u32 v24, v8, 16, v24
v_mov_b32 v25, s34
; s93 = partial store base, s8 = its running column offset; s9 = own flag line (wave 0) ; s0 = flag check base; s1 = read base; s12 = running read column
s_lshl_b32 s61, s57, 3
s_add_u32 s61, s61, s56
s_lshl_b32 s93, s61, 16
s_lshl_b32 s60, s35, 7
s_add_u32 s93, s93, s60
s_add_u32 s93, s93, {WS_PART}
s_lshl_b32 s8, s14, 9
s_cmp_lg_u32 s35, 0
s_cselect_b32 s9, {OOB}, 0
s_lshl_b32 s0, s58, 10
s_add_u32 s0, s0, {WS_F2}
s_lshl_b32 s1, s58, 19
s_lshl_b32 s60, s59, 13
s_add_u32 s1, s1, s60
s_lshl_b32 s60, s35, 11
s_add_u32 s1, s1, s60
s_add_u32 s1, s1, {WS_PART}
s_and_b32 s12, s58, {OPT.get("rotmask", 7) & 3}
s_lshl_b32 s12, s12, 9
s_mov_b32 s15, 0
""")
    A(f"""
v_lshrrev_b32 v6, 5, v1
s_and_b32 s60, s58, {OPT.get("rotmask", 7) & 3}
v_add_u32 v6, s60, v6
v_add_u32 v7, 2, v6
v_and_b32 v6, 3, v6
v_and_b32 v7, 3, v7
v_and_b32 v8, 30, v1
v_lshlrev_b32 v8, 3, v8
v_lshl_add_u32 v6, v6, 8, v8
v_lshl_add_u32 v7, v7, 8, v8
v_lshlrev_b32 v240, 1, v6
v_lshlrev_b32 v241, 1, v7
v_add_u32 v242, {MODV}, v240
v_add_u32 v243, {MODV}, v241
v_and_b32 v241, 3, v1
v_lshlrev_b32 v241, 2, v241
v_add_u32 v241, {LGO}, v241
v_not_b32 v240, v25
ds_write_b32 v241, v240
v_mov_b32 v241, {LGO}
v_and_b32 v8, 1, v1
v_lshl_add_u32 v6, v8, 10, v6
v_lshl_add_u32 v7, v8, 10, v7
v_lshlrev_b32 v8, 4, v0
v_add_u32 v8, {WS_MOD2}, v8
s_lshl_b32 s10, s58, 16
s_lshl_b32 s60, s59, 13
s_add_u32 s10, s10, s60
s_lshl_b32 s60, s35, 11
s_add_u32 s10, s10, s60
""")
    srd(52, 4, 2048 * 1024)
    A("s_movk_i32 s11, 4096")
st.need("ow", "psn"); A("s_barrier")
A("ds_read_b32 v252, v253")
for ks in range(2):
    for cb in range(4): A(oB_read(ks, cb))
st.newphase(); stamp("norm")
def slot_m0(r): return f"s_add_u32 m0, s63, {r*UNIT}" if r < 4 else {4: "s_mov_b32 m0, s6", 5: "s_mov_b32 m0, s7", 6: f"s_add_u32 m0, s7, {UNIT}", 7: "s_mov_b32 m0, s62"}[r]
def slot_rd(r): return (r * UNIT, "v10") if r < 4 else {4: (0, "v20"), 5: (0, "v21"), 6: (UNIT, "v21"), 7: (0, "v15")}[r]
def part_cvt(n, cb): return [f"v_cvt_pk_bf16_f32 v{224+4*cb+k}, v{pacc(n,k>>1,cb)+2*(k&1)}, v{pacc(n,k>>1,cb)+2*(k&1)+1}" for k in range(4)] + ([f"v_min_u32 v{224+4*cb}, -2, v{224+4*cb}"] if n >= 2 else [])
FLAG = "buffer_store_dword v25, v22, s[48:51], s9 offen sc1"
def pread(n, soff): return [f"buffer_load_dwordx4 v[{160+16*n+4*gp}:{163+16*n+4*gp}], v24, s[48:51], {soff[gp]} offen sc1{' nt' if OPT.get('pnt') else ''}" for gp in range(4)]
M = []; Fl = []; RES = {}
slot = {u: (RS(u) if ((u - NREG) & 7) < 4 else (u - NREG) & 7) if u < NREG + 8 else None for u in range(NREG, 32)}
for u in range(NREG + 8, 32): slot[u] = slot[u - 8]
for u in range(32):
    n, kk = u >> 3, u & 7; g0 = len(M)
    for tile in range(2):
        for cb in range(4):
            for s in range(2):
                f, r = oB(2 * kk + s, cb)
                fa, ra = woreg(u, tile, s) if u < NREG else ("a", stg(u, tile, s))
                M.append(mf(pacc(n, tile, cb), ra, r, "0" if (kk == 0 and s == 0) else None, "v", fa, f))
    if NREG <= u + 1 < 32:
        off, ad = slot_rd(slot[u + 1])
        for i, t in enumerate(p16_reads(lambda tile, s: ("a", stg(u + 1, tile, s)), off, ad)):
            Fl.append(F(t, g0 + i, g0 + i + 1, "rd", tag=("R", u + 1), need=[("W", u + 1)] if i == 0 else None))
    RES[g0 + 15] = 1
Fl.append(F("v_cmp_lt_u32 vcc, s95, v252\ns_cbranch_vccnz L_redo", 2, 2, "gd"))
GW = OPT.get("gow", 40)
for i, (dp, cb) in enumerate(grp[8:]):
    o = norm_ops(dp, cb, True); g = i * (GW - 4) // 8
    Fl.append(F("\n".join(o[:-1]), g, g, "nrm")); Fl.append(F(o[-1], g + 1, g + 1, "nrm", tag="ow2"))
Fl.append(F(("barrier", ["ow2"]), GW, GW, "ob"))
i = 0
for ks in range(2, 16):
    for cb in range(4):
        e = i if ks < 8 else max(GW + 1 + i - 24, {14: 48, 15: 64}.get(ks, 0) + cb)
        f = F(oB_read(ks, cb), e, e + 1, "ob", tag="OB"); i += 1
        if ks < 8: f.order -= 1000
        Fl.append(f)
GX_ = GW + 38
Fl += osu.fillers(GW - 8, 118, "su")
ld = [(12, slot[12], 1, None), (13, slot[13], 21, None), (14, 4, GW + 4, None)] + [(15 + k, 5 + k, GX_ + 2 + 16 * k, None) for k in range(3)] + [(u, slot[u], (u - 9) * 16 + 11, u - 8) for u in range(18, 32)]
for u, r, g, nd in ld:
    if u == 15: Fl.append(F(("barrier", ["OB"]), GX_, GX_, "dma"))
    p = wo_pre(u, slot_m0(r))
    spread_dma(Fl, g, p[:2], dma4("s60", nt("wo")), p[2:] + (["s_add_u32 s92, s92, 256", "s_and_b32 s92, s92, 1023"] if (u & 7) == 7 else []), ("W", u), [("R", nd)] if nd is not None else None, 5 if g < GW else 4)
for n in range(3):
    g = (8 * n + 8) * 16
    Fl.append(F("s_add_u32 s61, s93, s8", g + 2, g + 8, "po"))
    SS = OPT.get("ss", 4)
    for cb in range(4):
        for t in part_cvt(n, cb): Fl.append(F(t, g + 2, g + 9 + SS * cb, "po"))
        if not OPT.get("nopart"): Fl.append(F(f"buffer_store_dwordx4 v[{224+4*cb}:{227+4*cb}], v31, s[48:51], s61 offen{'' if OPT.get('plainst') else ' sc1'}", g + 9 + SS * cb, g + 10 + SS * cb, "po", tag=("part", n)))
        Fl.append(F("s_add_u32 s61, s61, 16384" if cb < 3 else "s_add_u32 s8, s8, 512", g + 9, g + 12 + SS * cb, "po"))
    Fl.append(F("s_and_b32 s8, s8, 2047", g + 20, g + 14 + 3 * SS, "po"))
    gf = g + OPT.get("gf", 6 * 16 + 9)
    if n != 1: continue
    Fl.append(F(("barrier", [("part", n)]), gf, gf, "po"))
    Fl.append(F(FLAG, gf + 1, gf + 1, "po"))
Fl.append(F("buffer_load_dword v240, v23, s[48:51], s0 offen sc1", 30 * 16 + 8, 30 * 16 + 12, "po"))
for i, t in enumerate(["buffer_load_dwordx4 v[244:247], v6, s[52:55], s10 offen", "buffer_load_dwordx4 v[248:251], v7, s[52:55], s10 offen",
                       "buffer_load_dwordx4 v[252:255], v8, s[48:51], 0 offen sc1", "buffer_load_dwordx4 v[26:29], v8, s[48:51], s11 offen sc1"]):
    Fl.append(F(t, OPT.get("gsm", 23 * 16 + 14) + 16 * i, OPT.get("gsm", 23 * 16 + 14) + 4 + 16 * i, "sm"))
g = 23 * 16 + 12
w1s = ["s_min_u32 s62, s59, 6", "s_lshl_b32 s62, s62, 9", "s_lshl_b32 s60, s35, 7", "s_add_u32 s62, s62, s60", "s_add_u32 s36, s16, s62\ns_addc_u32 s37, s17, 0", f"s_sub_u32 s38, {512*3584}, s62", f"s_cmp_eq_u32 s59, {7 if OPT.get('j7', 0) else 9}\ns_cselect_b32 s38, 0, s38", "s_lshl_b32 s14, s58, 1", f"s_and_b32 s14, s14, {6 if OPT.get('crot', 1) else 0}", "s_add_u32 s14, s14, s59", "s_and_b32 s92, s14, 7", f"s_mul_i32 s92, s92, {64*3584}",
       "v_bfe_u32 v2, v1, 2, 3", "v_mul_u32_u24 v2, 3584, v2", "v_lshrrev_b32 v3, 5, v1", "v_lshl_add_u32 v2, v3, 6, v2", "v_and_b32 v3, 3, v1", "v_lshl_add_u32 v11, v3, 4, v2",
       f"v_add_u32 v12, {8*3584-1032}, v11", f"v_add_u32 v13, {16*3584-2064}, v11", f"v_add_u32 v14, {24*3584-3096}, v11"]
for t in w1s: Fl.append(F(t, g, g + 14, "dma"))
NW0 = OPT.get('nw0', 7)
def w1_pre(): return ["s_mov_b32 s60, s92", f"s_add_u32 s92, s92, {32*3584}", f"s_cmp_eq_u32 s92, {512*3584}\ns_cselect_b32 s92, 0, s92"]
W1U = [u for u in range(24, 32) if slot[u] != 7]
for k in range(NW0):
    p = w1_pre(); spread_dma(Fl, max(24 * 16 + 12 + 16 * k - (k // 2) * 3, (W1U[k] - 1) * 16 + 11), [slot_m0(slot[W1U[k]])] + p[:1], dma4("s60"), p[1:], ("W1", k), [("R", W1U[k])], 3)
m2 = ["buffer_load_dwordx4 v[252:255], v8, s[48:51], 0 offen sc1", "buffer_load_dwordx4 v[26:29], v8, s[48:51], s11 offen sc1"]
def mod2_check():
    cond2 = """v_cmp_ne_u32 vcc, s34, v253
    v_cmp_ne_u32 s[100:101], s34, v255
    s_or_b64 vcc, vcc, s[100:101]
    v_cmp_ne_u32 s[100:101], s34, v27
    s_or_b64 vcc, vcc, s[100:101]
    v_cmp_ne_u32 s[100:101], s34, v29
    s_or_b64 vcc, vcc, s[100:101]"""
    A(cond2); A("s_cbranch_vccz L_pm2_x")
    keep = (list(st.vm), list(st.lg), list(st.hist))
    spin("L_pm2", ["s_sleep 8"] + m2, cond2)
    st.vm, st.lg, st.hist = keep
with Capture() as cp:
    A(f"""
s_cmp_lt_u32 s35, 2
s_cselect_b32 s60, 1.0, 0
v_lshlrev_b32 v160, 16, v252
v_and_b32 v161, 0xffff0000, v252
v_lshlrev_b32 v162, 16, v254
v_and_b32 v163, 0xffff0000, v254
v_lshlrev_b32 v164, 16, v26
v_and_b32 v165, 0xffff0000, v26
v_lshlrev_b32 v166, 16, v28
v_and_b32 v167, 0xffff0000, v28
v_add_f32 v164, s60, v164
v_add_f32 v165, s60, v165
v_add_f32 v166, s60, v166
v_add_f32 v167, s60, v167
v_lshlrev_b32 v8, 4, v0
v_add_u32 v8, {MODV}, v8
ds_write_b128 v8, v[160:163]
ds_write_b128 v8, v[164:167] offset:4096
""")
Fl.append(F(("call", mod2_check), 30 * 16 + 9, 30 * 16 + 9, "m2"))
Fl += cp.fillers(30 * 16 + 10, 31 * 16 + 8, "m2")
for u in (8, 16, 24): Fl += stampF(f"O{u}", u * 16)
for u in (16, 20, 22, 23, 24, 25, 26, 27, 28, 29, 30, 31): Fl += stampF(f"u{u}", u * 16)
Fl += stampF("u32", 511)
schedule(st, M, Fl, reserve=RES, verbose="O")
for cb in range(4):
    for t in part_cvt(3, cb): A(t)
A("s_add_u32 s61, s93, s8")
for cb in range(4):
    st.add(f"buffer_store_dwordx4 v[{224+4*cb}:{227+4*cb}], v31, s[48:51], s61 offen sc1", tag=("part", 3))
    if cb < 3: A("s_add_u32 s61, s61, 16384")
stamp("O")

def w1reg(half, s, tile): return ((half * 16 + s) * 2 + tile) * 4
def w2reg(ks, tp, tile):
    o = tp * 8 + tile * 4
    if ks < 4: return ("v", 160 + ks * 16 + o)
    if ks < 9: return ("a", (ks - 4) * 16 + o)
    if ks < 13: return ("a", 192 + (ks - 9) * 16 + o)
    return ("v", 208 + o)
KS2 = [(p, 0) for p in range(7)] + [(p, 1) for p in range(7)]
class WS:
    nd = NW0; nr = 0; slot_of = {k: slot[W1U[k]] for k in range(NW0)}; last = {slot[W1U[k]]: k for k in range(NW0)}
def w_dma(n, slots):
    for _ in range(n):
        u = WS.nd; WS.nd += 1
        r = [x for x in slots if WS.last.get(x, -1) < WS.nr][0]
        A(slot_m0(r))
        if u == 16: w2_setup()
        A("\n".join(w1_pre()) if u < 16 else "\n".join(w2_pre(u - 16)))
        for i, t in enumerate(dma4("s60")): st.add(t, tag=("W1", u), need=[("R1", WS.last[r])] if (i == 0 and r in WS.last) else None)
        WS.slot_of[u] = r; WS.last[r] = u
def w_ops(n, slots):
    global A
    got = []; oa, oadd = A, st.add
    A = lambda t: got.extend((l.strip(), None, None) for l in t.split("\n") if l.strip())
    st.add = lambda t, tag=None, need=None: got.append((t, tag, need))
    try: w_dma(n, slots)
    finally: A = oa; del st.add
    return got
def interleave(lines, ops, every):
    for i, l in enumerate(lines):
        A(l)
        if i % every == every - 1 and not l.startswith(("v_cmp", "s_")):
            while ops:
                t, tag, need = ops.pop(0); st.add(t, tag=tag, need=need)
                if t.startswith("buffer"): break
    for t, tag, need in ops: st.add(t, tag=tag, need=need)
def w_read(n):
    for _ in range(n):
        u = WS.nr; WS.nr += 1; r = WS.slot_of[u]
        if u < 16:
            off, ad = slot_rd(r); L = p8_reads(lambda tp, tile: ("a", w1reg(tp, u, tile)), off, "v9" if r < 4 else ad)
        else:
            L = p8_reads(lambda tp, tile: w2reg(u - 16, tp, tile), r * UNIT if r < 4 else 0, "v9" if r < 4 else "v20")
        for i, t in enumerate(L): st.add(t, tag=("R1", u), need=[("W1", u)] if i == 0 else None)
def w2_setup():
    voffs8(1024)
    A(f"""
    s_lshl_b32 s60, s35, 16
    s_lshl_b32 s61, s59, 7
    s_add_u32 s60, s60, s61
    s_add_u32 s36, s20, s60
    s_addc_u32 s37, s21, 0
    s_sub_u32 s38, {1792*1024}, s60
    s_sub_u32 s7, s14, 7
    s_cselect_b32 s7, s14, s7
    s_mul_i32 s8, s7, 40960
    s_lshl_b32 s7, s7, 18
    """)
def w2_pre(ks): return [f"s_add_u32 s60, s7, {(ks // 7) * 32768}", "s_add_u32 s7, s7, 0x40000", f"s_cmp_eq_u32 s7, {7 << 18}\ns_cselect_b32 s7, 0, s7"]
ALL7 = [0, 1, 2, 3, 4, 5, 6]
srd(52, 18, 3584)
A("v_lshrrev_b32 v2, 4, v1\nv_lshlrev_b32 v2, 4, v2\nbuffer_load_dwordx4 v[80:83], v2, s[52:55], s62 offen\nbuffer_load_dwordx4 v[84:87], v2, s[52:55], s62 offen offset:64")
A("v_subrev_u32 v2, v10, v9\nv_add_u32 v20, v2, v20\nv_add_u32 v21, v2, v21")
stamp("elp")
def wave0_wait(lab, word, test, probe, ex=None):
    keep = None
    A(f"{test}\ns_cmp_eq_u32 s35, 0\ns_cbranch_scc1 {lab}_0\ns_cbranch_vccz {lab}_e\ns_mov_b32 s3, {SPIN * 8}")
    keep = (list(st.vm), list(st.lg))
    A(f"{lab}_l:\nds_read_b32 v240, v241 offset:{4*word}\ns_sub_u32 s3, s3, 1\ns_waitcnt lgkmcnt(0)\nv_cmp_ne_u32 vcc, s34, v240\ns_cmp_eq_u32 s3, 0\ns_cbranch_scc1 {lab}_e\ns_cbranch_vccz {lab}_e\ns_sleep 1\ns_branch {lab}_l")
    A(f"{lab}_0:\ns_cbranch_vccz {lab}_x")
    if ex: A(f"s_mov_b64 exec, {ex}")
    spin(lab, probe, test)
    if ex: A("s_mov_b64 exec, -1")
    A(f"ds_write_b32 v241, v25 offset:{4*word}\n{lab}_e:")
    st.vm, st.lg = keep; st.hist = []
wave0_wait("L_rdy", 0, "v_cmp_ne_u32 vcc, s34, v240", ["v_mov_b32 v240, 0", "buffer_atomic_add v240, v23, s[48:51], s0 offen sc0 sc1"], "0xffff")
def pre_off(n): return f"s_add_u32 s13, s12, {n*512}\ns_and_b32 s13, s13, 2047\ns_add_u32 s13, s13, s1"
def pread_ops(n):
    o = pre_off(n).split("\n")
    for gp, t in enumerate(pread(n, ["s13"] * 4)): o += [t] + (["s_add_u32 s13, s13, 0x20000"] if gp < 3 else [])
    return o
def preads(n, tag=None):
    for t in pread_ops(n): st.add(t, tag=tag if t.startswith("buffer") else None)
def hint(off): return ["v_mov_b32 v240, 0", f"buffer_atomic_add v240, v19, s[48:51], s15 offen offset:{off} sc0 sc1"]
def wait_hint(lab, word, off):
    wave0_wait(lab, word, "v_cmp_eq_u32 vcc, -1, v240", hint(off))
for n in range(2): preads(n)
A(pre_off(3).replace("s13", "s15"))
for t in hint(384): A(t)
w_read(NW0)
SP2 = OPT.get("sp2", 0)
if SP2: preads(2, "p2")
A("v_mov_b32 v2, 0x3f80\nv_mov_b32 v3, 0x3f800000")
def accq(n):
    for r in range(4): A(f"v_lshlrev_b32 v{96+8*n+2*r}, 16, v{160+16*n+r}\nv_and_b32 v{97+8*n+2*r}, 0xffff0000, v{160+16*n+r}")
    for gp in range(1, 4):
        for r in range(4): A(f"v_dot2c_f32_bf16 v{96+8*n+2*r}, v{160+16*n+4*gp+r}, v2\nv_dot2c_f32_bf16 v{97+8*n+2*r}, v{160+16*n+4*gp+r}, v3")
OWN5 = [0, 1, 2, 3, 4]; OWN7 = [0, 1, 2, 3, 4, 5, 6]
A(f"""
s_mul_i32 s6, s35, {UNIT}
s_add_u32 s6, s6, 65536
s_sub_u32 s60, s6, s63
s_waitcnt lgkmcnt(0)
v_add_u32 v20, s60, v9
s_barrier
""")
stamp("epr")
w_dma(OPT.get("nA", 0), OWN5)
def modrd(dst, vec):
    for h in range(2):
        for q in range(2): A(f"ds_read_b128 v[{dst+8*h+4*q}:{dst+8*h+4*q+3}], v{242+h} offset:{vec*2048 + q*16}")
modrd(32, 0); modrd(48, 2); modrd(64, 1)
wait_hint("L_hp", 1, 384)
stamp("f1st")
if SP2:
    preads(3, "p23")
    A("v_max3_u32 v240, v192, v196, v200\nv_max_u32 v240, v240, v204\nv_cmp_eq_u32 vcc, -1, v240\ns_cbranch_vccz L_had2")
    keep = list(st.vm); preads(2); A("s_waitcnt vmcnt(0)\nL_had2:"); st.vm = keep
else: preads(2, "p23"); preads(3, "p23")
w_dma(OPT.get("nB", 4), [5, 6, 0, 1, 2, 3, 4])
for r in range(8): A(f"v_lshlrev_b32 v{144+2*r}, 16, v{244+r}\nv_and_b32 v{145+2*r}, 0xffff0000, v{244+r}")
accq(0); accq(1)
chk23 = "v_max3_u32 v240, v192, v196, v200\nv_max3_u32 v240, v240, v204, v208\nv_max3_u32 v240, v240, v212, v216\nv_max_u32 v240, v240, v220\nv_cmp_eq_u32 vcc, -1, v240"
st.need("p23")
A(chk23); A("s_cbranch_vccz L_p23_x")
keep = (list(st.vm), list(st.lg)); spin("L_p23", ["s_sleep 2"] + pread_ops(2) + pread_ops(3), chk23); st.vm, st.lg = keep
stamp("f1ok")
def row_stats(x, scale=1.0):
    A(f"v_pk_add_f32 v[96:97], v[{x}:{x+1}], v[{x+2}:{x+3}]\nv_pk_mul_f32 v[98:99], v[{x}:{x+1}], v[{x}:{x+1}]")
    A(f"v_pk_fma_f32 v[98:99], v[{x+2}:{x+3}], v[{x+2}:{x+3}], v[98:99]")
    for r in range(2, 8):
        A(f"v_pk_add_f32 v[96:97], v[96:97], v[{x+2*r}:{x+2*r+1}]\nv_pk_fma_f32 v[98:99], v[{x+2*r}:{x+2*r+1}], v[{x+2*r}:{x+2*r+1}], v[98:99]")
    A("v_add_f32 v96, v96, v97\nv_add_f32 v98, v98, v99")
    for d in ("quad_perm:[2,3,0,1]", "row_ror:4", "row_ror:8"):
        A(f"v_add_f32_dpp v96, v96, v96 {d} row_mask:0xf bank_mask:0xf\nv_add_f32_dpp v98, v98, v98 {d} row_mask:0xf bank_mask:0xf")
    for sw in ("16", "32"):
        A(f"v_mov_b32 v97, v96\nv_mov_b32 v99, v98\nv_permlane{sw}_swap_b32 v96, v97\nv_permlane{sw}_swap_b32 v98, v99\nv_add_f32 v96, v96, v97\nv_add_f32 v98, v98, v99")
    A(f"""v_mul_f32 v97, {f2u(1/512)}, v96
    v_mul_f32 v98, {f2u(1/512)}, v98
    v_fma_f32 v98, -v97, v97, v98
    v_max_f32 v98, 0, v98
    v_add_f32 v98, {f2u(1e-5)}, v98
    {f"v_mul_f32 v98, {f2u(scale ** -2)}, v98" if scale != 1.0 else ""}
    v_rsq_f32 v96, v98
    v_mul_f32_e64 v98, -v97, v96""")
with Capture() as lnc:
    accq(2); accq(3)
    for h in range(2):
        for r in range(8): A(f"v_permlane32_swap_b32 v{96+16*h+r}, v{104+16*h+r}")
    for h in range(2):
        for r in range(0, 8, 2): A(f"v_pk_add_f32 v[{128+8*h+r}:{129+8*h+r}], v[{96+16*h+r}:{97+16*h+r}], v[{104+16*h+r}:{105+16*h+r}]")
    for r in range(8): A(f"v_pk_fma_f32 v[{128+2*r}:{129+2*r}], v[{128+2*r}:{129+2*r}], v[{32+2*r}:{33+2*r}], v[{144+2*r}:{145+2*r}]")
    for r in range(8): A(f"v_cvt_pk_bf16_f32 v{144+r}, v{128+2*r}, v{129+2*r}")
    row_stats(128)
    for r in range(8): A(f"v_pk_fma_f32 v[{128+2*r}:{129+2*r}], v[{128+2*r}:{129+2*r}], v[96:97], v[98:99] op_sel_hi:[1,0,0]")
    for r in range(8): A(f"v_pk_fma_f32 v[{128+2*r}:{129+2*r}], v[{128+2*r}:{129+2*r}], v[{48+2*r}:{49+2*r}], v[{64+2*r}:{65+2*r}]")
    row_stats(128, GS)
    for r in range(8): A(f"v_pk_fma_f32 v[{128+2*r}:{129+2*r}], v[{128+2*r}:{129+2*r}], v[96:97], v[98:99] op_sel_hi:[1,0,0]")
    for r in range(8): A(f"v_cvt_pk_bf16_f32 v{152+r}, v{128+2*r}, v{129+2*r}")
interleave(lnc.lines, w_ops(OPT.get("nL", 0), OWN7), OPT.get("evl", 18))
A(f"s_add_u32 s61, s10, {WS_Y}")
st.add("buffer_store_dwordx4 v[152:155], v6, s[48:51], s61 offen sc1", tag="y")
st.add("buffer_store_dwordx4 v[156:159], v7, s[48:51], s61 offen sc1", tag="y")
A(f"s_add_u32 s61, s10, {WS_X1}")
st.add("buffer_store_dwordx4 v[144:147], v6, s[48:51], s61 offen sc1", tag="y")
st.add("buffer_store_dwordx4 v[148:151], v7, s[48:51], s61 offen sc1", tag="y")
if OPT.get("pully", 0):
    A(f"s_add_u32 s61, s10, {WS_Y}")
    for v in (6, 7): dummy(f"buffer_load_dword v30, v{v}, s[48:51], s61 offen sc1")
stamp("ysent")
w_read(WS.nd - WS.nr); w_dma(OPT.get("nD", 3), OWN5)
A(f"""
v_lshrrev_b32 v2, 4, v1
s_lshl_b32 s12, s58, 16
s_and_b32 s11, s35, 1
s_lshl_b32 s11, s11, 14
s_add_u32 s12, s12, s11
s_add_u32 s12, s12, {WS_Y}
s_lshr_b32 s15, s35, 1
s_lshl_b32 s61, s15, 13
s_add_u32 s11, s11, s61
s_mul_i32 s15, s15, 0x2040
s_lshl_b32 s61, s58, 3
s_add_u32 s61, s61, s59
s_lshl_b32 s9, s61, 7
s_add_u32 s9, s9, {WS_F3}
s_cmp_lg_u32 s35, 0
s_cselect_b32 s9, {OOB}, s9
s_lshl_b32 s0, s58, 2
s_add_u32 s0, s0, s35
s_lshl_b32 s0, s0, 8
s_add_u32 s0, s0, {WS_F3}
v_min_u32 v23, 2, v1
v_lshrrev_b32 v22, 1, v23
v_lshlrev_b32 v23, 7, v23
v_lshl_add_u32 v23, v22, 28, v23
v_and_b32 v22, 31, v1
v_lshlrev_b32 v22, 2, v22
v_lshrrev_b32 v4, 3, v1
v_lshrrev_b32 v5, 1, v4
v_xor_b32 v5, v5, v1
v_and_b32 v5, 7, v5
v_lshlrev_b32 v5, 4, v5
v_lshl_add_u32 v4, v4, 10, v5
v_xor_b32 v4, s15, v4
v_bfe_u32 v15, v1, 1, 3
v_xor_b32 v15, v15, v2
v_lshlrev_b32 v15, 4, v15
v_and_b32 v17, 7, v1
v_lshl_add_u32 v15, v17, 7, v15
v_bfe_u32 v17, v1, 3, 1
v_lshl_add_u32 v15, v17, 13, v15
v_xor_b32 v17, 64, v15
""")
for r in range(8): A(f"v_lshlrev_b32 v{224+2*r}, 16, v{80+r}\nv_and_b32 v{225+2*r}, 0xffff0000, v{80+r}")
for r in range(16): A(f"v_mul_f32 v{224+r}, {f2u(GS)}, v{224+r}")
stamp("ewr")
st.need("y")
stamp("eyack")
A("s_barrier"); A("buffer_store_dword v25, v22, s[48:51], s9 offen sc1")
w_read(WS.nd - WS.nr)
def y_ops(c):
    o = [("v_add_u32 v4, 32768, v4", None)] if c else [("s_and_b32 s13, s14, 7", None), ("s_lshl_b32 s13, s13, 7", None), ("v_add_u32 v4, s12, v4", None)]
    for sp in range(8):
        o += [(f"s_add_u32 m0, s11, {c*32768 + sp*1024}", None), ("buffer_load_dwordx4 v4, s[48:51], s13 offen sc1 lds", ("Y", 2 if c else sp >> 2))]
        o += [("s_add_u32 s13, s13, 128", None), ("s_and_b32 s13, s13, 1023", None)]
    return o
probe = ["v_mov_b32 v240, 0", "buffer_atomic_add v240, v23, s[48:51], s0 offen sc0 sc1"]; ctest = "v_cmp_ne_u32 vcc, s34, v240\ns_and_b64 vcc, vcc, 3"
w_dma(OPT.get("nE", 2), OWN5)
for t in probe: A(t)
w_dma(OPT.get("nE2", 2), OWN5)
stamp("epre2")
A(ctest); A("s_cbranch_vccz L_pf2_x")
keep = (list(st.vm), list(st.lg)); spin("L_pf2", probe, ctest); st.vm, st.lg = keep
A("s_waitcnt lgkmcnt(0)\ns_barrier")
stamp("ebar2")
for t, tag in y_ops(0): st.add(t, tag=tag)
assert WS.nd > 16
stamp("f2ok")
if OPT.get("warm2", 1): warm("L_w2")
A(f"s_lshl_b32 s60, s2, 2\ns_add_u32 s60, s60, s35\ns_cmp_lg_u32 s60, 1\ns_cbranch_scc1 L_noep\nv_lshlrev_b32 v2, 7, v1\nv_add_u32 v2, {WS_F1}, v2\ns_mov_b32 s60, 0x2000\ns_mov_b32 s61, 0x4000\ns_mov_b32 s15, 0x6000")
keep = (list(st.vm), list(st.lg))
spin("L_ep", [f"buffer_load_dword v{40+i}, v2, s[48:51], {['0', 's60', 's61', 's15'][i]} offen sc1" for i in range(4)],
     "v_cmp_ne_u32 vcc, s34, v40\n" + "".join(f"v_cmp_ne_u32 s[100:101], s34, v{40+i}\ns_or_b64 vcc, vcc, s[100:101]\n" for i in range(1, 4)))
A("v_mov_b32 v2, 0\nbuffer_store_dword v25, v2, s[48:51], 0 offen sc1\nL_noep:"); st.vm, st.lg = keep
st.need(("Y", 0))
A("s_barrier")
stamp("Yin")

def yb(n, s, c2): return 96 + (n & 1) * 32 + (s * 2 + c2) * 4
def hacc(half, tile, cb): return 32 + half * 32 + (tile * 4 + cb) * 4
def yreads(n):
    cp, k4 = (n >> 2) & 1, n & 3
    return [f"ds_read_b128 v[{yb(n,s,c2)}:{yb(n,s,c2)+3}], v{15 if s % 2 == 0 else 17} offset:{(cp*2+c2)*16384 + (k4*2+(s>>1))*1024}" for c2 in range(2) for s in range(4)]
def gelu_stages(q):
    half, cp = q >> 1, q & 1
    X = [hacc(half, t, cp * 2 + c2) + r for c2 in range(2) for t in range(2) for r in (0, 2)]; T = [240 + 2 * i for i in range(8)]
    pr = lambda r: f"v[{r}:{r+1}]"
    a = [f"v_pk_fma_f32 {pr(t)}, {pr(x)}, {pr(x)}, v[26:27] op_sel_hi:[1,1,0]" for x, t in zip(X, T)] + [f"v_pk_mul_f32 {pr(t)}, {pr(x)}, {pr(t)} neg_lo:[1,0] neg_hi:[1,0]" for x, t in zip(X, T)]
    b = [f"v_exp_f32 v{240+i}, v{240+i}" for i in range(16)]
    c = [f"v_pk_fma_f32 {pr(t)}, {pr(t)}, s[92:93], s[92:93] op_sel_hi:[1,0,0]" for t in T]
    d = [f"v_rcp_f32 v{240+i}, v{240+i}" for i in range(16)]
    e = [f"v_pk_mul_f32 {pr(x)}, {pr(x)}, {pr(t)}" for x, t in zip(X, T)]
    st_ = []
    for c2 in range(2):
        cb = cp * 2 + c2; dd = hacc(half, 0, cb)
        e += [f"v_cvt_pk_bf16_f32 v{dd+k}, v{X[4*c2+k]}, v{X[4*c2+k]+1}" for k in range(4)]
        e.append(f"v_min_u32 v{dd}, -2, v{dd}")
        st_.append(f"buffer_store_dwordx4 v[{dd}:{dd+3}], v16, s[48:51], s{93+1+half} offen offset:{cb*1024} sc1")
    return a, b, c, d, e, st_
def pull(store): return re.sub(r"buffer_store_dwordx4 v\[\d+:\d+\]", "buffer_load_dword v30", store)
def flag3(q): return f"buffer_store_dword v25, v22, s[48:51], s11 offen offset:{q*512} sc1"
for t in yreads(0): A(t)
late_w = []
assert WS.nr >= 12
while WS.nr < min(WS.nd, 20):
    u = WS.nr; WS.nr += 1; r = WS.slot_of[u]
    late_w += [(t, u) for t in p8_reads((lambda tp, tile: ("a", w1reg(tp, u, tile))) if u < 16 else (lambda tp, tile: w2reg(u - 16, tp, tile)), r * UNIT if r < 4 else 0, "v9" if r < 4 else "v20")]
A(f"""
s_mov_b32 s92, {f2u(GS)}
v_mov_b32 v26, {f2u(GK)}
s_lshl_b32 s60, s58, 3
s_add_u32 s60, s60, s59
s_mul_i32 s94, s60, 40960
s_mul_i32 s61, s35, 5120
s_add_u32 s94, s94, s61
s_add_u32 s94, s94, {WS_H1}
s_cmp_eq_u32 s59, {7 if OPT.get('j7', 0) else 9}
s_cselect_b32 s94, {OOB}, s94
s_add_u32 s95, s94, 20480
s_mul_i32 s1, s58, 327680
s_add_u32 s1, s1, s61
s_add_u32 s1, s1, {WS_H1}
""")
NE = WS.nd - 16
W2S = {ks: ([0, 1, 2, 3, 4] * 3)[ks - NE] for ks in range(NE, 14)}
if NE == 5: W2S[4] = WS.slot_of[20]
def w2_m0(r): return f"s_add_u32 m0, s63, {r*UNIT}" if r < 4 else "s_mov_b32 m0, s6"
def w2_reads(ks): r = W2S[ks]; return p8_reads(lambda tp, tile: w2reg(ks, tp, tile), r * UNIT if r < 4 else 0, "v9" if r < 4 else "v20")
def hB(Q, k, c2):
    r = (k * 2 + c2) * 4
    if Q == 0: return ("a", 80 + r) if r < 48 else ("v", 224 + r - 48)
    if Q == 2: return ("v", 32 + r if r < 40 else (80 + r - 40 if r < 48 else 232 + r - 48))
    return [None, ("a", 136 + r), None, ("a", 80 + r)][Q]
def h_loads(Q, run="s8", tmp="s10"):
    o = []
    for k in range(7):
        o.append(f"s_add_u32 {tmp}, s1, {run}")
        for c2 in range(2):
            f, r = hB(Q, k, c2); o.append(f"buffer_load_dwordx4 {f}[{r}:{r+3}], v{16 + 2*(Q>>1)}, s[48:51], {tmp} offen offset:{((Q&1)*2+c2)*1024} sc1")
        o += [f"s_add_u32 {run}, {run}, 40960", f"s_cmp_eq_u32 {run}, {7 * 40960}\ns_cselect_b32 {run}, 0, {run}"]
    return o
def chk3(q): return f"buffer_load_dword v{28 + (q&1)}, v23, s[48:51], s0 offen offset:{q*512} sc1"
A("v_add_u32 v18, 20480, v16\ns_mov_b32 s9, s8")
M = []; Fl = []; RES = {}
for n in range(16):
    q = n >> 2; half, cp, k4 = q >> 1, q & 1, n & 3; g0 = len(M)
    for tile in range(2):
        for c2 in range(2):
            for s in range(4):
                M.append(mf(hacc(half, tile, cp * 2 + c2), w1reg(half, 4 * k4 + s, tile), yb(n, s, c2), (224 + half * 8 + tile * 4) if (k4 == 0 and s == 0) else None, "v", "a", "v"))
    if n == 0:
        nl = len(late_w)
        LW = OPT.get("lws", 3)
        for i, (t, u) in enumerate(late_w): Fl.append(F(t, i * LW // 4 if i < nl else 49 + (i - nl) // 2, i * LW // 4 if i < nl else 49 + (i - nl) // 2, "lw", tag=("LW", i >> 3), need=[("W1", u)] if i % 8 == 0 else None))
    if n in (1, 3): Fl.append(F(("barrier", [("Y", 1 + n // 2)]), g0, g0, "rd"))
    if n < 15:
        for i, t in enumerate(yreads(n + 1)): Fl.append(F(t, g0 + i, g0 + i + 1, "rd"))
    RES[g0 + 15] = 1
g = 0
for t, tag in y_ops(1):
    Fl.append(F(t, max(0, g - 3) if not tag else g, g, "dma", tag=tag))
    if tag: g += OPT.get("ys", 3)
nlw = len(late_w) // 8; lslot = [WS.slot_of[u] for u in range(WS.nr - nlw, WS.nr)]
free = [(r, None) for r in range(5) if r not in lslot and not (NE == 5 and r == W2S[4])] + [(r, ("LW", i)) for i, r in enumerate(lslot)]
ev = []; gd = OPT.get("gw2", 26); rdg = {}; PACE = OPT.get("pace", 14)
afree = {4: 81, 5: 86, 6: 97, 7: 102, 8: 113}
if NE == 5: rdg[4] = afree[4]; ev.append((rdg[4], "r", 4))
for ks in range(NE, 14):
    if free: r, nd = free.pop(0)
    else: r, nd = W2S[ks - 5], ("R2", ks - 5); gd = max(gd, rdg[ks - 5] + 8)
    W2S[ks] = r; ev.append((gd, "d", ks, nd))
    if ks < 9: rdg[ks] = max(gd + 44, afree.get(ks, 0)); ev.append((rdg[ks], "r", ks))
    gd += PACE
for e in sorted(ev, key=lambda e: e[0]):
    g, kind, ks = e[:3]
    if kind == "d":
        p = w2_pre(ks); spread_dma(Fl, g, [w2_m0(W2S[ks])] + p[:1], dma4("s60"), p[1:], ("W2", ks), [e[3]], 3)
    else:
        for k, t in enumerate(w2_reads(ks)): Fl.append(F(t, g + k // 2, g + (k + 1) // 2, "w2r", tag=("R2", ks), need=[("W2", ks)] if k == 0 else None))
CAP = {}
for q in range(3):
    g = 64 * (q + 1) + 4; a_, b_, c_, d_, e_, st_ = gelu_stages(q)
    Fl.append(F("\n".join(a_), g, g, "gelu"))
    for i, t in enumerate(b_): Fl.append(F(t, g + 1 + i, g + 1 + i, "gelu"))
    Fl.append(F("\n".join(c_), g + 18, g + 18, "gelu"))
    for i, t in enumerate(d_): Fl.append(F(t, g + 19 + i, g + 19 + i, "gelu"))
    Fl.append(F("\n".join(e_), g + 36, g + 36, "gelu"))
    for i, t in enumerate(st_): Fl.append(F(t, g + 37 + 2 * i, g + 37 + 2 * i, "gelu", tag=("h1", q)))
    if OPT.get("pull", 0):
        for i, t in enumerate(st_): Fl.append(dummyF(pull(t), g + OPT.get("gpl", 44) + 3 * i, g + OPT.get("gpl", 44) + 3 * i, "gelu"))
    for k in range(g + 1, g + 35): CAP[k] = 3
def h_check(Q):
    o = []
    for k in range(7):
        for c2 in range(2):
            f, r = hB(Q, k, c2)
            if f == "a": o.append(f"v_accvgpr_read_b32 v29, a{r}"); r = 29
            o.append(f"v_mov_b32 v28, v{r}" if not (k or c2) else f"v_max_u32 v28, v28, v{r}")
    return o
def check_F(Q, e, l, chain): return [F(t, e, l, chain, need=[("H", Q)] if i == 0 else None) for i, t in enumerate(h_check(Q))]
def spread_loads(Fl, ops, g0, step, chain="hl", tag=None):
    g = g0
    for t in ops:
        Fl.append(F(t, g - 2, g + 1, chain, tag=tag if t.startswith("buffer") else None))
        if t.startswith("buffer"): g += step
    return g
def have(Q):
    c = "v_cmp_eq_u32 vcc, -1, v28"
    A(c); A(f"s_cbranch_vccz L_h{Q}_x")
    keep = (list(st.vm), list(st.lg), list(st.hist))
    spin(f"L_h{Q}", ["s_sleep 4"] + [x for t in h_loads(Q, "s9", "s13") for x in t.split("\n")], "\n".join(h_check(Q)) + "\n" + c)
    st.vm, st.lg, st.hist = keep
    stamp(f"mchk{Q}")
spread_loads(Fl, h_loads(0), OPT.get("gl0", 176), 4, "ck", ("H", 0))
hl = h_loads(1); n1a = 5 * OPT.get("n1a", 3)
spread_loads(Fl, hl[:n1a], 234, 4, "ck", ("H", 1)); hl = hl[n1a:]
Fl += check_F(0, 241, 255, "hc")
for q in range(1, 4): Fl += stampF(f"mq{q}", 64 * q)
if OPT.get("abl"):
    ab = OPT["abl"]
    def drop(f):
        if isinstance(f.ins, tuple): return False
        t = f.ins.txt
        return (ab & 1 and t.endswith("lds")) or (ab & 2 and t.startswith("buffer_store_dwordx4")) or (ab & 4 and f.chain == "ck" and "dwordx4" in t) or (ab & 8 and f.chain == "w2r")
    Fl = [f for f in Fl if not drop(f)]
schedule(st, M, Fl, reserve=RES, verbose="G1", mem2=("rd", "dma", "w2r", "ck", "lw"), minback=0, capx=CAP)
stamp("G1")
a_, b_, c_, d_, e_, st_ = gelu_stages(3)
for i, t in enumerate(a_ + b_ + c_ + d_ + e_):
    A(t)
    if i % 9 == 8:
        while hl:
            x = hl.pop(0)
            if x.startswith("buffer"): st.add(x, tag=("H", 1)); break
            A(x)
for t in st_: A(t)
if OPT.get("pull", 0):
    for t in st_: dummy(pull(t))
stamp("mgelu3")
have(0)
stamp("gelu")

def facc(tp, tile, cb): return 96 + (tp * 8 + tile * 4 + cb) * 4
def g2(Q):
    r = []
    for ch in (([0, 1], [2, 3], [4, 5, 6]) if Q < 2 else ([0, 1, 2, 3, 4, 5, 6],)):
        for tp in range(2):
            for tile in range(2):
                for c2 in range(2):
                    for k in ch:
                        fa, ra = w2reg((Q >> 1) * 7 + k, tp, tile); fb, rb = hB(Q, k, c2)
                        r.append(mf(facc(tp, tile, (Q & 1) * 2 + c2), ra, rb, "0" if (Q < 2 and k == 0) else None, "v", fa, fb))
    return r
Fl = []
for i in range(4):
    for k, t in enumerate(w2_reads(9 + i)): Fl.append(F(t, 8 * i + k, 8 * i + k + 1, "rd", need=[("W2", 9 + i)] if k == 0 else None))
g = spread_loads(Fl, hl, 0, 3, tag=("H", 1))
spread_loads(Fl, h_loads(2), max(g, OPT.get("gl2", 10)), OPT.get("st2", 3), tag=("H", 2))
Fl += check_F(1, 41, 55, "hc")
schedule(st, g2(0), Fl)
stamp("mg20")
have(1)
with Capture() as cp:
    A(f"""
v_and_b32 v2, 15, v1
v_lshlrev_b32 v2, 10, v2
v_lshrrev_b32 v3, 4, v1
v_lshl_add_u32 v2, v3, 4, v2
v_lshlrev_b32 v4, 4, v3
s_lshl_b32 s92, s58, 16
s_lshl_b32 s60, s35, 14
s_add_u32 s92, s92, s60
s_lshl_b32 s95, s59, 7
s_add_u32 s92, s92, s95
s_add_u32 s60, s92, {WS_X1}
""")
    srd(52, 22, 1024)
Fl = cp.fillers(0, 30, "su", ren=False)
Fl += [F(t, 32 + k, 33 + k, "rd", need=[("W2", 13)] if k == 0 else None) for k, t in enumerate(w2_reads(13))]
spread_loads(Fl, h_loads(3), OPT.get("gl3", 8), OPT.get("st2", 3), tag=("H", 3))
Fl += check_F(2, 46, 55, "hc")
schedule(st, g2(1), Fl)
stamp("G2a")
have(2)
def fwrite(cb, tp, tile): return f"ds_write_b128 v5, v[{facc(tp,tile,cb)}:{facc(tp,tile,cb)+3}] offset:{cb*16384 + (tp*2+tile)*1024}"
def fw_F(Q, n0, n1, shift):
    return [F(fwrite((Q & 1) * 2 + (n & 1), n >> 2, (n >> 1) & 1), 7 * n + 6 + 8 + shift, 7 * n + 6 + 8 + shift, "fw") for n in range(n0, n1)]
Fl = []
spread_loads(Fl, ["buffer_load_dwordx4 v[240:243], v2, s[48:51], s60 offen sc1", "buffer_load_dwordx4 v[244:247], v2, s[48:51], s60 offen offset:64 sc1",
             "buffer_load_dwordx4 v[248:251], v4, s[52:55], s95 offen", "buffer_load_dwordx4 v[252:255], v4, s[52:55], s95 offen offset:64"], 2, 6)
Fl += check_F(3, 41, 55, "hc")
for t in ["s_lshl_b32 s3, s35, 12", "v_add_u32 v5, s3, v16"]: Fl.append(F(t, 0, 2, "fw"))
Fl.append(F(("barrier", []), 3, 3, "fw"))
Fl += fw_F(2, 0, 6, 0)
schedule(st, g2(2), Fl)
stamp("mg22")
have(3)
with Capture() as cp:
    A(f"""
s_lshl_b32 s60, s35, 14
v_add_u32 v6, s60, v16
v_lshlrev_b32 v7, 5, v3
s_lshl_b32 s60, s59, 8
s_add_u32 s60, s60, {MODV + 3*2048}
v_add_u32 v7, s60, v7
v_and_b32 v8, 7, v1
v_lshlrev_b32 v8, 10, v8
v_lshl_add_u32 v8, v3, 4, v8
v_bfe_u32 v9, v1, 3, 1
v_lshl_add_u32 v8, v9, 6, v8
""")
    for tp in range(2):
        for q in range(2): A(f"ds_read_b128 v[{64+tp*8+4*q}:{67+tp*8+4*q}], v7 offset:{tp*128+q*16}")
    for r in range(8): A(f"v_lshlrev_b32 v{32+2*r}, 16, v{240+r}\nv_and_b32 v{33+2*r}, 0xffff0000, v{240+r}\nv_lshlrev_b32 v{48+2*r}, 16, v{248+r}\nv_and_b32 v{49+2*r}, 0xffff0000, v{248+r}")
    srd(52, 28, 2048 * 1024)
Fl = fw_F(2, 6, 8, -56 + 2) + fw_F(3, 0, 6, 0) + cp.fillers(0, 50, "su", ren=False)
schedule(st, g2(3), Fl)
stamp("G2")
A(fwrite(2, 1, 1)); A(fwrite(3, 1, 1))
stamp("mwr")
A("s_waitcnt lgkmcnt(0)\ns_barrier")
stamp("mbar")
for src in range(4):
    for n in range(4): A(f"ds_read_b128 v[{96+src*16+n*4}:{99+src*16+n*4}], v6 offset:{src*4096+n*1024}")
for src in range(4):
    for r in range(8): A(f"v_pk_add_f32 v[{48+2*r}:{49+2*r}], v[{48+2*r}:{49+2*r}], v[{96+src*16+2*r}:{97+src*16+2*r}]")
for r in range(8): A(f"v_pk_fma_f32 v[{32+2*r}:{33+2*r}], v[{48+2*r}:{49+2*r}], v[{64+2*r}:{65+2*r}], v[{32+2*r}:{33+2*r}]")
OM = OPT.get("outm", 1); ofl = ["", " sc1", " nt", " sc1 nt", " sc0 sc1"][OPT.get("outf", 3)]
if OM == 0:
    for h in range(2):
        for r in range(4 * h, 4 * h + 4): A(f"v_cvt_pk_bf16_f32 v{80+r}, v{32+2*r}, v{33+2*r}")
        A(f"buffer_store_dwordx4 v[{80+4*h}:{83+4*h}], v2, s[52:55], s92 offen offset:{64*h}{ofl}")
else:
    for r in range(8): A(f"v_cvt_pk_bf16_f32 v{80+r}, v{32+2*r}, v{33+2*r}")
    for r in range(4): A(f"v_mov_b32 v{88+r}, v{80+r}")
    for r in range(4): A(f"v_mov_b32_dpp v{80+r}, v{84+r} row_ror:8 row_mask:0xf bank_mask:0xc")
    A(f"buffer_store_dwordx4 v[80:83], v8, s[52:55], s92 offen{ofl}")
    for r in range(4): A(f"v_mov_b32_dpp v{84+r}, v{88+r} row_ror:8 row_mask:0xf bank_mask:0x3")
    A(f"s_add_u32 s92, s92, 8192\nbuffer_store_dwordx4 v[84:87], v8, s[52:55], s92 offen{ofl}")
if OPT["stamps"]:
    stamp("end")
    A("s_memrealtime s[96:97]\ns_waitcnt lgkmcnt(0)\ns_cmp_lg_u32 s35, " + str(OPT.get("sw", 0)) + "\ns_cbranch_scc1 L_end\ns_mov_b64 exec, 1")
    A(f"s_lshl_b32 s60, s2, 9\ns_add_u32 s60, s60, {WS_STAMP - WSO}\nv_mov_b32 v6, 0")
    A(f"s_mov_b32 s{64+stamp_n[0]-1}, s90")
    lst = [64 + n for n in range(stamp_n[0])] + [98, 96, 15]
    A("v_mov_b32 v3, 0")
    for n, s in enumerate(lst): A(f"v_mov_b32 v2, s{s}\nbuffer_store_dwordx2 v[2:3], v6, s[48:51], s60 offen offset:{n*8}\ns_nop 1")
    if OPT["dbg"] >= 0:
        srd(52, 30, 256)
        A(f"s_cmp_lg_u32 s2, {OPT['dbg']}\ns_cbranch_scc1 L_end")
        sel = [i for i in range(1, stamp_n[0]) if stamp_names[i] not in ("norm", "gelu", "G2a")][:14]
        for n, k in enumerate(sel): A(f"s_sub_u32 s60, s{64+k}, s64\nv_mov_b32 v2, s60\nbuffer_store_dword v2, v6, s[52:55], 0 offen offset:{4+n*4}\ns_nop 1")
        A("s_sub_u32 s60, s96, s98\nv_mov_b32 v2, s60\nbuffer_store_dword v2, v6, s[52:55], 0 offen offset:60")
        print("dbg order:", [stamp_names[k] for k in sel], "realtime")
    open(os.path.splitext(sys.argv[1])[0] + ".names", "w").write(" ".join(stamp_names))
    print("stamps:", len(lst))
if OPT.get("diag2"):
    srd(52, 30, 256)
    A("s_not_b32 s60, s98\nv_mov_b32 v2, s60\nv_mov_b32 v3, 0\ns_mov_b64 exec, 1\nbuffer_atomic_umax v2, v3, s[52:55], 0 offen sc1\ns_waitcnt vmcnt(0)")
    A("L_dg2:\ns_memrealtime s[96:97]\ns_waitcnt lgkmcnt(0)\ns_sub_u32 s96, s96, s98\ns_cmp_lt_u32 s96, 5500\ns_cbranch_scc1 L_dg2")
    A("buffer_load_dword v2, v3, s[52:55], 0 offen sc1\nv_readfirstlane_b32 s60, v2\ns_not_b32 s98, s60")
if OPT.get("diag"):
    A(f"L_diag:\ns_memrealtime s[96:97]\ns_waitcnt lgkmcnt(0)\ns_sub_u32 s96, s96, s98\ns_cmp_lt_u32 s96, {OPT['diag'] * 100}\ns_cbranch_scc1 L_diag")
A("s_endpgm")
st.reset(); st.newphase()
A(f"""
L_redo:
s_waitcnt vmcnt(0) lgkmcnt(0)
s_nop 15
s_mov_b32 s95, 1
s_mov_b32 s3, 8
s_barrier
L_redo_c:
""")
pre, d, post = k_ops(0)
for t in pre + d + post: A(t)
A("s_waitcnt vmcnt(0)\ns_barrier")
for kt in range(4):
    for sx in range(4): A(f"ds_read_b128 a[{STG+4*sx}:{STG+4*sx+3}], v{17+sx} offset:{KA + kt*1024}")
    for cb in range(4):
        for sx in range(4): A(mf(S(0, cb), STG + 4 * sx, qop(sx, cb), None if sx else "0", "v", "a", "v"))
    for cb in range(4): A(f"v_max3_f32 v{FLOOR[cb]}, v{FLOOR[cb]}, v{S(0,cb)}, v{S(0,cb)+1}\nv_max3_f32 v{FLOOR[cb]}, v{FLOOR[cb]}, v{S(0,cb)+2}, v{S(0,cb)+3}")
A("s_barrier\ns_sub_u32 s3, s3, 1\ns_cmp_lg_u32 s3, 0\ns_cbranch_scc1 L_redo_c")
for t in attn_setup:
    if t.split()[1] not in ("s36,", "s37,", "s38,"): A(t)
for ops in (k_ops(0), k_ops(1), v_ops(0)):
    for t in ops[0] + ops[1] + ops[2]: A(t)
A("s_waitcnt vmcnt(0)\ns_barrier")
for sx in range(4): A(f"ds_read_b128 a[{STG+sx*4}:{STG+sx*4+3}], v{17+sx} offset:{KA}")
A("s_waitcnt lgkmcnt(0)\ns_branch L_attn")
st.raw(f"""L_end:
    s_endpgm
L_codeend:
.section .rodata,"a"
.p2align 6
.amdhsa_kernel {NAME}_kernel
  .amdhsa_next_free_vgpr 512
  .amdhsa_next_free_sgpr 102
  .amdhsa_accum_offset 256
  .amdhsa_group_segment_fixed_size 0
  .amdhsa_kernarg_size 120
  .amdhsa_user_sgpr_count 2
  .amdhsa_user_sgpr_kernarg_segment_ptr 1
  .amdhsa_system_sgpr_workgroup_id_x 1
.end_amdhsa_kernel""")
def with_stubs(txt):
    import subprocess, tempfile
    lines = txt.split("\n")
    isins = lambda l: l.startswith("    ") and l.strip() and not l.strip().startswith((".", ";"))
    NS = 24
    tail = "".join(f"L_stub{k}:\n" for k in range(NS))
    with tempfile.TemporaryDirectory() as d:
        open(d + "/a.s", "w").write(txt.replace("L_codeend:", tail + "L_codeend:").replace("@", ""))
        subprocess.run(["clang", "-x", "assembler", "-target", "amdgcn-amd-amdhsa", "-mcpu=gfx950", "-c", d + "/a.s", "-o", d + "/a.o"], check=True)
        dis = subprocess.run(["llvm-objdump", "-d", "--mcpu=gfx950", d + "/a.o"], capture_output=True, text=True).stdout
    enc = [len(m.group(1).split()) * 4 for m in re.finditer(r"// [0-9A-F]+: ((?:[0-9A-F]{8} ?)+)", dis)]
    j = lines.index("L_join:"); n_after = sum(map(isins, lines[j:]))
    sizes = enc[len(enc) - n_after:]
    out = lines[:j + 1]; pos = 0; k = 1; i = 0; off = False
    for l in lines[j + 1:]:
        if isins(l):
            if pos >= k * 4096 and l.strip() != "s_endpgm" and not off:
                out += [f"L_stub{k}:", f"    s_cbranch_execz L_stub{k+4}"]; pos += 4; k += 1
            pos += sizes[i]; i += 1
            if l.strip() == "s_mov_b64 exec, 0": off = True
            if l.strip() == "s_mov_b64 exec, -1": off = False
        if l == "L_codeend:": out += [f"L_stub{q}:" for q in range(k, NS)] + ["    s_setpc_b64 s[100:101]"]
        out.append(re.sub(r"@(\d)", lambda m: str(k + int(m.group(1))), l))
    print("code after join:", pos, "stubs", k - 1)
    return "\n".join(out)
open(sys.argv[1], "w").write(with_stubs(st.text()) if OPT.get("warm", 1) else st.text())
print("waits", st.nwait, "nop states", st.nnop)
```
